```python
import torch

def _softmax(x, axis=-1):
    return torch.softmax(x, dim=axis)

def _gelu(x):
    return torch.nn.functional.gelu(x, approximate='tanh')

def _silu(x):
    return torch.nn.functional.silu(x)

def _sigmoid(x):
    return torch.sigmoid(x)

def _layernorm(x, axis=-1, eps=1e-05):
    m = x.mean(dim=axis, keepdim=True)
    v = x.var(dim=axis, keepdim=True, unbiased=False)
    return (x - m) / torch.sqrt(v + eps)

def _scatter_add(tgt, idx, src, axis=0):
    return tgt.clone().index_add_(axis, idx, src)

def _segment_sum(src, seg, n):
    out = torch.zeros((n,) + src.shape[1:], dtype=src.dtype)
    return out.index_add_(0, seg, src)

def _pad(x, pw):
    flat = tuple((v for pair in reversed(pw) for v in pair))
    return torch.nn.functional.pad(x, flat)
kernel_name = 'adaLN_cond__ssm_conv_h3__moe_arch_mod__prompt'

def setup_inputs():

    _w = lambda a: (lambda t: t.to(torch.bfloat16) if t.is_floating_point() else t)(torch.as_tensor(a))

    def _A_setup():
        B, S, D = (1, 2048, 512)
        ks = 4
        return {'q': _w((lambda *s: torch.randn(*s, dtype=torch.bfloat16) * 0.1)(B, S, D)), 'k': _w((lambda *s: torch.randn(*s, dtype=torch.bfloat16) * 3.2)(B, S, D)), 'v': _w((lambda *s: torch.randn(*s, dtype=torch.bfloat16) * 3.2)(B, S, D)), 'shift_k': _w((lambda *s: torch.randn(*s, dtype=torch.bfloat16) * 3.2)(D, ks) * 0.5), 'ssm_k': _w((lambda *s: torch.randn(*s, dtype=torch.bfloat16) * 3.2)(D, S) * (1.0 / S ** 0.5)), 'ssm_D': _w((lambda *s: torch.randn(*s, dtype=torch.bfloat16) * 3.2)(D))}
    _A_in = _A_setup()

    def _B_setup():
        B, S, D, F, C = (1, 2048, 512, 1792, 8)
        return {'x': _w((lambda *s: torch.randn(*s, dtype=torch.bfloat16) * 0.1)(B, S, D)), 'w_r': _w((lambda *s: torch.randn(*s, dtype=torch.bfloat16) * 0.4)(D)), 'w_gate': _w((lambda *s: torch.randn(*s, dtype=torch.bfloat16) * 0.4)(D, F)), 'w_up': _w((lambda *s: torch.randn(*s, dtype=torch.bfloat16) * 0.4)(D, F)), 'w_down': _w((lambda *s: torch.randn(*s, dtype=torch.bfloat16) * 0.4)(F, D))}
    _B_in = _B_setup()
    return {'A_q': _A_in['q'], 'A_k': _A_in['k'], 'A_v': _A_in['v'], 'A_shift_k': _A_in['shift_k'], 'A_ssm_k': _A_in['ssm_k'], 'A_ssm_D': _A_in['ssm_D'], 'B_x': _B_in['x'], 'B_w_r': _B_in['w_r'], 'B_w_gate': _B_in['w_gate'], 'B_w_up': _B_in['w_up'], 'B_w_down': _B_in['w_down'], 'c': _w((lambda *s: torch.randn(*s, dtype=torch.bfloat16) * 0.2)(1, 512) * 8.0), 'w_mod': _w((lambda *s: torch.randn(*s, dtype=torch.bfloat16) * 0.2)(512, 6 * 512) * 512 ** (-0.5) * 8.0)}

def reference(A_q, A_k, A_v, A_shift_k, A_ssm_k, A_ssm_D, B_x, B_w_r, B_w_gate, B_w_up, B_w_down, c, w_mod):

    def _A_ref(q, k, v, shift_k, ssm_k, ssm_D):
        B, S, D = q.shape
        ks = shift_k.shape[-1]
        k_pad = _pad(k, ((0, 0), (ks - 1, 0), (0, 0)))
        k_shift = torch.zeros_like(k)
        for t in range(ks):
            k_shift = k_shift + k_pad[:, t:t + S, :] * shift_k[:, ks - 1 - t][None, None, :]
        kv = k_shift * v
        L = 2 * S
        kv_pad = _pad(kv, ((0, 0), (0, S), (0, 0)))
        kf_pad = _pad(ssm_k, ((0, 0), (0, S)))
        kv_f = (lambda x, axes=(-2, -1): torch.fft.rfft2(x.float(), dim=axes))(kv_pad[:, None, :, :], axes=(1, 2))
        kf_f = (lambda x, axes=(-2, -1): torch.fft.rfft2(x.float(), dim=axes))(kf_pad[:, None, :], axes=(1, 2))
        kf_f = (lambda x, *d: x.permute(*d))(kf_f, 1, 2, 0)
        y_f = kv_f * kf_f[None, :, :, :]
        y = (lambda x, s, axes=(-2, -1): torch.fft.irfft2(x, s=s, dim=axes).to(torch.bfloat16))(y_f, (1, L), axes=(1, 2))[:, 0, :S, :]
        y = y + kv * ssm_D[None, None, :]
        return q * y

    def _B_ref(x, w_r, w_gate, w_up, w_down):
        B, S, D = x.shape
        C = 8
        r = x @ w_r
        idx = torch.argsort(-r, axis=-1)[:, :C]
        idx_e = (lambda x, n, axis: torch.repeat_interleave(x, n, dim=axis))(idx.reshape(B, C, 1), D, axis=2)
        x_sel = (lambda x, i, axis: torch.take_along_dim(x, i, dim=axis))(x, idx_e, axis=1)
        g = _silu(x_sel @ w_gate)
        u = x_sel @ w_up
        y = g * u @ w_down
        r_sel = _sigmoid((lambda x, i, axis: torch.take_along_dim(x, i, dim=axis))(r, idx, axis=1))
        y = y * r_sel.reshape(B, C, 1)
        b_off = (torch.arange(B) * S).reshape(B, 1)
        flat_idx = (idx + b_off).reshape(B * C)
        zero = (x * 0.0).reshape(B * S, D)
        upd = _scatter_add(zero, flat_idx, y.reshape(B * C, D), axis=0)
        return x + upd.reshape(B, S, D)
    x = A_q
    mod = (_silu(c) @ w_mod).reshape(c.shape[0], 6, 1, -1)
    sa, ca, ga, sb, cb, gb = (mod[:, 0].clone(), mod[:, 1].clone(), mod[:, 2].clone(), mod[:, 3].clone(), mod[:, 4].clone(), mod[:, 5].clone())
    h = _layernorm(x, axis=-1) * (1 + ca) + sa
    x = x + ga * _A_ref(h, A_k, A_v, A_shift_k, A_ssm_k, A_ssm_D)
    h = _layernorm(x, axis=-1) * (1 + cb) + sb
    x = x + gb * _B_ref(h, B_w_r, B_w_gate, B_w_up, B_w_down)
    return x
```

```python
import re

def _regs(tok):
    tok = tok.strip()
    tok = re.sub(r'^-', '', tok)
    m = re.match(r'^abs\((.*)\)$', tok) or re.match(r'^\|(.*)\|$', tok)
    if m: tok = m.group(1)
    m = re.match(r'^([vsa])\[(\d+):(\d+)\]$', tok)
    if m: return {(m.group(1), i) for i in range(int(m.group(2)), int(m.group(3)) + 1)}
    m = re.match(r'^([vsa])(\d+)$', tok)
    if m: return {(m.group(1), int(m.group(2)))}
    if tok == 'vcc': return {('s', 'vcc')}
    if tok == 'exec': return {('s', 'exec')}
    if tok == 'm0': return {('s', 'm0')}
    return set()

TRANS = ('v_exp_f32', 'v_log_f32', 'v_rcp_f32', 'v_rsq_f32', 'v_sqrt_f32', 'v_sin_f32', 'v_cos_f32')

class Ins:
    __slots__ = ('op', 'dst', 'src', 'kind', 'ws', 'dpp', 'text', 'srcab', 'srcc', 'wide_store', 'passes')

def parse(text):
    t = text.split(';')[0].strip()
    I = Ins(); I.text = text; I.ws = 1; I.dpp = False; I.srcab = set(); I.srcc = set(); I.wide_store = False; I.passes = 0
    parts = t.split(None, 1)
    op = parts[0]; I.op = op
    rest = parts[1] if len(parts) > 1 else ''
    ops = []; cur = ''; depth = 0
    for ch in rest:
        if ch in '[(': depth += 1
        if ch in '])': depth -= 1
        if ch == ',' and depth == 0: ops.append(cur); cur = ''
        else: cur += ch
    ops.append(cur)
    mods = ''
    if ops:
        lp = ops[-1].strip().split(None, 1)
        ops[-1] = lp[0] if lp else ''
        mods = lp[1] if len(lp) > 1 else ''
    ops = [o.strip() for o in ops]
    R = [_regs(o) for o in ops]
    I.dst = set(); I.src = set()
    allsrc = lambda lst: set().union(*lst) if lst else set()
    if op == 's_nop':
        I.kind = 'nop'; I.ws = int(ops[0], 0) + 1
    elif op.startswith('v_mfma'):
        I.kind = 'mfma'; I.dst = R[0]; I.srcab = R[1] | R[2]; I.srcc = R[3]; I.src = I.srcab | I.srcc
        I.passes = 8 if '32x32' in op else 4
    elif op.startswith('v_cmp'):
        I.kind = 'valu'; I.dst = R[0] | ({('s', 'exec')} if op.startswith('v_cmpx') else set()); I.src = allsrc(R[1:])
    elif op.startswith('v_permlane') and 'swap' in op:
        I.kind = 'valu'; I.dst = R[0] | R[1]; I.src = R[0] | R[1]
    elif op.startswith('v_readfirstlane') or op.startswith('v_readlane'):
        I.kind = 'valu'; I.dst = R[0]; I.src = allsrc(R[1:])
    elif op.startswith(('v_add_co', 'v_sub_co', 'v_subrev_co', 'v_addc_co', 'v_subb_co', 'v_div_scale')):
        I.kind = 'valu'; I.dst = R[0] | R[1]; I.src = allsrc(R[2:])
    elif op.startswith('v_'):
        I.kind = 'trans' if op.replace('_e32', '').replace('_e64', '') in TRANS else 'valu'
        I.dst = R[0]; I.src = allsrc(R[1:])
        if op.startswith(('v_fmac', 'v_pk_fmac', 'v_dot2c')): I.src |= R[0]
        if op.startswith('v_cndmask') and len(ops) == 3: I.src |= {('s', 'vcc')}
        if '_dpp' in op or 'row_' in mods or 'quad_perm' in mods or 'wave_' in mods:
            I.dpp = True
            I.src |= R[0]
    elif op.startswith(('ds_read', 'ds_bpermute', 'ds_permute', 'ds_swizzle')) or (op.startswith('ds_') and '_rtn' in op):
        I.kind = 'ds'; I.dst = R[0]; I.src = allsrc(R[1:])
    elif op.startswith('ds_'):
        I.kind = 'ds'; I.src = allsrc(R)
    elif op.startswith(('global_load_lds', )) or (op.startswith('buffer_load') and ' lds' in (' ' + mods)):
        I.kind = 'vmem'; I.src = allsrc(R) | {('s', 'm0')}
    elif op.startswith(('global_load', 'buffer_load')):
        I.kind = 'vmem'; I.dst = R[0]; I.src = allsrc(R[1:])
    elif op.startswith(('global_store', 'buffer_store')):
        I.kind = 'vmem'; I.src = allsrc(R)
        if op.endswith(('x3', 'x4')):
            I.wide_store = True
            I.srcc = R[1] if op.startswith('global') else R[0]
    elif op.startswith(('global_atomic', 'buffer_atomic')):
        I.kind = 'vmem'; I.src = allsrc(R)
        if 'sc0' in mods: I.dst = R[0]
    elif op.startswith('buffer_'):
        I.kind = 'vmem'
    elif op.startswith(('s_load', 's_memtime', 's_memrealtime', 's_getreg', 's_getpc')):
        I.kind = 'salu'; I.dst = R[0]; I.src = allsrc(R[1:])
    elif op.startswith(('s_cmp', 's_cbranch', 's_branch', 's_waitcnt', 's_barrier', 's_sleep', 's_endpgm', 's_setprio', 's_bitcmp')):
        I.kind = 'salu'; I.src = allsrc(R)
    elif op.startswith('s_'):
        I.kind = 'salu'; I.dst = R[0]; I.src = allsrc(R[1:])
        if 'saveexec' in op: I.dst |= {('s', 'exec')}
    else:
        raise ValueError('unknown op ' + text)
    return I

def need(p, c):
    n = 0
    pv = {r for r in p.dst if r[0] in 'va'}
    ps = {r for r in p.dst if r[0] == 's'}
    isvalu = lambda x: x.kind in ('valu', 'trans')
    if isvalu(p):
        if c.dpp and (pv & c.src): n = max(n, 2)
        if c.op.startswith('v_permlane') and (pv & c.src): n = max(n, 2)
        if c.op.startswith(('v_readfirstlane', 'v_readlane')) and (pv & c.src): n = max(n, 1)
        if c.kind == 'mfma' and (pv & c.src): n = max(n, 2)
        if p.kind == 'trans' and (isvalu(c) or c.kind in ('mfma',)) and (pv & c.src): n = max(n, 1)
        if ps:
            e = {('s', 'exec')}
            pse = ps - e
            if isvalu(c) and (pse & c.src): n = max(n, 4 if c.op.startswith(('v_readlane', 'v_writelane')) else 2)
            if c.kind == 'vmem' and (pse & c.src): n = max(n, 5)
            if ps & e:
                if c.dpp: n = max(n, 5)
                if c.op.startswith(('v_readlane', 'v_readfirstlane', 'v_writelane', 'v_permlane')) or c.kind == 'mfma': n = max(n, 4)
    if p.op.startswith('v_dot'):
        if c.op == p.op:
            ab = c.text.split(';')[0].split(',')
            if pv & (_regs(ab[1]) | _regs(ab[2])): n = max(n, 3)
        elif pv & (c.src | c.dst): n = max(n, 3)
    if isvalu(p) and not p.op.startswith('v_dot') and c.op.startswith('v_dot') and False: pass
    if p.kind == 'salu' and (('s', 'm0') in p.dst) and (('s', 'm0') in c.src): n = max(n, 1)
    if p.kind == 'mfma':
        k = {4: (6, 8, 3), 8: (10, 12, 7)}[p.passes]
        if c.kind == 'mfma':
            if (p.dst & c.srcab): n = max(n, k[1])
            if (p.dst & c.srcc) and not (p.dst == c.srcc and p.passes == c.passes): n = max(n, k[0])
            if (p.dst & c.dst) and not (p.dst == c.dst and p.dst == c.srcc): n = max(n, k[0])
        else:
            if (p.dst & (c.src | c.dst)): n = max(n, k[1])
            if isvalu(c) and (p.srcc & c.dst): n = max(n, k[2])
    if p.wide_store and (p.srcc & c.dst): n = max(n, 2 if isvalu(c) else 1)
    return n

class Asm:
    def __init__(self):
        self.out = []; self.hist = []
        self.npad = 0
    def raw(self, s): self.out.append(s)
    def label(self, name):
        self.out.append(name + ':')
    def flush(self, n=None):
        self('s_nop 7'); self('s_nop 3')
    def __call__(self, text):
        for line in text.strip().split('\n'):
            line = line.strip()
            if not line or line.startswith(';'):
                if line: self.out.append('    ' + line)
                continue
            if line.endswith(':') or line.startswith('.'):
                self.out.append(line); continue
            c = parse(line)
            dist = 0; req = 0
            for p in reversed(self.hist):
                r = need(p, c) - dist
                if r > req: req = r
                dist += p.ws
                if dist >= 20: break
            if req > 0:
                self.npad += 1
                while req > 0:
                    k = min(req, 16)
                    n = parse(f's_nop {k-1}'); self.hist.append(n); self.out.append(f'    s_nop {k-1}')
                    req -= k
            self.hist.append(c); self.out.append('    ' + line)
            if len(self.hist) > 64: self.hist = self.hist[-40:]
    def text(self): return '\n'.join(self.out) + '\n'
```

```python
import sys
from asmdsl import Asm

class Cfg:
    STAMP = False
    STOP = 99
    WS_BASE = 0
    WBL2 = True
    OUT_FL = 'sc1'
    POLL_CAP = 200000
    FORCE_SLOW = False
    SEC = 'bar'
    SITES = (1,3,5,7,8,9,10,13,14,15,16,18)
cfg = Cfg()

KNAME = "adaLN_cond__ssm_conv_h3__moe_arch_mod__prompt_kernel"
EPOCH = 0; FL1 = 0x10000; FL2 = 0x12000; FLM = 0x14000; KEYS = 0x18000; SEL = 0x1C000
XC = 0x20000; MODP = 0x30000; XB1 = 0x100000; X0 = 0x400000; X3 = 0x600000
H2P = 0x800000; X1P = 0xC00000; PART = 0x1000000; STAMPS = 0x2000000
NS3 = 14
NPROD = 8 * NS3
USTR = 4160; UCH = 8 * USTR
L_MOD = 0
L_KEY = 2048
L_GP = 2304
L_CNT = 3328
L_KVR = 3584; KVS = 4608
L_P = L_KVR + 2 * KVS
L_T = L_P; TS = 272
L_KD = L_P + 32768
L_U = L_KD + 8192
L_WGU = L_U + 2 * UCH
L_END = L_WGU + 32768
L_Z = L_U
L_WD = L_U + 8192
L_G2 = L_P
L_GU = L_P + 8192
LDS_BYTES = 153600
assert L_END <= LDS_BYTES

sX, sK, sV, sSK, sF, sD, sWR = 4, 6, 8, 10, 12, 14, 18
sWG, sWU, sWD, sC, sWM, sOUT, sDBG, sWS = 20, 22, 24, 26, 28, 30, 32, 34
sG, sM, sWAVE, sTAG, sMODE, sXCC, sCNT, sTILE = 36, 37, 38, 39, 40, 41, 42, 43
sKSRD = 44
sFSRD = 48
sMASK = 52
sWID = 53
sEP = 54
sDV = 55
sT0, sT1, sT2, sT3, sT4, sT5 = 56, 57, 58, 59, 60, 61
sEX = 62
sC0 = 44
sWSR = 64
sOUTR = 68
sD0, sD1 = 72, 73
sST = 74
def P(s): return f's[{s}:{s+1}]'

import re
def to_buffer(line):
    for base, srd in ((sWS, sWSR), (sOUT, sOUTR)):
        b = re.escape(P(base)); R = f's[{srd}:{srd+3}]'
        m = re.match(rf'^\s*global_load_lds_(\w+) (v\d+), {b}(.*)$', line)
        if m: return f'buffer_load_{m.group(1)} {m.group(2)}, {R}, 0 offen{m.group(3)} lds'
        m = re.match(rf'^\s*global_load_(\w+) (v\S+), (v\d+), {b}(.*)$', line)
        if m: return f'buffer_load_{m.group(1)} {m.group(2)}, {m.group(3)}, {R}, 0 offen{m.group(4)}'
        m = re.match(rf'^\s*global_store_(\w+) (v\d+), (v\S+), {b}(.*)$', line)
        if m: return f'buffer_store_{m.group(1)} {m.group(3)}, {m.group(2)}, {R}, 0 offen{m.group(4)}'
    return line
class BAsm(Asm):
    def __call__(self, text):
        super().__call__('\n'.join(to_buffer(l) for l in text.strip().split('\n')))
def build():
    A = BAsm()
    slow = []
    nst = [0]
    site = [0]
    def stamp(name=''):
        site[0] += 1
        if cfg.STAMP and site[0] in cfg.SITES:
            assert sST + 2 * nst[0] + 3 <= 101
            A(f's_memtime s[{sST+2*nst[0]}:{sST+2*nst[0]+1}]'); nst[0] += 1
            if site[0] in (8,): A('s_waitcnt lgkmcnt(0)')
    uid = [0]
    def lstore(text):
        uid[0] += 1; k = uid[0]
        A(f's_cmp_eq_u32 s{sMODE}, 1')
        A(f's_cbranch_scc0 L_slow{k}')
        A(text)
        A(f'L_back{k}:')
        slow.append((k, '\n'.join(l + ' sc1' for l in text.strip().split('\n'))))
    def poll(name, loads, check):
        A(f'{name}:')
        A(loads)
        A('s_waitcnt vmcnt(0)')
        A(check)
        A(f's_sub_u32 s{sCNT}, s{sCNT}, 1')
        A('s_cselect_b64 vcc, 0, vcc')
        A(f's_cselect_b32 s{sCNT}, 0, s{sCNT}')
        A(f's_cbranch_vccnz {name}')
    def unpack(d, s):
        A(f'v_lshlrev_b32 v{d}, 16, v{s}')
        A(f'v_and_b32 v{d+1}, s{sMASK}, v{s}')
    def rnd(d, s=None):
        A(f'v_cvt_pk_bf16_f32 v{d}, 0, v{d if s is None else s}')
    def pr(r): return f'v[{r}:{r+1}]'
    def q4(r): return f'v[{r}:{r+3}]'
    DPPM = 'row_mask:0xf bank_mask:0xf'
    def allred(regs, tmps, add='v_add_f32'):
        for r in regs: A(f'{add}_dpp v{r}, v{r}, v{r} row_ror:8 {DPPM}')
        for sw in ('v_permlane16_swap_b32', 'v_permlane32_swap_b32'):
            for r, t in zip(regs, tmps): A(f'v_mov_b32 v{t}, v{r}')
            for r, t in zip(regs, tmps): A(f'{sw} v{t}, v{r}')
            for r, t in zip(regs, tmps): A(f'{add} v{r}, v{r}, v{t}')
    def fullred(regs, tmps, add='v_add_f32'):
        for pat in ('quad_perm:[1,0,3,2]', 'quad_perm:[2,3,0,1]', 'row_half_mirror'):
            for r in regs: A(f'{add}_dpp v{r}, v{r}, v{r} {pat} {DPPM}')
        allred(regs, tmps, add)
    def lnstats(S, Q, t0, mean_out, inv_out):
        A(f'v_mul_f32 v{S}, 0x3b000000, v{S}')
        A(f'v_mul_f32 v{Q}, 0x3b000000, v{Q}')
        A(f'v_fma_f32 v{t0}, -v{S}, v{S}, v{Q}')
        A(f'v_max_f32 v{t0}, 0, v{t0}')
        rnd(mean_out, S)
        rnd(t0)
        A(f'v_add_f32 v{t0}, 0x3727c5ac, v{t0}')
        rnd(t0)
        A(f'v_sqrt_f32 v{t0}, v{t0}')
        rnd(t0)
        A(f'v_rcp_f32 v{inv_out}, v{t0}')

    A(f'''
    s_cmp_ge_u32 s2, 256
    s_cbranch_scc1 L_end
    s_load_dwordx16 s[4:19], s[0:1], 0
    s_load_dwordx16 s[20:35], s[0:1], 64
    ''')
    if cfg.STAMP:
        A(f's_memrealtime s[{sST}:{sST+1}]'); nst[0] += 1
    stamp()
    vLANE, vTID = 1, 0
    vA, vB, vT0, vT1, vT2, vT3 = 2, 3, 4, 5, 6, 7
    vJR = 8
    vX = 10
    vKr = 14
    vVr = 21
    vSk = 26
    vFl = 30
    vMT = 38
    vPT = 40
    A(f'''
    s_getreg_b32 s{sXCC}, hwreg(HW_REG_XCC_ID)
    s_and_b32 s{sG}, s2, 7
    s_lshr_b32 s{sM}, s2, 3
    v_lshrrev_b32 v{vT0}, 6, v0
    v_and_b32 v{vLANE}, 63, v0
    v_readfirstlane_b32 s{sWAVE}, v{vT0}
    s_and_b32 s{sXCC}, s{sXCC}, 15
    s_mov_b32 s{sMASK}, 0xffff0000
    s_mov_b32 s{sCNT}, {cfg.POLL_CAP}
    s_lshl_b32 s{sT0}, s{sM}, 16
    s_lshl_b32 s{sT1}, s{sG}, 7
    s_add_u32 s{sTILE}, s{sT0}, s{sT1}
    s_lshl_b32 s{sWID}, s{sG}, 5
    s_add_u32 s{sWID}, s{sWID}, s{sM}
    v_and_b32 v{vT0}, 31, v0
    v_lshrrev_b32 v{vT1}, 5, v0
    v_lshlrev_b32 v{vA}, 12, v{vT1}
    v_lshl_add_u32 v{vA}, v{vT0}, 2, v{vA}
    v_add_u32 v{vA}, s{sTILE}, v{vA}
    v_subrev_u32 v{vB}, 0xc00, v{vA}
    v_bfrev_b32 v{vT2}, 1
    v_cmp_gt_u32 vcc, 0xc00, v{vA}
    v_cndmask_b32 v{vB}, v{vB}, v{vT2}, vcc
    v_lshl_add_u32 v{vT2}, v{vT0}, 4, s{sT1}
    v_lshl_add_u32 v{vT2}, s{sT1}, 1, v{vT2}
    v_add_u32 v{vT2}, s{sT1}, v{vT2}
    ''')
    A(f'''
    v_and_b32 v{vT3}, 7, v0
    v_lshlrev_b32 v{vT3}, 2, v{vT3}
    s_lshl_b32 s{sT2}, s{sG}, 5
    v_add_u32 v{vT3}, s{sT2}, v{vT3}
    s_add_u32 s{sT3}, s{sXCC}, 1
    v_mov_b32 v{vPT}, s{sWID}
    v_mov_b32 v{vPT+1}, s{sT3}
    s_lshl_b32 s{sT4}, s{sG}, 7
    s_lshl_b32 s{sT5}, s{sM}, 2
    s_add_u32 s{sT4}, s{sT4}, s{sT5}
    s_waitcnt lgkmcnt(0)
    s_add_u32 s{sWS}, s{sWS}, {cfg.WS_BASE}
    s_addc_u32 s{sWS+1}, s{sWS+1}, 0
    s_mov_b32 s{sWSR}, s{sWS}
    s_mov_b32 s{sWSR+1}, s{sWS+1}
    s_mov_b32 s{sWSR+2}, 0x4000000
    s_mov_b32 s{sWSR+3}, 0x20000
    s_mov_b32 s{sOUTR}, s{sOUT}
    s_mov_b32 s{sOUTR+1}, s{sOUT+1}
    s_mov_b32 s{sOUTR+2}, 0x200000
    s_mov_b32 s{sOUTR+3}, 0x20000
    s_cmp_lg_u32 s{sWAVE}, 0
    s_cbranch_scc1 L_nomode
    s_mov_b64 exec, 1
    global_store_byte v{vPT}, v{vPT+1}, {P(sDBG)} sc1
    s_mov_b64 exec, -1
    L_nomode:
    s_mov_b32 s{sKSRD}, s{sK}
    s_mov_b32 s{sKSRD+1}, s{sK+1}
    s_mov_b32 s{sKSRD+2}, 0x200000
    s_mov_b32 s{sKSRD+3}, 0x20000
    s_load_dword s{sEP}, {P(sWS)}, {EPOCH}
    s_load_dword s{sDV}, {P(sD)}, s{sT4}
    global_load_dwordx4 {q4(vSk)}, v{vT2}, {P(sSK)}
    ''')
    for i in range(3): A(f'buffer_load_dword v{vKr+i}, v{vB}, s[{sKSRD}:{sKSRD+3}], 0 offen offset:{1024*i}')
    for i in range(4): A(f'global_load_dword v{vKr+3+i}, v{vA}, {P(sK)} offset:{1024*i}')
    for i in range(4): A(f'global_load_dword v{vVr+i}, v{vA}, {P(sV)} offset:{1024*i}')
    if cfg.SEC == 'bar': A('s_barrier')
    A(f'''
    s_cmp_lg_u32 s{sWAVE}, 7
    s_cbranch_scc1 L_nopt
    ''')
    A(f'''
    s_lshr_b32 s{sT0}, s{sM}, 2
    s_lshl_b32 s{sT0}, s{sT0}, 7
    s_lshl_b32 s{sT1}, s{sG}, 10
    s_add_u32 s{sT0}, s{sT0}, s{sT1}
    s_add_u32 s{sT1}, s{sT0}, {FL1}
    v_mov_b32 v{vPT+2}, s{sT1}
    s_add_u32 s{sT1}, s{sT0}, {FL2}
    v_writelane_b32 v{vPT+2}, s{sT1}, 2
    v_writelane_b32 v{vPT+2}, s{sT1}, 3
    s_lshl_b32 s{sT0}, s{sG}, 7
    s_add_u32 s{sT1}, s{sT0}, {FLM}
    v_writelane_b32 v{vPT+2}, s{sT1}, 4
    v_writelane_b32 v{vPT+2}, s{sT1}, 5
    s_add_u32 s{sT1}, s{sT0}, {SEL}
    v_writelane_b32 v{vPT+2}, s{sT1}, 6
    v_writelane_b32 v{vPT+2}, s{sT1}, 7
    s_lshl_b32 s{sT0}, s{sWID}, 6
    s_and_b32 s{sT0}, s{sT0}, 0xffffff80
    s_add_u32 s{sT1}, s{sT0}, {KEYS}
    v_writelane_b32 v{vPT+2}, s{sT1}, 8
    v_writelane_b32 v{vPT+2}, s{sT1}, 9
    s_lshl_b32 s{sT0}, s{sWID}, 7
    s_add_u32 s{sT1}, s{sT0}, {MODP}
    v_writelane_b32 v{vPT+2}, s{sT1}, 10
    v_writelane_b32 v{vPT+2}, s{sT1}, 11
    v_and_b32 v{vPT+3}, 1, v0
    v_lshl_add_u32 v{vPT+2}, v{vPT+3}, 6, v{vPT+2}
    s_mov_b64 exec, 0xfff
    global_load_dword v{vPT+3}, v{vPT+2}, {P(sWS)} sc1
    s_mov_b64 exec, 0xffff
    s_getpc_b64 {P(sT0)}
    s_and_b32 s{sT0}, s{sT0}, 0xffffff00
    s_lshl_b32 s{sT2}, s{sM}, 10
    v_lshl_add_u32 v{vPT+2}, v{vLANE}, 6, s{sT2}
    global_load_dword v{vPT+3}, v{vPT+2}, {P(sT0)}
    s_mov_b64 exec, -1
    L_nopt:
    global_load_dword v{vMT}, v{vT3}, {P(sDBG)} sc1
    ''')
    A(f'''
    s_lshl_b32 s{sT0}, s{sWID}, 13
    s_add_u32 s{sFSRD}, s{sF}, s{sT0}
    s_addc_u32 s{sFSRD+1}, s{sF+1}, 0
    s_mov_b32 s{sFSRD+2}, 8192
    s_mov_b32 s{sFSRD+3}, 0x20000
    v_lshlrev_b32 v{vT0}, 4, v0
    v_subrev_u32 v{vT1}, 16, v{vT0}
    v_and_b32 v{vT2}, 255, v0
    v_bfrev_b32 v{vT3}, 1
    v_cmp_eq_u32 vcc, 0, v{vT2}
    v_cndmask_b32 v{vT1}, v{vT1}, v{vT3}, vcc
    buffer_load_dwordx4 {q4(vFl)}, v{vT1}, s[{sFSRD}:{sFSRD+3}], 0 offen
    buffer_load_dwordx4 {q4(vFl+4)}, v{vT0}, s[{sFSRD}:{sFSRD+3}], 0 offen
    s_add_u32 s{sT1}, s{sT0}, {XB1}
    v_add_u32 v{vT0}, s{sT1}, v{vT0}
    global_load_dwordx4 {q4(vPT)}, v{vT0}, {P(sWS)} sc1
    v_and_b32 v{vT1}, 7, v0
    v_lshl_add_u32 v{vT1}, s{sWAVE}, 3, v{vT1}
    v_lshlrev_b32 v{vT1}, 10, v{vT1}
    v_lshrrev_b32 v{vT2}, 3, v{vLANE}
    v_lshl_add_u32 v{vJR}, v{vT2}, 4, v{vT1}
    v_add_u32 v{vJR}, s{sTILE}, v{vJR}
    global_load_dwordx4 {q4(vX)}, v{vJR}, {P(sX)}
    ''')
    stamp()
    vTp = 46
    vKp = 54
    vVp = 68
    vAc = 76
    vPp = 84
    vO = 92
    A('s_waitcnt vmcnt(9)')
    for j in range(4):
        src0, src1 = vSk + (j >> 1), vSk + 2 + (j >> 1)
        if j & 1:
            A(f'v_and_b32 v{vTp+2*j}, s{sMASK}, v{src0}'); A(f'v_and_b32 v{vTp+2*j+1}, s{sMASK}, v{src1}')
        else:
            A(f'v_lshlrev_b32 v{vTp+2*j}, 16, v{src0}'); A(f'v_lshlrev_b32 v{vTp+2*j+1}, 16, v{src1}')
    for r in range(7): unpack(vKp + 2*r, vKr + r)
    stamp()
    for i in range(4): A(f'v_pk_mul_f32 {pr(vAc+2*i)}, {pr(vKp+2*i)}, {pr(vTp+6)}')
    for i in range(8): rnd(vAc + i)
    for j in (2, 1, 0):
        for i in range(4): A(f'v_pk_mul_f32 {pr(vPp+2*i)}, {pr(vKp+2*(i+3-j))}, {pr(vTp+2*j)}')
        for i in range(8): rnd(vPp + i)
        for i in range(4): A(f'v_pk_add_f32 {pr(vAc+2*i)}, {pr(vAc+2*i)}, {pr(vPp+2*i)}')
        for i in range(8): rnd(vAc + i)
    A('s_waitcnt vmcnt(5)')
    for i in range(4): unpack(vVp + 2*i, vVr + i)
    for i in range(4): A(f'v_pk_mul_f32 {pr(vAc+2*i)}, {pr(vAc+2*i)}, {pr(vVp+2*i)}')
    for c in range(2):
        A(f'v_cvt_pk_bf16_f32 v{vO+2*c}, v{vAc+6+c}, v{vAc+4+c}')
        A(f'v_cvt_pk_bf16_f32 v{vO+2*c+1}, v{vAc+2+c}, v{vAc+c}')
    A(f'''
    v_and_b32 v{vT0}, 31, v0
    v_lshrrev_b32 v{vT1}, 5, v0
    v_mul_u32_u24 v{vT0}, {TS}, v{vT0}
    v_lshlrev_b32 v{vT1}, 3, v{vT1}
    v_sub_u32 v{vT0}, v{vT0}, v{vT1}
    v_add_u32 v{vT0}, {L_T + 120}, v{vT0}
    ds_write2_b64 v{vT0}, {pr(vO)}, {pr(vO+2)} offset0:0 offset1:16
    ''')
    A(f'''
    v_lshrrev_b32 v{vT1}, 4, v0
    v_mul_u32_u24 v{vT2}, {TS}, v{vT1}
    v_and_b32 v{vT3}, 15, v0
    v_lshl_add_u32 v{vT2}, v{vT3}, 4, v{vT2}
    v_lshlrev_b32 v{vT1}, 13, v{vT1}
    v_bfe_u32 v{vT3}, v0, 3, 1
    v_lshl_add_u32 v{vT1}, v{vT3}, 12, v{vT1}
    v_and_b32 v{vT3}, 7, v0
    v_lshl_add_u32 v{vT1}, v{vT3}, 4, v{vT1}
    s_lshl_b32 s{sT0}, s{sG}, 18
    s_sub_u32 s{sT1}, 31, s{sM}
    s_lshl_b32 s{sT1}, s{sT1}, 7
    s_add_u32 s{sT0}, s{sT0}, s{sT1}
    s_add_u32 s{sT0}, s{sT0}, {XB1}
    v_add_u32 v{vT1}, s{sT0}, v{vT1}
    s_waitcnt lgkmcnt(0)
    s_barrier
    ds_read_b128 {q4(vO)}, v{vT2} offset:{L_T}
    s_mul_i32 s{sTAG}, s{sEP}, 0x9E3779B1
    s_add_u32 s{sTAG}, s{sTAG}, 0x7F4A7C15
    s_add_u32 s{sT3}, s{sXCC}, 1
    s_mul_i32 s{sT3}, s{sT3}, 0x01010101
    ''')
    stamp()
    A(f'''
    s_waitcnt vmcnt(4)
    v_cmp_ne_u32 vcc, s{sT3}, v{vMT}
    s_cbranch_vccnz L_modeslow
    s_mov_b32 s{sMODE}, {0 if cfg.FORCE_SLOW else 1}
    L_modeback:
    s_waitcnt lgkmcnt(0)
    ''')
    lstore(f'global_store_dwordx4 v{vT1}, {q4(vO)}, {P(sWS)}')
    A(f'''
    s_lshl_b32 s{sT0}, s{sG}, 10
    s_lshl_b32 s{sT1}, s{sWAVE}, 7
    s_add_u32 s{sT0}, s{sT0}, s{sT1}
    s_lshl_b32 s{sT1}, s{sM}, 2
    s_add_u32 s{sT0}, s{sT0}, s{sT1}
    v_mov_b32 v{vA}, s{sT0}
    v_mov_b32 v{vB}, s{sTAG}
    ''')
    vW1 = 46
    vOa = 52
    vOb = 58
    A('s_waitcnt vmcnt(3)')
    for i in range(6): A(f'v_mov_b32 v{vW1+i}, v{vFl+1+i}')
    for i in range(6): A(f'v_alignbyte_b32 v{vOa+i}, v{vFl+i+1}, v{vFl+i}, 2')
    for i in range(6): A(f'v_alignbyte_b32 v{vOb+i}, v{vFl+i+2}, v{vFl+i+1}, 2')
    A(f'''
    v_lshrrev_b32 v{vT0}, 8, v0
    v_mul_u32_u24 v{vT0}, {UCH}, v{vT0}
    v_and_b32 v{vT1}, 255, v0
    v_lshl_add_u32 v{vT0}, v{vT1}, 4, v{vT0}
    v_add_u32 v{vT0}, {L_U}, v{vT0}
    s_waitcnt vmcnt(0)
    s_mov_b64 exec, 1
    ''')
    lstore(f'global_store_dword v{vA}, v{vB}, {P(sWS)} offset:0') if False else None
    A(f'v_add_u32 v{vT2}, {FL1}, v{vA}')
    lstore(f'global_store_dword v{vT2}, v{vB}, {P(sWS)}')
    A('s_mov_b64 exec, -1')
    stamp()
    srcs = {0: vOa, 1: vW1, 2: vOb, 3: vFl + 2, 4: vOa + 2, 5: vW1 + 2, 6: vOb + 2, 7: vFl + 4}
    for c in range(8):
        A(f'ds_write_b128 v{vT0}, {q4(srcs[c])} offset:{c*USTR + 16}')
    vZ = 64
    for i in range(4): A(f'v_mov_b32 v{vZ+i}, 0')
    A(f'''
    v_mul_u32_u24 v{vT0}, {USTR}, v{vLANE}
    v_lshrrev_b32 v{vT1}, 5, v{vLANE}
    v_mul_u32_u24 v{vT1}, {KVS - 512}, v{vT1}
    v_lshl_add_u32 v{vT1}, v{vLANE}, 4, v{vT1}
    v_add_u32 v{vT1}, {L_KVR + 4096}, v{vT1}
    s_cmp_lg_u32 s{sWAVE}, 0
    s_cbranch_scc1 L_nz0
    s_mov_b64 exec, 0xffff
    ds_write_b128 v{vT0}, {q4(vZ)} offset:{L_U}
    s_mov_b64 exec, -1
    ds_write_b128 v{vT1}, {q4(vZ)}
    v_mov_b32 v{vT0}, {L_CNT}
    ds_write_b32 v{vT0}, v{vZ}
    L_nz0:
    ''')
    vXp = 100
    vS, vQ, vR = 64, 66, 68
    for i in range(4): unpack(vXp + 2*i, vX + i)
    A(f'v_pk_add_f32 {pr(vS)}, {pr(vXp)}, {pr(vXp+2)}')
    A(f'v_pk_mul_f32 {pr(vQ)}, {pr(vXp)}, {pr(vXp)}')
    for i in range(1, 4): A(f'v_pk_fma_f32 {pr(vQ)}, {pr(vXp+2*i)}, {pr(vXp+2*i)}, {pr(vQ)}')
    for i in range(2, 4): A(f'v_pk_add_f32 {pr(vS)}, {pr(vS)}, {pr(vXp+2*i)}')
    A(f'v_add_f32 v{vS}, v{vS}, v{vS+1}')
    A(f'v_add_f32 v{vQ}, v{vQ}, v{vQ+1}')
    allred([vS, vQ], [vR, vR + 1])
    vXA = 108
    vXL = 109
    A(f'''
    v_mov_b32 v{vS+1}, s{sTAG}
    v_mov_b32 v{vS+3}, s{sTAG}
    v_lshrrev_b32 v{vT0}, 3, v{vLANE}
    v_and_b32 v{vT1}, 7, v0
    v_lshl_add_u32 v{vT1}, s{sWAVE}, 3, v{vT1}
    v_lshlrev_b32 v{vT1}, 4, v{vT1}
    v_lshl_add_u32 v{vXA}, v{vT0}, 18, v{vT1}
    s_lshl_b32 s{sT0}, s{sM}, 13
    s_lshl_b32 s{sT1}, s{sG}, 10
    s_add_u32 s{sT0}, s{sT0}, s{sT1}
    v_add_u32 v{vXA}, s{sT0}, v{vXA}
    v_lshl_add_u32 v{vXL}, v{vT0}, 10, v{vT1}
    s_lshl_b32 s{sT0}, s{sWID}, 13
    v_add_u32 v{vXL}, s{sT0}, v{vXL}
    ''')
    A(f'''
    s_and_b32 s{sT1}, s{sWAVE}, 3
    s_lshl_b32 s{sT1}, s{sT1}, 5
    s_lshr_b32 s{sT2}, s{sM}, 2
    s_lshl_b32 s{sT2}, s{sT2}, 7
    s_lshl_b32 s{sT3}, s{sG}, 10
    s_add_u32 s{sT2}, s{sT2}, s{sT3}
    s_add_u32 s{sT3}, s{sT2}, {FL1 + 96}
    s_sub_u32 s{sT3}, s{sT3}, s{sT1}
    v_and_b32 v{vT0}, 7, v0
    v_lshl_add_u32 v{vT0}, v{vT0}, 2, s{sT3}
    v_lshlrev_b32 v{vT1}, 4, v0
    s_add_u32 s{sT0}, s{sT0}, {XB1}
    v_add_u32 v{vT1}, s{sT0}, v{vT1}
    s_lshr_b32 s{sT3}, s{sWAVE}, 2
    s_mul_i32 s{sT3}, s{sT3}, {KVS}
    s_lshl_b32 s{sT1}, s{sT1}, 5
    s_add_u32 s{sT3}, s{sT3}, s{sT1}
    s_add_u32 s{sT3}, s{sT3}, {L_KVR}
    s_mov_b32 m0, s{sT3}
    ''')
    stamp()
    poll('L_poll1', f'global_load_dword v{vT2}, v{vT0}, {P(sWS)} sc1', f'v_cmp_ne_u32 vcc, s{sTAG}, v{vT2}')
    A(f'global_load_lds_dwordx4 v{vT1}, {P(sWS)} sc1')
    stamp()
    A(f'v_add_u32 v{vT0}, {X0}, v{vXA}')
    A('s_waitcnt vmcnt(0) lgkmcnt(0)')
    A('s_barrier')
    A(f'global_store_dwordx4 v{vT0}, {q4(vS)}, {P(sWS)} sc1')
    stamp()
    if cfg.STOP <= 1:
        A(f'''
        v_lshlrev_b32 v{vT0}, 4, v0
        v_lshrrev_b32 v{vT1}, 8, v0
        v_mul_u32_u24 v{vT1}, 512, v{vT1}
        v_add_u32 v{vT1}, v{vT0}, v{vT1}
        ds_read_b128 {q4(64)}, v{vT1} offset:{L_KVR}
        s_lshl_b32 s{sT0}, s{sWID}, 13
        s_add_u32 s{sT0}, s{sT0}, {STAMPS + 0x100000}
        v_add_u32 v{vT0}, s{sT0}, v{vT0}
        s_waitcnt lgkmcnt(0)
        global_store_dwordx4 v{vT0}, {q4(64)}, {P(sWS)}
        s_branch L_fin
        ''')
    A(f'''
    s_cmp_ge_u32 s{sWAVE}, 4
    s_cbranch_scc1 L_helper
    ''')
    vAA, vBA, vPW = 110, 111, 112
    vACC = 116
    vFA = [148, 180]
    vFB = [212, 46]
    A(f'''
    v_and_b32 v{vT0}, 15, v0
    v_lshrrev_b32 v{vT1}, 4, v{vLANE}
    v_and_b32 v{vT2}, 7, v0
    v_mul_u32_u24 v{vAA}, {USTR}, v{vT2}
    v_lshrrev_b32 v{vT2}, 3, v{vT0}
    v_add_u32 v{vT2}, v{vT2}, v{vT1}
    v_lshl_add_u32 v{vAA}, v{vT2}, 4, v{vAA}
    s_lshr_b32 s{sT0}, s{sWAVE}, 1
    s_and_b32 s{sT1}, s{sWAVE}, 1
    s_lshl_b32 s{sT1}, s{sT1}, 8
    s_mul_i32 s{sT2}, s{sT0}, {UCH}
    s_add_u32 s{sT2}, s{sT2}, s{sT1}
    s_add_u32 s{sT2}, s{sT2}, {L_U}
    v_add_u32 v{vAA}, s{sT2}, v{vAA}
    v_lshlrev_b32 v{vBA}, 4, v{vT1}
    v_lshlrev_b32 v{vT2}, 5, v{vT0}
    v_sub_u32 v{vBA}, v{vBA}, v{vT2}
    s_mul_i32 s{sT2}, s{sT0}, {KVS}
    s_add_u32 s{sT2}, s{sT2}, s{sT1}
    s_add_u32 s{sT2}, s{sT2}, {L_KVR + 480}
    v_add_u32 v{vBA}, s{sT2}, v{vBA}
    ''')
    def ldA(st, r, p): A(f'ds_read_b128 {q4(vFA[st]+4*p)}, v{vAA} offset:{64*r + 512*p}')
    def ldB(st, r, q): A(f'ds_read_b128 {q4(vFB[st]+4*q)}, v{vBA} offset:{(7-q)*512 + 64*r}')
    for i in range(8): ldA(0, 0, i); ldB(0, 0, i)
    A(f'''
    v_lshl_add_u32 v{vT2}, v{vT1}, 2, v{vT0}
    v_and_b32 v{vT2}, 15, v{vT2}
    v_lshl_add_u32 v{vT2}, v{vT1}, 4, v{vT2}
    v_lshlrev_b32 v{vPW}, 4, v{vT2}
    s_lshl_b32 s{sT0}, s{sWAVE}, 13
    s_add_u32 s{sT0}, s{sT0}, {L_P}
    v_add_u32 v{vPW}, s{sT0}, v{vPW}
    ''')
    order = [(p, j - p) for j in range(8) for p in range(j + 1)]
    for r in range(4):
        st = r & 1
        nxt = [(k, i) for i in range(8) for k in 'AB'] if r < 3 else []
        issued = 0
        written = 0
        for n, (p, q) in enumerate(order):
            j = p + q
            if p == 0:
                if r == 0:
                    A(f's_waitcnt lgkmcnt({min(15, 16 - 2*(j+1) + issued)})')
                elif j == 0:
                    A('s_waitcnt lgkmcnt(0)') if False else None
            if r > 0 and n == 0:
                pass
            c = '0' if (r == 0 and p == 0) else q4(vACC + 4*j)
            A(f'v_mfma_f32_16x16x32_bf16 {q4(vACC+4*j)}, {q4(vFA[st]+4*p)}, {q4(vFB[st]+4*q)}, {c}')
            if nxt and issued < 16 and ((r == 0 and n >= 12 and n % 3 != 0) or (r > 0 and n >= 2 and n % 2 == 0)):
                k, i = nxt[issued]
                (ldA if k == 'A' else ldB)(st ^ 1, r + 1, i); issued += 1
            if r == 3:
                while written < 8 and n >= written*(written+3)//2 + 9 and written <= j - 1:
                    A(f'ds_write_b128 v{vPW}, {q4(vACC+4*written)} offset:{1024*written}'); written += 1
        while nxt and issued < 16:
            k, i = nxt[issued]
            (ldA if k == 'A' else ldB)(st ^ 1, r + 1, i); issued += 1
        if r < 3: A('s_waitcnt lgkmcnt(0)')
        else:
            while written < 8:
                A(f'ds_write_b128 v{vPW}, {q4(vACC+4*written)} offset:{1024*written}'); written += 1
    A('s_branch L_s1join')
    A('L_helper:')
    vKD = 116
    vKV = 132
    A(f'''
    s_lshl_b32 s{sT0}, s{sWAVE}, 9
    s_sub_u32 s{sT0}, {L_KVR + 4088}, s{sT0}
    v_lshlrev_b32 v{vT0}, 3, v{vLANE}
    v_sub_u32 v{vT0}, s{sT0}, v{vT0}
    ds_read_b64 {pr(vKV)}, v{vT0}
    ds_read_b64 {pr(vKV+2)}, v{vT0} offset:{KVS}
    ds_read_b64 {pr(vKV+4)}, v{vT0} offset:2048
    ds_read_b64 {pr(vKV+6)}, v{vT0} offset:{KVS+2048}
    s_lshl_b32 s{sD0}, s{sDV}, 16
    s_and_b32 s{sD1}, s{sDV}, s{sMASK}
    ''')
    vGW = 148
    vGC = 180
    A(f'''
    s_cmp_lt_u32 s{sM}, {NS3}
    s_cbranch_scc1 L_h_s3
    s_cmp_ge_u32 s{sM}, {NS3+12}
    s_cbranch_scc1 L_h_ld_done
    s_sub_u32 s{sT0}, s{sM}, {NS3}
    s_lshr_b32 s{sT1}, s{sT0}, 1
    s_and_b32 s{sT2}, s{sT0}, 1
    s_lshl_b32 s{sT2}, s{sT2}, 8
    s_sub_u32 s{sT3}, s{sWAVE}, 4
    s_lshl_b32 s{sT3}, s{sT3}, 6
    s_add_u32 s{sT2}, s{sT2}, s{sT3}
    v_and_b32 v{vT1}, 0x38, v0
    v_add_u32 v{vT1}, s{sT2}, v{vT1}
    v_lshlrev_b32 v{vT2}, 1, v{vT1}
    global_load_dwordx4 {q4(vGC)}, v{vT2}, {P(sC)}
    s_movk_i32 s{sT3}, 6144
    v_mul_lo_u32 v{vT1}, v{vT1}, s{sT3}
    v_and_b32 v{vT2}, 7, v0
    v_lshl_add_u32 v{vT1}, v{vT2}, 4, v{vT1}
    s_lshl_b32 s{sT1}, s{sT1}, 10
    s_lshl_b32 s{sT2}, s{sG}, 7
    s_add_u32 s{sT1}, s{sT1}, s{sT2}
    v_add_u32 v{vT1}, s{sT1}, v{vT1}
    ''')
    for i in range(8):
        A(f'global_load_dwordx4 {q4(vGW+4*i)}, v{vT1}, {P(sWM)}')
        if i < 7: A(f'v_add_u32 v{vT1}, s{sT3}, v{vT1}')
    A('s_branch L_h_ld_done')
    A('L_h_s3:')
    A(f'''
    s_mul_i32 s{sT0}, s{sG}, {NS3}
    s_add_u32 s{sT0}, s{sT0}, s{sM}
    s_lshl_b32 s{sT0}, s{sT0}, 5
    s_and_b32 s{sT1}, s{sWAVE}, 1
    s_mul_i32 s{sT1}, s{sT1}, {256*3584}
    s_add_u32 s{sT0}, s{sT0}, s{sT1}
    v_lshrrev_b32 v{vT1}, 1, v{vLANE}
    v_mul_u32_u24 v{vT1}, 3584, v{vT1}
    v_and_b32 v{vT2}, 1, v0
    v_lshl_add_u32 v{vT1}, v{vT2}, 4, v{vT1}
    v_add_u32 v{vT1}, s{sT0}, v{vT1}
    s_bitcmp1_b32 s{sWAVE}, 1
    s_cselect_b32 s{sT2}, s{sWU}, s{sWG}
    s_cselect_b32 s{sT3}, s{sWU+1}, s{sWG+1}
    s_sub_u32 s{sT4}, s{sWAVE}, 4
    s_lshl_b32 s{sT4}, s{sT4}, 13
    s_add_u32 s{sT4}, s{sT4}, {L_WGU}
    ''')
    for i in range(8):
        A(f's_mov_b32 m0, s{sT4}')
        A(f'global_load_lds_dwordx4 v{vT1}, {P(sT2)}')
        if i < 7:
            A(f'v_add_u32 v{vT1}, {32*3584}, v{vT1}')
            A(f's_add_u32 s{sT4}, s{sT4}, 1024')
    A('L_h_ld_done:')
    A('s_waitcnt lgkmcnt(0)')
    for t in range(2):
        for c in range(2):
            b = vKD + 8*t + 4*c; s = vKV + 4*t + 2*c
            A(f'v_and_b32 v{b}, s{sMASK}, v{s+1}')
            A(f'v_lshlrev_b32 v{b+1}, 16, v{s+1}')
            A(f'v_and_b32 v{b+2}, s{sMASK}, v{s}')
            A(f'v_lshlrev_b32 v{b+3}, 16, v{s}')
            for i in range(4): A(f'v_mul_f32 v{b+i}, s{sD0+c}, v{b+i}')
            for i in range(4): rnd(b + i)
    A(f'''
    s_sub_u32 s{sT0}, s{sWAVE}, 4
    s_lshl_b32 s{sT0}, s{sT0}, 11
    s_add_u32 s{sT0}, s{sT0}, {L_KD}
    v_lshl_add_u32 v{vT0}, v{vLANE}, 4, s{sT0}
    ds_write_b128 v{vT0}, {q4(vKD+8)}
    ds_write_b128 v{vT0}, {q4(vKD+12)} offset:1024
    s_cmp_lt_u32 s{sM}, {NS3}
    s_cbranch_scc1 L_h_gather
    s_cmp_ge_u32 s{sM}, {NS3+12}
    s_cbranch_scc1 L_h_gather
    ''')
    vSC = 184
    vSt = 188
    vGA = 204
    vGP = 212
    A('s_waitcnt vmcnt(8)')
    for i in range(4): unpack(vSt + 2*i, vGC + i)
    for i in range(8): A(f'v_mul_f32 v{vSt+8+i}, 0xbfb8aa3b, v{vSt+i}')
    for i in range(8): A(f'v_exp_f32 v{vSt+8+i}, v{vSt+8+i}')
    for i in range(8): A(f'v_add_f32 v{vSt+8+i}, 1.0, v{vSt+8+i}')
    for i in range(8): A(f'v_rcp_f32 v{vSt+8+i}, v{vSt+8+i}')
    for i in range(8): A(f'v_mul_f32 v{vSt+i}, v{vSt+i}, v{vSt+8+i}')
    for i in range(4): A(f'v_cvt_pk_bf16_f32 v{vSC+i}, v{vSt+2*i}, v{vSt+2*i+1}')
    A(f's_mov_b32 s{sT0}, 0x05040100')
    A(f's_mov_b32 s{sT1}, 0x07060302')
    for i in range(8): A(f'v_mov_b32 v{vGA+i}, 0')
    for rp in range(4):
        A(f's_waitcnt vmcnt({6 - 2*rp})')
        w0, w1 = vGW + 8*rp, vGW + 8*rp + 4
        for d in range(4):
            A(f'v_perm_b32 v{vGP+2*d}, v{w1+d}, v{w0+d}, s{sT0}')
            A(f'v_perm_b32 v{vGP+2*d+1}, v{w1+d}, v{w0+d}, s{sT1}')
        for c in range(8): A(f'v_dot2_f32_bf16 v{vGA+c}, v{vGP+c}, v{vSC+rp}, v{vGA+c}')
    for c in range(4): A(f'v_permlane32_swap_b32 v{vGA+c}, v{vGA+c+4}')
    for c in range(4): A(f'v_add_f32 v{vGA+c}, v{vGA+c}, v{vGA+c+4}')
    for c in range(2): A(f'v_permlane16_swap_b32 v{vGA+c}, v{vGA+c+2}')
    for c in range(2): A(f'v_add_f32 v{vGA+c}, v{vGA+c}, v{vGA+c+2}')
    for c in range(2): A(f'v_add_f32_dpp v{vGA+c}, v{vGA+c}, v{vGA+c} row_ror:8 {DPPM}')
    A(f'''
    v_and_b32 v{vT0}, 8, v0
    v_cmp_ne_u32 vcc, 0, v{vT0}
    v_cndmask_b32 v{vGA}, v{vGA}, v{vGA+1}, vcc
    v_and_b32 v{vT0}, 7, v0
    v_lshrrev_b32 v{vT1}, 3, v{vLANE}
    v_lshl_add_u32 v{vT0}, v{vT0}, 3, v{vT1}
    s_sub_u32 s{sT0}, s{sWAVE}, 4
    s_lshl_b32 s{sT0}, s{sT0}, 8
    s_add_u32 s{sT0}, s{sT0}, {L_GP}
    v_lshl_add_u32 v{vT0}, v{vT0}, 2, s{sT0}
    ds_write_b32 v{vT0}, v{vGA}
    v_mov_b32 v{vT1}, {L_CNT}
    v_mov_b32 v{vT2}, 1
    s_waitcnt lgkmcnt(0)
    s_mov_b64 exec, 1
    ds_add_rtn_u32 v{vT2}, v{vT1}, v{vT2}
    s_mov_b64 exec, -1
    s_waitcnt lgkmcnt(0)
    v_readfirstlane_b32 s{sT0}, v{vT2}
    s_cmp_lg_u32 s{sT0}, 3
    s_cbranch_scc1 L_h_gather
    v_lshlrev_b32 v{vT0}, 2, v{vLANE}
    ds_read2st64_b32 {pr(vGA)}, v{vT0} offset0:{L_GP//256} offset1:{L_GP//256+1}
    ds_read2st64_b32 {pr(vGA+2)}, v{vT0} offset0:{L_GP//256+2} offset1:{L_GP//256+3}
    s_sub_u32 s{sT0}, s{sM}, {NS3}
    s_lshl_b32 s{sT1}, s{sT0}, 8
    s_lshl_b32 s{sT2}, s{sG}, 12
    s_add_u32 s{sT1}, s{sT1}, s{sT2}
    s_add_u32 s{sT1}, s{sT1}, {MODP}
    v_add_u32 v{vT0}, s{sT1}, v{vT0}
    s_lshl_b32 s{sT0}, s{sT0}, 2
    s_lshl_b32 s{sT2}, s{sG}, 7
    s_add_u32 s{sT0}, s{sT0}, s{sT2}
    s_add_u32 s{sT0}, s{sT0}, {FLM}
    v_mov_b32 v{vT1}, s{sT0}
    s_waitcnt lgkmcnt(0)
    v_add_f32 v{vGA}, v{vGA}, v{vGA+1}
    v_add_f32 v{vGA+2}, v{vGA+2}, v{vGA+3}
    v_add_f32 v{vGA}, v{vGA}, v{vGA+2}
    ''')
    assert L_GP % 256 == 0
    lstore(f'global_store_dword v{vT0}, v{vGA}, {P(sWS)}')
    A('s_waitcnt vmcnt(0)')
    A('s_mov_b64 exec, 1')
    lstore(f'global_store_dword v{vT1}, v{vB}, {P(sWS)}')
    A('s_mov_b64 exec, -1')
    A('L_h_gather:')
    vMG = 148
    A(f'''
    s_cmp_eq_u32 s{sWAVE}, 7
    s_cbranch_scc1 L_s1join
    s_cmp_eq_u32 s{sWAVE}, 4
    s_cselect_b32 s{sT0}, 0, 3
    s_cselect_b32 s{sT1}, 1, 4
    s_cmp_eq_u32 s{sWAVE}, 6
    s_cselect_b32 s{sT0}, 2, s{sT0}
    s_cselect_b32 s{sT1}, 5, s{sT1}
    s_lshl_b32 s{sT2}, s{sG}, 7
    s_add_u32 s{sT2}, s{sT2}, {FLM}
    v_and_b32 v{vT0}, 1, v0
    v_and_b32 v{vT1}, 2, v0
    v_mov_b32 v{vT2}, s{sT0}
    v_mov_b32 v{vT3}, s{sT1}
    v_cmp_ne_u32 vcc, 0, v{vT1}
    v_cndmask_b32 v{vT2}, v{vT2}, v{vT3}, vcc
    v_lshl_add_u32 v{vT2}, v{vT2}, 1, v{vT0}
    v_lshl_add_u32 v{vT2}, v{vT2}, 2, s{sT2}
    s_lshl_b32 s{sT2}, s{sG}, 12
    s_add_u32 s{sT2}, s{sT2}, {MODP}
    v_lshl_add_u32 v{vT0}, v{vLANE}, 2, s{sT2}
    s_lshl_b32 s{sT2}, s{sT0}, 9
    s_lshl_b32 s{sT3}, s{sT1}, 9
    v_add_u32 v{vT1}, s{sT3}, v{vT0}
    v_add_u32 v{vT0}, s{sT2}, v{vT0}
    s_lshl_b32 s{sT4}, s{sG}, 7
    v_lshl_add_u32 v{vT3}, v{vLANE}, 1, s{sT4}
    global_load_ushort v{vMG+4}, v{vT3}, {P(sWR)}
    ''')
    poll('L_pollm', f'global_load_dword v{vT3}, v{vT2}, {P(sWS)} sc1', f'v_cmp_ne_u32 vcc, s{sTAG}, v{vT3}')
    A(f'''
    global_load_dword v{vMG}, v{vT0}, {P(sWS)} sc1
    global_load_dword v{vMG+1}, v{vT0}, {P(sWS)} offset:256 sc1
    global_load_dword v{vMG+2}, v{vT1}, {P(sWS)} sc1
    global_load_dword v{vMG+3}, v{vT1}, {P(sWS)} offset:256 sc1
    s_lshl_b32 s{sT0}, s{sT0}, 8
    s_lshl_b32 s{sT1}, s{sT1}, 8
    v_lshl_add_u32 v{vT0}, v{vLANE}, 2, s{sT0}
    v_lshl_add_u32 v{vT1}, v{vLANE}, 2, s{sT1}
    v_lshlrev_b32 v{vMG+4}, 16, v{vMG+4}
    s_waitcnt vmcnt(0)
    v_add_f32 v{vMG}, v{vMG}, v{vMG+1}
    v_add_f32 v{vMG+2}, v{vMG+2}, v{vMG+3}
    ''')
    rnd(vMG); rnd(vMG + 2)
    A(f'''
    v_add_f32 v{vMG+3}, 1.0, v{vMG+2}
    v_cvt_pk_bf16_f32 v{vMG+3}, 0, v{vMG+3}
    s_cmp_eq_u32 s{sWAVE}, 6
    s_cselect_b64 vcc, -1, 0
    v_cndmask_b32 v{vMG+2}, v{vMG+3}, v{vMG+2}, vcc
    ds_write_b32 v{vT0}, v{vMG} offset:{L_MOD}
    ds_write_b32 v{vT1}, v{vMG+2} offset:{L_MOD}
    s_cmp_lg_u32 s{sWAVE}, 5
    s_cbranch_scc1 L_s1join
    v_mul_f32 v{vMG+6}, v{vMG+2}, v{vMG+4}
    v_mul_f32 v{vMG+8}, v{vMG}, v{vMG+4}
    v_lshlrev_b32 v{vT0}, 2, v{vLANE}
    ds_write_b32 v{vT0}, v{vMG+6} offset:{L_MOD + 6*256}
    ''')
    fullred([vMG + 6, vMG + 8], [vMG + 10, vMG + 11])
    A(f'''
    v_mov_b32 v{vMG+7}, s{sTAG}
    v_mov_b32 v{vMG+9}, s{sTAG}
    s_lshl_b32 s{sT0}, s{sM}, 7
    s_lshl_b32 s{sT1}, s{sG}, 4
    s_add_u32 s{sT0}, s{sT0}, s{sT1}
    s_add_u32 s{sT0}, s{sT0}, {XC}
    v_lshl_add_u32 v{vT0}, v{vLANE}, 12, s{sT0}
    s_mov_b64 exec, 0xff
    global_store_dwordx4 v{vT0}, {q4(vMG+6)}, {P(sWS)} sc1
    s_mov_b64 exec, -1
    ''')
    A('L_s1join:')
    stamp()
    vPp0 = 148
    vKDe = 116
    A(f'''
    v_lshrrev_b32 v{vT0}, 2, v{vLANE}
    v_and_b32 v{vT1}, 3, v0
    v_lshl_add_u32 v{vT0}, v{vT1}, 2, v{vT0}
    v_and_b32 v{vT0}, 15, v{vT0}
    v_lshl_add_u32 v{vT0}, v{vT1}, 4, v{vT0}
    v_lshlrev_b32 v{vT0}, 4, v{vT0}
    s_lshl_b32 s{sT0}, s{sWAVE}, 10
    s_add_u32 s{sT1}, s{sT0}, {L_P}
    v_add_u32 v{vT0}, s{sT1}, v{vT0}
    s_lshl_b32 s{sT1}, s{sWAVE}, 11
    s_add_u32 s{sT1}, s{sT1}, {L_KD}
    v_lshl_add_u32 v{vT1}, v{vLANE}, 4, s{sT1}
    s_lshl_b32 s{sT2}, s{sWID}, 13
    s_add_u32 s{sT2}, s{sT2}, {XB1}
    v_lshl_add_u32 v{vT2}, v0, 4, s{sT2}
    s_waitcnt lgkmcnt(0)
    s_barrier
    ''')
    for w in range(4): A(f'ds_read_b128 {q4(vPp0+4*w)}, v{vT0} offset:{8192*w}')
    A(f'''
    s_cmp_ge_u32 s{sWAVE}, 4
    s_cbranch_scc1 L_nokd
    ds_read_b128 {q4(vKDe)}, v{vT1}
    ds_read_b128 {q4(vKDe+4)}, v{vT1} offset:1024
    L_nokd:
    s_waitcnt lgkmcnt(0)
    ''')
    for c in range(2):
        for h in range(2): A(f'v_pk_add_f32 {pr(vPp0+8*c+2*h)}, {pr(vPp0+8*c+2*h)}, {pr(vPp0+8*c+4+2*h)}')
    for c in range(2):
        for i in range(4): rnd(vPp0 + 8*c + i)
    for c in range(2):
        for h in range(2): A(f'v_pk_add_f32 {pr(vPp0+8*c+2*h)}, {pr(vPp0+8*c+2*h)}, {pr(vKDe+4*c+2*h)}')
    for i in range(4): A(f'v_cvt_pk_bf16_f32 v{vPp0+4+i}, v{vPp0+i}, v{vPp0+8+i}')
    lstore(f'global_store_dwordx4 v{vT2}, {q4(vPp0+4)}, {P(sWS)}')
    stamp()
    vPar = 164
    A(f'''
    v_lshrrev_b32 v{vT0}, 3, v{vLANE}
    v_lshlrev_b32 v{vT0}, 5, v{vT0}
    ''')
    for pi in range(7):
        A(f'ds_read_b128 {q4(vPar+8*pi)}, v{vT0} offset:{L_MOD + 256*pi}')
        A(f'ds_read_b128 {q4(vPar+8*pi+4)}, v{vT0} offset:{L_MOD + 256*pi + 16}')
    A(f'''
    v_add_u32 v{vT1}, {FL2}, v{vA}
    s_waitcnt vmcnt(0)
    s_mov_b64 exec, 1
    ''')
    lstore(f'global_store_dword v{vT1}, v{vB}, {P(sWS)}')
    A('s_mov_b64 exec, -1')
    stamp()
    vU = 46
    A(f'''
    v_add_u32 v{vT0}, {X0}, v{vXL}
    v_lshrrev_b32 v{vT1}, 3, v{vLANE}
    s_lshl_b32 s{sT0}, s{sWID}, 7
    s_add_u32 s{sT0}, s{sT0}, {XC}
    v_lshl_add_u32 v{vT1}, v{vT1}, 4, s{sT0}
    ''')
    poll('L_poll0', f'''global_load_dwordx4 {q4(vU)}, v{vT0}, {P(sWS)} sc1''',
         f'''v_xor_b32 v{vT2}, s{sTAG}, v{vU+1}
         v_xor_b32 v{vT3}, s{sTAG}, v{vU+3}
         v_or_b32 v{vT2}, v{vT2}, v{vT3}
         v_cmp_ne_u32 vcc, 0, v{vT2}''')
    vF2, vD2 = 54, 55
    A(f'''
    s_lshr_b32 s{sT2}, s{sM}, 2
    s_lshl_b32 s{sT2}, s{sT2}, 7
    s_lshl_b32 s{sT3}, s{sG}, 10
    s_add_u32 s{sT2}, s{sT2}, s{sT3}
    s_lshl_b32 s{sT3}, s{sWAVE}, 4
    s_add_u32 s{sT2}, s{sT2}, s{sT3}
    s_add_u32 s{sT2}, s{sT2}, {FL2}
    v_and_b32 v{vF2}, 3, v0
    v_lshl_add_u32 v{vF2}, v{vF2}, 2, s{sT2}
    s_lshl_b32 s{sT3}, s{sWAVE}, 1
    v_subrev_u32 v{vD2}, s{sT3}, v0
    v_and_b32 v{vD2}, 15, v{vD2}
    v_lshlrev_b32 v{vD2}, 4, v{vD2}
    v_lshrrev_b32 v{vT2}, 4, v0
    v_lshl_add_u32 v{vD2}, v{vT2}, 13, v{vD2}
    s_lshl_b32 s{sT2}, s{sG}, 18
    s_lshl_b32 s{sT3}, s{sM}, 8
    s_add_u32 s{sT2}, s{sT2}, s{sT3}
    s_add_u32 s{sT2}, s{sT2}, {XB1}
    v_add_u32 v{vD2}, s{sT2}, v{vD2}
    s_lshl_b32 s{sT2}, s{sWAVE}, 10
    s_add_u32 s{sT2}, s{sT2}, {L_Z}
    s_mov_b32 m0, s{sT2}
    ''')
    poll('L_poll2', f'global_load_dword v{vT2}, v{vF2}, {P(sWS)} sc1', f'v_cmp_ne_u32 vcc, s{sTAG}, v{vT2}')
    A(f'global_load_lds_dwordx4 v{vD2}, {P(sWS)} sc1')
    A(f'global_load_dwordx4 {q4(vU+4)}, v{vT1}, {P(sWS)} sc1')
    stamp()
    vH = 56
    vMn, vInv = 64, 66
    allred([vU, vU + 2], [vH, vH + 1])
    lnstats(vU, vU + 2, vH, vMn, vInv)
    A('s_waitcnt lgkmcnt(0)')
    for i in range(8): A(f'v_sub_f32 v{vH+i}, v{vXp+i}, v{vMn}')
    for i in range(8): rnd(vH + i)
    for i in range(8): A(f'v_mul_f32 v{vH+i}, v{vH+i}, v{vInv}')
    for i in range(8): rnd(vH + i)
    for i in range(8): A(f'v_mul_f32 v{vH+i}, v{vH+i}, v{vPar+8+i}')
    for i in range(8): rnd(vH + i)
    for i in range(8): A(f'v_add_f32 v{vH+i}, v{vH+i}, v{vPar+i}')
    for i in range(8): rnd(vH + i)
    vZA = 68
    A(f'''
    v_lshrrev_b32 v{vT0}, 3, v{vLANE}
    v_bfe_u32 v{vT2}, v0, 2, 1
    v_lshl_add_u32 v{vT2}, s{sWAVE}, 1, v{vT2}
    v_lshl_add_u32 v{vT2}, v{vT0}, 1, v{vT2}
    v_and_b32 v{vT2}, 15, v{vT2}
    v_lshlrev_b32 v{vT2}, 4, v{vT2}
    v_lshl_add_u32 v{vZA}, v{vT0}, 10, v{vT2}
    v_and_b32 v{vT2}, 3, v0
    v_lshl_add_u32 v{vZA}, v{vT2}, 2, v{vZA}
    s_waitcnt vmcnt(1)
    s_barrier
    ''')
    stamp()
    vZr = 70
    vZ1 = 74
    vSQ = 82
    A(f'ds_read2st64_b32 {pr(vZr)}, v{vZA} offset0:{L_Z//256} offset1:{L_Z//256+1}')
    A(f'ds_read2st64_b32 {pr(vZr+2)}, v{vZA} offset0:{L_Z//256+2} offset1:{L_Z//256+3}')
    if cfg.WBL2:
        A(f'''
        s_cmp_lg_u32 s{sWID if False else sM}, 31
        s_cbranch_scc1 L_nowb
        s_cmp_lg_u32 s{sWAVE}, 7
        s_cbranch_scc1 L_nowb
        buffer_wbl2 sc1
        L_nowb:
        ''')
    A(f'v_add_u32 v{vT0}, {X3}, v{vXA}')
    A('s_waitcnt lgkmcnt(0)')
    for i in range(4): unpack(vZ1 + 2*i, vZr + i)
    for i in range(8): A(f'v_mul_f32 v{vZ1+i}, v{vZ1+i}, v{vH+i}')
    for i in range(8): rnd(vZ1 + i)
    for i in range(8): A(f'v_mul_f32 v{vZ1+i}, v{vZ1+i}, v{vPar+16+i}')
    for i in range(8): rnd(vZ1 + i)
    for i in range(8): A(f'v_add_f32 v{vZ1+i}, v{vZ1+i}, v{vXp+i}')
    for i in range(8): rnd(vZ1 + i)
    S_, Q_, P_ = vSQ, vSQ + 2, vSQ + 4
    A(f'v_pk_add_f32 {pr(S_)}, {pr(vZ1)}, {pr(vZ1+2)}')
    A(f'v_pk_mul_f32 {pr(Q_)}, {pr(vZ1)}, {pr(vZ1)}')
    A(f'v_pk_mul_f32 {pr(P_)}, {pr(vZ1)}, {pr(vPar+48)}')
    for i in range(1, 4):
        A(f'v_pk_fma_f32 {pr(Q_)}, {pr(vZ1+2*i)}, {pr(vZ1+2*i)}, {pr(Q_)}')
        A(f'v_pk_fma_f32 {pr(P_)}, {pr(vZ1+2*i)}, {pr(vPar+48+2*i)}, {pr(P_)}')
        if i >= 2: A(f'v_pk_add_f32 {pr(S_)}, {pr(S_)}, {pr(vZ1+2*i)}')
    vUn = vSQ + 6
    A(f'v_add_f32 v{vUn}, v{S_}, v{S_+1}')
    A(f'v_add_f32 v{vUn+1}, v{Q_}, v{Q_+1}')
    A(f'v_add_f32 v{vUn+2}, v{P_}, v{P_+1}')
    A(f'v_mov_b32 v{vUn+3}, s{sTAG}')
    allred([vUn, vUn + 1, vUn + 2], [S_, Q_, P_])
    A(f'global_store_dwordx4 v{vT0}, {q4(vUn)}, {P(sWS)} sc1')
    stamp()
    A(f'''
    s_cmp_ge_u32 s{sM}, {NS3}
    s_cbranch_scc1 L_nowd
    s_mul_i32 s{sT0}, s{sG}, {NS3}
    s_add_u32 s{sT0}, s{sT0}, s{sM}
    s_lshl_b32 s{sT0}, s{sT0}, 14
    v_lshl_add_u32 v{vT1}, v0, 4, s{sT0}
    s_lshl_b32 s{sT1}, s{sWAVE}, 10
    s_add_u32 s{sT1}, s{sT1}, {L_WD}
    s_mov_b32 m0, s{sT1}
    v_add_u32 v{vT2}, 8192, v{vT1}
    global_load_lds_dwordx4 v{vT1}, {P(sWD)}
    s_add_u32 s{sT1}, s{sT1}, 8192
    s_mov_b32 m0, s{sT1}
    s_nop 0
    global_load_lds_dwordx4 v{vT2}, {P(sWD)}
    L_nowd:
    ''')
    A(f'''
    v_lshrrev_b32 v{vT1}, 3, v{vLANE}
    s_lshl_b32 s{sT0}, s{sWID}, 7
    s_add_u32 s{sT0}, s{sT0}, {XC}
    v_lshl_add_u32 v{vT1}, v{vT1}, 4, s{sT0}
    v_xor_b32 v{vT2}, s{sTAG}, v{vU+5}
    v_xor_b32 v{vT3}, s{sTAG}, v{vU+7}
    v_or_b32 v{vT2}, v{vT2}, v{vT3}
    v_cmp_ne_u32 vcc, 0, v{vT2}
    s_cbranch_vccnz L_pollc
    L_pollc_back:
    ''')
    allred([vU + 4, vU + 6], [S_, Q_])
    vR3 = 92
    A(f'v_add_u32 v{vT0}, {X3}, v{vXL}')
    poll('L_poll3', f'global_load_dwordx4 {q4(vR3)}, v{vT0}, {P(sWS)} sc1', f'v_cmp_ne_u32 vcc, s{sTAG}, v{vR3+3}')
    stamp()
    allred([vR3, vR3 + 1, vR3 + 2], [S_, Q_, P_])
    lnstats(vR3, vR3 + 1, S_, vMn, vInv)
    vKey = 96
    A(f'''
    v_fma_f32 v{vKey}, -v{vMn}, v{vU+4}, v{vR3+2}
    v_fma_f32 v{vKey}, v{vKey}, v{vInv}, v{vU+6}
    v_cvt_pk_bf16_f32 v{vKey}, 0, v{vKey}
    v_ashrrev_i32 v{vT0}, 31, v{vKey}
    v_or_b32 v{vT0}, 0x80000000, v{vT0}
    v_and_b32 v{vT0}, s{sMASK}, v{vT0}
    v_and_b32 v{vT1}, 7, v0
    v_lshl_add_u32 v{vT1}, s{sWAVE}, 3, v{vT1}
    s_lshl_b32 s{sT0}, s{sM}, 6
    s_sub_u32 s{sT0}, 2047, s{sT0}
    v_sub_u32 v{vT2}, s{sT0}, v{vT1}
    v_xor_b32 v{vKey}, v{vKey}, v{vT0}
    v_or_b32 v{vKey}, v{vKey}, v{vT2}
    v_lshlrev_b32 v{vT1}, 2, v{vT1}
    ds_write_b32 v{vT1}, v{vKey} offset:{L_KEY}
    v_lshrrev_b32 v{vT0}, 3, v{vLANE}
    v_lshlrev_b32 v{vT0}, 5, v{vT0}
    s_waitcnt lgkmcnt(0)
    s_barrier
    ds_read_b128 {q4(vR3)}, v{vT0} offset:{L_KEY}
    ds_read_b128 {q4(vSQ)}, v{vT0} offset:{L_KEY+16}
    ''')
    vH2 = 56
    for i in range(8): A(f'v_sub_f32 v{vH2+i}, v{vZ1+i}, v{vMn}')
    for i in range(8): rnd(vH2 + i)
    A('s_waitcnt lgkmcnt(0)')
    vRk = 97
    A(f'v_mov_b32 v{vRk}, 0')
    ks = [vR3 + i for i in range(4)] + [vSQ + i for i in range(4)]
    for half in range(2):
        for i in range(4): A(f'v_cmp_gt_u32 {P(sC0+2*i)}, v{ks[4*half+i]}, v{vKey}')
        for i in range(4): A(f'v_addc_co_u32 v{vRk}, {P(sC0+2*i)}, 0, v{vRk}, {P(sC0+2*i)}')
    allred([vRk], [vT0], add='v_add_u32')
    A(f'''
    s_lshl_b32 s{sT0}, s{sWID}, 6
    s_add_u32 s{sT0}, s{sT0}, {KEYS}
    v_lshl_add_u32 v{vT0}, v{vRk}, 3, s{sT0}
    v_mov_b32 v{vR3}, v{vKey}
    v_mov_b32 v{vR3+1}, s{sTAG}
    v_cmp_gt_u32 {P(sEX)}, 8, v{vRk}
    s_and_b64 exec, {P(sEX)}, 0xff
    s_cbranch_execz L_nokey
    ''')
    lstore(f'global_store_dwordx2 v{vT0}, {pr(vR3)}, {P(sWS)}')
    A('L_nokey:')
    A('s_mov_b64 exec, -1')
    stamp()
    for i in range(8): A(f'v_mul_f32 v{vH2+i}, v{vH2+i}, v{vInv}')
    for i in range(8): rnd(vH2 + i)
    for i in range(8): A(f'v_mul_f32 v{vH2+i}, v{vH2+i}, v{vPar+32+i}')
    for i in range(8): rnd(vH2 + i)
    for i in range(8): A(f'v_add_f32 v{vH2+i}, v{vH2+i}, v{vPar+24+i}')
    vPk = 110
    for i in range(4):
        A(f'v_cvt_pk_bf16_f32 v{vPk+2*i}, v{vH2+2*i}, v{vH2+2*i+1}')
        A(f'v_mov_b32 v{vPk+2*i+1}, s{sTAG}')
    A(f'''
    v_and_b32 v{vT1}, 7, v0
    v_lshl_add_u32 v{vT1}, s{sWAVE}, 3, v{vT1}
    v_lshlrev_b32 v{vT1}, 11, v{vT1}
    v_lshrrev_b32 v{vT2}, 3, v{vLANE}
    v_lshl_add_u32 v{vT1}, v{vT2}, 5, v{vT1}
    s_lshl_b32 s{sT0}, s{sM}, 17
    s_lshl_b32 s{sT1}, s{sG}, 8
    s_add_u32 s{sT0}, s{sT0}, s{sT1}
    s_add_u32 s{sT0}, s{sT0}, {H2P}
    v_add_u32 v{vT1}, s{sT0}, v{vT1}
    s_mov_b64 exec, {P(sEX)}
    s_cbranch_execz L_noh2
    global_store_dwordx4 v{vT1}, {q4(vPk)}, {P(sWS)} sc1
    global_store_dwordx4 v{vT1}, {q4(vPk+4)}, {P(sWS)} offset:16 sc1
    L_noh2:
    s_mov_b64 exec, -1
    ''')
    stamp()
    for i in range(4):
        A(f'v_cvt_pk_bf16_f32 v{vPk+8+2*i}, v{vZ1+2*i}, v{vZ1+2*i+1}')
        A(f'v_mov_b32 v{vPk+8+2*i+1}, s{sTAG}')
    A(f'''
    v_add_u32 v{vT1}, {X1P - H2P}, v{vT1}
    s_mov_b64 exec, {P(sEX)}
    s_cbranch_execz L_nox1
    global_store_dwordx4 v{vT1}, {q4(vPk+8)}, {P(sWS)} sc1
    global_store_dwordx4 v{vT1}, {q4(vPk+12)}, {P(sWS)} offset:16 sc1
    L_nox1:
    s_mov_b64 exec, -1
    ''')
    vOut = 126
    for i in range(4): unpack(vH2 + 2*i, vPk + 2*i)
    for i in range(8): A(f'v_mul_f32 v{vH2+i}, v{vH2+i}, v{vPar+40+i}')
    for i in range(8): rnd(vH2 + i)
    for i in range(8): A(f'v_add_f32 v{vH2+i}, v{vH2+i}, v{vZ1+i}')
    for i in range(4): A(f'v_cvt_pk_bf16_f32 v{vOut+i}, v{vH2+2*i}, v{vH2+2*i+1}')
    A(f'''
    s_cmp_lt_u32 s{sM}, {NS3}
    s_cbranch_scc1 L_s3
    s_andn2_b64 exec, exec, {P(sEX)}
    s_cbranch_execz L_noout
    global_store_dwordx4 v{vJR}, {q4(vOut)}, {P(sOUT)} {cfg.OUT_FL}
    L_noout:
    s_mov_b64 exec, -1
    s_branch L_tail
    ''')
    A('L_s3:')
    vWf = 130
    vKs = 154
    vM4, vM2, vM1 = 162, 163, 164
    A(f'''
    v_and_b32 v{vT0}, 3, v0
    v_bfe_u32 v{vT1}, v0, 2, 2
    v_lshrrev_b32 v{vT2}, 4, v{vLANE}
    v_lshl_add_u32 v{vT3}, v{vT2}, 3, v{vT1}
    v_lshlrev_b32 v{vT3}, 5, v{vT3}
    v_lshl_add_u32 v{vT3}, v{vT0}, 3, v{vT3}
    s_lshl_b32 s{sT0}, s{sWAVE}, 11
    s_add_u32 s{sT0}, s{sT0}, {L_WGU}
    v_add_u32 v{vT3}, s{sT0}, v{vT3}
    ''')
    for mat in range(2):
        for ks_ in range(2):
            for hh in range(2):
                A(f'ds_read_b64_tr_b16 {pr(vWf + 8*mat + 4*ks_ + 2*hh)}, v{vT3} offset:{16384*mat + 1024*ks_ + 128*hh}')
    A(f'''
    v_lshl_add_u32 v{vT3}, v{vT2}, 2, v{vT1}
    v_lshlrev_b32 v{vT3}, 10, v{vT3}
    v_lshl_add_u32 v{vT3}, v{vT0}, 3, v{vT3}
    s_lshl_b32 s{sT0}, s{sWAVE}, 7
    s_add_u32 s{sT0}, s{sT0}, {L_WD}
    v_add_u32 v{vT3}, s{sT0}, v{vT3}
    ''')
    for ct in range(4): A(f'ds_read_b64_tr_b16 {pr(vWf + 16 + 2*ct)}, v{vT3} offset:{32*ct}')
    A(f'''
    v_and_b32 v{vT0}, 2, v0
    v_cmp_eq_u32 vcc, 0, v{vT0}
    v_cndmask_b32 v{vM2}, 0, -1, vcc
    v_and_b32 v{vT0}, 1, v0
    v_cmp_eq_u32 vcc, 0, v{vT0}
    v_cndmask_b32 v{vM1}, 0, -1, vcc
    s_lshl_b32 s{sT0}, s{sG}, 11
    s_add_u32 s{sT0}, s{sT0}, {KEYS}
    v_lshl_add_u32 v{vT0}, v{vLANE}, 3, s{sT0}
    ''')
    poll('L_pollk', '\n'.join(f'global_load_dwordx2 {pr(vKs+2*r)}, v{vT0}, {P(sWS)} offset:{512*r} sc1' for r in range(4)),
         f'''v_xor_b32 v{vT1}, s{sTAG}, v{vKs+1}
         v_xor_b32 v{vT2}, s{sTAG}, v{vKs+3}
         v_xor_b32 v{vT3}, s{sTAG}, v{vKs+5}
         v_or3_b32 v{vT1}, v{vT1}, v{vT2}, v{vT3}
         v_xor_b32 v{vT2}, s{sTAG}, v{vKs+7}
         v_or_b32 v{vT1}, v{vT1}, v{vT2}
         v_cmp_ne_u32 vcc, 0, v{vT1}''')
    stamp()
    def sort8(regs, tmps):
        for x, t in zip(regs, tmps): A(f'v_max_u32_dpp v{t}, v{x}, v{x} row_shl:4 row_mask:0xf bank_mask:0x5')
        for x, t in zip(regs, tmps): A(f'v_min_u32_dpp v{t}, v{x}, v{x} row_shr:4 row_mask:0xf bank_mask:0xa')
        for x, t in zip(regs, tmps): A(f'v_mov_b32_dpp v{x}, v{t} quad_perm:[2,3,0,1] {DPPM}')
        for x, t in zip(regs, tmps): A(f'v_med3_u32 v{t}, v{t}, v{x}, v{vM2}')
        for x, t in zip(regs, tmps): A(f'v_mov_b32_dpp v{x}, v{t} quad_perm:[1,0,3,2] {DPPM}')
        for x, t in zip(regs, tmps): A(f'v_med3_u32 v{x}, v{t}, v{x}, v{vM1}')
    k0, k1, k2, k3 = vKs, vKs + 2, vKs + 4, vKs + 6
    t0, t1 = vKs + 1, vKs + 3
    A(f'v_max_u32_dpp v{k0}, v{k1}, v{k0} row_half_mirror {DPPM}')
    A(f'v_max_u32_dpp v{k2}, v{k3}, v{k2} row_half_mirror {DPPM}')
    sort8([k0, k2], [t0, t1])
    A(f'v_max_u32_dpp v{k0}, v{k2}, v{k0} row_half_mirror {DPPM}')
    sort8([k0], [t0])
    A(f'v_max_u32_dpp v{k0}, v{k0}, v{k0} row_mirror {DPPM}')
    sort8([k0], [t0])
    for sw in ('v_permlane16_swap_b32', 'v_permlane32_swap_b32'):
        A(f'v_mov_b32 v{t1}, v{k0}')
        A(f'{sw} v{t1}, v{k0}')
        A(f'v_max_u32_dpp v{k0}, v{k0}, v{t1} row_half_mirror {DPPM}')
        sort8([k0], [t0])
    vRow = vKs + 2
    vG = 166
    A(f'''
    v_and_b32 v{vRow}, 0x7ff, v{k0}
    v_sub_u32 v{vRow}, 2047, v{vRow}
    v_lshrrev_b32 v{vT1}, 4, v{vLANE}
    v_lshlrev_b32 v{vT1}, 5, v{vT1}
    v_lshl_add_u32 v{vT1}, v{vRow}, 11, v{vT1}
    s_lshl_b32 s{sT0}, s{sWAVE}, 8
    s_add_u32 s{sT0}, s{sT0}, {H2P}
    v_add_u32 v{vT1}, s{sT0}, v{vT1}
    ''')
    stamp()
    A(f'''
    s_cmp_lg_u32 s{sM}, 0
    s_cbranch_scc1 L_nosel
    s_cmp_lg_u32 s{sWAVE}, 7
    s_cbranch_scc1 L_nosel
    s_lshl_b32 s{sT0}, s{sG}, 7
    s_add_u32 s{sT0}, s{sT0}, {SEL}
    v_lshl_add_u32 v{vT2}, v{vLANE}, 3, s{sT0}
    v_mov_b32 v{vRow+1}, s{sTAG}
    s_mov_b64 exec, 0xff
    ''')
    lstore(f'global_store_dwordx2 v{vT2}, {pr(vRow)}, {P(sWS)}')
    A(f'''
    s_mov_b64 exec, -1
    s_cmp_lg_u32 s{sG}, 0
    s_cbranch_scc1 L_nosel
    s_add_u32 s{sT0}, s{sEP}, 1
    v_mov_b32 v{vT2}, {EPOCH}
    v_mov_b32 v{vT3}, s{sT0}
    s_mov_b64 exec, 1
    global_store_dword v{vT2}, v{vT3}, {P(sWS)} sc1
    s_mov_b64 exec, -1
    L_nosel:
    ''')
    poll('L_pollg', '\n'.join(f'global_load_dwordx4 {q4(vG+4*u)}, v{vT1}, {P(sWS)} offset:{128*(u>>1) + 16*(u&1)} sc1' for u in range(4)),
         '\n'.join([f'v_xor_b32 v{vG+1}, s{sTAG}, v{vG+1}'] +
                   [f'v_xor_b32 v{vG+2*i+1}, s{sTAG}, v{vG+2*i+1}' for i in range(1, 8)] +
                   [f'v_or3_b32 v{vG+1}, v{vG+1}, v{vG+3}, v{vG+5}', f'v_or3_b32 v{vG+7}, v{vG+7}, v{vG+9}, v{vG+11}',
                    f'v_or3_b32 v{vG+1}, v{vG+1}, v{vG+13}, v{vG+15}', f'v_or_b32 v{vG+1}, v{vG+1}, v{vG+7}',
                    f'v_cmp_ne_u32 vcc, 0, v{vG+1}']))
    stamp()
    for ks_ in range(2):
        b = vG + 8*ks_
        A(f'v_mov_b32 v{b+1}, v{b+2}'); A(f'v_mov_b32 v{b+2}, v{b+4}'); A(f'v_mov_b32 v{b+3}, v{b+6}')
    vDg = 182
    A('s_waitcnt lgkmcnt(0)')
    for mat in range(2):
        A(f'v_mfma_f32_16x16x32_bf16 {q4(vDg+4*mat)}, {q4(vWf+8*mat)}, {q4(vG)}, 0')
    for mat in range(2):
        A(f'v_mfma_f32_16x16x32_bf16 {q4(vDg+4*mat)}, {q4(vWf+8*mat+4)}, {q4(vG+8)}, {q4(vDg+4*mat)}')
    A(f'''
    v_and_b32 v{vT0}, 15, v0
    v_lshrrev_b32 v{vT2}, 4, v{vLANE}
    v_lshlrev_b32 v{vT2}, 4, v{vT2}
    v_lshl_add_u32 v{vT2}, v{vT0}, 6, v{vT2}
    s_lshl_b32 s{sT0}, s{sWAVE}, 10
    s_add_u32 s{sT0}, s{sT0}, {L_G2}
    v_add_u32 v{vT2}, s{sT0}, v{vT2}
    v_lshrrev_b32 v{vT0}, 2, v0
    v_lshlrev_b32 v{vT0}, 2, v{vT0}
    v_and_b32 v{vT3}, 3, v0
    v_lshl_add_u32 v{vT0}, v{vT3}, 11, v{vT0}
    s_mov_b32 s{sT0}, 0x00ff00ff
    s_mov_b32 s{sT1}, 0x00ff00ff
    s_mov_b64 exec, {P(sT0)}
    ds_write_b128 v{vT2}, {q4(vDg)}
    ds_write_b128 v{vT2}, {q4(vDg+4)} offset:512
    s_mov_b64 exec, -1
    s_waitcnt lgkmcnt(0)
    s_barrier
    ds_read2st64_b32 {pr(vDg)}, v{vT0} offset0:{L_G2//256} offset1:{L_G2//256+2}
    ds_read2st64_b32 {pr(vDg+2)}, v{vT0} offset0:{L_G2//256+4} offset1:{L_G2//256+6}
    v_lshrrev_b32 v{vT2}, 2, v0
    v_lshlrev_b32 v{vT2}, 1, v{vT2}
    s_waitcnt lgkmcnt(0)
    v_pk_add_f32 {pr(vDg)}, {pr(vDg)}, {pr(vDg+2)}
    ''')
    assert L_G2 % 256 == 0
    for pat in ('quad_perm:[1,0,3,2]', 'quad_perm:[2,3,0,1]'):
        for r in (vDg, vDg + 1): A(f'v_add_f32_dpp v{r}, v{r}, v{r} {pat} {DPPM}')
    rnd(vDg); rnd(vDg + 1)
    A(f'''
    v_mul_f32 v{vDg+2}, 0xbfb8aa3b, v{vDg}
    v_exp_f32 v{vDg+2}, v{vDg+2}
    v_add_f32 v{vDg+2}, 1.0, v{vDg+2}
    v_rcp_f32 v{vDg+2}, v{vDg+2}
    v_mul_f32 v{vDg}, v{vDg}, v{vDg+2}
    v_cvt_pk_bf16_f32 v{vDg}, 0, v{vDg}
    v_mul_f32 v{vDg}, v{vDg}, v{vDg+1}
    v_cvt_pk_bf16_f32 v{vDg}, v{vDg}, v{vDg}
    ds_write_b16 v{vT2}, v{vDg} offset:{L_GU}
    v_and_b32 v{vT0}, 7, v0
    v_lshrrev_b32 v{vT2}, 4, v{vLANE}
    v_lshlrev_b32 v{vT3}, 3, v{vT2}
    v_lshl_add_u32 v{vT3}, v{vT0}, 5, v{vT3}
    s_waitcnt lgkmcnt(0)
    s_barrier
    ds_read_b64 {pr(vDg)}, v{vT3} offset:{L_GU}
    ''')
    A(f'''
    v_mul_u32_u24 v{vT3}, {32*NPROD*64}, v{vT0}
    v_lshl_add_u32 v{vT3}, v{vT2}, 4, v{vT3}
    s_mul_i32 s{sT2}, s{sG}, {NS3}
    s_add_u32 s{sT2}, s{sT2}, s{sM}
    s_lshl_b32 s{sT2}, s{sT2}, 6
    s_mul_i32 s{sT3}, s{sWAVE}, {4*NPROD*64}
    s_add_u32 s{sT2}, s{sT2}, s{sT3}
    s_add_u32 s{sT2}, s{sT2}, {PART}
    v_add_u32 v{vT3}, s{sT2}, v{vT3}
    s_mov_b32 s{sT2}, 0x03020105
    s_mov_b32 s{sT3}, 0x03020106
    s_mov_b32 s{sT4}, 0x03020107
    s_waitcnt lgkmcnt(0)
    ''')
    vY = 166
    for i in range(4): A(f'v_mfma_f32_16x16x16_bf16 {q4(vY+4*i)}, {pr(vWf+16+2*i)}, {pr(vDg)}, 0')
    A(f's_mov_b64 exec, {P(sT0)}')
    for i in range(4):
        y = vY + 4*i
        for d in range(3): A(f'v_perm_b32 v{y+d}, v{y+3}, v{y+d}, s{sT2+d}')
        A(f'v_mov_b32 v{y+3}, s{sTAG}')
        A(f'global_store_dwordx4 v{vT3}, {q4(y)}, {P(sWS)} sc1')
        if i < 3: A(f'v_add_u32 v{vT3}, {NPROD*64}, v{vT3}')
    A('s_mov_b64 exec, -1')
    stamp()
    vOR = 200
    A(f'''
    v_and_b32 v{vOR}, 7, v0
    v_lshl_add_u32 v{vOR}, s{sWAVE}, 3, v{vOR}
    s_lshl_b32 s{sT0}, s{sM}, 6
    v_add_u32 v{vOR}, s{sT0}, v{vOR}
    s_mov_b64 {P(sEX)}, 0
    ''')
    A('s_branch L_selcmp')
    A('L_tail:')
    vSel = 154
    A(f'''
    v_and_b32 v{vOR}, 7, v0
    s_lshl_b32 s{sT0}, s{sG}, 7
    s_add_u32 s{sT0}, s{sT0}, {SEL}
    v_lshl_add_u32 v{vT0}, v{vOR}, 3, s{sT0}
    v_lshl_add_u32 v{vOR}, s{sWAVE}, 3, v{vOR}
    s_lshl_b32 s{sT0}, s{sM}, 6
    v_add_u32 v{vOR}, s{sT0}, v{vOR}
    s_not_b64 {P(sEX)}, {P(sEX)}
    ''')
    vWr = 130
    A(f'''
    v_lshlrev_b32 v{vT1}, 4, v{vLANE}
    global_load_dwordx4 {q4(vWr)}, v{vT1}, {P(sWR)}
    ''')
    poll('L_polls', f'global_load_dwordx2 {pr(vRow)}, v{vT0}, {P(sWS)} sc1', f'v_cmp_ne_u32 vcc, s{sTAG}, v{vRow+1}')
    A(f'v_and_b32 v{vRow}, 0x7ff, v{vRow}')
    A('L_selcmp:')
    for i in range(8):
        A(f'v_readlane_b32 s{sT0}, v{vRow}, {i}')
        A(f'v_cmp_eq_u32 vcc, s{sT0}, v{vOR}')
        A(f's_or_b64 {P(sEX)}, {P(sEX)}, vcc')
    A(f'''
    s_andn2_b64 exec, exec, {P(sEX)}
    s_cbranch_execz L_noout2
    global_store_dwordx4 v{vJR}, {q4(vOut)}, {P(sOUT)} {cfg.OUT_FL}
    L_noout2:
    s_mov_b64 exec, -1
    s_cmp_lt_u32 s{sM}, {NS3}
    s_cbranch_scc1 L_fin
    s_cmp_ge_u32 s{sM}, {NS3+16}
    s_cbranch_scc1 L_fin
    s_cmp_ge_u32 s{sWAVE}, 2
    s_cbranch_scc1 L_fin
    ''')
    vHr = 134
    vHs = 142
    vPu = 166
    A(f'''
    s_sub_u32 s{sT0}, s{sM}, {NS3}
    s_lshr_b32 s{sT1}, s{sT0}, 1
    s_and_b32 s{sT0}, s{sT0}, 1
    s_lshl_b32 s{sT0}, s{sT0}, 1
    s_add_u32 s{sT0}, s{sT0}, s{sWAVE}
    s_nop 3
    v_readlane_b32 s{sT2}, v{vRow}, s{sT1}
    s_lshl_b32 s{sT3}, s{sT2}, 11
    s_add_u32 s{sT3}, s{sT3}, {H2P}
    v_lshl_add_u32 v{vT0}, v{vLANE}, 5, s{sT3}
    ''')
    A(f'''
    v_and_b32 v{vT1}, 3, v0
    v_lshlrev_b32 v{vT1}, 2, v{vT1}
    v_lshrrev_b32 v{vT2}, 5, v{vLANE}
    v_lshl_add_u32 v{vT1}, v{vT2}, 1, v{vT1}
    v_bfe_u32 v{vT2}, v0, 4, 1
    v_add_u32 v{vT3}, v{vT1}, v{vT2}
    s_lshl_b32 s{sT4}, s{sT0}, 4
    v_add_u32 v{vT3}, s{sT4}, v{vT3}
    v_lshlrev_b32 v{vOR}, 2, v{vT3}
    ds_read_b32 v{vOR+1}, v{vOR} offset:{L_MOD + 5*256}
    s_lshl_b32 s{sT5}, s{sG}, 8
    s_add_u32 s{sT5}, s{sT5}, s{sT3}
    v_add_u32 v{vT1}, s{sT4}, v{vT1}
    v_lshl_add_u32 v{vT1}, v{vT1}, 2, s{sT5}
    v_add_u32 v{vOR+2}, {X1P - H2P}, v{vT1}
    s_lshl_b32 s{sT5}, s{sT2}, 10
    s_lshl_b32 s{sT4}, s{sG}, 7
    s_add_u32 s{sT5}, s{sT5}, s{sT4}
    v_lshl_add_u32 v{vOR+3}, v{vT3}, 1, s{sT5}
    ''')
    poll('L_pollr', f'''global_load_dwordx4 {q4(vHr)}, v{vT0}, {P(sWS)} sc1
         global_load_dwordx4 {q4(vHr+4)}, v{vT0}, {P(sWS)} offset:16 sc1
         global_load_dwordx2 {pr(vHs)}, v{vT1}, {P(sWS)} sc1
         global_load_dwordx2 {pr(vHs+2)}, v{vOR+2}, {P(sWS)} sc1''',
         f'''v_xor_b32 v{vHr+1}, s{sTAG}, v{vHr+1}
         v_xor_b32 v{vHr+3}, s{sTAG}, v{vHr+3}
         v_xor_b32 v{vHr+5}, s{sTAG}, v{vHr+5}
         v_xor_b32 v{vHr+7}, s{sTAG}, v{vHr+7}
         v_xor_b32 v{vHs+1}, s{sTAG}, v{vHs+1}
         v_xor_b32 v{vHs+3}, s{sTAG}, v{vHs+3}
         v_or3_b32 v{vHr+1}, v{vHr+1}, v{vHr+3}, v{vHr+5}
         v_or3_b32 v{vHr+7}, v{vHr+7}, v{vHs+1}, v{vHs+3}
         v_or_b32 v{vHr+1}, v{vHr+1}, v{vHr+7}
         v_cmp_ne_u32 vcc, 0, v{vHr+1}''')
    vRr = 146
    A(f'v_mov_b32 v{vRr}, 0')
    for i in range(4): A(f'v_dot2_f32_bf16 v{vRr}, v{vHr+2*i}, v{vWr+i}, v{vRr}')
    fullred([vRr], [vRr + 1])
    rnd(vRr)
    A(f'''
    v_mul_f32 v{vRr}, 0xbfb8aa3b, v{vRr}
    v_exp_f32 v{vRr}, v{vRr}
    v_add_f32 v{vRr}, 1.0, v{vRr}
    v_rcp_f32 v{vRr}, v{vRr}
    v_cvt_pk_bf16_f32 v{vRr}, 0, v{vRr}
    v_cmp_ne_u32 vcc, 0, v{vT2}
    v_lshlrev_b32 v{vHs+1}, 16, v{vHs}
    v_and_b32 v{vHs}, s{sMASK}, v{vHs}
    v_cndmask_b32 v{vHs}, v{vHs+1}, v{vHs}, vcc
    v_lshlrev_b32 v{vHs+3}, 16, v{vHs+2}
    v_and_b32 v{vHs+2}, s{sMASK}, v{vHs+2}
    v_cndmask_b32 v{vHs+2}, v{vHs+3}, v{vHs+2}, vcc
    s_lshl_b32 s{sT1}, s{sT1}, 5
    s_lshl_b32 s{sT4}, s{sG}, 2
    s_add_u32 s{sT1}, s{sT1}, s{sT4}
    s_add_u32 s{sT1}, s{sT1}, s{sT0}
    s_mul_i32 s{sT1}, s{sT1}, {NPROD*64}
    s_add_u32 s{sT1}, s{sT1}, {PART}
    v_lshl_add_u32 v{vT0}, v{vLANE}, 4, s{sT1}
    v_add_u32 v{vT1}, 4096, v{vT0}
    s_mov_b32 s{sT2}, 0x0004000c
    s_mov_b32 s{sT3}, 0x0402010c
    ''')
    stamp()
    lds_ = [f'global_load_dwordx4 {q4(vPu+4*i)}, v{vT0 if i < 4 else vT1}, {P(sWS)} offset:{1024*(i&3)} sc1' for i in range(7)]
    chk = [f'v_xor_b32 v{vPu+4*i+3}, s{sTAG}, v{vPu+4*i+3}' for i in range(7)]
    chk += [f'v_or3_b32 v{vPu+3}, v{vPu+3}, v{vPu+7}, v{vPu+11}', f'v_or3_b32 v{vPu+15}, v{vPu+15}, v{vPu+19}, v{vPu+23}',
            f'v_or3_b32 v{vPu+3}, v{vPu+3}, v{vPu+15}, v{vPu+27}', f'v_cmp_ne_u32 vcc, 0, v{vPu+3}']
    poll('L_pollp', '\n'.join(lds_), '\n'.join(chk))
    stamp()
    for i in range(7):
        u = vPu + 4*i
        A(f'v_perm_b32 v{u+3}, v{u+1}, v{u}, s{sT2}')
    for i in range(7):
        u = vPu + 4*i
        A(f'v_perm_b32 v{u+3}, v{u+2}, v{u+3}, s{sT3}')
    for (a, b) in ((0, 1), (2, 3), (4, 5), (0, 2), (4, 6), (0, 4)):
        for h in range(2): A(f'v_pk_add_f32 {pr(vPu+4*a+2*h)}, {pr(vPu+4*a+2*h)}, {pr(vPu+4*b+2*h)}')
    y = vPu
    A(f'''
    v_permlane32_swap_b32 v{y}, v{y+2}
    v_permlane32_swap_b32 v{y+1}, v{y+3}
    v_add_f32 v{y}, v{y}, v{y+2}
    v_add_f32 v{y+1}, v{y+1}, v{y+3}
    v_permlane16_swap_b32 v{y}, v{y+1}
    v_add_f32 v{y}, v{y}, v{y+1}
    v_add_f32_dpp v{y}, v{y}, v{y} row_ror:8 {DPPM}
    v_add_f32_dpp v{y}, v{y}, v{y} row_ror:4 {DPPM}
    v_cvt_pk_bf16_f32 v{y}, 0, v{y}
    v_mul_f32 v{y}, v{y}, v{vRr}
    v_cvt_pk_bf16_f32 v{y}, 0, v{y}
    v_add_f32 v{y}, v{y}, v{vHs}
    v_cvt_pk_bf16_f32 v{y}, 0, v{y}
    s_waitcnt lgkmcnt(0)
    v_mul_f32 v{y}, v{y}, v{vOR+1}
    v_cvt_pk_bf16_f32 v{y}, 0, v{y}
    v_add_f32 v{y}, v{y}, v{vHs+2}
    v_cvt_pk_bf16_f32 v{y}, v{y}, v{y}
    s_mov_b32 s{sT0}, 0x000f000f
    s_mov_b32 s{sT1}, 0x000f000f
    s_mov_b64 exec, {P(sT0)}
    global_store_short v{vOR+3}, v{y}, {P(sOUT)} {cfg.OUT_FL}
    s_mov_b64 exec, -1
    ''')
    A('L_fin:')
    if cfg.STAMP:
        A(f's_memtime s[{sST+2*nst[0]}:{sST+2*nst[0]+1}]'); nst[0] += 1
        A(f'''
        s_waitcnt lgkmcnt(0)
        s_lshl_b32 s{sT0}, s{sWID}, 3
        s_add_u32 s{sT0}, s{sT0}, s{sWAVE}
        s_lshl_b32 s{sT0}, s{sT0}, 7
        s_add_u32 s{sT0}, s{sT0}, {STAMPS}
        v_mov_b32 v{vT0}, s{sT0}
        s_mov_b64 exec, 1
        ''')
        for i in range(nst[0]):
            A(f'v_mov_b32 v{vT1}, s{sST+2*i}')
            A(f'global_store_dword v{vT0}, v{vT1}, {P(sWS)} offset:{4*i}')
        A(f'v_mov_b32 v{vT1}, s{sCNT}')
        A(f'global_store_dword v{vT0}, v{vT1}, {P(sWS)} offset:120')
        A(f'v_mov_b32 v{vT1}, s{sMODE}')
        A(f'global_store_dword v{vT0}, v{vT1}, {P(sWS)} offset:124')
    A('L_end:')
    A('s_endpgm')
    for k, t in slow:
        A(f'L_slow{k}:'); A('s_nop 4'); A(t); A('s_nop 1'); A(f's_branch L_back{k}')
    A('L_modeslow:')
    A(f'''
    v_and_b32 v{vT3}, 7, v0
    v_lshlrev_b32 v{vT3}, 2, v{vT3}
    s_lshl_b32 s{sT2}, s{sG}, 5
    v_add_u32 v{vT3}, s{sT2}, v{vT3}
    s_mov_b32 s{sT4}, 64
    L_moderetry:
    global_load_dword v{vMT}, v{vT3}, {P(sDBG)} sc1
    s_waitcnt vmcnt(0)
    s_mov_b32 s{sMODE}, {0 if cfg.FORCE_SLOW else 1}
    v_cmp_ne_u32 vcc, s{sT3}, v{vMT}
    s_cbranch_vccz L_modeback
    s_mov_b32 s{sMODE}, 0
    v_subrev_u32 v{vT0}, 0x01010101, v{vMT}
    v_not_b32 v{vMT}, v{vMT}
    v_and_b32 v{vT0}, v{vT0}, v{vMT}
    v_and_b32 v{vT0}, 0x80808080, v{vT0}
    v_cmp_ne_u32 vcc, 0, v{vT0}
    s_cbranch_vccz L_modeback
    s_sub_u32 s{sT4}, s{sT4}, 1
    s_cbranch_scc0 L_moderetry
    s_branch L_modeback
    ''')
    A('L_pollc:')
    poll('L_pollc2', f'global_load_dwordx4 {q4(vU+4)}, v{vT1}, {P(sWS)} sc1',
         f'''v_xor_b32 v{vT2}, s{sTAG}, v{vU+5}
         v_xor_b32 v{vT3}, s{sTAG}, v{vU+7}
         v_or_b32 v{vT2}, v{vT2}, v{vT3}
         v_cmp_ne_u32 vcc, 0, v{vT2}''')
    A('s_nop 1')
    A('s_branch L_pollc_back')
    return A

HEAD = open('adaLN_cond__ssm_conv_h3__moe_arch_mod__prompt.s.ref').read().split('; Override launch')[0]
def emit(path):
    A = build()
    s = HEAD + f'; @launch grid=(256,1,1) block=(512,1,1) lds={LDS_BYTES}\n'
    s += f'''.amdgcn_target "amdgcn-amd-amdhsa--gfx950"
.text
.globl {KNAME}
.p2align 8
.type {KNAME},@function
{KNAME}:
'''
    s += A.text()
    s += f'''.section .rodata,"a"
.p2align 6
.amdhsa_kernel {KNAME}
  .amdhsa_next_free_vgpr 248
  .amdhsa_next_free_sgpr 102
  .amdhsa_accum_offset 248
  .amdhsa_group_segment_fixed_size 0
  .amdhsa_kernarg_size 128
  .amdhsa_user_sgpr_count 2
  .amdhsa_user_sgpr_kernarg_segment_ptr 1
  .amdhsa_system_sgpr_workgroup_id_x 1
.end_amdhsa_kernel
'''
    open(path, 'w').write(s)
    return A

if __name__ == '__main__':
    out = sys.argv[1]
    for a in sys.argv[2:]:
        k, v = a.split('=')
        setattr(cfg, k, eval(v))
    A = emit(out)
    print('emitted', out, 'lines', len(A.out), 'pads', A.npad)
```

```python
import sys
from asmdsl import Asm

class Cfg:
    STAMP = False
    STOP = 99
    WS_BASE = 0
    WBL2 = True
    OUT_FL = 'sc1'
    POLL_CAP = 200000
    FORCE_SLOW = False
    SEC = 'bar'
    WPOS = 'key'
    X3ACK = True
    NT = ''
    WPF = True
    PARTPT = True
    SITES = ()
    ORDER = []
cfg = Cfg()

KNAME = "adaLN_cond__ssm_conv_h3__moe_arch_mod__prompt_kernel"
EPOCH = 0; FL1 = 0x10000; FL2 = 0x12000; FLM = 0x14000; MTAB = 0x16000; KEYS = 0x18000; SEL = 0x1C000
XC = 0x20000; MODP = 0x30000; XB1 = 0x100000; X0 = 0x400000; X3 = 0x600000
H2P = 0x800000; X1P = 0xC00000; PART = 0x1000000; GXB = 0x300000; STAMPS = 0x2000000
NS3 = 28
NPROD = 56
NG0 = 8
USTR = 4160; UCH = 8 * USTR
L_MOD = 0
L_KEY = 2048
L_GP = 4096
L_CNT = 3328
L_ST = 3584
L_XS = 4096
L_KVR = 8192; KVS = 4608
L_P = L_KVR + 2 * KVS
L_T = L_P; TS = 272
L_KD = L_P + 32768
L_U = L_KD + 8192
L_WGU = L_U + 2 * UCH
L_END = L_WGU + 32768
L_Z = L_U
L_WD = L_U + 8192
L_G2 = L_P
L_GU = L_P + 8192
LDS_BYTES = 158720
assert L_END <= LDS_BYTES

sX, sK, sV, sSK, sF, sD, sWR = 4, 6, 8, 10, 12, 14, 18
sWG, sWU, sWD, sC, sWM, sOUT, sDBG, sWS = 20, 22, 24, 26, 28, 30, 32, 34
sG, sM, sWAVE, sTAG, sMODE, sXCC, sCNT, sTILE = 36, 37, 38, 39, 40, 41, 42, 43
sKSRD = 44
sFSRD = 48
sMASK = 52
sWID = 53
sEP = 54
sDV = 55
sT0, sT1, sT2, sT3, sT4, sT5 = 56, 57, 58, 59, 60, 61
sEX = 62
sC0 = 44
sWSR = 64
sOUTR = 68
sD0, sD1 = 72, 73
sPEND, sPT = 16, 17
sHM = 10
sST = 74
def P(s): return f's[{s}:{s+1}]'

import re
def to_buffer(line):
    for base, srd in ((sWS, sWSR), (sOUT, sOUTR)):
        b = re.escape(P(base)); R = f's[{srd}:{srd+3}]'
        m = re.match(rf'^\s*global_load_lds_(\w+) (v\d+), {b}(.*)$', line)
        if m: return f'buffer_load_{m.group(1)} {m.group(2)}, {R}, 0 offen{m.group(3)} lds'
        m = re.match(rf'^\s*global_load_(\w+) (v\S+), (v\d+), {b}(.*)$', line)
        if m: return f'buffer_load_{m.group(1)} {m.group(2)}, {m.group(3)}, {R}, 0 offen{m.group(4)}'
        m = re.match(rf'^\s*global_store_(\w+) (v\d+), (v\S+), {b}(.*)$', line)
        if m: return f'buffer_store_{m.group(1)} {m.group(3)}, {m.group(2)}, {R}, 0 offen{m.group(4)}'
    return line
def add_nt(line):
    if not cfg.NT: return line
    l = line.strip()
    if l.startswith('global_load') and any(P(b) in l for b in (sX, sK, sV, sWM, sWD, sT2)) and 'sc1' not in l: return l + ' ' + cfg.NT
    if l.startswith('buffer_load') and (f's[{sKSRD}:{sKSRD+3}]' in l or f's[{sFSRD}:{sFSRD+3}]' in l): return l + ' ' + cfg.NT
    return line
class BAsm(Asm):
    def __call__(self, text):
        super().__call__('\n'.join(to_buffer(add_nt(l)) for l in text.strip().split('\n')))
def build():
    A = BAsm()
    slow = []
    late = []
    nst = [0]
    site = [0]
    def stamp(name=''):
        if cfg.STAMP and (name in cfg.SITES or name == 'start'):
            assert sST + 2 * nst[0] + 3 <= 101
            A(f's_memtime s[{sST+2*nst[0]}:{sST+2*nst[0]+1}]'); nst[0] += 1
            cfg.ORDER.append(name)
            if name in ('B2', 'B3b'): A('s_waitcnt lgkmcnt(0)')
    uid = [0]
    def lstore(text):
        uid[0] += 1; k = uid[0]
        A(f's_cmp_eq_u32 s{sMODE}, 1')
        A(f's_cbranch_scc0 L_slow{k}')
        A(text)
        A(f'L_back{k}:')
        slow.append((k, '\n'.join(l + ' sc1' for l in text.strip().split('\n'))))
    def poll(name, loads, check):
        A(f'{name}:')
        A(loads)
        A('s_waitcnt vmcnt(0)')
        A(check)
        A(f's_sub_u32 s{sCNT}, s{sCNT}, 1')
        A('s_cselect_b64 vcc, 0, vcc')
        A(f's_cselect_b32 s{sCNT}, 0, s{sCNT}')
        A(f's_cbranch_vccnz {name}')
    def unpack(d, s):
        A(f'v_lshlrev_b32 v{d}, 16, v{s}')
        A(f'v_and_b32 v{d+1}, s{sMASK}, v{s}')
    def rnd(d, s=None):
        A(f'v_cvt_pk_bf16_f32 v{d}, 0, v{d if s is None else s}')
    def pr(r): return f'v[{r}:{r+1}]'
    def q4(r): return f'v[{r}:{r+3}]'
    DPPM = 'row_mask:0xf bank_mask:0xf'
    def allred(regs, tmps, add='v_add_f32'):
        for r in regs: A(f'{add}_dpp v{r}, v{r}, v{r} row_ror:8 {DPPM}')
        for sw in ('v_permlane16_swap_b32', 'v_permlane32_swap_b32'):
            for r, t in zip(regs, tmps): A(f'v_mov_b32 v{t}, v{r}')
            for r, t in zip(regs, tmps): A(f'{sw} v{t}, v{r}')
            for r, t in zip(regs, tmps): A(f'{add} v{r}, v{r}, v{t}')
    def fullred(regs, tmps, add='v_add_f32'):
        for pat in ('quad_perm:[1,0,3,2]', 'quad_perm:[2,3,0,1]', 'row_half_mirror'):
            for r in regs: A(f'{add}_dpp v{r}, v{r}, v{r} {pat} {DPPM}')
        allred(regs, tmps, add)
    def lnstats(S, Q, t0, mean_out, inv_out):
        A(f'v_mul_f32 v{S}, 0x3b000000, v{S}')
        A(f'v_mul_f32 v{Q}, 0x3b000000, v{Q}')
        A(f'v_fma_f32 v{t0}, -v{S}, v{S}, v{Q}')
        A(f'v_max_f32 v{t0}, 0, v{t0}')
        rnd(mean_out, S)
        rnd(t0)
        A(f'v_add_f32 v{t0}, 0x3727c5ac, v{t0}')
        rnd(t0)
        A(f'v_sqrt_f32 v{t0}, v{t0}')
        rnd(t0)
        A(f'v_rcp_f32 v{inv_out}, v{t0}')

    A(f'''
    s_cmp_ge_u32 s2, 256
    s_cbranch_scc1 L_end
    s_load_dwordx16 s[4:19], s[0:1], 0
    s_load_dwordx16 s[20:35], s[0:1], 64
    ''')
    if cfg.STAMP:
        A(f's_memrealtime s[{sST}:{sST+1}]'); nst[0] += 1
    stamp('start')
    vLANE, vTID = 1, 0
    vA, vB, vT0, vT1, vT2, vT3 = 2, 3, 4, 5, 6, 7
    vPA = 9
    vJR = 8
    vX = 10
    vKr = 14
    vVr = 21
    vSk = 26
    vFl = 30
    vMT = 38
    vGW = 110
    vPT = 40
    A(f'''
    s_getreg_b32 s{sXCC}, hwreg(HW_REG_XCC_ID)
    s_and_b32 s{sG}, s2, 7
    s_lshr_b32 s{sM}, s2, 3
    v_lshrrev_b32 v{vT0}, 6, v0
    v_and_b32 v{vLANE}, 63, v0
    v_readfirstlane_b32 s{sWAVE}, v{vT0}
    s_and_b32 s{sXCC}, s{sXCC}, 15
    s_mov_b32 s{sMASK}, 0xffff0000
    s_mov_b32 s{sCNT}, {cfg.POLL_CAP}
    s_lshl_b32 s{sT0}, s{sM}, 16
    s_lshl_b32 s{sT1}, s{sG}, 7
    s_add_u32 s{sTILE}, s{sT0}, s{sT1}
    s_lshl_b32 s{sWID}, s{sG}, 5
    s_add_u32 s{sWID}, s{sWID}, s{sM}
    v_and_b32 v{vT0}, 31, v0
    v_lshrrev_b32 v{vT1}, 5, v0
    v_lshlrev_b32 v{vA}, 12, v{vT1}
    v_lshl_add_u32 v{vA}, v{vT0}, 2, v{vA}
    v_add_u32 v{vA}, s{sTILE}, v{vA}
    v_subrev_u32 v{vB}, 0xc00, v{vA}
    v_bfrev_b32 v{vT2}, 1
    v_cmp_gt_u32 vcc, 0xc00, v{vA}
    v_cndmask_b32 v{vB}, v{vB}, v{vT2}, vcc
    v_lshl_add_u32 v{vT2}, v{vT0}, 4, s{sT1}
    v_lshl_add_u32 v{vT2}, s{sT1}, 1, v{vT2}
    v_add_u32 v{vT2}, s{sT1}, v{vT2}
    ''')
    A(f'''
    s_add_u32 s{sT3}, s{sXCC}, 1
    v_mov_b32 v{vPT}, s{sWID}
    v_mov_b32 v{vPT+1}, s{sT3}
    s_lshl_b32 s{sT4}, s{sG}, 7
    s_lshl_b32 s{sT5}, s{sM}, 2
    s_add_u32 s{sT4}, s{sT4}, s{sT5}
    v_lshlrev_b32 v{vT0}, 4, v0
    v_subrev_u32 v{vT1}, 16, v{vT0}
    v_and_b32 v{vT3}, 255, v0
    v_cmp_eq_u32 vcc, 0, v{vT3}
    v_bfrev_b32 v{vT3}, 1
    v_cndmask_b32 v{vT1}, v{vT1}, v{vT3}, vcc
    s_lshl_b32 s{sT0}, s{sWID}, 13
    s_waitcnt lgkmcnt(0)
    s_load_dword s{sEP}, {P(sWS)}, {EPOCH + cfg.WS_BASE}
    global_load_dwordx4 {q4(vSk)}, v{vT2}, {P(sSK)}
    ''')
    for i in range(4): A(f'global_load_dword v{vKr+3+i}, v{vA}, {P(sK)} offset:{1024*i}')
    A(f'''
    s_mov_b32 s{sKSRD}, s{sK}
    s_mov_b32 s{sKSRD+1}, s{sK+1}
    s_mov_b32 s{sKSRD+2}, 0x200000
    s_mov_b32 s{sKSRD+3}, 0x20000
    s_mov_b32 exec_hi, 0
    ''')
    for i in range(3): A(f'buffer_load_dword v{vKr+i}, v{vB}, s[{sKSRD}:{sKSRD+3}], 0 offen offset:{1024*i}')
    A('s_mov_b64 exec, -1')
    for i in range(4): A(f'global_load_dword v{vVr+i}, v{vA}, {P(sV)} offset:{1024*i}')
    A(f'''
    s_add_u32 s{sWS}, s{sWS}, {cfg.WS_BASE}
    s_addc_u32 s{sWS+1}, s{sWS+1}, 0
    s_mov_b32 s{sWSR}, s{sWS}
    s_mov_b32 s{sWSR+1}, s{sWS+1}
    s_mov_b32 s{sWSR+2}, 0x4000000
    s_mov_b32 s{sWSR+3}, 0x20000
    s_mov_b32 s{sOUTR}, s{sOUT}
    s_mov_b32 s{sOUTR+1}, s{sOUT+1}
    s_mov_b32 s{sOUTR+2}, 0x200000
    s_mov_b32 s{sOUTR+3}, 0x20000
    s_add_u32 s{sFSRD}, s{sF}, s{sT0}
    s_addc_u32 s{sFSRD+1}, s{sF+1}, 0
    s_mov_b32 s{sFSRD+2}, 8192
    s_mov_b32 s{sFSRD+3}, 0x20000
    s_load_dword s{sDV}, {P(sD)}, s{sT4}
    ''')
    A(f'''
    s_cmp_lg_u32 s{sWAVE}, 7
    s_cbranch_scc1 L_nopt
    s_lshr_b32 s{sT0}, s{sM}, 2
    s_lshl_b32 s{sT0}, s{sT0}, 7
    s_lshl_b32 s{sT1}, s{sG}, 10
    s_add_u32 s{sT0}, s{sT0}, s{sT1}
    s_add_u32 s{sT1}, s{sT0}, {FL1}
    v_mov_b32 v{vPT+2}, s{sT1}
    s_add_u32 s{sT1}, s{sT0}, {FL2}
    v_writelane_b32 v{vPT+2}, s{sT1}, 2
    v_writelane_b32 v{vPT+2}, s{sT1}, 3
    s_lshl_b32 s{sT0}, s{sG}, 7
    s_add_u32 s{sT1}, s{sT0}, {FLM}
    v_writelane_b32 v{vPT+2}, s{sT1}, 4
    v_writelane_b32 v{vPT+2}, s{sT1}, 5
    s_add_u32 s{sT1}, s{sT0}, {SEL}
    v_writelane_b32 v{vPT+2}, s{sT1}, 6
    v_writelane_b32 v{vPT+2}, s{sT1}, 7
    s_lshl_b32 s{sT0}, s{sWID}, 6
    s_and_b32 s{sT0}, s{sT0}, 0xffffff80
    s_add_u32 s{sT1}, s{sT0}, {KEYS}
    v_writelane_b32 v{vPT+2}, s{sT1}, 8
    v_writelane_b32 v{vPT+2}, s{sT1}, 9
    s_lshl_b32 s{sT0}, s{sWID}, 8
    s_add_u32 s{sT1}, s{sT0}, {MODP}
    v_writelane_b32 v{vPT+2}, s{sT1}, 10
    v_writelane_b32 v{vPT+2}, s{sT1}, 11
    s_add_u32 s{sT1}, s{sT1}, 128
    v_writelane_b32 v{vPT+2}, s{sT1}, 12
    v_writelane_b32 v{vPT+2}, s{sT1}, 13
    v_and_b32 v{vPT+3}, 1, v0
    v_lshl_add_u32 v{vPT+2}, v{vPT+3}, 6, v{vPT+2}
    s_mov_b64 exec, 0x3fff
    global_load_dword v{vPT+3}, v{vPT+2}, {P(sWS)} sc1
    s_mov_b64 exec, 0xffff
    s_getpc_b64 {P(sT0)}
    L_pc:
    s_lshl_b32 s{sT2}, s{sM}, 10
    v_lshl_add_u32 v{vPT+2}, v{vLANE}, 6, s{sT2}
    v_min_u32 v{vPT+2}, L_codeend-L_pc-4, v{vPT+2}
    global_load_dword v{vPT+3}, v{vPT+2}, {P(sT0)}
    s_mov_b64 exec, -1
    L_nopt:
    ''')
    A(f'''
    v_mov_b32 v{vPT}, {L_CNT}
    v_mov_b32 v{vPT+1}, 0
    ds_write_b32 v{vPT}, v{vPT+1}
    v_and_b32 v{vT2}, 7, v0
    v_lshl_add_u32 v{vT2}, s{sWAVE}, 3, v{vT2}
    v_lshlrev_b32 v{vT2}, 10, v{vT2}
    v_lshrrev_b32 v{vT3}, 3, v{vLANE}
    v_lshl_add_u32 v{vJR}, v{vT3}, 4, v{vT2}
    v_add_u32 v{vJR}, s{sTILE}, v{vJR}
    s_max_u32 s{sT0}, s{sM}, {NG0}
    s_sub_u32 s{sT0}, s{sT0}, {NG0}
    s_lshr_b32 s{sT1}, s{sT0}, 2
    s_and_b32 s{sT2}, s{sT0}, 3
    s_lshl_b32 s{sT2}, s{sT2}, 7
    v_lshrrev_b32 v{vT2}, 3, v0
    v_lshl_add_u32 v{vT2}, v{vT2}, 1, s{sT2}
    v_lshlrev_b32 v{vGW+9}, 1, v{vT2}
    s_movk_i32 s{sT3}, 6144
    v_mul_lo_u32 v{vT2}, v{vT2}, s{sT3}
    v_and_b32 v{vT3}, 7, v0
    v_lshl_add_u32 v{vT2}, v{vT3}, 4, v{vT2}
    s_lshl_b32 s{sT1}, s{sT1}, 10
    s_lshl_b32 s{sT2}, s{sG}, 7
    s_add_u32 s{sT1}, s{sT1}, s{sT2}
    v_add_u32 v{vT2}, s{sT1}, v{vT2}
    v_add_u32 v{vT3}, s{sT3}, v{vT2}
    s_barrier
    buffer_load_dwordx4 {q4(vFl+4)}, v{vT0}, s[{sFSRD}:{sFSRD+3}], 0 offen
    s_mov_b64 exec, 1
    buffer_load_dwordx4 {q4(vFl)}, v{vT1}, s[{sFSRD}:{sFSRD+3}], 0 offen
    s_mov_b64 exec, -1
    global_load_dwordx4 {q4(vX)}, v{vJR}, {P(sX)}
    s_cmp_lt_u32 s{sM}, {NG0}
    s_cbranch_scc1 L_nowm
    global_load_dword v{vGW+8}, v{vGW+9}, {P(sC)}
    global_load_dwordx4 {q4(vGW)}, v{vT2}, {P(sWM)}
    global_load_dwordx4 {q4(vGW+4)}, v{vT3}, {P(sWM)}
    L_nowm:
    s_lshl_b32 s{sT0}, s{sG}, 9
    s_add_u32 s{sT0}, s{sT0}, {MTAB}
    v_and_b32 v{vPT}, 31, v0
    v_lshl_add_u32 v{vPT}, v{vPT}, 4, s{sT0}
    s_lshl_b32 s{sT1}, s{sM}, 4
    s_add_u32 s{sT0}, s{sT0}, s{sT1}
    v_mov_b32 v{vPT+1}, s{sT0}
    s_waitcnt lgkmcnt(0)
    s_mul_i32 s{sTAG}, s{sEP}, 0x9E3779B1
    s_add_u32 s{sTAG}, s{sTAG}, 0x7F4A7C15
    s_add_u32 s{sXCC}, s{sXCC}, s{sTAG}
    s_add_u32 s{sXCC}, s{sXCC}, 1
    v_mov_b32 v{vPT+2}, s{sXCC}
    s_cmp_lg_u32 s{sWAVE}, 0
    s_cbranch_scc1 L_nomode
    s_mov_b64 exec, 1
    global_store_dword v{vPT+1}, v{vPT+2}, {P(sWS)} sc1
    s_mov_b64 exec, -1
    L_nomode:
    ''')
    stamp('issued')
    A(f's_mov_b32 s{sPEND}, 0')
    wid_ = [0]
    def wv(n):
        wid_[0] += 1; k = wid_[0]
        A(f'''
        s_cmp_lt_u32 s{sM}, {NG0}
        s_cbranch_scc1 L_wv{k}a
        s_waitcnt vmcnt({n+3})
        L_wv{k}b:
        ''')
        late.append((f'L_wv{k}a', lambda n=n, k=k: (A(f's_waitcnt vmcnt({n})'), A(f's_branch L_wv{k}b'))))
    vTp = 46
    vKp = 54
    vVp = 68
    vAc = 76
    vPp = 84
    vO = 92
    wv(7)
    for i in range(3): A(f'v_mov_b32 v{vPp+i}, v{vKr+4+i}')
    for i in range(3): A(f'v_permlane32_swap_b32 v{vKr+i}, v{vPp+i}')
    for j in range(4):
        src0, src1 = vSk + (j >> 1), vSk + 2 + (j >> 1)
        if j & 1:
            A(f'v_and_b32 v{vTp+2*j}, s{sMASK}, v{src0}'); A(f'v_and_b32 v{vTp+2*j+1}, s{sMASK}, v{src1}')
        else:
            A(f'v_lshlrev_b32 v{vTp+2*j}, 16, v{src0}'); A(f'v_lshlrev_b32 v{vTp+2*j+1}, 16, v{src1}')
    for r in range(7): unpack(vKp + 2*r, vKr + r)
    stamp('kland')
    for i in range(4): A(f'v_pk_mul_f32 {pr(vAc+2*i)}, {pr(vKp+2*i)}, {pr(vTp+6)}')
    for i in range(8): rnd(vAc + i)
    for j in (2, 1, 0):
        for i in range(4): A(f'v_pk_mul_f32 {pr(vPp+2*i)}, {pr(vKp+2*(i+3-j))}, {pr(vTp+2*j)}')
        for i in range(8): rnd(vPp + i)
        for i in range(4): A(f'v_pk_add_f32 {pr(vAc+2*i)}, {pr(vAc+2*i)}, {pr(vPp+2*i)}')
        for i in range(8): rnd(vAc + i)
    wv(3)
    A(f'global_load_dword v{vMT}, v{vPT}, {P(sWS)} sc1')
    for i in range(4): unpack(vVp + 2*i, vVr + i)
    for i in range(4): A(f'v_pk_mul_f32 {pr(vAc+2*i)}, {pr(vAc+2*i)}, {pr(vVp+2*i)}')
    for c in range(2):
        A(f'v_cvt_pk_bf16_f32 v{vO+2*c}, v{vAc+6+c}, v{vAc+4+c}')
        A(f'v_cvt_pk_bf16_f32 v{vO+2*c+1}, v{vAc+2+c}, v{vAc+c}')
    A(f'''
    v_and_b32 v{vT0}, 31, v0
    v_lshrrev_b32 v{vT1}, 5, v0
    v_mul_u32_u24 v{vT0}, {TS}, v{vT0}
    v_lshlrev_b32 v{vT1}, 3, v{vT1}
    v_sub_u32 v{vT0}, v{vT0}, v{vT1}
    v_add_u32 v{vT0}, {L_T + 120}, v{vT0}
    ds_write2_b64 v{vT0}, {pr(vO)}, {pr(vO+2)} offset0:0 offset1:16
    ''')
    A(f'''
    v_lshrrev_b32 v{vT1}, 4, v0
    v_mul_u32_u24 v{vT2}, {TS}, v{vT1}
    v_and_b32 v{vT3}, 15, v0
    v_lshl_add_u32 v{vT2}, v{vT3}, 4, v{vT2}
    v_lshlrev_b32 v{vT1}, 13, v{vT1}
    v_bfe_u32 v{vT3}, v0, 3, 1
    v_lshl_add_u32 v{vT1}, v{vT3}, 12, v{vT1}
    v_and_b32 v{vT3}, 7, v0
    v_lshl_add_u32 v{vT1}, v{vT3}, 4, v{vT1}
    s_lshl_b32 s{sT0}, s{sG}, 18
    s_sub_u32 s{sT1}, 31, s{sM}
    s_lshl_b32 s{sT1}, s{sT1}, 7
    s_add_u32 s{sT0}, s{sT0}, s{sT1}
    s_add_u32 s{sT0}, s{sT0}, {XB1}
    v_add_u32 v{vT1}, s{sT0}, v{vT1}
    s_waitcnt lgkmcnt(0)
    s_barrier
    ds_read_b128 {q4(vO)}, v{vT2} offset:{L_T}
    ''')
    stamp('B1')
    vX1A = 96
    A(f'''
    v_mov_b32 v{vX1A}, v{vT1}
    s_lshl_b32 s{sT0}, s{sG}, 10
    s_lshl_b32 s{sT1}, s{sWAVE}, 7
    s_add_u32 s{sT0}, s{sT0}, s{sT1}
    s_lshl_b32 s{sT1}, s{sM}, 2
    s_add_u32 s{sT0}, s{sT0}, s{sT1}
    v_mov_b32 v{vA}, s{sT0}
    v_mov_b32 v{vB}, s{sTAG}
    s_waitcnt lgkmcnt(0)
    global_store_dwordx4 v{vX1A}, {q4(vO)}, {P(sWS)}
    ''')
    vW1 = 46
    vOa = 52
    vOb = 58
    wv(3)
    for i in range(4): A(f'v_mov_b32_dpp v{vFl+i}, v{vFl+4+i} wave_shr:1 {DPPM}')
    for i in range(6): A(f'v_mov_b32 v{vW1+i}, v{vFl+1+i}')
    for i in range(6): A(f'v_alignbyte_b32 v{vOa+i}, v{vFl+i+1}, v{vFl+i}, 2')
    for i in range(6): A(f'v_alignbyte_b32 v{vOb+i}, v{vFl+i+2}, v{vFl+i+1}, 2')
    A(f'''
    v_lshrrev_b32 v{vT0}, 8, v0
    v_mul_u32_u24 v{vT0}, {UCH}, v{vT0}
    v_and_b32 v{vT1}, 255, v0
    v_lshl_add_u32 v{vT0}, v{vT1}, 4, v{vT0}
    v_add_u32 v{vT0}, {L_U}, v{vT0}
    ''')
    srcs = {0: vOa, 1: vW1, 2: vOb, 3: vFl + 2, 4: vOa + 2, 5: vW1 + 2, 6: vOb + 2, 7: vFl + 4}
    for c in range(8):
        A(f'ds_write_b128 v{vT0}, {q4(srcs[c])} offset:{c*USTR + 16}')
    vZ = 64
    for i in range(4): A(f'v_mov_b32 v{vZ+i}, 0')
    A(f'''
    v_mul_u32_u24 v{vT0}, {USTR}, v{vLANE}
    v_lshrrev_b32 v{vT1}, 5, v{vLANE}
    v_mul_u32_u24 v{vT1}, {KVS - 512}, v{vT1}
    v_lshl_add_u32 v{vT1}, v{vLANE}, 4, v{vT1}
    v_add_u32 v{vT1}, {L_KVR + 4096}, v{vT1}
    s_cmp_lg_u32 s{sWAVE}, 0
    s_cbranch_scc1 L_nz0
    s_mov_b64 exec, 0xffff
    ds_write_b128 v{vT0}, {q4(vZ)} offset:{L_U}
    s_mov_b64 exec, -1
    ds_write_b128 v{vT1}, {q4(vZ)}
    L_nz0:
    ''')
    vXp = 100
    vXA = 108
    vXL = 109
    A(f'''
    v_lshrrev_b32 v{vT0}, 3, v{vLANE}
    v_and_b32 v{vT1}, 7, v0
    v_lshl_add_u32 v{vT1}, s{sWAVE}, 3, v{vT1}
    v_lshlrev_b32 v{vT1}, 4, v{vT1}
    v_lshl_add_u32 v{vXA}, v{vT0}, 18, v{vT1}
    s_lshl_b32 s{sT0}, s{sM}, 13
    s_lshl_b32 s{sT1}, s{sG}, 10
    s_add_u32 s{sT0}, s{sT0}, s{sT1}
    v_add_u32 v{vXA}, s{sT0}, v{vXA}
    v_lshl_add_u32 v{vXL}, v{vT0}, 10, v{vT1}
    s_lshl_b32 s{sT0}, s{sWID}, 13
    v_add_u32 v{vXL}, s{sT0}, v{vXL}
    ''')
    stamp('udone')
    wv(2)
    vS, vQ, vR = 64, 66, 68
    for i in range(4): unpack(vXp + 2*i, vX + i)
    A(f'v_pk_add_f32 {pr(vS)}, {pr(vXp)}, {pr(vXp+2)}')
    A(f'v_pk_mul_f32 {pr(vQ)}, {pr(vXp)}, {pr(vXp)}')
    for i in range(1, 4): A(f'v_pk_fma_f32 {pr(vQ)}, {pr(vXp+2*i)}, {pr(vXp+2*i)}, {pr(vQ)}')
    for i in range(2, 4): A(f'v_pk_add_f32 {pr(vS)}, {pr(vS)}, {pr(vXp+2*i)}')
    A(f'v_add_f32 v{vS}, v{vS}, v{vS+1}')
    A(f'v_add_f32 v{vQ}, v{vQ}, v{vQ+1}')
    allred([vS, vQ], [vR, vR + 1])
    A(f'''
    v_mov_b32 v{vS+1}, s{sTAG}
    v_mov_b32 v{vS+3}, s{sTAG}
    v_add_u32 v{vT0}, {X0}, v{vXA}
    v_add_u32 v{vT2}, {FL1}, v{vA}
    s_mov_b32 s{sMODE}, {0 if cfg.FORCE_SLOW else 1}
    s_waitcnt vmcnt(0)
    v_cmp_ne_u32 vcc, s{sXCC}, v{vMT}
    s_cbranch_vccnz L_modeslow
    L_modeback:
    s_cmp_eq_u32 s{sMODE}, 1
    s_cbranch_scc0 L_x1slow
    L_x1back:
    s_mov_b64 exec, 1
    ''')
    late.append(('L_x1slow', lambda: (A(f'global_store_dwordx4 v{vX1A}, {q4(vO)}, {P(sWS)} sc1'), A('s_waitcnt vmcnt(0)'), A('s_branch L_x1back'))))
    lstore(f'global_store_dword v{vT2}, v{vB}, {P(sWS)}')
    A('s_mov_b64 exec, -1')
    A(f'global_store_dwordx4 v{vT0}, {q4(vS)}, {P(sWS)} sc1')
    stamp('flag1')
    vFM = 120
    vGA = 122
    vGP = 130
    vSt = 138
    A(f'''
    v_mov_b32 v{vFM}, 0
    s_cmp_lt_u32 s{sM}, {NG0}
    s_cbranch_scc1 L_g_done
    ''')
    unpack(vSt, vGW + 8)
    for i in range(2): A(f'v_mul_f32 v{vSt+2+i}, 0xbfb8aa3b, v{vSt+i}')
    for i in range(2): A(f'v_exp_f32 v{vSt+2+i}, v{vSt+2+i}')
    for i in range(2): A(f'v_add_f32 v{vSt+2+i}, 1.0, v{vSt+2+i}')
    for i in range(2): A(f'v_rcp_f32 v{vSt+2+i}, v{vSt+2+i}')
    A(f's_mov_b32 s{sT0}, 0x05040100')
    A(f's_mov_b32 s{sT1}, 0x07060302')
    for d in range(4):
        A(f'v_perm_b32 v{vGP+2*d}, v{vGW+4+d}, v{vGW+d}, s{sT0}')
        A(f'v_perm_b32 v{vGP+2*d+1}, v{vGW+4+d}, v{vGW+d}, s{sT1}')
    for i in range(2): A(f'v_mul_f32 v{vSt+i}, v{vSt+i}, v{vSt+2+i}')
    A(f'v_cvt_pk_bf16_f32 v{vSt}, v{vSt}, v{vSt+1}')
    for c in range(8): A(f'v_dot2_f32_bf16 v{vGA+c}, v{vGP+c}, v{vSt}, 0')
    for c in range(4): A(f'v_permlane32_swap_b32 v{vGA+c}, v{vGA+c+4}')
    for c in range(4): A(f'v_add_f32 v{vGA+c}, v{vGA+c}, v{vGA+c+4}')
    for c in range(2): A(f'v_permlane16_swap_b32 v{vGA+c}, v{vGA+c+2}')
    for c in range(2): A(f'v_add_f32 v{vGA+c}, v{vGA+c}, v{vGA+c+2}')
    for c in range(2): A(f'v_add_f32_dpp v{vGA+c}, v{vGA+c}, v{vGA+c} row_ror:8 {DPPM}')
    A(f'''
    v_and_b32 v{vT0}, 8, v0
    v_cmp_ne_u32 vcc, 0, v{vT0}
    v_cndmask_b32 v{vGA}, v{vGA}, v{vGA+1}, vcc
    v_and_b32 v{vT0}, 7, v0
    v_lshrrev_b32 v{vT1}, 3, v{vLANE}
    v_lshl_add_u32 v{vT0}, v{vT0}, 3, v{vT1}
    s_lshl_b32 s{sT0}, s{sWAVE}, 8
    s_add_u32 s{sT0}, s{sT0}, {L_GP}
    v_lshl_add_u32 v{vT0}, v{vT0}, 2, s{sT0}
    ds_write_b32 v{vT0}, v{vGA}
    v_mov_b32 v{vT1}, {L_CNT}
    v_mov_b32 v{vT2}, 1
    s_waitcnt lgkmcnt(0)
    s_mov_b64 exec, 1
    ds_add_rtn_u32 v{vT2}, v{vT1}, v{vT2}
    s_mov_b64 exec, -1
    s_waitcnt lgkmcnt(0)
    v_readfirstlane_b32 s{sT0}, v{vT2}
    s_cmp_lg_u32 s{sT0}, 7
    s_cbranch_scc1 L_g_done
    v_lshlrev_b32 v{vT0}, 2, v{vLANE}
    ''')
    for i in range(4): A(f'ds_read2st64_b32 {pr(vGA+2*i)}, v{vT0} offset0:{L_GP//256+2*i} offset1:{L_GP//256+2*i+1}')
    A(f'''
    s_sub_u32 s{sT0}, s{sM}, {NG0}
    s_lshl_b32 s{sT1}, s{sT0}, 8
    s_lshl_b32 s{sT2}, s{sG}, 13
    s_add_u32 s{sT1}, s{sT1}, s{sT2}
    s_add_u32 s{sT1}, s{sT1}, {MODP}
    v_add_u32 v{vT0}, s{sT1}, v{vT0}
    s_lshl_b32 s{sT0}, s{sT0}, 2
    s_lshl_b32 s{sT2}, s{sG}, 7
    s_add_u32 s{sT0}, s{sT0}, s{sT2}
    s_add_u32 s{sT0}, s{sT0}, {FLM}
    v_mov_b32 v{vFM}, s{sT0}
    s_waitcnt lgkmcnt(0)
    v_pk_add_f32 {pr(vGA)}, {pr(vGA)}, {pr(vGA+2)}
    v_pk_add_f32 {pr(vGA+4)}, {pr(vGA+4)}, {pr(vGA+6)}
    v_pk_add_f32 {pr(vGA)}, {pr(vGA)}, {pr(vGA+4)}
    v_add_f32 v{vGA}, v{vGA}, v{vGA+1}
    s_mov_b32 s{sPEND}, 1
    ''')
    assert L_GP % 256 == 0
    lstore(f'global_store_dword v{vT0}, v{vGA}, {P(sWS)}')
    A('L_g_done:')
    A(f's_lshl_b32 s{sT0}, s{sWID}, 13')
    A(f'''
    s_and_b32 s{sT1}, s{sWAVE}, 3
    s_lshl_b32 s{sT1}, s{sT1}, 5
    s_lshr_b32 s{sT2}, s{sM}, 2
    s_lshl_b32 s{sT2}, s{sT2}, 7
    s_lshl_b32 s{sT3}, s{sG}, 10
    s_add_u32 s{sT2}, s{sT2}, s{sT3}
    s_add_u32 s{sT3}, s{sT2}, {FL1 + 96}
    s_sub_u32 s{sT3}, s{sT3}, s{sT1}
    v_and_b32 v{vT0}, 7, v0
    v_lshl_add_u32 v{vT0}, v{vT0}, 2, s{sT3}
    v_lshlrev_b32 v{vT1}, 4, v0
    s_add_u32 s{sT0}, s{sT0}, {XB1}
    v_add_u32 v{vT1}, s{sT0}, v{vT1}
    s_lshr_b32 s{sT3}, s{sWAVE}, 2
    s_mul_i32 s{sT3}, s{sT3}, {KVS}
    s_lshl_b32 s{sT1}, s{sT1}, 5
    s_add_u32 s{sT3}, s{sT3}, s{sT1}
    s_add_u32 s{sT3}, s{sT3}, {L_KVR}
    s_mov_b32 m0, s{sT3}
    ''')
    stamp('prepoll1')
    poll('L_poll1', f'global_load_dword v{vT2}, v{vT0}, {P(sWS)} sc1', f'v_cmp_ne_u32 vcc, s{sTAG}, v{vT2}')
    A(f'global_load_lds_dwordx4 v{vT1}, {P(sWS)} sc1')
    stamp('poll1')
    A(f'''
    s_cmp_eq_u32 s{sPEND}, 0
    s_cbranch_scc1 L_nopend
    s_mov_b64 exec, 1
    ''')
    lstore(f'global_store_dword v{vFM}, v{vB}, {P(sWS)}')
    A('s_mov_b64 exec, -1')
    A('L_nopend:')
    A('s_waitcnt vmcnt(0) lgkmcnt(0)')
    A('s_barrier')
    stamp('B2')
    if cfg.STOP <= 1:
        A(f'''
        v_lshlrev_b32 v{vT0}, 4, v0
        v_lshrrev_b32 v{vT1}, 8, v0
        v_mul_u32_u24 v{vT1}, 512, v{vT1}
        v_add_u32 v{vT1}, v{vT0}, v{vT1}
        ds_read_b128 {q4(64)}, v{vT1} offset:{L_KVR}
        s_lshl_b32 s{sT0}, s{sWID}, 13
        s_add_u32 s{sT0}, s{sT0}, {STAMPS + 0x100000}
        v_add_u32 v{vT0}, s{sT0}, v{vT0}
        s_waitcnt lgkmcnt(0)
        global_store_dwordx4 v{vT0}, {q4(64)}, {P(sWS)}
        s_branch L_fin
        ''')
    A(f'''
    s_cmp_ge_u32 s{sWAVE}, 4
    s_cbranch_scc1 L_helper
    ''')
    vAA, vBA, vPW = 110, 111, 112
    A('s_setprio 3')
    vACC = 116
    vFA = [148, 180]
    vFB = [212, 46]
    A(f'''
    v_and_b32 v{vT0}, 15, v0
    v_lshrrev_b32 v{vT1}, 4, v{vLANE}
    v_and_b32 v{vT2}, 7, v0
    v_mul_u32_u24 v{vAA}, {USTR}, v{vT2}
    v_lshrrev_b32 v{vT2}, 3, v{vT0}
    v_add_u32 v{vT2}, v{vT2}, v{vT1}
    v_lshl_add_u32 v{vAA}, v{vT2}, 4, v{vAA}
    s_lshr_b32 s{sT0}, s{sWAVE}, 1
    s_and_b32 s{sT1}, s{sWAVE}, 1
    s_lshl_b32 s{sT1}, s{sT1}, 8
    s_mul_i32 s{sT2}, s{sT0}, {UCH}
    s_add_u32 s{sT2}, s{sT2}, s{sT1}
    s_add_u32 s{sT2}, s{sT2}, {L_U}
    v_add_u32 v{vAA}, s{sT2}, v{vAA}
    v_lshlrev_b32 v{vBA}, 4, v{vT1}
    v_lshlrev_b32 v{vT2}, 5, v{vT0}
    v_sub_u32 v{vBA}, v{vBA}, v{vT2}
    s_mul_i32 s{sT2}, s{sT0}, {KVS}
    s_add_u32 s{sT2}, s{sT2}, s{sT1}
    s_add_u32 s{sT2}, s{sT2}, {L_KVR + 480}
    v_add_u32 v{vBA}, s{sT2}, v{vBA}
    ''')
    def ldA(st, r, p): A(f'ds_read_b128 {q4(vFA[st]+4*p)}, v{vAA} offset:{64*r + 512*p}')
    def ldB(st, r, q): A(f'ds_read_b128 {q4(vFB[st]+4*q)}, v{vBA} offset:{(7-q)*512 + 64*r}')
    for i in range(8): ldA(0, 0, i); ldB(0, 0, i)
    A(f'''
    v_lshl_add_u32 v{vT2}, v{vT1}, 2, v{vT0}
    v_and_b32 v{vT2}, 15, v{vT2}
    v_lshl_add_u32 v{vT2}, v{vT1}, 4, v{vT2}
    v_lshlrev_b32 v{vPW}, 4, v{vT2}
    s_lshl_b32 s{sT0}, s{sWAVE}, 13
    s_add_u32 s{sT0}, s{sT0}, {L_P}
    v_add_u32 v{vPW}, s{sT0}, v{vPW}
    ''')
    order = [(p, j - p) for j in range(8) for p in range(j + 1)]
    for r in range(4):
        st = r & 1
        nxt = [(k, i) for i in range(8) for k in 'AB'] if r < 3 else []
        issued = 0
        written = 0
        for n, (p, q) in enumerate(order):
            j = p + q
            if p == 0 and r == 0:
                A(f's_waitcnt lgkmcnt({min(15, 16 - 2*(j+1) + issued)})')
            c = '0' if (r == 0 and p == 0) else q4(vACC + 4*j)
            A(f'v_mfma_f32_16x16x32_bf16 {q4(vACC+4*j)}, {q4(vFA[st]+4*p)}, {q4(vFB[st]+4*q)}, {c}')
            if nxt and issued < 16 and n >= (10 if r == 0 else 1):
                k, i = nxt[issued]
                (ldA if k == 'A' else ldB)(st ^ 1, r + 1, i); issued += 1
            if r == 3:
                while written < 8 and n >= written*(written+3)//2 + 9 and written <= j - 1:
                    A(f'ds_write_b128 v{vPW}, {q4(vACC+4*written)} offset:{1024*written}'); written += 1
        if r < 3: A('s_waitcnt lgkmcnt(0)')
        else:
            while written < 8:
                A(f'ds_write_b128 v{vPW}, {q4(vACC+4*written)} offset:{1024*written}'); written += 1
    A('s_setprio 0')
    A('s_branch L_s1join')
    A('L_helper:')
    vKD = 116
    vKV = 132
    vI0 = 220
    vMG = 148
    vF2, vD2 = 54, 55
    A(f'''
    s_lshl_b32 s{sT0}, s{sWAVE}, 9
    s_sub_u32 s{sT0}, {L_KVR + 4088}, s{sT0}
    v_lshlrev_b32 v{vT0}, 3, v{vLANE}
    v_sub_u32 v{vT0}, s{sT0}, v{vT0}
    ds_read_b64 {pr(vKV)}, v{vT0}
    ds_read_b64 {pr(vKV+2)}, v{vT0} offset:{KVS}
    ds_read_b64 {pr(vKV+4)}, v{vT0} offset:2048
    ds_read_b64 {pr(vKV+6)}, v{vT0} offset:{KVS+2048}
    s_lshl_b32 s{sD0}, s{sDV}, 16
    s_and_b32 s{sD1}, s{sDV}, s{sMASK}
    s_cmp_eq_u32 s{sWAVE}, 4
    s_cselect_b32 s{sT0}, 0, 3
    s_cselect_b32 s{sT1}, 1, 4
    s_cmp_eq_u32 s{sWAVE}, 6
    s_cselect_b32 s{sT0}, 2, s{sT0}
    s_cselect_b32 s{sT1}, 5, s{sT1}
    s_lshl_b32 s{sT2}, s{sG}, 7
    v_lshl_add_u32 v{vT3}, v{vLANE}, 1, s{sT2}
    global_load_ushort v{vMG+8}, v{vT3}, {P(sWR)}
    s_add_u32 s{sT2}, s{sT2}, {FLM}
    v_and_b32 v{vT0}, 3, v0
    v_and_b32 v{vF2}, 4, v0
    v_mov_b32 v{vT2}, s{sT0}
    v_mov_b32 v{vT3}, s{sT1}
    v_cmp_ne_u32 vcc, 0, v{vF2}
    v_cndmask_b32 v{vT2}, v{vT2}, v{vT3}, vcc
    v_lshl_add_u32 v{vT2}, v{vT2}, 2, v{vT0}
    v_lshl_add_u32 v{vF2}, v{vT2}, 2, s{sT2}
    s_lshl_b32 s{sT2}, s{sG}, 13
    s_add_u32 s{sT2}, s{sT2}, {MODP}
    v_lshl_add_u32 v{vD2}, v{vLANE}, 2, s{sT2}
    s_lshl_b32 s{sT2}, s{sT0}, 10
    s_lshl_b32 s{sT3}, s{sT1}, 10
    v_add_u32 v{vD2+1}, s{sT3}, v{vD2}
    v_add_u32 v{vD2}, s{sT2}, v{vD2}
    v_add_u32 v{vT1}, {X0 - 512}, v{vXL}
    ''')
    poll('L_poll0', f'''global_load_dword v{vMG+9}, v{vF2}, {P(sWS)} sc1
         global_load_dwordx4 {q4(vI0)}, v{vT1}, {P(sWS)} offset:512 sc1
         global_load_dwordx4 {q4(vI0+4)}, v{vT1}, {P(sWS)} sc1''',
         f'''v_xor_b32 v{vT2}, s{sTAG}, v{vI0+1}
         v_xor_b32 v{vT3}, s{sTAG}, v{vI0+3}
         v_xor_b32 v{vT0}, s{sTAG}, v{vI0+5}
         v_or3_b32 v{vT2}, v{vT2}, v{vT3}, v{vT0}
         v_xor_b32 v{vT3}, s{sTAG}, v{vI0+7}
         v_xor_b32 v{vT0}, s{sTAG}, v{vMG+9}
         v_or3_b32 v{vT2}, v{vT2}, v{vT3}, v{vT0}
         v_cmp_ne_u32 vcc, 0, v{vT2}''')
    for i in range(4): A(f'global_load_dword v{vMG+i}, v{vD2}, {P(sWS)} offset:{256*i} sc1')
    for i in range(4): A(f'global_load_dword v{vMG+4+i}, v{vD2+1}, {P(sWS)} offset:{256*i} sc1')
    stamp('gemv0')
    A(f'''
    s_cmp_ge_u32 s{sM}, {NS3}
    s_cbranch_scc1 L_h_now
    s_lshr_b32 s{sT2}, s{sM}, 2
    s_mul_i32 s{sT3}, s{sG}, 7
    s_add_u32 s{sT2}, s{sT2}, s{sT3}
    s_lshl_b32 s{sT2}, s{sT2}, 6
    s_and_b32 s{sT3}, s{sM}, 3
    s_lshl_b32 s{sT3}, s{sT3}, 1
    s_and_b32 s{sT4}, s{sWAVE}, 1
    s_add_u32 s{sT3}, s{sT3}, s{sT4}
    s_mul_i32 s{sT3}, s{sT3}, {64*3584}
    s_add_u32 s{sT2}, s{sT2}, s{sT3}
    v_lshrrev_b32 v{vT1}, 2, v{vLANE}
    v_mul_u32_u24 v{vT1}, 3584, v{vT1}
    v_and_b32 v{vT2}, 3, v0
    v_lshl_add_u32 v{vT1}, v{vT2}, 4, v{vT1}
    v_add_u32 v{vT1}, s{sT2}, v{vT1}
    s_cmp_ge_u32 s{sWAVE}, 6
    s_cselect_b32 s{sT2}, s{sWU}, s{sWG}
    s_cselect_b32 s{sT3}, s{sWU+1}, s{sWG+1}
    s_sub_u32 s{sT4}, s{sWAVE}, 4
    s_lshl_b32 s{sT4}, s{sT4}, 12
    s_add_u32 s{sT4}, s{sT4}, {L_WGU}
    ''')
    for i in range(4):
        A(f's_mov_b32 m0, s{sT4}')
        A(f'global_load_lds_dwordx4 v{vT1}, {P(sT2)}')
        if i < 3:
            A(f'v_add_u32 v{vT1}, {16*3584}, v{vT1}')
            A(f's_add_u32 s{sT4}, s{sT4}, 1024')
    A('s_waitcnt vmcnt(4)')
    A('s_branch L_h_w2')
    A('L_h_now:')
    A('s_waitcnt vmcnt(0)')
    A('L_h_w2:')
    A(f'''
    s_lshl_b32 s{sT0}, s{sT0}, 8
    s_lshl_b32 s{sT1}, s{sT1}, 8
    v_lshl_add_u32 v{vT0}, v{vLANE}, 2, s{sT0}
    v_lshl_add_u32 v{vT1}, v{vLANE}, 2, s{sT1}
    v_lshlrev_b32 v{vMG+8}, 16, v{vMG+8}
    v_pk_add_f32 {pr(vMG)}, {pr(vMG)}, {pr(vMG+2)}
    v_pk_add_f32 {pr(vMG+4)}, {pr(vMG+4)}, {pr(vMG+6)}
    v_add_f32 v{vMG}, v{vMG}, v{vMG+1}
    v_add_f32 v{vMG+2}, v{vMG+4}, v{vMG+5}
    ''')
    rnd(vMG); rnd(vMG + 2)
    A(f'''
    v_add_f32 v{vMG+3}, 1.0, v{vMG+2}
    v_cvt_pk_bf16_f32 v{vMG+3}, 0, v{vMG+3}
    s_cmp_eq_u32 s{sWAVE}, 6
    s_cselect_b64 vcc, -1, 0
    v_cndmask_b32 v{vMG+2}, v{vMG+3}, v{vMG+2}, vcc
    v_mul_f32 v{vMG+4}, v{vMG+2}, v{vMG+8}
    v_mul_f32 v{vMG+6}, v{vMG}, v{vMG+8}
    s_cmp_eq_u32 s{sWAVE}, 7
    s_cbranch_scc1 L_h_xc
    ds_write_b32 v{vT0}, v{vMG} offset:{L_MOD}
    ds_write_b32 v{vT1}, v{vMG+2} offset:{L_MOD}
    s_branch L_h_st
    L_h_xc:
    v_lshlrev_b32 v{vT0}, 2, v{vLANE}
    ds_write_b32 v{vT0}, v{vMG+4} offset:{L_MOD + 6*256}
    ''')
    fullred([vMG + 4, vMG + 6], [vMG + 10, vMG + 11])
    A(f'''
    v_mov_b32 v{vMG+5}, s{sTAG}
    v_mov_b32 v{vMG+7}, s{sTAG}
    s_lshl_b32 s{sT0}, s{sM}, 7
    s_lshl_b32 s{sT1}, s{sG}, 4
    s_add_u32 s{sT0}, s{sT0}, s{sT1}
    s_add_u32 s{sT0}, s{sT0}, {XC}
    v_lshl_add_u32 v{vT0}, v{vLANE}, 12, s{sT0}
    s_mov_b64 exec, 0xff
    global_store_dwordx4 v{vT0}, {q4(vMG+4)}, {P(sWS)} sc1
    s_mov_b64 exec, -1
    L_h_st:
    ''')
    allred([vI0, vI0 + 2, vI0 + 4, vI0 + 6], [vMG + 12, vMG + 13, vMG + 14, vMG + 15])
    lnstats(vI0, vI0 + 2, vMG + 12, vMG + 16, vMG + 17)
    lnstats(vI0 + 4, vI0 + 6, vMG + 13, vMG + 18, vMG + 19)
    A(f'''
    v_and_b32 v{vT0}, 7, v0
    v_lshl_add_u32 v{vT0}, s{sWAVE}, 3, v{vT0}
    v_lshlrev_b32 v{vT0}, 3, v{vT0}
    ds_write_b64 v{vT0}, {pr(vMG+16)} offset:{L_ST}
    ds_write_b64 v{vT0}, {pr(vMG+18)} offset:{L_ST - 256}
    s_waitcnt lgkmcnt(0)
    ''')
    for t in range(2):
        for c in range(2):
            b = vKD + 8*t + 4*c; s = vKV + 4*t + 2*c
            A(f'v_and_b32 v{b}, s{sMASK}, v{s+1}')
            A(f'v_lshlrev_b32 v{b+1}, 16, v{s+1}')
            A(f'v_and_b32 v{b+2}, s{sMASK}, v{s}')
            A(f'v_lshlrev_b32 v{b+3}, 16, v{s}')
            for i in range(4): A(f'v_mul_f32 v{b+i}, s{sD0+c}, v{b+i}')
            for i in range(4): rnd(b + i)
    A(f'''
    s_sub_u32 s{sT0}, s{sWAVE}, 4
    s_lshl_b32 s{sT1}, s{sT0}, 11
    s_add_u32 s{sT1}, s{sT1}, {L_KD}
    v_lshl_add_u32 v{vT0}, v{vLANE}, 4, s{sT1}
    ds_write_b128 v{vT0}, {q4(vKD+8)}
    ds_write_b128 v{vT0}, {q4(vKD+12)} offset:1024
    ''')
    A('L_s1join:')
    stamp('s1join')
    vPp0 = 148
    vKDe = 116
    vMn, vInv = 64, 65
    vH = 232
    vPar = 164
    vU = 46
    def rdpar(lst):
        for pi in lst:
            A(f'ds_read_b128 {q4(vPar+8*pi)}, v{vPA} offset:{L_MOD + 256*pi}')
            A(f'ds_read_b128 {q4(vPar+8*pi+4)}, v{vPA} offset:{L_MOD + 256*pi + 16}')
    A(f'''
    v_lshrrev_b32 v{vT0}, 2, v{vLANE}
    v_and_b32 v{vT1}, 3, v0
    v_lshl_add_u32 v{vT0}, v{vT1}, 2, v{vT0}
    v_and_b32 v{vT0}, 15, v{vT0}
    v_lshl_add_u32 v{vT0}, v{vT1}, 4, v{vT0}
    v_lshlrev_b32 v{vT0}, 4, v{vT0}
    s_lshl_b32 s{sT0}, s{sWAVE}, 10
    s_add_u32 s{sT1}, s{sT0}, {L_P}
    v_add_u32 v{vT0}, s{sT1}, v{vT0}
    s_lshl_b32 s{sT1}, s{sWAVE}, 11
    s_add_u32 s{sT1}, s{sT1}, {L_KD}
    v_lshl_add_u32 v{vT1}, v{vLANE}, 4, s{sT1}
    s_lshl_b32 s{sT2}, s{sWID}, 13
    s_add_u32 s{sT2}, s{sT2}, {XB1}
    v_lshl_add_u32 v{vT2}, v0, 4, s{sT2}
    v_and_b32 v{vT3}, 7, v0
    v_lshl_add_u32 v{vT3}, s{sWAVE}, 3, v{vT3}
    v_lshlrev_b32 v{vT3}, 3, v{vT3}
    v_lshrrev_b32 v{vPA}, 3, v{vLANE}
    v_lshlrev_b32 v{vPA}, 5, v{vPA}
    s_waitcnt lgkmcnt(0)
    s_barrier
    ''')
    for w in range(4): A(f'ds_read_b128 {q4(vPp0+4*w)}, v{vT0} offset:{8192*w}')
    A(f'''
    s_cmp_ge_u32 s{sWAVE}, 4
    s_cbranch_scc1 L_nokd
    ds_read_b128 {q4(vKDe)}, v{vT1}
    ds_read_b128 {q4(vKDe+4)}, v{vT1} offset:1024
    L_nokd:
    s_waitcnt lgkmcnt(0)
    ''')
    for c in range(2):
        for h in range(2): A(f'v_pk_add_f32 {pr(vPp0+8*c+2*h)}, {pr(vPp0+8*c+2*h)}, {pr(vPp0+8*c+4+2*h)}')
    for c in range(2):
        for i in range(4): rnd(vPp0 + 8*c + i)
    for c in range(2):
        for h in range(2): A(f'v_pk_add_f32 {pr(vPp0+8*c+2*h)}, {pr(vPp0+8*c+2*h)}, {pr(vKDe+4*c+2*h)}')
    for i in range(4): A(f'v_cvt_pk_bf16_f32 v{vPp0+4+i}, v{vPp0+i}, v{vPp0+8+i}')
    lstore(f'global_store_dwordx4 v{vT2}, {q4(vPp0+4)}, {P(sWS)}')
    stamp('zst')
    A(f'ds_read_b64 {pr(vMn)}, v{vT3} offset:{L_ST}')
    rdpar((1, 0, 2, 6))
    vZA = 68
    A(f'''
    v_add_u32 v{vT1}, {FL2}, v{vA}
    s_lshr_b32 s{sT2}, s{sM}, 2
    s_lshl_b32 s{sT2}, s{sT2}, 7
    s_lshl_b32 s{sT3}, s{sG}, 10
    s_add_u32 s{sT2}, s{sT2}, s{sT3}
    s_lshl_b32 s{sT3}, s{sWAVE}, 4
    s_add_u32 s{sT2}, s{sT2}, s{sT3}
    s_add_u32 s{sT2}, s{sT2}, {FL2}
    v_and_b32 v{vF2}, 3, v0
    v_lshl_add_u32 v{vF2}, v{vF2}, 2, s{sT2}
    s_lshl_b32 s{sT3}, s{sWAVE}, 1
    v_subrev_u32 v{vD2}, s{sT3}, v0
    v_and_b32 v{vD2}, 15, v{vD2}
    v_lshlrev_b32 v{vD2}, 4, v{vD2}
    v_lshrrev_b32 v{vT2}, 4, v0
    v_lshl_add_u32 v{vD2}, v{vT2}, 13, v{vD2}
    s_lshl_b32 s{sT2}, s{sG}, 18
    s_lshl_b32 s{sT3}, s{sM}, 8
    s_add_u32 s{sT2}, s{sT2}, s{sT3}
    s_add_u32 s{sT2}, s{sT2}, {XB1}
    v_add_u32 v{vD2}, s{sT2}, v{vD2}
    s_lshl_b32 s{sT2}, s{sWAVE}, 10
    s_add_u32 s{sT2}, s{sT2}, {L_Z}
    s_mov_b32 m0, s{sT2}
    v_lshrrev_b32 v{vT0}, 3, v{vLANE}
    v_bfe_u32 v{vT2}, v0, 2, 1
    v_lshl_add_u32 v{vT2}, s{sWAVE}, 1, v{vT2}
    v_lshl_add_u32 v{vT2}, v{vT0}, 1, v{vT2}
    v_and_b32 v{vT2}, 15, v{vT2}
    v_lshlrev_b32 v{vT2}, 4, v{vT2}
    v_lshl_add_u32 v{vZA}, v{vT0}, 10, v{vT2}
    v_and_b32 v{vT2}, 3, v0
    v_lshl_add_u32 v{vZA}, v{vT2}, 2, v{vZA}
    s_waitcnt vmcnt(0)
    s_mov_b64 exec, 1
    ''')
    lstore(f'global_store_dword v{vT1}, v{vB}, {P(sWS)}')
    A('s_mov_b64 exec, -1')
    stamp('flag2')
    A('s_waitcnt lgkmcnt(8)')
    for i in range(8): A(f'v_sub_f32 v{vH+i}, v{vXp+i}, v{vMn}')
    for i in range(8): rnd(vH + i)
    for i in range(8): A(f'v_mul_f32 v{vH+i}, v{vH+i}, v{vInv}')
    for i in range(8): rnd(vH + i)
    poll('L_poll2', f'global_load_dword v{vT2}, v{vF2}, {P(sWS)} sc1', f'v_cmp_ne_u32 vcc, s{sTAG}, v{vT2}')
    A(f'global_load_lds_dwordx4 v{vD2}, {P(sWS)} sc1')
    stamp('preB3b')
    A('s_waitcnt lgkmcnt(0)')
    for i in range(8): A(f'v_mul_f32 v{vH+i}, v{vH+i}, v{vPar+8+i}')
    for i in range(8): rnd(vH + i)
    for i in range(8): A(f'v_add_f32 v{vH+i}, v{vH+i}, v{vPar+i}')
    for i in range(8): rnd(vH + i)
    stamp('hdone')
    A('s_waitcnt vmcnt(0)')
    A('s_barrier')
    stamp('B4')
    vZr = 70
    vZ1 = 74
    vSQ = 82
    A(f'ds_read2st64_b32 {pr(vZr)}, v{vZA} offset0:{L_Z//256} offset1:{L_Z//256+1}')
    A(f'ds_read2st64_b32 {pr(vZr+2)}, v{vZA} offset0:{L_Z//256+2} offset1:{L_Z//256+3}')
    A(f'v_add_u32 v{vT0}, {X3}, v{vXA}')
    A('s_waitcnt lgkmcnt(0)')
    for i in range(4): unpack(vZ1 + 2*i, vZr + i)
    for i in range(8): A(f'v_mul_f32 v{vZ1+i}, v{vZ1+i}, v{vH+i}')
    for i in range(8): rnd(vZ1 + i)
    for i in range(8): A(f'v_mul_f32 v{vZ1+i}, v{vZ1+i}, v{vPar+16+i}')
    for i in range(8): rnd(vZ1 + i)
    for i in range(8): A(f'v_add_f32 v{vZ1+i}, v{vZ1+i}, v{vXp+i}')
    for i in range(8): rnd(vZ1 + i)
    S_, Q_, P_ = vSQ, vSQ + 2, vSQ + 4
    A(f'v_pk_add_f32 {pr(S_)}, {pr(vZ1)}, {pr(vZ1+2)}')
    A(f'v_pk_mul_f32 {pr(Q_)}, {pr(vZ1)}, {pr(vZ1)}')
    A(f'v_pk_mul_f32 {pr(P_)}, {pr(vZ1)}, {pr(vPar+48)}')
    for i in range(1, 4):
        A(f'v_pk_fma_f32 {pr(Q_)}, {pr(vZ1+2*i)}, {pr(vZ1+2*i)}, {pr(Q_)}')
        A(f'v_pk_fma_f32 {pr(P_)}, {pr(vZ1+2*i)}, {pr(vPar+48+2*i)}, {pr(P_)}')
        if i >= 2: A(f'v_pk_add_f32 {pr(S_)}, {pr(S_)}, {pr(vZ1+2*i)}')
    vUn = vSQ + 6
    A(f'v_add_f32 v{vUn}, v{S_}, v{S_+1}')
    A(f'v_add_f32 v{vUn+1}, v{Q_}, v{Q_+1}')
    A(f'v_add_f32 v{vUn+2}, v{P_}, v{P_+1}')
    A(f'v_mov_b32 v{vUn+3}, s{sTAG}')
    allred([vUn, vUn + 1, vUn + 2], [S_, Q_, P_])
    A(f'global_store_dwordx4 v{vT0}, {q4(vUn)}, {P(sWS)} sc1')
    stamp('x3st')
    rdpar((3, 4, 5))
    if cfg.WBL2:
        A(f'''
        s_cmp_lg_u32 s{sM}, 31
        s_cbranch_scc1 L_nowb
        s_cmp_lg_u32 s{sWAVE}, 7
        s_cbranch_scc1 L_nowb
        buffer_wbl2 sc1
        L_nowb:
        ''')
    def wdma():
        A(f'''
        s_lshr_b32 s{sT0}, s{sM}, 2
        s_mul_i32 s{sT1}, s{sG}, 7
        s_add_u32 s{sT0}, s{sT0}, s{sT1}
        s_and_b32 s{sT1}, s{sM}, 3
        s_lshl_b32 s{sT4}, s{sWAVE}, 10
        s_add_u32 s{sT4}, s{sT4}, {L_WGU + 16384}
        s_mov_b32 m0, s{sT4}
        s_lshl_b32 s{sT2}, s{sT0}, 15
        s_lshl_b32 s{sT3}, s{sT1}, 8
        s_add_u32 s{sT2}, s{sT2}, s{sT3}
        v_lshrrev_b32 v{vT2}, 4, v0
        v_lshlrev_b32 v{vT2}, 10, v{vT2}
        v_and_b32 v{vT3}, 15, v0
        v_lshl_add_u32 v{vT2}, v{vT3}, 4, v{vT2}
        v_add_u32 v{vT2}, s{sT2}, v{vT2}
        s_lshl_b32 s{sT2}, s{sT0}, 14
        s_lshl_b32 s{sT3}, s{sT1}, 12
        global_load_lds_dwordx4 v{vT2}, {P(sWD)}
        s_add_u32 s{sT2}, s{sT2}, s{sT3}
        s_add_u32 s{sT2}, s{sT2}, {GXB}
        v_lshl_add_u32 v{vT1}, v{vLANE}, 6, s{sT2}
        s_cmp_lg_u32 s{sWAVE}, 0
        s_cbranch_scc1 L_nowd
        global_load_dword v{vZr}, v{vT1}, {P(sWS)} sc1
        ''')
    A(f'''
    s_cmp_ge_u32 s{sM}, {NS3}
    s_cbranch_scc1 L_redpt
    ''')
    wdma()
    A(f'''
    s_branch L_nowd
    L_redpt:
    s_lshl_b32 s{sT0}, s{sWAVE}, 5
    s_lshl_b32 s{sT1}, s{sG}, 2
    s_add_u32 s{sT0}, s{sT0}, s{sT1}
    s_add_u32 s{sT0}, s{sT0}, s{sM}
    s_sub_u32 s{sT0}, s{sT0}, {NS3}
    s_mul_i32 s{sPT}, s{sT0}, {NPROD*64}
    s_add_u32 s{sPT}, s{sPT}, {PART}
    v_min_u32 v{vT1}, {NPROD-1}, v{vLANE}
    v_lshl_add_u32 v{vT1}, v{vT1}, 6, s{sPT}
    ''')
    if cfg.PARTPT: A(f'global_load_dword v{vZr}, v{vT1}, {P(sWS)} sc1')
    A(f'''
    L_nowd:
    v_lshrrev_b32 v{vT1}, 3, v{vLANE}
    s_lshl_b32 s{sT0}, s{sWID}, 7
    s_add_u32 s{sT0}, s{sT0}, {XC}
    v_lshl_add_u32 v{vT1}, v{vT1}, 4, s{sT0}
    v_add_u32 v{vT0}, {X3}, v{vXL}
    ''')
    if cfg.X3ACK: A('s_waitcnt vmcnt(0)')
    stamp('xcok')
    vR3 = 92
    poll('L_poll3', f'''global_load_dwordx4 {q4(vR3)}, v{vT0}, {P(sWS)} sc1
         global_load_dwordx4 {q4(vU+4)}, v{vT1}, {P(sWS)} sc1''',
         f'''v_xor_b32 v{vT2}, s{sTAG}, v{vU+5}
         v_xor_b32 v{vT3}, s{sTAG}, v{vU+7}
         v_xor_b32 v{vU}, s{sTAG}, v{vR3+3}
         v_or3_b32 v{vT2}, v{vT2}, v{vT3}, v{vU}
         v_cmp_ne_u32 vcc, 0, v{vT2}''')
    stamp('x3ok')
    allred([vR3, vR3 + 1, vR3 + 2, vU + 4, vU + 6], [S_, Q_, P_, S_ + 1, Q_ + 1])
    lnstats(vR3, vR3 + 1, S_, vMn, vInv)
    vKey = 96
    A(f'''
    v_fma_f32 v{vKey}, -v{vMn}, v{vU+4}, v{vR3+2}
    v_fma_f32 v{vKey}, v{vKey}, v{vInv}, v{vU+6}
    v_cvt_pk_bf16_f32 v{vKey}, 0, v{vKey}
    v_ashrrev_i32 v{vT0}, 31, v{vKey}
    v_or_b32 v{vT0}, 0x80000000, v{vT0}
    v_and_b32 v{vT0}, s{sMASK}, v{vT0}
    v_and_b32 v{vT1}, 7, v0
    v_lshl_add_u32 v{vT1}, s{sWAVE}, 3, v{vT1}
    s_lshl_b32 s{sT0}, s{sM}, 6
    s_sub_u32 s{sT0}, 2047, s{sT0}
    v_sub_u32 v{vT2}, s{sT0}, v{vT1}
    v_xor_b32 v{vKey}, v{vKey}, v{vT0}
    v_or_b32 v{vKey}, v{vKey}, v{vT2}
    v_lshlrev_b32 v{vT1}, 2, v{vT1}
    ds_write_b32 v{vT1}, v{vKey} offset:{L_KEY}
    s_waitcnt lgkmcnt(0)
    s_barrier
    ds_read_b128 {q4(vR3)}, v{vPA} offset:{L_KEY}
    ds_read_b128 {q4(vSQ)}, v{vPA} offset:{L_KEY+16}
    ''')
    vH2 = 56
    for i in range(8): A(f'v_sub_f32 v{vH2+i}, v{vZ1+i}, v{vMn}')
    for i in range(8): rnd(vH2 + i)
    A('s_waitcnt lgkmcnt(0)')
    vRk = 97
    A(f'v_mov_b32 v{vRk}, 0')
    ks = [vR3 + i for i in range(4)] + [vSQ + i for i in range(4)]
    for half in range(2):
        for i in range(4): A(f'v_cmp_gt_u32 {P(sC0+2*i)}, v{ks[4*half+i]}, v{vKey}')
        for i in range(4): A(f'v_addc_co_u32 v{vRk}, {P(sC0+2*i)}, 0, v{vRk}, {P(sC0+2*i)}')
    allred([vRk], [vT0], add='v_add_u32')
    A(f'''
    s_lshl_b32 s{sT0}, s{sWID}, 6
    s_add_u32 s{sT0}, s{sT0}, {KEYS}
    v_lshl_add_u32 v{vT0}, v{vRk}, 3, s{sT0}
    v_mov_b32 v{vR3}, v{vKey}
    v_mov_b32 v{vR3+1}, s{sTAG}
    v_cmp_gt_u32 {P(sEX)}, 8, v{vRk}
    s_and_b64 exec, {P(sEX)}, 0xff
    s_cbranch_execz L_nokey
    ''')
    lstore(f'global_store_dwordx2 v{vT0}, {pr(vR3)}, {P(sWS)}')
    A('L_nokey:')
    A('s_mov_b64 exec, -1')
    stamp('keyst')
    for i in range(8): A(f'v_mul_f32 v{vH2+i}, v{vH2+i}, v{vInv}')
    for i in range(8): rnd(vH2 + i)
    for i in range(8): A(f'v_mul_f32 v{vH2+i}, v{vH2+i}, v{vPar+32+i}')
    for i in range(8): rnd(vH2 + i)
    for i in range(8): A(f'v_add_f32 v{vH2+i}, v{vH2+i}, v{vPar+24+i}')
    vPk = 110
    for i in range(4):
        A(f'v_cvt_pk_bf16_f32 v{vPk+2*i}, v{vH2+2*i}, v{vH2+2*i+1}')
        A(f'v_mov_b32 v{vPk+2*i+1}, s{sTAG}')
    A(f'''
    v_and_b32 v{vT1}, 7, v0
    v_lshl_add_u32 v{vT1}, s{sWAVE}, 3, v{vT1}
    v_lshlrev_b32 v{vT1}, 11, v{vT1}
    v_lshrrev_b32 v{vT2}, 3, v{vLANE}
    v_lshl_add_u32 v{vT1}, v{vT2}, 5, v{vT1}
    s_lshl_b32 s{sT0}, s{sM}, 17
    s_lshl_b32 s{sT1}, s{sG}, 8
    s_add_u32 s{sT0}, s{sT0}, s{sT1}
    s_add_u32 s{sT0}, s{sT0}, {H2P}
    v_add_u32 v{vT1}, s{sT0}, v{vT1}
    s_mov_b64 exec, {P(sEX)}
    s_cbranch_execz L_noh2
    global_store_dwordx4 v{vT1}, {q4(vPk)}, {P(sWS)} sc1
    global_store_dwordx4 v{vT1}, {q4(vPk+4)}, {P(sWS)} offset:16 sc1
    L_noh2:
    s_mov_b64 exec, -1
    ''')
    stamp('h2st')
    for i in range(4):
        A(f'v_cvt_pk_bf16_f32 v{vPk+8+2*i}, v{vZ1+2*i}, v{vZ1+2*i+1}')
        A(f'v_mov_b32 v{vPk+8+2*i+1}, s{sTAG}')
    A(f'''
    v_add_u32 v{vT1}, {X1P - H2P}, v{vT1}
    s_mov_b64 exec, {P(sEX)}
    s_cbranch_execz L_nox1
    global_store_dwordx4 v{vT1}, {q4(vPk+8)}, {P(sWS)} sc1
    global_store_dwordx4 v{vT1}, {q4(vPk+12)}, {P(sWS)} offset:16 sc1
    L_nox1:
    s_mov_b64 exec, -1
    ''')
    vOut = 126
    def outcalc():
        for i in range(4): unpack(vH2 + 2*i, vPk + 2*i)
        for i in range(8): A(f'v_mul_f32 v{vH2+i}, v{vH2+i}, v{vPar+40+i}')
        for i in range(8): rnd(vH2 + i)
        for i in range(8): A(f'v_add_f32 v{vH2+i}, v{vH2+i}, v{vZ1+i}')
        for i in range(4): A(f'v_cvt_pk_bf16_f32 v{vOut+i}, v{vH2+2*i}, v{vH2+2*i+1}')
    A(f'''
    s_cmp_ge_u32 s{sM}, {NS3}
    s_cbranch_scc1 L_tail
    ''')
    vWf = 130
    vKs = 154
    vM2, vM1 = 163, 164
    A(f'''
    v_and_b32 v{vT0}, 3, v0
    v_bfe_u32 v{vT1}, v0, 2, 2
    v_lshrrev_b32 v{vT2}, 4, v{vLANE}
    v_lshl_add_u32 v{vT2}, v{vT2}, 3, v{vT1}
    v_lshlrev_b32 v{vT3}, 6, v{vT2}
    v_lshl_add_u32 v{vT3}, v{vT0}, 3, v{vT3}
    s_lshr_b32 s{sT0}, s{sWAVE}, 2
    s_lshl_b32 s{sT0}, s{sT0}, 12
    s_bfe_u32 s{sT1}, s{sWAVE}, 0x10001
    s_lshl_b32 s{sT1}, s{sT1}, 13
    s_add_u32 s{sT0}, s{sT0}, s{sT1}
    s_and_b32 s{sT1}, s{sWAVE}, 1
    s_lshl_b32 s{sT1}, s{sT1}, 5
    s_add_u32 s{sT0}, s{sT0}, s{sT1}
    s_add_u32 s{sT0}, s{sT0}, {L_WGU}
    v_add_u32 v{vT3}, s{sT0}, v{vT3}
    ''')
    for ks_ in range(2):
        for hh in range(2):
            A(f'ds_read_b64_tr_b16 {pr(vWf + 4*ks_ + 2*hh)}, v{vT3} offset:{2048*ks_ + 256*hh}')
    A(f'''
    v_lshlrev_b32 v{vT3}, 8, v{vT2}
    v_lshl_add_u32 v{vT3}, v{vT0}, 3, v{vT3}
    s_lshl_b32 s{sT0}, s{sWAVE}, 5
    s_add_u32 s{sT0}, s{sT0}, {L_WGU + 16384}
    v_add_u32 v{vT3}, s{sT0}, v{vT3}
    ds_read_b64_tr_b16 {pr(vWf + 8)}, v{vT3}
    ds_read_b64_tr_b16 {pr(vWf + 10)}, v{vT3} offset:1024
    v_and_b32 v{vT0}, 2, v0
    v_cmp_eq_u32 vcc, 0, v{vT0}
    v_cndmask_b32 v{vM2}, 0, -1, vcc
    v_and_b32 v{vT0}, 1, v0
    v_cmp_eq_u32 vcc, 0, v{vT0}
    v_cndmask_b32 v{vM1}, 0, -1, vcc
    s_lshl_b32 s{sT0}, s{sG}, 11
    s_add_u32 s{sT0}, s{sT0}, {KEYS}
    v_lshl_add_u32 v{vT0}, v{vLANE}, 3, s{sT0}
    ''')
    outcalc()
    vGA_, vGS, vGL, vPS = 142, 143, 144, 145
    A(f'''
    s_lshr_b32 s{sT0}, s{sM}, 2
    s_mul_i32 s{sT1}, s{sG}, 7
    s_add_u32 s{sT0}, s{sT0}, s{sT1}
    s_and_b32 s{sT1}, s{sM}, 3
    v_lshrrev_b32 v{vT1}, 4, v{vLANE}
    v_and_b32 v{vT2}, 7, v0
    s_lshl_b32 s{sT2}, s{sT1}, 9
    s_lshr_b32 s{sT3}, s{sWAVE}, 2
    s_lshl_b32 s{sT3}, s{sT3}, 8
    s_add_u32 s{sT2}, s{sT2}, s{sT3}
    s_add_u32 s{sT2}, s{sT2}, {H2P}
    v_lshl_add_u32 v{vGA_}, v{vT1}, 5, s{sT2}
    s_lshl_b32 s{sT2}, s{sT0}, 14
    s_add_u32 s{sT2}, s{sT2}, {GXB}
    s_lshl_b32 s{sT3}, s{sT1}, 3
    s_add_u32 s{sT3}, s{sT3}, s{sWAVE}
    s_lshl_b32 s{sT4}, s{sT3}, 9
    s_add_u32 s{sT4}, s{sT4}, s{sT2}
    v_lshl_add_u32 v{vGS}, v{vT1}, 3, v{vT2}
    v_lshl_add_u32 v{vGS}, v{vGS}, 4, s{sT4}
    s_mul_i32 s{sT3}, s{sT3}, {NPROD*64}
    s_lshl_b32 s{sT4}, s{sT0}, 6
    s_add_u32 s{sT3}, s{sT3}, s{sT4}
    s_add_u32 s{sT3}, s{sT3}, {PART}
    v_mul_u32_u24 v{vPS}, {32*NPROD*64}, v{vT2}
    v_lshl_add_u32 v{vPS}, v{vT1}, 4, v{vPS}
    v_add_u32 v{vPS}, s{sT3}, v{vPS}
    s_lshr_b32 s{sT3}, s{sWAVE}, 2
    s_lshl_b32 s{sT3}, s{sT3}, 9
    s_and_b32 s{sT4}, s{sWAVE}, 3
    s_lshl_b32 s{sT4}, s{sT4}, 7
    s_add_u32 s{sT3}, s{sT3}, s{sT4}
    s_add_u32 s{sT3}, s{sT3}, s{sT2}
    v_lshlrev_b32 v{vGL}, 12, v{vT1}
    v_bfe_u32 v{vT3}, v0, 3, 1
    v_lshl_add_u32 v{vGL}, v{vT3}, 10, v{vGL}
    v_lshl_add_u32 v{vGL}, v{vT2}, 4, v{vGL}
    v_add_u32 v{vGL}, s{sT3}, v{vGL}
    s_mov_b32 s{sHM}, 0x00ff00ff
    s_mov_b32 s{sHM+1}, 0x00ff00ff
    ''')
    poll('L_pollk', '\n'.join(f'global_load_dwordx2 {pr(vKs+2*r)}, v{vT0}, {P(sWS)} offset:{512*r} sc1' for r in range(4)),
         f'''v_xor_b32 v{vT1}, s{sTAG}, v{vKs+1}
         v_xor_b32 v{vT2}, s{sTAG}, v{vKs+3}
         v_xor_b32 v{vT3}, s{sTAG}, v{vKs+5}
         v_or3_b32 v{vT1}, v{vT1}, v{vT2}, v{vT3}
         v_xor_b32 v{vT2}, s{sTAG}, v{vKs+7}
         v_or_b32 v{vT1}, v{vT1}, v{vT2}
         v_cmp_ne_u32 vcc, 0, v{vT1}''')
    stamp('keysok')
    def sort8(regs, tmps):
        for x, t in zip(regs, tmps): A(f'v_max_u32_dpp v{t}, v{x}, v{x} row_shl:4 row_mask:0xf bank_mask:0x5')
        for x, t in zip(regs, tmps): A(f'v_min_u32_dpp v{t}, v{x}, v{x} row_shr:4 row_mask:0xf bank_mask:0xa')
        for x, t in zip(regs, tmps): A(f'v_mov_b32_dpp v{x}, v{t} quad_perm:[2,3,0,1] {DPPM}')
        for x, t in zip(regs, tmps): A(f'v_med3_u32 v{t}, v{t}, v{x}, v{vM2}')
        for x, t in zip(regs, tmps): A(f'v_mov_b32_dpp v{x}, v{t} quad_perm:[1,0,3,2] {DPPM}')
        for x, t in zip(regs, tmps): A(f'v_med3_u32 v{x}, v{t}, v{x}, v{vM1}')
    k0, k1, k2, k3 = vKs, vKs + 2, vKs + 4, vKs + 6
    t0, t1 = vKs + 1, vKs + 3
    A(f'v_max_u32_dpp v{k0}, v{k1}, v{k0} row_half_mirror {DPPM}')
    A(f'v_max_u32_dpp v{k2}, v{k3}, v{k2} row_half_mirror {DPPM}')
    sort8([k0, k2], [t0, t1])
    A(f'v_max_u32_dpp v{k0}, v{k2}, v{k0} row_half_mirror {DPPM}')
    sort8([k0], [t0])
    A(f'v_max_u32_dpp v{k0}, v{k0}, v{k0} row_mirror {DPPM}')
    sort8([k0], [t0])
    for sw in ('v_permlane16_swap_b32', 'v_permlane32_swap_b32'):
        A(f'v_mov_b32 v{t1}, v{k0}')
        A(f'{sw} v{t1}, v{k0}')
        A(f'v_max_u32_dpp v{k0}, v{k0}, v{t1} row_half_mirror {DPPM}')
        sort8([k0], [t0])
    vRow = vKs + 2
    vG = 166
    A(f'''
    v_and_b32 v{vRow}, 0x7ff, v{k0}
    v_sub_u32 v{vRow}, 2047, v{vRow}
    v_lshl_add_u32 v{vT1}, v{vRow}, 11, v{vGA_}
    s_mov_b64 exec, {P(sHM)}
    ''')
    stamp('top8')
    poll('L_pollg', '\n'.join(f'global_load_dwordx4 {q4(vG+4*u)}, v{vT1}, {P(sWS)} offset:{128*(u>>1) + 16*(u&1)} sc1' for u in range(4)),
         '\n'.join([f'v_xor_b32 v{vG+2*i+1}, s{sTAG}, v{vG+2*i+1}' for i in range(8)] +
                   [f'v_or3_b32 v{vG+1}, v{vG+1}, v{vG+3}, v{vG+5}', f'v_or3_b32 v{vG+7}, v{vG+7}, v{vG+9}, v{vG+11}',
                    f'v_or3_b32 v{vG+1}, v{vG+1}, v{vG+13}, v{vG+15}', f'v_or_b32 v{vG+1}, v{vG+1}, v{vG+7}',
                    f'v_cmp_ne_u32 vcc, 0, v{vG+1}']))
    stamp('gath')
    for ks_ in range(2):
        b = vG + 8*ks_
        A(f'v_mov_b32 v{b+1}, v{b+2}'); A(f'v_mov_b32 v{b+2}, v{b+4}'); A(f'v_mov_b32 v{b+3}, v{b+6}')
    vDg = 182
    A(f'''
    s_mov_b64 exec, -1
    s_mov_b32 s{sT2}, 0x03020105
    s_mov_b32 s{sT3}, 0x03020106
    s_mov_b32 s{sT4}, 0x03020107
    s_waitcnt lgkmcnt(0)
    v_mfma_f32_16x16x32_bf16 {q4(vDg)}, {q4(vWf)}, {q4(vG)}, 0
    v_mfma_f32_16x16x32_bf16 {q4(vDg)}, {q4(vWf+4)}, {q4(vG+8)}, {q4(vDg)}
    ''')
    def pack24(y):
        for d in range(3): A(f'v_perm_b32 v{y+d}, v{y+3}, v{y+d}, s{sT2+d}')
        A(f'v_mov_b32 v{y+3}, s{sTAG}')
    pack24(vDg)
    A(f's_mov_b64 exec, {P(sHM)}')
    lstore(f'global_store_dwordx4 v{vGS}, {q4(vDg)}, {P(sWS)}')
    A('s_mov_b64 exec, -1')
    stamp('preB6')
    A(f'''
    s_cmp_lg_u32 s{sM}, 0
    s_cbranch_scc1 L_nosel
    s_cmp_lg_u32 s{sWAVE}, 7
    s_cbranch_scc1 L_nosel
    s_lshl_b32 s{sT0}, s{sG}, 7
    s_add_u32 s{sT0}, s{sT0}, {SEL}
    v_lshl_add_u32 v{vT2}, v{vLANE}, 3, s{sT0}
    v_mov_b32 v{vRow+1}, s{sTAG}
    s_mov_b64 exec, 0xff
    ''')
    lstore(f'global_store_dwordx2 v{vT2}, {pr(vRow)}, {P(sWS)}')
    A(f'''
    s_mov_b64 exec, -1
    s_cmp_lg_u32 s{sG}, 0
    s_cbranch_scc1 L_nosel
    s_add_u32 s{sT0}, s{sEP}, 1
    v_mov_b32 v{vT2}, {EPOCH}
    v_mov_b32 v{vT3}, s{sT0}
    s_mov_b64 exec, 1
    global_store_dword v{vT2}, v{vT3}, {P(sWS)} sc1
    s_mov_b64 exec, -1
    L_nosel:
    s_mov_b32 s{sT0}, 0x0004000c
    s_mov_b32 s{sT1}, 0x0402010c
    ''')
    A(f'''
    v_and_b32 v{vT0}, 7, v0
    v_lshrrev_b32 v{vT1}, 5, v{vLANE}
    v_bfe_u32 v{vT2}, v0, 4, 1
    v_lshl_add_u32 v{vT1}, v{vT1}, 1, v{vT2}
    v_lshl_add_u32 v{vT1}, s{sWAVE}, 2, v{vT1}
    v_lshlrev_b32 v{vT1}, 1, v{vT1}
    v_lshl_add_u32 v{vT1}, v{vT0}, 6, v{vT1}
    v_lshrrev_b32 v{vT2}, 4, v{vLANE}
    v_lshlrev_b32 v{vT2}, 4, v{vT2}
    v_lshl_add_u32 v{vT2}, v{vT0}, 6, v{vT2}
    ''')
    vE = 166
    poll('L_pollx', f'''global_load_dwordx4 {q4(vE)}, v{vGL}, {P(sWS)} sc1
         global_load_dwordx4 {q4(vE+4)}, v{vGL}, {P(sWS)} offset:2048 sc1''',
         f'''v_xor_b32 v{vE+3}, s{sTAG}, v{vE+3}
         v_xor_b32 v{vE+7}, s{sTAG}, v{vE+7}
         v_or_b32 v{vE+3}, v{vE+3}, v{vE+7}
         v_cmp_ne_u32 vcc, 0, v{vE+3}''')
    stamp('B6')
    def unp24(us, a, b):
        for u in us: A(f'v_perm_b32 v{u+3}, v{u+1}, v{u}, s{a}')
        for u in us: A(f'v_perm_b32 v{u+3}, v{u+2}, v{u+3}, s{b}')
    unp24([vE, vE + 4], sT0, sT1)
    y = vE
    A(f'''
    v_pk_add_f32 {pr(y)}, {pr(y)}, {pr(y+4)}
    v_pk_add_f32 {pr(y+2)}, {pr(y+2)}, {pr(y+6)}
    v_permlane32_swap_b32 v{y}, v{y+2}
    v_permlane32_swap_b32 v{y+1}, v{y+3}
    v_add_f32 v{y}, v{y}, v{y+2}
    v_add_f32 v{y+1}, v{y+1}, v{y+3}
    v_permlane16_swap_b32 v{y}, v{y+1}
    v_add_f32 v{y}, v{y}, v{y+1}
    v_cvt_pk_bf16_f32 v{y}, 0, v{y}
    v_mul_f32 v{y+2}, 0xbfb8aa3b, v{y}
    v_exp_f32 v{y+2}, v{y+2}
    v_mov_b32_dpp v{y+1}, v{y} row_ror:8 {DPPM}
    v_add_f32 v{y+2}, 1.0, v{y+2}
    v_rcp_f32 v{y+2}, v{y+2}
    v_mul_f32 v{y}, v{y}, v{y+2}
    v_cvt_pk_bf16_f32 v{y}, 0, v{y}
    v_mul_f32 v{y}, v{y}, v{y+1}
    v_cvt_pk_bf16_f32 v{y}, v{y}, v{y}
    s_mov_b64 exec, {P(sHM)}
    ds_write_b16 v{vT1}, v{y} offset:{L_GU}
    s_mov_b64 exec, -1
    s_waitcnt lgkmcnt(0)
    s_barrier
    ds_read_b128 {q4(vE)}, v{vT2} offset:{L_GU}
    s_waitcnt lgkmcnt(0)
    v_mfma_f32_16x16x32_bf16 {q4(vDg)}, {q4(vWf+8)}, {q4(vE)}, 0
    ''')
    stamp('B7')
    pack24(vDg)
    A(f's_mov_b64 exec, {P(sHM)}')
    A(f'global_store_dwordx4 v{vPS}, {q4(vDg)}, {P(sWS)} sc1')
    A('s_mov_b64 exec, -1')
    stamp('partst')
    vOR = 200
    A(f'''
    v_and_b32 v{vOR}, 7, v0
    v_lshl_add_u32 v{vOR}, s{sWAVE}, 3, v{vOR}
    s_lshl_b32 s{sT0}, s{sM}, 6
    v_add_u32 v{vOR}, s{sT0}, v{vOR}
    s_mov_b64 {P(sEX)}, 0
    s_branch L_selcmp
    ''')
    A('L_tail:')
    outcalc()
    vWr = 130
    A(f'''
    s_andn2_b64 exec, exec, {P(sEX)}
    s_cbranch_execz L_noout
    global_store_dwordx4 v{vJR}, {q4(vOut)}, {P(sOUT)} {cfg.OUT_FL}
    L_noout:
    s_mov_b64 exec, -1
    v_and_b32 v{vOR}, 7, v0
    s_lshl_b32 s{sT0}, s{sG}, 7
    s_add_u32 s{sT0}, s{sT0}, {SEL}
    v_lshl_add_u32 v{vT0}, v{vOR}, 3, s{sT0}
    v_lshl_add_u32 v{vOR}, s{sWAVE}, 3, v{vOR}
    s_lshl_b32 s{sT0}, s{sM}, 6
    v_add_u32 v{vOR}, s{sT0}, v{vOR}
    s_not_b64 {P(sEX)}, {P(sEX)}
    v_lshlrev_b32 v{vT1}, 4, v{vLANE}
    global_load_dwordx4 {q4(vWr)}, v{vT1}, {P(sWR)}
    ''')
    poll('L_polls', f'global_load_dwordx2 {pr(vRow)}, v{vT0}, {P(sWS)} sc1', f'v_cmp_ne_u32 vcc, s{sTAG}, v{vRow+1}')
    A(f'v_and_b32 v{vRow}, 0x7ff, v{vRow}')
    A('L_selcmp:')
    for i in range(8):
        A(f'v_readlane_b32 s{sT0}, v{vRow}, {i}')
        A(f'v_cmp_eq_u32 vcc, s{sT0}, v{vOR}')
        A(f's_or_b64 {P(sEX)}, {P(sEX)}, vcc')
    A(f'''
    s_andn2_b64 exec, exec, {P(sEX)}
    s_cbranch_execz L_noout2
    global_store_dwordx4 v{vJR}, {q4(vOut)}, {P(sOUT)} {cfg.OUT_FL}
    L_noout2:
    s_mov_b64 exec, -1
    s_cmp_lt_u32 s{sM}, {NS3}
    s_cbranch_scc1 L_fin
    ''')
    vHr = 134
    vHs = 142
    vPu = 166
    A(f'''
    s_sub_u32 s{sT0}, s{sM}, {NS3}
    v_readlane_b32 s{sT2}, v{vRow}, s{sWAVE}
    s_lshl_b32 s{sT3}, s{sT2}, 11
    s_add_u32 s{sT3}, s{sT3}, {H2P}
    v_lshl_add_u32 v{vT0}, v{vLANE}, 5, s{sT3}
    v_and_b32 v{vT1}, 3, v0
    v_lshlrev_b32 v{vT1}, 2, v{vT1}
    v_lshrrev_b32 v{vT2}, 5, v{vLANE}
    v_lshl_add_u32 v{vT1}, v{vT2}, 1, v{vT1}
    v_bfe_u32 v{vT2}, v0, 4, 1
    v_add_u32 v{vT3}, v{vT1}, v{vT2}
    s_lshl_b32 s{sT4}, s{sT0}, 4
    v_add_u32 v{vT3}, s{sT4}, v{vT3}
    v_lshlrev_b32 v{vOR}, 2, v{vT3}
    ds_read_b32 v{vOR+1}, v{vOR} offset:{L_MOD + 5*256}
    s_lshl_b32 s{sT5}, s{sG}, 8
    s_add_u32 s{sT5}, s{sT5}, s{sT3}
    v_add_u32 v{vT1}, s{sT4}, v{vT1}
    v_lshl_add_u32 v{vT1}, v{vT1}, 2, s{sT5}
    v_add_u32 v{vOR+2}, {X1P - H2P}, v{vT1}
    s_lshl_b32 s{sT5}, s{sT2}, 10
    s_lshl_b32 s{sT4}, s{sG}, 7
    s_add_u32 s{sT5}, s{sT5}, s{sT4}
    v_lshl_add_u32 v{vOR+3}, v{vT3}, 1, s{sT5}
    ''')
    poll('L_pollr', f'''global_load_dwordx4 {q4(vHr)}, v{vT0}, {P(sWS)} sc1
         global_load_dwordx4 {q4(vHr+4)}, v{vT0}, {P(sWS)} offset:16 sc1
         global_load_dwordx2 {pr(vHs)}, v{vT1}, {P(sWS)} sc1
         global_load_dwordx2 {pr(vHs+2)}, v{vOR+2}, {P(sWS)} sc1''',
         f'''v_xor_b32 v{vHr+1}, s{sTAG}, v{vHr+1}
         v_xor_b32 v{vHr+3}, s{sTAG}, v{vHr+3}
         v_xor_b32 v{vHr+5}, s{sTAG}, v{vHr+5}
         v_xor_b32 v{vHr+7}, s{sTAG}, v{vHr+7}
         v_xor_b32 v{vHs+1}, s{sTAG}, v{vHs+1}
         v_xor_b32 v{vHs+3}, s{sTAG}, v{vHs+3}
         v_or3_b32 v{vHr+1}, v{vHr+1}, v{vHr+3}, v{vHr+5}
         v_or3_b32 v{vHr+7}, v{vHr+7}, v{vHs+1}, v{vHs+3}
         v_or_b32 v{vHr+1}, v{vHr+1}, v{vHr+7}
         v_cmp_ne_u32 vcc, 0, v{vHr+1}''')
    vRr = 146
    A(f'v_mov_b32 v{vRr}, 0')
    for i in range(4): A(f'v_dot2_f32_bf16 v{vRr}, v{vHr+2*i}, v{vWr+i}, v{vRr}')
    fullred([vRr], [vRr + 1])
    rnd(vRr)
    A(f'''
    v_mul_f32 v{vRr}, 0xbfb8aa3b, v{vRr}
    v_exp_f32 v{vRr}, v{vRr}
    v_add_f32 v{vRr}, 1.0, v{vRr}
    v_rcp_f32 v{vRr}, v{vRr}
    v_cvt_pk_bf16_f32 v{vRr}, 0, v{vRr}
    v_cmp_ne_u32 vcc, 0, v{vT2}
    v_lshlrev_b32 v{vHs+1}, 16, v{vHs}
    v_and_b32 v{vHs}, s{sMASK}, v{vHs}
    v_cndmask_b32 v{vHs}, v{vHs+1}, v{vHs}, vcc
    v_lshlrev_b32 v{vHs+3}, 16, v{vHs+2}
    v_and_b32 v{vHs+2}, s{sMASK}, v{vHs+2}
    v_cndmask_b32 v{vHs+2}, v{vHs+3}, v{vHs+2}, vcc
    v_lshl_add_u32 v{vT0}, v{vLANE}, 4, s{sPT}
    s_mov_b32 s{sT2}, 0x0004000c
    s_mov_b32 s{sT3}, 0x0402010c
    v_mov_b32 v{vPu+12}, 0
    v_mov_b32 v{vPu+13}, 0
    v_mov_b32 v{vPu+14}, 0
    v_mov_b32 v{vPu+15}, s{sTAG}
    ''')
    stamp('redpre')
    lds_ = [f'global_load_dwordx4 {q4(vPu+4*i)}, v{vT0}, {P(sWS)} offset:{1024*i} sc1' for i in range(3)]
    lds_ += ['s_mov_b32 exec_hi, 0', f'global_load_dwordx4 {q4(vPu+12)}, v{vT0}, {P(sWS)} offset:3072 sc1', 's_mov_b32 exec_hi, -1']
    chk = [f'v_xor_b32 v{vT1}, s{sTAG}, v{vPu+3}', f'v_xor_b32 v{vT2}, s{sTAG}, v{vPu+7}', f'v_xor_b32 v{vT3}, s{sTAG}, v{vPu+11}',
           f'v_or3_b32 v{vT1}, v{vT1}, v{vT2}, v{vT3}', f'v_xor_b32 v{vT2}, s{sTAG}, v{vPu+15}', f'v_or_b32 v{vT1}, v{vT1}, v{vT2}',
           f'v_cmp_ne_u32 vcc, 0, v{vT1}']
    poll('L_pollp', '\n'.join(lds_), '\n'.join(chk))
    stamp('partok')
    unp24([vPu + 4*i for i in range(4)], sT2, sT3)
    for (a, b) in ((0, 1), (2, 3), (0, 2)):
        for h in range(2): A(f'v_pk_add_f32 {pr(vPu+4*a+2*h)}, {pr(vPu+4*a+2*h)}, {pr(vPu+4*b+2*h)}')
    y = vPu
    A(f'''
    v_permlane32_swap_b32 v{y}, v{y+2}
    v_permlane32_swap_b32 v{y+1}, v{y+3}
    v_add_f32 v{y}, v{y}, v{y+2}
    v_add_f32 v{y+1}, v{y+1}, v{y+3}
    v_permlane16_swap_b32 v{y}, v{y+1}
    v_add_f32 v{y}, v{y}, v{y+1}
    v_add_f32_dpp v{y}, v{y}, v{y} row_ror:8 {DPPM}
    v_add_f32_dpp v{y}, v{y}, v{y} row_ror:4 {DPPM}
    v_cvt_pk_bf16_f32 v{y}, 0, v{y}
    v_mul_f32 v{y}, v{y}, v{vRr}
    v_cvt_pk_bf16_f32 v{y}, 0, v{y}
    v_add_f32 v{y}, v{y}, v{vHs}
    v_cvt_pk_bf16_f32 v{y}, 0, v{y}
    s_waitcnt lgkmcnt(0)
    v_mul_f32 v{y}, v{y}, v{vOR+1}
    v_cvt_pk_bf16_f32 v{y}, 0, v{y}
    v_add_f32 v{y}, v{y}, v{vHs+2}
    v_cvt_pk_bf16_f32 v{y}, v{y}, v{y}
    s_mov_b32 s{sT0}, 0x000f000f
    s_mov_b32 s{sT1}, 0x000f000f
    s_mov_b64 exec, {P(sT0)}
    global_store_short v{vOR+3}, v{y}, {P(sOUT)} {cfg.OUT_FL}
    s_mov_b64 exec, -1
    ''')
    A('L_fin:')
    if cfg.STAMP:
        A(f's_memtime s[{sST+2*nst[0]}:{sST+2*nst[0]+1}]'); nst[0] += 1
        A(f'''
        s_waitcnt lgkmcnt(0)
        s_lshl_b32 s{sT0}, s{sWID}, 3
        s_add_u32 s{sT0}, s{sT0}, s{sWAVE}
        s_lshl_b32 s{sT0}, s{sT0}, 7
        s_add_u32 s{sT0}, s{sT0}, {STAMPS}
        v_mov_b32 v{vT0}, s{sT0}
        s_mov_b64 exec, 1
        ''')
        for i in range(nst[0]):
            A(f'v_mov_b32 v{vT1}, s{sST+2*i}')
            A(f'global_store_dword v{vT0}, v{vT1}, {P(sWS)} offset:{4*i}')
        A(f'v_mov_b32 v{vT1}, s{sCNT}')
        A(f'global_store_dword v{vT0}, v{vT1}, {P(sWS)} offset:120')
        A(f'v_mov_b32 v{vT1}, s{sMODE}')
        A(f'global_store_dword v{vT0}, v{vT1}, {P(sWS)} offset:124')
    A('L_end:')
    A('s_endpgm')
    for k, t in slow:
        A(f'L_slow{k}:'); A('s_nop 4'); A(t); A('s_nop 1'); A(f's_branch L_back{k}')
    A('L_modeslow:')
    A(f'''
    s_mov_b32 s{sT4}, 64
    L_moderetry:
    global_load_dword v{vMT}, v{vPT}, {P(sWS)} sc1
    s_waitcnt vmcnt(0)
    s_mov_b32 s{sMODE}, {0 if cfg.FORCE_SLOW else 1}
    v_cmp_ne_u32 vcc, s{sXCC}, v{vMT}
    s_cbranch_vccz L_modeback
    s_mov_b32 s{sMODE}, 0
    v_subrev_u32 v{vMT+1}, s{sTAG}, v{vMT}
    v_subrev_u32 v{vMT+1}, 1, v{vMT+1}
    v_cmp_lt_u32 vcc, 15, v{vMT+1}
    s_cbranch_vccz L_modeback
    s_sub_u32 s{sT4}, s{sT4}, 1
    s_cbranch_scc0 L_moderetry
    s_branch L_modeback
    ''')
    for name, fn in late:
        A(name + ':'); fn()
    A('L_codeend:')
    return A

HEAD = open('adaLN_cond__ssm_conv_h3__moe_arch_mod__prompt.s.ref').read().split('; Override launch')[0]
def emit(path):
    A = build()
    s = HEAD + f'; @launch grid=(256,1,1) block=(512,1,1) lds={LDS_BYTES}\n'
    s += f'''.amdgcn_target "amdgcn-amd-amdhsa--gfx950"
.text
.globl {KNAME}
.p2align 8
.type {KNAME},@function
{KNAME}:
'''
    s += A.text()
    s += f'''.section .rodata,"a"
.p2align 6
.amdhsa_kernel {KNAME}
  .amdhsa_next_free_vgpr 248
  .amdhsa_next_free_sgpr 102
  .amdhsa_accum_offset 248
  .amdhsa_group_segment_fixed_size 0
  .amdhsa_kernarg_size 128
  .amdhsa_user_sgpr_count 2
  .amdhsa_user_sgpr_kernarg_segment_ptr 1
  .amdhsa_system_sgpr_workgroup_id_x 1
.end_amdhsa_kernel
'''
    open(path, 'w').write(s)
    return A

if __name__ == '__main__':
    out = sys.argv[1]
    for a in sys.argv[2:]:
        k, v = a.split('=')
        setattr(cfg, k, eval(v))
    A = emit(out)
    if cfg.STAMP: open(out + '.sites', 'w').write(' '.join(cfg.ORDER + ['end']))
    print('emitted', out, 'lines', len(A.out), 'pads', A.npad)
```

```python
import sys
from asmdsl import Asm

class Cfg:
    STAMP = False
    STOP = 99
    WS_BASE = 0
    WBL2 = False
    OUT_FL = 'sc1'
    POLL_CAP = 200000
    FORCE_SLOW = False
    SEC = 'bar'
    WPOS = 'key'
    X3ACK = True
    GLOOP = 0
    PRIO = 3
    OUTPOS = 'top8'
    H2PT = True
    GSLP = 0
    HSLP = 16
    NOOUT = False
    REDSLP = 0
    WAFTER = True
    WDPOS = 's1'
    DBL = False
    DBGT = False
    NT = ''
    WPF = True
    PARTPT = True
    SITES = ()
    ORDER = []
cfg = Cfg()

KNAME = "adaLN_cond__ssm_conv_h3__moe_arch_mod__prompt_kernel"
EPOCH = 0; FL1 = 0x10000; FL2 = 0x12000; FLM = 0x14000; MTAB = 0x16000; KEYS = 0x18000; SEL = 0x1C000
XC = 0x20000; MODP = 0x80000; XB1 = 0x100000; X0 = 0x400000; X3 = 0x600000
H2P = 0x800000; X1P = 0xC00000; PART = 0x1000000; GXB = 0x300000; STAMPS = 0x2000000
NS3 = 28
NPROD = 56
NG0 = 8
USTR = 4160; UCH = 8 * USTR
L_MOD = 0
L_KEY = 2048
L_GP = 4096
L_CNT = 3328
L_ST = 3584
L_KVR = 8192; KVS = 4608
L_P = L_KVR + 2 * KVS
L_T = L_P; TS = 272
L_KD = L_P + 32768
L_U = L_KD + 8192
L_WGU = L_U + 2 * UCH
L_XS = L_WGU + 24576
L_END = L_WGU + 32768
L_Z = L_U
L_WD = L_U + 8192
L_G2 = L_P
L_GU = L_P + 8192
LDS_BYTES = 158720
assert L_END <= LDS_BYTES

sX, sK, sV, sSK, sF, sD, sWR = 4, 6, 8, 10, 12, 14, 18
sWG, sWU, sWD, sC, sWM, sOUT, sDBG, sWS = 20, 22, 24, 26, 28, 30, 32, 34
sG, sM, sWAVE, sTAG, sMODE, sXCC, sCNT, sTILE = 36, 37, 38, 39, 40, 41, 42, 43
sKSRD = 44
sFSRD = 48
sMASK = 52
sWID = 53
sEP = 54
sDV = 55
sT0, sT1, sT2, sT3, sT4, sT5 = 56, 57, 58, 59, 60, 61
sEX = 62
sC0 = 44
sWSR = 64
sOUTR = 68
sD0, sD1 = 72, 73
sPEND, sPT = 16, 17
sHM = 10
sST = 74
def P(s): return f's[{s}:{s+1}]'

import re
def to_buffer(line):
    for base, srd in ((sWS, sWSR), (sOUT, sOUTR)):
        b = re.escape(P(base)); R = f's[{srd}:{srd+3}]'
        m = re.match(rf'^\s*global_load_lds_(\w+) (v\d+), {b}(.*)$', line)
        if m: return f'buffer_load_{m.group(1)} {m.group(2)}, {R}, 0 offen{m.group(3)} lds'
        m = re.match(rf'^\s*global_load_(\w+) (v\S+), (v\d+), {b}(.*)$', line)
        if m: return f'buffer_load_{m.group(1)} {m.group(2)}, {m.group(3)}, {R}, 0 offen{m.group(4)}'
        m = re.match(rf'^\s*global_store_(\w+) (v\d+), (v\S+), {b}(.*)$', line)
        if m: return f'buffer_store_{m.group(1)} {m.group(3)}, {m.group(2)}, {R}, 0 offen{m.group(4)}'
    return line
def add_nt(line):
    if not cfg.NT: return line
    l = line.strip()
    if l.startswith('global_load') and any(P(b) in l for b in (sX, sK, sV, sWM, sWD, sT2)) and 'sc1' not in l: return l + ' ' + cfg.NT
    if l.startswith('buffer_load') and (f's[{sKSRD}:{sKSRD+3}]' in l or f's[{sFSRD}:{sFSRD+3}]' in l): return l + ' ' + cfg.NT
    return line
class BAsm(Asm):
    def __call__(self, text):
        super().__call__('\n'.join(to_buffer(add_nt(l)) for l in text.strip().split('\n')))
def build():
    A = BAsm()
    slow = []
    late = []
    nst = [0]
    site = [0]
    def stamp(name=''):
        if cfg.STAMP and (name in cfg.SITES or name == 'start'):
            assert sST + 2 * nst[0] + 3 <= 101
            A(f's_memtime s[{sST+2*nst[0]}:{sST+2*nst[0]+1}]'); nst[0] += 1
            cfg.ORDER.append(name)
            if name in ('B2', 'B3b'): A('s_waitcnt lgkmcnt(0)')
    uid = [0]
    def lstore(text):
        uid[0] += 1; k = uid[0]
        A(f's_cmp_eq_u32 s{sMODE}, 1')
        A(f's_cbranch_scc0 L_slow{k}')
        A(text)
        A(f'L_back{k}:')
        slow.append((k, '\n'.join(l + ' sc1' for l in text.strip().split('\n'))))
    def poll(name, loads, check, slp=0):
        A(f'{name}:')
        if slp: A(f's_sleep {slp}')
        A(loads)
        A('s_waitcnt vmcnt(0)')
        A(check)
        A(f's_sub_u32 s{sCNT}, s{sCNT}, 1')
        A('s_cselect_b64 vcc, 0, vcc')
        A(f's_cselect_b32 s{sCNT}, 0, s{sCNT}')
        A(f's_cbranch_vccnz {name}')
    def mpoll(name, items):
        A(f'{name}:')
        for k, (ld, tr, mk) in enumerate(items):
            A(f's_mov_b64 exec, {P(mk)}')
            A(f's_cbranch_execz {name}_s{k}')
            A(ld)
            A(f'{name}_s{k}:')
        A('s_mov_b64 exec, -1')
        A('s_waitcnt vmcnt(0)')
        for (ld, tr, mk) in items:
            if isinstance(tr, int): A(f'v_cmp_ne_u32 {P(mk)}, s{sTAG}, v{tr}')
            else: A(tr[0]); A(f'v_cmp_ne_u32 {P(mk)}, 0, v{tr[1]}')
        A(f's_or_b64 vcc, {P(items[0][2])}, {P(items[1][2])}')
        for (ld, tr, mk) in items[2:]: A(f's_or_b64 vcc, vcc, {P(mk)}')
        A(f's_sub_u32 s{sCNT}, s{sCNT}, 1')
        A('s_cselect_b64 vcc, 0, vcc')
        A(f's_cselect_b32 s{sCNT}, 0, s{sCNT}')
        A(f's_cbranch_vccnz {name}')
    def unpack(d, s):
        A(f'v_lshlrev_b32 v{d}, 16, v{s}')
        A(f'v_and_b32 v{d+1}, s{sMASK}, v{s}')
    def rnd(d, s=None):
        A(f'v_cvt_pk_bf16_f32 v{d}, 0, v{d if s is None else s}')
    def pr(r): return f'v[{r}:{r+1}]'
    def q4(r): return f'v[{r}:{r+3}]'
    DPPM = 'row_mask:0xf bank_mask:0xf'
    def allred(regs, tmps, add='v_add_f32'):
        for r in regs: A(f'{add}_dpp v{r}, v{r}, v{r} row_ror:8 {DPPM}')
        for sw in ('v_permlane16_swap_b32', 'v_permlane32_swap_b32'):
            for r, t in zip(regs, tmps): A(f'v_mov_b32 v{t}, v{r}')
            for r, t in zip(regs, tmps): A(f'{sw} v{t}, v{r}')
            for r, t in zip(regs, tmps): A(f'{add} v{r}, v{r}, v{t}')
    def fullred(regs, tmps, add='v_add_f32'):
        for pat in ('quad_perm:[1,0,3,2]', 'quad_perm:[2,3,0,1]', 'row_half_mirror'):
            for r in regs: A(f'{add}_dpp v{r}, v{r}, v{r} {pat} {DPPM}')
        allred(regs, tmps, add)
    def lnstats(S, Q, t0, mean_out, inv_out):
        A(f'v_mul_f32 v{S}, 0x3b000000, v{S}')
        A(f'v_mul_f32 v{Q}, 0x3b000000, v{Q}')
        A(f'v_fma_f32 v{t0}, -v{S}, v{S}, v{Q}')
        A(f'v_max_f32 v{t0}, 0, v{t0}')
        rnd(mean_out, S)
        rnd(t0)
        A(f'v_add_f32 v{t0}, 0x3727c5ac, v{t0}')
        rnd(t0)
        A(f'v_sqrt_f32 v{t0}, v{t0}')
        rnd(t0)
        A(f'v_rcp_f32 v{inv_out}, v{t0}')

    A(f'''
    s_cmp_ge_u32 s2, 256
    s_cbranch_scc1 L_end
    s_load_dwordx16 s[4:19], s[0:1], 0
    s_load_dwordx16 s[20:35], s[0:1], 64
    ''')
    if cfg.STAMP:
        A(f's_memrealtime s[{sST}:{sST+1}]'); nst[0] += 1
    if cfg.DBGT:
        A('s_memrealtime s[74:75]'); A('s_memtime s[76:77]')
    stamp('start')
    vLANE, vTID = 1, 0
    vA, vB, vT0, vT1, vT2, vT3 = 2, 3, 4, 5, 6, 7
    vPA = 9
    vJR = 8
    vX = 10
    vKr = 14
    vVr = 21
    vSk = 26
    vFl = 30
    vMT = 38
    vGW = 110
    vPT = 40
    A(f'''
    s_getreg_b32 s{sXCC}, hwreg(HW_REG_XCC_ID)
    s_and_b32 s{sG}, s2, 7
    s_lshr_b32 s{sM}, s2, 3
    v_lshrrev_b32 v{vT0}, 6, v0
    v_and_b32 v{vLANE}, 63, v0
    v_readfirstlane_b32 s{sWAVE}, v{vT0}
    s_and_b32 s{sXCC}, s{sXCC}, 15
    s_mov_b32 s{sMASK}, 0xffff0000
    s_mov_b32 s{sCNT}, {cfg.POLL_CAP}
    s_lshl_b32 s{sT0}, s{sM}, 16
    s_lshl_b32 s{sT1}, s{sG}, 7
    s_add_u32 s{sTILE}, s{sT0}, s{sT1}
    s_lshl_b32 s{sWID}, s{sG}, 5
    s_add_u32 s{sWID}, s{sWID}, s{sM}
    v_and_b32 v{vT0}, 31, v0
    v_lshrrev_b32 v{vT1}, 5, v0
    v_lshlrev_b32 v{vA}, 12, v{vT1}
    v_lshl_add_u32 v{vA}, v{vT0}, 2, v{vA}
    v_add_u32 v{vA}, s{sTILE}, v{vA}
    v_subrev_u32 v{vB}, 0xc00, v{vA}
    v_bfrev_b32 v{vT2}, 1
    v_cmp_gt_u32 vcc, 0xc00, v{vA}
    v_cndmask_b32 v{vB}, v{vB}, v{vT2}, vcc
    v_lshl_add_u32 v{vT2}, v{vT0}, 4, s{sT1}
    v_lshl_add_u32 v{vT2}, s{sT1}, 1, v{vT2}
    v_add_u32 v{vT2}, s{sT1}, v{vT2}
    ''')
    A(f'''
    s_add_u32 s{sT3}, s{sXCC}, 1
    v_mov_b32 v{vPT}, s{sWID}
    v_mov_b32 v{vPT+1}, s{sT3}
    s_lshl_b32 s{sT4}, s{sG}, 7
    s_lshl_b32 s{sT5}, s{sM}, 2
    s_add_u32 s{sT4}, s{sT4}, s{sT5}
    v_lshlrev_b32 v{vT0}, 4, v0
    v_subrev_u32 v{vT1}, 16, v{vT0}
    v_and_b32 v{vT3}, 255, v0
    v_cmp_eq_u32 vcc, 0, v{vT3}
    v_bfrev_b32 v{vT3}, 1
    v_cndmask_b32 v{vT1}, v{vT1}, v{vT3}, vcc
    s_lshl_b32 s{sT0}, s{sWID}, 13
    s_waitcnt lgkmcnt(0)
    s_load_dword s{sEP}, {P(sWS)}, {EPOCH + cfg.WS_BASE}
    global_load_dwordx4 {q4(vSk)}, v{vT2}, {P(sSK)}
    ''')
    for i in range(4): A(f'global_load_dword v{vKr+3+i}, v{vA}, {P(sK)} offset:{1024*i}')
    A(f'''
    s_mov_b32 s{sKSRD}, s{sK}
    s_mov_b32 s{sKSRD+1}, s{sK+1}
    s_mov_b32 s{sKSRD+2}, 0x200000
    s_mov_b32 s{sKSRD+3}, 0x20000
    s_mov_b32 exec_hi, 0
    ''')
    for i in range(3): A(f'buffer_load_dword v{vKr+i}, v{vB}, s[{sKSRD}:{sKSRD+3}], 0 offen offset:{1024*i}')
    A('s_mov_b64 exec, -1')
    for i in range(4): A(f'global_load_dword v{vVr+i}, v{vA}, {P(sV)} offset:{1024*i}')
    A(f'''
    s_add_u32 s{sWS}, s{sWS}, {cfg.WS_BASE}
    s_addc_u32 s{sWS+1}, s{sWS+1}, 0
    s_mov_b32 s{sWSR}, s{sWS}
    s_mov_b32 s{sWSR+1}, s{sWS+1}
    s_mov_b32 s{sWSR+2}, 0x4000000
    s_mov_b32 s{sWSR+3}, 0x20000
    s_mov_b32 s{sOUTR}, s{sOUT}
    s_mov_b32 s{sOUTR+1}, s{sOUT+1}
    s_mov_b32 s{sOUTR+2}, 0x200000
    s_mov_b32 s{sOUTR+3}, 0x20000
    s_add_u32 s{sFSRD}, s{sF}, s{sT0}
    s_addc_u32 s{sFSRD+1}, s{sF+1}, 0
    s_mov_b32 s{sFSRD+2}, 8192
    s_mov_b32 s{sFSRD+3}, 0x20000
    s_load_dword s{sDV}, {P(sD)}, s{sT4}
    ''')
    A(f'''
    s_cmp_lg_u32 s{sWAVE}, 7
    s_cbranch_scc1 L_nopt
    s_lshr_b32 s{sT0}, s{sM}, 2
    s_lshl_b32 s{sT0}, s{sT0}, 7
    s_lshl_b32 s{sT1}, s{sG}, 10
    s_add_u32 s{sT0}, s{sT0}, s{sT1}
    s_add_u32 s{sT1}, s{sT0}, {FL1}
    v_mov_b32 v{vPT+2}, s{sT1}
    s_add_u32 s{sT1}, s{sT0}, {FL2}
    v_writelane_b32 v{vPT+2}, s{sT1}, 2
    v_writelane_b32 v{vPT+2}, s{sT1}, 3
    s_lshl_b32 s{sT0}, s{sG}, 7
    s_add_u32 s{sT1}, s{sT0}, {FLM}
    v_writelane_b32 v{vPT+2}, s{sT1}, 4
    v_writelane_b32 v{vPT+2}, s{sT1}, 5
    s_add_u32 s{sT1}, s{sT0}, {SEL}
    v_writelane_b32 v{vPT+2}, s{sT1}, 6
    v_writelane_b32 v{vPT+2}, s{sT1}, 7
    s_lshl_b32 s{sT0}, s{sWID}, 6
    s_and_b32 s{sT0}, s{sT0}, 0xffffff80
    s_add_u32 s{sT1}, s{sT0}, {KEYS}
    v_writelane_b32 v{vPT+2}, s{sT1}, 8
    v_writelane_b32 v{vPT+2}, s{sT1}, 9
    v_and_b32 v{vPT+3}, 1, v0
    v_lshl_add_u32 v{vPT+2}, v{vPT+3}, 6, v{vPT+2}
    s_lshl_b32 s{sT0}, s{sWID}, 9
    s_add_u32 s{sT1}, s{sT0}, {MODP - 32*64}
    v_lshl_add_u32 v{vPT+3}, v{vLANE}, 6, s{sT1}
    v_cmp_lt_u32 vcc, 31, v{vLANE}
    v_cndmask_b32 v{vPT+2}, v{vPT+2}, v{vPT+3}, vcc
    s_lshl_b32 s{sT0}, s{sM}, 9
    s_add_u32 s{sT1}, s{sT0}, {H2P - 40*64}
    v_lshl_add_u32 v{vPT+3}, v{vLANE}, 6, s{sT1}
    v_cmp_lt_u32 vcc, 39, v{vLANE}
    v_cndmask_b32 v{vPT+2}, v{vPT+2}, v{vPT+3}, vcc
    s_mov_b32 exec_lo, 0x3ff
    s_mov_b32 exec_hi, {'0xffff' if cfg.H2PT else '0xff'}
    global_load_dword v{vPT+3}, v{vPT+2}, {P(sWS)} sc1
    s_mov_b64 exec, 0xffff
    s_getpc_b64 {P(sT0)}
    L_pc:
    s_lshl_b32 s{sT2}, s{sM}, 10
    v_lshl_add_u32 v{vPT+2}, v{vLANE}, 6, s{sT2}
    v_min_u32 v{vPT+2}, L_codeend-L_pc-4, v{vPT+2}
    global_load_dword v{vPT+3}, v{vPT+2}, {P(sT0)}
    s_mov_b64 exec, -1
    L_nopt:
    ''')
    A(f'''
    v_mov_b32 v{vPT}, {L_CNT}
    v_mov_b32 v{vPT+1}, 0
    ds_write_b32 v{vPT}, v{vPT+1}
    v_and_b32 v{vT2}, 7, v0
    v_lshl_add_u32 v{vT2}, s{sWAVE}, 3, v{vT2}
    v_lshlrev_b32 v{vT2}, 10, v{vT2}
    v_lshrrev_b32 v{vT3}, 3, v{vLANE}
    v_lshl_add_u32 v{vJR}, v{vT3}, 4, v{vT2}
    v_add_u32 v{vJR}, s{sTILE}, v{vJR}
    s_barrier
    buffer_load_dwordx4 {q4(vFl+4)}, v{vT0}, s[{sFSRD}:{sFSRD+3}], 0 offen
    s_mov_b64 exec, 1
    buffer_load_dwordx4 {q4(vFl)}, v{vT1}, s[{sFSRD}:{sFSRD+3}], 0 offen
    s_mov_b64 exec, -1
    s_lshl_b32 s{sT0}, s{sG}, 9
    s_add_u32 s{sT0}, s{sT0}, {MTAB}
    v_and_b32 v{vPT}, 31, v0
    v_lshl_add_u32 v{vPT}, v{vPT}, 4, s{sT0}
    s_lshl_b32 s{sT1}, s{sM}, 4
    s_add_u32 s{sT0}, s{sT0}, s{sT1}
    v_mov_b32 v{vPT+1}, s{sT0}
    s_waitcnt lgkmcnt(0)
    s_mul_i32 s{sTAG}, s{sEP}, 0x9E3779B1
    s_add_u32 s{sTAG}, s{sTAG}, 0x7F4A7C15
    s_add_u32 s{sXCC}, s{sXCC}, s{sTAG}
    s_add_u32 s{sXCC}, s{sXCC}, 1
    v_mov_b32 v{vPT+2}, s{sXCC}
    s_cmp_lg_u32 s{sWAVE}, 0
    s_cbranch_scc1 L_nomode
    s_mov_b64 exec, 1
    global_store_dword v{vPT+1}, v{vPT+2}, {P(sWS)} sc1
    s_mov_b64 exec, -1
    L_nomode:
    ''')
    stamp('issued')
    A(f's_mov_b32 s{sPEND}, 0')
    def wv(n): A(f's_waitcnt vmcnt({n})')
    vTp = 46
    vKp = 54
    vVp = 68
    vAc = 76
    vPp = 84
    vO = 92
    wv(6)
    for i in range(3): A(f'v_mov_b32 v{vPp+i}, v{vKr+4+i}')
    for i in range(3): A(f'v_permlane32_swap_b32 v{vKr+i}, v{vPp+i}')
    for j in range(4):
        src0, src1 = vSk + (j >> 1), vSk + 2 + (j >> 1)
        if j & 1:
            A(f'v_and_b32 v{vTp+2*j}, s{sMASK}, v{src0}'); A(f'v_and_b32 v{vTp+2*j+1}, s{sMASK}, v{src1}')
        else:
            A(f'v_lshlrev_b32 v{vTp+2*j}, 16, v{src0}'); A(f'v_lshlrev_b32 v{vTp+2*j+1}, 16, v{src1}')
    for r in range(7): unpack(vKp + 2*r, vKr + r)
    stamp('kland')
    for i in range(4): A(f'v_pk_mul_f32 {pr(vAc+2*i)}, {pr(vKp+2*i)}, {pr(vTp+6)}')
    for i in range(8): rnd(vAc + i)
    for j in (2, 1, 0):
        for i in range(4): A(f'v_pk_mul_f32 {pr(vPp+2*i)}, {pr(vKp+2*(i+3-j))}, {pr(vTp+2*j)}')
        for i in range(8): rnd(vPp + i)
        for i in range(4): A(f'v_pk_add_f32 {pr(vAc+2*i)}, {pr(vAc+2*i)}, {pr(vPp+2*i)}')
        for i in range(8): rnd(vAc + i)
    wv(2)
    A(f'global_load_dword v{vMT}, v{vPT}, {P(sWS)} sc1')
    for i in range(4): unpack(vVp + 2*i, vVr + i)
    for i in range(4): A(f'v_pk_mul_f32 {pr(vAc+2*i)}, {pr(vAc+2*i)}, {pr(vVp+2*i)}')
    for c in range(2):
        A(f'v_cvt_pk_bf16_f32 v{vO+2*c}, v{vAc+6+c}, v{vAc+4+c}')
        A(f'v_cvt_pk_bf16_f32 v{vO+2*c+1}, v{vAc+2+c}, v{vAc+c}')
    A(f'''
    v_and_b32 v{vT0}, 31, v0
    v_lshrrev_b32 v{vT1}, 5, v0
    v_mul_u32_u24 v{vT0}, {TS}, v{vT0}
    v_lshlrev_b32 v{vT1}, 3, v{vT1}
    v_sub_u32 v{vT0}, v{vT0}, v{vT1}
    v_add_u32 v{vT0}, {L_T + 120}, v{vT0}
    ds_write2_b64 v{vT0}, {pr(vO)}, {pr(vO+2)} offset0:0 offset1:16
    ''')
    A(f'''
    v_lshrrev_b32 v{vT1}, 4, v0
    v_mul_u32_u24 v{vT2}, {TS}, v{vT1}
    v_and_b32 v{vT3}, 15, v0
    v_lshl_add_u32 v{vT2}, v{vT3}, 4, v{vT2}
    v_lshlrev_b32 v{vT1}, 13, v{vT1}
    v_bfe_u32 v{vT3}, v0, 3, 1
    v_lshl_add_u32 v{vT1}, v{vT3}, 12, v{vT1}
    v_and_b32 v{vT3}, 7, v0
    v_lshl_add_u32 v{vT1}, v{vT3}, 4, v{vT1}
    s_lshl_b32 s{sT0}, s{sG}, 18
    s_sub_u32 s{sT1}, 31, s{sM}
    s_lshl_b32 s{sT1}, s{sT1}, 7
    s_add_u32 s{sT0}, s{sT0}, s{sT1}
    s_add_u32 s{sT0}, s{sT0}, {XB1}
    v_add_u32 v{vT1}, s{sT0}, v{vT1}
    s_waitcnt lgkmcnt(0)
    s_barrier
    ds_read_b128 {q4(vO)}, v{vT2} offset:{L_T}
    ''')
    stamp('B1')
    vX1A = 96
    A(f'''
    v_mov_b32 v{vX1A}, v{vT1}
    s_lshl_b32 s{sT0}, s{sG}, 10
    s_lshl_b32 s{sT1}, s{sWAVE}, 7
    s_add_u32 s{sT0}, s{sT0}, s{sT1}
    s_lshl_b32 s{sT1}, s{sM}, 2
    s_add_u32 s{sT0}, s{sT0}, s{sT1}
    v_mov_b32 v{vA}, s{sT0}
    v_mov_b32 v{vB}, s{sTAG}
    s_waitcnt lgkmcnt(0)
    global_store_dwordx4 v{vX1A}, {q4(vO)}, {P(sWS)}
    ''')
    vW1 = 46
    vOa = 52
    vOb = 58
    wv(2)
    for i in range(4): A(f'v_mov_b32_dpp v{vFl+i}, v{vFl+4+i} wave_shr:1 {DPPM}')
    for i in range(6): A(f'v_mov_b32 v{vW1+i}, v{vFl+1+i}')
    for i in range(6): A(f'v_alignbyte_b32 v{vOa+i}, v{vFl+i+1}, v{vFl+i}, 2')
    for i in range(6): A(f'v_alignbyte_b32 v{vOb+i}, v{vFl+i+2}, v{vFl+i+1}, 2')
    A(f'''
    v_lshrrev_b32 v{vT0}, 8, v0
    v_mul_u32_u24 v{vT0}, {UCH}, v{vT0}
    v_and_b32 v{vT1}, 255, v0
    v_lshl_add_u32 v{vT0}, v{vT1}, 4, v{vT0}
    v_add_u32 v{vT0}, {L_U}, v{vT0}
    v_add_u32 v{vT2}, {FL1}, v{vA}
    s_mov_b32 s{sMODE}, {0 if cfg.FORCE_SLOW else 1}
    s_waitcnt vmcnt(0)
    v_cmp_ne_u32 vcc, s{sXCC}, v{vMT}
    s_cbranch_vccnz L_modeslow
    L_modeback:
    s_cmp_eq_u32 s{sMODE}, 1
    s_cbranch_scc0 L_x1slow
    L_x1back:
    s_mov_b64 exec, 1
    ''')
    late.append(('L_x1slow', lambda: (A(f'global_store_dwordx4 v{vX1A}, {q4(vO)}, {P(sWS)} sc1'), A('s_waitcnt vmcnt(0)'), A('s_branch L_x1back'))))
    lstore(f'global_store_dword v{vT2}, v{vB}, {P(sWS)}')
    A('s_mov_b64 exec, -1')
    stamp('flag1')
    srcs = {0: vOa, 1: vW1, 2: vOb, 3: vFl + 2, 4: vOa + 2, 5: vW1 + 2, 6: vOb + 2, 7: vFl + 4}
    for c in range(8):
        A(f'ds_write_b128 v{vT0}, {q4(srcs[c])} offset:{c*USTR + 16}')
    vZ = 64
    for i in range(4): A(f'v_mov_b32 v{vZ+i}, 0')
    vXp = 100
    vXA = 108
    vXL = 109
    A(f'''
    v_mul_u32_u24 v{vT0}, {USTR}, v{vLANE}
    v_lshrrev_b32 v{vT1}, 5, v{vLANE}
    v_mul_u32_u24 v{vT1}, {KVS - 512}, v{vT1}
    v_lshl_add_u32 v{vT1}, v{vLANE}, 4, v{vT1}
    v_add_u32 v{vT1}, {L_KVR + 4096}, v{vT1}
    s_cmp_lg_u32 s{sWAVE}, 0
    s_cbranch_scc1 L_nz0
    s_mov_b64 exec, 0xffff
    ds_write_b128 v{vT0}, {q4(vZ)} offset:{L_U}
    s_mov_b64 exec, -1
    ds_write_b128 v{vT1}, {q4(vZ)}
    L_nz0:
    v_lshrrev_b32 v{vT0}, 3, v{vLANE}
    v_and_b32 v{vT1}, 7, v0
    v_lshl_add_u32 v{vT1}, s{sWAVE}, 3, v{vT1}
    v_lshlrev_b32 v{vT1}, 4, v{vT1}
    v_lshl_add_u32 v{vXA}, v{vT0}, 18, v{vT1}
    s_lshl_b32 s{sT0}, s{sM}, 13
    s_lshl_b32 s{sT1}, s{sG}, 10
    s_add_u32 s{sT0}, s{sT0}, s{sT1}
    v_add_u32 v{vXA}, s{sT0}, v{vXA}
    v_lshl_add_u32 v{vXL}, v{vT0}, 10, v{vT1}
    s_lshl_b32 s{sT0}, s{sWID}, 13
    v_add_u32 v{vXL}, s{sT0}, v{vXL}
    s_cmp_ge_u32 s{sWAVE}, 4
    s_cbranch_scc1 L_helper
    ''')
    vAA, vBA, vPW = 110, 111, 112
    vACC = 116
    vFA = [148, 180]
    vFB = [212, 46]
    A(f'''
    v_and_b32 v{vT0}, 15, v0
    v_lshrrev_b32 v{vT1}, 4, v{vLANE}
    v_and_b32 v{vT2}, 7, v0
    v_mul_u32_u24 v{vAA}, {USTR}, v{vT2}
    v_lshrrev_b32 v{vT2}, 3, v{vT0}
    v_add_u32 v{vT2}, v{vT2}, v{vT1}
    v_lshl_add_u32 v{vAA}, v{vT2}, 4, v{vAA}
    s_lshr_b32 s{sT0}, s{sWAVE}, 1
    s_and_b32 s{sT1}, s{sWAVE}, 1
    s_lshl_b32 s{sT1}, s{sT1}, 8
    s_mul_i32 s{sT2}, s{sT0}, {UCH}
    s_add_u32 s{sT2}, s{sT2}, s{sT1}
    s_add_u32 s{sT2}, s{sT2}, {L_U}
    v_add_u32 v{vAA}, s{sT2}, v{vAA}
    v_lshlrev_b32 v{vBA}, 4, v{vT1}
    v_lshlrev_b32 v{vT2}, 5, v{vT0}
    v_sub_u32 v{vBA}, v{vBA}, v{vT2}
    s_mul_i32 s{sT2}, s{sT0}, {KVS}
    s_add_u32 s{sT2}, s{sT2}, s{sT1}
    s_add_u32 s{sT2}, s{sT2}, {L_KVR + 480}
    v_add_u32 v{vBA}, s{sT2}, v{vBA}
    ''')
    def ldA(st, r, p): A(f'ds_read_b128 {q4(vFA[st]+4*p)}, v{vAA} offset:{64*r + 512*p}')
    def ldB(st, r, q): A(f'ds_read_b128 {q4(vFB[st]+4*q)}, v{vBA} offset:{(7-q)*512 + 64*r}')
    A(f'''
    v_lshl_add_u32 v{vT2}, v{vT1}, 2, v{vT0}
    v_and_b32 v{vT2}, 15, v{vT2}
    v_lshl_add_u32 v{vT2}, v{vT1}, 4, v{vT2}
    v_lshlrev_b32 v{vPW}, 4, v{vT2}
    s_lshl_b32 s{sT0}, s{sWAVE}, 13
    s_add_u32 s{sT0}, s{sT0}, {L_P}
    v_add_u32 v{vPW}, s{sT0}, v{vPW}
    s_waitcnt lgkmcnt(0)
    s_barrier
    s_setprio {cfg.PRIO}
    s_barrier
    ''')
    stamp('B2')
    for i in range(8): ldA(0, 0, i); ldB(0, 0, i)
    order = [(p, j - p) for j in range(8) for p in range(j + 1)]
    for r in range(4):
        st = r & 1
        nxt = [(k, i) for i in range(8) for k in 'AB'] if r < 3 else []
        issued = 0
        written = 0
        for n, (p, q) in enumerate(order):
            j = p + q
            if p == 0 and r == 0:
                A(f's_waitcnt lgkmcnt({min(15, 16 - 2*(j+1) + issued)})')
            c = '0' if (r == 0 and p == 0) else q4(vACC + 4*j)
            A(f'v_mfma_f32_16x16x32_bf16 {q4(vACC+4*j)}, {q4(vFA[st]+4*p)}, {q4(vFB[st]+4*q)}, {c}')
            if nxt and issued < 16 and n >= (10 if r == 0 else 1):
                k, i = nxt[issued]
                (ldA if k == 'A' else ldB)(st ^ 1, r + 1, i); issued += 1
            if r == 3:
                while written < 8 and n >= written*(written+3)//2 + 9 and written <= j - 1:
                    A(f'ds_write_b128 v{vPW}, {q4(vACC+4*written)} offset:{1024*written}'); written += 1
        if r < 3: A('s_waitcnt lgkmcnt(0)')
        else:
            while written < 8:
                A(f'ds_write_b128 v{vPW}, {q4(vACC+4*written)} offset:{1024*written}'); written += 1
    A('s_setprio 0')
    A('s_branch L_s1join')
    A('L_helper:')
    vKD = 116
    vKV = 132
    vXo = 140
    vI0 = 220
    vDUM = 230
    vWRr = 231
    vGW = 164
    vGC = 180
    vF2, vD2 = 54, 55
    wr_ = [0]
    def wvr(n_s3only, n_both, n_gonly):
        wr_[0] += 1; k = wr_[0]
        A(f'''
        s_cmp_lg_u32 s{sPEND}, 3
        s_cbranch_scc1 L_wr{k}a
        s_waitcnt vmcnt({n_both})
        L_wr{k}b:
        ''')
        late.append((f'L_wr{k}a', lambda: (A(f's_waitcnt vmcnt({min(n_s3only, n_gonly)})') if n_s3only == n_gonly else
                     A(f'''s_cmp_eq_u32 s{sPEND}, 2
                     s_cbranch_scc1 L_wr{k}c
                     s_waitcnt vmcnt({n_gonly})
                     s_branch L_wr{k}b
                     L_wr{k}c:
                     s_waitcnt vmcnt({n_s3only})'''), A(f's_branch L_wr{k}b'))))
    A(f'''
    s_cmp_lt_u32 s{sM}, {NG0}
    s_cselect_b32 s{sT0}, 0, 1
    s_cmp_lt_u32 s{sM}, {NS3}
    s_cselect_b32 s{sT1}, 2, 0
    s_add_u32 s{sPEND}, s{sT0}, s{sT1}
    ''')
    def wblock(tag):
        A(f'''
        s_cmp_ge_u32 s{sM}, {NS3}
        s_cbranch_scc1 L_h_now{tag}
        s_lshr_b32 s{sT0}, s{sM}, 2
        s_mul_i32 s{sT3}, s{sG}, 7
        s_add_u32 s{sT0}, s{sT0}, s{sT3}
        s_lshl_b32 s{sT2}, s{sT0}, 6
        s_and_b32 s{sT1}, s{sM}, 3
        s_lshl_b32 s{sT3}, s{sT1}, 1
        s_and_b32 s{sT5}, s{sWAVE}, 1
        s_add_u32 s{sT3}, s{sT3}, s{sT5}
        s_mul_i32 s{sT3}, s{sT3}, {64*3584}
        s_add_u32 s{sT2}, s{sT2}, s{sT3}
        v_lshrrev_b32 v{vT1}, 2, v{vLANE}
        v_mul_u32_u24 v{vT1}, 3584, v{vT1}
        v_and_b32 v{vT2}, 3, v0
        v_lshl_add_u32 v{vT1}, v{vT2}, 4, v{vT1}
        v_add_u32 v{vT1}, s{sT2}, v{vT1}
        s_cmp_ge_u32 s{sWAVE}, 6
        s_cselect_b32 s{sT2}, s{sWU}, s{sWG}
        s_cselect_b32 s{sT3}, s{sWU+1}, s{sWG+1}
        s_lshl_b32 s{sT5}, s{sT4}, 12
        s_add_u32 s{sT5}, s{sT5}, {L_WGU}
        ''')
        for i in range(4):
            A(f's_mov_b32 m0, s{sT5}')
            A(f'global_load_lds_dwordx4 v{vT1}, {P(sT2)}')
            if i < 3:
                A(f'v_add_u32 v{vT1}, {16*3584}, v{vT1}')
                A(f's_add_u32 s{sT5}, s{sT5}, 1024')
        A(f'''
        s_lshl_b32 s{sT2}, s{sT0}, 15
        s_lshl_b32 s{sT3}, s{sT1}, 8
        s_add_u32 s{sT2}, s{sT2}, s{sT3}
        s_lshl_b32 s{sT3}, s{sT4}, 13
        s_add_u32 s{sT2}, s{sT2}, s{sT3}
        v_lshrrev_b32 v{vT2}, 4, v{vLANE}
        v_lshlrev_b32 v{vT2}, 10, v{vT2}
        v_and_b32 v{vT3}, 15, v0
        v_lshl_add_u32 v{vT2}, v{vT3}, 4, v{vT2}
        v_add_u32 v{vT2}, s{sT2}, v{vT2}
        s_lshl_b32 s{sT5}, s{sT4}, 11
        s_add_u32 s{sT5}, s{sT5}, {L_WGU + 16384}
        s_mov_b32 m0, s{sT5}
        v_add_u32 v{vT3}, 4096, v{vT2}
        global_load_lds_dwordx4 v{vT2}, {P(sWD)}
        s_add_u32 s{sT5}, s{sT5}, 1024
        s_mov_b32 m0, s{sT5}
        s_lshl_b32 s{sT2}, s{sT0}, 14
        s_lshl_b32 s{sT3}, s{sT1}, 12
        global_load_lds_dwordx4 v{vT3}, {P(sWD)}
        s_add_u32 s{sT2}, s{sT2}, s{sT3}
        s_add_u32 s{sT2}, s{sT2}, {GXB - 4096}
        v_lshl_add_u32 v{vT1}, v0, 4, s{sT2}
        s_mov_b32 s{sT2}, 0x11111111
        s_mov_b32 s{sT3}, 0x11111111
        s_mov_b64 exec, {P(sT2)}
        global_load_dword v{vDUM}, v{vT1}, {P(sWS)} sc1
        s_mov_b64 exec, -1
        L_h_now{tag}:
        s_lshr_b32 s{sT2}, s{sM}, 2
        s_lshl_b32 s{sT2}, s{sT2}, 5
        s_lshl_b32 s{sT3}, s{sG}, 2
        s_add_u32 s{sT2}, s{sT2}, s{sT3}
        s_and_b32 s{sT3}, s{sM}, 3
        s_add_u32 s{sT2}, s{sT2}, s{sT3}
        s_mul_i32 s{sT2}, s{sT2}, {NPROD*64}
        s_lshl_b32 s{sT3}, s{sT4}, 10
        s_add_u32 s{sT2}, s{sT2}, s{sT3}
        s_add_u32 s{sT2}, s{sT2}, {PART}
        v_lshl_add_u32 v{vT1}, v{vLANE}, 6, s{sT2}
        s_mov_b64 exec, {'0xffff' if cfg.PARTPT else '1'}
        global_load_dword v{vDUM}, v{vT1}, {P(sWS)} sc1
        s_mov_b64 exec, -1
        ''')
    A(f'''
    s_sub_u32 s{sT4}, s{sWAVE}, 4
    s_max_u32 s{sT0}, s{sM}, {NG0}
    s_sub_u32 s{sT0}, s{sT0}, {NG0}
    s_lshr_b32 s{sT1}, s{sT0}, 2
    s_and_b32 s{sT3}, s{sT0}, 3
    s_lshl_b32 s{sT3}, s{sT3}, 7
    s_lshl_b32 s{sT5}, s{sT4}, 5
    s_add_u32 s{sT3}, s{sT3}, s{sT5}
    v_lshrrev_b32 v{vKV}, 3, v{vLANE}
    v_lshl_add_u32 v{vKV}, v{vKV}, 2, s{sT3}
    v_lshlrev_b32 v{vKV+1}, 1, v{vKV}
    s_movk_i32 s{sT3}, 6144
    v_mul_lo_u32 v{vKV}, v{vKV}, s{sT3}
    v_and_b32 v{vT3}, 7, v0
    v_lshl_add_u32 v{vKV}, v{vT3}, 4, v{vKV}
    s_lshl_b32 s{sT1}, s{sT1}, 10
    s_lshl_b32 s{sT2}, s{sG}, 7
    s_add_u32 s{sT1}, s{sT1}, s{sT2}
    v_add_u32 v{vKV}, s{sT1}, v{vKV}
    v_lshl_add_u32 v{vKV+2}, v{vLANE}, 1, s{sT2}
    v_subrev_u32 v{vKV+3}, 0x8000, v{vJR}
    s_waitcnt lgkmcnt(0)
    s_cmp_lg_u32 s{sWAVE}, 4
    s_cbranch_scc1 L_h_b2a
    s_lshr_b32 s{sT2}, s{sM}, 2
    s_lshl_b32 s{sT2}, s{sT2}, 7
    s_lshl_b32 s{sT1}, s{sG}, 10
    s_add_u32 s{sT2}, s{sT2}, s{sT1}
    s_add_u32 s{sT2}, s{sT2}, {FL1}
    v_and_b32 v{vT0}, 31, v0
    v_lshl_add_u32 v{vT0}, v{vT0}, 2, s{sT2}
    s_lshl_b32 s{sT0}, s{sWID}, 13
    s_add_u32 s{sT0}, s{sT0}, {XB1}
    v_lshl_add_u32 v{vT1}, v{vLANE}, 4, s{sT0}
    v_add_u32 v{vT3}, 4096, v{vT1}
    s_mov_b32 m0, {L_KVR}
    ''')
    poll('L_poll1', f'global_load_dword v{vT2}, v{vT0}, {P(sWS)} sc1', f'v_cmp_ne_u32 vcc, s{sTAG}, v{vT2}')
    for i in range(4): A(f'global_load_lds_dwordx4 v{vT1}, {P(sWS)} offset:{1024*i} sc1')
    A(f's_mov_b32 m0, {L_KVR + KVS}')
    for i in range(4): A(f'global_load_lds_dwordx4 v{vT3}, {P(sWS)} offset:{1024*i} sc1')
    stamp('poll1')
    A(f'''
    L_h_b2a:
    s_barrier
    global_load_dwordx4 {q4(vX)}, v{vJR}, {P(sX)}
    global_load_dwordx4 {q4(vXo)}, v{vKV+3}, {P(sX)}
    global_load_ushort v{vWRr}, v{vKV+2}, {P(sWR)}
    s_cmp_lt_u32 s{sM}, {NG0}
    s_cbranch_scc1 L_h_nog
    global_load_dwordx2 {pr(vGC)}, v{vKV+1}, {P(sC)}
    ''')
    for i in range(4):
        A(f'global_load_dwordx4 {q4(vGW+4*i)}, v{vKV}, {P(sWM)}')
        if i < 3: A(f'v_add_u32 v{vKV}, s{sT3}, v{vKV}')
    A('L_h_nog:')
    wvr(3, 8, 8)
    A('s_barrier')
    wblock('a')
    A(f'''
    s_lshl_b32 s{sT0}, s{sWAVE}, 9
    s_sub_u32 s{sT0}, {L_KVR + 4088}, s{sT0}
    v_lshlrev_b32 v{vT0}, 3, v{vLANE}
    v_sub_u32 v{vT0}, s{sT0}, v{vT0}
    ds_read_b64 {pr(vKV)}, v{vT0}
    ds_read_b64 {pr(vKV+2)}, v{vT0} offset:{KVS}
    ds_read_b64 {pr(vKV+4)}, v{vT0} offset:2048
    ds_read_b64 {pr(vKV+6)}, v{vT0} offset:{KVS+2048}
    s_lshl_b32 s{sD0}, s{sDV}, 16
    s_and_b32 s{sD1}, s{sDV}, s{sMASK}
    s_waitcnt lgkmcnt(0)
    ''')
    for t in range(2):
        for c in range(2):
            b = vKD + 8*t + 4*c; s = vKV + 4*t + 2*c
            A(f'v_and_b32 v{b}, s{sMASK}, v{s+1}')
            A(f'v_lshlrev_b32 v{b+1}, 16, v{s+1}')
            A(f'v_and_b32 v{b+2}, s{sMASK}, v{s}')
            A(f'v_lshlrev_b32 v{b+3}, 16, v{s}')
            for i in range(4): A(f'v_mul_f32 v{b+i}, s{sD0+c}, v{b+i}')
            for i in range(4): rnd(b + i)
    A(f'''
    s_lshl_b32 s{sT1}, s{sT4}, 11
    s_add_u32 s{sT1}, s{sT1}, {L_KD}
    v_lshl_add_u32 v{vT0}, v{vLANE}, 4, s{sT1}
    ds_write_b128 v{vT0}, {q4(vKD+8)}
    ds_write_b128 v{vT0}, {q4(vKD+12)} offset:1024
    ''')
    A(f'''
    s_lshl_b32 s{sT1}, s{sT4}, 10
    s_add_u32 s{sT1}, s{sT1}, {L_XS}
    v_lshl_add_u32 v{vT0}, v{vLANE}, 4, s{sT1}
    ''')
    wvr(9, 14, 7)
    A(f'ds_write_b128 v{vT0}, {q4(vXo)}')
    vXq = 186
    vS0 = 196
    for i in range(4): unpack(vXp + 2*i, vX + i)
    for i in range(4): unpack(vXq + 2*i, vXo + i)
    for (xb, u, t) in ((vXp, vS0, 204), (vXq, vS0 + 4, 208)):
        A(f'v_pk_add_f32 {pr(t)}, {pr(xb)}, {pr(xb+2)}')
        A(f'v_pk_mul_f32 {pr(t+2)}, {pr(xb)}, {pr(xb)}')
        for i in range(1, 4): A(f'v_pk_fma_f32 {pr(t+2)}, {pr(xb+2*i)}, {pr(xb+2*i)}, {pr(t+2)}')
        for i in range(2, 4): A(f'v_pk_add_f32 {pr(t)}, {pr(t)}, {pr(xb+2*i)}')
        A(f'v_add_f32 v{u}, v{t}, v{t+1}')
        A(f'v_add_f32 v{u+2}, v{t+2}, v{t+3}')
    allred([vS0, vS0 + 2, vS0 + 4, vS0 + 6], [204, 205, 206, 207])
    A(f'''
    v_mov_b32 v{vS0+1}, s{sTAG}
    v_mov_b32 v{vS0+3}, s{sTAG}
    v_mov_b32 v{vS0+5}, s{sTAG}
    v_mov_b32 v{vS0+7}, s{sTAG}
    v_add_u32 v{vT0}, {X0 - 512}, v{vXA}
    global_store_dwordx4 v{vT0}, {q4(vS0)}, {P(sWS)} offset:512 sc1
    global_store_dwordx4 v{vT0}, {q4(vS0+4)}, {P(sWS)} sc1
    ''')
    stamp('gemv0')
    wvr(63, 10, 3)
    A(f'''
    s_cmp_lt_u32 s{sM}, {NG0}
    s_cbranch_scc1 L_g_done
    ''')
    vSC = 184
    vSt = 188
    vGA = 204
    vGP = 212
    for i in range(2): unpack(vSt + 2*i, vGC + i)
    for i in range(4): A(f'v_mul_f32 v{vSt+4+i}, 0xbfb8aa3b, v{vSt+i}')
    for i in range(4): A(f'v_exp_f32 v{vSt+4+i}, v{vSt+4+i}')
    for i in range(4): A(f'v_add_f32 v{vSt+4+i}, 1.0, v{vSt+4+i}')
    for i in range(4): A(f'v_rcp_f32 v{vSt+4+i}, v{vSt+4+i}')
    for i in range(4): A(f'v_mul_f32 v{vSt+i}, v{vSt+i}, v{vSt+4+i}')
    for i in range(2): A(f'v_cvt_pk_bf16_f32 v{vSC+i}, v{vSt+2*i}, v{vSt+2*i+1}')
    A(f's_mov_b32 s{sT0}, 0x05040100')
    A(f's_mov_b32 s{sT1}, 0x07060302')
    for rp in range(2):
        w0, w1 = vGW + 8*rp, vGW + 8*rp + 4
        for d in range(4):
            A(f'v_perm_b32 v{vGP+2*d}, v{w1+d}, v{w0+d}, s{sT0}')
            A(f'v_perm_b32 v{vGP+2*d+1}, v{w1+d}, v{w0+d}, s{sT1}')
        for c in range(8): A(f'v_dot2_f32_bf16 v{vGA+c}, v{vGP+c}, v{vSC+rp}, ' + (f'v{vGA+c}' if rp else '0'))
    for c in range(4): A(f'v_permlane32_swap_b32 v{vGA+c}, v{vGA+c+4}')
    for c in range(4): A(f'v_add_f32 v{vGA+c}, v{vGA+c}, v{vGA+c+4}')
    for c in range(2): A(f'v_permlane16_swap_b32 v{vGA+c}, v{vGA+c+2}')
    for c in range(2): A(f'v_add_f32 v{vGA+c}, v{vGA+c}, v{vGA+c+2}')
    for c in range(2): A(f'v_add_f32_dpp v{vGA+c}, v{vGA+c}, v{vGA+c} row_ror:8 {DPPM}')
    A(f'''
    v_and_b32 v{vT0}, 8, v0
    v_cmp_ne_u32 vcc, 0, v{vT0}
    v_cndmask_b32 v{vGA}, v{vGA}, v{vGA+1}, vcc
    v_and_b32 v{vT0}, 7, v0
    v_lshrrev_b32 v{vT1}, 3, v{vLANE}
    v_lshl_add_u32 v{vT0}, v{vT0}, 3, v{vT1}
    s_sub_u32 s{sT0}, s{sWAVE}, 4
    s_lshl_b32 s{sT0}, s{sT0}, 8
    s_add_u32 s{sT0}, s{sT0}, {L_GP}
    v_lshl_add_u32 v{vT0}, v{vT0}, 2, s{sT0}
    ds_write_b32 v{vT0}, v{vGA}
    v_mov_b32 v{vT1}, {L_CNT}
    v_mov_b32 v{vT2}, 1
    s_waitcnt lgkmcnt(0)
    s_mov_b64 exec, 1
    ds_add_rtn_u32 v{vT2}, v{vT1}, v{vT2}
    s_mov_b64 exec, -1
    s_waitcnt lgkmcnt(0)
    v_readfirstlane_b32 s{sT0}, v{vT2}
    s_cmp_lg_u32 s{sT0}, 3
    s_cbranch_scc1 L_g_done
    v_lshlrev_b32 v{vT0}, 2, v{vLANE}
    ds_read2st64_b32 {pr(vGA)}, v{vT0} offset0:{L_GP//256} offset1:{L_GP//256+1}
    ds_read2st64_b32 {pr(vGA+2)}, v{vT0} offset0:{L_GP//256+2} offset1:{L_GP//256+3}
    s_sub_u32 s{sT0}, s{sM}, {NG0}
    s_lshl_b32 s{sT0}, s{sT0}, 9
    s_lshl_b32 s{sT1}, s{sG}, 14
    s_add_u32 s{sT0}, s{sT0}, s{sT1}
    s_add_u32 s{sT0}, s{sT0}, {MODP}
    v_lshl_add_u32 v{vT0}, v{vLANE}, 3, s{sT0}
    s_waitcnt lgkmcnt(0)
    v_pk_add_f32 {pr(vGA)}, {pr(vGA)}, {pr(vGA+2)}
    v_add_f32 v{vGA}, v{vGA}, v{vGA+1}
    v_mov_b32 v{vGA+1}, s{sTAG}
    ''')
    lstore(f'global_store_dwordx2 v{vT0}, {pr(vGA)}, {P(sWS)}')
    A('L_g_done:')
    A('L_s1join:')
    stamp('s1join')
    vPp0 = 148
    vKDe = 116
    vMn, vInv = 64, 65
    vH = 232
    vPar = 164
    vU = 46
    def rdpar(lst):
        for pi in lst:
            A(f'ds_read_b128 {q4(vPar+8*pi)}, v{vPA} offset:{L_MOD + 256*pi}')
            A(f'ds_read_b128 {q4(vPar+8*pi+4)}, v{vPA} offset:{L_MOD + 256*pi + 16}')
    A(f'''
    v_lshrrev_b32 v{vT0}, 2, v{vLANE}
    v_and_b32 v{vT1}, 3, v0
    v_lshl_add_u32 v{vT0}, v{vT1}, 2, v{vT0}
    v_and_b32 v{vT0}, 15, v{vT0}
    v_lshl_add_u32 v{vT0}, v{vT1}, 4, v{vT0}
    v_lshlrev_b32 v{vT0}, 4, v{vT0}
    s_lshl_b32 s{sT0}, s{sWAVE}, 10
    s_add_u32 s{sT1}, s{sT0}, {L_P}
    v_add_u32 v{vT0}, s{sT1}, v{vT0}
    s_lshl_b32 s{sT1}, s{sWAVE}, 11
    s_add_u32 s{sT1}, s{sT1}, {L_KD}
    v_lshl_add_u32 v{vT1}, v{vLANE}, 4, s{sT1}
    s_lshl_b32 s{sT2}, s{sWID}, 13
    s_add_u32 s{sT2}, s{sT2}, {XB1}
    v_lshl_add_u32 v{vT2}, v0, 4, s{sT2}
    v_lshlrev_b32 v{vT3}, 4, v0
    v_add_u32 v{vT3}, {L_XS}, v{vT3}
    v_lshrrev_b32 v{vPA}, 3, v{vLANE}
    v_lshlrev_b32 v{vPA}, 5, v{vPA}
    s_waitcnt lgkmcnt(0)
    s_barrier
    ''')
    for w in range(4): A(f'ds_read_b128 {q4(vPp0+4*w)}, v{vT0} offset:{8192*w}')
    A(f'''
    s_cmp_ge_u32 s{sWAVE}, 4
    s_cbranch_scc1 L_nokd
    ds_read_b128 {q4(vKDe)}, v{vT1}
    ds_read_b128 {q4(vKDe+4)}, v{vT1} offset:1024
    ds_read_b128 {q4(vX)}, v{vT3}
    L_nokd:
    s_waitcnt lgkmcnt(0)
    ''')
    for c in range(2):
        for h in range(2): A(f'v_pk_add_f32 {pr(vPp0+8*c+2*h)}, {pr(vPp0+8*c+2*h)}, {pr(vPp0+8*c+4+2*h)}')
    for c in range(2):
        for i in range(4): rnd(vPp0 + 8*c + i)
    for c in range(2):
        for h in range(2): A(f'v_pk_add_f32 {pr(vPp0+8*c+2*h)}, {pr(vPp0+8*c+2*h)}, {pr(vKDe+4*c+2*h)}')
    for i in range(4): A(f'v_cvt_pk_bf16_f32 v{vPp0+4+i}, v{vPp0+i}, v{vPp0+8+i}')
    lstore(f'global_store_dwordx4 v{vT2}, {q4(vPp0+4)}, {P(sWS)}')
    stamp('zst')
    vMQ = 140
    vXCA = 139
    vZA = 68
    A(f'''
    v_mov_b32 v{vXCA}, 0
    s_min_u32 s{sT5}, s{sWAVE}, 5
    s_cmp_eq_u32 s{sWAVE}, 6
    s_cselect_b32 s{sT5}, 3, s{sT5}
    s_cmp_eq_u32 s{sWAVE}, 7
    s_cselect_b32 s{sT5}, 4, s{sT5}
    s_lshl_b32 s{sT1}, s{sT5}, 11
    s_lshl_b32 s{sT2}, s{sG}, 14
    s_add_u32 s{sT1}, s{sT1}, s{sT2}
    s_add_u32 s{sT1}, s{sT1}, {MODP}
    v_lshl_add_u32 v{vD2+1}, v{vLANE}, 4, s{sT1}
    v_add_u32 v{vD2+2}, {X0}, v{vXL}
    ''')
    modld = '\n'.join([f'global_load_dwordx4 {q4(vMQ+4*i)}, v{vD2+1}, {P(sWS)} offset:{1024*i} sc1' for i in range(2)] +
                       [f'global_load_dwordx4 {q4(vI0)}, v{vD2+2}, {P(sWS)} sc1'])
    chk = [f'v_xor_b32 v{vMQ+2*i+1}, s{sTAG}, v{vMQ+2*i+1}' for i in range(4)]
    chk += [f'v_xor_b32 v{vI0+1}, s{sTAG}, v{vI0+1}', f'v_xor_b32 v{vI0+3}, s{sTAG}, v{vI0+3}']
    chk += [f'v_or3_b32 v{vMQ+1}, v{vMQ+1}, v{vMQ+3}, v{vMQ+5}', f'v_or3_b32 v{vMQ+7}, v{vMQ+7}, v{vI0+1}, v{vI0+3}',
            f'v_or_b32 v{vMQ+1}, v{vMQ+1}, v{vMQ+7}', f'v_cmp_ne_u32 vcc, 0, v{vMQ+1}']
    A(modld)
    for i in range(4): unpack(vXp + 2*i, vX + i)
    A(f'''
    v_add_u32 v{vT1}, {FL2}, v{vA}
    s_lshr_b32 s{sT2}, s{sM}, 2
    s_lshl_b32 s{sT2}, s{sT2}, 7
    s_lshl_b32 s{sT3}, s{sG}, 10
    s_add_u32 s{sT2}, s{sT2}, s{sT3}
    s_lshl_b32 s{sT3}, s{sWAVE}, 4
    s_add_u32 s{sT2}, s{sT2}, s{sT3}
    s_add_u32 s{sT2}, s{sT2}, {FL2}
    v_and_b32 v{vF2}, 3, v0
    v_lshl_add_u32 v{vF2}, v{vF2}, 2, s{sT2}
    s_lshl_b32 s{sT3}, s{sWAVE}, 1
    v_subrev_u32 v{vD2}, s{sT3}, v0
    v_and_b32 v{vD2}, 15, v{vD2}
    v_lshlrev_b32 v{vD2}, 4, v{vD2}
    v_lshrrev_b32 v{vT2}, 4, v0
    v_lshl_add_u32 v{vD2}, v{vT2}, 13, v{vD2}
    s_lshl_b32 s{sT2}, s{sG}, 18
    s_lshl_b32 s{sT3}, s{sM}, 8
    s_add_u32 s{sT2}, s{sT2}, s{sT3}
    s_add_u32 s{sT2}, s{sT2}, {XB1}
    v_add_u32 v{vD2}, s{sT2}, v{vD2}
    s_lshl_b32 s{sT2}, s{sWAVE}, 10
    s_add_u32 s{sT2}, s{sT2}, {L_Z}
    s_mov_b32 m0, s{sT2}
    v_lshrrev_b32 v{vT0}, 3, v{vLANE}
    v_bfe_u32 v{vT2}, v0, 2, 1
    v_lshl_add_u32 v{vT2}, s{sWAVE}, 1, v{vT2}
    v_lshl_add_u32 v{vT2}, v{vT0}, 1, v{vT2}
    v_and_b32 v{vT2}, 15, v{vT2}
    v_lshlrev_b32 v{vT2}, 4, v{vT2}
    v_lshl_add_u32 v{vZA}, v{vT0}, 10, v{vT2}
    v_and_b32 v{vT2}, 3, v0
    v_lshl_add_u32 v{vZA}, v{vT2}, 2, v{vZA}
    s_mov_b32 s{sT0}, s{sT5}
    s_waitcnt vmcnt(0)
    s_mov_b64 exec, 1
    ''')
    lstore(f'global_store_dword v{vT1}, v{vB}, {P(sWS)}')
    A('s_mov_b64 exec, -1')
    stamp('flag2')
    A('\n'.join(chk))
    A('s_cbranch_vccnz L_pollm')
    A('L_pollm_back:')
    late.append(('L_pollm', lambda: (poll('L_pollmb', modld, '\n'.join(chk)), A('s_branch L_pollm_back'))))
    stamp('modok')
    A(f'v_add_f32 v{vMQ}, v{vMQ}, v{vMQ+4}')
    A(f'v_add_f32 v{vMQ+2}, v{vMQ+2}, v{vMQ+6}')
    A(f'''
    v_permlane32_swap_b32 v{vMQ}, v{vMQ+2}
    v_add_f32 v{vMQ}, v{vMQ}, v{vMQ+2}
    v_cvt_pk_bf16_f32 v{vMQ}, 0, v{vMQ}
    v_add_f32 v{vMQ+1}, 1.0, v{vMQ}
    v_cvt_pk_bf16_f32 v{vMQ+1}, 0, v{vMQ+1}
    s_cmp_eq_u32 s{sT0}, 1
    s_cselect_b64 vcc, -1, 0
    s_cmp_eq_u32 s{sT0}, 4
    s_cselect_b64 vcc, -1, vcc
    v_cndmask_b32 v{vMQ}, v{vMQ}, v{vMQ+1}, vcc
    v_and_b32 v{vT0}, 31, v0
    v_lshrrev_b32 v{vT1}, 5, v{vLANE}
    v_lshl_add_u32 v{vT0}, v{vT0}, 1, v{vT1}
    v_lshlrev_b32 v{vT0}, 2, v{vT0}
    s_cmp_ge_u32 s{sWAVE}, 6
    s_cbranch_scc1 L_m67
    s_lshl_b32 s{sT1}, s{sT0}, 8
    v_add_u32 v{vT0}, s{sT1}, v{vT0}
    ds_write_b32 v{vT0}, v{vMQ} offset:{L_MOD}
    s_branch L_mjoin
    L_m67:
    ds_bpermute_b32 v{vT1}, v{vT0}, v{vWRr}
    s_waitcnt lgkmcnt(0)
    v_lshlrev_b32 v{vT1}, 16, v{vT1}
    v_mul_f32 v{vMQ+4}, v{vMQ}, v{vT1}
    s_cmp_eq_u32 s{sWAVE}, 7
    s_cselect_b32 s{sT1}, 0, 256
    s_cselect_b32 s{sT2}, 0, 8
    v_add_u32 v{vT0}, s{sT1}, v{vT0}
    ds_write_b32 v{vT0}, v{vMQ+4} offset:{L_MOD + 6*256}
    ''')
    fullred([vMQ + 4], [vMQ + 6])
    A(f'''
    v_mov_b32 v{vMQ+5}, s{sTAG}
    s_lshl_b32 s{sT0}, s{sM}, 7
    s_lshl_b32 s{sT1}, s{sG}, 4
    s_add_u32 s{sT0}, s{sT0}, s{sT1}
    s_add_u32 s{sT0}, s{sT0}, s{sT2}
    s_add_u32 s{sT0}, s{sT0}, {XC}
    v_lshl_add_u32 v{vXCA}, v{vLANE}, 12, s{sT0}
    L_mjoin:
    ''')
    allred([vI0, vI0 + 2], [vI0 + 1, vI0 + 3])
    lnstats(vI0, vI0 + 2, vI0 + 1, vMn, vInv)
    for i in range(8): A(f'v_sub_f32 v{vH+i}, v{vXp+i}, v{vMn}')
    for i in range(8): rnd(vH + i)
    poll('L_poll2', f'global_load_dword v{vT2}, v{vF2}, {P(sWS)} sc1', f'v_cmp_ne_u32 vcc, s{sTAG}, v{vT2}')
    A(f'global_load_lds_dwordx4 v{vD2}, {P(sWS)} sc1')
    stamp('poll2')
    A('s_waitcnt lgkmcnt(0)')
    A('s_barrier')
    rdpar((1, 0, 2, 6))
    for i in range(8): A(f'v_mul_f32 v{vH+i}, v{vH+i}, v{vInv}')
    for i in range(8): rnd(vH + i)
    A('s_waitcnt lgkmcnt(4)')
    for i in range(8): A(f'v_mul_f32 v{vH+i}, v{vH+i}, v{vPar+8+i}')
    for i in range(8): rnd(vH + i)
    for i in range(8): A(f'v_add_f32 v{vH+i}, v{vH+i}, v{vPar+i}')
    for i in range(8): rnd(vH + i)
    stamp('hdone')
    A('s_waitcnt vmcnt(0)')
    A('s_barrier')
    A(f'''
    s_cmp_lt_u32 s{sWAVE}, 6
    s_cbranch_scc1 L_noxc
    s_mov_b64 exec, 0xff
    global_store_dwordx2 v{vXCA}, {pr(vMQ+4)}, {P(sWS)} sc1
    s_mov_b64 exec, -1
    L_noxc:
    ''')
    stamp('B4')
    vZr = 70
    vZ1 = 74
    vSQ = 82
    A(f'ds_read2st64_b32 {pr(vZr)}, v{vZA} offset0:{L_Z//256} offset1:{L_Z//256+1}')
    A(f'ds_read2st64_b32 {pr(vZr+2)}, v{vZA} offset0:{L_Z//256+2} offset1:{L_Z//256+3}')
    A(f'v_add_u32 v{vT0}, {X3}, v{vXA}')
    A('s_waitcnt lgkmcnt(0)')
    for i in range(4): unpack(vZ1 + 2*i, vZr + i)
    for i in range(8): A(f'v_mul_f32 v{vZ1+i}, v{vZ1+i}, v{vH+i}')
    for i in range(8): rnd(vZ1 + i)
    for i in range(8): A(f'v_mul_f32 v{vZ1+i}, v{vZ1+i}, v{vPar+16+i}')
    for i in range(8): rnd(vZ1 + i)
    for i in range(8): A(f'v_add_f32 v{vZ1+i}, v{vZ1+i}, v{vXp+i}')
    for i in range(8): rnd(vZ1 + i)
    S_, Q_, P_ = vSQ, vSQ + 2, vSQ + 4
    A(f'v_pk_add_f32 {pr(S_)}, {pr(vZ1)}, {pr(vZ1+2)}')
    A(f'v_pk_mul_f32 {pr(Q_)}, {pr(vZ1)}, {pr(vZ1)}')
    A(f'v_pk_mul_f32 {pr(P_)}, {pr(vZ1)}, {pr(vPar+48)}')
    for i in range(1, 4):
        A(f'v_pk_fma_f32 {pr(Q_)}, {pr(vZ1+2*i)}, {pr(vZ1+2*i)}, {pr(Q_)}')
        A(f'v_pk_fma_f32 {pr(P_)}, {pr(vZ1+2*i)}, {pr(vPar+48+2*i)}, {pr(P_)}')
        if i >= 2: A(f'v_pk_add_f32 {pr(S_)}, {pr(S_)}, {pr(vZ1+2*i)}')
    vUn = vSQ + 6
    A(f'v_add_f32 v{vUn}, v{S_}, v{S_+1}')
    A(f'v_add_f32 v{vUn+1}, v{Q_}, v{Q_+1}')
    A(f'v_add_f32 v{vUn+2}, v{P_}, v{P_+1}')
    A(f'v_mov_b32 v{vUn+3}, s{sTAG}')
    allred([vUn, vUn + 1, vUn + 2], [S_, Q_, P_])
    A(f'global_store_dwordx4 v{vT0}, {q4(vUn)}, {P(sWS)} sc1')
    stamp('x3st')
    rdpar((3, 4, 5))
    if cfg.WBL2:
        A(f'''
        s_cmp_lg_u32 s{sM}, 31
        s_cbranch_scc1 L_nowb
        s_cmp_lg_u32 s{sWAVE}, 7
        s_cbranch_scc1 L_nowb
        buffer_wbl2 sc1
        L_nowb:
        ''')
    def wdma():
        A(f'''
        s_lshr_b32 s{sT0}, s{sM}, 2
        s_mul_i32 s{sT1}, s{sG}, 7
        s_add_u32 s{sT0}, s{sT0}, s{sT1}
        s_and_b32 s{sT1}, s{sM}, 3
        s_lshl_b32 s{sT4}, s{sWAVE}, 10
        s_add_u32 s{sT4}, s{sT4}, {L_WGU + 16384}
        s_mov_b32 m0, s{sT4}
        s_lshl_b32 s{sT2}, s{sT0}, 15
        s_lshl_b32 s{sT3}, s{sT1}, 8
        s_add_u32 s{sT2}, s{sT2}, s{sT3}
        v_lshrrev_b32 v{vT2}, 4, v0
        v_lshlrev_b32 v{vT2}, 10, v{vT2}
        v_and_b32 v{vT3}, 15, v0
        v_lshl_add_u32 v{vT2}, v{vT3}, 4, v{vT2}
        v_add_u32 v{vT2}, s{sT2}, v{vT2}
        s_lshl_b32 s{sT2}, s{sT0}, 14
        s_lshl_b32 s{sT3}, s{sT1}, 12
        global_load_lds_dwordx4 v{vT2}, {P(sWD)}
        s_add_u32 s{sT2}, s{sT2}, s{sT3}
        s_add_u32 s{sT2}, s{sT2}, {GXB}
        v_lshl_add_u32 v{vT1}, v{vLANE}, 6, s{sT2}
        s_cmp_lg_u32 s{sWAVE}, 0
        s_cbranch_scc1 L_nowd
        global_load_dword v{vZr}, v{vT1}, {P(sWS)} sc1
        ''')
    A(f'''
    s_lshr_b32 s{sT2}, s{sM}, 2
    s_lshl_b32 s{sT2}, s{sT2}, 5
    s_lshl_b32 s{sT3}, s{sG}, 2
    s_add_u32 s{sT2}, s{sT2}, s{sT3}
    s_and_b32 s{sT3}, s{sM}, 3
    s_add_u32 s{sT2}, s{sT2}, s{sT3}
    s_mul_i32 s{sPT}, s{sT2}, {NPROD*64}
    s_add_u32 s{sPT}, s{sPT}, {PART}
    v_lshrrev_b32 v{vT1}, 3, v{vLANE}
    s_lshl_b32 s{sT0}, s{sWID}, 7
    s_add_u32 s{sT0}, s{sT0}, {XC}
    v_lshl_add_u32 v{vT1}, v{vT1}, 4, s{sT0}
    v_add_u32 v{vT0}, {X3}, v{vXL}
    ''')
    poll('L_pollc', f'global_load_dwordx4 {q4(vU+4)}, v{vT1}, {P(sWS)} sc1',
         f'''v_xor_b32 v{vT2}, s{sTAG}, v{vU+5}
         v_xor_b32 v{vT3}, s{sTAG}, v{vU+7}
         v_or_b32 v{vT2}, v{vT2}, v{vT3}
         v_cmp_ne_u32 vcc, 0, v{vT2}''')
    stamp('xcok')
    vR3 = 92
    A(f'global_load_dwordx4 {q4(vR3)}, v{vT0}, {P(sWS)} sc1')
    allred([vU + 4, vU + 6], [S_, Q_])
    A(f'''
    v_and_b32 v{vT1}, 7, v0
    v_lshl_add_u32 v{vT1}, s{sWAVE}, 3, v{vT1}
    s_lshl_b32 s{sT0}, s{sM}, 6
    s_sub_u32 s{sT0}, 2047, s{sT0}
    v_sub_u32 v{vU}, s{sT0}, v{vT1}
    v_lshlrev_b32 v{vU+1}, 2, v{vT1}
    v_mov_b32 v{vT2}, 0
    ds_write_b32 v{vU+1}, v{vT2} offset:{L_ST}
    s_waitcnt vmcnt(0)
    v_cmp_ne_u32 vcc, s{sTAG}, v{vR3+3}
    s_cbranch_vccnz L_poll3
    L_poll3_back:
    ''')
    late.append(('L_poll3', lambda: (poll('L_poll3b', f'global_load_dwordx4 {q4(vR3)}, v{vT0}, {P(sWS)} sc1', f'v_cmp_ne_u32 vcc, s{sTAG}, v{vR3+3}'),
                 A('s_nop 1'), A('s_branch L_poll3_back'))))
    stamp('x3ok')
    allred([vR3, vR3 + 1, vR3 + 2], [S_, Q_, P_])
    lnstats(vR3, vR3 + 1, S_, vMn, vInv)
    vKey = 96
    A(f'''
    v_fma_f32 v{vKey}, -v{vMn}, v{vU+4}, v{vR3+2}
    v_fma_f32 v{vKey}, v{vKey}, v{vInv}, v{vU+6}
    v_cvt_pk_bf16_f32 v{vKey}, 0, v{vKey}
    v_ashrrev_i32 v{vT0}, 31, v{vKey}
    v_or_b32 v{vT0}, 0x80000000, v{vT0}
    v_and_b32 v{vT0}, s{sMASK}, v{vT0}
    v_xor_b32 v{vKey}, v{vKey}, v{vT0}
    v_or_b32 v{vKey}, v{vKey}, v{vU}
    ds_write_b32 v{vU+1}, v{vKey} offset:{L_KEY}
    s_waitcnt lgkmcnt(0)
    s_barrier
    ds_read_b128 {q4(vR3)}, v{vPA} offset:{L_KEY}
    ds_read_b128 {q4(vSQ)}, v{vPA} offset:{L_KEY+16}
    ''')
    vH2 = 56
    for i in range(8): A(f'v_sub_f32 v{vH2+i}, v{vZ1+i}, v{vMn}')
    for i in range(8): rnd(vH2 + i)
    A('s_waitcnt lgkmcnt(0)')
    vRk = 97
    A(f'v_mov_b32 v{vRk}, 0')
    ks = [vR3 + i for i in range(4)] + [vSQ + i for i in range(4)]
    for half in range(2):
        for i in range(4): A(f'v_cmp_gt_u32 {P(sC0+2*i)}, v{ks[4*half+i]}, v{vKey}')
        for i in range(4): A(f'v_addc_co_u32 v{vRk}, {P(sC0+2*i)}, 0, v{vRk}, {P(sC0+2*i)}')
    allred([vRk], [vT0], add='v_add_u32')
    A(f'''
    s_lshl_b32 s{sT0}, s{sWID}, 6
    s_add_u32 s{sT0}, s{sT0}, {KEYS}
    v_lshl_add_u32 v{vT0}, v{vRk}, 3, s{sT0}
    v_mov_b32 v{vR3}, v{vKey}
    v_mov_b32 v{vR3+1}, s{sTAG}
    v_cmp_gt_u32 {P(sEX)}, 8, v{vRk}
    s_and_b64 exec, {P(sEX)}, 0xff
    s_cbranch_execz L_nokey
    ''')
    lstore(f'global_store_dwordx2 v{vT0}, {pr(vR3)}, {P(sWS)}')
    A('L_nokey:')
    A('s_mov_b64 exec, -1')
    stamp('keyst')
    vWf = 130
    vKs = 154
    vM2, vM1 = 163, 164
    vRow = vKs + 2
    vPk = 110
    vOut = 126
    def h2calc():
        for i in range(8): A(f'v_mul_f32 v{vH2+i}, v{vH2+i}, v{vInv}')
        for i in range(8): rnd(vH2 + i)
        for i in range(8): A(f'v_mul_f32 v{vH2+i}, v{vH2+i}, v{vPar+32+i}')
        for i in range(8): rnd(vH2 + i)
        for i in range(8): A(f'v_add_f32 v{vH2+i}, v{vH2+i}, v{vPar+24+i}')
        for i in range(4):
            A(f'v_cvt_pk_bf16_f32 v{vPk+2*i}, v{vH2+2*i}, v{vH2+2*i+1}')
            A(f'v_mov_b32 v{vPk+2*i+1}, s{sTAG}')
        for i in range(4):
            A(f'v_cvt_pk_bf16_f32 v{vPk+8+2*i}, v{vZ1+2*i}, v{vZ1+2*i+1}')
            A(f'v_mov_b32 v{vPk+8+2*i+1}, s{sTAG}')
    def outcalc():
        for i in range(4): unpack(vH2 + 2*i, vPk + 2*i)
        for i in range(8): A(f'v_mul_f32 v{vH2+i}, v{vH2+i}, v{vPar+40+i}')
        for i in range(8): rnd(vH2 + i)
        for i in range(8): A(f'v_add_f32 v{vH2+i}, v{vH2+i}, v{vZ1+i}')
        for i in range(4): A(f'v_cvt_pk_bf16_f32 v{vOut+i}, v{vH2+2*i}, v{vH2+2*i+1}')
    def outstore():
        A(f'''
        s_andn2_b64 exec, exec, {P(sEX)}
        s_cbranch_execz L_noout2
        global_store_dwordx4 v{vJR}, {q4(vOut)}, {P(sOUT)} {cfg.OUT_FL}
        L_noout2:
        s_mov_b64 exec, -1
        ''')
    h2calc()
    vOR = 200
    vHA = 98
    A(f'''
    v_and_b32 v{vOR}, 7, v0
    v_lshl_add_u32 v{vOR}, s{sWAVE}, 3, v{vOR}
    s_lshl_b32 s{sT0}, s{sM}, 6
    v_add_u32 v{vOR}, s{sT0}, v{vOR}
    v_lshrrev_b32 v{vT2}, 3, v{vLANE}
    s_lshl_b32 s{sT1}, s{sG}, 8
    s_add_u32 s{sT1}, s{sT1}, {H2P - 2048}
    v_lshl_add_u32 v{vHA}, v{vT2}, 4, s{sT1}
    s_cmp_lg_u32 s{sWAVE}, 0
    s_cbranch_scc1 L_kskip
    v_and_b32 v{vT0}, 2, v0
    v_cmp_eq_u32 vcc, 0, v{vT0}
    v_cndmask_b32 v{vM2}, 0, -1, vcc
    v_and_b32 v{vT0}, 1, v0
    v_cmp_eq_u32 vcc, 0, v{vT0}
    v_cndmask_b32 v{vM1}, 0, -1, vcc
    s_lshl_b32 s{sT0}, s{sG}, 11
    s_add_u32 s{sT0}, s{sT0}, {KEYS}
    v_lshl_add_u32 v{vT0}, v{vLANE}, 3, s{sT0}
    ''')
    poll('L_pollk', '\n'.join(f'global_load_dwordx2 {pr(vKs+2*r)}, v{vT0}, {P(sWS)} offset:{512*r} sc1' for r in range(4)),
         f'''v_xor_b32 v{vT1}, s{sTAG}, v{vKs+1}
         v_xor_b32 v{vT2}, s{sTAG}, v{vKs+3}
         v_xor_b32 v{vT3}, s{sTAG}, v{vKs+5}
         v_or3_b32 v{vT1}, v{vT1}, v{vT2}, v{vT3}
         v_xor_b32 v{vT2}, s{sTAG}, v{vKs+7}
         v_or_b32 v{vT1}, v{vT1}, v{vT2}
         v_cmp_ne_u32 vcc, 0, v{vT1}''')
    stamp('keysok')
    def sort8(regs, tmps):
        for x, t in zip(regs, tmps): A(f'v_max_u32_dpp v{t}, v{x}, v{x} row_shl:4 row_mask:0xf bank_mask:0x5')
        for x, t in zip(regs, tmps): A(f'v_min_u32_dpp v{t}, v{x}, v{x} row_shr:4 row_mask:0xf bank_mask:0xa')
        for x, t in zip(regs, tmps): A(f'v_mov_b32_dpp v{x}, v{t} quad_perm:[2,3,0,1] {DPPM}')
        for x, t in zip(regs, tmps): A(f'v_med3_u32 v{t}, v{t}, v{x}, v{vM2}')
        for x, t in zip(regs, tmps): A(f'v_mov_b32_dpp v{x}, v{t} quad_perm:[1,0,3,2] {DPPM}')
        for x, t in zip(regs, tmps): A(f'v_med3_u32 v{x}, v{t}, v{x}, v{vM1}')
    k0, k1, k2, k3 = vKs, vKs + 2, vKs + 4, vKs + 6
    t0, t1 = vKs + 1, vKs + 3
    A(f'v_max_u32_dpp v{k0}, v{k1}, v{k0} row_half_mirror {DPPM}')
    A(f'v_max_u32_dpp v{k2}, v{k3}, v{k2} row_half_mirror {DPPM}')
    sort8([k0, k2], [t0, t1])
    A(f'v_max_u32_dpp v{k0}, v{k2}, v{k0} row_half_mirror {DPPM}')
    sort8([k0], [t0])
    A(f'v_max_u32_dpp v{k0}, v{k0}, v{k0} row_mirror {DPPM}')
    sort8([k0], [t0])
    for sw in ('v_permlane16_swap_b32', 'v_permlane32_swap_b32'):
        A(f'v_mov_b32 v{t1}, v{k0}')
        A(f'{sw} v{t1}, v{k0}')
        A(f'v_max_u32_dpp v{k0}, v{k0}, v{t1} row_half_mirror {DPPM}')
        sort8([k0], [t0])
    A(f'''
    v_and_b32 v{vRow}, 0x7ff, v{k0}
    v_sub_u32 v{vRow}, 2047, v{vRow}
    v_lshlrev_b32 v{vT2}, 2, v{vLANE}
    ds_write_b32 v{vT2}, v{vRow} offset:{L_GP}
    s_lshl_b32 s{sT0}, s{sM}, 6
    v_subrev_u32 v{vT1}, s{sT0}, v{vRow}
    v_add_u32 v{vT3}, 1, v{vLANE}
    v_cmp_gt_u32 vcc, 64, v{vT1}
    v_lshlrev_b32 v{vT1}, 2, v{vT1}
    s_and_b64 exec, vcc, 0xff
    ds_write_b32 v{vT1}, v{vT3} offset:{L_ST}
    s_mov_b64 exec, -1
    s_waitcnt lgkmcnt(0)
    s_branch L_kjoin
    L_kskip:
    ''')
    outcalc()
    A(f'''
    L_kjoin:
    s_barrier
    ds_read_b32 v{vT0}, v{vU+1} offset:{L_ST}
    s_waitcnt lgkmcnt(0)
    v_cmp_ne_u32 {P(sEX)}, 0, v{vT0}
    v_lshl_add_u32 v{vT0}, v{vT0}, 11, v{vHA}
    v_add_u32 v{vT1}, {X1P - H2P}, v{vT0}
    s_mov_b64 exec, {P(sEX)}
    s_cbranch_execz L_noh2
    global_store_dwordx4 v{vT0}, {q4(vPk)}, {P(sWS)} sc1
    global_store_dwordx4 v{vT0}, {q4(vPk+4)}, {P(sWS)} offset:128 sc1
    global_store_dwordx4 v{vT1}, {q4(vPk+8)}, {P(sWS)} sc1
    global_store_dwordx4 v{vT1}, {q4(vPk+12)}, {P(sWS)} offset:128 sc1
    L_noh2:
    s_mov_b64 exec, -1
    ''')
    stamp('top8')
    A(f'''
    s_cmp_lg_u32 s{sWAVE}, 0
    s_cbranch_scc1 L_noc
    ''')
    outcalc()
    A(f'''
    L_noc:
    ''')
    if cfg.OUTPOS == 'top8': outstore()
    A(f'''
    s_cmp_ge_u32 s{sM}, {NS3}
    s_cbranch_scc1 L_tail
    ''')
    vGA_, vGS, vGL, vPS, vGW_, vGR_ = 142, 143, 144, 145, 146, 147
    GS_ = 272
    vG = 166
    A(f'''
    s_lshr_b32 s{sT0}, s{sM}, 2
    s_mul_i32 s{sT1}, s{sG}, 7
    s_add_u32 s{sT0}, s{sT0}, s{sT1}
    s_and_b32 s{sT1}, s{sM}, 3
    v_lshrrev_b32 v{vT1}, 4, v{vLANE}
    v_and_b32 v{vT2}, 7, v0
    s_lshl_b32 s{sT2}, s{sT1}, 9
    s_and_b32 s{sT3}, s{sWAVE}, 3
    s_lshl_b32 s{sT3}, s{sT3}, 12
    s_add_u32 s{sT2}, s{sT2}, s{sT3}
    s_add_u32 s{sT2}, s{sT2}, {H2P}
    v_lshrrev_b32 v{vT3}, 5, v{vLANE}
    v_and_b32 v{vGA_}, 31, v0
    v_lshlrev_b32 v{vGA_}, 4, v{vGA_}
    v_lshl_add_u32 v{vGA_}, v{vT3}, 11, v{vGA_}
    v_add_u32 v{vGA_}, s{sT2}, v{vGA_}
    s_mov_b32 s{sHM}, 0x00ff00ff
    s_mov_b32 s{sHM+1}, 0x00ff00ff
    s_and_b32 s{sT3}, s{sWAVE}, 3
    v_lshl_add_u32 v{vT3}, s{sT3}, 1, v{vT3}
    v_mul_u32_u24 v{vGW_}, {GS_}, v{vT3}
    v_bfe_u32 v{vT3}, v0, 4, 1
    v_lshl_add_u32 v{vGW_}, v{vT3}, 7, v{vGW_}
    v_lshl_add_u32 v{vGW_}, v{vT2}, 4, v{vGW_}
    v_bfe_u32 v{vT3}, v0, 3, 1
    v_lshl_add_u32 v{vGW_}, v{vT3}, 3, v{vGW_}
    v_add_u32 v{vGW_}, {L_G2 - (L_G2 % 1024)}, v{vGW_}
    v_mul_u32_u24 v{vGR_}, {GS_}, v{vT2}
    v_lshl_add_u32 v{vGR_}, v{vT1}, 4, v{vGR_}
    s_lshr_b32 s{sT3}, s{sWAVE}, 2
    s_lshl_b32 s{sT3}, s{sT3}, 7
    v_add_u32 v{vGR_}, s{sT3}, v{vGR_}
    ''')
    A(f'''
    s_mov_b64 exec, -1
    s_lshl_b32 s{sT2}, s{sT0}, 14
    s_add_u32 s{sT2}, s{sT2}, {GXB}
    s_lshl_b32 s{sT3}, s{sT1}, 3
    s_add_u32 s{sT3}, s{sT3}, s{sWAVE}
    s_lshl_b32 s{sT4}, s{sT3}, 9
    s_add_u32 s{sT4}, s{sT4}, s{sT2}
    v_lshl_add_u32 v{vGS}, v{vT1}, 3, v{vT2}
    v_lshl_add_u32 v{vGS}, v{vGS}, 4, s{sT4}
    s_mul_i32 s{sT3}, s{sT3}, {NPROD*64}
    s_lshl_b32 s{sT4}, s{sT0}, 6
    s_add_u32 s{sT3}, s{sT3}, s{sT4}
    s_add_u32 s{sT3}, s{sT3}, {PART}
    v_mul_u32_u24 v{vPS}, {32*NPROD*64}, v{vT2}
    v_lshl_add_u32 v{vPS}, v{vT1}, 4, v{vPS}
    v_add_u32 v{vPS}, s{sT3}, v{vPS}
    s_lshr_b32 s{sT3}, s{sWAVE}, 2
    s_lshl_b32 s{sT3}, s{sT3}, 9
    s_and_b32 s{sT4}, s{sWAVE}, 3
    s_lshl_b32 s{sT4}, s{sT4}, 7
    s_add_u32 s{sT3}, s{sT3}, s{sT4}
    s_add_u32 s{sT3}, s{sT3}, s{sT2}
    v_lshlrev_b32 v{vGL}, 12, v{vT1}
    v_bfe_u32 v{vT3}, v0, 3, 1
    v_lshl_add_u32 v{vGL}, v{vT3}, 10, v{vGL}
    v_lshl_add_u32 v{vGL}, v{vT2}, 4, v{vGL}
    v_add_u32 v{vGL}, s{sT3}, v{vGL}
    v_and_b32 v{vT0}, 3, v0
    v_bfe_u32 v{vT2}, v0, 2, 2
    v_lshl_add_u32 v{vT2}, v{vT1}, 3, v{vT2}
    v_lshlrev_b32 v{vT3}, 6, v{vT2}
    v_lshl_add_u32 v{vT3}, v{vT0}, 3, v{vT3}
    s_lshr_b32 s{sT0}, s{sWAVE}, 2
    s_lshl_b32 s{sT0}, s{sT0}, 12
    s_bfe_u32 s{sT1}, s{sWAVE}, 0x10001
    s_lshl_b32 s{sT1}, s{sT1}, 13
    s_add_u32 s{sT0}, s{sT0}, s{sT1}
    s_and_b32 s{sT1}, s{sWAVE}, 1
    s_lshl_b32 s{sT1}, s{sT1}, 5
    s_add_u32 s{sT0}, s{sT0}, s{sT1}
    s_add_u32 s{sT0}, s{sT0}, {L_WGU}
    v_add_u32 v{vT3}, s{sT0}, v{vT3}
    ''')
    for ks_ in range(2):
        for hh in range(2):
            A(f'ds_read_b64_tr_b16 {pr(vWf + 4*ks_ + 2*hh)}, v{vT3} offset:{2048*ks_ + 256*hh}')
    A(f'''
    v_lshlrev_b32 v{vT3}, 8, v{vT2}
    v_lshl_add_u32 v{vT3}, v{vT0}, 3, v{vT3}
    s_lshl_b32 s{sT0}, s{sWAVE}, 5
    s_add_u32 s{sT0}, s{sT0}, {L_WGU + 16384}
    v_add_u32 v{vT3}, s{sT0}, v{vT3}
    ds_read_b64_tr_b16 {pr(vWf + 8)}, v{vT3}
    ds_read_b64_tr_b16 {pr(vWf + 10)}, v{vT3} offset:1024
    v_and_b32 v{vT0}, 7, v0
    v_lshrrev_b32 v{vT1}, 5, v{vLANE}
    v_bfe_u32 v{vT2}, v0, 4, 1
    v_lshl_add_u32 v{vT1}, v{vT1}, 1, v{vT2}
    v_lshl_add_u32 v{vT1}, s{sWAVE}, 2, v{vT1}
    v_lshlrev_b32 v{vT1}, 1, v{vT1}
    v_lshl_add_u32 v{vT1}, v{vT0}, 6, v{vT1}
    v_lshrrev_b32 v{vT2}, 4, v{vLANE}
    v_lshlrev_b32 v{vT2}, 4, v{vT2}
    v_lshl_add_u32 v{vT2}, v{vT0}, 6, v{vT2}
    s_mov_b32 s{sT2}, 0x03020105
    s_mov_b32 s{sT3}, 0x03020106
    s_mov_b32 s{sT4}, 0x03020107
    s_mov_b32 s{sT0}, 0x0004000c
    s_mov_b32 s{sT1}, 0x0402010c
    s_mov_b64 {P(sC0)}, -1
    s_mov_b64 {P(sC0+2)}, -1
    ''')
    vDg = 182
    A(f'''
    s_cmp_ge_u32 s{sWAVE}, 4
    s_cbranch_scc1 L_gskip
    ''')
    if cfg.GSLP: A(f's_sleep {cfg.GSLP}')
    poll('L_pollg', f'global_load_dwordx4 {q4(vG)}, v{vGA_}, {P(sWS)} sc1',
         f'''v_xor_b32 v{vG+1}, s{sTAG}, v{vG+1}
         v_xor_b32 v{vG+3}, s{sTAG}, v{vG+3}
         v_or_b32 v{vG+1}, v{vG+1}, v{vG+3}
         v_cmp_ne_u32 vcc, 0, v{vG+1}''', cfg.GLOOP)
    A(f'''
    ds_write2_b32 v{vGW_}, v{vG}, v{vG+2} offset0:{(L_G2 % 1024)//4} offset1:{(L_G2 % 1024)//4 + 1}
    L_gskip:
    s_waitcnt lgkmcnt(0)
    ''')
    stamp('gath')
    A(f'''
    s_barrier
    ds_read_b128 {q4(vG)}, v{vGR_} offset:{L_G2}
    ds_read_b128 {q4(vG+8)}, v{vGR_} offset:{L_G2 + 64}
    s_waitcnt lgkmcnt(1)
    v_mfma_f32_16x16x32_bf16 {q4(vDg)}, {q4(vWf)}, {q4(vG)}, 0
    s_waitcnt lgkmcnt(0)
    v_mfma_f32_16x16x32_bf16 {q4(vDg)}, {q4(vWf+4)}, {q4(vG+8)}, {q4(vDg)}
    ''')
    def pack24(y):
        for d in range(3): A(f'v_perm_b32 v{y+d}, v{y+3}, v{y+d}, s{sT2+d}')
        A(f'v_mov_b32 v{y+3}, s{sTAG}')
    pack24(vDg)
    A(f's_mov_b64 exec, {P(sHM)}')
    lstore(f'global_store_dwordx4 v{vGS}, {q4(vDg)}, {P(sWS)}')
    stamp('preB6')
    vE = 166
    mpoll('L_pollx', [(f'global_load_dwordx4 {q4(vE)}, v{vGL}, {P(sWS)} sc1', vE + 3, sC0),
                      (f'global_load_dwordx4 {q4(vE+4)}, v{vGL}, {P(sWS)} offset:2048 sc1', vE + 7, sC0 + 2)])
    stamp('B6')
    def unp24(us, a, b):
        for u in us: A(f'v_perm_b32 v{u+3}, v{u+1}, v{u}, s{a}')
        for u in us: A(f'v_perm_b32 v{u+3}, v{u+2}, v{u+3}, s{b}')
    unp24([vE, vE + 4], sT0, sT1)
    y = vE
    A(f'''
    v_pk_add_f32 {pr(y)}, {pr(y)}, {pr(y+4)}
    v_pk_add_f32 {pr(y+2)}, {pr(y+2)}, {pr(y+6)}
    v_permlane32_swap_b32 v{y}, v{y+2}
    v_permlane32_swap_b32 v{y+1}, v{y+3}
    v_add_f32 v{y}, v{y}, v{y+2}
    v_add_f32 v{y+1}, v{y+1}, v{y+3}
    v_permlane16_swap_b32 v{y}, v{y+1}
    v_add_f32 v{y}, v{y}, v{y+1}
    v_cvt_pk_bf16_f32 v{y}, 0, v{y}
    v_mul_f32 v{y+2}, 0xbfb8aa3b, v{y}
    v_exp_f32 v{y+2}, v{y+2}
    v_mov_b32_dpp v{y+1}, v{y} row_ror:8 {DPPM}
    v_add_f32 v{y+2}, 1.0, v{y+2}
    v_rcp_f32 v{y+2}, v{y+2}
    v_mul_f32 v{y}, v{y}, v{y+2}
    v_cvt_pk_bf16_f32 v{y}, 0, v{y}
    v_mul_f32 v{y}, v{y}, v{y+1}
    v_cvt_pk_bf16_f32 v{y}, v{y}, v{y}
    s_mov_b64 exec, {P(sHM)}
    ds_write_b16 v{vT1}, v{y} offset:{L_GU}
    s_mov_b64 exec, -1
    s_waitcnt lgkmcnt(0)
    s_barrier
    ds_read_b128 {q4(vE)}, v{vT2} offset:{L_GU}
    s_waitcnt lgkmcnt(0)
    v_mfma_f32_16x16x32_bf16 {q4(vDg)}, {q4(vWf+8)}, {q4(vE)}, 0
    ''')
    stamp('B7')
    pack24(vDg)
    A(f's_mov_b64 exec, {P(sHM)}')
    A(f'global_store_dwordx4 v{vPS}, {q4(vDg)}, {P(sWS)} sc1')
    A('s_mov_b64 exec, -1')
    stamp('partst')
    A(f'''
    s_cmp_lg_u32 s{sWID}, 0
    s_cbranch_scc1 L_noep
    s_cmp_lg_u32 s{sWAVE}, 2
    s_cbranch_scc1 L_noep
    s_add_u32 s{sT0}, s{sEP}, 1
    v_mov_b32 v{vT2}, {EPOCH}
    v_mov_b32 v{vT3}, s{sT0}
    s_mov_b64 exec, 1
    global_store_dword v{vT2}, v{vT3}, {P(sWS)} sc1
    s_mov_b64 exec, -1
    L_noep:
    s_branch L_red
    L_tail:
    s_cmp_lg_u32 s{sM}, {NS3}
    s_cbranch_scc1 L_red
    ''')
    vWr = 130
    vHr = 134
    vHs = 142
    vPu = 166
    vRr = 182
    A(f'''
    v_lshlrev_b32 v{vT1}, 4, v{vLANE}
    global_load_dwordx4 {q4(vWr)}, v{vT1}, {P(sWR)}
    s_lshl_b32 s{sT3}, s{sWAVE}, 11
    s_add_u32 s{sT3}, s{sT3}, {H2P}
    v_lshrrev_b32 v{vT2}, 3, v{vLANE}
    v_and_b32 v{vT3}, 7, v0
    v_lshlrev_b32 v{vT3}, 4, v{vT3}
    v_lshl_add_u32 v{vT3}, v{vT2}, 8, v{vT3}
    v_add_u32 v{vT3}, s{sT3}, v{vT3}
    s_lshl_b32 s{sT0}, s{sG}, 7
    s_lshl_b32 s{sT1}, s{sWAVE}, 3
    s_add_u32 s{sT0}, s{sT0}, s{sT1}
    s_add_u32 s{sT0}, s{sT0}, {SEL}
    v_mov_b32 v{vT0}, s{sT0}
    ''')
    poll('L_pollr', f'''global_load_dwordx4 {q4(vHr)}, v{vT3}, {P(sWS)} sc1
         global_load_dwordx4 {q4(vHr+4)}, v{vT3}, {P(sWS)} offset:128 sc1''',
         f'''v_xor_b32 v{vHr+1}, s{sTAG}, v{vHr+1}
         v_xor_b32 v{vHr+3}, s{sTAG}, v{vHr+3}
         v_xor_b32 v{vHr+5}, s{sTAG}, v{vHr+5}
         v_xor_b32 v{vHr+7}, s{sTAG}, v{vHr+7}
         v_or3_b32 v{vHr+1}, v{vHr+1}, v{vHr+3}, v{vHr+5}
         v_or_b32 v{vHr+1}, v{vHr+1}, v{vHr+7}
         v_cmp_ne_u32 vcc, 0, v{vHr+1}''')
    A(f'v_mov_b32 v{vRr}, 0')
    for i in range(4): A(f'v_dot2_f32_bf16 v{vRr}, v{vHr+2*i}, v{vWr+i}, v{vRr}')
    fullred([vRr], [vRr + 1])
    rnd(vRr)
    A(f'''
    v_mul_f32 v{vRr}, 0xbfb8aa3b, v{vRr}
    v_exp_f32 v{vRr}, v{vRr}
    v_add_f32 v{vRr}, 1.0, v{vRr}
    v_rcp_f32 v{vRr}, v{vRr}
    v_cvt_pk_bf16_f32 v{vRr}, 0, v{vRr}
    v_mov_b32 v{vRr+1}, s{sTAG}
    s_mov_b64 exec, 1
    ''')
    lstore(f'global_store_dwordx2 v{vT0}, {pr(vRr)}, {P(sWS)}')
    A(f'''
    s_mov_b64 exec, -1
    L_red:
    s_cmp_lg_u32 s{sWAVE}, 1
    s_cbranch_scc1 L_outlate
    v_lshl_add_u32 v{vT0}, v{vLANE}, 4, s{sPT}
    v_mov_b32 v{vPu+12}, 0
    v_mov_b32 v{vPu+13}, 0
    v_mov_b32 v{vPu+14}, 0
    v_mov_b32 v{vPu+15}, s{sTAG}
    s_and_b32 s{sT0}, s{sM}, 3
    s_and_b32 s{sT1}, s{sM}, 28
    v_mov_b32 v{vT3}, s{sT1}
    ds_read_b32 v{vOR+4}, v{vT3} offset:{L_GP}
    s_lshl_b32 s{sT3}, s{sT1}, 9
    s_add_u32 s{sT3}, s{sT3}, {H2P}
    s_lshl_b32 s{sT1}, s{sT1}, 1
    s_lshl_b32 s{sT4}, s{sG}, 7
    s_add_u32 s{sT1}, s{sT1}, s{sT4}
    s_add_u32 s{sT1}, s{sT1}, {SEL}
    v_mov_b32 v{vOR+5}, s{sT1}
    v_and_b32 v{vT1}, 3, v0
    v_lshlrev_b32 v{vT1}, 2, v{vT1}
    v_lshrrev_b32 v{vT2}, 5, v{vLANE}
    v_lshl_add_u32 v{vT1}, v{vT2}, 1, v{vT1}
    v_bfe_u32 v{vT2}, v0, 4, 1
    s_lshl_b32 s{sT4}, s{sT0}, 4
    v_add_u32 v{vT1}, s{sT4}, v{vT1}
    v_add_u32 v{vT3}, v{vT1}, v{vT2}
    v_lshlrev_b32 v{vOR}, 2, v{vT3}
    ds_read_b32 v{vOR+1}, v{vOR} offset:{L_MOD + 5*256}
    v_lshrrev_b32 v{vOR}, 3, v{vT1}
    v_lshlrev_b32 v{vOR}, 4, v{vOR}
    v_bfe_u32 v{vOR+2}, v{vT1}, 2, 1
    v_lshl_add_u32 v{vOR}, v{vOR+2}, 7, v{vOR}
    v_bfe_u32 v{vOR+2}, v{vT1}, 1, 1
    v_lshl_add_u32 v{vOR}, v{vOR+2}, 3, v{vOR}
    s_lshl_b32 s{sT5}, s{sG}, 8
    s_add_u32 s{sT5}, s{sT5}, s{sT3}
    v_add_u32 v{vT1}, s{sT5}, v{vOR}
    v_add_u32 v{vOR+2}, {X1P - H2P}, v{vT1}
    s_lshl_b32 s{sT4}, s{sG}, 7
    v_lshl_add_u32 v{vOR+3}, v{vT3}, 1, s{sT4}
    v_lshlrev_b32 v{vT2}, 4, v{vT2}
    v_sub_u32 v{vT2}, 16, v{vT2}
    s_mov_b32 s{sT2}, 0x0004000c
    s_mov_b32 s{sT3}, 0x0402010c
    s_waitcnt lgkmcnt(0)
    v_lshl_add_u32 v{vOR+3}, v{vOR+4}, 10, v{vOR+3}
    ''')
    poll('L_polls', f'''global_load_dwordx2 {pr(vHs)}, v{vT1}, {P(sWS)} sc1
         global_load_dwordx2 {pr(vHs+2)}, v{vOR+2}, {P(sWS)} sc1
         global_load_dwordx2 {pr(vRr)}, v{vOR+5}, {P(sWS)} sc1''',
         f'''v_xor_b32 v{vHs+1}, s{sTAG}, v{vHs+1}
         v_xor_b32 v{vHs+3}, s{sTAG}, v{vHs+3}
         v_xor_b32 v{vRr+1}, s{sTAG}, v{vRr+1}
         v_or3_b32 v{vHs+1}, v{vHs+1}, v{vHs+3}, v{vRr+1}
         v_cmp_ne_u32 vcc, 0, v{vHs+1}''')
    A(f'''
    v_lshlrev_b32 v{vHs}, v{vT2}, v{vHs}
    v_and_b32 v{vHs}, s{sMASK}, v{vHs}
    v_lshlrev_b32 v{vHs+2}, v{vT2}, v{vHs+2}
    v_and_b32 v{vHs+2}, s{sMASK}, v{vHs+2}
    ''')
    stamp('redpre')
    if cfg.REDSLP: A(f's_sleep {cfg.REDSLP}')
    for i in range(3): A(f's_mov_b64 {P(sC0+2*i)}, -1')
    A(f's_mov_b32 s{sC0+6}, -1'); A(f's_mov_b32 s{sC0+7}, 0')
    mpoll('L_pollp', [(f'global_load_dwordx4 {q4(vPu+4*i)}, v{vT0}, {P(sWS)} offset:{1024*i} sc1', vPu + 4*i + 3, sC0 + 2*i) for i in range(4)])
    stamp('partok')
    unp24([vPu + 4*i for i in range(4)], sT2, sT3)
    for (a, b) in ((0, 1), (2, 3), (0, 2)):
        for h in range(2): A(f'v_pk_add_f32 {pr(vPu+4*a+2*h)}, {pr(vPu+4*a+2*h)}, {pr(vPu+4*b+2*h)}')
    y = vPu
    A(f'''
    v_permlane32_swap_b32 v{y}, v{y+2}
    v_permlane32_swap_b32 v{y+1}, v{y+3}
    v_add_f32 v{y}, v{y}, v{y+2}
    v_add_f32 v{y+1}, v{y+1}, v{y+3}
    v_permlane16_swap_b32 v{y}, v{y+1}
    v_add_f32 v{y}, v{y}, v{y+1}
    v_add_f32_dpp v{y}, v{y}, v{y} row_ror:8 {DPPM}
    v_add_f32_dpp v{y}, v{y}, v{y} row_ror:4 {DPPM}
    v_cvt_pk_bf16_f32 v{y}, 0, v{y}
    v_mul_f32 v{y}, v{y}, v{vRr}
    v_cvt_pk_bf16_f32 v{y}, 0, v{y}
    v_add_f32 v{y}, v{y}, v{vHs}
    v_cvt_pk_bf16_f32 v{y}, 0, v{y}
    v_mul_f32 v{y}, v{y}, v{vOR+1}
    v_cvt_pk_bf16_f32 v{y}, 0, v{y}
    v_add_f32 v{y}, v{y}, v{vHs+2}
    v_cvt_pk_bf16_f32 v{y}, v{y}, v{y}
    s_mov_b32 s{sT0}, 0x000f000f
    s_mov_b32 s{sT1}, 0x000f000f
    s_mov_b64 exec, {P(sT0)}
    global_store_short v{vOR+3}, v{y}, {P(sOUT)} {cfg.OUT_FL}
    s_mov_b64 exec, -1
    ''')
    A('L_outlate:')
    if cfg.OUTPOS == 'end': outstore()
    A('L_fin:')
    if cfg.DBL:
        A(f'''
        s_waitcnt vmcnt(0)
        s_memrealtime s[78:79]
        s_waitcnt lgkmcnt(0)
        s_sub_u32 s{sT0}, s78, s74
        s_add_u32 s{sT0}, s{sT0}, s78
        L_dbl:
        s_memrealtime s[80:81]
        s_waitcnt lgkmcnt(0)
        s_sub_u32 s{sT1}, s80, s{sT0}
        s_cmp_lt_i32 s{sT1}, 0
        s_cbranch_scc1 L_dbl
        ''')
    if cfg.DBGT:
        A(f'''
        s_memrealtime s[78:79]
        s_memtime s[80:81]
        s_cmp_lg_u32 s{sWAVE}, 0
        s_cbranch_scc1 L_end
        s_and_b32 s{sT0}, s{sWID}, 0x3f
        s_cmp_lg_u32 s{sT0}, 28
        s_cbranch_scc1 L_end
        s_waitcnt lgkmcnt(0)
        s_sub_u32 s{sT0}, s78, s74
        s_sub_u32 s{sT1}, s80, s76
        v_mov_b32 v4, s{sT0}
        v_mov_b32 v5, s{sT1}
        v_mov_b32 v6, s74
        v_mov_b32 v7, s78
        s_lshr_b32 s{sT0}, s{sWID}, 6
        s_lshl_b32 s{sT0}, s{sT0}, 4
        v_mov_b32 v8, s{sT0}
        s_mov_b64 exec, 1
        global_store_dwordx4 v8, v[4:7], {P(sDBG)}
        ''')
    if cfg.STAMP:
        A(f's_memtime s[{sST+2*nst[0]}:{sST+2*nst[0]+1}]'); nst[0] += 1
        A(f'''
        s_waitcnt lgkmcnt(0)
        s_lshl_b32 s{sT0}, s{sWID}, 3
        s_add_u32 s{sT0}, s{sT0}, s{sWAVE}
        s_lshl_b32 s{sT0}, s{sT0}, 7
        s_add_u32 s{sT0}, s{sT0}, {STAMPS}
        v_mov_b32 v{vT0}, s{sT0}
        s_mov_b64 exec, 1
        ''')
        for i in range(nst[0]):
            A(f'v_mov_b32 v{vT1}, s{sST+2*i}')
            A(f'global_store_dword v{vT0}, v{vT1}, {P(sWS)} offset:{4*i}')
        A(f'v_mov_b32 v{vT1}, s{sCNT}')
        A(f'global_store_dword v{vT0}, v{vT1}, {P(sWS)} offset:120')
        A(f'v_mov_b32 v{vT1}, s{sMODE}')
        A(f'global_store_dword v{vT0}, v{vT1}, {P(sWS)} offset:124')
    A('L_end:')
    A('s_endpgm')
    for k, t in slow:
        A(f'L_slow{k}:'); A('s_nop 4'); A(t); A('s_nop 1'); A(f's_branch L_back{k}')
    A('L_modeslow:')
    A(f'''
    s_mov_b32 s{sT4}, 64
    L_moderetry:
    global_load_dword v{vMT}, v{vPT}, {P(sWS)} sc1
    s_waitcnt vmcnt(0)
    s_mov_b32 s{sMODE}, {0 if cfg.FORCE_SLOW else 1}
    v_cmp_ne_u32 vcc, s{sXCC}, v{vMT}
    s_cbranch_vccz L_modeback
    s_mov_b32 s{sMODE}, 0
    v_subrev_u32 v{vMT+1}, s{sTAG}, v{vMT}
    v_subrev_u32 v{vMT+1}, 1, v{vMT+1}
    v_cmp_lt_u32 vcc, 15, v{vMT+1}
    s_cbranch_vccz L_modeback
    s_sub_u32 s{sT4}, s{sT4}, 1
    s_cbranch_scc0 L_moderetry
    s_branch L_modeback
    ''')
    for name, fn in late:
        A(name + ':'); fn()
    A('L_codeend:')
    return A

HEAD = open('adaLN_cond__ssm_conv_h3__moe_arch_mod__prompt.s.ref').read().split('; Override launch')[0]
def emit(path):
    A = build()
    s = HEAD + f'; @launch grid=(256,1,1) block=(512,1,1) lds={LDS_BYTES}\n'
    s += f'''.amdgcn_target "amdgcn-amd-amdhsa--gfx950"
.text
.globl {KNAME}
.p2align 8
.type {KNAME},@function
{KNAME}:
'''
    s += A.text()
    s += f'''.section .rodata,"a"
.p2align 6
.amdhsa_kernel {KNAME}
  .amdhsa_next_free_vgpr 248
  .amdhsa_next_free_sgpr 102
  .amdhsa_accum_offset 248
  .amdhsa_group_segment_fixed_size 0
  .amdhsa_kernarg_size 128
  .amdhsa_user_sgpr_count 2
  .amdhsa_user_sgpr_kernarg_segment_ptr 1
  .amdhsa_system_sgpr_workgroup_id_x 1
.end_amdhsa_kernel
'''
    open(path, 'w').write(s)
    return A

if __name__ == '__main__':
    out = sys.argv[1]
    for a in sys.argv[2:]:
        k, v = a.split('=')
        setattr(cfg, k, eval(v))
    A = emit(out)
    if cfg.STAMP: open(out + '.sites', 'w').write(' '.join(cfg.ORDER + ['end']))
    print('emitted', out, 'lines', len(A.out), 'pads', A.npad)
```

```python
import sys
from asmdsl import Asm

class Cfg:
    STAMP = False
    STOP = 99
    WS_BASE = 0
    WBL2 = False
    OUT_FL = 'sc1'
    POLL_CAP = 200000
    FORCE_SLOW = False
    SEC = 'bar'
    WPOS = 'key'
    X3ACK = True
    GPOS = 's1'
    X1PT = True
    GLOOP = 0
    PRIO = 3
    OUTPOS = 'top8'
    H2PT = True
    GSLP = 0
    HSLP = 16
    NOOUT = False
    REDSLP = 0
    WAFTER = True
    WDPOS = 's1'
    DBL = False
    DBGT = False
    NT = ''
    WPF = True
    PARTPT = False
    SITES = ()
    ORDER = []
cfg = Cfg()

KNAME = "adaLN_cond__ssm_conv_h3__moe_arch_mod__prompt_kernel"
EPOCH = 0; FL1 = 0x10000; FL2 = 0x12000; FLM = 0x14000; MTAB = 0x16000; KEYS = 0x18000; SEL = 0x1C000
XC = 0x20000; MODP = 0x80000; XB1 = 0x100000; X0 = 0x400000; X3 = 0x600000
H2P = 0x800000; X1P = 0xC00000; PART = 0x1000000; GXB = 0x300000; STAMPS = 0x2000000
NS3 = 28
NPROD = 56
NG0 = 8
USTR = 4160; UCH = 8 * USTR
L_MOD = 0
L_KEY = 2048
L_GP = 4096
L_CNT = 3328
L_ST = 3584
L_KVR = 8192; KVS = 4608
L_P = L_KVR + 2 * KVS
L_T = L_P; TS = 272
L_KD = L_P + 32768
L_U = L_KD + 8192
L_WGU = L_U + 2 * UCH
L_XS = L_WGU + 24576
L_END = L_WGU + 32768
L_Z = L_U
L_WD = L_U + 8192
L_G2 = L_P
L_GU = L_P + 8192
LDS_BYTES = 158720
assert L_END <= LDS_BYTES

sX, sK, sV, sSK, sF, sD, sWR = 4, 6, 8, 10, 12, 14, 18
sWG, sWU, sWD, sC, sWM, sOUT, sDBG, sWS = 20, 22, 24, 26, 28, 30, 32, 34
sG, sM, sWAVE, sTAG, sMODE, sXCC, sCNT, sTILE = 36, 37, 38, 39, 40, 41, 42, 43
sKSRD = 44
sFSRD = 48
sMASK = 52
sWID = 53
sEP = 54
sDV = 55
sT0, sT1, sT2, sT3, sT4, sT5 = 56, 57, 58, 59, 60, 61
sEX = 62
sC0 = 44
sWSR = 64
sOUTR = 68
sD0, sD1 = 72, 73
sPEND, sPT = 16, 17
sHM = 10
sST = 74
def P(s): return f's[{s}:{s+1}]'

import re
def to_buffer(line):
    for base, srd in ((sWS, sWSR), (sOUT, sOUTR)):
        b = re.escape(P(base)); R = f's[{srd}:{srd+3}]'
        m = re.match(rf'^\s*global_load_lds_(\w+) (v\d+), {b}(.*)$', line)
        if m: return f'buffer_load_{m.group(1)} {m.group(2)}, {R}, 0 offen{m.group(3)} lds'
        m = re.match(rf'^\s*global_load_(\w+) (v\S+), (v\d+), {b}(.*)$', line)
        if m: return f'buffer_load_{m.group(1)} {m.group(2)}, {m.group(3)}, {R}, 0 offen{m.group(4)}'
        m = re.match(rf'^\s*global_store_(\w+) (v\d+), (v\S+), {b}(.*)$', line)
        if m: return f'buffer_store_{m.group(1)} {m.group(3)}, {m.group(2)}, {R}, 0 offen{m.group(4)}'
    return line
def add_nt(line):
    if not cfg.NT: return line
    l = line.strip()
    if l.startswith('global_load') and any(P(b) in l for b in (sX, sK, sV, sWM, sWD, 12)) and 'sc1' not in l: return l + ' ' + cfg.NT
    if l.startswith('buffer_load') and (f's[{sKSRD}:{sKSRD+3}]' in l or f's[{sFSRD}:{sFSRD+3}]' in l): return l + ' ' + cfg.NT
    return line
class BAsm(Asm):
    def __call__(self, text):
        super().__call__('\n'.join(to_buffer(add_nt(l)) for l in text.strip().split('\n')))
def build():
    A = BAsm()
    slow = []
    late = []
    nst = [0]
    site = [0]
    def stamp(name=''):
        if cfg.STAMP and (name in cfg.SITES or name == 'start'):
            assert sST + 2 * nst[0] + 3 <= 101
            A(f's_memtime s[{sST+2*nst[0]}:{sST+2*nst[0]+1}]'); nst[0] += 1
            cfg.ORDER.append(name)
            if name in ('B2', 'B3b'): A('s_waitcnt lgkmcnt(0)')
    uid = [0]
    def lstore(text):
        uid[0] += 1; k = uid[0]
        A(f's_cmp_eq_u32 s{sMODE}, 1')
        A(f's_cbranch_scc0 L_slow{k}')
        A(text)
        A(f'L_back{k}:')
        slow.append((k, '\n'.join(l + ' sc1' for l in text.strip().split('\n'))))
    def poll(name, loads, check, slp=0):
        A(f'{name}:')
        if slp: A(f's_sleep {slp}')
        A(loads)
        A('s_waitcnt vmcnt(0)')
        A(check)
        A(f's_sub_u32 s{sCNT}, s{sCNT}, 1')
        A('s_cselect_b64 vcc, 0, vcc')
        A(f's_cselect_b32 s{sCNT}, 0, s{sCNT}')
        A(f's_cbranch_vccnz {name}')
    def mpoll(name, items):
        A(f'{name}:')
        for k, (ld, tr, mk) in enumerate(items):
            A(f's_mov_b64 exec, {P(mk)}')
            A(f's_cbranch_execz {name}_s{k}')
            A(ld)
            A(f'{name}_s{k}:')
        A('s_mov_b64 exec, -1')
        A('s_waitcnt vmcnt(0)')
        for (ld, tr, mk) in items:
            if isinstance(tr, int): A(f'v_cmp_ne_u32 {P(mk)}, s{sTAG}, v{tr}')
            else: A(tr[0]); A(f'v_cmp_ne_u32 {P(mk)}, 0, v{tr[1]}')
        A(f's_or_b64 vcc, {P(items[0][2])}, {P(items[1][2])}')
        for (ld, tr, mk) in items[2:]: A(f's_or_b64 vcc, vcc, {P(mk)}')
        A(f's_sub_u32 s{sCNT}, s{sCNT}, 1')
        A('s_cselect_b64 vcc, 0, vcc')
        A(f's_cselect_b32 s{sCNT}, 0, s{sCNT}')
        A(f's_cbranch_vccnz {name}')
    def unpack(d, s):
        A(f'v_lshlrev_b32 v{d}, 16, v{s}')
        A(f'v_and_b32 v{d+1}, s{sMASK}, v{s}')
    def rnd(d, s=None):
        A(f'v_cvt_pk_bf16_f32 v{d}, 0, v{d if s is None else s}')
    def pr(r): return f'v[{r}:{r+1}]'
    def q4(r): return f'v[{r}:{r+3}]'
    DPPM = 'row_mask:0xf bank_mask:0xf'
    def allred(regs, tmps, add='v_add_f32'):
        for r in regs: A(f'{add}_dpp v{r}, v{r}, v{r} row_ror:8 {DPPM}')
        for sw in ('v_permlane16_swap_b32', 'v_permlane32_swap_b32'):
            for r, t in zip(regs, tmps): A(f'v_mov_b32 v{t}, v{r}')
            for r, t in zip(regs, tmps): A(f'{sw} v{t}, v{r}')
            for r, t in zip(regs, tmps): A(f'{add} v{r}, v{r}, v{t}')
    def fullred(regs, tmps, add='v_add_f32'):
        for pat in ('quad_perm:[1,0,3,2]', 'quad_perm:[2,3,0,1]', 'row_half_mirror'):
            for r in regs: A(f'{add}_dpp v{r}, v{r}, v{r} {pat} {DPPM}')
        allred(regs, tmps, add)
    def lnstats(S, Q, t0, mean_out, inv_out):
        A(f'v_mul_f32 v{S}, 0x3b000000, v{S}')
        A(f'v_mul_f32 v{Q}, 0x3b000000, v{Q}')
        A(f'v_fma_f32 v{t0}, -v{S}, v{S}, v{Q}')
        A(f'v_max_f32 v{t0}, 0, v{t0}')
        rnd(mean_out, S)
        rnd(t0)
        A(f'v_add_f32 v{t0}, 0x3727c5ac, v{t0}')
        rnd(t0)
        A(f'v_sqrt_f32 v{t0}, v{t0}')
        rnd(t0)
        A(f'v_rcp_f32 v{inv_out}, v{t0}')

    A(f'''
    s_cmp_ge_u32 s2, 256
    s_cbranch_scc1 L_end
    s_load_dwordx16 s[4:19], s[0:1], 0
    s_load_dwordx16 s[20:35], s[0:1], 64
    ''')
    if cfg.STAMP:
        A(f's_memrealtime s[{sST}:{sST+1}]'); nst[0] += 1
    if cfg.DBGT:
        A('s_memrealtime s[74:75]'); A('s_memtime s[76:77]')
    stamp('start')
    vLANE, vTID = 1, 0
    vA, vB, vT0, vT1, vT2, vT3 = 2, 3, 4, 5, 6, 7
    vPA = 9
    vJR = 8
    vX = 10
    vKr = 14
    vVr = 21
    vSk = 26
    vFl = 30
    vMT = 38
    vGW = 110
    vGC = 44
    vPT = 40
    A(f'''
    s_getreg_b32 s{sXCC}, hwreg(HW_REG_XCC_ID)
    s_and_b32 s{sG}, s2, 7
    s_lshr_b32 s{sM}, s2, 3
    v_lshrrev_b32 v{vT0}, 6, v0
    v_and_b32 v{vLANE}, 63, v0
    v_readfirstlane_b32 s{sWAVE}, v{vT0}
    s_and_b32 s{sXCC}, s{sXCC}, 15
    s_mov_b32 s{sMASK}, 0xffff0000
    s_mov_b32 s{sCNT}, {cfg.POLL_CAP}
    s_lshl_b32 s{sT0}, s{sM}, 16
    s_lshl_b32 s{sT1}, s{sG}, 7
    s_add_u32 s{sTILE}, s{sT0}, s{sT1}
    s_lshl_b32 s{sWID}, s{sG}, 5
    s_add_u32 s{sWID}, s{sWID}, s{sM}
    v_and_b32 v{vT0}, 31, v0
    v_lshrrev_b32 v{vT1}, 5, v0
    v_lshlrev_b32 v{vA}, 12, v{vT1}
    v_lshl_add_u32 v{vA}, v{vT0}, 2, v{vA}
    v_add_u32 v{vA}, s{sTILE}, v{vA}
    v_subrev_u32 v{vB}, 0xc00, v{vA}
    v_bfrev_b32 v{vT2}, 1
    v_cmp_gt_u32 vcc, 0xc00, v{vA}
    v_cndmask_b32 v{vB}, v{vB}, v{vT2}, vcc
    v_lshl_add_u32 v{vT2}, v{vT0}, 4, s{sT1}
    v_lshl_add_u32 v{vT2}, s{sT1}, 1, v{vT2}
    v_add_u32 v{vT2}, s{sT1}, v{vT2}
    ''')
    A(f'''
    s_add_u32 s{sT3}, s{sXCC}, 1
    v_mov_b32 v{vPT}, s{sWID}
    v_mov_b32 v{vPT+1}, s{sT3}
    s_lshl_b32 s{sT4}, s{sG}, 7
    s_lshl_b32 s{sT5}, s{sM}, 2
    s_add_u32 s{sT4}, s{sT4}, s{sT5}
    v_lshlrev_b32 v{vT0}, 4, v0
    v_subrev_u32 v{vT1}, 16, v{vT0}
    v_and_b32 v{vT3}, 255, v0
    v_cmp_eq_u32 vcc, 0, v{vT3}
    v_bfrev_b32 v{vT3}, 1
    v_cndmask_b32 v{vT1}, v{vT1}, v{vT3}, vcc
    s_lshl_b32 s{sT0}, s{sWID}, 13
    s_waitcnt lgkmcnt(0)
    s_load_dword s{sEP}, {P(sWS)}, {EPOCH + cfg.WS_BASE}
    global_load_dwordx4 {q4(vSk)}, v{vT2}, {P(sSK)}
    ''')
    for i in range(4): A(f'global_load_dword v{vKr+3+i}, v{vA}, {P(sK)} offset:{1024*i}')
    A(f'''
    s_mov_b32 s{sKSRD}, s{sK}
    s_mov_b32 s{sKSRD+1}, s{sK+1}
    s_mov_b32 s{sKSRD+2}, 0x200000
    s_mov_b32 s{sKSRD+3}, 0x20000
    s_mov_b32 exec_hi, 0
    ''')
    for i in range(3): A(f'buffer_load_dword v{vKr+i}, v{vB}, s[{sKSRD}:{sKSRD+3}], 0 offen offset:{1024*i}')
    A('s_mov_b64 exec, -1')
    for i in range(4): A(f'global_load_dword v{vVr+i}, v{vA}, {P(sV)} offset:{1024*i}')
    A(f'''
    s_add_u32 s{sWS}, s{sWS}, {cfg.WS_BASE}
    s_addc_u32 s{sWS+1}, s{sWS+1}, 0
    s_mov_b32 s{sWSR}, s{sWS}
    s_mov_b32 s{sWSR+1}, s{sWS+1}
    s_mov_b32 s{sWSR+2}, 0x4000000
    s_mov_b32 s{sWSR+3}, 0x20000
    s_mov_b32 s{sOUTR}, s{sOUT}
    s_mov_b32 s{sOUTR+1}, s{sOUT+1}
    s_mov_b32 s{sOUTR+2}, 0x200000
    s_mov_b32 s{sOUTR+3}, 0x20000
    s_add_u32 s{sFSRD}, s{sF}, s{sT0}
    s_addc_u32 s{sFSRD+1}, s{sF+1}, 0
    s_mov_b32 s{sFSRD+2}, 8192
    s_mov_b32 s{sFSRD+3}, 0x20000
    s_load_dword s{sDV}, {P(sD)}, s{sT4}
    ''')
    A(f'''
    s_cmp_lg_u32 s{sWAVE}, 7
    s_cbranch_scc1 L_nopt
    s_lshr_b32 s{sT0}, s{sM}, 2
    s_lshl_b32 s{sT0}, s{sT0}, 7
    s_lshl_b32 s{sT1}, s{sG}, 10
    s_add_u32 s{sT0}, s{sT0}, s{sT1}
    s_add_u32 s{sT1}, s{sT0}, {FL1}
    v_mov_b32 v{vPT+2}, s{sT1}
    s_add_u32 s{sT1}, s{sT0}, {FL2}
    v_writelane_b32 v{vPT+2}, s{sT1}, 2
    v_writelane_b32 v{vPT+2}, s{sT1}, 3
    s_lshl_b32 s{sT0}, s{sG}, 7
    s_add_u32 s{sT1}, s{sT0}, {FLM}
    v_writelane_b32 v{vPT+2}, s{sT1}, 4
    v_writelane_b32 v{vPT+2}, s{sT1}, 5
    s_add_u32 s{sT1}, s{sT0}, {SEL}
    v_writelane_b32 v{vPT+2}, s{sT1}, 6
    v_writelane_b32 v{vPT+2}, s{sT1}, 7
    s_lshl_b32 s{sT0}, s{sWID}, 6
    s_and_b32 s{sT0}, s{sT0}, 0xffffff80
    s_add_u32 s{sT1}, s{sT0}, {KEYS}
    v_writelane_b32 v{vPT+2}, s{sT1}, 8
    v_writelane_b32 v{vPT+2}, s{sT1}, 9
    v_and_b32 v{vPT+3}, 1, v0
    v_lshl_add_u32 v{vPT+2}, v{vPT+3}, 6, v{vPT+2}
    s_lshl_b32 s{sT0}, s{sWID}, 9
    s_add_u32 s{sT1}, s{sT0}, {MODP - 32*64}
    v_lshl_add_u32 v{vPT+3}, v{vLANE}, 6, s{sT1}
    v_cmp_lt_u32 vcc, 31, v{vLANE}
    v_cndmask_b32 v{vPT+2}, v{vPT+2}, v{vPT+3}, vcc
    s_lshl_b32 s{sT0}, s{sM}, 9
    s_add_u32 s{sT1}, s{sT0}, {H2P - 40*64}
    v_lshl_add_u32 v{vPT+3}, v{vLANE}, 6, s{sT1}
    v_cmp_lt_u32 vcc, 39, v{vLANE}
    v_cndmask_b32 v{vPT+2}, v{vPT+2}, v{vPT+3}, vcc
    s_mov_b32 exec_lo, 0x3ff
    s_mov_b32 exec_hi, {'0xffff' if cfg.H2PT else '0xff'}
    global_load_dword v{vPT+3}, v{vPT+2}, {P(sWS)} sc1
    s_mov_b64 exec, 0xffff
    s_getpc_b64 {P(sT0)}
    L_pc:
    s_lshl_b32 s{sT2}, s{sM}, 10
    v_lshl_add_u32 v{vPT+2}, v{vLANE}, 6, s{sT2}
    v_min_u32 v{vPT+2}, L_codeend-L_pc-4, v{vPT+2}
    global_load_dword v{vPT+3}, v{vPT+2}, {P(sT0)}
    s_mov_b64 exec, -1
    L_nopt:
    ''')
    A(f'''
    v_mov_b32 v{vPT}, {L_CNT}
    v_mov_b32 v{vPT+1}, 0
    ds_write_b32 v{vPT}, v{vPT+1}
    v_and_b32 v{vT2}, 7, v0
    v_lshl_add_u32 v{vT2}, s{sWAVE}, 3, v{vT2}
    v_lshlrev_b32 v{vT2}, 10, v{vT2}
    v_lshrrev_b32 v{vT3}, 3, v{vLANE}
    v_lshl_add_u32 v{vJR}, v{vT3}, 4, v{vT2}
    v_add_u32 v{vJR}, s{sTILE}, v{vJR}
    s_barrier
    buffer_load_dwordx4 {q4(vFl+4)}, v{vT0}, s[{sFSRD}:{sFSRD+3}], 0 offen
    s_mov_b64 exec, 1
    buffer_load_dwordx4 {q4(vFl)}, v{vT1}, s[{sFSRD}:{sFSRD+3}], 0 offen
    s_mov_b64 exec, -1
    s_and_b32 s{sT0}, s{sM}, 3
    s_lshl_b32 s{sT0}, s{sT0}, 8
    s_and_b32 s{sT1}, s{sWAVE}, 3
    s_lshl_b32 s{sT1}, s{sT1}, 6
    s_add_u32 s{sT0}, s{sT0}, s{sT1}
    v_and_b32 v{vT2}, 0x38, v0
    v_add_u32 v{vT2}, s{sT0}, v{vT2}
    global_load_dwordx2 {pr(vGC)}, v{vT2}, {P(sC)}
    s_lshl_b32 s{sT0}, s{sG}, 9
    s_add_u32 s{sT0}, s{sT0}, {MTAB}
    v_and_b32 v{vPT}, 31, v0
    v_lshl_add_u32 v{vPT}, v{vPT}, 4, s{sT0}
    s_lshl_b32 s{sT1}, s{sM}, 4
    s_add_u32 s{sT0}, s{sT0}, s{sT1}
    v_mov_b32 v{vPT+1}, s{sT0}
    s_waitcnt lgkmcnt(0)
    s_mul_i32 s{sTAG}, s{sEP}, 0x9E3779B1
    s_add_u32 s{sTAG}, s{sTAG}, 0x7F4A7C15
    s_add_u32 s{sXCC}, s{sXCC}, s{sTAG}
    s_add_u32 s{sXCC}, s{sXCC}, 1
    v_mov_b32 v{vPT+2}, s{sXCC}
    s_cmp_lg_u32 s{sWAVE}, 0
    s_cbranch_scc1 L_nomode
    s_mov_b64 exec, 1
    global_store_dword v{vPT+1}, v{vPT+2}, {P(sWS)} sc1
    s_mov_b64 exec, -1
    L_nomode:
    ''')
    stamp('issued')
    A(f's_mov_b32 s{sPEND}, 0')
    def wv(n): A(f's_waitcnt vmcnt({n})')
    vTp = 46
    vKp = 54
    vVp = 68
    vAc = 76
    vPp = 84
    vO = 92
    wv(7)
    for i in range(3): A(f'v_mov_b32 v{vPp+i}, v{vKr+4+i}')
    for i in range(3): A(f'v_permlane32_swap_b32 v{vKr+i}, v{vPp+i}')
    for j in range(4):
        src0, src1 = vSk + (j >> 1), vSk + 2 + (j >> 1)
        if j & 1:
            A(f'v_and_b32 v{vTp+2*j}, s{sMASK}, v{src0}'); A(f'v_and_b32 v{vTp+2*j+1}, s{sMASK}, v{src1}')
        else:
            A(f'v_lshlrev_b32 v{vTp+2*j}, 16, v{src0}'); A(f'v_lshlrev_b32 v{vTp+2*j+1}, 16, v{src1}')
    for r in range(7): unpack(vKp + 2*r, vKr + r)
    stamp('kland')
    for i in range(4): A(f'v_pk_mul_f32 {pr(vAc+2*i)}, {pr(vKp+2*i)}, {pr(vTp+6)}')
    for i in range(8): rnd(vAc + i)
    for j in (2, 1, 0):
        for i in range(4): A(f'v_pk_mul_f32 {pr(vPp+2*i)}, {pr(vKp+2*(i+3-j))}, {pr(vTp+2*j)}')
        for i in range(8): rnd(vPp + i)
        for i in range(4): A(f'v_pk_add_f32 {pr(vAc+2*i)}, {pr(vAc+2*i)}, {pr(vPp+2*i)}')
        for i in range(8): rnd(vAc + i)
    wv(3)
    A(f'global_load_dword v{vMT}, v{vPT}, {P(sWS)} sc1')
    if cfg.X1PT:
        A(f'''
        s_lshl_b32 s{sT0}, s{sWID}, 13
        s_add_u32 s{sT0}, s{sT0}, {XB1}
        v_lshl_add_u32 v{vPT+1}, v0, 4, s{sT0}
        s_mov_b32 s{sT2}, 0x11111111
        s_mov_b32 s{sT3}, 0x11111111
        s_mov_b64 exec, {P(sT2)}
        global_load_dword v{vPT+3}, v{vPT+1}, {P(sWS)} sc1
        s_mov_b64 exec, -1
        ''')
    for i in range(4): unpack(vVp + 2*i, vVr + i)
    for i in range(4): A(f'v_pk_mul_f32 {pr(vAc+2*i)}, {pr(vAc+2*i)}, {pr(vVp+2*i)}')
    for c in range(2):
        A(f'v_cvt_pk_bf16_f32 v{vO+2*c}, v{vAc+6+c}, v{vAc+4+c}')
        A(f'v_cvt_pk_bf16_f32 v{vO+2*c+1}, v{vAc+2+c}, v{vAc+c}')
    A(f'''
    v_and_b32 v{vT0}, 31, v0
    v_lshrrev_b32 v{vT1}, 5, v0
    v_mul_u32_u24 v{vT0}, {TS}, v{vT0}
    v_lshlrev_b32 v{vT1}, 3, v{vT1}
    v_sub_u32 v{vT0}, v{vT0}, v{vT1}
    v_add_u32 v{vT0}, {L_T + 120}, v{vT0}
    ds_write2_b64 v{vT0}, {pr(vO)}, {pr(vO+2)} offset0:0 offset1:16
    ''')
    A(f'''
    v_lshrrev_b32 v{vT1}, 4, v0
    v_mul_u32_u24 v{vT2}, {TS}, v{vT1}
    v_and_b32 v{vT3}, 15, v0
    v_lshl_add_u32 v{vT2}, v{vT3}, 4, v{vT2}
    v_lshlrev_b32 v{vT1}, 13, v{vT1}
    v_bfe_u32 v{vT3}, v0, 3, 1
    v_lshl_add_u32 v{vT1}, v{vT3}, 12, v{vT1}
    v_and_b32 v{vT3}, 7, v0
    v_lshl_add_u32 v{vT1}, v{vT3}, 4, v{vT1}
    s_lshl_b32 s{sT0}, s{sG}, 18
    s_sub_u32 s{sT1}, 31, s{sM}
    s_lshl_b32 s{sT1}, s{sT1}, 7
    s_add_u32 s{sT0}, s{sT0}, s{sT1}
    s_add_u32 s{sT0}, s{sT0}, {XB1}
    v_add_u32 v{vT1}, s{sT0}, v{vT1}
    s_waitcnt lgkmcnt(0)
    s_barrier
    ds_read_b128 {q4(vO)}, v{vT2} offset:{L_T}
    ''')
    stamp('B1')
    vX1A = 96
    A(f'''
    v_mov_b32 v{vX1A}, v{vT1}
    s_lshl_b32 s{sT0}, s{sG}, 10
    s_lshl_b32 s{sT1}, s{sWAVE}, 7
    s_add_u32 s{sT0}, s{sT0}, s{sT1}
    s_lshl_b32 s{sT1}, s{sM}, 2
    s_add_u32 s{sT0}, s{sT0}, s{sT1}
    v_mov_b32 v{vA}, s{sT0}
    v_mov_b32 v{vB}, s{sTAG}
    s_waitcnt lgkmcnt(0)
    global_store_dwordx4 v{vX1A}, {q4(vO)}, {P(sWS)}
    ''')
    vW1 = 46
    vOa = 52
    vOb = 58
    wv(4 if cfg.X1PT else 3)
    for i in range(4): A(f'v_mov_b32_dpp v{vFl+i}, v{vFl+4+i} wave_shr:1 {DPPM}')
    for i in range(6): A(f'v_mov_b32 v{vW1+i}, v{vFl+1+i}')
    for i in range(6): A(f'v_alignbyte_b32 v{vOa+i}, v{vFl+i+1}, v{vFl+i}, 2')
    for i in range(6): A(f'v_alignbyte_b32 v{vOb+i}, v{vFl+i+2}, v{vFl+i+1}, 2')
    A(f'''
    v_lshrrev_b32 v{vT0}, 8, v0
    v_mul_u32_u24 v{vT0}, {UCH}, v{vT0}
    v_and_b32 v{vT1}, 255, v0
    v_lshl_add_u32 v{vT0}, v{vT1}, 4, v{vT0}
    v_add_u32 v{vT0}, {L_U}, v{vT0}
    v_add_u32 v{vT2}, {FL1}, v{vA}
    s_mov_b32 s{sMODE}, {0 if cfg.FORCE_SLOW else 1}
    s_waitcnt vmcnt(0)
    v_cmp_ne_u32 vcc, s{sXCC}, v{vMT}
    s_cbranch_vccnz L_modeslow
    L_modeback:
    s_cmp_eq_u32 s{sMODE}, 1
    s_cbranch_scc0 L_x1slow
    L_x1back:
    s_mov_b64 exec, 1
    ''')
    late.append(('L_x1slow', lambda: (A(f'global_store_dwordx4 v{vX1A}, {q4(vO)}, {P(sWS)} sc1'), A('s_waitcnt vmcnt(0)'), A('s_branch L_x1back'))))
    lstore(f'global_store_dword v{vT2}, v{vB}, {P(sWS)}')
    A('s_mov_b64 exec, -1')
    stamp('flag1')
    srcs = {0: vOa, 1: vW1, 2: vOb, 3: vFl + 2, 4: vOa + 2, 5: vW1 + 2, 6: vOb + 2, 7: vFl + 4}
    vUA = 97
    A(f'v_mov_b32 v{vUA}, v{vT0}')
    def uwrites():
        for c in range(8): A(f'ds_write_b128 v{vUA}, {q4(srcs[c])} offset:{c*USTR + 16}')
    A(f's_cmp_eq_u32 s{sWAVE}, 4')
    A('s_cbranch_scc1 L_nouw')
    uwrites()
    A('L_nouw:')
    vZ = 64
    for i in range(4): A(f'v_mov_b32 v{vZ+i}, 0')
    vXp = 100
    vXA = 108
    vXL = 109
    A(f'''
    v_mul_u32_u24 v{vT0}, {USTR}, v{vLANE}
    v_lshrrev_b32 v{vT1}, 5, v{vLANE}
    v_mul_u32_u24 v{vT1}, {KVS - 512}, v{vT1}
    v_lshl_add_u32 v{vT1}, v{vLANE}, 4, v{vT1}
    v_add_u32 v{vT1}, {L_KVR + 4096}, v{vT1}
    s_cmp_lg_u32 s{sWAVE}, 0
    s_cbranch_scc1 L_nz0
    s_mov_b64 exec, 0xffff
    ds_write_b128 v{vT0}, {q4(vZ)} offset:{L_U}
    s_mov_b64 exec, -1
    ds_write_b128 v{vT1}, {q4(vZ)}
    L_nz0:
    v_lshrrev_b32 v{vT0}, 3, v{vLANE}
    v_and_b32 v{vT1}, 7, v0
    v_lshl_add_u32 v{vT1}, s{sWAVE}, 3, v{vT1}
    v_lshlrev_b32 v{vT1}, 4, v{vT1}
    v_lshl_add_u32 v{vXA}, v{vT0}, 18, v{vT1}
    s_lshl_b32 s{sT0}, s{sM}, 13
    s_lshl_b32 s{sT1}, s{sG}, 10
    s_add_u32 s{sT0}, s{sT0}, s{sT1}
    v_add_u32 v{vXA}, s{sT0}, v{vXA}
    v_lshl_add_u32 v{vXL}, v{vT0}, 10, v{vT1}
    s_lshl_b32 s{sT0}, s{sWID}, 13
    v_add_u32 v{vXL}, s{sT0}, v{vXL}
    s_cmp_ge_u32 s{sWAVE}, 4
    s_cbranch_scc1 L_helper
    ''')
    vAA, vBA, vPW = 110, 111, 112
    vACC = 116
    vFA = [148, 180]
    vFB = [212, 46]
    A(f'''
    v_and_b32 v{vT0}, 15, v0
    v_lshrrev_b32 v{vT1}, 4, v{vLANE}
    v_and_b32 v{vT2}, 7, v0
    v_mul_u32_u24 v{vAA}, {USTR}, v{vT2}
    v_lshrrev_b32 v{vT2}, 3, v{vT0}
    v_add_u32 v{vT2}, v{vT2}, v{vT1}
    v_lshl_add_u32 v{vAA}, v{vT2}, 4, v{vAA}
    s_lshr_b32 s{sT0}, s{sWAVE}, 1
    s_and_b32 s{sT1}, s{sWAVE}, 1
    s_lshl_b32 s{sT1}, s{sT1}, 8
    s_mul_i32 s{sT2}, s{sT0}, {UCH}
    s_add_u32 s{sT2}, s{sT2}, s{sT1}
    s_add_u32 s{sT2}, s{sT2}, {L_U}
    v_add_u32 v{vAA}, s{sT2}, v{vAA}
    v_lshlrev_b32 v{vBA}, 4, v{vT1}
    v_lshlrev_b32 v{vT2}, 5, v{vT0}
    v_sub_u32 v{vBA}, v{vBA}, v{vT2}
    s_mul_i32 s{sT2}, s{sT0}, {KVS}
    s_add_u32 s{sT2}, s{sT2}, s{sT1}
    s_add_u32 s{sT2}, s{sT2}, {L_KVR + 480}
    v_add_u32 v{vBA}, s{sT2}, v{vBA}
    ''')
    def ldA(st, r, p): A(f'ds_read_b128 {q4(vFA[st]+4*p)}, v{vAA} offset:{64*r + 512*p}')
    def ldB(st, r, q): A(f'ds_read_b128 {q4(vFB[st]+4*q)}, v{vBA} offset:{(7-q)*512 + 64*r}')
    A(f'''
    v_lshl_add_u32 v{vT2}, v{vT1}, 2, v{vT0}
    v_and_b32 v{vT2}, 15, v{vT2}
    v_lshl_add_u32 v{vT2}, v{vT1}, 4, v{vT2}
    v_lshlrev_b32 v{vPW}, 4, v{vT2}
    s_lshl_b32 s{sT0}, s{sWAVE}, 13
    s_add_u32 s{sT0}, s{sT0}, {L_P}
    v_add_u32 v{vPW}, s{sT0}, v{vPW}
    s_waitcnt lgkmcnt(0)
    s_barrier
    s_setprio {cfg.PRIO}
    ''')
    for i in range(8): ldA(0, 0, i)
    A('s_waitcnt lgkmcnt(0)')
    A('s_barrier')
    stamp('B2')
    for i in range(8): ldB(0, 0, i)
    order = [(p, j - p) for j in range(8) for p in range(j + 1)]
    for r in range(4):
        st = r & 1
        nxt = [(k, i) for i in range(8) for k in 'AB'] if r < 3 else []
        issued = 0
        written = 0
        for n, (p, q) in enumerate(order):
            j = p + q
            if p == 0 and r == 0:
                A(f's_waitcnt lgkmcnt({min(15, 8 - (j+1) + issued)})')
            c = '0' if (r == 0 and p == 0) else q4(vACC + 4*j)
            A(f'v_mfma_f32_16x16x32_bf16 {q4(vACC+4*j)}, {q4(vFA[st]+4*p)}, {q4(vFB[st]+4*q)}, {c}')
            if nxt and issued < 16 and n >= (4 if r == 0 else 1):
                k, i = nxt[issued]
                (ldA if k == 'A' else ldB)(st ^ 1, r + 1, i); issued += 1
            if r == 3:
                while written < 8 and n >= written*(written+3)//2 + 9 and written <= j - 1:
                    A(f'ds_write_b128 v{vPW}, {q4(vACC+4*written)} offset:{1024*written}'); written += 1
        if r < 3: A('s_waitcnt lgkmcnt(0)')
        else:
            while written < 8:
                A(f'ds_write_b128 v{vPW}, {q4(vACC+4*written)} offset:{1024*written}'); written += 1
    A('s_setprio 0')
    A('s_branch L_s1join')
    A('L_helper:')
    vKD = 116
    vKV = 132
    vXo = 140
    vI0 = 220
    vDUM = 230
    vWRr = 231
    vGW = 164
    vF2, vD2 = 54, 55
    wr_ = [0]
    def wvr(n_s3only, n_both, n_gonly):
        wr_[0] += 1; k = wr_[0]
        A(f'''
        s_cmp_lg_u32 s{sPEND}, 3
        s_cbranch_scc1 L_wr{k}a
        s_waitcnt vmcnt({n_both})
        L_wr{k}b:
        ''')
        late.append((f'L_wr{k}a', lambda: (A(f's_waitcnt vmcnt({min(n_s3only, n_gonly)})') if n_s3only == n_gonly else
                     A(f'''s_cmp_eq_u32 s{sPEND}, 2
                     s_cbranch_scc1 L_wr{k}c
                     s_waitcnt vmcnt({n_gonly})
                     s_branch L_wr{k}b
                     L_wr{k}c:
                     s_waitcnt vmcnt({n_s3only})'''), A(f's_branch L_wr{k}b'))))
    A(f'''
    s_cmp_lt_u32 s{sM}, {NG0}
    s_cselect_b32 s{sT0}, 0, 1
    s_cmp_lt_u32 s{sM}, {NS3}
    s_cselect_b32 s{sT1}, 2, 0
    s_add_u32 s{sPEND}, s{sT0}, s{sT1}
    ''')
    vWA = 144
    sWB = 12
    def wblock(tag):
        A(f'''
        s_cmp_ge_u32 s{sM}, {NS3}
        s_cbranch_scc1 L_h_now{tag}
        s_lshl_b32 s{sT5}, s{sT4}, 12
        s_add_u32 s{sT5}, s{sT5}, {L_WGU}
        ''')
        for i in range(4):
            A(f's_mov_b32 m0, s{sT5}')
            A(f'global_load_lds_dwordx4 v{vWA}, {P(sWB)}')
            if i < 3:
                A(f'v_add_u32 v{vWA}, {16*3584}, v{vWA}')
                A(f's_add_u32 s{sT5}, s{sT5}, 1024')
        A(f'''
        s_lshl_b32 s{sT5}, s{sT4}, 11
        s_add_u32 s{sT5}, s{sT5}, {L_WGU + 16384}
        s_mov_b32 m0, s{sT5}
        s_add_u32 s{sT5}, s{sT5}, 1024
        global_load_lds_dwordx4 v{vWA+1}, {P(sWD)}
        s_mov_b32 m0, s{sT5}
        s_nop 0
        global_load_lds_dwordx4 v{vWA+2}, {P(sWD)}
        L_h_now{tag}:
        ''')
    vSt = 188
    for i in range(2): unpack(vSt + 2*i, vGC + i)
    for i in range(4): A(f'v_mul_f32 v{vSt+4+i}, 0xbfb8aa3b, v{vSt+i}')
    for i in range(4): A(f'v_exp_f32 v{vSt+4+i}, v{vSt+4+i}')
    for i in range(4): A(f'v_add_f32 v{vSt+4+i}, 1.0, v{vSt+4+i}')
    for i in range(4): A(f'v_rcp_f32 v{vSt+4+i}, v{vSt+4+i}')
    for i in range(4): A(f'v_mul_f32 v{vSt+i}, v{vSt+i}, v{vSt+4+i}')
    for i in range(2): A(f'v_cvt_pk_bf16_f32 v{vGC+i}, v{vSt+2*i}, v{vSt+2*i+1}')
    A(f'''
    s_sub_u32 s{sT4}, s{sWAVE}, 4
    s_min_u32 s{sT5}, s{sM}, {NS3-1}
    s_lshr_b32 s{sT0}, s{sT5}, 2
    s_mul_i32 s{sT3}, s{sG}, 7
    s_add_u32 s{sT0}, s{sT0}, s{sT3}
    s_lshl_b32 s{sT2}, s{sT0}, 6
    s_and_b32 s{sT1}, s{sM}, 3
    s_lshl_b32 s{sT3}, s{sT1}, 1
    s_and_b32 s{sT5}, s{sWAVE}, 1
    s_add_u32 s{sT3}, s{sT3}, s{sT5}
    s_mul_i32 s{sT3}, s{sT3}, {64*3584}
    s_add_u32 s{sT2}, s{sT2}, s{sT3}
    v_lshrrev_b32 v{vWA}, 2, v{vLANE}
    v_mul_u32_u24 v{vWA}, 3584, v{vWA}
    v_and_b32 v{vT2}, 3, v0
    v_lshl_add_u32 v{vWA}, v{vT2}, 4, v{vWA}
    v_add_u32 v{vWA}, s{sT2}, v{vWA}
    s_cmp_ge_u32 s{sWAVE}, 6
    s_cselect_b32 s{sWB}, s{sWU}, s{sWG}
    s_cselect_b32 s{sWB+1}, s{sWU+1}, s{sWG+1}
    s_lshl_b32 s{sT2}, s{sT0}, 15
    s_lshl_b32 s{sT3}, s{sT1}, 8
    s_add_u32 s{sT2}, s{sT2}, s{sT3}
    s_lshl_b32 s{sT3}, s{sT4}, 13
    s_add_u32 s{sT2}, s{sT2}, s{sT3}
    v_lshrrev_b32 v{vT2}, 4, v{vLANE}
    v_lshlrev_b32 v{vT2}, 10, v{vT2}
    v_and_b32 v{vT3}, 15, v0
    v_lshl_add_u32 v{vT2}, v{vT3}, 4, v{vT2}
    v_add_u32 v{vWA+1}, s{sT2}, v{vT2}
    v_add_u32 v{vWA+2}, 4096, v{vWA+1}
    s_max_u32 s{sT0}, s{sM}, {NG0}
    s_sub_u32 s{sT0}, s{sT0}, {NG0}
    s_lshr_b32 s{sT1}, s{sT0}, 2
    s_and_b32 s{sT3}, s{sT0}, 3
    s_lshl_b32 s{sT3}, s{sT3}, 7
    s_lshl_b32 s{sT5}, s{sT4}, 5
    s_add_u32 s{sT3}, s{sT3}, s{sT5}
    v_lshrrev_b32 v{vKV}, 3, v{vLANE}
    v_lshl_add_u32 v{vKV}, v{vKV}, 2, s{sT3}
    s_movk_i32 s{sT3}, 6144
    v_mul_lo_u32 v{vKV}, v{vKV}, s{sT3}
    v_and_b32 v{vT3}, 7, v0
    v_lshl_add_u32 v{vKV}, v{vT3}, 4, v{vKV}
    s_lshl_b32 s{sT1}, s{sT1}, 10
    s_lshl_b32 s{sT2}, s{sG}, 7
    s_add_u32 s{sT1}, s{sT1}, s{sT2}
    v_add_u32 v{vKV}, s{sT1}, v{vKV}
    v_lshl_add_u32 v{vKV+2}, v{vLANE}, 1, s{sT2}
    v_subrev_u32 v{vKV+3}, 0x8000, v{vJR}
    s_cmp_lg_u32 s{sWAVE}, 4
    s_cbranch_scc1 L_h_b2a
    s_lshr_b32 s{sT2}, s{sM}, 2
    s_lshl_b32 s{sT2}, s{sT2}, 7
    s_lshl_b32 s{sT1}, s{sG}, 10
    s_add_u32 s{sT2}, s{sT2}, s{sT1}
    s_add_u32 s{sT2}, s{sT2}, {FL1}
    v_and_b32 v{vT0}, 31, v0
    v_lshl_add_u32 v{vT0}, v{vT0}, 2, s{sT2}
    s_lshl_b32 s{sT0}, s{sWID}, 13
    s_add_u32 s{sT0}, s{sT0}, {XB1}
    v_lshl_add_u32 v{vT1}, v{vLANE}, 4, s{sT0}
    v_add_u32 v{vT3}, 4096, v{vT1}
    s_mov_b32 m0, {L_KVR}
    ''')
    poll('L_poll1', f'global_load_dword v{vT2}, v{vT0}, {P(sWS)} sc1', f'v_cmp_ne_u32 vcc, s{sTAG}, v{vT2}')
    for i in range(4): A(f'global_load_lds_dwordx4 v{vT1}, {P(sWS)} offset:{1024*i} sc1')
    A(f's_mov_b32 m0, {L_KVR + KVS}')
    for i in range(4): A(f'global_load_lds_dwordx4 v{vT3}, {P(sWS)} offset:{1024*i} sc1')
    stamp('poll1')
    uwrites()
    A(f'''
    L_h_b2a:
    s_waitcnt lgkmcnt(0)
    s_barrier
    global_load_dwordx4 {q4(vX)}, v{vJR}, {P(sX)}
    global_load_dwordx4 {q4(vXo)}, v{vKV+3}, {P(sX)}
    global_load_ushort v{vWRr}, v{vKV+2}, {P(sWR)}
    s_cmp_lt_u32 s{sM}, {NG0}
    s_cbranch_scc1 L_h_nog
    ''')
    for i in range(4):
        A(f'global_load_dwordx4 {q4(vGW+4*i)}, v{vKV}, {P(sWM)}')
        if i < 3: A(f'v_add_u32 v{vKV}, s{sT3}, v{vKV}')
    A('L_h_nog:')
    wvr(3, 7, 7)
    A('s_barrier')
    wblock('a')
    A(f'''
    s_lshl_b32 s{sT0}, s{sWAVE}, 9
    s_sub_u32 s{sT0}, {L_KVR + 4088}, s{sT0}
    v_lshlrev_b32 v{vT0}, 3, v{vLANE}
    v_sub_u32 v{vT0}, s{sT0}, v{vT0}
    ds_read_b64 {pr(vKV)}, v{vT0}
    ds_read_b64 {pr(vKV+2)}, v{vT0} offset:{KVS}
    ds_read_b64 {pr(vKV+4)}, v{vT0} offset:2048
    ds_read_b64 {pr(vKV+6)}, v{vT0} offset:{KVS+2048}
    s_lshl_b32 s{sD0}, s{sDV}, 16
    s_and_b32 s{sD1}, s{sDV}, s{sMASK}
    s_waitcnt lgkmcnt(0)
    ''')
    for t in range(2):
        for c in range(2):
            b = vKD + 8*t + 4*c; s = vKV + 4*t + 2*c
            A(f'v_and_b32 v{b}, s{sMASK}, v{s+1}')
            A(f'v_lshlrev_b32 v{b+1}, 16, v{s+1}')
            A(f'v_and_b32 v{b+2}, s{sMASK}, v{s}')
            A(f'v_lshlrev_b32 v{b+3}, 16, v{s}')
            for i in range(4): A(f'v_mul_f32 v{b+i}, s{sD0+c}, v{b+i}')
            for i in range(4): rnd(b + i)
    A(f'''
    s_lshl_b32 s{sT1}, s{sT4}, 11
    s_add_u32 s{sT1}, s{sT1}, {L_KD}
    v_lshl_add_u32 v{vT0}, v{vLANE}, 4, s{sT1}
    ds_write_b128 v{vT0}, {q4(vKD+8)}
    ds_write_b128 v{vT0}, {q4(vKD+12)} offset:1024
    ''')
    A(f'''
    s_lshl_b32 s{sT1}, s{sT4}, 10
    s_add_u32 s{sT1}, s{sT1}, {L_XS}
    v_lshl_add_u32 v{vT0}, v{vLANE}, 4, s{sT1}
    ''')
    wvr(7, 11, 5)
    A(f'ds_write_b128 v{vT0}, {q4(vXo)}')
    vXq = 186
    vS0 = 196
    for i in range(4): unpack(vXp + 2*i, vX + i)
    for i in range(4): unpack(vXq + 2*i, vXo + i)
    for (xb, u, t) in ((vXp, vS0, 204), (vXq, vS0 + 4, 208)):
        A(f'v_pk_add_f32 {pr(t)}, {pr(xb)}, {pr(xb+2)}')
        A(f'v_pk_mul_f32 {pr(t+2)}, {pr(xb)}, {pr(xb)}')
        for i in range(1, 4): A(f'v_pk_fma_f32 {pr(t+2)}, {pr(xb+2*i)}, {pr(xb+2*i)}, {pr(t+2)}')
        for i in range(2, 4): A(f'v_pk_add_f32 {pr(t)}, {pr(t)}, {pr(xb+2*i)}')
        A(f'v_add_f32 v{u}, v{t}, v{t+1}')
        A(f'v_add_f32 v{u+2}, v{t+2}, v{t+3}')
    allred([vS0, vS0 + 2, vS0 + 4, vS0 + 6], [204, 205, 206, 207])
    A(f'''
    v_mov_b32 v{vS0+1}, s{sTAG}
    v_mov_b32 v{vS0+3}, s{sTAG}
    v_mov_b32 v{vS0+5}, s{sTAG}
    v_mov_b32 v{vS0+7}, s{sTAG}
    v_add_u32 v{vT0}, {X0 - 512}, v{vXA}
    global_store_dwordx4 v{vT0}, {q4(vS0)}, {P(sWS)} offset:512 sc1
    global_store_dwordx4 v{vT0}, {q4(vS0+4)}, {P(sWS)} sc1
    ''')
    stamp('gemv0')
    def gemv_block(nb, ng):
        A(f'''
        s_cmp_lt_u32 s{sM}, {NG0}
        s_cbranch_scc1 L_g_done
        s_cmp_lt_u32 s{sWAVE}, 4
        s_cbranch_scc1 L_g_done
        ''')
        wvr(63, nb, ng)
        vSC = vGC
        vGA = 204
        vGP = 212
        A(f's_mov_b32 s{sT0}, 0x05040100')
        A(f's_mov_b32 s{sT1}, 0x07060302')
        for rp in range(2):
            w0, w1 = vGW + 8*rp, vGW + 8*rp + 4
            for d in range(4):
                A(f'v_perm_b32 v{vGP+2*d}, v{w1+d}, v{w0+d}, s{sT0}')
                A(f'v_perm_b32 v{vGP+2*d+1}, v{w1+d}, v{w0+d}, s{sT1}')
            for c in range(8): A(f'v_dot2_f32_bf16 v{vGA+c}, v{vGP+c}, v{vSC+rp}, ' + (f'v{vGA+c}' if rp else '0'))
        for c in range(4): A(f'v_permlane32_swap_b32 v{vGA+c}, v{vGA+c+4}')
        for c in range(4): A(f'v_add_f32 v{vGA+c}, v{vGA+c}, v{vGA+c+4}')
        for c in range(2): A(f'v_permlane16_swap_b32 v{vGA+c}, v{vGA+c+2}')
        for c in range(2): A(f'v_add_f32 v{vGA+c}, v{vGA+c}, v{vGA+c+2}')
        for c in range(2): A(f'v_add_f32_dpp v{vGA+c}, v{vGA+c}, v{vGA+c} row_ror:8 {DPPM}')
        A(f'''
        v_and_b32 v{vT0}, 8, v0
        v_cmp_ne_u32 vcc, 0, v{vT0}
        v_cndmask_b32 v{vGA}, v{vGA}, v{vGA+1}, vcc
        v_and_b32 v{vT0}, 7, v0
        v_lshrrev_b32 v{vT1}, 3, v{vLANE}
        v_lshl_add_u32 v{vT0}, v{vT0}, 3, v{vT1}
        s_sub_u32 s{sT0}, s{sWAVE}, 4
        s_lshl_b32 s{sT0}, s{sT0}, 8
        s_add_u32 s{sT0}, s{sT0}, {L_GP}
        v_lshl_add_u32 v{vT0}, v{vT0}, 2, s{sT0}
        ds_write_b32 v{vT0}, v{vGA}
        v_mov_b32 v{vT1}, {L_CNT}
        v_mov_b32 v{vT2}, 1
        s_waitcnt lgkmcnt(0)
        s_mov_b64 exec, 1
        ds_add_rtn_u32 v{vT2}, v{vT1}, v{vT2}
        s_mov_b64 exec, -1
        s_waitcnt lgkmcnt(0)
        v_readfirstlane_b32 s{sT0}, v{vT2}
        s_cmp_lg_u32 s{sT0}, 3
        s_cbranch_scc1 L_g_done
        v_lshlrev_b32 v{vT0}, 2, v{vLANE}
        ds_read2st64_b32 {pr(vGA)}, v{vT0} offset0:{L_GP//256} offset1:{L_GP//256+1}
        ds_read2st64_b32 {pr(vGA+2)}, v{vT0} offset0:{L_GP//256+2} offset1:{L_GP//256+3}
        s_sub_u32 s{sT0}, s{sM}, {NG0}
        s_lshl_b32 s{sT0}, s{sT0}, 9
        s_lshl_b32 s{sT1}, s{sG}, 14
        s_add_u32 s{sT0}, s{sT0}, s{sT1}
        s_add_u32 s{sT0}, s{sT0}, {MODP}
        v_lshl_add_u32 v{vT0}, v{vLANE}, 3, s{sT0}
        s_waitcnt lgkmcnt(0)
        v_pk_add_f32 {pr(vGA)}, {pr(vGA)}, {pr(vGA+2)}
        v_add_f32 v{vGA}, v{vGA}, v{vGA+1}
        v_mov_b32 v{vGA+1}, s{sTAG}
        ''')
        lstore(f'global_store_dwordx2 v{vT0}, {pr(vGA)}, {P(sWS)}')
        A('L_g_done:')
    if cfg.GPOS == 's1': gemv_block(8, 2)
    A('L_s1join:')
    stamp('s1join')
    vPp0 = 148
    vKDe = 116
    vMn, vInv = 64, 65
    vH = 232
    vPar = 164
    vU = 46
    def rdpar(lst):
        for pi in lst:
            A(f'ds_read_b128 {q4(vPar+8*pi)}, v{vPA} offset:{L_MOD + 256*pi}')
            A(f'ds_read_b128 {q4(vPar+8*pi+4)}, v{vPA} offset:{L_MOD + 256*pi + 16}')
    A(f'''
    v_lshrrev_b32 v{vT0}, 2, v{vLANE}
    v_and_b32 v{vT1}, 3, v0
    v_lshl_add_u32 v{vT0}, v{vT1}, 2, v{vT0}
    v_and_b32 v{vT0}, 15, v{vT0}
    v_lshl_add_u32 v{vT0}, v{vT1}, 4, v{vT0}
    v_lshlrev_b32 v{vT0}, 4, v{vT0}
    s_lshl_b32 s{sT0}, s{sWAVE}, 10
    s_add_u32 s{sT1}, s{sT0}, {L_P}
    v_add_u32 v{vT0}, s{sT1}, v{vT0}
    s_lshl_b32 s{sT1}, s{sWAVE}, 11
    s_add_u32 s{sT1}, s{sT1}, {L_KD}
    v_lshl_add_u32 v{vT1}, v{vLANE}, 4, s{sT1}
    s_lshl_b32 s{sT2}, s{sWID}, 13
    s_add_u32 s{sT2}, s{sT2}, {XB1}
    v_lshl_add_u32 v{vT2}, v0, 4, s{sT2}
    v_lshlrev_b32 v{vT3}, 4, v0
    v_add_u32 v{vT3}, {L_XS}, v{vT3}
    v_lshrrev_b32 v{vPA}, 3, v{vLANE}
    v_lshlrev_b32 v{vPA}, 5, v{vPA}
    s_waitcnt lgkmcnt(0)
    s_barrier
    ''')
    for w in range(4): A(f'ds_read_b128 {q4(vPp0+4*w)}, v{vT0} offset:{8192*w}')
    A(f'''
    s_cmp_ge_u32 s{sWAVE}, 4
    s_cbranch_scc1 L_nokd
    ds_read_b128 {q4(vKDe)}, v{vT1}
    ds_read_b128 {q4(vKDe+4)}, v{vT1} offset:1024
    ds_read_b128 {q4(vX)}, v{vT3}
    L_nokd:
    s_waitcnt lgkmcnt(0)
    ''')
    for c in range(2):
        for h in range(2): A(f'v_pk_add_f32 {pr(vPp0+8*c+2*h)}, {pr(vPp0+8*c+2*h)}, {pr(vPp0+8*c+4+2*h)}')
    for c in range(2):
        for i in range(4): rnd(vPp0 + 8*c + i)
    for c in range(2):
        for h in range(2): A(f'v_pk_add_f32 {pr(vPp0+8*c+2*h)}, {pr(vPp0+8*c+2*h)}, {pr(vKDe+4*c+2*h)}')
    for i in range(4): A(f'v_cvt_pk_bf16_f32 v{vPp0+4+i}, v{vPp0+i}, v{vPp0+8+i}')
    lstore(f'global_store_dwordx4 v{vT2}, {q4(vPp0+4)}, {P(sWS)}')
    stamp('zst')
    vMQ = 140
    vXCA = 139
    vZA = 68
    A(f'''
    v_mov_b32 v{vXCA}, 0
    s_min_u32 s{sT5}, s{sWAVE}, 5
    s_cmp_eq_u32 s{sWAVE}, 6
    s_cselect_b32 s{sT5}, 3, s{sT5}
    s_cmp_eq_u32 s{sWAVE}, 7
    s_cselect_b32 s{sT5}, 4, s{sT5}
    s_lshl_b32 s{sT1}, s{sT5}, 11
    s_lshl_b32 s{sT2}, s{sG}, 14
    s_add_u32 s{sT1}, s{sT1}, s{sT2}
    s_add_u32 s{sT1}, s{sT1}, {MODP}
    v_lshl_add_u32 v{vD2+1}, v{vLANE}, 4, s{sT1}
    v_add_u32 v{vD2+2}, {X0}, v{vXL}
    ''')
    modld = '\n'.join([f'global_load_dwordx4 {q4(vMQ+4*i)}, v{vD2+1}, {P(sWS)} offset:{1024*i} sc1' for i in range(2)])
    chk = [f'v_xor_b32 v{vMQ+2*i+1}, s{sTAG}, v{vMQ+2*i+1}' for i in range(4)]
    chk += [f'v_or3_b32 v{vMQ+1}, v{vMQ+1}, v{vMQ+3}, v{vMQ+5}', f'v_or_b32 v{vMQ+1}, v{vMQ+1}, v{vMQ+7}', f'v_cmp_ne_u32 vcc, 0, v{vMQ+1}']
    x0ld = f'global_load_dwordx4 {q4(vI0)}, v{vD2+2}, {P(sWS)} sc1'
    x0chk = f'''v_xor_b32 v{vI0+1}, s{sTAG}, v{vI0+1}
         v_xor_b32 v{vI0+3}, s{sTAG}, v{vI0+3}
         v_or_b32 v{vI0+1}, v{vI0+1}, v{vI0+3}
         v_cmp_ne_u32 vcc, 0, v{vI0+1}'''
    A(x0ld)
    for i in range(4): unpack(vXp + 2*i, vX + i)
    if cfg.GPOS == 'zst': gemv_block(10, 4)
    A(f'''
    v_add_u32 v{vT1}, {FL2}, v{vA}
    s_lshr_b32 s{sT2}, s{sM}, 2
    s_lshl_b32 s{sT2}, s{sT2}, 7
    s_lshl_b32 s{sT3}, s{sG}, 10
    s_add_u32 s{sT2}, s{sT2}, s{sT3}
    s_lshl_b32 s{sT3}, s{sWAVE}, 4
    s_add_u32 s{sT2}, s{sT2}, s{sT3}
    s_add_u32 s{sT2}, s{sT2}, {FL2}
    v_and_b32 v{vF2}, 3, v0
    v_lshl_add_u32 v{vF2}, v{vF2}, 2, s{sT2}
    s_lshl_b32 s{sT3}, s{sWAVE}, 1
    v_subrev_u32 v{vD2}, s{sT3}, v0
    v_and_b32 v{vD2}, 15, v{vD2}
    v_lshlrev_b32 v{vD2}, 4, v{vD2}
    v_lshrrev_b32 v{vT2}, 4, v0
    v_lshl_add_u32 v{vD2}, v{vT2}, 13, v{vD2}
    s_lshl_b32 s{sT2}, s{sG}, 18
    s_lshl_b32 s{sT3}, s{sM}, 8
    s_add_u32 s{sT2}, s{sT2}, s{sT3}
    s_add_u32 s{sT2}, s{sT2}, {XB1}
    v_add_u32 v{vD2}, s{sT2}, v{vD2}
    s_lshl_b32 s{sT2}, s{sWAVE}, 10
    s_add_u32 s{sT2}, s{sT2}, {L_Z}
    s_mov_b32 m0, s{sT2}
    v_lshrrev_b32 v{vT0}, 3, v{vLANE}
    v_bfe_u32 v{vT2}, v0, 2, 1
    v_lshl_add_u32 v{vT2}, s{sWAVE}, 1, v{vT2}
    v_lshl_add_u32 v{vT2}, v{vT0}, 1, v{vT2}
    v_and_b32 v{vT2}, 15, v{vT2}
    v_lshlrev_b32 v{vT2}, 4, v{vT2}
    v_lshl_add_u32 v{vZA}, v{vT0}, 10, v{vT2}
    v_and_b32 v{vT2}, 3, v0
    v_lshl_add_u32 v{vZA}, v{vT2}, 2, v{vZA}
    s_mov_b32 s{sT0}, s{sT5}
    s_waitcnt vmcnt(1)
    s_mov_b64 exec, 1
    ''')
    lstore(f'global_store_dword v{vT1}, v{vB}, {P(sWS)}')
    A('s_mov_b64 exec, -1')
    stamp('flag2')
    A(modld)
    A('s_waitcnt vmcnt(3)')
    A(x0chk)
    A('s_cbranch_vccnz L_pollx0')
    A('L_pollx0_back:')
    late.append(('L_pollx0', lambda: (poll('L_pollx0b', x0ld, x0chk), A('s_nop 1'), A('s_branch L_pollx0_back'))))
    allred([vI0, vI0 + 2], [vI0 + 1, vI0 + 3])
    lnstats(vI0, vI0 + 2, vI0 + 1, vMn, vInv)
    for i in range(8): A(f'v_sub_f32 v{vH+i}, v{vXp+i}, v{vMn}')
    for i in range(8): rnd(vH + i)
    for i in range(8): A(f'v_mul_f32 v{vH+i}, v{vH+i}, v{vInv}')
    for i in range(8): rnd(vH + i)
    A('s_waitcnt vmcnt(0)')
    A('\n'.join(chk))
    A('s_cbranch_vccnz L_pollm')
    A('L_pollm_back:')
    late.append(('L_pollm', lambda: (poll('L_pollmb', modld, '\n'.join(chk)), A('s_branch L_pollm_back'))))
    stamp('modok')
    A(f'global_load_dword v{vI0}, v{vF2}, {P(sWS)} sc1')
    A(f'v_add_f32 v{vMQ}, v{vMQ}, v{vMQ+4}')
    A(f'v_add_f32 v{vMQ+2}, v{vMQ+2}, v{vMQ+6}')
    A(f'''
    v_permlane32_swap_b32 v{vMQ}, v{vMQ+2}
    v_add_f32 v{vMQ}, v{vMQ}, v{vMQ+2}
    v_cvt_pk_bf16_f32 v{vMQ}, 0, v{vMQ}
    v_add_f32 v{vMQ+1}, 1.0, v{vMQ}
    v_cvt_pk_bf16_f32 v{vMQ+1}, 0, v{vMQ+1}
    s_cmp_eq_u32 s{sT0}, 1
    s_cselect_b64 vcc, -1, 0
    s_cmp_eq_u32 s{sT0}, 4
    s_cselect_b64 vcc, -1, vcc
    v_cndmask_b32 v{vMQ}, v{vMQ}, v{vMQ+1}, vcc
    v_and_b32 v{vT0}, 31, v0
    v_lshrrev_b32 v{vT1}, 5, v{vLANE}
    v_lshl_add_u32 v{vT0}, v{vT0}, 1, v{vT1}
    v_lshlrev_b32 v{vT0}, 2, v{vT0}
    s_cmp_ge_u32 s{sWAVE}, 6
    s_cbranch_scc1 L_m67
    s_lshl_b32 s{sT1}, s{sT0}, 8
    v_add_u32 v{vT0}, s{sT1}, v{vT0}
    ds_write_b32 v{vT0}, v{vMQ} offset:{L_MOD}
    s_branch L_mjoin
    L_m67:
    ds_bpermute_b32 v{vT1}, v{vT0}, v{vWRr}
    s_waitcnt lgkmcnt(0)
    v_lshlrev_b32 v{vT1}, 16, v{vT1}
    v_mul_f32 v{vMQ+4}, v{vMQ}, v{vT1}
    s_cmp_eq_u32 s{sWAVE}, 7
    s_cselect_b32 s{sT1}, 0, 256
    s_cselect_b32 s{sT2}, 0, 8
    v_add_u32 v{vT0}, s{sT1}, v{vT0}
    ds_write_b32 v{vT0}, v{vMQ+4} offset:{L_MOD + 6*256}
    ''')
    fullred([vMQ + 4], [vMQ + 6])
    A(f'''
    v_mov_b32 v{vMQ+5}, s{sTAG}
    s_lshl_b32 s{sT0}, s{sM}, 7
    s_lshl_b32 s{sT1}, s{sG}, 4
    s_add_u32 s{sT0}, s{sT0}, s{sT1}
    s_add_u32 s{sT0}, s{sT0}, s{sT2}
    s_add_u32 s{sT0}, s{sT0}, {XC}
    v_lshl_add_u32 v{vXCA}, v{vLANE}, 12, s{sT0}
    L_mjoin:
    ''')
    A(f'''
    s_waitcnt vmcnt(0)
    v_cmp_ne_u32 vcc, s{sTAG}, v{vI0}
    s_mov_b32 s{sT4}, 0
    s_cbranch_vccnz L_p2n
    global_load_lds_dwordx4 v{vD2}, {P(sWS)} sc1
    s_mov_b32 s{sT4}, 1
    L_p2n:
    s_waitcnt lgkmcnt(0)
    s_barrier
    ''')
    rdpar((1, 0, 2, 6))
    A('s_waitcnt lgkmcnt(4)')
    for i in range(8): A(f'v_mul_f32 v{vH+i}, v{vH+i}, v{vPar+8+i}')
    for i in range(8): rnd(vH + i)
    for i in range(8): A(f'v_add_f32 v{vH+i}, v{vH+i}, v{vPar+i}')
    for i in range(8): rnd(vH + i)
    A(f'''
    s_cmp_eq_u32 s{sT4}, 1
    s_cbranch_scc1 L_p2d
    ''')
    poll('L_poll2', f'global_load_dword v{vT2}, v{vF2}, {P(sWS)} sc1', f'v_cmp_ne_u32 vcc, s{sTAG}, v{vT2}')
    A(f'global_load_lds_dwordx4 v{vD2}, {P(sWS)} sc1')
    A('L_p2d:')
    stamp('poll2')
    stamp('hdone')
    A('s_waitcnt vmcnt(0)')
    A('s_barrier')
    A(f'''
    s_cmp_lt_u32 s{sWAVE}, 6
    s_cbranch_scc1 L_noxc
    s_mov_b64 exec, 0xff
    global_store_dwordx2 v{vXCA}, {pr(vMQ+4)}, {P(sWS)} sc1
    s_mov_b64 exec, -1
    L_noxc:
    ''')
    stamp('B4')
    vZr = 70
    vZ1 = 74
    vSQ = 82
    A(f'ds_read2st64_b32 {pr(vZr)}, v{vZA} offset0:{L_Z//256} offset1:{L_Z//256+1}')
    A(f'ds_read2st64_b32 {pr(vZr+2)}, v{vZA} offset0:{L_Z//256+2} offset1:{L_Z//256+3}')
    A(f'v_add_u32 v{vT0}, {X3}, v{vXA}')
    A('s_waitcnt lgkmcnt(0)')
    for i in range(4): unpack(vZ1 + 2*i, vZr + i)
    for i in range(8): A(f'v_mul_f32 v{vZ1+i}, v{vZ1+i}, v{vH+i}')
    for i in range(8): rnd(vZ1 + i)
    for i in range(8): A(f'v_mul_f32 v{vZ1+i}, v{vZ1+i}, v{vPar+16+i}')
    for i in range(8): rnd(vZ1 + i)
    for i in range(8): A(f'v_add_f32 v{vZ1+i}, v{vZ1+i}, v{vXp+i}')
    for i in range(8): rnd(vZ1 + i)
    S_, Q_, P_ = vSQ, vSQ + 2, vSQ + 4
    A(f'v_pk_add_f32 {pr(S_)}, {pr(vZ1)}, {pr(vZ1+2)}')
    A(f'v_pk_mul_f32 {pr(Q_)}, {pr(vZ1)}, {pr(vZ1)}')
    A(f'v_pk_mul_f32 {pr(P_)}, {pr(vZ1)}, {pr(vPar+48)}')
    for i in range(1, 4):
        A(f'v_pk_fma_f32 {pr(Q_)}, {pr(vZ1+2*i)}, {pr(vZ1+2*i)}, {pr(Q_)}')
        A(f'v_pk_fma_f32 {pr(P_)}, {pr(vZ1+2*i)}, {pr(vPar+48+2*i)}, {pr(P_)}')
        if i >= 2: A(f'v_pk_add_f32 {pr(S_)}, {pr(S_)}, {pr(vZ1+2*i)}')
    vUn = vSQ + 6
    A(f'v_add_f32 v{vUn}, v{S_}, v{S_+1}')
    A(f'v_add_f32 v{vUn+1}, v{Q_}, v{Q_+1}')
    A(f'v_add_f32 v{vUn+2}, v{P_}, v{P_+1}')
    A(f'v_mov_b32 v{vUn+3}, s{sTAG}')
    allred([vUn, vUn + 1, vUn + 2], [S_, Q_, P_])
    A(f'global_store_dwordx4 v{vT0}, {q4(vUn)}, {P(sWS)} sc1')
    stamp('x3st')
    rdpar((3, 4, 5))
    if cfg.WBL2:
        A(f'''
        s_cmp_lg_u32 s{sM}, 31
        s_cbranch_scc1 L_nowb
        s_cmp_lg_u32 s{sWAVE}, 7
        s_cbranch_scc1 L_nowb
        buffer_wbl2 sc1
        L_nowb:
        ''')
    if cfg.WDPOS == 'x3':
        A(f'''
        s_cmp_ge_u32 s{sM}, {NS3}
        s_cbranch_scc1 L_nowd
        s_lshr_b32 s{sT0}, s{sM}, 2
        s_mul_i32 s{sT1}, s{sG}, 7
        s_add_u32 s{sT0}, s{sT0}, s{sT1}
        s_and_b32 s{sT1}, s{sM}, 3
        s_lshl_b32 s{sT4}, s{sWAVE}, 10
        s_add_u32 s{sT4}, s{sT4}, {L_WGU + 16384}
        s_mov_b32 m0, s{sT4}
        s_lshl_b32 s{sT2}, s{sT0}, 15
        s_lshl_b32 s{sT3}, s{sT1}, 8
        s_add_u32 s{sT2}, s{sT2}, s{sT3}
        v_lshrrev_b32 v{vT2}, 4, v0
        v_lshlrev_b32 v{vT2}, 10, v{vT2}
        v_and_b32 v{vT3}, 15, v0
        v_lshl_add_u32 v{vT2}, v{vT3}, 4, v{vT2}
        v_add_u32 v{vT2}, s{sT2}, v{vT2}
        global_load_lds_dwordx4 v{vT2}, {P(sWD)}
        L_nowd:
        ''')
    A(f'''
    s_lshr_b32 s{sT2}, s{sM}, 2
    s_lshl_b32 s{sT2}, s{sT2}, 5
    s_lshl_b32 s{sT3}, s{sG}, 2
    s_add_u32 s{sT2}, s{sT2}, s{sT3}
    s_and_b32 s{sT3}, s{sM}, 3
    s_add_u32 s{sT2}, s{sT2}, s{sT3}
    s_mul_i32 s{sPT}, s{sT2}, {NPROD*64}
    s_add_u32 s{sPT}, s{sPT}, {PART}
    v_lshrrev_b32 v{vT1}, 3, v{vLANE}
    s_lshl_b32 s{sT0}, s{sWID}, 7
    s_add_u32 s{sT0}, s{sT0}, {XC}
    v_lshl_add_u32 v{vT1}, v{vT1}, 4, s{sT0}
    v_add_u32 v{vT0}, {X3}, v{vXL}
    ''')
    poll('L_pollc', f'global_load_dwordx4 {q4(vU+4)}, v{vT1}, {P(sWS)} sc1',
         f'''v_xor_b32 v{vT2}, s{sTAG}, v{vU+5}
         v_xor_b32 v{vT3}, s{sTAG}, v{vU+7}
         v_or_b32 v{vT2}, v{vT2}, v{vT3}
         v_cmp_ne_u32 vcc, 0, v{vT2}''')
    stamp('xcok')
    vR3 = 92
    A(f'global_load_dwordx4 {q4(vR3)}, v{vT0}, {P(sWS)} sc1')
    allred([vU + 4, vU + 6], [S_, Q_])
    A(f'''
    v_and_b32 v{vT1}, 7, v0
    v_lshl_add_u32 v{vT1}, s{sWAVE}, 3, v{vT1}
    s_lshl_b32 s{sT0}, s{sM}, 6
    s_sub_u32 s{sT0}, 2047, s{sT0}
    v_sub_u32 v{vU}, s{sT0}, v{vT1}
    v_lshlrev_b32 v{vU+1}, 2, v{vT1}
    v_mov_b32 v{vT2}, 0
    ds_write_b32 v{vU+1}, v{vT2} offset:{L_ST}
    s_waitcnt vmcnt(0)
    v_cmp_ne_u32 vcc, s{sTAG}, v{vR3+3}
    s_cbranch_vccnz L_poll3
    L_poll3_back:
    ''')
    late.append(('L_poll3', lambda: (poll('L_poll3b', f'global_load_dwordx4 {q4(vR3)}, v{vT0}, {P(sWS)} sc1', f'v_cmp_ne_u32 vcc, s{sTAG}, v{vR3+3}'),
                 A('s_nop 1'), A('s_branch L_poll3_back'))))
    stamp('x3ok')
    allred([vR3, vR3 + 1, vR3 + 2], [S_, Q_, P_])
    lnstats(vR3, vR3 + 1, S_, vMn, vInv)
    vKey = 96
    A(f'''
    v_fma_f32 v{vKey}, -v{vMn}, v{vU+4}, v{vR3+2}
    v_fma_f32 v{vKey}, v{vKey}, v{vInv}, v{vU+6}
    v_cvt_pk_bf16_f32 v{vKey}, 0, v{vKey}
    v_ashrrev_i32 v{vT0}, 31, v{vKey}
    v_or_b32 v{vT0}, 0x80000000, v{vT0}
    v_and_b32 v{vT0}, s{sMASK}, v{vT0}
    v_xor_b32 v{vKey}, v{vKey}, v{vT0}
    v_or_b32 v{vKey}, v{vKey}, v{vU}
    ds_write_b32 v{vU+1}, v{vKey} offset:{L_KEY}
    s_waitcnt lgkmcnt(0)
    s_barrier
    ds_read_b128 {q4(vR3)}, v{vPA} offset:{L_KEY}
    ds_read_b128 {q4(vSQ)}, v{vPA} offset:{L_KEY+16}
    ''')
    vH2 = 56
    for i in range(8): A(f'v_sub_f32 v{vH2+i}, v{vZ1+i}, v{vMn}')
    for i in range(8): rnd(vH2 + i)
    A('s_waitcnt lgkmcnt(0)')
    vRk = 97
    A(f'v_mov_b32 v{vRk}, 0')
    ks = [vR3 + i for i in range(4)] + [vSQ + i for i in range(4)]
    for half in range(2):
        for i in range(4): A(f'v_cmp_gt_u32 {P(sC0+2*i)}, v{ks[4*half+i]}, v{vKey}')
        for i in range(4): A(f'v_addc_co_u32 v{vRk}, {P(sC0+2*i)}, 0, v{vRk}, {P(sC0+2*i)}')
    allred([vRk], [vT0], add='v_add_u32')
    A(f'''
    s_lshl_b32 s{sT0}, s{sWID}, 6
    s_add_u32 s{sT0}, s{sT0}, {KEYS}
    v_lshl_add_u32 v{vT0}, v{vRk}, 3, s{sT0}
    v_mov_b32 v{vR3}, v{vKey}
    v_mov_b32 v{vR3+1}, s{sTAG}
    v_cmp_gt_u32 {P(sEX)}, 8, v{vRk}
    s_and_b64 exec, {P(sEX)}, 0xff
    s_cbranch_execz L_nokey
    ''')
    lstore(f'global_store_dwordx2 v{vT0}, {pr(vR3)}, {P(sWS)}')
    A('L_nokey:')
    A('s_mov_b64 exec, -1')
    stamp('keyst')
    vWf = 130
    vKs = 154
    vM2, vM1 = 163, 164
    vRow = vKs + 2
    vPk = 110
    vOut = 126
    def h2calc():
        for i in range(8): A(f'v_mul_f32 v{vH2+i}, v{vH2+i}, v{vInv}')
        for i in range(8): rnd(vH2 + i)
        for i in range(8): A(f'v_mul_f32 v{vH2+i}, v{vH2+i}, v{vPar+32+i}')
        for i in range(8): rnd(vH2 + i)
        for i in range(8): A(f'v_add_f32 v{vH2+i}, v{vH2+i}, v{vPar+24+i}')
        for i in range(4):
            A(f'v_cvt_pk_bf16_f32 v{vPk+2*i}, v{vH2+2*i}, v{vH2+2*i+1}')
            A(f'v_mov_b32 v{vPk+2*i+1}, s{sTAG}')
        for i in range(4):
            A(f'v_cvt_pk_bf16_f32 v{vPk+8+2*i}, v{vZ1+2*i}, v{vZ1+2*i+1}')
            A(f'v_mov_b32 v{vPk+8+2*i+1}, s{sTAG}')
    def outcalc():
        for i in range(4): unpack(vH2 + 2*i, vPk + 2*i)
        for i in range(8): A(f'v_mul_f32 v{vH2+i}, v{vH2+i}, v{vPar+40+i}')
        for i in range(8): rnd(vH2 + i)
        for i in range(8): A(f'v_add_f32 v{vH2+i}, v{vH2+i}, v{vZ1+i}')
        for i in range(4): A(f'v_cvt_pk_bf16_f32 v{vOut+i}, v{vH2+2*i}, v{vH2+2*i+1}')
    def outstore():
        A(f'''
        s_andn2_b64 exec, exec, {P(sEX)}
        s_cbranch_execz L_noout2
        global_store_dwordx4 v{vJR}, {q4(vOut)}, {P(sOUT)} {cfg.OUT_FL}
        L_noout2:
        s_mov_b64 exec, -1
        ''')
    h2calc()
    vOR = 200
    vHA = 98
    A(f'''
    v_and_b32 v{vOR}, 7, v0
    v_lshl_add_u32 v{vOR}, s{sWAVE}, 3, v{vOR}
    s_lshl_b32 s{sT0}, s{sM}, 6
    v_add_u32 v{vOR}, s{sT0}, v{vOR}
    v_lshrrev_b32 v{vT2}, 3, v{vLANE}
    s_lshl_b32 s{sT1}, s{sG}, 8
    s_add_u32 s{sT1}, s{sT1}, {H2P - 2048}
    v_lshl_add_u32 v{vHA}, v{vT2}, 4, s{sT1}
    s_cmp_lg_u32 s{sWAVE}, 0
    s_cbranch_scc1 L_kskip
    v_and_b32 v{vT0}, 2, v0
    v_cmp_eq_u32 vcc, 0, v{vT0}
    v_cndmask_b32 v{vM2}, 0, -1, vcc
    v_and_b32 v{vT0}, 1, v0
    v_cmp_eq_u32 vcc, 0, v{vT0}
    v_cndmask_b32 v{vM1}, 0, -1, vcc
    s_lshl_b32 s{sT0}, s{sG}, 11
    s_add_u32 s{sT0}, s{sT0}, {KEYS}
    v_lshl_add_u32 v{vT0}, v{vLANE}, 3, s{sT0}
    ''')
    poll('L_pollk', '\n'.join(f'global_load_dwordx2 {pr(vKs+2*r)}, v{vT0}, {P(sWS)} offset:{512*r} sc1' for r in range(4)),
         f'''v_xor_b32 v{vT1}, s{sTAG}, v{vKs+1}
         v_xor_b32 v{vT2}, s{sTAG}, v{vKs+3}
         v_xor_b32 v{vT3}, s{sTAG}, v{vKs+5}
         v_or3_b32 v{vT1}, v{vT1}, v{vT2}, v{vT3}
         v_xor_b32 v{vT2}, s{sTAG}, v{vKs+7}
         v_or_b32 v{vT1}, v{vT1}, v{vT2}
         v_cmp_ne_u32 vcc, 0, v{vT1}''')
    stamp('keysok')
    def sort8(regs, tmps):
        for x, t in zip(regs, tmps): A(f'v_max_u32_dpp v{t}, v{x}, v{x} row_shl:4 row_mask:0xf bank_mask:0x5')
        for x, t in zip(regs, tmps): A(f'v_min_u32_dpp v{t}, v{x}, v{x} row_shr:4 row_mask:0xf bank_mask:0xa')
        for x, t in zip(regs, tmps): A(f'v_mov_b32_dpp v{x}, v{t} quad_perm:[2,3,0,1] {DPPM}')
        for x, t in zip(regs, tmps): A(f'v_med3_u32 v{t}, v{t}, v{x}, v{vM2}')
        for x, t in zip(regs, tmps): A(f'v_mov_b32_dpp v{x}, v{t} quad_perm:[1,0,3,2] {DPPM}')
        for x, t in zip(regs, tmps): A(f'v_med3_u32 v{x}, v{t}, v{x}, v{vM1}')
    k0, k1, k2, k3 = vKs, vKs + 2, vKs + 4, vKs + 6
    t0, t1 = vKs + 1, vKs + 3
    A(f'v_max_u32_dpp v{k0}, v{k1}, v{k0} row_half_mirror {DPPM}')
    A(f'v_max_u32_dpp v{k2}, v{k3}, v{k2} row_half_mirror {DPPM}')
    sort8([k0, k2], [t0, t1])
    A(f'v_max_u32_dpp v{k0}, v{k2}, v{k0} row_half_mirror {DPPM}')
    sort8([k0], [t0])
    A(f'v_max_u32_dpp v{k0}, v{k0}, v{k0} row_mirror {DPPM}')
    sort8([k0], [t0])
    for sw in ('v_permlane16_swap_b32', 'v_permlane32_swap_b32'):
        A(f'v_mov_b32 v{t1}, v{k0}')
        A(f'{sw} v{t1}, v{k0}')
        A(f'v_max_u32_dpp v{k0}, v{k0}, v{t1} row_half_mirror {DPPM}')
        sort8([k0], [t0])
    A(f'''
    v_and_b32 v{vRow}, 0x7ff, v{k0}
    v_sub_u32 v{vRow}, 2047, v{vRow}
    v_lshlrev_b32 v{vT2}, 2, v{vLANE}
    ds_write_b32 v{vT2}, v{vRow} offset:{L_GP}
    s_lshl_b32 s{sT0}, s{sM}, 6
    v_subrev_u32 v{vT1}, s{sT0}, v{vRow}
    v_add_u32 v{vT3}, 1, v{vLANE}
    v_cmp_gt_u32 vcc, 64, v{vT1}
    v_lshlrev_b32 v{vT1}, 2, v{vT1}
    s_and_b64 exec, vcc, 0xff
    ds_write_b32 v{vT1}, v{vT3} offset:{L_ST}
    s_mov_b64 exec, -1
    s_waitcnt lgkmcnt(0)
    s_branch L_kjoin
    L_kskip:
    ''')
    outcalc()
    A(f'''
    L_kjoin:
    s_barrier
    ds_read_b32 v{vT0}, v{vU+1} offset:{L_ST}
    s_waitcnt lgkmcnt(0)
    v_cmp_ne_u32 {P(sEX)}, 0, v{vT0}
    v_lshl_add_u32 v{vT0}, v{vT0}, 11, v{vHA}
    v_add_u32 v{vT1}, {X1P - H2P}, v{vT0}
    s_mov_b64 exec, {P(sEX)}
    s_cbranch_execz L_noh2
    global_store_dwordx4 v{vT0}, {q4(vPk)}, {P(sWS)} sc1
    global_store_dwordx4 v{vT0}, {q4(vPk+4)}, {P(sWS)} offset:128 sc1
    global_store_dwordx4 v{vT1}, {q4(vPk+8)}, {P(sWS)} sc1
    global_store_dwordx4 v{vT1}, {q4(vPk+12)}, {P(sWS)} offset:128 sc1
    L_noh2:
    s_mov_b64 exec, -1
    ''')
    stamp('top8')
    A(f'''
    s_cmp_lg_u32 s{sWAVE}, 0
    s_cbranch_scc1 L_noc
    ''')
    outcalc()
    A(f'''
    L_noc:
    ''')
    if cfg.OUTPOS == 'top8': outstore()
    A(f'''
    s_cmp_ge_u32 s{sM}, {NS3}
    s_cbranch_scc1 L_tail
    ''')
    vGA_, vGS, vGL, vPS, vGW_, vGR_ = 142, 143, 144, 145, 146, 147
    GS_ = 272
    vG = 166
    A(f'''
    s_lshr_b32 s{sT0}, s{sM}, 2
    s_mul_i32 s{sT1}, s{sG}, 7
    s_add_u32 s{sT0}, s{sT0}, s{sT1}
    s_and_b32 s{sT1}, s{sM}, 3
    v_lshrrev_b32 v{vT1}, 4, v{vLANE}
    v_and_b32 v{vT2}, 7, v0
    s_lshl_b32 s{sT2}, s{sT1}, 9
    s_and_b32 s{sT3}, s{sWAVE}, 3
    s_lshl_b32 s{sT3}, s{sT3}, 12
    s_add_u32 s{sT2}, s{sT2}, s{sT3}
    s_add_u32 s{sT2}, s{sT2}, {H2P}
    v_lshrrev_b32 v{vT3}, 5, v{vLANE}
    v_and_b32 v{vGA_}, 31, v0
    v_lshlrev_b32 v{vGA_}, 4, v{vGA_}
    v_lshl_add_u32 v{vGA_}, v{vT3}, 11, v{vGA_}
    v_add_u32 v{vGA_}, s{sT2}, v{vGA_}
    s_mov_b32 s{sHM}, 0x00ff00ff
    s_mov_b32 s{sHM+1}, 0x00ff00ff
    s_and_b32 s{sT3}, s{sWAVE}, 3
    v_lshl_add_u32 v{vT3}, s{sT3}, 1, v{vT3}
    v_mul_u32_u24 v{vGW_}, {GS_}, v{vT3}
    v_bfe_u32 v{vT3}, v0, 4, 1
    v_lshl_add_u32 v{vGW_}, v{vT3}, 7, v{vGW_}
    v_lshl_add_u32 v{vGW_}, v{vT2}, 4, v{vGW_}
    v_bfe_u32 v{vT3}, v0, 3, 1
    v_lshl_add_u32 v{vGW_}, v{vT3}, 3, v{vGW_}
    v_add_u32 v{vGW_}, {L_G2 - (L_G2 % 1024)}, v{vGW_}
    v_mul_u32_u24 v{vGR_}, {GS_}, v{vT2}
    v_lshl_add_u32 v{vGR_}, v{vT1}, 4, v{vGR_}
    s_lshr_b32 s{sT3}, s{sWAVE}, 2
    s_lshl_b32 s{sT3}, s{sT3}, 7
    v_add_u32 v{vGR_}, s{sT3}, v{vGR_}
    ''')
    A(f'''
    s_mov_b64 exec, -1
    s_and_b32 s{sT2}, s{sWID}, 0xfc
    s_lshl_b32 s{sT2}, s{sT2}, 13
    s_add_u32 s{sT2}, s{sT2}, {XB1}
    s_lshl_b32 s{sT3}, s{sT1}, 3
    s_add_u32 s{sT3}, s{sT3}, s{sWAVE}
    s_lshl_b32 s{sT4}, s{sT1}, 13
    s_lshl_b32 s{sT5}, s{sWAVE}, 9
    s_add_u32 s{sT4}, s{sT4}, s{sT5}
    s_add_u32 s{sT4}, s{sT4}, s{sT2}
    v_lshl_add_u32 v{vGS}, v{vT1}, 3, v{vT2}
    v_lshl_add_u32 v{vGS}, v{vGS}, 4, s{sT4}
    s_mul_i32 s{sT3}, s{sT3}, {NPROD*64}
    s_lshl_b32 s{sT4}, s{sT0}, 6
    s_add_u32 s{sT3}, s{sT3}, s{sT4}
    s_add_u32 s{sT3}, s{sT3}, {PART}
    v_mul_u32_u24 v{vPS}, {32*NPROD*64}, v{vT2}
    v_lshl_add_u32 v{vPS}, v{vT1}, 4, v{vPS}
    v_add_u32 v{vPS}, s{sT3}, v{vPS}
    s_lshr_b32 s{sT3}, s{sWAVE}, 2
    s_lshl_b32 s{sT3}, s{sT3}, 9
    s_and_b32 s{sT4}, s{sWAVE}, 3
    s_lshl_b32 s{sT4}, s{sT4}, 7
    s_add_u32 s{sT3}, s{sT3}, s{sT4}
    s_add_u32 s{sT3}, s{sT3}, s{sT2}
    v_lshlrev_b32 v{vGL}, 13, v{vT1}
    v_bfe_u32 v{vT3}, v0, 3, 1
    v_lshl_add_u32 v{vGL}, v{vT3}, 10, v{vGL}
    v_lshl_add_u32 v{vGL}, v{vT2}, 4, v{vGL}
    v_add_u32 v{vGL}, s{sT3}, v{vGL}
    v_and_b32 v{vT0}, 3, v0
    v_bfe_u32 v{vT2}, v0, 2, 2
    v_lshl_add_u32 v{vT2}, v{vT1}, 3, v{vT2}
    v_lshlrev_b32 v{vT3}, 6, v{vT2}
    v_lshl_add_u32 v{vT3}, v{vT0}, 3, v{vT3}
    s_lshr_b32 s{sT0}, s{sWAVE}, 2
    s_lshl_b32 s{sT0}, s{sT0}, 12
    s_bfe_u32 s{sT1}, s{sWAVE}, 0x10001
    s_lshl_b32 s{sT1}, s{sT1}, 13
    s_add_u32 s{sT0}, s{sT0}, s{sT1}
    s_and_b32 s{sT1}, s{sWAVE}, 1
    s_lshl_b32 s{sT1}, s{sT1}, 5
    s_add_u32 s{sT0}, s{sT0}, s{sT1}
    s_add_u32 s{sT0}, s{sT0}, {L_WGU}
    v_add_u32 v{vT3}, s{sT0}, v{vT3}
    ''')
    for ks_ in range(2):
        for hh in range(2):
            A(f'ds_read_b64_tr_b16 {pr(vWf + 4*ks_ + 2*hh)}, v{vT3} offset:{2048*ks_ + 256*hh}')
    A(f'''
    v_lshlrev_b32 v{vT3}, 8, v{vT2}
    v_lshl_add_u32 v{vT3}, v{vT0}, 3, v{vT3}
    s_lshl_b32 s{sT0}, s{sWAVE}, 5
    s_add_u32 s{sT0}, s{sT0}, {L_WGU + 16384}
    v_add_u32 v{vT3}, s{sT0}, v{vT3}
    ds_read_b64_tr_b16 {pr(vWf + 8)}, v{vT3}
    ds_read_b64_tr_b16 {pr(vWf + 10)}, v{vT3} offset:1024
    v_and_b32 v{vT0}, 7, v0
    v_lshrrev_b32 v{vT1}, 5, v{vLANE}
    v_bfe_u32 v{vT2}, v0, 4, 1
    v_lshl_add_u32 v{vT1}, v{vT1}, 1, v{vT2}
    v_lshl_add_u32 v{vT1}, s{sWAVE}, 2, v{vT1}
    v_lshlrev_b32 v{vT1}, 1, v{vT1}
    v_lshl_add_u32 v{vT1}, v{vT0}, 6, v{vT1}
    v_lshrrev_b32 v{vT2}, 4, v{vLANE}
    v_lshlrev_b32 v{vT2}, 4, v{vT2}
    v_lshl_add_u32 v{vT2}, v{vT0}, 6, v{vT2}
    s_mov_b32 s{sT2}, 0x03020105
    s_mov_b32 s{sT3}, 0x03020106
    s_mov_b32 s{sT4}, 0x03020107
    s_mov_b32 s{sT0}, 0x0004000c
    s_mov_b32 s{sT1}, 0x0402010c
    s_mov_b64 {P(sC0)}, -1
    s_mov_b64 {P(sC0+2)}, -1
    ''')
    vDg = 182
    A(f'''
    s_cmp_ge_u32 s{sWAVE}, 4
    s_cbranch_scc1 L_gskip
    ''')
    if cfg.GSLP: A(f's_sleep {cfg.GSLP}')
    poll('L_pollg', f'global_load_dwordx4 {q4(vG)}, v{vGA_}, {P(sWS)} sc1',
         f'''v_xor_b32 v{vG+1}, s{sTAG}, v{vG+1}
         v_xor_b32 v{vG+3}, s{sTAG}, v{vG+3}
         v_or_b32 v{vG+1}, v{vG+1}, v{vG+3}
         v_cmp_ne_u32 vcc, 0, v{vG+1}''', cfg.GLOOP)
    A(f'''
    ds_write2_b32 v{vGW_}, v{vG}, v{vG+2} offset0:{(L_G2 % 1024)//4} offset1:{(L_G2 % 1024)//4 + 1}
    L_gskip:
    s_waitcnt lgkmcnt(0)
    ''')
    stamp('gath')
    A(f'''
    s_barrier
    ds_read_b128 {q4(vG)}, v{vGR_} offset:{L_G2}
    ds_read_b128 {q4(vG+8)}, v{vGR_} offset:{L_G2 + 64}
    s_waitcnt lgkmcnt(1)
    v_mfma_f32_16x16x32_bf16 {q4(vDg)}, {q4(vWf)}, {q4(vG)}, 0
    s_waitcnt lgkmcnt(0)
    v_mfma_f32_16x16x32_bf16 {q4(vDg)}, {q4(vWf+4)}, {q4(vG+8)}, {q4(vDg)}
    ''')
    def pack24(y):
        for d in range(3): A(f'v_perm_b32 v{y+d}, v{y+3}, v{y+d}, s{sT2+d}')
        A(f'v_mov_b32 v{y+3}, s{sTAG}')
    pack24(vDg)
    A(f's_mov_b64 exec, {P(sHM)}')
    lstore(f'global_store_dwordx4 v{vGS}, {q4(vDg)}, {P(sWS)}')
    stamp('preB6')
    vE = 166
    mpoll('L_pollx', [(f'global_load_dwordx4 {q4(vE)}, v{vGL}, {P(sWS)} sc1', vE + 3, sC0),
                      (f'global_load_dwordx4 {q4(vE+4)}, v{vGL}, {P(sWS)} offset:2048 sc1', vE + 7, sC0 + 2)])
    stamp('B6')
    def unp24(us, a, b):
        for u in us: A(f'v_perm_b32 v{u+3}, v{u+1}, v{u}, s{a}')
        for u in us: A(f'v_perm_b32 v{u+3}, v{u+2}, v{u+3}, s{b}')
    unp24([vE, vE + 4], sT0, sT1)
    y = vE
    A(f'''
    v_pk_add_f32 {pr(y)}, {pr(y)}, {pr(y+4)}
    v_pk_add_f32 {pr(y+2)}, {pr(y+2)}, {pr(y+6)}
    v_permlane32_swap_b32 v{y}, v{y+2}
    v_permlane32_swap_b32 v{y+1}, v{y+3}
    v_add_f32 v{y}, v{y}, v{y+2}
    v_add_f32 v{y+1}, v{y+1}, v{y+3}
    v_permlane16_swap_b32 v{y}, v{y+1}
    v_add_f32 v{y}, v{y}, v{y+1}
    v_cvt_pk_bf16_f32 v{y}, 0, v{y}
    v_mul_f32 v{y+2}, 0xbfb8aa3b, v{y}
    v_exp_f32 v{y+2}, v{y+2}
    v_mov_b32_dpp v{y+1}, v{y} row_ror:8 {DPPM}
    v_add_f32 v{y+2}, 1.0, v{y+2}
    v_rcp_f32 v{y+2}, v{y+2}
    v_mul_f32 v{y}, v{y}, v{y+2}
    v_cvt_pk_bf16_f32 v{y}, 0, v{y}
    v_mul_f32 v{y}, v{y}, v{y+1}
    v_cvt_pk_bf16_f32 v{y}, v{y}, v{y}
    s_mov_b64 exec, {P(sHM)}
    ds_write_b16 v{vT1}, v{y} offset:{L_GU}
    s_mov_b64 exec, -1
    s_waitcnt lgkmcnt(0)
    s_barrier
    ds_read_b128 {q4(vE)}, v{vT2} offset:{L_GU}
    s_waitcnt lgkmcnt(0)
    v_mfma_f32_16x16x32_bf16 {q4(vDg)}, {q4(vWf+8)}, {q4(vE)}, 0
    ''')
    stamp('B7')
    pack24(vDg)
    A(f's_mov_b64 exec, {P(sHM)}')
    A(f'global_store_dwordx4 v{vPS}, {q4(vDg)}, {P(sWS)} sc1')
    A('s_mov_b64 exec, -1')
    stamp('partst')
    A(f'''
    s_cmp_lg_u32 s{sWID}, 0
    s_cbranch_scc1 L_noep
    s_cmp_lg_u32 s{sWAVE}, 2
    s_cbranch_scc1 L_noep
    s_add_u32 s{sT0}, s{sEP}, 1
    v_mov_b32 v{vT2}, {EPOCH}
    v_mov_b32 v{vT3}, s{sT0}
    s_mov_b64 exec, 1
    global_store_dword v{vT2}, v{vT3}, {P(sWS)} sc1
    s_mov_b64 exec, -1
    L_noep:
    s_branch L_red
    L_tail:
    s_cmp_lg_u32 s{sM}, {NS3}
    s_cbranch_scc1 L_red
    ''')
    vWr = 130
    vHr = 134
    vHs = 142
    vPu = 166
    vRr = 182
    A(f'''
    v_lshlrev_b32 v{vT1}, 4, v{vLANE}
    global_load_dwordx4 {q4(vWr)}, v{vT1}, {P(sWR)}
    s_lshl_b32 s{sT3}, s{sWAVE}, 11
    s_add_u32 s{sT3}, s{sT3}, {H2P}
    v_lshrrev_b32 v{vT2}, 3, v{vLANE}
    v_and_b32 v{vT3}, 7, v0
    v_lshlrev_b32 v{vT3}, 4, v{vT3}
    v_lshl_add_u32 v{vT3}, v{vT2}, 8, v{vT3}
    v_add_u32 v{vT3}, s{sT3}, v{vT3}
    s_lshl_b32 s{sT0}, s{sG}, 7
    s_lshl_b32 s{sT1}, s{sWAVE}, 3
    s_add_u32 s{sT0}, s{sT0}, s{sT1}
    s_add_u32 s{sT0}, s{sT0}, {SEL}
    v_mov_b32 v{vT0}, s{sT0}
    ''')
    poll('L_pollr', f'''global_load_dwordx4 {q4(vHr)}, v{vT3}, {P(sWS)} sc1
         global_load_dwordx4 {q4(vHr+4)}, v{vT3}, {P(sWS)} offset:128 sc1''',
         f'''v_xor_b32 v{vHr+1}, s{sTAG}, v{vHr+1}
         v_xor_b32 v{vHr+3}, s{sTAG}, v{vHr+3}
         v_xor_b32 v{vHr+5}, s{sTAG}, v{vHr+5}
         v_xor_b32 v{vHr+7}, s{sTAG}, v{vHr+7}
         v_or3_b32 v{vHr+1}, v{vHr+1}, v{vHr+3}, v{vHr+5}
         v_or_b32 v{vHr+1}, v{vHr+1}, v{vHr+7}
         v_cmp_ne_u32 vcc, 0, v{vHr+1}''')
    A(f'v_mov_b32 v{vRr}, 0')
    for i in range(4): A(f'v_dot2_f32_bf16 v{vRr}, v{vHr+2*i}, v{vWr+i}, v{vRr}')
    fullred([vRr], [vRr + 1])
    rnd(vRr)
    A(f'''
    v_mul_f32 v{vRr}, 0xbfb8aa3b, v{vRr}
    v_exp_f32 v{vRr}, v{vRr}
    v_add_f32 v{vRr}, 1.0, v{vRr}
    v_rcp_f32 v{vRr}, v{vRr}
    v_cvt_pk_bf16_f32 v{vRr}, 0, v{vRr}
    v_mov_b32 v{vRr+1}, s{sTAG}
    s_mov_b64 exec, 1
    ''')
    lstore(f'global_store_dwordx2 v{vT0}, {pr(vRr)}, {P(sWS)}')
    A(f'''
    s_mov_b64 exec, -1
    L_red:
    s_cmp_lg_u32 s{sWAVE}, 1
    s_cbranch_scc1 L_outlate
    v_lshl_add_u32 v{vT0}, v{vLANE}, 4, s{sPT}
    v_mov_b32 v{vPu+12}, 0
    v_mov_b32 v{vPu+13}, 0
    v_mov_b32 v{vPu+14}, 0
    v_mov_b32 v{vPu+15}, s{sTAG}
    s_and_b32 s{sT0}, s{sM}, 3
    s_and_b32 s{sT1}, s{sM}, 28
    v_mov_b32 v{vT3}, s{sT1}
    ds_read_b32 v{vOR+4}, v{vT3} offset:{L_GP}
    s_lshl_b32 s{sT3}, s{sT1}, 9
    s_add_u32 s{sT3}, s{sT3}, {H2P}
    s_lshl_b32 s{sT1}, s{sT1}, 1
    s_lshl_b32 s{sT4}, s{sG}, 7
    s_add_u32 s{sT1}, s{sT1}, s{sT4}
    s_add_u32 s{sT1}, s{sT1}, {SEL}
    v_mov_b32 v{vOR+5}, s{sT1}
    v_and_b32 v{vT1}, 3, v0
    v_lshlrev_b32 v{vT1}, 2, v{vT1}
    v_lshrrev_b32 v{vT2}, 5, v{vLANE}
    v_lshl_add_u32 v{vT1}, v{vT2}, 1, v{vT1}
    v_bfe_u32 v{vT2}, v0, 4, 1
    s_lshl_b32 s{sT4}, s{sT0}, 4
    v_add_u32 v{vT1}, s{sT4}, v{vT1}
    v_add_u32 v{vT3}, v{vT1}, v{vT2}
    v_lshlrev_b32 v{vOR}, 2, v{vT3}
    ds_read_b32 v{vOR+1}, v{vOR} offset:{L_MOD + 5*256}
    v_lshrrev_b32 v{vOR}, 3, v{vT1}
    v_lshlrev_b32 v{vOR}, 4, v{vOR}
    v_bfe_u32 v{vOR+2}, v{vT1}, 2, 1
    v_lshl_add_u32 v{vOR}, v{vOR+2}, 7, v{vOR}
    v_bfe_u32 v{vOR+2}, v{vT1}, 1, 1
    v_lshl_add_u32 v{vOR}, v{vOR+2}, 3, v{vOR}
    s_lshl_b32 s{sT5}, s{sG}, 8
    s_add_u32 s{sT5}, s{sT5}, s{sT3}
    v_add_u32 v{vT1}, s{sT5}, v{vOR}
    v_add_u32 v{vOR+2}, {X1P - H2P}, v{vT1}
    s_lshl_b32 s{sT4}, s{sG}, 7
    v_lshl_add_u32 v{vOR+3}, v{vT3}, 1, s{sT4}
    v_lshlrev_b32 v{vT2}, 4, v{vT2}
    v_sub_u32 v{vT2}, 16, v{vT2}
    s_mov_b32 s{sT2}, 0x0004000c
    s_mov_b32 s{sT3}, 0x0402010c
    s_waitcnt lgkmcnt(0)
    v_lshl_add_u32 v{vOR+3}, v{vOR+4}, 10, v{vOR+3}
    ''')
    poll('L_polls', f'''global_load_dwordx2 {pr(vHs)}, v{vT1}, {P(sWS)} sc1
         global_load_dwordx2 {pr(vHs+2)}, v{vOR+2}, {P(sWS)} sc1
         global_load_dwordx2 {pr(vRr)}, v{vOR+5}, {P(sWS)} sc1''',
         f'''v_xor_b32 v{vHs+1}, s{sTAG}, v{vHs+1}
         v_xor_b32 v{vHs+3}, s{sTAG}, v{vHs+3}
         v_xor_b32 v{vRr+1}, s{sTAG}, v{vRr+1}
         v_or3_b32 v{vHs+1}, v{vHs+1}, v{vHs+3}, v{vRr+1}
         v_cmp_ne_u32 vcc, 0, v{vHs+1}''')
    A(f'''
    v_lshlrev_b32 v{vHs}, v{vT2}, v{vHs}
    v_and_b32 v{vHs}, s{sMASK}, v{vHs}
    v_lshlrev_b32 v{vHs+2}, v{vT2}, v{vHs+2}
    v_and_b32 v{vHs+2}, s{sMASK}, v{vHs+2}
    ''')
    stamp('redpre')
    if cfg.REDSLP: A(f's_sleep {cfg.REDSLP}')
    for i in range(3): A(f's_mov_b64 {P(sC0+2*i)}, -1')
    A(f's_mov_b32 s{sC0+6}, -1'); A(f's_mov_b32 s{sC0+7}, 0')
    mpoll('L_pollp', [(f'global_load_dwordx4 {q4(vPu+4*i)}, v{vT0}, {P(sWS)} offset:{1024*i} sc1', vPu + 4*i + 3, sC0 + 2*i) for i in range(4)])
    stamp('partok')
    unp24([vPu + 4*i for i in range(4)], sT2, sT3)
    for (a, b) in ((0, 1), (2, 3), (0, 2)):
        for h in range(2): A(f'v_pk_add_f32 {pr(vPu+4*a+2*h)}, {pr(vPu+4*a+2*h)}, {pr(vPu+4*b+2*h)}')
    y = vPu
    A(f'''
    v_permlane32_swap_b32 v{y}, v{y+2}
    v_permlane32_swap_b32 v{y+1}, v{y+3}
    v_add_f32 v{y}, v{y}, v{y+2}
    v_add_f32 v{y+1}, v{y+1}, v{y+3}
    v_permlane16_swap_b32 v{y}, v{y+1}
    v_add_f32 v{y}, v{y}, v{y+1}
    v_add_f32_dpp v{y}, v{y}, v{y} row_ror:8 {DPPM}
    v_add_f32_dpp v{y}, v{y}, v{y} row_ror:4 {DPPM}
    v_cvt_pk_bf16_f32 v{y}, 0, v{y}
    v_mul_f32 v{y}, v{y}, v{vRr}
    v_cvt_pk_bf16_f32 v{y}, 0, v{y}
    v_add_f32 v{y}, v{y}, v{vHs}
    v_cvt_pk_bf16_f32 v{y}, 0, v{y}
    v_mul_f32 v{y}, v{y}, v{vOR+1}
    v_cvt_pk_bf16_f32 v{y}, 0, v{y}
    v_add_f32 v{y}, v{y}, v{vHs+2}
    v_cvt_pk_bf16_f32 v{y}, v{y}, v{y}
    s_mov_b32 s{sT0}, 0x000f000f
    s_mov_b32 s{sT1}, 0x000f000f
    s_mov_b64 exec, {P(sT0)}
    global_store_short v{vOR+3}, v{y}, {P(sOUT)} {cfg.OUT_FL}
    s_mov_b64 exec, -1
    ''')
    A('L_outlate:')
    if cfg.OUTPOS == 'end': outstore()
    A('L_fin:')
    if cfg.DBL:
        A(f'''
        s_waitcnt vmcnt(0)
        s_memrealtime s[78:79]
        s_waitcnt lgkmcnt(0)
        s_sub_u32 s{sT0}, s78, s74
        s_add_u32 s{sT0}, s{sT0}, s78
        L_dbl:
        s_memrealtime s[80:81]
        s_waitcnt lgkmcnt(0)
        s_sub_u32 s{sT1}, s80, s{sT0}
        s_cmp_lt_i32 s{sT1}, 0
        s_cbranch_scc1 L_dbl
        ''')
    if cfg.DBGT:
        A(f'''
        s_memrealtime s[78:79]
        s_memtime s[80:81]
        s_cmp_lg_u32 s{sWAVE}, 0
        s_cbranch_scc1 L_end
        s_and_b32 s{sT0}, s{sWID}, 0x3f
        s_cmp_lg_u32 s{sT0}, 28
        s_cbranch_scc1 L_end
        s_waitcnt lgkmcnt(0)
        s_sub_u32 s{sT0}, s78, s74
        s_sub_u32 s{sT1}, s80, s76
        v_mov_b32 v4, s{sT0}
        v_mov_b32 v5, s{sT1}
        v_mov_b32 v6, s74
        v_mov_b32 v7, s78
        s_lshr_b32 s{sT0}, s{sWID}, 6
        s_lshl_b32 s{sT0}, s{sT0}, 4
        v_mov_b32 v8, s{sT0}
        s_mov_b64 exec, 1
        global_store_dwordx4 v8, v[4:7], {P(sDBG)}
        ''')
    if cfg.STAMP:
        A(f's_memtime s[{sST+2*nst[0]}:{sST+2*nst[0]+1}]'); nst[0] += 1
        A(f'''
        s_waitcnt lgkmcnt(0)
        s_lshl_b32 s{sT0}, s{sWID}, 3
        s_add_u32 s{sT0}, s{sT0}, s{sWAVE}
        s_lshl_b32 s{sT0}, s{sT0}, 7
        s_add_u32 s{sT0}, s{sT0}, {STAMPS}
        v_mov_b32 v{vT0}, s{sT0}
        s_mov_b64 exec, 1
        ''')
        for i in range(nst[0]):
            A(f'v_mov_b32 v{vT1}, s{sST+2*i}')
            A(f'global_store_dword v{vT0}, v{vT1}, {P(sWS)} offset:{4*i}')
        A(f'v_mov_b32 v{vT1}, s{sCNT}')
        A(f'global_store_dword v{vT0}, v{vT1}, {P(sWS)} offset:120')
        A(f'v_mov_b32 v{vT1}, s{sMODE}')
        A(f'global_store_dword v{vT0}, v{vT1}, {P(sWS)} offset:124')
    A('L_end:')
    A('s_endpgm')
    for k, t in slow:
        A(f'L_slow{k}:'); A('s_nop 4'); A(t); A('s_nop 1'); A(f's_branch L_back{k}')
    A('L_modeslow:')
    A(f'''
    s_mov_b32 s{sT4}, 64
    L_moderetry:
    global_load_dword v{vMT}, v{vPT}, {P(sWS)} sc1
    s_waitcnt vmcnt(0)
    s_mov_b32 s{sMODE}, {0 if cfg.FORCE_SLOW else 1}
    v_cmp_ne_u32 vcc, s{sXCC}, v{vMT}
    s_cbranch_vccz L_modeback
    s_mov_b32 s{sMODE}, 0
    v_subrev_u32 v{vMT+1}, s{sTAG}, v{vMT}
    v_subrev_u32 v{vMT+1}, 1, v{vMT+1}
    v_cmp_lt_u32 vcc, 15, v{vMT+1}
    s_cbranch_vccz L_modeback
    s_sub_u32 s{sT4}, s{sT4}, 1
    s_cbranch_scc0 L_moderetry
    s_branch L_modeback
    ''')
    for name, fn in late:
        A(name + ':'); fn()
    A('L_codeend:')
    return A

HEAD = open('adaLN_cond__ssm_conv_h3__moe_arch_mod__prompt.s.ref').read().split('; Override launch')[0]
def emit(path):
    A = build()
    s = HEAD + f'; @launch grid=(256,1,1) block=(512,1,1) lds={LDS_BYTES}\n'
    s += f'''.amdgcn_target "amdgcn-amd-amdhsa--gfx950"
.text
.globl {KNAME}
.p2align 8
.type {KNAME},@function
{KNAME}:
'''
    s += A.text()
    s += f'''.section .rodata,"a"
.p2align 6
.amdhsa_kernel {KNAME}
  .amdhsa_next_free_vgpr 248
  .amdhsa_next_free_sgpr 102
  .amdhsa_accum_offset 248
  .amdhsa_group_segment_fixed_size 0
  .amdhsa_kernarg_size 128
  .amdhsa_user_sgpr_count 2
  .amdhsa_user_sgpr_kernarg_segment_ptr 1
  .amdhsa_system_sgpr_workgroup_id_x 1
.end_amdhsa_kernel
'''
    open(path, 'w').write(s)
    return A

if __name__ == '__main__':
    out = sys.argv[1]
    for a in sys.argv[2:]:
        k, v = a.split('=')
        setattr(cfg, k, eval(v))
    A = emit(out)
    if cfg.STAMP: open(out + '.sites', 'w').write(' '.join(cfg.ORDER + ['end']))
    print('emitted', out, 'lines', len(A.out), 'pads', A.npad)
```

```python
import sys
from asmdsl import Asm

class Cfg:
    STAMP = False
    STOP = 99
    WS_BASE = 0
    WBL2 = False
    OUT_FL = 'sc1'
    POLL_CAP = 200000
    FORCE_SLOW = False
    SEC = 'bar'
    WPOS = 'key'
    X3ACK = True
    DSITE = ''
    GPOS = 's1'
    X1PT = True
    GLOOP = 0
    PRIO = 3
    OUTPOS = 'top8'
    H2PT = True
    GSLP = 0
    HSLP = 16
    NOOUT = False
    REDSLP = 0
    WAFTER = True
    WDPOS = 's1'
    DBL = False
    DBGT = False
    NT = ''
    WPF = True
    PARTPT = False
    SITES = ()
    ORDER = []
cfg = Cfg()

KNAME = "adaLN_cond__ssm_conv_h3__moe_arch_mod__prompt_kernel"
EPOCH = 0; FL1 = 0x10000; FL2 = 0x12000; FLM = 0x14000; MTAB = 0x16000; KEYS = 0x18000; SEL = 0x1C000
XC = 0x20000; MODP = 0x80000; XB1 = 0x100000; X0 = 0x400000; X3 = 0x600000
H2P = 0x800000; X1P = 0xC00000; PART = 0x1000000; GXB = 0x300000; STAMPS = 0x2000000
NS3 = 28
NPROD = 56
NG0 = 8
USTR = 4160; UCH = 8 * USTR
L_MOD = 0
L_KEY = 2048
L_GP = 4096
L_CNT = 3328
L_ST = 3584
L_KVR = 8192; KVS = 4608
L_P = L_KVR + 2 * KVS
L_T = L_P; TS = 272
L_KD = L_P + 32768
L_U = L_KD + 8192
L_WGU = L_U + 2 * UCH
L_XS = L_WGU + 24576
L_END = L_WGU + 32768
L_Z = L_U
L_WD = L_U + 8192
L_G2 = L_P
L_GU = L_P + 8192
LDS_BYTES = 158720
assert L_END <= LDS_BYTES

sX, sK, sV, sSK, sF, sD, sWR = 4, 6, 8, 10, 12, 14, 18
sWG, sWU, sWD, sC, sWM, sOUT, sDBG, sWS = 20, 22, 24, 26, 28, 30, 32, 34
sG, sM, sWAVE, sTAG, sMODE, sXCC, sCNT, sTILE = 36, 37, 38, 39, 40, 41, 42, 43
sKSRD = 44
sFSRD = 48
sMASK = 52
sWID = 53
sEP = 54
sDV = 55
sT0, sT1, sT2, sT3, sT4, sT5 = 56, 57, 58, 59, 60, 61
sEX = 62
sC0 = 44
sWSR = 64
sOUTR = 68
sD0, sD1 = 72, 73
sPEND, sPT = 16, 17
sHM = 10
sST = 74
def P(s): return f's[{s}:{s+1}]'

import re
def to_buffer(line):
    for base, srd in ((sWS, sWSR), (sOUT, sOUTR)):
        b = re.escape(P(base)); R = f's[{srd}:{srd+3}]'
        m = re.match(rf'^\s*global_load_lds_(\w+) (v\d+), {b}(.*)$', line)
        if m: return f'buffer_load_{m.group(1)} {m.group(2)}, {R}, 0 offen{m.group(3)} lds'
        m = re.match(rf'^\s*global_load_(\w+) (v\S+), (v\d+), {b}(.*)$', line)
        if m: return f'buffer_load_{m.group(1)} {m.group(2)}, {m.group(3)}, {R}, 0 offen{m.group(4)}'
        m = re.match(rf'^\s*global_store_(\w+) (v\d+), (v\S+), {b}(.*)$', line)
        if m: return f'buffer_store_{m.group(1)} {m.group(3)}, {m.group(2)}, {R}, 0 offen{m.group(4)}'
    return line
def add_nt(line):
    if not cfg.NT: return line
    l = line.strip()
    if l.startswith('global_load') and any(P(b) in l for b in (sX, sK, sV, sWM, sWD, 12)) and 'sc1' not in l: return l + ' ' + cfg.NT
    if l.startswith('buffer_load') and (f's[{sKSRD}:{sKSRD+3}]' in l or f's[{sFSRD}:{sFSRD+3}]' in l): return l + ' ' + cfg.NT
    return line
class BAsm(Asm):
    def __call__(self, text):
        super().__call__('\n'.join(to_buffer(add_nt(l)) for l in text.strip().split('\n')))
def build():
    A = BAsm()
    slow = []
    late = []
    nst = [0]
    site = [0]
    def stamp(name=''):
        if cfg.DSITE == name:
            A('s_memrealtime s[82:83]')
            if name in ('B2', 'B3b'): A('s_waitcnt lgkmcnt(0)')
        if cfg.STAMP and (name in cfg.SITES or name == 'start'):
            assert sST + 2 * nst[0] + 3 <= 101
            A(f's_memtime s[{sST+2*nst[0]}:{sST+2*nst[0]+1}]'); nst[0] += 1
            cfg.ORDER.append(name)
            if name in ('B2', 'B3b'): A('s_waitcnt lgkmcnt(0)')
    uid = [0]
    def lstore(text):
        uid[0] += 1; k = uid[0]
        A(f's_cmp_eq_u32 s{sMODE}, 1')
        A(f's_cbranch_scc0 L_slow{k}')
        A(text)
        A(f'L_back{k}:')
        slow.append((k, '\n'.join(l + ' sc1' for l in text.strip().split('\n'))))
    def poll(name, loads, check, slp=0):
        A(f'{name}:')
        if slp: A(f's_sleep {slp}')
        A(loads)
        A('s_waitcnt vmcnt(0)')
        A(check)
        A(f's_sub_u32 s{sCNT}, s{sCNT}, 1')
        A('s_cselect_b64 vcc, 0, vcc')
        A(f's_cselect_b32 s{sCNT}, 0, s{sCNT}')
        A(f's_cbranch_vccnz {name}')
    def mpoll(name, items):
        A(f'{name}:')
        for k, (ld, tr, mk) in enumerate(items):
            A(f's_mov_b64 exec, {P(mk)}')
            A(f's_cbranch_execz {name}_s{k}')
            A(ld)
            A(f'{name}_s{k}:')
        A('s_mov_b64 exec, -1')
        A('s_waitcnt vmcnt(0)')
        for (ld, tr, mk) in items:
            if isinstance(tr, int): A(f'v_cmp_ne_u32 {P(mk)}, s{sTAG}, v{tr}')
            else: A(tr[0]); A(f'v_cmp_ne_u32 {P(mk)}, 0, v{tr[1]}')
        A(f's_or_b64 vcc, {P(items[0][2])}, {P(items[1][2])}')
        for (ld, tr, mk) in items[2:]: A(f's_or_b64 vcc, vcc, {P(mk)}')
        A(f's_sub_u32 s{sCNT}, s{sCNT}, 1')
        A('s_cselect_b64 vcc, 0, vcc')
        A(f's_cselect_b32 s{sCNT}, 0, s{sCNT}')
        A(f's_cbranch_vccnz {name}')
    def unpack(d, s):
        A(f'v_lshlrev_b32 v{d}, 16, v{s}')
        A(f'v_and_b32 v{d+1}, s{sMASK}, v{s}')
    def rnd(d, s=None):
        A(f'v_cvt_pk_bf16_f32 v{d}, 0, v{d if s is None else s}')
    def pr(r): return f'v[{r}:{r+1}]'
    def q4(r): return f'v[{r}:{r+3}]'
    DPPM = 'row_mask:0xf bank_mask:0xf'
    def allred(regs, tmps, add='v_add_f32'):
        for r in regs: A(f'{add}_dpp v{r}, v{r}, v{r} row_ror:8 {DPPM}')
        for sw in ('v_permlane16_swap_b32', 'v_permlane32_swap_b32'):
            for r, t in zip(regs, tmps): A(f'v_mov_b32 v{t}, v{r}')
            for r, t in zip(regs, tmps): A(f'{sw} v{t}, v{r}')
            for r, t in zip(regs, tmps): A(f'{add} v{r}, v{r}, v{t}')
    def fullred(regs, tmps, add='v_add_f32'):
        for pat in ('quad_perm:[1,0,3,2]', 'quad_perm:[2,3,0,1]', 'row_half_mirror'):
            for r in regs: A(f'{add}_dpp v{r}, v{r}, v{r} {pat} {DPPM}')
        allred(regs, tmps, add)
    def lnstats(S, Q, t0, mean_out, inv_out):
        A(f'v_mul_f32 v{S}, 0x3b000000, v{S}')
        A(f'v_mul_f32 v{Q}, 0x3b000000, v{Q}')
        A(f'v_fma_f32 v{t0}, -v{S}, v{S}, v{Q}')
        A(f'v_max_f32 v{t0}, 0, v{t0}')
        rnd(mean_out, S)
        rnd(t0)
        A(f'v_add_f32 v{t0}, 0x3727c5ac, v{t0}')
        rnd(t0)
        A(f'v_sqrt_f32 v{t0}, v{t0}')
        rnd(t0)
        A(f'v_rcp_f32 v{inv_out}, v{t0}')

    A(f'''
    s_cmp_ge_u32 s2, 256
    s_cbranch_scc1 L_end
    s_load_dwordx16 s[4:19], s[0:1], 0
    s_load_dwordx16 s[20:35], s[0:1], 64
    ''')
    if cfg.STAMP:
        A(f's_memrealtime s[{sST}:{sST+1}]'); nst[0] += 1
    if cfg.DBGT or cfg.DBL:
        A('s_memrealtime s[74:75]'); A('s_memtime s[76:77]')
    stamp('start')
    vLANE, vTID = 1, 0
    vA, vB, vT0, vT1, vT2, vT3 = 2, 3, 4, 5, 6, 7
    vPA = 9
    vJR = 8
    vX = 10
    vKr = 14
    vVr = 21
    vSk = 26
    vFl = 30
    vMT = 38
    vGW = 110
    vGC = 44
    vPT = 40
    A(f'''
    s_getreg_b32 s{sXCC}, hwreg(HW_REG_XCC_ID)
    s_and_b32 s{sG}, s2, 7
    s_lshr_b32 s{sM}, s2, 3
    v_lshrrev_b32 v{vT0}, 6, v0
    v_and_b32 v{vLANE}, 63, v0
    v_readfirstlane_b32 s{sWAVE}, v{vT0}
    s_and_b32 s{sXCC}, s{sXCC}, 15
    s_mov_b32 s{sMASK}, 0xffff0000
    s_mov_b32 s{sCNT}, {cfg.POLL_CAP}
    s_lshl_b32 s{sT0}, s{sM}, 16
    s_lshl_b32 s{sT1}, s{sG}, 7
    s_add_u32 s{sTILE}, s{sT0}, s{sT1}
    s_lshl_b32 s{sWID}, s{sG}, 5
    s_add_u32 s{sWID}, s{sWID}, s{sM}
    v_and_b32 v{vT0}, 31, v0
    v_lshrrev_b32 v{vT1}, 5, v0
    v_lshlrev_b32 v{vA}, 12, v{vT1}
    v_lshl_add_u32 v{vA}, v{vT0}, 2, v{vA}
    v_add_u32 v{vA}, s{sTILE}, v{vA}
    v_subrev_u32 v{vB}, 0xc00, v{vA}
    v_bfrev_b32 v{vT2}, 1
    v_cmp_gt_u32 vcc, 0xc00, v{vA}
    v_cndmask_b32 v{vB}, v{vB}, v{vT2}, vcc
    v_lshl_add_u32 v{vT2}, v{vT0}, 4, s{sT1}
    v_lshl_add_u32 v{vT2}, s{sT1}, 1, v{vT2}
    v_add_u32 v{vT2}, s{sT1}, v{vT2}
    ''')
    A(f'''
    s_add_u32 s{sT3}, s{sXCC}, 1
    v_mov_b32 v{vPT}, s{sWID}
    v_mov_b32 v{vPT+1}, s{sT3}
    s_lshl_b32 s{sT4}, s{sG}, 7
    s_lshl_b32 s{sT5}, s{sM}, 2
    s_add_u32 s{sT4}, s{sT4}, s{sT5}
    v_lshlrev_b32 v{vT0}, 4, v0
    v_subrev_u32 v{vT1}, 16, v{vT0}
    v_and_b32 v{vT3}, 255, v0
    v_cmp_eq_u32 vcc, 0, v{vT3}
    v_bfrev_b32 v{vT3}, 1
    v_cndmask_b32 v{vT1}, v{vT1}, v{vT3}, vcc
    s_lshl_b32 s{sT0}, s{sWID}, 13
    s_waitcnt lgkmcnt(0)
    s_load_dword s{sEP}, {P(sWS)}, {EPOCH + cfg.WS_BASE}
    global_load_dwordx4 {q4(vSk)}, v{vT2}, {P(sSK)}
    ''')
    for i in range(4): A(f'global_load_dword v{vKr+3+i}, v{vA}, {P(sK)} offset:{1024*i}')
    A(f'''
    s_mov_b32 s{sKSRD}, s{sK}
    s_mov_b32 s{sKSRD+1}, s{sK+1}
    s_mov_b32 s{sKSRD+2}, 0x200000
    s_mov_b32 s{sKSRD+3}, 0x20000
    s_mov_b32 exec_hi, 0
    ''')
    for i in range(3): A(f'buffer_load_dword v{vKr+i}, v{vB}, s[{sKSRD}:{sKSRD+3}], 0 offen offset:{1024*i}')
    A('s_mov_b64 exec, -1')
    for i in range(4): A(f'global_load_dword v{vVr+i}, v{vA}, {P(sV)} offset:{1024*i}')
    A(f'''
    s_add_u32 s{sWS}, s{sWS}, {cfg.WS_BASE}
    s_addc_u32 s{sWS+1}, s{sWS+1}, 0
    s_mov_b32 s{sWSR}, s{sWS}
    s_mov_b32 s{sWSR+1}, s{sWS+1}
    s_mov_b32 s{sWSR+2}, 0x4000000
    s_mov_b32 s{sWSR+3}, 0x20000
    s_mov_b32 s{sOUTR}, s{sOUT}
    s_mov_b32 s{sOUTR+1}, s{sOUT+1}
    s_mov_b32 s{sOUTR+2}, 0x200000
    s_mov_b32 s{sOUTR+3}, 0x20000
    s_add_u32 s{sFSRD}, s{sF}, s{sT0}
    s_addc_u32 s{sFSRD+1}, s{sF+1}, 0
    s_mov_b32 s{sFSRD+2}, 8192
    s_mov_b32 s{sFSRD+3}, 0x20000
    s_load_dword s{sDV}, {P(sD)}, s{sT4}
    ''')
    A(f'''
    s_cmp_lg_u32 s{sWAVE}, 7
    s_cbranch_scc1 L_nopt
    s_lshr_b32 s{sT0}, s{sM}, 2
    s_lshl_b32 s{sT0}, s{sT0}, 7
    s_lshl_b32 s{sT1}, s{sG}, 10
    s_add_u32 s{sT0}, s{sT0}, s{sT1}
    s_add_u32 s{sT1}, s{sT0}, {FL1}
    v_mov_b32 v{vPT+2}, s{sT1}
    s_add_u32 s{sT1}, s{sT0}, {FL2}
    v_writelane_b32 v{vPT+2}, s{sT1}, 2
    v_writelane_b32 v{vPT+2}, s{sT1}, 3
    s_lshl_b32 s{sT0}, s{sG}, 7
    s_add_u32 s{sT1}, s{sT0}, {FLM}
    v_writelane_b32 v{vPT+2}, s{sT1}, 4
    v_writelane_b32 v{vPT+2}, s{sT1}, 5
    s_add_u32 s{sT1}, s{sT0}, {SEL}
    v_writelane_b32 v{vPT+2}, s{sT1}, 6
    v_writelane_b32 v{vPT+2}, s{sT1}, 7
    s_lshl_b32 s{sT0}, s{sWID}, 6
    s_and_b32 s{sT0}, s{sT0}, 0xffffff80
    s_add_u32 s{sT1}, s{sT0}, {KEYS}
    v_writelane_b32 v{vPT+2}, s{sT1}, 8
    v_writelane_b32 v{vPT+2}, s{sT1}, 9
    v_and_b32 v{vPT+3}, 1, v0
    v_lshl_add_u32 v{vPT+2}, v{vPT+3}, 6, v{vPT+2}
    s_lshl_b32 s{sT0}, s{sWID}, 9
    s_add_u32 s{sT1}, s{sT0}, {MODP - 32*64}
    v_lshl_add_u32 v{vPT+3}, v{vLANE}, 6, s{sT1}
    v_cmp_lt_u32 vcc, 31, v{vLANE}
    v_cndmask_b32 v{vPT+2}, v{vPT+2}, v{vPT+3}, vcc
    s_lshl_b32 s{sT0}, s{sM}, 9
    s_add_u32 s{sT1}, s{sT0}, {H2P - 40*64}
    v_lshl_add_u32 v{vPT+3}, v{vLANE}, 6, s{sT1}
    v_cmp_lt_u32 vcc, 39, v{vLANE}
    v_cndmask_b32 v{vPT+2}, v{vPT+2}, v{vPT+3}, vcc
    s_mov_b32 exec_lo, 0x3ff
    s_mov_b32 exec_hi, {'0xffff' if cfg.H2PT else '0xff'}
    global_load_dword v{vPT+3}, v{vPT+2}, {P(sWS)} sc1
    s_mov_b64 exec, 0xffff
    s_getpc_b64 {P(sT0)}
    L_pc:
    s_lshl_b32 s{sT2}, s{sM}, 10
    v_lshl_add_u32 v{vPT+2}, v{vLANE}, 6, s{sT2}
    v_min_u32 v{vPT+2}, L_codeend-L_pc-4, v{vPT+2}
    global_load_dword v{vPT+3}, v{vPT+2}, {P(sT0)}
    s_mov_b64 exec, -1
    L_nopt:
    ''')
    A(f'''
    v_mov_b32 v{vPT}, {L_CNT}
    v_mov_b32 v{vPT+1}, 0
    ds_write_b32 v{vPT}, v{vPT+1}
    v_and_b32 v{vT2}, 7, v0
    v_lshl_add_u32 v{vT2}, s{sWAVE}, 3, v{vT2}
    v_lshlrev_b32 v{vT2}, 10, v{vT2}
    v_lshrrev_b32 v{vT3}, 3, v{vLANE}
    v_lshl_add_u32 v{vJR}, v{vT3}, 4, v{vT2}
    v_add_u32 v{vJR}, s{sTILE}, v{vJR}
    s_barrier
    buffer_load_dwordx4 {q4(vFl+4)}, v{vT0}, s[{sFSRD}:{sFSRD+3}], 0 offen
    s_mov_b64 exec, 1
    buffer_load_dwordx4 {q4(vFl)}, v{vT1}, s[{sFSRD}:{sFSRD+3}], 0 offen
    s_mov_b64 exec, -1
    s_and_b32 s{sT0}, s{sM}, 3
    s_lshl_b32 s{sT0}, s{sT0}, 8
    s_and_b32 s{sT1}, s{sWAVE}, 3
    s_lshl_b32 s{sT1}, s{sT1}, 6
    s_add_u32 s{sT0}, s{sT0}, s{sT1}
    v_and_b32 v{vT2}, 0x38, v0
    v_add_u32 v{vT2}, s{sT0}, v{vT2}
    global_load_dwordx2 {pr(vGC)}, v{vT2}, {P(sC)}
    s_lshl_b32 s{sT0}, s{sG}, 9
    s_add_u32 s{sT0}, s{sT0}, {MTAB}
    v_and_b32 v{vPT}, 31, v0
    v_lshl_add_u32 v{vPT}, v{vPT}, 4, s{sT0}
    s_lshl_b32 s{sT1}, s{sM}, 4
    s_add_u32 s{sT0}, s{sT0}, s{sT1}
    v_mov_b32 v{vPT+1}, s{sT0}
    s_waitcnt lgkmcnt(0)
    s_mul_i32 s{sTAG}, s{sEP}, 0x9E3779B1
    s_add_u32 s{sTAG}, s{sTAG}, 0x7F4A7C15
    s_add_u32 s{sXCC}, s{sXCC}, s{sTAG}
    s_add_u32 s{sXCC}, s{sXCC}, 1
    v_mov_b32 v{vPT+2}, s{sXCC}
    s_cmp_lg_u32 s{sWAVE}, 0
    s_cbranch_scc1 L_nomode
    s_mov_b64 exec, 1
    global_store_dword v{vPT+1}, v{vPT+2}, {P(sWS)} sc1
    s_mov_b64 exec, -1
    L_nomode:
    ''')
    stamp('issued')
    A(f's_mov_b32 s{sPEND}, 0')
    def wv(n): A(f's_waitcnt vmcnt({n})')
    vTp = 46
    vKp = 54
    vVp = 68
    vAc = 76
    vPp = 84
    vO = 92
    wv(7)
    for i in range(3): A(f'v_mov_b32 v{vPp+i}, v{vKr+4+i}')
    for i in range(3): A(f'v_permlane32_swap_b32 v{vKr+i}, v{vPp+i}')
    for j in range(4):
        src0, src1 = vSk + (j >> 1), vSk + 2 + (j >> 1)
        if j & 1:
            A(f'v_and_b32 v{vTp+2*j}, s{sMASK}, v{src0}'); A(f'v_and_b32 v{vTp+2*j+1}, s{sMASK}, v{src1}')
        else:
            A(f'v_lshlrev_b32 v{vTp+2*j}, 16, v{src0}'); A(f'v_lshlrev_b32 v{vTp+2*j+1}, 16, v{src1}')
    for r in range(7): unpack(vKp + 2*r, vKr + r)
    stamp('kland')
    for i in range(4): A(f'v_pk_mul_f32 {pr(vAc+2*i)}, {pr(vKp+2*i)}, {pr(vTp+6)}')
    for i in range(8): rnd(vAc + i)
    for j in (2, 1, 0):
        for i in range(4): A(f'v_pk_mul_f32 {pr(vPp+2*i)}, {pr(vKp+2*(i+3-j))}, {pr(vTp+2*j)}')
        for i in range(8): rnd(vPp + i)
        for i in range(4): A(f'v_pk_add_f32 {pr(vAc+2*i)}, {pr(vAc+2*i)}, {pr(vPp+2*i)}')
        for i in range(8): rnd(vAc + i)
    wv(3)
    A(f'global_load_dword v{vMT}, v{vPT}, {P(sWS)} sc1')
    if cfg.X1PT:
        A(f'''
        s_lshl_b32 s{sT0}, s{sWID}, 13
        s_add_u32 s{sT0}, s{sT0}, {XB1}
        v_lshl_add_u32 v{vPT+1}, v0, 4, s{sT0}
        s_mov_b32 s{sT2}, 0x11111111
        s_mov_b32 s{sT3}, 0x11111111
        s_mov_b64 exec, {P(sT2)}
        global_load_dword v{vPT+3}, v{vPT+1}, {P(sWS)} sc1
        s_mov_b64 exec, -1
        ''')
    for i in range(4): unpack(vVp + 2*i, vVr + i)
    for i in range(4): A(f'v_pk_mul_f32 {pr(vAc+2*i)}, {pr(vAc+2*i)}, {pr(vVp+2*i)}')
    for c in range(2):
        A(f'v_cvt_pk_bf16_f32 v{vO+2*c}, v{vAc+6+c}, v{vAc+4+c}')
        A(f'v_cvt_pk_bf16_f32 v{vO+2*c+1}, v{vAc+2+c}, v{vAc+c}')
    A(f'''
    v_and_b32 v{vT0}, 31, v0
    v_lshrrev_b32 v{vT1}, 5, v0
    v_mul_u32_u24 v{vT0}, {TS}, v{vT0}
    v_lshlrev_b32 v{vT1}, 3, v{vT1}
    v_sub_u32 v{vT0}, v{vT0}, v{vT1}
    v_add_u32 v{vT0}, {L_T + 120}, v{vT0}
    ds_write2_b64 v{vT0}, {pr(vO)}, {pr(vO+2)} offset0:0 offset1:16
    ''')
    A(f'''
    v_lshrrev_b32 v{vT1}, 4, v0
    v_mul_u32_u24 v{vT2}, {TS}, v{vT1}
    v_and_b32 v{vT3}, 15, v0
    v_lshl_add_u32 v{vT2}, v{vT3}, 4, v{vT2}
    v_lshlrev_b32 v{vT1}, 13, v{vT1}
    v_bfe_u32 v{vT3}, v0, 3, 1
    v_lshl_add_u32 v{vT1}, v{vT3}, 12, v{vT1}
    v_and_b32 v{vT3}, 7, v0
    v_lshl_add_u32 v{vT1}, v{vT3}, 4, v{vT1}
    s_lshl_b32 s{sT0}, s{sG}, 18
    s_sub_u32 s{sT1}, 31, s{sM}
    s_lshl_b32 s{sT1}, s{sT1}, 7
    s_add_u32 s{sT0}, s{sT0}, s{sT1}
    s_add_u32 s{sT0}, s{sT0}, {XB1}
    v_add_u32 v{vT1}, s{sT0}, v{vT1}
    s_waitcnt lgkmcnt(0)
    s_barrier
    ds_read_b128 {q4(vO)}, v{vT2} offset:{L_T}
    ''')
    stamp('B1')
    vX1A = 96
    A(f'''
    v_mov_b32 v{vX1A}, v{vT1}
    s_lshl_b32 s{sT0}, s{sG}, 10
    s_lshl_b32 s{sT1}, s{sWAVE}, 7
    s_add_u32 s{sT0}, s{sT0}, s{sT1}
    s_lshl_b32 s{sT1}, s{sM}, 2
    s_add_u32 s{sT0}, s{sT0}, s{sT1}
    v_mov_b32 v{vA}, s{sT0}
    v_mov_b32 v{vB}, s{sTAG}
    s_waitcnt lgkmcnt(0)
    global_store_dwordx4 v{vX1A}, {q4(vO)}, {P(sWS)}
    ''')
    vW1 = 46
    vOa = 52
    vOb = 58
    wv(4 if cfg.X1PT else 3)
    for i in range(4): A(f'v_mov_b32_dpp v{vFl+i}, v{vFl+4+i} wave_shr:1 {DPPM}')
    for i in range(6): A(f'v_mov_b32 v{vW1+i}, v{vFl+1+i}')
    for i in range(6): A(f'v_alignbyte_b32 v{vOa+i}, v{vFl+i+1}, v{vFl+i}, 2')
    for i in range(6): A(f'v_alignbyte_b32 v{vOb+i}, v{vFl+i+2}, v{vFl+i+1}, 2')
    A(f'''
    v_lshrrev_b32 v{vT0}, 8, v0
    v_mul_u32_u24 v{vT0}, {UCH}, v{vT0}
    v_and_b32 v{vT1}, 255, v0
    v_lshl_add_u32 v{vT0}, v{vT1}, 4, v{vT0}
    v_add_u32 v{vT0}, {L_U}, v{vT0}
    v_add_u32 v{vT2}, {FL1}, v{vA}
    s_mov_b32 s{sMODE}, {0 if cfg.FORCE_SLOW else 1}
    s_waitcnt vmcnt(0)
    v_cmp_ne_u32 vcc, s{sXCC}, v{vMT}
    s_cbranch_vccnz L_modeslow
    L_modeback:
    s_cmp_eq_u32 s{sMODE}, 1
    s_cbranch_scc0 L_x1slow
    L_x1back:
    s_mov_b64 exec, 1
    ''')
    late.append(('L_x1slow', lambda: (A(f'global_store_dwordx4 v{vX1A}, {q4(vO)}, {P(sWS)} sc1'), A('s_waitcnt vmcnt(0)'), A('s_branch L_x1back'))))
    lstore(f'global_store_dword v{vT2}, v{vB}, {P(sWS)}')
    A('s_mov_b64 exec, -1')
    stamp('flag1')
    srcs = {0: vOa, 1: vW1, 2: vOb, 3: vFl + 2, 4: vOa + 2, 5: vW1 + 2, 6: vOb + 2, 7: vFl + 4}
    vUA = 97
    A(f'v_mov_b32 v{vUA}, v{vT0}')
    def uwrites():
        for c in range(8): A(f'ds_write_b128 v{vUA}, {q4(srcs[c])} offset:{c*USTR + 16}')
    A(f's_cmp_eq_u32 s{sWAVE}, 4')
    A('s_cbranch_scc1 L_nouw')
    uwrites()
    A('L_nouw:')
    vZ = 64
    for i in range(4): A(f'v_mov_b32 v{vZ+i}, 0')
    vXp = 100
    vXA = 108
    vXL = 109
    A(f'''
    v_mul_u32_u24 v{vT0}, {USTR}, v{vLANE}
    v_lshrrev_b32 v{vT1}, 5, v{vLANE}
    v_mul_u32_u24 v{vT1}, {KVS - 512}, v{vT1}
    v_lshl_add_u32 v{vT1}, v{vLANE}, 4, v{vT1}
    v_add_u32 v{vT1}, {L_KVR + 4096}, v{vT1}
    s_cmp_lg_u32 s{sWAVE}, 0
    s_cbranch_scc1 L_nz0
    s_mov_b64 exec, 0xffff
    ds_write_b128 v{vT0}, {q4(vZ)} offset:{L_U}
    s_mov_b64 exec, -1
    ds_write_b128 v{vT1}, {q4(vZ)}
    L_nz0:
    v_lshrrev_b32 v{vT0}, 3, v{vLANE}
    v_and_b32 v{vT1}, 7, v0
    v_lshl_add_u32 v{vT1}, s{sWAVE}, 3, v{vT1}
    v_lshlrev_b32 v{vT1}, 4, v{vT1}
    v_lshl_add_u32 v{vXA}, v{vT0}, 18, v{vT1}
    s_lshl_b32 s{sT0}, s{sM}, 13
    s_lshl_b32 s{sT1}, s{sG}, 10
    s_add_u32 s{sT0}, s{sT0}, s{sT1}
    v_add_u32 v{vXA}, s{sT0}, v{vXA}
    v_lshl_add_u32 v{vXL}, v{vT0}, 10, v{vT1}
    s_lshl_b32 s{sT0}, s{sWID}, 13
    v_add_u32 v{vXL}, s{sT0}, v{vXL}
    s_cmp_ge_u32 s{sWAVE}, 4
    s_cbranch_scc1 L_helper
    ''')
    vAA, vBA, vPW = 110, 111, 112
    vACC = 116
    vFA = [148, 180]
    vFB = [212, 46]
    A(f'''
    v_and_b32 v{vT0}, 15, v0
    v_lshrrev_b32 v{vT1}, 4, v{vLANE}
    v_and_b32 v{vT2}, 7, v0
    v_mul_u32_u24 v{vAA}, {USTR}, v{vT2}
    v_lshrrev_b32 v{vT2}, 3, v{vT0}
    v_add_u32 v{vT2}, v{vT2}, v{vT1}
    v_lshl_add_u32 v{vAA}, v{vT2}, 4, v{vAA}
    s_lshr_b32 s{sT0}, s{sWAVE}, 1
    s_and_b32 s{sT1}, s{sWAVE}, 1
    s_lshl_b32 s{sT1}, s{sT1}, 8
    s_mul_i32 s{sT2}, s{sT0}, {UCH}
    s_add_u32 s{sT2}, s{sT2}, s{sT1}
    s_add_u32 s{sT2}, s{sT2}, {L_U}
    v_add_u32 v{vAA}, s{sT2}, v{vAA}
    v_lshlrev_b32 v{vBA}, 4, v{vT1}
    v_lshlrev_b32 v{vT2}, 5, v{vT0}
    v_sub_u32 v{vBA}, v{vBA}, v{vT2}
    s_mul_i32 s{sT2}, s{sT0}, {KVS}
    s_add_u32 s{sT2}, s{sT2}, s{sT1}
    s_add_u32 s{sT2}, s{sT2}, {L_KVR + 480}
    v_add_u32 v{vBA}, s{sT2}, v{vBA}
    ''')
    def ldA(st, r, p): A(f'ds_read_b128 {q4(vFA[st]+4*p)}, v{vAA} offset:{64*r + 512*p}')
    def ldB(st, r, q): A(f'ds_read_b128 {q4(vFB[st]+4*q)}, v{vBA} offset:{(7-q)*512 + 64*r}')
    A(f'''
    v_lshl_add_u32 v{vT2}, v{vT1}, 2, v{vT0}
    v_and_b32 v{vT2}, 15, v{vT2}
    v_lshl_add_u32 v{vT2}, v{vT1}, 4, v{vT2}
    v_lshlrev_b32 v{vPW}, 4, v{vT2}
    s_lshl_b32 s{sT0}, s{sWAVE}, 13
    s_add_u32 s{sT0}, s{sT0}, {L_P}
    v_add_u32 v{vPW}, s{sT0}, v{vPW}
    s_waitcnt lgkmcnt(0)
    s_barrier
    s_setprio {cfg.PRIO}
    ''')
    for i in range(8): ldA(0, 0, i)
    A('s_waitcnt lgkmcnt(0)')
    A('s_barrier')
    stamp('B2')
    for i in range(8): ldB(0, 0, i)
    order = [(p, j - p) for j in range(8) for p in range(j + 1)]
    for r in range(4):
        st = r & 1
        nxt = [(k, i) for i in range(8) for k in 'AB'] if r < 3 else []
        issued = 0
        written = 0
        for n, (p, q) in enumerate(order):
            j = p + q
            if p == 0 and r == 0:
                A(f's_waitcnt lgkmcnt({min(15, 8 - (j+1) + issued)})')
            c = '0' if (r == 0 and p == 0) else q4(vACC + 4*j)
            A(f'v_mfma_f32_16x16x32_bf16 {q4(vACC+4*j)}, {q4(vFA[st]+4*p)}, {q4(vFB[st]+4*q)}, {c}')
            if nxt and issued < 16 and n >= (4 if r == 0 else 1):
                k, i = nxt[issued]
                (ldA if k == 'A' else ldB)(st ^ 1, r + 1, i); issued += 1
            if r == 3:
                while written < 8 and n >= written*(written+3)//2 + 9 and written <= j - 1:
                    A(f'ds_write_b128 v{vPW}, {q4(vACC+4*written)} offset:{1024*written}'); written += 1
        if r < 3: A('s_waitcnt lgkmcnt(0)')
        else:
            while written < 8:
                A(f'ds_write_b128 v{vPW}, {q4(vACC+4*written)} offset:{1024*written}'); written += 1
    A('s_setprio 0')
    A('s_branch L_s1join')
    A('L_helper:')
    vKD = 116
    vKV = 132
    vXo = 140
    vI0 = 220
    vDUM = 230
    vWRr = 231
    vGW = 164
    vF2, vD2 = 54, 55
    wr_ = [0]
    def wvr(n_s3only, n_both, n_gonly):
        wr_[0] += 1; k = wr_[0]
        A(f'''
        s_cmp_lg_u32 s{sPEND}, 3
        s_cbranch_scc1 L_wr{k}a
        s_waitcnt vmcnt({n_both})
        L_wr{k}b:
        ''')
        late.append((f'L_wr{k}a', lambda: (A(f's_waitcnt vmcnt({min(n_s3only, n_gonly)})') if n_s3only == n_gonly else
                     A(f'''s_cmp_eq_u32 s{sPEND}, 2
                     s_cbranch_scc1 L_wr{k}c
                     s_waitcnt vmcnt({n_gonly})
                     s_branch L_wr{k}b
                     L_wr{k}c:
                     s_waitcnt vmcnt({n_s3only})'''), A(f's_branch L_wr{k}b'))))
    A(f'''
    s_cmp_lt_u32 s{sM}, {NG0}
    s_cselect_b32 s{sT0}, 0, 1
    s_cmp_lt_u32 s{sM}, {NS3}
    s_cselect_b32 s{sT1}, 2, 0
    s_add_u32 s{sPEND}, s{sT0}, s{sT1}
    ''')
    vWA = 144
    sWB = 12
    def wblock(tag):
        A(f'''
        s_cmp_ge_u32 s{sM}, {NS3}
        s_cbranch_scc1 L_h_now{tag}
        s_lshl_b32 s{sT5}, s{sT4}, 12
        s_add_u32 s{sT5}, s{sT5}, {L_WGU}
        ''')
        for i in range(4):
            A(f's_mov_b32 m0, s{sT5}')
            A(f'global_load_lds_dwordx4 v{vWA}, {P(sWB)}')
            if i < 3:
                A(f'v_add_u32 v{vWA}, {16*3584}, v{vWA}')
                A(f's_add_u32 s{sT5}, s{sT5}, 1024')
        A(f'''
        s_lshl_b32 s{sT5}, s{sT4}, 11
        s_add_u32 s{sT5}, s{sT5}, {L_WGU + 16384}
        s_mov_b32 m0, s{sT5}
        s_add_u32 s{sT5}, s{sT5}, 1024
        global_load_lds_dwordx4 v{vWA+1}, {P(sWD)}
        s_mov_b32 m0, s{sT5}
        s_nop 0
        global_load_lds_dwordx4 v{vWA+2}, {P(sWD)}
        L_h_now{tag}:
        ''')
    vSt = 188
    for i in range(2): unpack(vSt + 2*i, vGC + i)
    for i in range(4): A(f'v_mul_f32 v{vSt+4+i}, 0xbfb8aa3b, v{vSt+i}')
    for i in range(4): A(f'v_exp_f32 v{vSt+4+i}, v{vSt+4+i}')
    for i in range(4): A(f'v_add_f32 v{vSt+4+i}, 1.0, v{vSt+4+i}')
    for i in range(4): A(f'v_rcp_f32 v{vSt+4+i}, v{vSt+4+i}')
    for i in range(4): A(f'v_mul_f32 v{vSt+i}, v{vSt+i}, v{vSt+4+i}')
    for i in range(2): A(f'v_cvt_pk_bf16_f32 v{vGC+i}, v{vSt+2*i}, v{vSt+2*i+1}')
    A(f'''
    s_sub_u32 s{sT4}, s{sWAVE}, 4
    s_min_u32 s{sT5}, s{sM}, {NS3-1}
    s_lshr_b32 s{sT0}, s{sT5}, 2
    s_mul_i32 s{sT3}, s{sG}, 7
    s_add_u32 s{sT0}, s{sT0}, s{sT3}
    s_lshl_b32 s{sT2}, s{sT0}, 6
    s_and_b32 s{sT1}, s{sM}, 3
    s_lshl_b32 s{sT3}, s{sT1}, 1
    s_and_b32 s{sT5}, s{sWAVE}, 1
    s_add_u32 s{sT3}, s{sT3}, s{sT5}
    s_mul_i32 s{sT3}, s{sT3}, {64*3584}
    s_add_u32 s{sT2}, s{sT2}, s{sT3}
    v_lshrrev_b32 v{vWA}, 2, v{vLANE}
    v_mul_u32_u24 v{vWA}, 3584, v{vWA}
    v_and_b32 v{vT2}, 3, v0
    v_lshl_add_u32 v{vWA}, v{vT2}, 4, v{vWA}
    v_add_u32 v{vWA}, s{sT2}, v{vWA}
    s_cmp_ge_u32 s{sWAVE}, 6
    s_cselect_b32 s{sWB}, s{sWU}, s{sWG}
    s_cselect_b32 s{sWB+1}, s{sWU+1}, s{sWG+1}
    s_lshl_b32 s{sT2}, s{sT0}, 15
    s_lshl_b32 s{sT3}, s{sT1}, 8
    s_add_u32 s{sT2}, s{sT2}, s{sT3}
    s_lshl_b32 s{sT3}, s{sT4}, 13
    s_add_u32 s{sT2}, s{sT2}, s{sT3}
    v_lshrrev_b32 v{vT2}, 4, v{vLANE}
    v_lshlrev_b32 v{vT2}, 10, v{vT2}
    v_and_b32 v{vT3}, 15, v0
    v_lshl_add_u32 v{vT2}, v{vT3}, 4, v{vT2}
    v_add_u32 v{vWA+1}, s{sT2}, v{vT2}
    v_add_u32 v{vWA+2}, 4096, v{vWA+1}
    s_max_u32 s{sT0}, s{sM}, {NG0}
    s_sub_u32 s{sT0}, s{sT0}, {NG0}
    s_lshr_b32 s{sT1}, s{sT0}, 2
    s_and_b32 s{sT3}, s{sT0}, 3
    s_lshl_b32 s{sT3}, s{sT3}, 7
    s_lshl_b32 s{sT5}, s{sT4}, 5
    s_add_u32 s{sT3}, s{sT3}, s{sT5}
    v_lshrrev_b32 v{vKV}, 3, v{vLANE}
    v_lshl_add_u32 v{vKV}, v{vKV}, 2, s{sT3}
    s_movk_i32 s{sT3}, 6144
    v_mul_lo_u32 v{vKV}, v{vKV}, s{sT3}
    v_and_b32 v{vT3}, 7, v0
    v_lshl_add_u32 v{vKV}, v{vT3}, 4, v{vKV}
    s_lshl_b32 s{sT1}, s{sT1}, 10
    s_lshl_b32 s{sT2}, s{sG}, 7
    s_add_u32 s{sT1}, s{sT1}, s{sT2}
    v_add_u32 v{vKV}, s{sT1}, v{vKV}
    v_lshl_add_u32 v{vKV+2}, v{vLANE}, 1, s{sT2}
    v_subrev_u32 v{vKV+3}, 0x8000, v{vJR}
    s_cmp_lg_u32 s{sWAVE}, 4
    s_cbranch_scc1 L_h_b2a
    s_lshr_b32 s{sT2}, s{sM}, 2
    s_lshl_b32 s{sT2}, s{sT2}, 7
    s_lshl_b32 s{sT1}, s{sG}, 10
    s_add_u32 s{sT2}, s{sT2}, s{sT1}
    s_add_u32 s{sT2}, s{sT2}, {FL1}
    v_and_b32 v{vT0}, 31, v0
    v_lshl_add_u32 v{vT0}, v{vT0}, 2, s{sT2}
    s_lshl_b32 s{sT0}, s{sWID}, 13
    s_add_u32 s{sT0}, s{sT0}, {XB1}
    v_lshl_add_u32 v{vT1}, v{vLANE}, 4, s{sT0}
    v_add_u32 v{vT3}, 4096, v{vT1}
    s_mov_b32 m0, {L_KVR}
    ''')
    poll('L_poll1', f'global_load_dword v{vT2}, v{vT0}, {P(sWS)} sc1', f'v_cmp_ne_u32 vcc, s{sTAG}, v{vT2}')
    for i in range(4): A(f'global_load_lds_dwordx4 v{vT1}, {P(sWS)} offset:{1024*i} sc1')
    A(f's_mov_b32 m0, {L_KVR + KVS}')
    for i in range(4): A(f'global_load_lds_dwordx4 v{vT3}, {P(sWS)} offset:{1024*i} sc1')
    stamp('poll1')
    uwrites()
    A(f'''
    L_h_b2a:
    s_waitcnt lgkmcnt(0)
    s_barrier
    global_load_dwordx4 {q4(vX)}, v{vJR}, {P(sX)}
    global_load_dwordx4 {q4(vXo)}, v{vKV+3}, {P(sX)}
    global_load_ushort v{vWRr}, v{vKV+2}, {P(sWR)}
    s_cmp_lt_u32 s{sM}, {NG0}
    s_cbranch_scc1 L_h_nog
    ''')
    for i in range(4):
        A(f'global_load_dwordx4 {q4(vGW+4*i)}, v{vKV}, {P(sWM)}')
        if i < 3: A(f'v_add_u32 v{vKV}, s{sT3}, v{vKV}')
    A('L_h_nog:')
    wvr(3, 7, 7)
    A('s_barrier')
    wblock('a')
    A(f'''
    s_lshl_b32 s{sT0}, s{sWAVE}, 9
    s_sub_u32 s{sT0}, {L_KVR + 4088}, s{sT0}
    v_lshlrev_b32 v{vT0}, 3, v{vLANE}
    v_sub_u32 v{vT0}, s{sT0}, v{vT0}
    ds_read_b64 {pr(vKV)}, v{vT0}
    ds_read_b64 {pr(vKV+2)}, v{vT0} offset:{KVS}
    ds_read_b64 {pr(vKV+4)}, v{vT0} offset:2048
    ds_read_b64 {pr(vKV+6)}, v{vT0} offset:{KVS+2048}
    s_lshl_b32 s{sD0}, s{sDV}, 16
    s_and_b32 s{sD1}, s{sDV}, s{sMASK}
    s_waitcnt lgkmcnt(0)
    ''')
    for t in range(2):
        for c in range(2):
            b = vKD + 8*t + 4*c; s = vKV + 4*t + 2*c
            A(f'v_and_b32 v{b}, s{sMASK}, v{s+1}')
            A(f'v_lshlrev_b32 v{b+1}, 16, v{s+1}')
            A(f'v_and_b32 v{b+2}, s{sMASK}, v{s}')
            A(f'v_lshlrev_b32 v{b+3}, 16, v{s}')
            for i in range(4): A(f'v_mul_f32 v{b+i}, s{sD0+c}, v{b+i}')
            for i in range(4): rnd(b + i)
    A(f'''
    s_lshl_b32 s{sT1}, s{sT4}, 11
    s_add_u32 s{sT1}, s{sT1}, {L_KD}
    v_lshl_add_u32 v{vT0}, v{vLANE}, 4, s{sT1}
    ds_write_b128 v{vT0}, {q4(vKD+8)}
    ds_write_b128 v{vT0}, {q4(vKD+12)} offset:1024
    ''')
    A(f'''
    s_lshl_b32 s{sT1}, s{sT4}, 10
    s_add_u32 s{sT1}, s{sT1}, {L_XS}
    v_lshl_add_u32 v{vT0}, v{vLANE}, 4, s{sT1}
    ''')
    wvr(7, 11, 5)
    A(f'ds_write_b128 v{vT0}, {q4(vXo)}')
    vXq = 186
    vS0 = 196
    for i in range(4): unpack(vXp + 2*i, vX + i)
    for i in range(4): unpack(vXq + 2*i, vXo + i)
    for (xb, u, t) in ((vXp, vS0, 204), (vXq, vS0 + 4, 208)):
        A(f'v_pk_add_f32 {pr(t)}, {pr(xb)}, {pr(xb+2)}')
        A(f'v_pk_mul_f32 {pr(t+2)}, {pr(xb)}, {pr(xb)}')
        for i in range(1, 4): A(f'v_pk_fma_f32 {pr(t+2)}, {pr(xb+2*i)}, {pr(xb+2*i)}, {pr(t+2)}')
        for i in range(2, 4): A(f'v_pk_add_f32 {pr(t)}, {pr(t)}, {pr(xb+2*i)}')
        A(f'v_add_f32 v{u}, v{t}, v{t+1}')
        A(f'v_add_f32 v{u+2}, v{t+2}, v{t+3}')
    allred([vS0, vS0 + 2, vS0 + 4, vS0 + 6], [204, 205, 206, 207])
    A(f'''
    v_mov_b32 v{vS0+1}, s{sTAG}
    v_mov_b32 v{vS0+3}, s{sTAG}
    v_mov_b32 v{vS0+5}, s{sTAG}
    v_mov_b32 v{vS0+7}, s{sTAG}
    v_add_u32 v{vT0}, {X0 - 512}, v{vXA}
    global_store_dwordx4 v{vT0}, {q4(vS0)}, {P(sWS)} offset:512 sc1
    global_store_dwordx4 v{vT0}, {q4(vS0+4)}, {P(sWS)} sc1
    ''')
    stamp('gemv0')
    def gemv_block(nb, ng):
        A(f'''
        s_cmp_lt_u32 s{sM}, {NG0}
        s_cbranch_scc1 L_g_done
        s_cmp_lt_u32 s{sWAVE}, 4
        s_cbranch_scc1 L_g_done
        ''')
        wvr(63, nb, ng)
        vSC = vGC
        vGA = 204
        vGP = 212
        A(f's_mov_b32 s{sT0}, 0x05040100')
        A(f's_mov_b32 s{sT1}, 0x07060302')
        for rp in range(2):
            w0, w1 = vGW + 8*rp, vGW + 8*rp + 4
            for d in range(4):
                A(f'v_perm_b32 v{vGP+2*d}, v{w1+d}, v{w0+d}, s{sT0}')
                A(f'v_perm_b32 v{vGP+2*d+1}, v{w1+d}, v{w0+d}, s{sT1}')
            for c in range(8): A(f'v_dot2_f32_bf16 v{vGA+c}, v{vGP+c}, v{vSC+rp}, ' + (f'v{vGA+c}' if rp else '0'))
        for c in range(4): A(f'v_permlane32_swap_b32 v{vGA+c}, v{vGA+c+4}')
        for c in range(4): A(f'v_add_f32 v{vGA+c}, v{vGA+c}, v{vGA+c+4}')
        for c in range(2): A(f'v_permlane16_swap_b32 v{vGA+c}, v{vGA+c+2}')
        for c in range(2): A(f'v_add_f32 v{vGA+c}, v{vGA+c}, v{vGA+c+2}')
        for c in range(2): A(f'v_add_f32_dpp v{vGA+c}, v{vGA+c}, v{vGA+c} row_ror:8 {DPPM}')
        A(f'''
        v_and_b32 v{vT0}, 8, v0
        v_cmp_ne_u32 vcc, 0, v{vT0}
        v_cndmask_b32 v{vGA}, v{vGA}, v{vGA+1}, vcc
        v_and_b32 v{vT0}, 7, v0
        v_lshrrev_b32 v{vT1}, 3, v{vLANE}
        v_lshl_add_u32 v{vT0}, v{vT0}, 3, v{vT1}
        s_sub_u32 s{sT0}, s{sWAVE}, 4
        s_lshl_b32 s{sT0}, s{sT0}, 8
        s_add_u32 s{sT0}, s{sT0}, {L_GP}
        v_lshl_add_u32 v{vT0}, v{vT0}, 2, s{sT0}
        ds_write_b32 v{vT0}, v{vGA}
        v_mov_b32 v{vT1}, {L_CNT}
        v_mov_b32 v{vT2}, 1
        s_waitcnt lgkmcnt(0)
        s_mov_b64 exec, 1
        ds_add_rtn_u32 v{vT2}, v{vT1}, v{vT2}
        s_mov_b64 exec, -1
        s_waitcnt lgkmcnt(0)
        v_readfirstlane_b32 s{sT0}, v{vT2}
        s_cmp_lg_u32 s{sT0}, 3
        s_cbranch_scc1 L_g_done
        v_lshlrev_b32 v{vT0}, 2, v{vLANE}
        ds_read2st64_b32 {pr(vGA)}, v{vT0} offset0:{L_GP//256} offset1:{L_GP//256+1}
        ds_read2st64_b32 {pr(vGA+2)}, v{vT0} offset0:{L_GP//256+2} offset1:{L_GP//256+3}
        s_sub_u32 s{sT0}, s{sM}, {NG0}
        s_lshl_b32 s{sT0}, s{sT0}, 9
        s_lshl_b32 s{sT1}, s{sG}, 14
        s_add_u32 s{sT0}, s{sT0}, s{sT1}
        s_add_u32 s{sT0}, s{sT0}, {MODP}
        v_lshl_add_u32 v{vT0}, v{vLANE}, 3, s{sT0}
        s_waitcnt lgkmcnt(0)
        v_pk_add_f32 {pr(vGA)}, {pr(vGA)}, {pr(vGA+2)}
        v_add_f32 v{vGA}, v{vGA}, v{vGA+1}
        v_mov_b32 v{vGA+1}, s{sTAG}
        ''')
        lstore(f'global_store_dwordx2 v{vT0}, {pr(vGA)}, {P(sWS)}')
        A('L_g_done:')
    if cfg.GPOS == 's1': gemv_block(8, 2)
    A('L_s1join:')
    stamp('s1join')
    vPp0 = 148
    vKDe = 116
    vMn, vInv = 64, 65
    vH = 232
    vPar = 164
    vU = 46
    def rdpar(lst):
        for pi in lst:
            A(f'ds_read_b128 {q4(vPar+8*pi)}, v{vPA} offset:{L_MOD + 256*pi}')
            A(f'ds_read_b128 {q4(vPar+8*pi+4)}, v{vPA} offset:{L_MOD + 256*pi + 16}')
    A(f'''
    v_lshrrev_b32 v{vT0}, 2, v{vLANE}
    v_and_b32 v{vT1}, 3, v0
    v_lshl_add_u32 v{vT0}, v{vT1}, 2, v{vT0}
    v_and_b32 v{vT0}, 15, v{vT0}
    v_lshl_add_u32 v{vT0}, v{vT1}, 4, v{vT0}
    v_lshlrev_b32 v{vT0}, 4, v{vT0}
    s_lshl_b32 s{sT0}, s{sWAVE}, 10
    s_add_u32 s{sT1}, s{sT0}, {L_P}
    v_add_u32 v{vT0}, s{sT1}, v{vT0}
    s_lshl_b32 s{sT1}, s{sWAVE}, 11
    s_add_u32 s{sT1}, s{sT1}, {L_KD}
    v_lshl_add_u32 v{vT1}, v{vLANE}, 4, s{sT1}
    s_lshl_b32 s{sT2}, s{sWID}, 13
    s_add_u32 s{sT2}, s{sT2}, {XB1}
    v_lshl_add_u32 v{vT2}, v0, 4, s{sT2}
    v_lshlrev_b32 v{vT3}, 4, v0
    v_add_u32 v{vT3}, {L_XS}, v{vT3}
    v_lshrrev_b32 v{vPA}, 3, v{vLANE}
    v_lshlrev_b32 v{vPA}, 5, v{vPA}
    s_waitcnt lgkmcnt(0)
    s_barrier
    ''')
    for w in range(4): A(f'ds_read_b128 {q4(vPp0+4*w)}, v{vT0} offset:{8192*w}')
    A(f'''
    s_cmp_ge_u32 s{sWAVE}, 4
    s_cbranch_scc1 L_nokd
    ds_read_b128 {q4(vKDe)}, v{vT1}
    ds_read_b128 {q4(vKDe+4)}, v{vT1} offset:1024
    ds_read_b128 {q4(vX)}, v{vT3}
    L_nokd:
    s_waitcnt lgkmcnt(0)
    ''')
    for c in range(2):
        for h in range(2): A(f'v_pk_add_f32 {pr(vPp0+8*c+2*h)}, {pr(vPp0+8*c+2*h)}, {pr(vPp0+8*c+4+2*h)}')
    for c in range(2):
        for i in range(4): rnd(vPp0 + 8*c + i)
    for c in range(2):
        for h in range(2): A(f'v_pk_add_f32 {pr(vPp0+8*c+2*h)}, {pr(vPp0+8*c+2*h)}, {pr(vKDe+4*c+2*h)}')
    for i in range(4): A(f'v_cvt_pk_bf16_f32 v{vPp0+4+i}, v{vPp0+i}, v{vPp0+8+i}')
    lstore(f'global_store_dwordx4 v{vT2}, {q4(vPp0+4)}, {P(sWS)}')
    stamp('zst')
    vMQ = 140
    vXCA = 139
    vZA = 68
    A(f'''
    v_mov_b32 v{vXCA}, 0
    s_min_u32 s{sT5}, s{sWAVE}, 5
    s_cmp_eq_u32 s{sWAVE}, 6
    s_cselect_b32 s{sT5}, 3, s{sT5}
    s_cmp_eq_u32 s{sWAVE}, 7
    s_cselect_b32 s{sT5}, 4, s{sT5}
    s_lshl_b32 s{sT1}, s{sT5}, 11
    s_lshl_b32 s{sT2}, s{sG}, 14
    s_add_u32 s{sT1}, s{sT1}, s{sT2}
    s_add_u32 s{sT1}, s{sT1}, {MODP}
    v_lshl_add_u32 v{vD2+1}, v{vLANE}, 4, s{sT1}
    v_add_u32 v{vD2+2}, {X0}, v{vXL}
    ''')
    modld = '\n'.join([f'global_load_dwordx4 {q4(vMQ+4*i)}, v{vD2+1}, {P(sWS)} offset:{1024*i} sc1' for i in range(2)])
    chk = [f'v_xor_b32 v{vMQ+2*i+1}, s{sTAG}, v{vMQ+2*i+1}' for i in range(4)]
    chk += [f'v_or3_b32 v{vMQ+1}, v{vMQ+1}, v{vMQ+3}, v{vMQ+5}', f'v_or_b32 v{vMQ+1}, v{vMQ+1}, v{vMQ+7}', f'v_cmp_ne_u32 vcc, 0, v{vMQ+1}']
    x0ld = f'global_load_dwordx4 {q4(vI0)}, v{vD2+2}, {P(sWS)} sc1'
    x0chk = f'''v_xor_b32 v{vI0+1}, s{sTAG}, v{vI0+1}
         v_xor_b32 v{vI0+3}, s{sTAG}, v{vI0+3}
         v_or_b32 v{vI0+1}, v{vI0+1}, v{vI0+3}
         v_cmp_ne_u32 vcc, 0, v{vI0+1}'''
    A(x0ld)
    for i in range(4): unpack(vXp + 2*i, vX + i)
    if cfg.GPOS == 'zst': gemv_block(10, 4)
    A(f'''
    v_add_u32 v{vT1}, {FL2}, v{vA}
    s_lshr_b32 s{sT2}, s{sM}, 2
    s_lshl_b32 s{sT2}, s{sT2}, 7
    s_lshl_b32 s{sT3}, s{sG}, 10
    s_add_u32 s{sT2}, s{sT2}, s{sT3}
    s_lshl_b32 s{sT3}, s{sWAVE}, 4
    s_add_u32 s{sT2}, s{sT2}, s{sT3}
    s_add_u32 s{sT2}, s{sT2}, {FL2}
    v_and_b32 v{vF2}, 3, v0
    v_lshl_add_u32 v{vF2}, v{vF2}, 2, s{sT2}
    s_lshl_b32 s{sT3}, s{sWAVE}, 1
    v_subrev_u32 v{vD2}, s{sT3}, v0
    v_and_b32 v{vD2}, 15, v{vD2}
    v_lshlrev_b32 v{vD2}, 4, v{vD2}
    v_lshrrev_b32 v{vT2}, 4, v0
    v_lshl_add_u32 v{vD2}, v{vT2}, 13, v{vD2}
    s_lshl_b32 s{sT2}, s{sG}, 18
    s_lshl_b32 s{sT3}, s{sM}, 8
    s_add_u32 s{sT2}, s{sT2}, s{sT3}
    s_add_u32 s{sT2}, s{sT2}, {XB1}
    v_add_u32 v{vD2}, s{sT2}, v{vD2}
    s_lshl_b32 s{sT2}, s{sWAVE}, 10
    s_add_u32 s{sT2}, s{sT2}, {L_Z}
    s_mov_b32 m0, s{sT2}
    v_lshrrev_b32 v{vT0}, 3, v{vLANE}
    v_bfe_u32 v{vT2}, v0, 2, 1
    v_lshl_add_u32 v{vT2}, s{sWAVE}, 1, v{vT2}
    v_lshl_add_u32 v{vT2}, v{vT0}, 1, v{vT2}
    v_and_b32 v{vT2}, 15, v{vT2}
    v_lshlrev_b32 v{vT2}, 4, v{vT2}
    v_lshl_add_u32 v{vZA}, v{vT0}, 10, v{vT2}
    v_and_b32 v{vT2}, 3, v0
    v_lshl_add_u32 v{vZA}, v{vT2}, 2, v{vZA}
    s_mov_b32 s{sT0}, s{sT5}
    s_waitcnt vmcnt(1)
    s_mov_b64 exec, 1
    ''')
    lstore(f'global_store_dword v{vT1}, v{vB}, {P(sWS)}')
    A('s_mov_b64 exec, -1')
    stamp('flag2')
    A(modld)
    A('s_waitcnt vmcnt(3)')
    A(x0chk)
    A('s_cbranch_vccnz L_pollx0')
    A('L_pollx0_back:')
    late.append(('L_pollx0', lambda: (poll('L_pollx0b', x0ld, x0chk), A('s_nop 1'), A('s_branch L_pollx0_back'))))
    allred([vI0, vI0 + 2], [vI0 + 1, vI0 + 3])
    lnstats(vI0, vI0 + 2, vI0 + 1, vMn, vInv)
    for i in range(8): A(f'v_sub_f32 v{vH+i}, v{vXp+i}, v{vMn}')
    for i in range(8): rnd(vH + i)
    for i in range(8): A(f'v_mul_f32 v{vH+i}, v{vH+i}, v{vInv}')
    for i in range(8): rnd(vH + i)
    A('s_waitcnt vmcnt(0)')
    A('\n'.join(chk))
    A('s_cbranch_vccnz L_pollm')
    A('L_pollm_back:')
    late.append(('L_pollm', lambda: (poll('L_pollmb', modld, '\n'.join(chk)), A('s_branch L_pollm_back'))))
    stamp('modok')
    A(f'global_load_dword v{vI0}, v{vF2}, {P(sWS)} sc1')
    A(f'v_add_f32 v{vMQ}, v{vMQ}, v{vMQ+4}')
    A(f'v_add_f32 v{vMQ+2}, v{vMQ+2}, v{vMQ+6}')
    A(f'''
    v_permlane32_swap_b32 v{vMQ}, v{vMQ+2}
    v_add_f32 v{vMQ}, v{vMQ}, v{vMQ+2}
    v_cvt_pk_bf16_f32 v{vMQ}, 0, v{vMQ}
    v_add_f32 v{vMQ+1}, 1.0, v{vMQ}
    v_cvt_pk_bf16_f32 v{vMQ+1}, 0, v{vMQ+1}
    s_cmp_eq_u32 s{sT0}, 1
    s_cselect_b64 vcc, -1, 0
    s_cmp_eq_u32 s{sT0}, 4
    s_cselect_b64 vcc, -1, vcc
    v_cndmask_b32 v{vMQ}, v{vMQ}, v{vMQ+1}, vcc
    v_and_b32 v{vT0}, 31, v0
    v_lshrrev_b32 v{vT1}, 5, v{vLANE}
    v_lshl_add_u32 v{vT0}, v{vT0}, 1, v{vT1}
    v_lshlrev_b32 v{vT0}, 2, v{vT0}
    s_cmp_ge_u32 s{sWAVE}, 6
    s_cbranch_scc1 L_m67
    s_lshl_b32 s{sT1}, s{sT0}, 8
    v_add_u32 v{vT0}, s{sT1}, v{vT0}
    ds_write_b32 v{vT0}, v{vMQ} offset:{L_MOD}
    s_branch L_mjoin
    L_m67:
    ds_bpermute_b32 v{vT1}, v{vT0}, v{vWRr}
    s_waitcnt lgkmcnt(0)
    v_lshlrev_b32 v{vT1}, 16, v{vT1}
    v_mul_f32 v{vMQ+4}, v{vMQ}, v{vT1}
    s_cmp_eq_u32 s{sWAVE}, 7
    s_cselect_b32 s{sT1}, 0, 256
    s_cselect_b32 s{sT2}, 0, 8
    v_add_u32 v{vT0}, s{sT1}, v{vT0}
    ds_write_b32 v{vT0}, v{vMQ+4} offset:{L_MOD + 6*256}
    ''')
    fullred([vMQ + 4], [vMQ + 6])
    A(f'''
    v_mov_b32 v{vMQ+5}, s{sTAG}
    s_lshl_b32 s{sT0}, s{sM}, 7
    s_lshl_b32 s{sT1}, s{sG}, 4
    s_add_u32 s{sT0}, s{sT0}, s{sT1}
    s_add_u32 s{sT0}, s{sT0}, s{sT2}
    s_add_u32 s{sT0}, s{sT0}, {XC}
    v_lshl_add_u32 v{vXCA}, v{vLANE}, 12, s{sT0}
    L_mjoin:
    ''')
    A(f'''
    s_waitcnt vmcnt(0)
    v_cmp_ne_u32 vcc, s{sTAG}, v{vI0}
    s_mov_b32 s{sT4}, 0
    s_cbranch_vccnz L_p2n
    global_load_lds_dwordx4 v{vD2}, {P(sWS)} sc1
    s_mov_b32 s{sT4}, 1
    L_p2n:
    s_waitcnt lgkmcnt(0)
    s_barrier
    ''')
    rdpar((1, 0, 2, 6))
    A('s_waitcnt lgkmcnt(4)')
    for i in range(8): A(f'v_mul_f32 v{vH+i}, v{vH+i}, v{vPar+8+i}')
    for i in range(8): rnd(vH + i)
    for i in range(8): A(f'v_add_f32 v{vH+i}, v{vH+i}, v{vPar+i}')
    for i in range(8): rnd(vH + i)
    A(f'''
    s_cmp_eq_u32 s{sT4}, 1
    s_cbranch_scc1 L_p2d
    ''')
    poll('L_poll2', f'global_load_dword v{vT2}, v{vF2}, {P(sWS)} sc1', f'v_cmp_ne_u32 vcc, s{sTAG}, v{vT2}')
    A(f'global_load_lds_dwordx4 v{vD2}, {P(sWS)} sc1')
    A('L_p2d:')
    stamp('poll2')
    stamp('hdone')
    A('s_waitcnt vmcnt(0)')
    A('s_barrier')
    A(f'''
    s_cmp_lt_u32 s{sWAVE}, 6
    s_cbranch_scc1 L_noxc
    s_mov_b64 exec, 0xff
    global_store_dwordx2 v{vXCA}, {pr(vMQ+4)}, {P(sWS)} sc1
    s_mov_b64 exec, -1
    L_noxc:
    ''')
    stamp('B4')
    vZr = 70
    vZ1 = 74
    vSQ = 82
    A(f'ds_read2st64_b32 {pr(vZr)}, v{vZA} offset0:{L_Z//256} offset1:{L_Z//256+1}')
    A(f'ds_read2st64_b32 {pr(vZr+2)}, v{vZA} offset0:{L_Z//256+2} offset1:{L_Z//256+3}')
    A(f'v_add_u32 v{vT0}, {X3}, v{vXA}')
    A('s_waitcnt lgkmcnt(0)')
    for i in range(4): unpack(vZ1 + 2*i, vZr + i)
    for i in range(8): A(f'v_mul_f32 v{vZ1+i}, v{vZ1+i}, v{vH+i}')
    for i in range(8): rnd(vZ1 + i)
    for i in range(8): A(f'v_mul_f32 v{vZ1+i}, v{vZ1+i}, v{vPar+16+i}')
    for i in range(8): rnd(vZ1 + i)
    for i in range(8): A(f'v_add_f32 v{vZ1+i}, v{vZ1+i}, v{vXp+i}')
    for i in range(8): rnd(vZ1 + i)
    S_, Q_, P_ = vSQ, vSQ + 2, vSQ + 4
    A(f'v_pk_add_f32 {pr(S_)}, {pr(vZ1)}, {pr(vZ1+2)}')
    A(f'v_pk_mul_f32 {pr(Q_)}, {pr(vZ1)}, {pr(vZ1)}')
    A(f'v_pk_mul_f32 {pr(P_)}, {pr(vZ1)}, {pr(vPar+48)}')
    for i in range(1, 4):
        A(f'v_pk_fma_f32 {pr(Q_)}, {pr(vZ1+2*i)}, {pr(vZ1+2*i)}, {pr(Q_)}')
        A(f'v_pk_fma_f32 {pr(P_)}, {pr(vZ1+2*i)}, {pr(vPar+48+2*i)}, {pr(P_)}')
        if i >= 2: A(f'v_pk_add_f32 {pr(S_)}, {pr(S_)}, {pr(vZ1+2*i)}')
    vUn = vSQ + 6
    A(f'v_add_f32 v{vUn}, v{S_}, v{S_+1}')
    A(f'v_add_f32 v{vUn+1}, v{Q_}, v{Q_+1}')
    A(f'v_add_f32 v{vUn+2}, v{P_}, v{P_+1}')
    A(f'v_mov_b32 v{vUn+3}, s{sTAG}')
    allred([vUn, vUn + 1, vUn + 2], [S_, Q_, P_])
    A(f'global_store_dwordx4 v{vT0}, {q4(vUn)}, {P(sWS)} sc1')
    stamp('x3st')
    rdpar((3, 4, 5))
    if cfg.WBL2:
        A(f'''
        s_cmp_lg_u32 s{sM}, 31
        s_cbranch_scc1 L_nowb
        s_cmp_lg_u32 s{sWAVE}, 7
        s_cbranch_scc1 L_nowb
        buffer_wbl2 sc1
        L_nowb:
        ''')
    if cfg.WDPOS == 'x3':
        A(f'''
        s_cmp_ge_u32 s{sM}, {NS3}
        s_cbranch_scc1 L_nowd
        s_lshr_b32 s{sT0}, s{sM}, 2
        s_mul_i32 s{sT1}, s{sG}, 7
        s_add_u32 s{sT0}, s{sT0}, s{sT1}
        s_and_b32 s{sT1}, s{sM}, 3
        s_lshl_b32 s{sT4}, s{sWAVE}, 10
        s_add_u32 s{sT4}, s{sT4}, {L_WGU + 16384}
        s_mov_b32 m0, s{sT4}
        s_lshl_b32 s{sT2}, s{sT0}, 15
        s_lshl_b32 s{sT3}, s{sT1}, 8
        s_add_u32 s{sT2}, s{sT2}, s{sT3}
        v_lshrrev_b32 v{vT2}, 4, v0
        v_lshlrev_b32 v{vT2}, 10, v{vT2}
        v_and_b32 v{vT3}, 15, v0
        v_lshl_add_u32 v{vT2}, v{vT3}, 4, v{vT2}
        v_add_u32 v{vT2}, s{sT2}, v{vT2}
        global_load_lds_dwordx4 v{vT2}, {P(sWD)}
        L_nowd:
        ''')
    A(f'''
    s_lshr_b32 s{sT2}, s{sM}, 2
    s_lshl_b32 s{sT2}, s{sT2}, 5
    s_lshl_b32 s{sT3}, s{sG}, 2
    s_add_u32 s{sT2}, s{sT2}, s{sT3}
    s_and_b32 s{sT3}, s{sM}, 3
    s_add_u32 s{sT2}, s{sT2}, s{sT3}
    s_mul_i32 s{sPT}, s{sT2}, {NPROD*64}
    s_add_u32 s{sPT}, s{sPT}, {PART}
    v_lshrrev_b32 v{vT1}, 3, v{vLANE}
    s_lshl_b32 s{sT0}, s{sWID}, 7
    s_add_u32 s{sT0}, s{sT0}, {XC}
    v_lshl_add_u32 v{vT1}, v{vT1}, 4, s{sT0}
    v_add_u32 v{vT0}, {X3}, v{vXL}
    ''')
    poll('L_pollc', f'global_load_dwordx4 {q4(vU+4)}, v{vT1}, {P(sWS)} sc1',
         f'''v_xor_b32 v{vT2}, s{sTAG}, v{vU+5}
         v_xor_b32 v{vT3}, s{sTAG}, v{vU+7}
         v_or_b32 v{vT2}, v{vT2}, v{vT3}
         v_cmp_ne_u32 vcc, 0, v{vT2}''')
    stamp('xcok')
    vR3 = 92
    A(f'global_load_dwordx4 {q4(vR3)}, v{vT0}, {P(sWS)} sc1')
    allred([vU + 4, vU + 6], [S_, Q_])
    A(f'''
    v_and_b32 v{vT1}, 7, v0
    v_lshl_add_u32 v{vT1}, s{sWAVE}, 3, v{vT1}
    s_lshl_b32 s{sT0}, s{sM}, 6
    s_sub_u32 s{sT0}, 2047, s{sT0}
    v_sub_u32 v{vU}, s{sT0}, v{vT1}
    v_lshlrev_b32 v{vU+1}, 2, v{vT1}
    v_mov_b32 v{vT2}, 0
    ds_write_b32 v{vU+1}, v{vT2} offset:{L_ST}
    s_waitcnt vmcnt(0)
    v_cmp_ne_u32 vcc, s{sTAG}, v{vR3+3}
    s_cbranch_vccnz L_poll3
    L_poll3_back:
    ''')
    late.append(('L_poll3', lambda: (poll('L_poll3b', f'global_load_dwordx4 {q4(vR3)}, v{vT0}, {P(sWS)} sc1', f'v_cmp_ne_u32 vcc, s{sTAG}, v{vR3+3}'),
                 A('s_nop 1'), A('s_branch L_poll3_back'))))
    stamp('x3ok')
    allred([vR3, vR3 + 1, vR3 + 2], [S_, Q_, P_])
    lnstats(vR3, vR3 + 1, S_, vMn, vInv)
    vKey = 96
    A(f'''
    v_fma_f32 v{vKey}, -v{vMn}, v{vU+4}, v{vR3+2}
    v_fma_f32 v{vKey}, v{vKey}, v{vInv}, v{vU+6}
    v_cvt_pk_bf16_f32 v{vKey}, 0, v{vKey}
    v_ashrrev_i32 v{vT0}, 31, v{vKey}
    v_or_b32 v{vT0}, 0x80000000, v{vT0}
    v_and_b32 v{vT0}, s{sMASK}, v{vT0}
    v_xor_b32 v{vKey}, v{vKey}, v{vT0}
    v_or_b32 v{vKey}, v{vKey}, v{vU}
    ds_write_b32 v{vU+1}, v{vKey} offset:{L_KEY}
    s_waitcnt lgkmcnt(0)
    s_barrier
    ds_read_b128 {q4(vR3)}, v{vPA} offset:{L_KEY}
    ds_read_b128 {q4(vSQ)}, v{vPA} offset:{L_KEY+16}
    ''')
    vH2 = 56
    for i in range(8): A(f'v_sub_f32 v{vH2+i}, v{vZ1+i}, v{vMn}')
    for i in range(8): rnd(vH2 + i)
    A('s_waitcnt lgkmcnt(0)')
    vRk = 97
    A(f'v_mov_b32 v{vRk}, 0')
    ks = [vR3 + i for i in range(4)] + [vSQ + i for i in range(4)]
    for half in range(2):
        for i in range(4): A(f'v_cmp_gt_u32 {P(sC0+2*i)}, v{ks[4*half+i]}, v{vKey}')
        for i in range(4): A(f'v_addc_co_u32 v{vRk}, {P(sC0+2*i)}, 0, v{vRk}, {P(sC0+2*i)}')
    allred([vRk], [vT0], add='v_add_u32')
    A(f'''
    s_lshl_b32 s{sT0}, s{sWID}, 6
    s_add_u32 s{sT0}, s{sT0}, {KEYS}
    v_lshl_add_u32 v{vT0}, v{vRk}, 3, s{sT0}
    v_mov_b32 v{vR3}, v{vKey}
    v_mov_b32 v{vR3+1}, s{sTAG}
    v_cmp_gt_u32 {P(sEX)}, 8, v{vRk}
    s_and_b64 exec, {P(sEX)}, 0xff
    s_cbranch_execz L_nokey
    ''')
    lstore(f'global_store_dwordx2 v{vT0}, {pr(vR3)}, {P(sWS)}')
    A('L_nokey:')
    A('s_mov_b64 exec, -1')
    stamp('keyst')
    vWf = 130
    vKs = 154
    vM2, vM1 = 163, 164
    vRow = vKs + 2
    vPk = 110
    vOut = 126
    def h2calc():
        for i in range(8): A(f'v_mul_f32 v{vH2+i}, v{vH2+i}, v{vInv}')
        for i in range(8): rnd(vH2 + i)
        for i in range(8): A(f'v_mul_f32 v{vH2+i}, v{vH2+i}, v{vPar+32+i}')
        for i in range(8): rnd(vH2 + i)
        for i in range(8): A(f'v_add_f32 v{vH2+i}, v{vH2+i}, v{vPar+24+i}')
        for i in range(4):
            A(f'v_cvt_pk_bf16_f32 v{vPk+2*i}, v{vH2+2*i}, v{vH2+2*i+1}')
            A(f'v_mov_b32 v{vPk+2*i+1}, s{sTAG}')
        for i in range(4):
            A(f'v_cvt_pk_bf16_f32 v{vPk+8+2*i}, v{vZ1+2*i}, v{vZ1+2*i+1}')
            A(f'v_mov_b32 v{vPk+8+2*i+1}, s{sTAG}')
    def outcalc():
        for i in range(4): unpack(vH2 + 2*i, vPk + 2*i)
        for i in range(8): A(f'v_mul_f32 v{vH2+i}, v{vH2+i}, v{vPar+40+i}')
        for i in range(8): rnd(vH2 + i)
        for i in range(8): A(f'v_add_f32 v{vH2+i}, v{vH2+i}, v{vZ1+i}')
        for i in range(4): A(f'v_cvt_pk_bf16_f32 v{vOut+i}, v{vH2+2*i}, v{vH2+2*i+1}')
    def outstore():
        A(f'''
        s_andn2_b64 exec, exec, {P(sEX)}
        s_cbranch_execz L_noout2
        global_store_dwordx4 v{vJR}, {q4(vOut)}, {P(sOUT)} {cfg.OUT_FL}
        L_noout2:
        s_mov_b64 exec, -1
        ''')
    h2calc()
    vOR = 200
    vHA = 98
    A(f'''
    v_and_b32 v{vOR}, 7, v0
    v_lshl_add_u32 v{vOR}, s{sWAVE}, 3, v{vOR}
    s_lshl_b32 s{sT0}, s{sM}, 6
    v_add_u32 v{vOR}, s{sT0}, v{vOR}
    v_lshrrev_b32 v{vT2}, 3, v{vLANE}
    s_lshl_b32 s{sT1}, s{sG}, 8
    s_add_u32 s{sT1}, s{sT1}, {H2P - 2048}
    v_lshl_add_u32 v{vHA}, v{vT2}, 4, s{sT1}
    s_cmp_lg_u32 s{sWAVE}, 0
    s_cbranch_scc1 L_kskip
    v_and_b32 v{vT0}, 2, v0
    v_cmp_eq_u32 vcc, 0, v{vT0}
    v_cndmask_b32 v{vM2}, 0, -1, vcc
    v_and_b32 v{vT0}, 1, v0
    v_cmp_eq_u32 vcc, 0, v{vT0}
    v_cndmask_b32 v{vM1}, 0, -1, vcc
    s_lshl_b32 s{sT0}, s{sG}, 11
    s_add_u32 s{sT0}, s{sT0}, {KEYS}
    v_lshl_add_u32 v{vT0}, v{vLANE}, 3, s{sT0}
    ''')
    poll('L_pollk', '\n'.join(f'global_load_dwordx2 {pr(vKs+2*r)}, v{vT0}, {P(sWS)} offset:{512*r} sc1' for r in range(4)),
         f'''v_xor_b32 v{vT1}, s{sTAG}, v{vKs+1}
         v_xor_b32 v{vT2}, s{sTAG}, v{vKs+3}
         v_xor_b32 v{vT3}, s{sTAG}, v{vKs+5}
         v_or3_b32 v{vT1}, v{vT1}, v{vT2}, v{vT3}
         v_xor_b32 v{vT2}, s{sTAG}, v{vKs+7}
         v_or_b32 v{vT1}, v{vT1}, v{vT2}
         v_cmp_ne_u32 vcc, 0, v{vT1}''')
    stamp('keysok')
    def sort8(regs, tmps):
        for x, t in zip(regs, tmps): A(f'v_max_u32_dpp v{t}, v{x}, v{x} row_shl:4 row_mask:0xf bank_mask:0x5')
        for x, t in zip(regs, tmps): A(f'v_min_u32_dpp v{t}, v{x}, v{x} row_shr:4 row_mask:0xf bank_mask:0xa')
        for x, t in zip(regs, tmps): A(f'v_mov_b32_dpp v{x}, v{t} quad_perm:[2,3,0,1] {DPPM}')
        for x, t in zip(regs, tmps): A(f'v_med3_u32 v{t}, v{t}, v{x}, v{vM2}')
        for x, t in zip(regs, tmps): A(f'v_mov_b32_dpp v{x}, v{t} quad_perm:[1,0,3,2] {DPPM}')
        for x, t in zip(regs, tmps): A(f'v_med3_u32 v{x}, v{t}, v{x}, v{vM1}')
    k0, k1, k2, k3 = vKs, vKs + 2, vKs + 4, vKs + 6
    t0, t1 = vKs + 1, vKs + 3
    A(f'v_max_u32_dpp v{k0}, v{k1}, v{k0} row_half_mirror {DPPM}')
    A(f'v_max_u32_dpp v{k2}, v{k3}, v{k2} row_half_mirror {DPPM}')
    sort8([k0, k2], [t0, t1])
    A(f'v_max_u32_dpp v{k0}, v{k2}, v{k0} row_half_mirror {DPPM}')
    sort8([k0], [t0])
    A(f'v_max_u32_dpp v{k0}, v{k0}, v{k0} row_mirror {DPPM}')
    sort8([k0], [t0])
    for sw in ('v_permlane16_swap_b32', 'v_permlane32_swap_b32'):
        A(f'v_mov_b32 v{t1}, v{k0}')
        A(f'{sw} v{t1}, v{k0}')
        A(f'v_max_u32_dpp v{k0}, v{k0}, v{t1} row_half_mirror {DPPM}')
        sort8([k0], [t0])
    A(f'''
    v_and_b32 v{vRow}, 0x7ff, v{k0}
    v_sub_u32 v{vRow}, 2047, v{vRow}
    v_lshlrev_b32 v{vT2}, 2, v{vLANE}
    ds_write_b32 v{vT2}, v{vRow} offset:{L_GP}
    s_lshl_b32 s{sT0}, s{sM}, 6
    v_subrev_u32 v{vT1}, s{sT0}, v{vRow}
    v_add_u32 v{vT3}, 1, v{vLANE}
    v_cmp_gt_u32 vcc, 64, v{vT1}
    v_lshlrev_b32 v{vT1}, 2, v{vT1}
    s_and_b64 exec, vcc, 0xff
    ds_write_b32 v{vT1}, v{vT3} offset:{L_ST}
    s_mov_b64 exec, -1
    s_waitcnt lgkmcnt(0)
    s_branch L_kjoin
    L_kskip:
    ''')
    outcalc()
    A(f'''
    L_kjoin:
    s_barrier
    ds_read_b32 v{vT0}, v{vU+1} offset:{L_ST}
    s_waitcnt lgkmcnt(0)
    v_cmp_ne_u32 {P(sEX)}, 0, v{vT0}
    v_lshl_add_u32 v{vT0}, v{vT0}, 11, v{vHA}
    v_add_u32 v{vT1}, {X1P - H2P}, v{vT0}
    s_mov_b64 exec, {P(sEX)}
    s_cbranch_execz L_noh2
    global_store_dwordx4 v{vT0}, {q4(vPk)}, {P(sWS)} sc1
    global_store_dwordx4 v{vT0}, {q4(vPk+4)}, {P(sWS)} offset:128 sc1
    global_store_dwordx4 v{vT1}, {q4(vPk+8)}, {P(sWS)} sc1
    global_store_dwordx4 v{vT1}, {q4(vPk+12)}, {P(sWS)} offset:128 sc1
    L_noh2:
    s_mov_b64 exec, -1
    ''')
    stamp('top8')
    A(f'''
    s_cmp_lg_u32 s{sWAVE}, 0
    s_cbranch_scc1 L_noc
    ''')
    outcalc()
    A(f'''
    L_noc:
    ''')
    if cfg.OUTPOS == 'top8': outstore()
    A(f'''
    s_cmp_ge_u32 s{sM}, {NS3}
    s_cbranch_scc1 L_tail
    ''')
    vGA_, vGS, vGL, vPS, vGW_, vGR_ = 142, 143, 144, 145, 146, 147
    GS_ = 272
    vG = 166
    A(f'''
    s_lshr_b32 s{sT0}, s{sM}, 2
    s_mul_i32 s{sT1}, s{sG}, 7
    s_add_u32 s{sT0}, s{sT0}, s{sT1}
    s_and_b32 s{sT1}, s{sM}, 3
    v_lshrrev_b32 v{vT1}, 4, v{vLANE}
    v_and_b32 v{vT2}, 7, v0
    s_lshl_b32 s{sT2}, s{sT1}, 9
    s_and_b32 s{sT3}, s{sWAVE}, 3
    s_lshl_b32 s{sT3}, s{sT3}, 12
    s_add_u32 s{sT2}, s{sT2}, s{sT3}
    s_add_u32 s{sT2}, s{sT2}, {H2P}
    v_lshrrev_b32 v{vT3}, 5, v{vLANE}
    v_and_b32 v{vGA_}, 31, v0
    v_lshlrev_b32 v{vGA_}, 4, v{vGA_}
    v_lshl_add_u32 v{vGA_}, v{vT3}, 11, v{vGA_}
    v_add_u32 v{vGA_}, s{sT2}, v{vGA_}
    s_mov_b32 s{sHM}, 0x00ff00ff
    s_mov_b32 s{sHM+1}, 0x00ff00ff
    s_and_b32 s{sT3}, s{sWAVE}, 3
    v_lshl_add_u32 v{vT3}, s{sT3}, 1, v{vT3}
    v_mul_u32_u24 v{vGW_}, {GS_}, v{vT3}
    v_bfe_u32 v{vT3}, v0, 4, 1
    v_lshl_add_u32 v{vGW_}, v{vT3}, 7, v{vGW_}
    v_lshl_add_u32 v{vGW_}, v{vT2}, 4, v{vGW_}
    v_bfe_u32 v{vT3}, v0, 3, 1
    v_lshl_add_u32 v{vGW_}, v{vT3}, 3, v{vGW_}
    v_add_u32 v{vGW_}, {L_G2 - (L_G2 % 1024)}, v{vGW_}
    v_mul_u32_u24 v{vGR_}, {GS_}, v{vT2}
    v_lshl_add_u32 v{vGR_}, v{vT1}, 4, v{vGR_}
    s_lshr_b32 s{sT3}, s{sWAVE}, 2
    s_lshl_b32 s{sT3}, s{sT3}, 7
    v_add_u32 v{vGR_}, s{sT3}, v{vGR_}
    ''')
    A(f'''
    s_mov_b64 exec, -1
    s_and_b32 s{sT2}, s{sWID}, 0xfc
    s_lshl_b32 s{sT2}, s{sT2}, 13
    s_add_u32 s{sT2}, s{sT2}, {XB1}
    s_lshl_b32 s{sT3}, s{sT1}, 3
    s_add_u32 s{sT3}, s{sT3}, s{sWAVE}
    s_lshl_b32 s{sT4}, s{sT1}, 13
    s_lshl_b32 s{sT5}, s{sWAVE}, 9
    s_add_u32 s{sT4}, s{sT4}, s{sT5}
    s_add_u32 s{sT4}, s{sT4}, s{sT2}
    v_lshl_add_u32 v{vGS}, v{vT1}, 3, v{vT2}
    v_lshl_add_u32 v{vGS}, v{vGS}, 4, s{sT4}
    s_mul_i32 s{sT3}, s{sT3}, {NPROD*64}
    s_lshl_b32 s{sT4}, s{sT0}, 6
    s_add_u32 s{sT3}, s{sT3}, s{sT4}
    s_add_u32 s{sT3}, s{sT3}, {PART}
    v_mul_u32_u24 v{vPS}, {32*NPROD*64}, v{vT2}
    v_lshl_add_u32 v{vPS}, v{vT1}, 4, v{vPS}
    v_add_u32 v{vPS}, s{sT3}, v{vPS}
    s_lshr_b32 s{sT3}, s{sWAVE}, 2
    s_lshl_b32 s{sT3}, s{sT3}, 9
    s_and_b32 s{sT4}, s{sWAVE}, 3
    s_lshl_b32 s{sT4}, s{sT4}, 7
    s_add_u32 s{sT3}, s{sT3}, s{sT4}
    s_add_u32 s{sT3}, s{sT3}, s{sT2}
    v_lshlrev_b32 v{vGL}, 13, v{vT1}
    v_bfe_u32 v{vT3}, v0, 3, 1
    v_lshl_add_u32 v{vGL}, v{vT3}, 10, v{vGL}
    v_lshl_add_u32 v{vGL}, v{vT2}, 4, v{vGL}
    v_add_u32 v{vGL}, s{sT3}, v{vGL}
    v_and_b32 v{vT0}, 3, v0
    v_bfe_u32 v{vT2}, v0, 2, 2
    v_lshl_add_u32 v{vT2}, v{vT1}, 3, v{vT2}
    v_lshlrev_b32 v{vT3}, 6, v{vT2}
    v_lshl_add_u32 v{vT3}, v{vT0}, 3, v{vT3}
    s_lshr_b32 s{sT0}, s{sWAVE}, 2
    s_lshl_b32 s{sT0}, s{sT0}, 12
    s_bfe_u32 s{sT1}, s{sWAVE}, 0x10001
    s_lshl_b32 s{sT1}, s{sT1}, 13
    s_add_u32 s{sT0}, s{sT0}, s{sT1}
    s_and_b32 s{sT1}, s{sWAVE}, 1
    s_lshl_b32 s{sT1}, s{sT1}, 5
    s_add_u32 s{sT0}, s{sT0}, s{sT1}
    s_add_u32 s{sT0}, s{sT0}, {L_WGU}
    v_add_u32 v{vT3}, s{sT0}, v{vT3}
    ''')
    for ks_ in range(2):
        for hh in range(2):
            A(f'ds_read_b64_tr_b16 {pr(vWf + 4*ks_ + 2*hh)}, v{vT3} offset:{2048*ks_ + 256*hh}')
    A(f'''
    v_lshlrev_b32 v{vT3}, 8, v{vT2}
    v_lshl_add_u32 v{vT3}, v{vT0}, 3, v{vT3}
    s_lshl_b32 s{sT0}, s{sWAVE}, 5
    s_add_u32 s{sT0}, s{sT0}, {L_WGU + 16384}
    v_add_u32 v{vT3}, s{sT0}, v{vT3}
    ds_read_b64_tr_b16 {pr(vWf + 8)}, v{vT3}
    ds_read_b64_tr_b16 {pr(vWf + 10)}, v{vT3} offset:1024
    v_and_b32 v{vT0}, 7, v0
    v_lshrrev_b32 v{vT1}, 5, v{vLANE}
    v_bfe_u32 v{vT2}, v0, 4, 1
    v_lshl_add_u32 v{vT1}, v{vT1}, 1, v{vT2}
    v_lshl_add_u32 v{vT1}, s{sWAVE}, 2, v{vT1}
    v_lshlrev_b32 v{vT1}, 1, v{vT1}
    v_lshl_add_u32 v{vT1}, v{vT0}, 6, v{vT1}
    v_lshrrev_b32 v{vT2}, 4, v{vLANE}
    v_lshlrev_b32 v{vT2}, 4, v{vT2}
    v_lshl_add_u32 v{vT2}, v{vT0}, 6, v{vT2}
    s_mov_b32 s{sT2}, 0x03020105
    s_mov_b32 s{sT3}, 0x03020106
    s_mov_b32 s{sT4}, 0x03020107
    s_mov_b32 s{sT0}, 0x0004000c
    s_mov_b32 s{sT1}, 0x0402010c
    s_mov_b64 {P(sC0)}, -1
    s_mov_b64 {P(sC0+2)}, -1
    ''')
    vDg = 182
    A(f'''
    s_cmp_ge_u32 s{sWAVE}, 4
    s_cbranch_scc1 L_gskip
    ''')
    if cfg.GSLP: A(f's_sleep {cfg.GSLP}')
    poll('L_pollg', f'global_load_dwordx4 {q4(vG)}, v{vGA_}, {P(sWS)} sc1',
         f'''v_xor_b32 v{vG+1}, s{sTAG}, v{vG+1}
         v_xor_b32 v{vG+3}, s{sTAG}, v{vG+3}
         v_or_b32 v{vG+1}, v{vG+1}, v{vG+3}
         v_cmp_ne_u32 vcc, 0, v{vG+1}''', cfg.GLOOP)
    A(f'''
    ds_write2_b32 v{vGW_}, v{vG}, v{vG+2} offset0:{(L_G2 % 1024)//4} offset1:{(L_G2 % 1024)//4 + 1}
    L_gskip:
    s_waitcnt lgkmcnt(0)
    ''')
    stamp('gath')
    A(f'''
    s_barrier
    ds_read_b128 {q4(vG)}, v{vGR_} offset:{L_G2}
    ds_read_b128 {q4(vG+8)}, v{vGR_} offset:{L_G2 + 64}
    s_waitcnt lgkmcnt(1)
    v_mfma_f32_16x16x32_bf16 {q4(vDg)}, {q4(vWf)}, {q4(vG)}, 0
    s_waitcnt lgkmcnt(0)
    v_mfma_f32_16x16x32_bf16 {q4(vDg)}, {q4(vWf+4)}, {q4(vG+8)}, {q4(vDg)}
    ''')
    def pack24(y):
        for d in range(3): A(f'v_perm_b32 v{y+d}, v{y+3}, v{y+d}, s{sT2+d}')
        A(f'v_mov_b32 v{y+3}, s{sTAG}')
    pack24(vDg)
    A(f's_mov_b64 exec, {P(sHM)}')
    lstore(f'global_store_dwordx4 v{vGS}, {q4(vDg)}, {P(sWS)}')
    stamp('preB6')
    vE = 166
    mpoll('L_pollx', [(f'global_load_dwordx4 {q4(vE)}, v{vGL}, {P(sWS)} sc1', vE + 3, sC0),
                      (f'global_load_dwordx4 {q4(vE+4)}, v{vGL}, {P(sWS)} offset:2048 sc1', vE + 7, sC0 + 2)])
    stamp('B6')
    def unp24(us, a, b):
        for u in us: A(f'v_perm_b32 v{u+3}, v{u+1}, v{u}, s{a}')
        for u in us: A(f'v_perm_b32 v{u+3}, v{u+2}, v{u+3}, s{b}')
    unp24([vE, vE + 4], sT0, sT1)
    y = vE
    A(f'''
    v_pk_add_f32 {pr(y)}, {pr(y)}, {pr(y+4)}
    v_pk_add_f32 {pr(y+2)}, {pr(y+2)}, {pr(y+6)}
    v_permlane32_swap_b32 v{y}, v{y+2}
    v_permlane32_swap_b32 v{y+1}, v{y+3}
    v_add_f32 v{y}, v{y}, v{y+2}
    v_add_f32 v{y+1}, v{y+1}, v{y+3}
    v_permlane16_swap_b32 v{y}, v{y+1}
    v_add_f32 v{y}, v{y}, v{y+1}
    v_cvt_pk_bf16_f32 v{y}, 0, v{y}
    v_mul_f32 v{y+2}, 0xbfb8aa3b, v{y}
    v_exp_f32 v{y+2}, v{y+2}
    v_mov_b32_dpp v{y+1}, v{y} row_ror:8 {DPPM}
    v_add_f32 v{y+2}, 1.0, v{y+2}
    v_rcp_f32 v{y+2}, v{y+2}
    v_mul_f32 v{y}, v{y}, v{y+2}
    v_cvt_pk_bf16_f32 v{y}, 0, v{y}
    v_mul_f32 v{y}, v{y}, v{y+1}
    v_cvt_pk_bf16_f32 v{y}, v{y}, v{y}
    s_mov_b64 exec, {P(sHM)}
    ds_write_b16 v{vT1}, v{y} offset:{L_GU}
    s_mov_b64 exec, -1
    s_waitcnt lgkmcnt(0)
    s_barrier
    ds_read_b128 {q4(vE)}, v{vT2} offset:{L_GU}
    s_waitcnt lgkmcnt(0)
    v_mfma_f32_16x16x32_bf16 {q4(vDg)}, {q4(vWf+8)}, {q4(vE)}, 0
    ''')
    stamp('B7')
    pack24(vDg)
    A(f's_mov_b64 exec, {P(sHM)}')
    A(f'global_store_dwordx4 v{vPS}, {q4(vDg)}, {P(sWS)} sc1')
    A('s_mov_b64 exec, -1')
    stamp('partst')
    A(f'''
    s_cmp_lg_u32 s{sWID}, 0
    s_cbranch_scc1 L_noep
    s_cmp_lg_u32 s{sWAVE}, 2
    s_cbranch_scc1 L_noep
    s_add_u32 s{sT0}, s{sEP}, 1
    v_mov_b32 v{vT2}, {EPOCH}
    v_mov_b32 v{vT3}, s{sT0}
    s_mov_b64 exec, 1
    global_store_dword v{vT2}, v{vT3}, {P(sWS)} sc1
    s_mov_b64 exec, -1
    L_noep:
    s_branch L_red
    L_tail:
    s_cmp_lg_u32 s{sM}, {NS3}
    s_cbranch_scc1 L_red
    ''')
    vWr = 130
    vHr = 134
    vHs = 142
    vPu = 166
    vRr = 182
    A(f'''
    v_lshlrev_b32 v{vT1}, 4, v{vLANE}
    global_load_dwordx4 {q4(vWr)}, v{vT1}, {P(sWR)}
    s_lshl_b32 s{sT3}, s{sWAVE}, 11
    s_add_u32 s{sT3}, s{sT3}, {H2P}
    v_lshrrev_b32 v{vT2}, 3, v{vLANE}
    v_and_b32 v{vT3}, 7, v0
    v_lshlrev_b32 v{vT3}, 4, v{vT3}
    v_lshl_add_u32 v{vT3}, v{vT2}, 8, v{vT3}
    v_add_u32 v{vT3}, s{sT3}, v{vT3}
    s_lshl_b32 s{sT0}, s{sG}, 7
    s_lshl_b32 s{sT1}, s{sWAVE}, 3
    s_add_u32 s{sT0}, s{sT0}, s{sT1}
    s_add_u32 s{sT0}, s{sT0}, {SEL}
    v_mov_b32 v{vT0}, s{sT0}
    ''')
    poll('L_pollr', f'''global_load_dwordx4 {q4(vHr)}, v{vT3}, {P(sWS)} sc1
         global_load_dwordx4 {q4(vHr+4)}, v{vT3}, {P(sWS)} offset:128 sc1''',
         f'''v_xor_b32 v{vHr+1}, s{sTAG}, v{vHr+1}
         v_xor_b32 v{vHr+3}, s{sTAG}, v{vHr+3}
         v_xor_b32 v{vHr+5}, s{sTAG}, v{vHr+5}
         v_xor_b32 v{vHr+7}, s{sTAG}, v{vHr+7}
         v_or3_b32 v{vHr+1}, v{vHr+1}, v{vHr+3}, v{vHr+5}
         v_or_b32 v{vHr+1}, v{vHr+1}, v{vHr+7}
         v_cmp_ne_u32 vcc, 0, v{vHr+1}''')
    A(f'v_mov_b32 v{vRr}, 0')
    for i in range(4): A(f'v_dot2_f32_bf16 v{vRr}, v{vHr+2*i}, v{vWr+i}, v{vRr}')
    fullred([vRr], [vRr + 1])
    rnd(vRr)
    A(f'''
    v_mul_f32 v{vRr}, 0xbfb8aa3b, v{vRr}
    v_exp_f32 v{vRr}, v{vRr}
    v_add_f32 v{vRr}, 1.0, v{vRr}
    v_rcp_f32 v{vRr}, v{vRr}
    v_cvt_pk_bf16_f32 v{vRr}, 0, v{vRr}
    v_mov_b32 v{vRr+1}, s{sTAG}
    s_mov_b64 exec, 1
    ''')
    lstore(f'global_store_dwordx2 v{vT0}, {pr(vRr)}, {P(sWS)}')
    A(f'''
    s_mov_b64 exec, -1
    L_red:
    s_cmp_lg_u32 s{sWAVE}, 1
    s_cbranch_scc1 L_outlate
    v_lshl_add_u32 v{vT0}, v{vLANE}, 4, s{sPT}
    v_mov_b32 v{vPu+12}, 0
    v_mov_b32 v{vPu+13}, 0
    v_mov_b32 v{vPu+14}, 0
    v_mov_b32 v{vPu+15}, s{sTAG}
    s_and_b32 s{sT0}, s{sM}, 3
    s_and_b32 s{sT1}, s{sM}, 28
    v_mov_b32 v{vT3}, s{sT1}
    ds_read_b32 v{vOR+4}, v{vT3} offset:{L_GP}
    s_lshl_b32 s{sT3}, s{sT1}, 9
    s_add_u32 s{sT3}, s{sT3}, {H2P}
    s_lshl_b32 s{sT1}, s{sT1}, 1
    s_lshl_b32 s{sT4}, s{sG}, 7
    s_add_u32 s{sT1}, s{sT1}, s{sT4}
    s_add_u32 s{sT1}, s{sT1}, {SEL}
    v_mov_b32 v{vOR+5}, s{sT1}
    v_and_b32 v{vT1}, 3, v0
    v_lshlrev_b32 v{vT1}, 2, v{vT1}
    v_lshrrev_b32 v{vT2}, 5, v{vLANE}
    v_lshl_add_u32 v{vT1}, v{vT2}, 1, v{vT1}
    v_bfe_u32 v{vT2}, v0, 4, 1
    s_lshl_b32 s{sT4}, s{sT0}, 4
    v_add_u32 v{vT1}, s{sT4}, v{vT1}
    v_add_u32 v{vT3}, v{vT1}, v{vT2}
    v_lshlrev_b32 v{vOR}, 2, v{vT3}
    ds_read_b32 v{vOR+1}, v{vOR} offset:{L_MOD + 5*256}
    v_lshrrev_b32 v{vOR}, 3, v{vT1}
    v_lshlrev_b32 v{vOR}, 4, v{vOR}
    v_bfe_u32 v{vOR+2}, v{vT1}, 2, 1
    v_lshl_add_u32 v{vOR}, v{vOR+2}, 7, v{vOR}
    v_bfe_u32 v{vOR+2}, v{vT1}, 1, 1
    v_lshl_add_u32 v{vOR}, v{vOR+2}, 3, v{vOR}
    s_lshl_b32 s{sT5}, s{sG}, 8
    s_add_u32 s{sT5}, s{sT5}, s{sT3}
    v_add_u32 v{vT1}, s{sT5}, v{vOR}
    v_add_u32 v{vOR+2}, {X1P - H2P}, v{vT1}
    s_lshl_b32 s{sT4}, s{sG}, 7
    v_lshl_add_u32 v{vOR+3}, v{vT3}, 1, s{sT4}
    v_lshlrev_b32 v{vT2}, 4, v{vT2}
    v_sub_u32 v{vT2}, 16, v{vT2}
    s_mov_b32 s{sT2}, 0x0004000c
    s_mov_b32 s{sT3}, 0x0402010c
    s_waitcnt lgkmcnt(0)
    v_lshl_add_u32 v{vOR+3}, v{vOR+4}, 10, v{vOR+3}
    ''')
    poll('L_polls', f'''global_load_dwordx2 {pr(vHs)}, v{vT1}, {P(sWS)} sc1
         global_load_dwordx2 {pr(vHs+2)}, v{vOR+2}, {P(sWS)} sc1
         global_load_dwordx2 {pr(vRr)}, v{vOR+5}, {P(sWS)} sc1''',
         f'''v_xor_b32 v{vHs+1}, s{sTAG}, v{vHs+1}
         v_xor_b32 v{vHs+3}, s{sTAG}, v{vHs+3}
         v_xor_b32 v{vRr+1}, s{sTAG}, v{vRr+1}
         v_or3_b32 v{vHs+1}, v{vHs+1}, v{vHs+3}, v{vRr+1}
         v_cmp_ne_u32 vcc, 0, v{vHs+1}''')
    A(f'''
    v_lshlrev_b32 v{vHs}, v{vT2}, v{vHs}
    v_and_b32 v{vHs}, s{sMASK}, v{vHs}
    v_lshlrev_b32 v{vHs+2}, v{vT2}, v{vHs+2}
    v_and_b32 v{vHs+2}, s{sMASK}, v{vHs+2}
    ''')
    stamp('redpre')
    if cfg.REDSLP: A(f's_sleep {cfg.REDSLP}')
    for i in range(3): A(f's_mov_b64 {P(sC0+2*i)}, -1')
    A(f's_mov_b32 s{sC0+6}, -1'); A(f's_mov_b32 s{sC0+7}, 0')
    mpoll('L_pollp', [(f'global_load_dwordx4 {q4(vPu+4*i)}, v{vT0}, {P(sWS)} offset:{1024*i} sc1', vPu + 4*i + 3, sC0 + 2*i) for i in range(4)])
    stamp('partok')
    unp24([vPu + 4*i for i in range(4)], sT2, sT3)
    for (a, b) in ((0, 1), (2, 3), (0, 2)):
        for h in range(2): A(f'v_pk_add_f32 {pr(vPu+4*a+2*h)}, {pr(vPu+4*a+2*h)}, {pr(vPu+4*b+2*h)}')
    y = vPu
    A(f'''
    v_permlane32_swap_b32 v{y}, v{y+2}
    v_permlane32_swap_b32 v{y+1}, v{y+3}
    v_add_f32 v{y}, v{y}, v{y+2}
    v_add_f32 v{y+1}, v{y+1}, v{y+3}
    v_permlane16_swap_b32 v{y}, v{y+1}
    v_add_f32 v{y}, v{y}, v{y+1}
    v_add_f32_dpp v{y}, v{y}, v{y} row_ror:8 {DPPM}
    v_add_f32_dpp v{y}, v{y}, v{y} row_ror:4 {DPPM}
    v_cvt_pk_bf16_f32 v{y}, 0, v{y}
    v_mul_f32 v{y}, v{y}, v{vRr}
    v_cvt_pk_bf16_f32 v{y}, 0, v{y}
    v_add_f32 v{y}, v{y}, v{vHs}
    v_cvt_pk_bf16_f32 v{y}, 0, v{y}
    v_mul_f32 v{y}, v{y}, v{vOR+1}
    v_cvt_pk_bf16_f32 v{y}, 0, v{y}
    v_add_f32 v{y}, v{y}, v{vHs+2}
    v_cvt_pk_bf16_f32 v{y}, v{y}, v{y}
    s_mov_b32 s{sT0}, 0x000f000f
    s_mov_b32 s{sT1}, 0x000f000f
    s_mov_b64 exec, {P(sT0)}
    global_store_short v{vOR+3}, v{y}, {P(sOUT)} {cfg.OUT_FL}
    s_mov_b64 exec, -1
    ''')
    A('L_outlate:')
    if cfg.OUTPOS == 'end': outstore()
    A('L_fin:')
    if cfg.DBL:
        A(f'''
        s_waitcnt vmcnt(0)
        s_memrealtime s[78:79]
        s_waitcnt lgkmcnt(0)
        s_sub_u32 s{sT0}, s{82 if cfg.DSITE else 78}, s74
        s_add_u32 s{sT0}, s{sT0}, s78
        s_cmp_lg_u32 s{sWAVE}, 1
        s_cbranch_scc1 L_end
        L_dbl:
        s_memrealtime s[80:81]
        s_waitcnt lgkmcnt(0)
        s_sub_u32 s{sT1}, s80, s{sT0}
        s_cmp_lt_i32 s{sT1}, 0
        s_cbranch_scc1 L_dbl
        ''')
    if cfg.DBGT:
        A(f'''
        s_memrealtime s[78:79]
        s_memtime s[80:81]
        s_cmp_lg_u32 s{sWAVE}, 0
        s_cbranch_scc1 L_end
        s_and_b32 s{sT0}, s{sWID}, 0x3f
        s_cmp_lg_u32 s{sT0}, 28
        s_cbranch_scc1 L_end
        s_waitcnt lgkmcnt(0)
        s_sub_u32 s{sT0}, s78, s74
        s_sub_u32 s{sT1}, s80, s76
        v_mov_b32 v4, s{sT0}
        v_mov_b32 v5, s{sT1}
        v_mov_b32 v6, s74
        v_mov_b32 v7, s78
        s_lshr_b32 s{sT0}, s{sWID}, 6
        s_lshl_b32 s{sT0}, s{sT0}, 4
        v_mov_b32 v8, s{sT0}
        s_mov_b64 exec, 1
        global_store_dwordx4 v8, v[4:7], {P(sDBG)}
        ''')
    if cfg.STAMP:
        A(f's_memtime s[{sST+2*nst[0]}:{sST+2*nst[0]+1}]'); nst[0] += 1
        A(f'''
        s_waitcnt lgkmcnt(0)
        s_lshl_b32 s{sT0}, s{sWID}, 3
        s_add_u32 s{sT0}, s{sT0}, s{sWAVE}
        s_lshl_b32 s{sT0}, s{sT0}, 7
        s_add_u32 s{sT0}, s{sT0}, {STAMPS}
        v_mov_b32 v{vT0}, s{sT0}
        s_mov_b64 exec, 1
        ''')
        for i in range(nst[0]):
            A(f'v_mov_b32 v{vT1}, s{sST+2*i}')
            A(f'global_store_dword v{vT0}, v{vT1}, {P(sWS)} offset:{4*i}')
        A(f'v_mov_b32 v{vT1}, s{sCNT}')
        A(f'global_store_dword v{vT0}, v{vT1}, {P(sWS)} offset:120')
        A(f'v_mov_b32 v{vT1}, s{sMODE}')
        A(f'global_store_dword v{vT0}, v{vT1}, {P(sWS)} offset:124')
    A('L_end:')
    A('s_endpgm')
    for k, t in slow:
        A(f'L_slow{k}:'); A('s_nop 4'); A(t); A('s_nop 1'); A(f's_branch L_back{k}')
    A('L_modeslow:')
    A(f'''
    s_mov_b32 s{sT4}, 64
    L_moderetry:
    global_load_dword v{vMT}, v{vPT}, {P(sWS)} sc1
    s_waitcnt vmcnt(0)
    s_mov_b32 s{sMODE}, {0 if cfg.FORCE_SLOW else 1}
    v_cmp_ne_u32 vcc, s{sXCC}, v{vMT}
    s_cbranch_vccz L_modeback
    s_mov_b32 s{sMODE}, 0
    v_subrev_u32 v{vMT+1}, s{sTAG}, v{vMT}
    v_subrev_u32 v{vMT+1}, 1, v{vMT+1}
    v_cmp_lt_u32 vcc, 15, v{vMT+1}
    s_cbranch_vccz L_modeback
    s_sub_u32 s{sT4}, s{sT4}, 1
    s_cbranch_scc0 L_moderetry
    s_branch L_modeback
    ''')
    for name, fn in late:
        A(name + ':'); fn()
    A('L_codeend:')
    return A

HEAD = open('adaLN_cond__ssm_conv_h3__moe_arch_mod__prompt.s.ref').read().split('; Override launch')[0]
def emit(path):
    A = build()
    s = HEAD + f'; @launch grid=(256,1,1) block=(512,1,1) lds={LDS_BYTES}\n'
    s += f'''.amdgcn_target "amdgcn-amd-amdhsa--gfx950"
.text
.globl {KNAME}
.p2align 8
.type {KNAME},@function
{KNAME}:
'''
    s += A.text()
    s += f'''.section .rodata,"a"
.p2align 6
.amdhsa_kernel {KNAME}
  .amdhsa_next_free_vgpr 248
  .amdhsa_next_free_sgpr 102
  .amdhsa_accum_offset 248
  .amdhsa_group_segment_fixed_size 0
  .amdhsa_kernarg_size 128
  .amdhsa_user_sgpr_count 2
  .amdhsa_user_sgpr_kernarg_segment_ptr 1
  .amdhsa_system_sgpr_workgroup_id_x 1
.end_amdhsa_kernel
'''
    open(path, 'w').write(s)
    return A

if __name__ == '__main__':
    out = sys.argv[1]
    for a in sys.argv[2:]:
        k, v = a.split('=')
        setattr(cfg, k, eval(v))
    A = emit(out)
    if cfg.STAMP: open(out + '.sites', 'w').write(' '.join(cfg.ORDER + ['end']))
    print('emitted', out, 'lines', len(A.out), 'pads', A.npad)
```

```python
import sys
from asmdsl import Asm

class Cfg:
    STAMP = False
    STOP = 99
    WS_BASE = 0
    WBL2 = False
    OUT_FL = 'sc1'
    POLL_CAP = 200000
    FORCE_SLOW = False
    SEC = 'bar'
    WPOS = 'key'
    X3ACK = True
    TLBW = False
    FPOS = 'k'
    X3SLP = 14
    DSITE = ''
    GPOS = 's1'
    X1PT = True
    GLOOP = 0
    PRIO = 3
    OUTPOS = 'top8'
    H2PT = False
    GSLP = 0
    HSLP = 16
    NOOUT = False
    REDSLP = 0
    WAFTER = True
    WDPOS = 's1'
    DBL = False
    DBGT = False
    NT = ''
    WPF = True
    PARTPT = False
    SITES = ()
    ORDER = []
cfg = Cfg()

KNAME = "adaLN_cond__ssm_conv_h3__moe_arch_mod__prompt_kernel"
EPOCH = 0; FL1 = 0x10000; FL2 = 0x12000; FLM = 0x14000; MTAB = 0x16000; KEYS = 0x18000; SEL = 0x1C000
XC = 0x20000; H2P = 0x28000; X1P = 0x2C000; MODP = 0x40000; PART = 0x80000
H2R = 0x800000; XB1 = 0x200000; X0 = 0x400000; X3 = 0x600000; GXB = 0; STAMPS = 0x2000000
NS3 = 28
NPROD = 56
NG0 = 8
USTR = 4160; UCH = 8 * USTR
L_MOD = 0
L_KEY = 2048
L_GP = 4096
L_CNT = 3328
L_ST = 3584
L_KVR = 8192; KVS = 4608
L_P = L_KVR + 2 * KVS
L_T = L_P; TS = 272
L_KD = L_P + 32768
L_U = L_KD + 8192
L_WGU = L_U + 2 * UCH
L_XS = L_WGU + 24576
L_END = L_WGU + 32768
L_Z = L_U
L_WD = L_U + 8192
L_G2 = L_P
L_GU = L_P + 8192
LDS_BYTES = 158720
assert L_END <= LDS_BYTES

sX, sK, sV, sSK, sF, sD, sWR = 4, 6, 8, 10, 12, 14, 18
sWG, sWU, sWD, sC, sWM, sOUT, sDBG, sWS = 20, 22, 24, 26, 28, 30, 32, 34
sG, sM, sWAVE, sTAG, sMODE, sXCC, sCNT, sTILE = 36, 37, 38, 39, 40, 41, 42, 43
sKSRD = 44
sFSRD = 48
sMASK = 52
sWID = 53
sEP = 54
sDV = 55
sT0, sT1, sT2, sT3, sT4, sT5 = 56, 57, 58, 59, 60, 61
sEX = 62
sC0 = 44
sWSR = 64
sOUTR = 68
sD0, sD1 = 72, 73
sPEND, sPT = 16, 17
sHM = 10
sST = 74
def P(s): return f's[{s}:{s+1}]'

import re
def to_buffer(line):
    for base, srd in ((sWS, sWSR), (sOUT, sOUTR)):
        b = re.escape(P(base)); R = f's[{srd}:{srd+3}]'
        m = re.match(rf'^\s*global_load_lds_(\w+) (v\d+), {b}(.*)$', line)
        if m: return f'buffer_load_{m.group(1)} {m.group(2)}, {R}, 0 offen{m.group(3)} lds'
        m = re.match(rf'^\s*global_load_(\w+) (v\S+), (v\d+), {b}(.*)$', line)
        if m: return f'buffer_load_{m.group(1)} {m.group(2)}, {m.group(3)}, {R}, 0 offen{m.group(4)}'
        m = re.match(rf'^\s*global_store_(\w+) (v\d+), (v\S+), {b}(.*)$', line)
        if m: return f'buffer_store_{m.group(1)} {m.group(3)}, {m.group(2)}, {R}, 0 offen{m.group(4)}'
    return line
def add_nt(line):
    if not cfg.NT: return line
    l = line.strip()
    if l.startswith('global_load') and any(P(b) in l for b in (sX, sK, sV, sWM, sWD, 12)) and 'sc1' not in l: return l + ' ' + cfg.NT
    if l.startswith('buffer_load') and (f's[{sKSRD}:{sKSRD+3}]' in l or f's[{sFSRD}:{sFSRD+3}]' in l): return l + ' ' + cfg.NT
    return line
class BAsm(Asm):
    def __call__(self, text):
        super().__call__('\n'.join(to_buffer(add_nt(l)) for l in text.strip().split('\n')))
def build():
    A = BAsm()
    slow = []
    late = []
    nst = [0]
    site = [0]
    def stamp(name=''):
        if cfg.DSITE == name:
            A('s_memrealtime s[82:83]')
            if name in ('B2', 'B3b'): A('s_waitcnt lgkmcnt(0)')
        if cfg.STAMP and (name in cfg.SITES or name == 'start'):
            assert sST + 2 * nst[0] + 3 <= 101
            A(f's_memtime s[{sST+2*nst[0]}:{sST+2*nst[0]+1}]'); nst[0] += 1
            cfg.ORDER.append(name)
            if name in ('B2', 'B3b'): A('s_waitcnt lgkmcnt(0)')
    uid = [0]
    def lstore(text):
        uid[0] += 1; k = uid[0]
        A(f's_cmp_eq_u32 s{sMODE}, 1')
        A(f's_cbranch_scc0 L_slow{k}')
        A(text)
        A(f'L_back{k}:')
        slow.append((k, '\n'.join(l + ' sc1' for l in text.strip().split('\n'))))
    def poll(name, loads, check, slp=0):
        A(f'{name}:')
        if slp: A(f's_sleep {slp}')
        A(loads)
        A('s_waitcnt vmcnt(0)')
        A(check)
        A(f's_sub_u32 s{sCNT}, s{sCNT}, 1')
        A('s_cselect_b64 vcc, 0, vcc')
        A(f's_cselect_b32 s{sCNT}, 0, s{sCNT}')
        A(f's_cbranch_vccnz {name}')
    def mpoll(name, items):
        A(f'{name}:')
        for k, (ld, tr, mk) in enumerate(items):
            A(f's_mov_b64 exec, {P(mk)}')
            A(f's_cbranch_execz {name}_s{k}')
            A(ld)
            A(f'{name}_s{k}:')
        A('s_mov_b64 exec, -1')
        A('s_waitcnt vmcnt(0)')
        for (ld, tr, mk) in items:
            if isinstance(tr, int): A(f'v_cmp_ne_u32 {P(mk)}, s{sTAG}, v{tr}')
            else: A(tr[0]); A(f'v_cmp_ne_u32 {P(mk)}, 0, v{tr[1]}')
        A(f's_or_b64 vcc, {P(items[0][2])}, {P(items[1][2])}')
        for (ld, tr, mk) in items[2:]: A(f's_or_b64 vcc, vcc, {P(mk)}')
        A(f's_sub_u32 s{sCNT}, s{sCNT}, 1')
        A('s_cselect_b64 vcc, 0, vcc')
        A(f's_cselect_b32 s{sCNT}, 0, s{sCNT}')
        A(f's_cbranch_vccnz {name}')
    def unpack(d, s):
        A(f'v_lshlrev_b32 v{d}, 16, v{s}')
        A(f'v_and_b32 v{d+1}, s{sMASK}, v{s}')
    def rnd(d, s=None):
        A(f'v_cvt_pk_bf16_f32 v{d}, 0, v{d if s is None else s}')
    def pr(r): return f'v[{r}:{r+1}]'
    def q4(r): return f'v[{r}:{r+3}]'
    DPPM = 'row_mask:0xf bank_mask:0xf'
    def allred(regs, tmps, add='v_add_f32'):
        for r in regs: A(f'{add}_dpp v{r}, v{r}, v{r} row_ror:8 {DPPM}')
        for sw in ('v_permlane16_swap_b32', 'v_permlane32_swap_b32'):
            for r, t in zip(regs, tmps): A(f'v_mov_b32 v{t}, v{r}')
            for r, t in zip(regs, tmps): A(f'{sw} v{t}, v{r}')
            for r, t in zip(regs, tmps): A(f'{add} v{r}, v{r}, v{t}')
    def fullred(regs, tmps, add='v_add_f32'):
        for pat in ('quad_perm:[1,0,3,2]', 'quad_perm:[2,3,0,1]', 'row_half_mirror'):
            for r in regs: A(f'{add}_dpp v{r}, v{r}, v{r} {pat} {DPPM}')
        allred(regs, tmps, add)
    def lnstats(S, Q, t0, mean_out, inv_out):
        A(f'v_mul_f32 v{S}, 0x3b000000, v{S}')
        A(f'v_mul_f32 v{Q}, 0x3b000000, v{Q}')
        A(f'v_fma_f32 v{t0}, -v{S}, v{S}, v{Q}')
        A(f'v_max_f32 v{t0}, 0, v{t0}')
        rnd(mean_out, S)
        rnd(t0)
        A(f'v_add_f32 v{t0}, 0x3727c5ac, v{t0}')
        rnd(t0)
        A(f'v_sqrt_f32 v{t0}, v{t0}')
        rnd(t0)
        A(f'v_rcp_f32 v{inv_out}, v{t0}')

    A(f'''
    s_cmp_ge_u32 s2, 256
    s_cbranch_scc1 L_end
    s_load_dwordx16 s[4:19], s[0:1], 0
    s_load_dwordx16 s[20:35], s[0:1], 64
    ''')
    if cfg.STAMP:
        A(f's_memrealtime s[{sST}:{sST+1}]'); nst[0] += 1
    if cfg.DBGT or cfg.DBL:
        A('s_memrealtime s[74:75]'); A('s_memtime s[76:77]')
    stamp('start')
    vLANE, vTID = 1, 0
    vA, vB, vT0, vT1, vT2, vT3 = 2, 3, 4, 5, 6, 7
    vPA = 9
    vJR = 8
    vX = 10
    vKr = 14
    vVr = 21
    vSk = 26
    vFl = 30
    vMT = 38
    vGW = 110
    vGC = 44
    vPT = 40
    A(f'''
    s_getreg_b32 s{sXCC}, hwreg(HW_REG_XCC_ID)
    s_and_b32 s{sG}, s2, 7
    s_lshr_b32 s{sM}, s2, 3
    v_lshrrev_b32 v{vT0}, 6, v0
    v_and_b32 v{vLANE}, 63, v0
    v_readfirstlane_b32 s{sWAVE}, v{vT0}
    s_and_b32 s{sXCC}, s{sXCC}, 15
    s_mov_b32 s{sMASK}, 0xffff0000
    s_mov_b32 s{sCNT}, {cfg.POLL_CAP}
    s_lshl_b32 s{sT0}, s{sM}, 16
    s_lshl_b32 s{sT1}, s{sG}, 7
    s_add_u32 s{sTILE}, s{sT0}, s{sT1}
    s_lshl_b32 s{sWID}, s{sG}, 5
    s_add_u32 s{sWID}, s{sWID}, s{sM}
    v_and_b32 v{vT0}, 31, v0
    v_lshrrev_b32 v{vT1}, 5, v0
    v_lshlrev_b32 v{vA}, 12, v{vT1}
    v_lshl_add_u32 v{vA}, v{vT0}, 2, v{vA}
    v_add_u32 v{vA}, s{sTILE}, v{vA}
    v_subrev_u32 v{vB}, 0xc00, v{vA}
    v_bfrev_b32 v{vT2}, 1
    v_cmp_gt_u32 vcc, 0xc00, v{vA}
    v_cndmask_b32 v{vB}, v{vB}, v{vT2}, vcc
    v_lshl_add_u32 v{vT2}, v{vT0}, 4, s{sT1}
    v_lshl_add_u32 v{vT2}, s{sT1}, 1, v{vT2}
    v_add_u32 v{vT2}, s{sT1}, v{vT2}
    ''')
    A(f'''
    s_add_u32 s{sT3}, s{sXCC}, 1
    v_mov_b32 v{vPT}, s{sWID}
    v_mov_b32 v{vPT+1}, s{sT3}
    s_lshl_b32 s{sT4}, s{sG}, 7
    s_lshl_b32 s{sT5}, s{sM}, 2
    s_add_u32 s{sT4}, s{sT4}, s{sT5}
    v_lshlrev_b32 v{vT0}, 4, v0
    v_subrev_u32 v{vT1}, 16, v{vT0}
    v_and_b32 v{vT3}, 255, v0
    v_cmp_eq_u32 vcc, 0, v{vT3}
    v_bfrev_b32 v{vT3}, 1
    v_cndmask_b32 v{vT1}, v{vT1}, v{vT3}, vcc
    s_lshl_b32 s{sT0}, s{sWID}, 13
    s_waitcnt lgkmcnt(0)
    s_load_dword s{sEP}, {P(sWS)}, {EPOCH + cfg.WS_BASE}
    global_load_dwordx4 {q4(vSk)}, v{vT2}, {P(sSK)}
    ''')
    for i in range(4): A(f'global_load_dword v{vKr+3+i}, v{vA}, {P(sK)} offset:{1024*i}')
    A(f'''
    s_mov_b32 s{sKSRD}, s{sK}
    s_mov_b32 s{sKSRD+1}, s{sK+1}
    s_mov_b32 s{sKSRD+2}, 0x200000
    s_mov_b32 s{sKSRD+3}, 0x20000
    s_mov_b32 exec_hi, 0
    ''')
    for i in range(3): A(f'buffer_load_dword v{vKr+i}, v{vB}, s[{sKSRD}:{sKSRD+3}], 0 offen offset:{1024*i}')
    A('s_mov_b64 exec, -1')
    for i in range(4): A(f'global_load_dword v{vVr+i}, v{vA}, {P(sV)} offset:{1024*i}')
    A(f'''
    s_add_u32 s{sWS}, s{sWS}, {cfg.WS_BASE}
    s_addc_u32 s{sWS+1}, s{sWS+1}, 0
    s_mov_b32 s{sWSR}, s{sWS}
    s_mov_b32 s{sWSR+1}, s{sWS+1}
    s_mov_b32 s{sWSR+2}, 0x4000000
    s_mov_b32 s{sWSR+3}, 0x20000
    s_mov_b32 s{sOUTR}, s{sOUT}
    s_mov_b32 s{sOUTR+1}, s{sOUT+1}
    s_mov_b32 s{sOUTR+2}, 0x200000
    s_mov_b32 s{sOUTR+3}, 0x20000
    s_add_u32 s{sFSRD}, s{sF}, s{sT0}
    s_addc_u32 s{sFSRD+1}, s{sF+1}, 0
    s_mov_b32 s{sFSRD+2}, 8192
    s_mov_b32 s{sFSRD+3}, 0x20000
    s_load_dword s{sDV}, {P(sD)}, s{sT4}
    ''')
    A(f'''
    s_cmp_lg_u32 s{sWAVE}, 7
    s_cbranch_scc1 L_nopt
    s_lshr_b32 s{sT0}, s{sM}, 2
    s_lshl_b32 s{sT0}, s{sT0}, 7
    s_lshl_b32 s{sT1}, s{sG}, 10
    s_add_u32 s{sT0}, s{sT0}, s{sT1}
    s_add_u32 s{sT1}, s{sT0}, {FL1}
    v_mov_b32 v{vPT+2}, s{sT1}
    s_add_u32 s{sT1}, s{sT0}, {FL2}
    v_writelane_b32 v{vPT+2}, s{sT1}, 2
    v_writelane_b32 v{vPT+2}, s{sT1}, 3
    s_lshl_b32 s{sT0}, s{sG}, 7
    s_add_u32 s{sT1}, s{sT0}, {FLM}
    v_writelane_b32 v{vPT+2}, s{sT1}, 4
    v_writelane_b32 v{vPT+2}, s{sT1}, 5
    s_add_u32 s{sT1}, s{sT0}, {SEL}
    v_writelane_b32 v{vPT+2}, s{sT1}, 6
    v_writelane_b32 v{vPT+2}, s{sT1}, 7
    s_lshl_b32 s{sT0}, s{sWID}, 6
    s_and_b32 s{sT0}, s{sT0}, 0xffffff80
    s_add_u32 s{sT1}, s{sT0}, {KEYS}
    v_writelane_b32 v{vPT+2}, s{sT1}, 8
    v_writelane_b32 v{vPT+2}, s{sT1}, 9
    v_and_b32 v{vPT+3}, 1, v0
    v_lshl_add_u32 v{vPT+2}, v{vPT+3}, 6, v{vPT+2}
    s_lshl_b32 s{sT0}, s{sWID}, 9
    s_add_u32 s{sT1}, s{sT0}, {MODP - 32*64}
    v_lshl_add_u32 v{vPT+3}, v{vLANE}, 6, s{sT1}
    v_cmp_lt_u32 vcc, 31, v{vLANE}
    v_cndmask_b32 v{vPT+2}, v{vPT+2}, v{vPT+3}, vcc
    s_lshl_b32 s{sT0}, s{sM}, 9
    s_add_u32 s{sT1}, s{sT0}, {H2P - 40*64}
    v_lshl_add_u32 v{vPT+3}, v{vLANE}, 6, s{sT1}
    v_cmp_lt_u32 vcc, 39, v{vLANE}
    v_cndmask_b32 v{vPT+2}, v{vPT+2}, v{vPT+3}, vcc
    s_mov_b32 exec_lo, 0x3ff
    s_mov_b32 exec_hi, {'0xffff' if cfg.H2PT else '0xff'}
    global_load_dword v{vPT+3}, v{vPT+2}, {P(sWS)} sc1
    s_mov_b64 exec, 0xffff
    s_getpc_b64 {P(sT0)}
    L_pc:
    s_lshl_b32 s{sT2}, s{sM}, 10
    v_lshl_add_u32 v{vPT+2}, v{vLANE}, 6, s{sT2}
    v_min_u32 v{vPT+2}, L_codeend-L_pc-4, v{vPT+2}
    global_load_dword v{vPT+3}, v{vPT+2}, {P(sT0)}
    s_mov_b64 exec, -1
    L_nopt:
    ''')
    if cfg.TLBW:
        tl = [(sWS, X0), (sWS, X3), (sOUT, 0), (sX, 0), (sWM, 0), (sWM, 0x200000), (sWG, 0), (sWU, 0), (sWD, 0), (sWS, XB1)]
        A(f'''
        s_cmp_lg_u32 s{sWAVE}, 6
        s_cbranch_scc1 L_notl
        s_lshl_b32 s{sT2}, s{sWID}, 12
        ''')
        for i, (b, off) in enumerate(tl):
            A(f's_add_u32 s{sT0}, s{b}, s{sT2}')
            A(f's_addc_u32 s{sT1}, s{b+1}, 0')
            if off:
                A(f's_add_u32 s{sT0}, s{sT0}, {off}')
                A(f's_addc_u32 s{sT1}, s{sT1}, 0')
            if i == 0:
                A(f'v_mov_b32 v{vPT+2}, s{sT0}'); A(f'v_mov_b32 v{vPT+3}, s{sT1}')
            else:
                A(f'v_writelane_b32 v{vPT+2}, s{sT0}, {i}'); A(f'v_writelane_b32 v{vPT+3}, s{sT1}, {i}')
        A(f'''
        s_mov_b64 exec, {(1 << len(tl)) - 1}
        global_load_dword v{vMT+1}, {pr(vPT+2)}, off
        s_mov_b64 exec, -1
        L_notl:
        ''')
    A(f'''
    v_mov_b32 v{vPT}, {L_CNT}
    v_mov_b32 v{vPT+1}, 0
    ds_write_b32 v{vPT}, v{vPT+1}
    v_and_b32 v{vT2}, 7, v0
    v_lshl_add_u32 v{vT2}, s{sWAVE}, 3, v{vT2}
    v_lshlrev_b32 v{vT2}, 10, v{vT2}
    v_lshrrev_b32 v{vT3}, 3, v{vLANE}
    v_lshl_add_u32 v{vJR}, v{vT3}, 4, v{vT2}
    v_add_u32 v{vJR}, s{sTILE}, v{vJR}
    s_barrier
    ''')
    def fload():
        A(f'''
        buffer_load_dwordx4 {q4(vFl+4)}, v{vT0}, s[{sFSRD}:{sFSRD+3}], 0 offen
        s_mov_b64 exec, 1
        buffer_load_dwordx4 {q4(vFl)}, v{vT1}, s[{sFSRD}:{sFSRD+3}], 0 offen
        s_mov_b64 exec, -1
        ''')
    if cfg.FPOS == 'bar': fload()
    A(f'''
    s_and_b32 s{sT0}, s{sM}, 3
    s_lshl_b32 s{sT0}, s{sT0}, 8
    s_and_b32 s{sT1}, s{sWAVE}, 3
    s_lshl_b32 s{sT1}, s{sT1}, 6
    s_add_u32 s{sT0}, s{sT0}, s{sT1}
    v_and_b32 v{vT2}, 0x38, v0
    v_add_u32 v{vT2}, s{sT0}, v{vT2}
    global_load_dwordx2 {pr(vGC)}, v{vT2}, {P(sC)}
    s_lshl_b32 s{sT0}, s{sG}, 9
    s_add_u32 s{sT0}, s{sT0}, {MTAB}
    v_and_b32 v{vPT}, 31, v0
    v_lshl_add_u32 v{vPT}, v{vPT}, 4, s{sT0}
    s_lshl_b32 s{sT1}, s{sM}, 4
    s_add_u32 s{sT0}, s{sT0}, s{sT1}
    v_mov_b32 v{vPT+1}, s{sT0}
    s_waitcnt lgkmcnt(0)
    s_mul_i32 s{sTAG}, s{sEP}, 0x9E3779B1
    s_add_u32 s{sTAG}, s{sTAG}, 0x7F4A7C15
    s_add_u32 s{sXCC}, s{sXCC}, s{sTAG}
    s_add_u32 s{sXCC}, s{sXCC}, 1
    v_mov_b32 v{vPT+2}, s{sXCC}
    s_cmp_lg_u32 s{sWAVE}, 0
    s_cbranch_scc1 L_nomode
    s_mov_b64 exec, 1
    global_store_dword v{vPT+1}, v{vPT+2}, {P(sWS)} sc1
    s_mov_b64 exec, -1
    L_nomode:
    ''')
    stamp('issued')
    A(f's_mov_b32 s{sPEND}, 0')
    vX1A, vUA, vTW, vTR = 96, 97, 98, 99
    A(f'''
    v_and_b32 v{vT2}, 31, v0
    v_lshrrev_b32 v{vT3}, 5, v0
    v_mul_u32_u24 v{vTW}, {TS}, v{vT2}
    v_lshlrev_b32 v{vT3}, 3, v{vT3}
    v_sub_u32 v{vTW}, v{vTW}, v{vT3}
    v_add_u32 v{vTW}, {L_T + 120}, v{vTW}
    v_lshrrev_b32 v{vX1A}, 4, v0
    v_mul_u32_u24 v{vTR}, {TS}, v{vX1A}
    v_and_b32 v{vT3}, 15, v0
    v_lshl_add_u32 v{vTR}, v{vT3}, 4, v{vTR}
    v_lshlrev_b32 v{vX1A}, 13, v{vX1A}
    v_bfe_u32 v{vT3}, v0, 3, 1
    v_lshl_add_u32 v{vX1A}, v{vT3}, 12, v{vX1A}
    v_and_b32 v{vT3}, 7, v0
    v_lshl_add_u32 v{vX1A}, v{vT3}, 4, v{vX1A}
    s_lshl_b32 s{sT0}, s{sG}, 18
    s_sub_u32 s{sT1}, 31, s{sM}
    s_lshl_b32 s{sT1}, s{sT1}, 7
    s_add_u32 s{sT0}, s{sT0}, s{sT1}
    s_add_u32 s{sT0}, s{sT0}, {XB1}
    v_add_u32 v{vX1A}, s{sT0}, v{vX1A}
    s_lshl_b32 s{sT0}, s{sG}, 10
    s_lshl_b32 s{sT1}, s{sWAVE}, 7
    s_add_u32 s{sT0}, s{sT0}, s{sT1}
    s_lshl_b32 s{sT1}, s{sM}, 2
    s_add_u32 s{sT0}, s{sT0}, s{sT1}
    v_mov_b32 v{vA}, s{sT0}
    v_mov_b32 v{vB}, s{sTAG}
    v_lshrrev_b32 v{vUA}, 8, v0
    v_mul_u32_u24 v{vUA}, {UCH}, v{vUA}
    v_and_b32 v{vT3}, 255, v0
    v_lshl_add_u32 v{vUA}, v{vT3}, 4, v{vUA}
    v_add_u32 v{vUA}, {L_U}, v{vUA}
    s_lshl_b32 s{sT0}, s{sWID}, 13
    s_add_u32 s{sT0}, s{sT0}, {XB1}
    v_lshl_add_u32 v{vSk-1}, v0, 4, s{sT0}
    s_mov_b32 s{sHM}, 0x11111111
    s_mov_b32 s{sHM+1}, 0x11111111
    ''')
    def wv(n): A(f's_waitcnt vmcnt({n})')
    vTp = 46
    vKp = 54
    vVp = 68
    vAc = 76
    vPp = 84
    vO = 92
    wv(7 if cfg.FPOS == 'bar' else 5)
    if cfg.FPOS == 'k': fload()
    for i in range(3): A(f'v_mov_b32 v{vPp+i}, v{vKr+4+i}')
    for i in range(3): A(f'v_permlane32_swap_b32 v{vKr+i}, v{vPp+i}')
    for j in range(4):
        src0, src1 = vSk + (j >> 1), vSk + 2 + (j >> 1)
        if j & 1:
            A(f'v_and_b32 v{vTp+2*j}, s{sMASK}, v{src0}'); A(f'v_and_b32 v{vTp+2*j+1}, s{sMASK}, v{src1}')
        else:
            A(f'v_lshlrev_b32 v{vTp+2*j}, 16, v{src0}'); A(f'v_lshlrev_b32 v{vTp+2*j+1}, 16, v{src1}')
    for r in range(7): unpack(vKp + 2*r, vKr + r)
    stamp('kland')
    for i in range(4): A(f'v_pk_mul_f32 {pr(vAc+2*i)}, {pr(vKp+2*i)}, {pr(vTp+6)}')
    for i in range(8): rnd(vAc + i)
    for j in (2, 1, 0):
        for i in range(4): A(f'v_pk_mul_f32 {pr(vPp+2*i)}, {pr(vKp+2*(i+3-j))}, {pr(vTp+2*j)}')
        for i in range(8): rnd(vPp + i)
        for i in range(4): A(f'v_pk_add_f32 {pr(vAc+2*i)}, {pr(vAc+2*i)}, {pr(vPp+2*i)}')
        for i in range(8): rnd(vAc + i)
    wv(3)
    A(f'global_load_dword v{vMT}, v{vPT}, {P(sWS)} sc1')
    if cfg.X1PT:
        A(f'''
        s_mov_b64 exec, {P(sHM)}
        global_load_dword v{vPT+3}, v{vSk-1}, {P(sWS)} sc1
        s_mov_b64 exec, -1
        ''')
    for i in range(4): unpack(vVp + 2*i, vVr + i)
    for i in range(4): A(f'v_pk_mul_f32 {pr(vAc+2*i)}, {pr(vAc+2*i)}, {pr(vVp+2*i)}')
    for c in range(2):
        A(f'v_cvt_pk_bf16_f32 v{vO+2*c}, v{vAc+6+c}, v{vAc+4+c}')
        A(f'v_cvt_pk_bf16_f32 v{vO+2*c+1}, v{vAc+2+c}, v{vAc+c}')
    A(f'''
    ds_write2_b64 v{vTW}, {pr(vO)}, {pr(vO+2)} offset0:0 offset1:16
    s_waitcnt lgkmcnt(0)
    s_barrier
    ds_read_b128 {q4(vO)}, v{vTR} offset:{L_T}
    ''')
    stamp('B1')
    A(f'''
    s_waitcnt lgkmcnt(0)
    global_store_dwordx4 v{vX1A}, {q4(vO)}, {P(sWS)}
    ''')
    vW1 = 46
    vOa = 52
    vOb = 58
    wv((4 if cfg.X1PT else 3) - (0 if cfg.FPOS == 'bar' else 1))
    for i in range(4): A(f'v_mov_b32_dpp v{vFl+i}, v{vFl+4+i} wave_shr:1 {DPPM}')
    for i in range(6): A(f'v_mov_b32 v{vW1+i}, v{vFl+1+i}')
    for i in range(6): A(f'v_alignbyte_b32 v{vOa+i}, v{vFl+i+1}, v{vFl+i}, 2')
    for i in range(6): A(f'v_alignbyte_b32 v{vOb+i}, v{vFl+i+2}, v{vFl+i+1}, 2')
    A(f'''
    v_add_u32 v{vT2}, {FL1}, v{vA}
    s_mov_b32 s{sMODE}, {0 if cfg.FORCE_SLOW else 1}
    s_waitcnt vmcnt(0)
    v_cmp_ne_u32 vcc, s{sXCC}, v{vMT}
    s_cbranch_vccnz L_modeslow
    L_modeback:
    s_cmp_eq_u32 s{sMODE}, 1
    s_cbranch_scc0 L_x1slow
    L_x1back:
    s_mov_b64 exec, 1
    ''')
    late.append(('L_x1slow', lambda: (A(f'global_store_dwordx4 v{vX1A}, {q4(vO)}, {P(sWS)} sc1'), A('s_waitcnt vmcnt(0)'), A('s_branch L_x1back'))))
    lstore(f'global_store_dword v{vT2}, v{vB}, {P(sWS)}')
    A('s_mov_b64 exec, -1')
    stamp('flag1')
    srcs = {0: vOa, 1: vW1, 2: vOb, 3: vFl + 2, 4: vOa + 2, 5: vW1 + 2, 6: vOb + 2, 7: vFl + 4}
    def uwrites():
        for c in range(8): A(f'ds_write_b128 v{vUA}, {q4(srcs[c])} offset:{c*USTR + 16}')
    A(f's_cmp_eq_u32 s{sWAVE}, 4')
    A('s_cbranch_scc1 L_nouw')
    uwrites()
    A('L_nouw:')
    vZ = 64
    for i in range(4): A(f'v_mov_b32 v{vZ+i}, 0')
    vXp = 100
    vXA = 108
    vXL = 109
    A(f'''
    v_mul_u32_u24 v{vT0}, {USTR}, v{vLANE}
    v_lshrrev_b32 v{vT1}, 5, v{vLANE}
    v_mul_u32_u24 v{vT1}, {KVS - 512}, v{vT1}
    v_lshl_add_u32 v{vT1}, v{vLANE}, 4, v{vT1}
    v_add_u32 v{vT1}, {L_KVR + 4096}, v{vT1}
    s_cmp_lg_u32 s{sWAVE}, 0
    s_cbranch_scc1 L_nz0
    s_mov_b64 exec, 0xffff
    ds_write_b128 v{vT0}, {q4(vZ)} offset:{L_U}
    s_mov_b64 exec, -1
    ds_write_b128 v{vT1}, {q4(vZ)}
    L_nz0:
    v_lshrrev_b32 v{vT0}, 3, v{vLANE}
    v_and_b32 v{vT1}, 7, v0
    v_lshl_add_u32 v{vT1}, s{sWAVE}, 3, v{vT1}
    v_lshlrev_b32 v{vT1}, 4, v{vT1}
    v_lshl_add_u32 v{vXA}, v{vT0}, 18, v{vT1}
    s_lshl_b32 s{sT0}, s{sM}, 13
    s_lshl_b32 s{sT1}, s{sG}, 10
    s_add_u32 s{sT0}, s{sT0}, s{sT1}
    v_add_u32 v{vXA}, s{sT0}, v{vXA}
    v_lshl_add_u32 v{vXL}, v{vT0}, 10, v{vT1}
    s_lshl_b32 s{sT0}, s{sWID}, 13
    v_add_u32 v{vXL}, s{sT0}, v{vXL}
    s_cmp_ge_u32 s{sWAVE}, 4
    s_cbranch_scc1 L_helper
    ''')
    vAA, vBA, vPW = 110, 111, 112
    vACC = 116
    vFA = [148, 180]
    vFB = [212, 46]
    A(f'''
    v_and_b32 v{vT0}, 15, v0
    v_lshrrev_b32 v{vT1}, 4, v{vLANE}
    v_and_b32 v{vT2}, 7, v0
    v_mul_u32_u24 v{vAA}, {USTR}, v{vT2}
    v_lshrrev_b32 v{vT2}, 3, v{vT0}
    v_add_u32 v{vT2}, v{vT2}, v{vT1}
    v_lshl_add_u32 v{vAA}, v{vT2}, 4, v{vAA}
    s_lshr_b32 s{sT0}, s{sWAVE}, 1
    s_and_b32 s{sT1}, s{sWAVE}, 1
    s_lshl_b32 s{sT1}, s{sT1}, 8
    s_mul_i32 s{sT2}, s{sT0}, {UCH}
    s_add_u32 s{sT2}, s{sT2}, s{sT1}
    s_add_u32 s{sT2}, s{sT2}, {L_U}
    v_add_u32 v{vAA}, s{sT2}, v{vAA}
    v_lshlrev_b32 v{vBA}, 4, v{vT1}
    v_lshlrev_b32 v{vT2}, 5, v{vT0}
    v_sub_u32 v{vBA}, v{vBA}, v{vT2}
    s_mul_i32 s{sT2}, s{sT0}, {KVS}
    s_add_u32 s{sT2}, s{sT2}, s{sT1}
    s_add_u32 s{sT2}, s{sT2}, {L_KVR + 480}
    v_add_u32 v{vBA}, s{sT2}, v{vBA}
    ''')
    def ldA(st, r, p): A(f'ds_read_b128 {q4(vFA[st]+4*p)}, v{vAA} offset:{64*r + 512*p}')
    def ldB(st, r, q): A(f'ds_read_b128 {q4(vFB[st]+4*q)}, v{vBA} offset:{(7-q)*512 + 64*r}')
    A(f'''
    v_lshl_add_u32 v{vT2}, v{vT1}, 2, v{vT0}
    v_and_b32 v{vT2}, 15, v{vT2}
    v_lshl_add_u32 v{vT2}, v{vT1}, 4, v{vT2}
    v_lshlrev_b32 v{vPW}, 4, v{vT2}
    s_lshl_b32 s{sT0}, s{sWAVE}, 13
    s_add_u32 s{sT0}, s{sT0}, {L_P}
    v_add_u32 v{vPW}, s{sT0}, v{vPW}
    s_waitcnt lgkmcnt(0)
    s_barrier
    s_setprio {cfg.PRIO}
    ''')
    for i in range(8): ldA(0, 0, i)
    A('s_waitcnt lgkmcnt(0)')
    A('s_barrier')
    stamp('B2')
    for i in range(8): ldB(0, 0, i)
    order = [(p, j - p) for j in range(8) for p in range(j + 1)]
    for r in range(4):
        st = r & 1
        nxt = [(k, i) for i in range(8) for k in 'AB'] if r < 3 else []
        issued = 0
        written = 0
        for n, (p, q) in enumerate(order):
            j = p + q
            if p == 0 and r == 0:
                A(f's_waitcnt lgkmcnt({min(15, 8 - (j+1) + issued)})')
            c = '0' if (r == 0 and p == 0) else q4(vACC + 4*j)
            A(f'v_mfma_f32_16x16x32_bf16 {q4(vACC+4*j)}, {q4(vFA[st]+4*p)}, {q4(vFB[st]+4*q)}, {c}')
            if nxt and issued < 16 and n >= (4 if r == 0 else 1):
                k, i = nxt[issued]
                (ldA if k == 'A' else ldB)(st ^ 1, r + 1, i); issued += 1
            if r == 3:
                while written < 8 and n >= written*(written+3)//2 + 9 and written <= j - 1:
                    A(f'ds_write_b128 v{vPW}, {q4(vACC+4*written)} offset:{1024*written}'); written += 1
        if r < 3: A('s_waitcnt lgkmcnt(0)')
        else:
            while written < 8:
                A(f'ds_write_b128 v{vPW}, {q4(vACC+4*written)} offset:{1024*written}'); written += 1
    A('s_setprio 0')
    A('s_branch L_s1join')
    A('L_helper:')
    vKD = 116
    vKV = 132
    vXo = 140
    vI0 = 220
    vDUM = 230
    vWRr = 231
    vGW = 164
    vF2, vD2 = 54, 55
    wr_ = [0]
    def wvr(n_s3only, n_both, n_gonly):
        wr_[0] += 1; k = wr_[0]
        A(f'''
        s_cmp_lg_u32 s{sPEND}, 3
        s_cbranch_scc1 L_wr{k}a
        s_waitcnt vmcnt({n_both})
        L_wr{k}b:
        ''')
        late.append((f'L_wr{k}a', lambda: (A(f's_waitcnt vmcnt({min(n_s3only, n_gonly)})') if n_s3only == n_gonly else
                     A(f'''s_cmp_eq_u32 s{sPEND}, 2
                     s_cbranch_scc1 L_wr{k}c
                     s_waitcnt vmcnt({n_gonly})
                     s_branch L_wr{k}b
                     L_wr{k}c:
                     s_waitcnt vmcnt({n_s3only})'''), A(f's_branch L_wr{k}b'))))
    A(f'''
    s_cmp_lt_u32 s{sM}, {NG0}
    s_cselect_b32 s{sT0}, 0, 1
    s_cmp_lt_u32 s{sM}, {NS3}
    s_cselect_b32 s{sT1}, 2, 0
    s_add_u32 s{sPEND}, s{sT0}, s{sT1}
    ''')
    vWA = 144
    sWB = 12
    def wblock(tag):
        A(f'''
        s_cmp_ge_u32 s{sM}, {NS3}
        s_cbranch_scc1 L_h_now{tag}
        s_lshl_b32 s{sT5}, s{sT4}, 12
        s_add_u32 s{sT5}, s{sT5}, {L_WGU}
        ''')
        for i in range(4):
            A(f's_mov_b32 m0, s{sT5}')
            A(f'global_load_lds_dwordx4 v{vWA}, {P(sWB)}')
            if i < 3:
                A(f'v_add_u32 v{vWA}, {16*3584}, v{vWA}')
                A(f's_add_u32 s{sT5}, s{sT5}, 1024')
        A(f'''
        s_lshl_b32 s{sT5}, s{sT4}, 11
        s_add_u32 s{sT5}, s{sT5}, {L_WGU + 16384}
        s_mov_b32 m0, s{sT5}
        s_add_u32 s{sT5}, s{sT5}, 1024
        global_load_lds_dwordx4 v{vWA+1}, {P(sWD)}
        s_mov_b32 m0, s{sT5}
        s_nop 0
        global_load_lds_dwordx4 v{vWA+2}, {P(sWD)}
        L_h_now{tag}:
        ''')
    vSt = 188
    for i in range(2): unpack(vSt + 2*i, vGC + i)
    for i in range(4): A(f'v_mul_f32 v{vSt+4+i}, 0xbfb8aa3b, v{vSt+i}')
    for i in range(4): A(f'v_exp_f32 v{vSt+4+i}, v{vSt+4+i}')
    for i in range(4): A(f'v_add_f32 v{vSt+4+i}, 1.0, v{vSt+4+i}')
    for i in range(4): A(f'v_rcp_f32 v{vSt+4+i}, v{vSt+4+i}')
    for i in range(4): A(f'v_mul_f32 v{vSt+i}, v{vSt+i}, v{vSt+4+i}')
    for i in range(2): A(f'v_cvt_pk_bf16_f32 v{vGC+i}, v{vSt+2*i}, v{vSt+2*i+1}')
    A(f'''
    s_sub_u32 s{sT4}, s{sWAVE}, 4
    s_min_u32 s{sT5}, s{sM}, {NS3-1}
    s_lshr_b32 s{sT0}, s{sT5}, 2
    s_mul_i32 s{sT3}, s{sG}, 7
    s_add_u32 s{sT0}, s{sT0}, s{sT3}
    s_lshl_b32 s{sT2}, s{sT0}, 6
    s_and_b32 s{sT1}, s{sM}, 3
    s_lshl_b32 s{sT3}, s{sT1}, 1
    s_and_b32 s{sT5}, s{sWAVE}, 1
    s_add_u32 s{sT3}, s{sT3}, s{sT5}
    s_mul_i32 s{sT3}, s{sT3}, {64*3584}
    s_add_u32 s{sT2}, s{sT2}, s{sT3}
    v_lshrrev_b32 v{vWA}, 2, v{vLANE}
    v_mul_u32_u24 v{vWA}, 3584, v{vWA}
    v_and_b32 v{vT2}, 3, v0
    v_lshl_add_u32 v{vWA}, v{vT2}, 4, v{vWA}
    v_add_u32 v{vWA}, s{sT2}, v{vWA}
    s_cmp_ge_u32 s{sWAVE}, 6
    s_cselect_b32 s{sWB}, s{sWU}, s{sWG}
    s_cselect_b32 s{sWB+1}, s{sWU+1}, s{sWG+1}
    s_lshl_b32 s{sT2}, s{sT0}, 15
    s_lshl_b32 s{sT3}, s{sT1}, 8
    s_add_u32 s{sT2}, s{sT2}, s{sT3}
    s_lshl_b32 s{sT3}, s{sT4}, 13
    s_add_u32 s{sT2}, s{sT2}, s{sT3}
    v_lshrrev_b32 v{vT2}, 4, v{vLANE}
    v_lshlrev_b32 v{vT2}, 10, v{vT2}
    v_and_b32 v{vT3}, 15, v0
    v_lshl_add_u32 v{vT2}, v{vT3}, 4, v{vT2}
    v_add_u32 v{vWA+1}, s{sT2}, v{vT2}
    v_add_u32 v{vWA+2}, 4096, v{vWA+1}
    s_max_u32 s{sT0}, s{sM}, {NG0}
    s_sub_u32 s{sT0}, s{sT0}, {NG0}
    s_lshr_b32 s{sT1}, s{sT0}, 2
    s_and_b32 s{sT3}, s{sT0}, 3
    s_lshl_b32 s{sT3}, s{sT3}, 7
    s_lshl_b32 s{sT5}, s{sT4}, 5
    s_add_u32 s{sT3}, s{sT3}, s{sT5}
    v_lshrrev_b32 v{vKV}, 3, v{vLANE}
    v_lshl_add_u32 v{vKV}, v{vKV}, 2, s{sT3}
    s_movk_i32 s{sT3}, 6144
    v_mul_lo_u32 v{vKV}, v{vKV}, s{sT3}
    v_and_b32 v{vT3}, 7, v0
    v_lshl_add_u32 v{vKV}, v{vT3}, 4, v{vKV}
    s_lshl_b32 s{sT1}, s{sT1}, 10
    s_lshl_b32 s{sT2}, s{sG}, 7
    s_add_u32 s{sT1}, s{sT1}, s{sT2}
    v_add_u32 v{vKV}, s{sT1}, v{vKV}
    v_lshl_add_u32 v{vKV+2}, v{vLANE}, 1, s{sT2}
    v_subrev_u32 v{vKV+3}, 0x8000, v{vJR}
    s_cmp_lg_u32 s{sWAVE}, 4
    s_cbranch_scc1 L_h_b2a
    s_lshr_b32 s{sT2}, s{sM}, 2
    s_lshl_b32 s{sT2}, s{sT2}, 7
    s_lshl_b32 s{sT1}, s{sG}, 10
    s_add_u32 s{sT2}, s{sT2}, s{sT1}
    s_add_u32 s{sT2}, s{sT2}, {FL1}
    v_and_b32 v{vT0}, 31, v0
    v_lshl_add_u32 v{vT0}, v{vT0}, 2, s{sT2}
    s_lshl_b32 s{sT0}, s{sWID}, 13
    s_add_u32 s{sT0}, s{sT0}, {XB1}
    v_lshl_add_u32 v{vT1}, v{vLANE}, 4, s{sT0}
    v_add_u32 v{vT3}, 4096, v{vT1}
    s_mov_b32 m0, {L_KVR}
    ''')
    poll('L_poll1', f'global_load_dword v{vT2}, v{vT0}, {P(sWS)} sc1', f'v_cmp_ne_u32 vcc, s{sTAG}, v{vT2}')
    for i in range(4): A(f'global_load_lds_dwordx4 v{vT1}, {P(sWS)} offset:{1024*i} sc1')
    A(f's_mov_b32 m0, {L_KVR + KVS}')
    for i in range(4): A(f'global_load_lds_dwordx4 v{vT3}, {P(sWS)} offset:{1024*i} sc1')
    stamp('poll1')
    uwrites()
    A(f'''
    L_h_b2a:
    s_waitcnt lgkmcnt(0)
    s_barrier
    global_load_dwordx4 {q4(vX)}, v{vJR}, {P(sX)}
    global_load_dwordx4 {q4(vXo)}, v{vKV+3}, {P(sX)}
    global_load_ushort v{vWRr}, v{vKV+2}, {P(sWR)}
    s_cmp_lt_u32 s{sM}, {NG0}
    s_cbranch_scc1 L_h_nog
    ''')
    for i in range(4):
        A(f'global_load_dwordx4 {q4(vGW+4*i)}, v{vKV}, {P(sWM)}')
        if i < 3: A(f'v_add_u32 v{vKV}, s{sT3}, v{vKV}')
    A('L_h_nog:')
    wvr(3, 7, 7)
    A('s_barrier')
    wblock('a')
    A(f'''
    s_lshl_b32 s{sT0}, s{sWAVE}, 9
    s_sub_u32 s{sT0}, {L_KVR + 4088}, s{sT0}
    v_lshlrev_b32 v{vT0}, 3, v{vLANE}
    v_sub_u32 v{vT0}, s{sT0}, v{vT0}
    ds_read_b64 {pr(vKV)}, v{vT0}
    ds_read_b64 {pr(vKV+2)}, v{vT0} offset:{KVS}
    ds_read_b64 {pr(vKV+4)}, v{vT0} offset:2048
    ds_read_b64 {pr(vKV+6)}, v{vT0} offset:{KVS+2048}
    s_lshl_b32 s{sD0}, s{sDV}, 16
    s_and_b32 s{sD1}, s{sDV}, s{sMASK}
    s_waitcnt lgkmcnt(0)
    ''')
    for t in range(2):
        for c in range(2):
            b = vKD + 8*t + 4*c; s = vKV + 4*t + 2*c
            A(f'v_and_b32 v{b}, s{sMASK}, v{s+1}')
            A(f'v_lshlrev_b32 v{b+1}, 16, v{s+1}')
            A(f'v_and_b32 v{b+2}, s{sMASK}, v{s}')
            A(f'v_lshlrev_b32 v{b+3}, 16, v{s}')
            for i in range(4): A(f'v_mul_f32 v{b+i}, s{sD0+c}, v{b+i}')
            for i in range(4): rnd(b + i)
    A(f'''
    s_lshl_b32 s{sT1}, s{sT4}, 11
    s_add_u32 s{sT1}, s{sT1}, {L_KD}
    v_lshl_add_u32 v{vT0}, v{vLANE}, 4, s{sT1}
    ds_write_b128 v{vT0}, {q4(vKD+8)}
    ds_write_b128 v{vT0}, {q4(vKD+12)} offset:1024
    ''')
    A(f'''
    s_lshl_b32 s{sT1}, s{sT4}, 10
    s_add_u32 s{sT1}, s{sT1}, {L_XS}
    v_lshl_add_u32 v{vT0}, v{vLANE}, 4, s{sT1}
    ''')
    wvr(7, 11, 5)
    A(f'ds_write_b128 v{vT0}, {q4(vXo)}')
    vXq = 186
    vS0 = 196
    for i in range(4): unpack(vXp + 2*i, vX + i)
    for i in range(4): unpack(vXq + 2*i, vXo + i)
    for (xb, u, t) in ((vXp, vS0, 204), (vXq, vS0 + 4, 208)):
        A(f'v_pk_add_f32 {pr(t)}, {pr(xb)}, {pr(xb+2)}')
        A(f'v_pk_mul_f32 {pr(t+2)}, {pr(xb)}, {pr(xb)}')
        for i in range(1, 4): A(f'v_pk_fma_f32 {pr(t+2)}, {pr(xb+2*i)}, {pr(xb+2*i)}, {pr(t+2)}')
        for i in range(2, 4): A(f'v_pk_add_f32 {pr(t)}, {pr(t)}, {pr(xb+2*i)}')
        A(f'v_add_f32 v{u}, v{t}, v{t+1}')
        A(f'v_add_f32 v{u+2}, v{t+2}, v{t+3}')
    allred([vS0, vS0 + 2, vS0 + 4, vS0 + 6], [204, 205, 206, 207])
    A(f'''
    v_mov_b32 v{vS0+1}, s{sTAG}
    v_mov_b32 v{vS0+3}, s{sTAG}
    v_mov_b32 v{vS0+5}, s{sTAG}
    v_mov_b32 v{vS0+7}, s{sTAG}
    v_add_u32 v{vT0}, {X0 - 512}, v{vXA}
    global_store_dwordx4 v{vT0}, {q4(vS0)}, {P(sWS)} offset:512 sc1
    global_store_dwordx4 v{vT0}, {q4(vS0+4)}, {P(sWS)} sc1
    ''')
    stamp('gemv0')
    def gemv_block(nb, ng):
        A(f'''
        s_cmp_lt_u32 s{sM}, {NG0}
        s_cbranch_scc1 L_g_done
        s_cmp_lt_u32 s{sWAVE}, 4
        s_cbranch_scc1 L_g_done
        ''')
        wvr(63, nb, ng)
        vSC = vGC
        vGA = 204
        vGP = 212
        A(f's_mov_b32 s{sT0}, 0x05040100')
        A(f's_mov_b32 s{sT1}, 0x07060302')
        for rp in range(2):
            w0, w1 = vGW + 8*rp, vGW + 8*rp + 4
            for d in range(4):
                A(f'v_perm_b32 v{vGP+2*d}, v{w1+d}, v{w0+d}, s{sT0}')
                A(f'v_perm_b32 v{vGP+2*d+1}, v{w1+d}, v{w0+d}, s{sT1}')
            for c in range(8): A(f'v_dot2_f32_bf16 v{vGA+c}, v{vGP+c}, v{vSC+rp}, ' + (f'v{vGA+c}' if rp else '0'))
        for c in range(4): A(f'v_permlane32_swap_b32 v{vGA+c}, v{vGA+c+4}')
        for c in range(4): A(f'v_add_f32 v{vGA+c}, v{vGA+c}, v{vGA+c+4}')
        for c in range(2): A(f'v_permlane16_swap_b32 v{vGA+c}, v{vGA+c+2}')
        for c in range(2): A(f'v_add_f32 v{vGA+c}, v{vGA+c}, v{vGA+c+2}')
        for c in range(2): A(f'v_add_f32_dpp v{vGA+c}, v{vGA+c}, v{vGA+c} row_ror:8 {DPPM}')
        A(f'''
        v_and_b32 v{vT0}, 8, v0
        v_cmp_ne_u32 vcc, 0, v{vT0}
        v_cndmask_b32 v{vGA}, v{vGA}, v{vGA+1}, vcc
        v_and_b32 v{vT0}, 7, v0
        v_lshrrev_b32 v{vT1}, 3, v{vLANE}
        v_lshl_add_u32 v{vT0}, v{vT0}, 3, v{vT1}
        s_sub_u32 s{sT0}, s{sWAVE}, 4
        s_lshl_b32 s{sT0}, s{sT0}, 8
        s_add_u32 s{sT0}, s{sT0}, {L_GP}
        v_lshl_add_u32 v{vT0}, v{vT0}, 2, s{sT0}
        ds_write_b32 v{vT0}, v{vGA}
        v_mov_b32 v{vT1}, {L_CNT}
        v_mov_b32 v{vT2}, 1
        s_waitcnt lgkmcnt(0)
        s_mov_b64 exec, 1
        ds_add_rtn_u32 v{vT2}, v{vT1}, v{vT2}
        s_mov_b64 exec, -1
        s_waitcnt lgkmcnt(0)
        v_readfirstlane_b32 s{sT0}, v{vT2}
        s_cmp_lg_u32 s{sT0}, 3
        s_cbranch_scc1 L_g_done
        v_lshlrev_b32 v{vT0}, 2, v{vLANE}
        ds_read2st64_b32 {pr(vGA)}, v{vT0} offset0:{L_GP//256} offset1:{L_GP//256+1}
        ds_read2st64_b32 {pr(vGA+2)}, v{vT0} offset0:{L_GP//256+2} offset1:{L_GP//256+3}
        s_sub_u32 s{sT0}, s{sM}, {NG0}
        s_lshl_b32 s{sT0}, s{sT0}, 9
        s_lshl_b32 s{sT1}, s{sG}, 14
        s_add_u32 s{sT0}, s{sT0}, s{sT1}
        s_add_u32 s{sT0}, s{sT0}, {MODP}
        v_lshl_add_u32 v{vT0}, v{vLANE}, 3, s{sT0}
        s_waitcnt lgkmcnt(0)
        v_pk_add_f32 {pr(vGA)}, {pr(vGA)}, {pr(vGA+2)}
        v_add_f32 v{vGA}, v{vGA}, v{vGA+1}
        v_mov_b32 v{vGA+1}, s{sTAG}
        ''')
        lstore(f'global_store_dwordx2 v{vT0}, {pr(vGA)}, {P(sWS)}')
        A('L_g_done:')
    if cfg.GPOS == 's1': gemv_block(8, 2)
    A('L_s1join:')
    stamp('s1join')
    vPp0 = 148
    vKDe = 116
    vMn, vInv = 64, 65
    vH = 232
    vPar = 164
    vU = 46
    def rdpar(lst):
        for pi in lst:
            A(f'ds_read_b128 {q4(vPar+8*pi)}, v{vPA} offset:{L_MOD + 256*pi}')
            A(f'ds_read_b128 {q4(vPar+8*pi+4)}, v{vPA} offset:{L_MOD + 256*pi + 16}')
    A(f'''
    v_lshrrev_b32 v{vT0}, 2, v{vLANE}
    v_and_b32 v{vT1}, 3, v0
    v_lshl_add_u32 v{vT0}, v{vT1}, 2, v{vT0}
    v_and_b32 v{vT0}, 15, v{vT0}
    v_lshl_add_u32 v{vT0}, v{vT1}, 4, v{vT0}
    v_lshlrev_b32 v{vT0}, 4, v{vT0}
    s_lshl_b32 s{sT0}, s{sWAVE}, 10
    s_add_u32 s{sT1}, s{sT0}, {L_P}
    v_add_u32 v{vT0}, s{sT1}, v{vT0}
    s_lshl_b32 s{sT1}, s{sWAVE}, 11
    s_add_u32 s{sT1}, s{sT1}, {L_KD}
    v_lshl_add_u32 v{vT1}, v{vLANE}, 4, s{sT1}
    s_lshl_b32 s{sT2}, s{sWID}, 13
    s_add_u32 s{sT2}, s{sT2}, {XB1}
    v_lshl_add_u32 v{vT2}, v0, 4, s{sT2}
    v_lshlrev_b32 v{vT3}, 4, v0
    v_add_u32 v{vT3}, {L_XS}, v{vT3}
    v_lshrrev_b32 v{vPA}, 3, v{vLANE}
    v_lshlrev_b32 v{vPA}, 5, v{vPA}
    s_waitcnt lgkmcnt(0)
    s_barrier
    ''')
    for w in range(4): A(f'ds_read_b128 {q4(vPp0+4*w)}, v{vT0} offset:{8192*w}')
    A(f'''
    s_cmp_ge_u32 s{sWAVE}, 4
    s_cbranch_scc1 L_nokd
    ds_read_b128 {q4(vKDe)}, v{vT1}
    ds_read_b128 {q4(vKDe+4)}, v{vT1} offset:1024
    ds_read_b128 {q4(vX)}, v{vT3}
    L_nokd:
    s_waitcnt lgkmcnt(0)
    ''')
    for c in range(2):
        for h in range(2): A(f'v_pk_add_f32 {pr(vPp0+8*c+2*h)}, {pr(vPp0+8*c+2*h)}, {pr(vPp0+8*c+4+2*h)}')
    for c in range(2):
        for i in range(4): rnd(vPp0 + 8*c + i)
    for c in range(2):
        for h in range(2): A(f'v_pk_add_f32 {pr(vPp0+8*c+2*h)}, {pr(vPp0+8*c+2*h)}, {pr(vKDe+4*c+2*h)}')
    for i in range(4): A(f'v_cvt_pk_bf16_f32 v{vPp0+4+i}, v{vPp0+i}, v{vPp0+8+i}')
    lstore(f'global_store_dwordx4 v{vT2}, {q4(vPp0+4)}, {P(sWS)}')
    stamp('zst')
    vMQ = 140
    vXCA = 139
    vZA = 68
    A(f'''
    v_mov_b32 v{vXCA}, 0
    s_min_u32 s{sT5}, s{sWAVE}, 5
    s_cmp_eq_u32 s{sWAVE}, 6
    s_cselect_b32 s{sT5}, 3, s{sT5}
    s_cmp_eq_u32 s{sWAVE}, 7
    s_cselect_b32 s{sT5}, 4, s{sT5}
    s_lshl_b32 s{sT1}, s{sT5}, 11
    s_lshl_b32 s{sT2}, s{sG}, 14
    s_add_u32 s{sT1}, s{sT1}, s{sT2}
    s_add_u32 s{sT1}, s{sT1}, {MODP}
    v_lshl_add_u32 v{vD2+1}, v{vLANE}, 4, s{sT1}
    v_add_u32 v{vD2+2}, {X0}, v{vXL}
    ''')
    modld = '\n'.join([f'global_load_dwordx4 {q4(vMQ+4*i)}, v{vD2+1}, {P(sWS)} offset:{1024*i} sc1' for i in range(2)])
    chk = [f'v_xor_b32 v{vMQ+2*i+1}, s{sTAG}, v{vMQ+2*i+1}' for i in range(4)]
    chk += [f'v_or3_b32 v{vMQ+1}, v{vMQ+1}, v{vMQ+3}, v{vMQ+5}', f'v_or_b32 v{vMQ+1}, v{vMQ+1}, v{vMQ+7}', f'v_cmp_ne_u32 vcc, 0, v{vMQ+1}']
    x0ld = f'global_load_dwordx4 {q4(vI0)}, v{vD2+2}, {P(sWS)} sc1'
    x0chk = f'''v_xor_b32 v{vI0+1}, s{sTAG}, v{vI0+1}
         v_xor_b32 v{vI0+3}, s{sTAG}, v{vI0+3}
         v_or_b32 v{vI0+1}, v{vI0+1}, v{vI0+3}
         v_cmp_ne_u32 vcc, 0, v{vI0+1}'''
    A(x0ld)
    for i in range(4): unpack(vXp + 2*i, vX + i)
    if cfg.GPOS == 'zst': gemv_block(10, 4)
    A(f'''
    v_add_u32 v{vT1}, {FL2}, v{vA}
    s_lshr_b32 s{sT2}, s{sM}, 2
    s_lshl_b32 s{sT2}, s{sT2}, 7
    s_lshl_b32 s{sT3}, s{sG}, 10
    s_add_u32 s{sT2}, s{sT2}, s{sT3}
    s_lshl_b32 s{sT3}, s{sWAVE}, 4
    s_add_u32 s{sT2}, s{sT2}, s{sT3}
    s_add_u32 s{sT2}, s{sT2}, {FL2}
    v_and_b32 v{vF2}, 3, v0
    v_lshl_add_u32 v{vF2}, v{vF2}, 2, s{sT2}
    s_lshl_b32 s{sT3}, s{sWAVE}, 1
    v_subrev_u32 v{vD2}, s{sT3}, v0
    v_and_b32 v{vD2}, 15, v{vD2}
    v_lshlrev_b32 v{vD2}, 4, v{vD2}
    v_lshrrev_b32 v{vT2}, 4, v0
    v_lshl_add_u32 v{vD2}, v{vT2}, 13, v{vD2}
    s_lshl_b32 s{sT2}, s{sG}, 18
    s_lshl_b32 s{sT3}, s{sM}, 8
    s_add_u32 s{sT2}, s{sT2}, s{sT3}
    s_add_u32 s{sT2}, s{sT2}, {XB1}
    v_add_u32 v{vD2}, s{sT2}, v{vD2}
    s_lshl_b32 s{sT2}, s{sWAVE}, 10
    s_add_u32 s{sT2}, s{sT2}, {L_Z}
    s_mov_b32 m0, s{sT2}
    v_lshrrev_b32 v{vT0}, 3, v{vLANE}
    v_bfe_u32 v{vT2}, v0, 2, 1
    v_lshl_add_u32 v{vT2}, s{sWAVE}, 1, v{vT2}
    v_lshl_add_u32 v{vT2}, v{vT0}, 1, v{vT2}
    v_and_b32 v{vT2}, 15, v{vT2}
    v_lshlrev_b32 v{vT2}, 4, v{vT2}
    v_lshl_add_u32 v{vZA}, v{vT0}, 10, v{vT2}
    v_and_b32 v{vT2}, 3, v0
    v_lshl_add_u32 v{vZA}, v{vT2}, 2, v{vZA}
    s_mov_b32 s{sT0}, s{sT5}
    s_waitcnt vmcnt(1)
    s_mov_b64 exec, 1
    ''')
    lstore(f'global_store_dword v{vT1}, v{vB}, {P(sWS)}')
    A('s_mov_b64 exec, -1')
    stamp('flag2')
    A(modld)
    A('s_waitcnt vmcnt(3)')
    A(x0chk)
    A('s_cbranch_vccnz L_pollx0')
    A('L_pollx0_back:')
    late.append(('L_pollx0', lambda: (poll('L_pollx0b', x0ld, x0chk), A('s_nop 1'), A('s_branch L_pollx0_back'))))
    allred([vI0, vI0 + 2], [vI0 + 1, vI0 + 3])
    lnstats(vI0, vI0 + 2, vI0 + 1, vMn, vInv)
    for i in range(8): A(f'v_sub_f32 v{vH+i}, v{vXp+i}, v{vMn}')
    for i in range(8): rnd(vH + i)
    for i in range(8): A(f'v_mul_f32 v{vH+i}, v{vH+i}, v{vInv}')
    for i in range(8): rnd(vH + i)
    A('s_waitcnt vmcnt(0)')
    A('\n'.join(chk))
    A('s_cbranch_vccnz L_pollm')
    A('L_pollm_back:')
    late.append(('L_pollm', lambda: (poll('L_pollmb', modld, '\n'.join(chk)), A('s_branch L_pollm_back'))))
    stamp('modok')
    A(f'global_load_dword v{vI0}, v{vF2}, {P(sWS)} sc1')
    A(f'v_add_f32 v{vMQ}, v{vMQ}, v{vMQ+4}')
    A(f'v_add_f32 v{vMQ+2}, v{vMQ+2}, v{vMQ+6}')
    A(f'''
    v_permlane32_swap_b32 v{vMQ}, v{vMQ+2}
    v_add_f32 v{vMQ}, v{vMQ}, v{vMQ+2}
    v_cvt_pk_bf16_f32 v{vMQ}, 0, v{vMQ}
    v_add_f32 v{vMQ+1}, 1.0, v{vMQ}
    v_cvt_pk_bf16_f32 v{vMQ+1}, 0, v{vMQ+1}
    s_cmp_eq_u32 s{sT0}, 1
    s_cselect_b64 vcc, -1, 0
    s_cmp_eq_u32 s{sT0}, 4
    s_cselect_b64 vcc, -1, vcc
    v_cndmask_b32 v{vMQ}, v{vMQ}, v{vMQ+1}, vcc
    v_and_b32 v{vT0}, 31, v0
    v_lshrrev_b32 v{vT1}, 5, v{vLANE}
    v_lshl_add_u32 v{vT0}, v{vT0}, 1, v{vT1}
    v_lshlrev_b32 v{vT0}, 2, v{vT0}
    s_cmp_ge_u32 s{sWAVE}, 6
    s_cbranch_scc1 L_m67
    s_lshl_b32 s{sT1}, s{sT0}, 8
    v_add_u32 v{vT0}, s{sT1}, v{vT0}
    ds_write_b32 v{vT0}, v{vMQ} offset:{L_MOD}
    s_branch L_mjoin
    L_m67:
    ds_bpermute_b32 v{vT1}, v{vT0}, v{vWRr}
    s_waitcnt lgkmcnt(0)
    v_lshlrev_b32 v{vT1}, 16, v{vT1}
    v_mul_f32 v{vMQ+4}, v{vMQ}, v{vT1}
    s_cmp_eq_u32 s{sWAVE}, 7
    s_cselect_b32 s{sT1}, 0, 256
    s_cselect_b32 s{sT2}, 0, 8
    v_add_u32 v{vT0}, s{sT1}, v{vT0}
    ds_write_b32 v{vT0}, v{vMQ+4} offset:{L_MOD + 6*256}
    ''')
    fullred([vMQ + 4], [vMQ + 6])
    A(f'''
    v_mov_b32 v{vMQ+5}, s{sTAG}
    s_lshl_b32 s{sT0}, s{sM}, 7
    s_lshl_b32 s{sT1}, s{sG}, 4
    s_add_u32 s{sT0}, s{sT0}, s{sT1}
    s_add_u32 s{sT0}, s{sT0}, s{sT2}
    s_add_u32 s{sT0}, s{sT0}, {XC}
    v_lshl_add_u32 v{vXCA}, v{vLANE}, 12, s{sT0}
    L_mjoin:
    ''')
    A(f'''
    s_waitcnt vmcnt(0)
    v_cmp_ne_u32 vcc, s{sTAG}, v{vI0}
    s_mov_b32 s{sT4}, 0
    s_cbranch_vccnz L_p2n
    global_load_lds_dwordx4 v{vD2}, {P(sWS)} sc1
    s_mov_b32 s{sT4}, 1
    L_p2n:
    s_waitcnt lgkmcnt(0)
    s_barrier
    ''')
    rdpar((1, 0, 2, 6))
    A('s_waitcnt lgkmcnt(4)')
    for i in range(8): A(f'v_mul_f32 v{vH+i}, v{vH+i}, v{vPar+8+i}')
    for i in range(8): rnd(vH + i)
    for i in range(8): A(f'v_add_f32 v{vH+i}, v{vH+i}, v{vPar+i}')
    for i in range(8): rnd(vH + i)
    A(f'''
    s_cmp_eq_u32 s{sT4}, 1
    s_cbranch_scc1 L_p2d
    ''')
    poll('L_poll2', f'global_load_dword v{vT2}, v{vF2}, {P(sWS)} sc1', f'v_cmp_ne_u32 vcc, s{sTAG}, v{vT2}')
    A(f'global_load_lds_dwordx4 v{vD2}, {P(sWS)} sc1')
    A('L_p2d:')
    stamp('poll2')
    stamp('hdone')
    A('s_waitcnt vmcnt(0)')
    A('s_barrier')
    A(f'''
    s_cmp_lt_u32 s{sWAVE}, 6
    s_cbranch_scc1 L_noxc
    s_mov_b64 exec, 0xff
    global_store_dwordx2 v{vXCA}, {pr(vMQ+4)}, {P(sWS)} sc1
    s_mov_b64 exec, -1
    L_noxc:
    ''')
    stamp('B4')
    vZr = 70
    vZ1 = 74
    vSQ = 82
    A(f'ds_read2st64_b32 {pr(vZr)}, v{vZA} offset0:{L_Z//256} offset1:{L_Z//256+1}')
    A(f'ds_read2st64_b32 {pr(vZr+2)}, v{vZA} offset0:{L_Z//256+2} offset1:{L_Z//256+3}')
    A(f'v_add_u32 v{vT0}, {X3}, v{vXA}')
    A('s_waitcnt lgkmcnt(0)')
    for i in range(4): unpack(vZ1 + 2*i, vZr + i)
    for i in range(8): A(f'v_mul_f32 v{vZ1+i}, v{vZ1+i}, v{vH+i}')
    for i in range(8): rnd(vZ1 + i)
    for i in range(8): A(f'v_mul_f32 v{vZ1+i}, v{vZ1+i}, v{vPar+16+i}')
    for i in range(8): rnd(vZ1 + i)
    for i in range(8): A(f'v_add_f32 v{vZ1+i}, v{vZ1+i}, v{vXp+i}')
    for i in range(8): rnd(vZ1 + i)
    S_, Q_, P_ = vSQ, vSQ + 2, vSQ + 4
    A(f'v_pk_add_f32 {pr(S_)}, {pr(vZ1)}, {pr(vZ1+2)}')
    A(f'v_pk_mul_f32 {pr(Q_)}, {pr(vZ1)}, {pr(vZ1)}')
    A(f'v_pk_mul_f32 {pr(P_)}, {pr(vZ1)}, {pr(vPar+48)}')
    for i in range(1, 4):
        A(f'v_pk_fma_f32 {pr(Q_)}, {pr(vZ1+2*i)}, {pr(vZ1+2*i)}, {pr(Q_)}')
        A(f'v_pk_fma_f32 {pr(P_)}, {pr(vZ1+2*i)}, {pr(vPar+48+2*i)}, {pr(P_)}')
        if i >= 2: A(f'v_pk_add_f32 {pr(S_)}, {pr(S_)}, {pr(vZ1+2*i)}')
    vUn = vSQ + 6
    A(f'v_add_f32 v{vUn}, v{S_}, v{S_+1}')
    A(f'v_add_f32 v{vUn+1}, v{Q_}, v{Q_+1}')
    A(f'v_add_f32 v{vUn+2}, v{P_}, v{P_+1}')
    A(f'v_mov_b32 v{vUn+3}, s{sTAG}')
    allred([vUn, vUn + 1, vUn + 2], [S_, Q_, P_])
    A(f'global_store_dwordx4 v{vT0}, {q4(vUn)}, {P(sWS)} sc1')
    stamp('x3st')
    rdpar((3, 4, 5))
    if cfg.WBL2:
        A(f'''
        s_cmp_lg_u32 s{sM}, 31
        s_cbranch_scc1 L_nowb
        s_cmp_lg_u32 s{sWAVE}, 7
        s_cbranch_scc1 L_nowb
        buffer_wbl2 sc1
        L_nowb:
        ''')
    if cfg.WDPOS == 'x3':
        A(f'''
        s_cmp_ge_u32 s{sM}, {NS3}
        s_cbranch_scc1 L_nowd
        s_lshr_b32 s{sT0}, s{sM}, 2
        s_mul_i32 s{sT1}, s{sG}, 7
        s_add_u32 s{sT0}, s{sT0}, s{sT1}
        s_and_b32 s{sT1}, s{sM}, 3
        s_lshl_b32 s{sT4}, s{sWAVE}, 10
        s_add_u32 s{sT4}, s{sT4}, {L_WGU + 16384}
        s_mov_b32 m0, s{sT4}
        s_lshl_b32 s{sT2}, s{sT0}, 15
        s_lshl_b32 s{sT3}, s{sT1}, 8
        s_add_u32 s{sT2}, s{sT2}, s{sT3}
        v_lshrrev_b32 v{vT2}, 4, v0
        v_lshlrev_b32 v{vT2}, 10, v{vT2}
        v_and_b32 v{vT3}, 15, v0
        v_lshl_add_u32 v{vT2}, v{vT3}, 4, v{vT2}
        v_add_u32 v{vT2}, s{sT2}, v{vT2}
        global_load_lds_dwordx4 v{vT2}, {P(sWD)}
        L_nowd:
        ''')
    A(f'''
    s_lshr_b32 s{sT2}, s{sM}, 2
    s_lshl_b32 s{sT2}, s{sT2}, 5
    s_lshl_b32 s{sT3}, s{sG}, 2
    s_add_u32 s{sT2}, s{sT2}, s{sT3}
    s_and_b32 s{sT3}, s{sM}, 3
    s_add_u32 s{sT2}, s{sT2}, s{sT3}
    s_mul_i32 s{sPT}, s{sT2}, {NPROD*64}
    s_add_u32 s{sPT}, s{sPT}, {PART}
    v_lshrrev_b32 v{vT1}, 3, v{vLANE}
    s_lshl_b32 s{sT0}, s{sWID}, 7
    s_add_u32 s{sT0}, s{sT0}, {XC}
    v_lshl_add_u32 v{vT1}, v{vT1}, 4, s{sT0}
    v_add_u32 v{vT0}, {X3}, v{vXL}
    ''')
    vR3 = 92
    if cfg.X3SLP:
        A(f'global_load_dwordx4 {q4(vU+4)}, v{vT1}, {P(sWS)} sc1')
        A(f's_sleep {cfg.X3SLP}')
        A(f'global_load_dwordx4 {q4(vR3)}, v{vT0}, {P(sWS)} sc1')
        xck = f'''v_xor_b32 v{vT2}, s{sTAG}, v{vU+5}
         v_xor_b32 v{vT3}, s{sTAG}, v{vU+7}
         v_or_b32 v{vT2}, v{vT2}, v{vT3}
         v_cmp_ne_u32 vcc, 0, v{vT2}'''
        A('s_waitcnt vmcnt(1)')
        A(xck)
        A('s_cbranch_vccnz L_pollc')
        A('L_pollc_back:')
        late.append(('L_pollc', lambda: (poll('L_pollcb', f'global_load_dwordx4 {q4(vU+4)}, v{vT1}, {P(sWS)} sc1', xck), A('s_nop 1'), A('s_branch L_pollc_back'))))
        stamp('xcok')
    else:
        poll('L_pollc', f'global_load_dwordx4 {q4(vU+4)}, v{vT1}, {P(sWS)} sc1',
             f'''v_xor_b32 v{vT2}, s{sTAG}, v{vU+5}
             v_xor_b32 v{vT3}, s{sTAG}, v{vU+7}
             v_or_b32 v{vT2}, v{vT2}, v{vT3}
             v_cmp_ne_u32 vcc, 0, v{vT2}''')
        stamp('xcok')
        vR3 = 92
        A(f'global_load_dwordx4 {q4(vR3)}, v{vT0}, {P(sWS)} sc1')
    allred([vU + 4, vU + 6], [S_, Q_])
    A(f'''
    v_and_b32 v{vT1}, 7, v0
    v_lshl_add_u32 v{vT1}, s{sWAVE}, 3, v{vT1}
    s_lshl_b32 s{sT0}, s{sM}, 6
    s_sub_u32 s{sT0}, 2047, s{sT0}
    v_sub_u32 v{vU}, s{sT0}, v{vT1}
    v_lshlrev_b32 v{vU+1}, 2, v{vT1}
    v_mov_b32 v{vT2}, 0
    ds_write_b32 v{vU+1}, v{vT2} offset:{L_ST}
    s_waitcnt vmcnt(0)
    v_cmp_ne_u32 vcc, s{sTAG}, v{vR3+3}
    s_cbranch_vccnz L_poll3
    L_poll3_back:
    ''')
    late.append(('L_poll3', lambda: (poll('L_poll3b', f'global_load_dwordx4 {q4(vR3)}, v{vT0}, {P(sWS)} sc1', f'v_cmp_ne_u32 vcc, s{sTAG}, v{vR3+3}'),
                 A('s_nop 1'), A('s_branch L_poll3_back'))))
    stamp('x3ok')
    allred([vR3, vR3 + 1, vR3 + 2], [S_, Q_, P_])
    lnstats(vR3, vR3 + 1, S_, vMn, vInv)
    vKey = 96
    A(f'''
    v_fma_f32 v{vKey}, -v{vMn}, v{vU+4}, v{vR3+2}
    v_fma_f32 v{vKey}, v{vKey}, v{vInv}, v{vU+6}
    v_cvt_pk_bf16_f32 v{vKey}, 0, v{vKey}
    v_ashrrev_i32 v{vT0}, 31, v{vKey}
    v_or_b32 v{vT0}, 0x80000000, v{vT0}
    v_and_b32 v{vT0}, s{sMASK}, v{vT0}
    v_xor_b32 v{vKey}, v{vKey}, v{vT0}
    v_or_b32 v{vKey}, v{vKey}, v{vU}
    ds_write_b32 v{vU+1}, v{vKey} offset:{L_KEY}
    s_waitcnt lgkmcnt(0)
    s_barrier
    ds_read_b128 {q4(vR3)}, v{vPA} offset:{L_KEY}
    ds_read_b128 {q4(vSQ)}, v{vPA} offset:{L_KEY+16}
    ''')
    vH2 = 56
    for i in range(8): A(f'v_sub_f32 v{vH2+i}, v{vZ1+i}, v{vMn}')
    for i in range(8): rnd(vH2 + i)
    A('s_waitcnt lgkmcnt(0)')
    vRk = 97
    A(f'v_mov_b32 v{vRk}, 0')
    ks = [vR3 + i for i in range(4)] + [vSQ + i for i in range(4)]
    for half in range(2):
        for i in range(4): A(f'v_cmp_gt_u32 {P(sC0+2*i)}, v{ks[4*half+i]}, v{vKey}')
        for i in range(4): A(f'v_addc_co_u32 v{vRk}, {P(sC0+2*i)}, 0, v{vRk}, {P(sC0+2*i)}')
    allred([vRk], [vT0], add='v_add_u32')
    A(f'''
    s_lshl_b32 s{sT0}, s{sWID}, 6
    s_add_u32 s{sT0}, s{sT0}, {KEYS}
    v_lshl_add_u32 v{vT0}, v{vRk}, 3, s{sT0}
    v_mov_b32 v{vR3}, v{vKey}
    v_mov_b32 v{vR3+1}, s{sTAG}
    v_cmp_gt_u32 {P(sEX)}, 8, v{vRk}
    s_and_b64 exec, {P(sEX)}, 0xff
    s_cbranch_execz L_nokey
    ''')
    lstore(f'global_store_dwordx2 v{vT0}, {pr(vR3)}, {P(sWS)}')
    A('L_nokey:')
    A('s_mov_b64 exec, -1')
    stamp('keyst')
    vWf = 130
    vKs = 154
    vM2, vM1 = 163, 164
    vRow = vKs + 2
    vPk = 110
    vOut = 126
    def h2calc():
        for i in range(8): A(f'v_mul_f32 v{vH2+i}, v{vH2+i}, v{vInv}')
        for i in range(8): rnd(vH2 + i)
        for i in range(8): A(f'v_mul_f32 v{vH2+i}, v{vH2+i}, v{vPar+32+i}')
        for i in range(8): rnd(vH2 + i)
        for i in range(8): A(f'v_add_f32 v{vH2+i}, v{vH2+i}, v{vPar+24+i}')
        for i in range(4):
            A(f'v_cvt_pk_bf16_f32 v{vPk+2*i}, v{vH2+2*i}, v{vH2+2*i+1}')
            A(f'v_mov_b32 v{vPk+2*i+1}, s{sTAG}')
        for i in range(4):
            A(f'v_cvt_pk_bf16_f32 v{vPk+8+2*i}, v{vZ1+2*i}, v{vZ1+2*i+1}')
            A(f'v_mov_b32 v{vPk+8+2*i+1}, s{sTAG}')
    def outcalc():
        for i in range(4): unpack(vH2 + 2*i, vPk + 2*i)
        for i in range(8): A(f'v_mul_f32 v{vH2+i}, v{vH2+i}, v{vPar+40+i}')
        for i in range(8): rnd(vH2 + i)
        for i in range(8): A(f'v_add_f32 v{vH2+i}, v{vH2+i}, v{vZ1+i}')
        for i in range(4): A(f'v_cvt_pk_bf16_f32 v{vOut+i}, v{vH2+2*i}, v{vH2+2*i+1}')
    def outstore():
        A(f'''
        s_andn2_b64 exec, exec, {P(sEX)}
        s_cbranch_execz L_noout3
        global_store_dwordx4 v{vJR}, {q4(vOut)}, {P(sOUT)} {cfg.OUT_FL}
        L_noout2:
        s_mov_b64 exec, -1
        ''')
    late.append(('L_noout3', lambda: (A('s_waitcnt vmcnt(0)'), A('s_branch L_noout2'))))
    h2calc()
    vGA_, vGS, vGL, vPS, vGW_, vGR_ = 142, 143, 144, 145, 146, 147
    vGA2, vGR2, vSLT = 148, 149, 150
    vG = 166
    A(f'''
    s_and_b32 s{sT1}, s{sM}, 3
    s_lshl_b32 s{sT2}, s{sT1}, 9
    s_add_u32 s{sT2}, s{sT2}, {H2R}
    v_and_b32 v{vGA_}, 31, v0
    v_lshl_add_u32 v{vGA_}, v{vGA_}, 4, s{sT2}
    v_bfe_u32 v{vGA2}, v0, 5, 3
    v_lshlrev_b32 v{vGA2}, 2, v{vGA2}
    ''')
    vOR = 200
    vHA = 98
    A(f'''
    v_and_b32 v{vOR}, 7, v0
    v_lshl_add_u32 v{vOR}, s{sWAVE}, 3, v{vOR}
    s_lshl_b32 s{sT0}, s{sM}, 6
    v_add_u32 v{vOR}, s{sT0}, v{vOR}
    v_lshrrev_b32 v{vT2}, 3, v{vLANE}
    s_lshl_b32 s{sT1}, s{sG}, 8
    s_add_u32 s{sT1}, s{sT1}, {H2P - 2048}
    v_lshl_add_u32 v{vHA}, v{vT2}, 4, s{sT1}
    v_lshl_add_u32 v{vT0}, v{vOR}, 11, v{vHA}
    v_add_u32 v{vT0}, {H2R - H2P + 2048}, v{vT0}
    s_mov_b64 exec, {P(sEX)}
    s_cbranch_execz L_noh2c
    global_store_dwordx4 v{vT0}, {q4(vPk)}, {P(sWS)} sc1
    global_store_dwordx4 v{vT0}, {q4(vPk+4)}, {P(sWS)} offset:128 sc1
    L_noh2c:
    s_mov_b64 exec, -1
    s_cmp_lg_u32 s{sWAVE}, 0
    s_cbranch_scc1 L_kskip
    v_and_b32 v{vT0}, 2, v0
    v_cmp_eq_u32 vcc, 0, v{vT0}
    v_cndmask_b32 v{vM2}, 0, -1, vcc
    v_and_b32 v{vT0}, 1, v0
    v_cmp_eq_u32 vcc, 0, v{vT0}
    v_cndmask_b32 v{vM1}, 0, -1, vcc
    s_lshl_b32 s{sT0}, s{sG}, 11
    s_add_u32 s{sT0}, s{sT0}, {KEYS}
    v_lshl_add_u32 v{vT0}, v{vLANE}, 3, s{sT0}
    ''')
    poll('L_pollk', '\n'.join(f'global_load_dwordx2 {pr(vKs+2*r)}, v{vT0}, {P(sWS)} offset:{512*r} sc1' for r in range(4)),
         f'''v_xor_b32 v{vT1}, s{sTAG}, v{vKs+1}
         v_xor_b32 v{vT2}, s{sTAG}, v{vKs+3}
         v_xor_b32 v{vT3}, s{sTAG}, v{vKs+5}
         v_or3_b32 v{vT1}, v{vT1}, v{vT2}, v{vT3}
         v_xor_b32 v{vT2}, s{sTAG}, v{vKs+7}
         v_or_b32 v{vT1}, v{vT1}, v{vT2}
         v_cmp_ne_u32 vcc, 0, v{vT1}''')
    stamp('keysok')
    def sort8(regs, tmps):
        for x, t in zip(regs, tmps): A(f'v_max_u32_dpp v{t}, v{x}, v{x} row_shl:4 row_mask:0xf bank_mask:0x5')
        for x, t in zip(regs, tmps): A(f'v_min_u32_dpp v{t}, v{x}, v{x} row_shr:4 row_mask:0xf bank_mask:0xa')
        for x, t in zip(regs, tmps): A(f'v_mov_b32_dpp v{x}, v{t} quad_perm:[2,3,0,1] {DPPM}')
        for x, t in zip(regs, tmps): A(f'v_med3_u32 v{t}, v{t}, v{x}, v{vM2}')
        for x, t in zip(regs, tmps): A(f'v_mov_b32_dpp v{x}, v{t} quad_perm:[1,0,3,2] {DPPM}')
        for x, t in zip(regs, tmps): A(f'v_med3_u32 v{x}, v{t}, v{x}, v{vM1}')
    k0, k1, k2, k3 = vKs, vKs + 2, vKs + 4, vKs + 6
    t0, t1 = vKs + 1, vKs + 3
    A(f'v_max_u32_dpp v{k0}, v{k1}, v{k0} row_half_mirror {DPPM}')
    A(f'v_max_u32_dpp v{k2}, v{k3}, v{k2} row_half_mirror {DPPM}')
    sort8([k0, k2], [t0, t1])
    A(f'v_max_u32_dpp v{k0}, v{k2}, v{k0} row_half_mirror {DPPM}')
    sort8([k0], [t0])
    A(f'v_max_u32_dpp v{k0}, v{k0}, v{k0} row_mirror {DPPM}')
    sort8([k0], [t0])
    for sw in ('v_permlane16_swap_b32', 'v_permlane32_swap_b32'):
        A(f'v_mov_b32 v{t1}, v{k0}')
        A(f'{sw} v{t1}, v{k0}')
        A(f'v_max_u32_dpp v{k0}, v{k0}, v{t1} row_half_mirror {DPPM}')
        sort8([k0], [t0])
    A(f'''
    v_and_b32 v{vRow}, 0x7ff, v{k0}
    v_sub_u32 v{vRow}, 2047, v{vRow}
    v_lshlrev_b32 v{vT2}, 2, v{vLANE}
    ds_write_b32 v{vT2}, v{vRow} offset:{L_GP}
    s_lshl_b32 s{sT0}, s{sM}, 6
    v_subrev_u32 v{vT1}, s{sT0}, v{vRow}
    v_add_u32 v{vT3}, 1, v{vLANE}
    v_cmp_gt_u32 vcc, 64, v{vT1}
    v_lshlrev_b32 v{vT1}, 2, v{vT1}
    s_and_b64 exec, vcc, 0xff
    ds_write_b32 v{vT1}, v{vT3} offset:{L_ST}
    s_mov_b64 exec, -1
    s_waitcnt lgkmcnt(0)
    s_branch L_kjoin
    L_kskip:
    ''')
    outcalc()
    A(f'''
    L_kjoin:
    s_barrier
    ds_read_b32 v{vGR2}, v{vGA2} offset:{L_GP}
    ds_read_b32 v{vSLT}, v{vU+1} offset:{L_ST}
    s_cmp_ge_u32 s{sM}, {NS3}
    s_cbranch_scc1 L_nog1
    s_cmp_ge_u32 s{sWAVE}, 4
    s_cbranch_scc1 L_nog1
    s_waitcnt lgkmcnt(1)
    v_lshl_add_u32 v{vGA_}, v{vGR2}, 11, v{vGA_}
    global_load_dwordx4 {q4(vG)}, v{vGA_}, {P(sWS)} sc1
    L_nog1:
    ''')
    stamp('top8')
    def x1out():
        A(f'''
        s_waitcnt lgkmcnt(0)
        v_cmp_ne_u32 {P(sEX)}, 0, v{vSLT}
        v_lshl_add_u32 v{vT0}, v{vSLT}, 11, v{vHA}
        v_add_u32 v{vT0}, {X1P - H2P}, v{vT0}
        s_mov_b64 exec, {P(sEX)}
        s_cbranch_execz L_noh2
        global_store_dwordx4 v{vT0}, {q4(vPk+8)}, {P(sWS)} sc1
        global_store_dwordx4 v{vT0}, {q4(vPk+12)}, {P(sWS)} offset:128 sc1
        L_noh2:
        s_mov_b64 exec, -1
        s_cmp_lg_u32 s{sWAVE}, 0
        s_cbranch_scc1 L_noc
        ''')
        outcalc()
        A('L_noc:')
        outstore()
    if cfg.OUTPOS == 'top8': x1out()
    A(f'''
    s_cmp_ge_u32 s{sM}, {NS3}
    s_cbranch_scc1 L_tail
    ''')
    GS_ = 272
    A(f'''
    s_lshr_b32 s{sT0}, s{sM}, 2
    s_mul_i32 s{sT1}, s{sG}, 7
    s_add_u32 s{sT0}, s{sT0}, s{sT1}
    s_and_b32 s{sT1}, s{sM}, 3
    v_lshrrev_b32 v{vT1}, 4, v{vLANE}
    v_and_b32 v{vT2}, 7, v0
    v_lshrrev_b32 v{vT3}, 5, v{vLANE}
    s_mov_b32 s{sHM}, 0x00ff00ff
    s_mov_b32 s{sHM+1}, 0x00ff00ff
    s_and_b32 s{sT3}, s{sWAVE}, 3
    v_lshl_add_u32 v{vT3}, s{sT3}, 1, v{vT3}
    v_mul_u32_u24 v{vGW_}, {GS_}, v{vT3}
    v_bfe_u32 v{vT3}, v0, 4, 1
    v_lshl_add_u32 v{vGW_}, v{vT3}, 7, v{vGW_}
    v_lshl_add_u32 v{vGW_}, v{vT2}, 4, v{vGW_}
    v_bfe_u32 v{vT3}, v0, 3, 1
    v_lshl_add_u32 v{vGW_}, v{vT3}, 3, v{vGW_}
    v_add_u32 v{vGW_}, {L_G2 - (L_G2 % 1024)}, v{vGW_}
    v_mul_u32_u24 v{vGR_}, {GS_}, v{vT2}
    v_lshl_add_u32 v{vGR_}, v{vT1}, 4, v{vGR_}
    s_lshr_b32 s{sT3}, s{sWAVE}, 2
    s_lshl_b32 s{sT3}, s{sT3}, 7
    v_add_u32 v{vGR_}, s{sT3}, v{vGR_}
    ''')
    A(f'''
    s_mov_b64 exec, -1
    s_and_b32 s{sT2}, s{sWID}, 0xfc
    s_lshl_b32 s{sT2}, s{sT2}, 13
    s_add_u32 s{sT2}, s{sT2}, {XB1}
    s_lshl_b32 s{sT3}, s{sT1}, 3
    s_add_u32 s{sT3}, s{sT3}, s{sWAVE}
    s_lshl_b32 s{sT4}, s{sT1}, 13
    s_lshl_b32 s{sT5}, s{sWAVE}, 9
    s_add_u32 s{sT4}, s{sT4}, s{sT5}
    s_add_u32 s{sT4}, s{sT4}, s{sT2}
    v_lshl_add_u32 v{vGS}, v{vT1}, 3, v{vT2}
    v_lshl_add_u32 v{vGS}, v{vGS}, 4, s{sT4}
    s_mul_i32 s{sT3}, s{sT3}, {NPROD*64}
    s_lshl_b32 s{sT4}, s{sT0}, 6
    s_add_u32 s{sT3}, s{sT3}, s{sT4}
    s_add_u32 s{sT3}, s{sT3}, {PART}
    v_mul_u32_u24 v{vPS}, {32*NPROD*64}, v{vT2}
    v_lshl_add_u32 v{vPS}, v{vT1}, 4, v{vPS}
    v_add_u32 v{vPS}, s{sT3}, v{vPS}
    s_lshr_b32 s{sT3}, s{sWAVE}, 2
    s_lshl_b32 s{sT3}, s{sT3}, 9
    s_and_b32 s{sT4}, s{sWAVE}, 3
    s_lshl_b32 s{sT4}, s{sT4}, 7
    s_add_u32 s{sT3}, s{sT3}, s{sT4}
    s_add_u32 s{sT3}, s{sT3}, s{sT2}
    v_lshlrev_b32 v{vGL}, 13, v{vT1}
    v_bfe_u32 v{vT3}, v0, 3, 1
    v_lshl_add_u32 v{vGL}, v{vT3}, 10, v{vGL}
    v_lshl_add_u32 v{vGL}, v{vT2}, 4, v{vGL}
    v_add_u32 v{vGL}, s{sT3}, v{vGL}
    v_and_b32 v{vT0}, 3, v0
    v_bfe_u32 v{vT2}, v0, 2, 2
    v_lshl_add_u32 v{vT2}, v{vT1}, 3, v{vT2}
    v_lshlrev_b32 v{vT3}, 6, v{vT2}
    v_lshl_add_u32 v{vT3}, v{vT0}, 3, v{vT3}
    s_lshr_b32 s{sT0}, s{sWAVE}, 2
    s_lshl_b32 s{sT0}, s{sT0}, 12
    s_bfe_u32 s{sT1}, s{sWAVE}, 0x10001
    s_lshl_b32 s{sT1}, s{sT1}, 13
    s_add_u32 s{sT0}, s{sT0}, s{sT1}
    s_and_b32 s{sT1}, s{sWAVE}, 1
    s_lshl_b32 s{sT1}, s{sT1}, 5
    s_add_u32 s{sT0}, s{sT0}, s{sT1}
    s_add_u32 s{sT0}, s{sT0}, {L_WGU}
    v_add_u32 v{vT3}, s{sT0}, v{vT3}
    ''')
    for ks_ in range(2):
        for hh in range(2):
            A(f'ds_read_b64_tr_b16 {pr(vWf + 4*ks_ + 2*hh)}, v{vT3} offset:{2048*ks_ + 256*hh}')
    A(f'''
    v_lshlrev_b32 v{vT3}, 8, v{vT2}
    v_lshl_add_u32 v{vT3}, v{vT0}, 3, v{vT3}
    s_lshl_b32 s{sT0}, s{sWAVE}, 5
    s_add_u32 s{sT0}, s{sT0}, {L_WGU + 16384}
    v_add_u32 v{vT3}, s{sT0}, v{vT3}
    ds_read_b64_tr_b16 {pr(vWf + 8)}, v{vT3}
    ds_read_b64_tr_b16 {pr(vWf + 10)}, v{vT3} offset:1024
    v_and_b32 v{vT0}, 7, v0
    v_lshrrev_b32 v{vT1}, 5, v{vLANE}
    v_bfe_u32 v{vT2}, v0, 4, 1
    v_lshl_add_u32 v{vT1}, v{vT1}, 1, v{vT2}
    v_lshl_add_u32 v{vT1}, s{sWAVE}, 2, v{vT1}
    v_lshlrev_b32 v{vT1}, 1, v{vT1}
    v_lshl_add_u32 v{vT1}, v{vT0}, 6, v{vT1}
    v_lshrrev_b32 v{vT2}, 4, v{vLANE}
    v_lshlrev_b32 v{vT2}, 4, v{vT2}
    v_lshl_add_u32 v{vT2}, v{vT0}, 6, v{vT2}
    s_mov_b32 s{sT2}, 0x03020105
    s_mov_b32 s{sT3}, 0x03020106
    s_mov_b32 s{sT4}, 0x03020107
    s_mov_b32 s{sT0}, 0x0004000c
    s_mov_b32 s{sT1}, 0x0402010c
    s_mov_b64 {P(sC0)}, -1
    s_mov_b64 {P(sC0+2)}, -1
    ''')
    vDg = 182
    A(f'''
    s_cmp_ge_u32 s{sWAVE}, 4
    s_cbranch_scc1 L_gskip
    ''')
    gck = f'''v_xor_b32 v{vG+1}, s{sTAG}, v{vG+1}
         v_xor_b32 v{vG+3}, s{sTAG}, v{vG+3}
         v_or_b32 v{vG+1}, v{vG+1}, v{vG+3}
         v_cmp_ne_u32 vcc, 0, v{vG+1}'''
    A('s_waitcnt vmcnt(0)' if cfg.OUTPOS == 'end' else 's_waitcnt vmcnt(1)')
    A(gck)
    A('s_cbranch_vccnz L_pollg')
    A('L_pollg_back:')
    late.append(('L_pollg', lambda: (poll('L_pollgb', f'global_load_dwordx4 {q4(vG)}, v{vGA_}, {P(sWS)} sc1', gck), A('s_branch L_pollg_back'))))
    A(f'''
    ds_write2_b32 v{vGW_}, v{vG}, v{vG+2} offset0:{(L_G2 % 1024)//4} offset1:{(L_G2 % 1024)//4 + 1}
    L_gskip:
    s_waitcnt lgkmcnt(0)
    ''')
    stamp('gath')
    A(f'''
    s_barrier
    ds_read_b128 {q4(vG)}, v{vGR_} offset:{L_G2}
    ds_read_b128 {q4(vG+8)}, v{vGR_} offset:{L_G2 + 64}
    s_waitcnt lgkmcnt(1)
    v_mfma_f32_16x16x32_bf16 {q4(vDg)}, {q4(vWf)}, {q4(vG)}, 0
    s_waitcnt lgkmcnt(0)
    v_mfma_f32_16x16x32_bf16 {q4(vDg)}, {q4(vWf+4)}, {q4(vG+8)}, {q4(vDg)}
    ''')
    def pack24(y):
        for d in range(3): A(f'v_perm_b32 v{y+d}, v{y+3}, v{y+d}, s{sT2+d}')
        A(f'v_mov_b32 v{y+3}, s{sTAG}')
    pack24(vDg)
    A(f's_mov_b64 exec, {P(sHM)}')
    lstore(f'global_store_dwordx4 v{vGS}, {q4(vDg)}, {P(sWS)}')
    stamp('preB6')
    vE = 166
    mpoll('L_pollx', [(f'global_load_dwordx4 {q4(vE)}, v{vGL}, {P(sWS)} sc1', vE + 3, sC0),
                      (f'global_load_dwordx4 {q4(vE+4)}, v{vGL}, {P(sWS)} offset:2048 sc1', vE + 7, sC0 + 2)])
    stamp('B6')
    def unp24(us, a, b):
        for u in us: A(f'v_perm_b32 v{u+3}, v{u+1}, v{u}, s{a}')
        for u in us: A(f'v_perm_b32 v{u+3}, v{u+2}, v{u+3}, s{b}')
    unp24([vE, vE + 4], sT0, sT1)
    y = vE
    A(f'''
    v_pk_add_f32 {pr(y)}, {pr(y)}, {pr(y+4)}
    v_pk_add_f32 {pr(y+2)}, {pr(y+2)}, {pr(y+6)}
    v_permlane32_swap_b32 v{y}, v{y+2}
    v_permlane32_swap_b32 v{y+1}, v{y+3}
    v_add_f32 v{y}, v{y}, v{y+2}
    v_add_f32 v{y+1}, v{y+1}, v{y+3}
    v_permlane16_swap_b32 v{y}, v{y+1}
    v_add_f32 v{y}, v{y}, v{y+1}
    v_cvt_pk_bf16_f32 v{y}, 0, v{y}
    v_mul_f32 v{y+2}, 0xbfb8aa3b, v{y}
    v_exp_f32 v{y+2}, v{y+2}
    v_mov_b32_dpp v{y+1}, v{y} row_ror:8 {DPPM}
    v_add_f32 v{y+2}, 1.0, v{y+2}
    v_rcp_f32 v{y+2}, v{y+2}
    v_mul_f32 v{y}, v{y}, v{y+2}
    v_cvt_pk_bf16_f32 v{y}, 0, v{y}
    v_mul_f32 v{y}, v{y}, v{y+1}
    v_cvt_pk_bf16_f32 v{y}, v{y}, v{y}
    s_mov_b64 exec, {P(sHM)}
    ds_write_b16 v{vT1}, v{y} offset:{L_GU}
    s_mov_b64 exec, -1
    s_waitcnt lgkmcnt(0)
    s_barrier
    ds_read_b128 {q4(vE)}, v{vT2} offset:{L_GU}
    s_waitcnt lgkmcnt(0)
    v_mfma_f32_16x16x32_bf16 {q4(vDg)}, {q4(vWf+8)}, {q4(vE)}, 0
    ''')
    stamp('B7')
    pack24(vDg)
    A(f's_mov_b64 exec, {P(sHM)}')
    A(f'global_store_dwordx4 v{vPS}, {q4(vDg)}, {P(sWS)} sc1')
    A('s_mov_b64 exec, -1')
    stamp('partst')
    A(f'''
    s_cmp_lg_u32 s{sWID}, 0
    s_cbranch_scc1 L_noep
    s_cmp_lg_u32 s{sWAVE}, 2
    s_cbranch_scc1 L_noep
    s_add_u32 s{sT0}, s{sEP}, 1
    v_mov_b32 v{vT2}, {EPOCH}
    v_mov_b32 v{vT3}, s{sT0}
    s_mov_b64 exec, 1
    global_store_dword v{vT2}, v{vT3}, {P(sWS)} sc1
    s_mov_b64 exec, -1
    L_noep:
    L_tail:
    ''')
    if cfg.OUTPOS == 'end': x1out()
    A(f'''
    s_cmp_lg_u32 s{sM}, {NS3}
    s_cbranch_scc1 L_red
    ''')
    vWr = 130
    vHr = 134
    vHs = 142
    vPu = 166
    vRr = 182
    A(f'''
    v_lshlrev_b32 v{vT1}, 4, v{vLANE}
    global_load_dwordx4 {q4(vWr)}, v{vT1}, {P(sWR)}
    s_lshl_b32 s{sT3}, s{sWAVE}, 2
    v_mov_b32 v{vT0}, s{sT3}
    ds_read_b32 v{vT0}, v{vT0} offset:{L_GP}
    v_lshrrev_b32 v{vT2}, 3, v{vLANE}
    v_and_b32 v{vT3}, 7, v0
    v_lshlrev_b32 v{vT3}, 4, v{vT3}
    v_lshl_add_u32 v{vT3}, v{vT2}, 8, v{vT3}
    v_add_u32 v{vT3}, {H2R}, v{vT3}
    s_waitcnt lgkmcnt(0)
    v_lshl_add_u32 v{vT3}, v{vT0}, 11, v{vT3}
    s_lshl_b32 s{sT0}, s{sG}, 7
    s_lshl_b32 s{sT1}, s{sWAVE}, 3
    s_add_u32 s{sT0}, s{sT0}, s{sT1}
    s_add_u32 s{sT0}, s{sT0}, {SEL}
    v_mov_b32 v{vT0}, s{sT0}
    ''')
    poll('L_pollr', f'''global_load_dwordx4 {q4(vHr)}, v{vT3}, {P(sWS)} sc1
         global_load_dwordx4 {q4(vHr+4)}, v{vT3}, {P(sWS)} offset:128 sc1''',
         f'''v_xor_b32 v{vHr+1}, s{sTAG}, v{vHr+1}
         v_xor_b32 v{vHr+3}, s{sTAG}, v{vHr+3}
         v_xor_b32 v{vHr+5}, s{sTAG}, v{vHr+5}
         v_xor_b32 v{vHr+7}, s{sTAG}, v{vHr+7}
         v_or3_b32 v{vHr+1}, v{vHr+1}, v{vHr+3}, v{vHr+5}
         v_or_b32 v{vHr+1}, v{vHr+1}, v{vHr+7}
         v_cmp_ne_u32 vcc, 0, v{vHr+1}''')
    A(f'v_mov_b32 v{vRr}, 0')
    for i in range(4): A(f'v_dot2_f32_bf16 v{vRr}, v{vHr+2*i}, v{vWr+i}, v{vRr}')
    fullred([vRr], [vRr + 1])
    rnd(vRr)
    A(f'''
    v_mul_f32 v{vRr}, 0xbfb8aa3b, v{vRr}
    v_exp_f32 v{vRr}, v{vRr}
    v_add_f32 v{vRr}, 1.0, v{vRr}
    v_rcp_f32 v{vRr}, v{vRr}
    v_cvt_pk_bf16_f32 v{vRr}, 0, v{vRr}
    v_mov_b32 v{vRr+1}, s{sTAG}
    s_mov_b64 exec, 1
    ''')
    lstore(f'global_store_dwordx2 v{vT0}, {pr(vRr)}, {P(sWS)}')
    A(f'''
    s_mov_b64 exec, -1
    L_red:
    s_cmp_lg_u32 s{sWAVE}, 1
    s_cbranch_scc1 L_outlate
    v_lshl_add_u32 v{vT0}, v{vLANE}, 4, s{sPT}
    v_mov_b32 v{vPu+12}, 0
    v_mov_b32 v{vPu+13}, 0
    v_mov_b32 v{vPu+14}, 0
    v_mov_b32 v{vPu+15}, s{sTAG}
    s_and_b32 s{sT0}, s{sM}, 3
    s_and_b32 s{sT1}, s{sM}, 28
    v_mov_b32 v{vT3}, s{sT1}
    ds_read_b32 v{vOR+4}, v{vT3} offset:{L_GP}
    s_lshl_b32 s{sT3}, s{sT1}, 9
    s_add_u32 s{sT3}, s{sT3}, {H2P}
    s_lshl_b32 s{sT1}, s{sT1}, 1
    s_lshl_b32 s{sT4}, s{sG}, 7
    s_add_u32 s{sT1}, s{sT1}, s{sT4}
    s_add_u32 s{sT1}, s{sT1}, {SEL}
    v_mov_b32 v{vOR+5}, s{sT1}
    v_and_b32 v{vT1}, 3, v0
    v_lshlrev_b32 v{vT1}, 2, v{vT1}
    v_lshrrev_b32 v{vT2}, 5, v{vLANE}
    v_lshl_add_u32 v{vT1}, v{vT2}, 1, v{vT1}
    v_bfe_u32 v{vT2}, v0, 4, 1
    s_lshl_b32 s{sT4}, s{sT0}, 4
    v_add_u32 v{vT1}, s{sT4}, v{vT1}
    v_add_u32 v{vT3}, v{vT1}, v{vT2}
    v_lshlrev_b32 v{vOR}, 2, v{vT3}
    ds_read_b32 v{vOR+1}, v{vOR} offset:{L_MOD + 5*256}
    v_lshrrev_b32 v{vOR}, 3, v{vT1}
    v_lshlrev_b32 v{vOR}, 4, v{vOR}
    v_bfe_u32 v{vOR+2}, v{vT1}, 2, 1
    v_lshl_add_u32 v{vOR}, v{vOR+2}, 7, v{vOR}
    v_bfe_u32 v{vOR+2}, v{vT1}, 1, 1
    v_lshl_add_u32 v{vOR}, v{vOR+2}, 3, v{vOR}
    s_lshl_b32 s{sT5}, s{sG}, 8
    s_add_u32 s{sT5}, s{sT5}, s{sT3}
    v_add_u32 v{vT1}, s{sT5}, v{vOR}
    v_add_u32 v{vOR+2}, {X1P - H2P}, v{vT1}
    s_lshl_b32 s{sT5}, s{sG}, 8
    s_add_u32 s{sT5}, s{sT5}, {H2R}
    v_add_u32 v{vT1}, s{sT5}, v{vOR}
    s_lshl_b32 s{sT4}, s{sG}, 7
    v_lshl_add_u32 v{vOR+3}, v{vT3}, 1, s{sT4}
    v_lshlrev_b32 v{vT2}, 4, v{vT2}
    v_sub_u32 v{vT2}, 16, v{vT2}
    s_mov_b32 s{sT2}, 0x0004000c
    s_mov_b32 s{sT3}, 0x0402010c
    s_waitcnt lgkmcnt(0)
    v_lshl_add_u32 v{vOR+3}, v{vOR+4}, 10, v{vOR+3}
    v_lshl_add_u32 v{vT1}, v{vOR+4}, 11, v{vT1}
    ''')
    poll('L_polls', f'''global_load_dwordx2 {pr(vHs)}, v{vT1}, {P(sWS)} sc1
         global_load_dwordx2 {pr(vHs+2)}, v{vOR+2}, {P(sWS)} sc1
         global_load_dwordx2 {pr(vRr)}, v{vOR+5}, {P(sWS)} sc1''',
         f'''v_xor_b32 v{vHs+1}, s{sTAG}, v{vHs+1}
         v_xor_b32 v{vHs+3}, s{sTAG}, v{vHs+3}
         v_xor_b32 v{vRr+1}, s{sTAG}, v{vRr+1}
         v_or3_b32 v{vHs+1}, v{vHs+1}, v{vHs+3}, v{vRr+1}
         v_cmp_ne_u32 vcc, 0, v{vHs+1}''')
    A(f'''
    v_lshlrev_b32 v{vHs}, v{vT2}, v{vHs}
    v_and_b32 v{vHs}, s{sMASK}, v{vHs}
    v_lshlrev_b32 v{vHs+2}, v{vT2}, v{vHs+2}
    v_and_b32 v{vHs+2}, s{sMASK}, v{vHs+2}
    ''')
    stamp('redpre')
    if cfg.REDSLP: A(f's_sleep {cfg.REDSLP}')
    for i in range(3): A(f's_mov_b64 {P(sC0+2*i)}, -1')
    A(f's_mov_b32 s{sC0+6}, -1'); A(f's_mov_b32 s{sC0+7}, 0')
    mpoll('L_pollp', [(f'global_load_dwordx4 {q4(vPu+4*i)}, v{vT0}, {P(sWS)} offset:{1024*i} sc1', vPu + 4*i + 3, sC0 + 2*i) for i in range(4)])
    stamp('partok')
    unp24([vPu + 4*i for i in range(4)], sT2, sT3)
    for (a, b) in ((0, 1), (2, 3), (0, 2)):
        for h in range(2): A(f'v_pk_add_f32 {pr(vPu+4*a+2*h)}, {pr(vPu+4*a+2*h)}, {pr(vPu+4*b+2*h)}')
    y = vPu
    A(f'''
    v_permlane32_swap_b32 v{y}, v{y+2}
    v_permlane32_swap_b32 v{y+1}, v{y+3}
    v_add_f32 v{y}, v{y}, v{y+2}
    v_add_f32 v{y+1}, v{y+1}, v{y+3}
    v_permlane16_swap_b32 v{y}, v{y+1}
    v_add_f32 v{y}, v{y}, v{y+1}
    v_add_f32_dpp v{y}, v{y}, v{y} row_ror:8 {DPPM}
    v_add_f32_dpp v{y}, v{y}, v{y} row_ror:4 {DPPM}
    v_cvt_pk_bf16_f32 v{y}, 0, v{y}
    v_mul_f32 v{y}, v{y}, v{vRr}
    v_cvt_pk_bf16_f32 v{y}, 0, v{y}
    v_add_f32 v{y}, v{y}, v{vHs}
    v_cvt_pk_bf16_f32 v{y}, 0, v{y}
    v_mul_f32 v{y}, v{y}, v{vOR+1}
    v_cvt_pk_bf16_f32 v{y}, 0, v{y}
    v_add_f32 v{y}, v{y}, v{vHs+2}
    v_cvt_pk_bf16_f32 v{y}, v{y}, v{y}
    s_mov_b32 s{sT0}, 0x000f000f
    s_mov_b32 s{sT1}, 0x000f000f
    s_mov_b64 exec, {P(sT0)}
    global_store_short v{vOR+3}, v{y}, {P(sOUT)} {cfg.OUT_FL}
    s_mov_b64 exec, -1
    ''')
    A('L_outlate:')
    A('L_fin:')
    if cfg.DBL:
        A(f'''
        s_waitcnt vmcnt(0)
        s_memrealtime s[78:79]
        s_waitcnt lgkmcnt(0)
        s_sub_u32 s{sT0}, s{82 if cfg.DSITE else 78}, s74
        s_add_u32 s{sT0}, s{sT0}, s78
        s_cmp_lg_u32 s{sWAVE}, 1
        s_cbranch_scc1 L_end
        L_dbl:
        s_memrealtime s[80:81]
        s_waitcnt lgkmcnt(0)
        s_sub_u32 s{sT1}, s80, s{sT0}
        s_cmp_lt_i32 s{sT1}, 0
        s_cbranch_scc1 L_dbl
        ''')
    if cfg.DBGT:
        A(f'''
        s_memrealtime s[78:79]
        s_memtime s[80:81]
        s_cmp_lg_u32 s{sWAVE}, 0
        s_cbranch_scc1 L_end
        s_and_b32 s{sT0}, s{sWID}, 0x3f
        s_cmp_lg_u32 s{sT0}, 28
        s_cbranch_scc1 L_end
        s_waitcnt lgkmcnt(0)
        s_sub_u32 s{sT0}, s78, s74
        s_sub_u32 s{sT1}, s80, s76
        v_mov_b32 v4, s{sT0}
        v_mov_b32 v5, s{sT1}
        v_mov_b32 v6, s74
        v_mov_b32 v7, s78
        s_lshr_b32 s{sT0}, s{sWID}, 6
        s_lshl_b32 s{sT0}, s{sT0}, 4
        v_mov_b32 v8, s{sT0}
        s_mov_b64 exec, 1
        global_store_dwordx4 v8, v[4:7], {P(sDBG)}
        ''')
    if cfg.STAMP:
        A(f's_memtime s[{sST+2*nst[0]}:{sST+2*nst[0]+1}]'); nst[0] += 1
        A(f'''
        s_waitcnt lgkmcnt(0)
        s_lshl_b32 s{sT0}, s{sWID}, 3
        s_add_u32 s{sT0}, s{sT0}, s{sWAVE}
        s_lshl_b32 s{sT0}, s{sT0}, 7
        s_add_u32 s{sT0}, s{sT0}, {STAMPS}
        v_mov_b32 v{vT0}, s{sT0}
        s_mov_b64 exec, 1
        ''')
        for i in range(nst[0]):
            A(f'v_mov_b32 v{vT1}, s{sST+2*i}')
            A(f'global_store_dword v{vT0}, v{vT1}, {P(sWS)} offset:{4*i}')
        A(f'v_mov_b32 v{vT1}, s{sCNT}')
        A(f'global_store_dword v{vT0}, v{vT1}, {P(sWS)} offset:120')
        A(f'v_mov_b32 v{vT1}, s{sMODE}')
        A(f'global_store_dword v{vT0}, v{vT1}, {P(sWS)} offset:124')
    A('L_end:')
    A('s_endpgm')
    for k, t in slow:
        A(f'L_slow{k}:'); A('s_nop 4'); A(t); A('s_nop 1'); A(f's_branch L_back{k}')
    A('L_modeslow:')
    A(f'''
    s_mov_b32 s{sT4}, 64
    L_moderetry:
    global_load_dword v{vMT}, v{vPT}, {P(sWS)} sc1
    s_waitcnt vmcnt(0)
    s_mov_b32 s{sMODE}, {0 if cfg.FORCE_SLOW else 1}
    v_cmp_ne_u32 vcc, s{sXCC}, v{vMT}
    s_cbranch_vccz L_modeback
    s_mov_b32 s{sMODE}, 0
    v_subrev_u32 v{vMT+1}, s{sTAG}, v{vMT}
    v_subrev_u32 v{vMT+1}, 1, v{vMT+1}
    v_cmp_lt_u32 vcc, 15, v{vMT+1}
    s_cbranch_vccz L_modeback
    s_sub_u32 s{sT4}, s{sT4}, 1
    s_cbranch_scc0 L_moderetry
    s_branch L_modeback
    ''')
    for name, fn in late:
        A(name + ':'); fn()
    A('L_codeend:')
    return A

HEAD = open('adaLN_cond__ssm_conv_h3__moe_arch_mod__prompt.s.ref').read().split('; Override launch')[0]
def emit(path):
    A = build()
    s = HEAD + f'; @launch grid=(256,1,1) block=(512,1,1) lds={LDS_BYTES}\n'
    s += f'''.amdgcn_target "amdgcn-amd-amdhsa--gfx950"
.text
.globl {KNAME}
.p2align 8
.type {KNAME},@function
{KNAME}:
'''
    s += A.text()
    s += f'''.section .rodata,"a"
.p2align 6
.amdhsa_kernel {KNAME}
  .amdhsa_next_free_vgpr 248
  .amdhsa_next_free_sgpr 102
  .amdhsa_accum_offset 248
  .amdhsa_group_segment_fixed_size 0
  .amdhsa_kernarg_size 128
  .amdhsa_user_sgpr_count 2
  .amdhsa_user_sgpr_kernarg_segment_ptr 1
  .amdhsa_system_sgpr_workgroup_id_x 1
.end_amdhsa_kernel
'''
    open(path, 'w').write(s)
    return A

if __name__ == '__main__':
    out = sys.argv[1]
    for a in sys.argv[2:]:
        k, v = a.split('=')
        setattr(cfg, k, eval(v))
    A = emit(out)
    if cfg.STAMP: open(out + '.sites', 'w').write(' '.join(cfg.ORDER + ['end']))
    print('emitted', out, 'lines', len(A.out), 'pads', A.npad)
```

```python
import re

def _regs(tok):
    tok = tok.strip()
    tok = re.sub(r'^-', '', tok)
    m = re.match(r'^abs\((.*)\)$', tok) or re.match(r'^\|(.*)\|$', tok)
    if m: tok = m.group(1)
    m = re.match(r'^([vsa])\[(\d+):(\d+)\]$', tok)
    if m: return {(m.group(1), i) for i in range(int(m.group(2)), int(m.group(3)) + 1)}
    m = re.match(r'^([vsa])(\d+)$', tok)
    if m: return {(m.group(1), int(m.group(2)))}
    if tok == 'vcc': return {('s', 'vcc')}
    if tok == 'exec': return {('s', 'exec')}
    if tok == 'm0': return {('s', 'm0')}
    return set()

TRANS = ('v_exp_f32', 'v_log_f32', 'v_rcp_f32', 'v_rsq_f32', 'v_sqrt_f32', 'v_sin_f32', 'v_cos_f32')

class Ins:
    __slots__ = ('op', 'dst', 'src', 'kind', 'ws', 'dpp', 'text', 'srcab', 'srcc', 'wide_store', 'passes')

def parse(text):
    t = text.split(';')[0].strip()
    I = Ins(); I.text = text; I.ws = 1; I.dpp = False; I.srcab = set(); I.srcc = set(); I.wide_store = False; I.passes = 0
    parts = t.split(None, 1)
    op = parts[0]; I.op = op
    rest = parts[1] if len(parts) > 1 else ''
    ops = []; cur = ''; depth = 0
    for ch in rest:
        if ch in '[(': depth += 1
        if ch in '])': depth -= 1
        if ch == ',' and depth == 0: ops.append(cur); cur = ''
        else: cur += ch
    ops.append(cur)
    mods = ''
    if ops:
        lp = ops[-1].strip().split(None, 1)
        ops[-1] = lp[0] if lp else ''
        mods = lp[1] if len(lp) > 1 else ''
    ops = [o.strip() for o in ops]
    R = [_regs(o) for o in ops]
    I.dst = set(); I.src = set()
    allsrc = lambda lst: set().union(*lst) if lst else set()
    if op == 's_nop':
        I.kind = 'nop'; I.ws = int(ops[0], 0) + 1
    elif op.startswith('v_mfma'):
        I.kind = 'mfma'; I.dst = R[0]; I.srcab = R[1] | R[2]; I.srcc = R[3]; I.src = I.srcab | I.srcc
        I.passes = 8 if '32x32' in op else 4
    elif op.startswith('v_cmp'):
        I.kind = 'valu'; I.dst = R[0] | ({('s', 'exec')} if op.startswith('v_cmpx') else set()); I.src = allsrc(R[1:])
    elif op.startswith('v_permlane') and 'swap' in op:
        I.kind = 'valu'; I.dst = R[0] | R[1]; I.src = R[0] | R[1]
    elif op.startswith('v_readfirstlane') or op.startswith('v_readlane'):
        I.kind = 'valu'; I.dst = R[0]; I.src = allsrc(R[1:])
    elif op.startswith(('v_add_co', 'v_sub_co', 'v_subrev_co', 'v_addc_co', 'v_subb_co', 'v_div_scale')):
        I.kind = 'valu'; I.dst = R[0] | R[1]; I.src = allsrc(R[2:])
    elif op.startswith('v_'):
        I.kind = 'trans' if op.replace('_e32', '').replace('_e64', '') in TRANS else 'valu'
        I.dst = R[0]; I.src = allsrc(R[1:])
        if op.startswith(('v_fmac', 'v_pk_fmac', 'v_dot2c')): I.src |= R[0]
        if op.startswith('v_cndmask') and len(ops) == 3: I.src |= {('s', 'vcc')}
        if '_dpp' in op or 'row_' in mods or 'quad_perm' in mods or 'wave_' in mods:
            I.dpp = True
            I.src |= R[0]
    elif op.startswith(('ds_read', 'ds_bpermute', 'ds_permute', 'ds_swizzle')) or (op.startswith('ds_') and '_rtn' in op):
        I.kind = 'ds'; I.dst = R[0]; I.src = allsrc(R[1:])
    elif op.startswith('ds_'):
        I.kind = 'ds'; I.src = allsrc(R)
    elif op.startswith(('global_load_lds', )) or (op.startswith('buffer_load') and ' lds' in (' ' + mods)):
        I.kind = 'vmem'; I.src = allsrc(R) | {('s', 'm0')}
    elif op.startswith(('global_load', 'buffer_load')):
        I.kind = 'vmem'; I.dst = R[0]; I.src = allsrc(R[1:])
    elif op.startswith(('global_store', 'buffer_store')):
        I.kind = 'vmem'; I.src = allsrc(R)
        if op.endswith(('x3', 'x4')):
            I.wide_store = True
            I.srcc = R[1] if op.startswith('global') else R[0]
    elif op.startswith(('global_atomic', 'buffer_atomic')):
        I.kind = 'vmem'; I.src = allsrc(R)
        if 'sc0' in mods: I.dst = R[0]
    elif op.startswith('buffer_'):
        I.kind = 'vmem'
    elif op.startswith(('s_load', 's_memtime', 's_memrealtime', 's_getreg', 's_getpc')):
        I.kind = 'salu'; I.dst = R[0]; I.src = allsrc(R[1:])
    elif op.startswith(('s_cmp', 's_cbranch', 's_branch', 's_waitcnt', 's_barrier', 's_sleep', 's_endpgm', 's_setprio', 's_bitcmp')):
        I.kind = 'salu'; I.src = allsrc(R)
    elif op.startswith('s_'):
        I.kind = 'salu'; I.dst = R[0]; I.src = allsrc(R[1:])
        if 'saveexec' in op: I.dst |= {('s', 'exec')}
    else:
        raise ValueError('unknown op ' + text)
    return I

def need(p, c):
    n = 0
    pv = {r for r in p.dst if r[0] in 'va'}
    ps = {r for r in p.dst if r[0] == 's'}
    isvalu = lambda x: x.kind in ('valu', 'trans')
    if isvalu(p):
        if c.dpp and (pv & c.src): n = max(n, 2)
        if c.op.startswith('v_permlane') and (pv & c.src): n = max(n, 2)
        if c.op.startswith(('v_readfirstlane', 'v_readlane')) and (pv & c.src): n = max(n, 1)
        if c.kind == 'mfma' and (pv & c.src): n = max(n, 2)
        if p.kind == 'trans' and (isvalu(c) or c.kind in ('mfma',)) and (pv & c.src): n = max(n, 1)
        if ps:
            e = {('s', 'exec')}
            pse = ps - e
            if isvalu(c) and (pse & c.src): n = max(n, 4 if c.op.startswith(('v_readlane', 'v_writelane')) else 2)
            if c.kind == 'vmem' and (pse & c.src): n = max(n, 5)
            if ps & e:
                if c.dpp: n = max(n, 5)
                if c.op.startswith(('v_readlane', 'v_readfirstlane', 'v_writelane', 'v_permlane')) or c.kind == 'mfma': n = max(n, 4)
    if p.op.startswith('v_dot'):
        if c.op == p.op:
            ab = c.text.split(';')[0].split(',')
            if pv & (_regs(ab[1]) | _regs(ab[2])): n = max(n, 3)
        elif pv & (c.src | c.dst): n = max(n, 3)
    if isvalu(p) and not p.op.startswith('v_dot') and c.op.startswith('v_dot') and False: pass
    if p.kind == 'salu' and (('s', 'm0') in p.dst) and (('s', 'm0') in c.src): n = max(n, 1)
    if p.kind == 'mfma':
        k = {4: (6, 8, 3), 8: (10, 12, 7)}[p.passes]
        if c.kind == 'mfma':
            if (p.dst & c.srcab): n = max(n, k[1])
            if (p.dst & c.srcc) and not (p.dst == c.srcc and p.passes == c.passes): n = max(n, k[0])
            if (p.dst & c.dst) and not (p.dst == c.dst and p.dst == c.srcc): n = max(n, k[0])
        else:
            if (p.dst & (c.src | c.dst)): n = max(n, k[1])
            if isvalu(c) and (p.srcc & c.dst): n = max(n, k[2])
    if p.wide_store and (p.srcc & c.dst): n = max(n, 2 if isvalu(c) else 1)
    return n

class Asm:
    def __init__(self):
        self.out = []; self.hist = []
        self.npad = 0
        self.pending = {}
        self.alts = []
        self.labels = {}
        self.allins = []
    def raw(self, s): self.out.append(s)
    def _req(self, hist, c, base=0):
        dist = base; req = 0
        for p in reversed(hist):
            r = need(p, c) - dist
            if r > req: req = r
            dist += p.ws
            if dist >= 20: break
        return req
    def _emit_nop(self, req):
        self.npad += 1
        while req > 0:
            k = min(req, 16)
            n = parse(f's_nop {k-1}'); self.hist.append(n); self.allins.append(n); self.out.append(f'    s_nop {k-1}')
            self.alts = [(h, d + k) for (h, d) in self.alts]
            req -= k
    def __call__(self, text):
        for line in text.strip().split('\n'):
            line = line.strip()
            if not line or line.startswith(';'):
                if line: self.out.append('    ' + line)
                continue
            if line.endswith(':'):
                name = line[:-1]
                self.labels[name] = len(self.allins)
                for h in self.pending.pop(name, []): self.alts.append((h, 0))
                self.out.append(line); continue
            if line.startswith('.'):
                self.out.append(line); continue
            c = parse(line)
            req = self._req(self.hist, c)
            for (h, d) in self.alts: req = max(req, self._req(h, c, d))
            isbr = c.op.startswith(('s_cbranch', 's_branch'))
            if isbr:
                tgt = line.split()[1]
                if tgt in self.labels:
                    i0 = self.labels[tgt]; d = 1
                    for t in self.allins[i0:i0 + 20]:
                        req = max(req, self._req(self.hist, t, d))
                        d += t.ws
                        if d >= 20 or t.op == 's_branch': break
            if req > 0: self._emit_nop(req)
            self.hist.append(c); self.allins.append(c); self.out.append('    ' + line)
            self.alts = [(h, d + c.ws) for (h, d) in self.alts if d + c.ws < 20]
            if isbr:
                tgt = line.split()[1]
                if tgt not in self.labels: self.pending.setdefault(tgt, []).append(list(self.hist[-24:]))
                if c.op == 's_branch': self.hist = []; self.alts = []
            if c.op == 's_endpgm': self.hist = []; self.alts = []
            if len(self.hist) > 64: self.hist = self.hist[-40:]
    def text(self): return '\n'.join(self.out) + '\n'
```

```python
import sys
from asmdsl import Asm

class Cfg:
    STAMP = False
    STOP = 99
    WS_BASE = 0
    WBL2 = False
    OUT_FL = 'sc1'
    POLL_CAP = 200000
    FORCE_SLOW = False
    SEC = 'bar'
    WPOS = 'key'
    X3ACK = True
    GXE = True
    RTEND = 0
    TLBW = False
    FPOS = 'k'
    X3SLP = 14
    DSITE = ''
    GPOS = 's1'
    X1PT = True
    GLOOP = 0
    PRIO = 3
    OUTPOS = 'top8'
    H2PT = False
    GSLP = 0
    HSLP = 16
    NOOUT = False
    REDSLP = 0
    WAFTER = True
    WDPOS = 's1'
    DBL = False
    DBGT = False
    NT = ''
    WPF = True
    PARTPT = False
    SITES = ()
    ORDER = []
cfg = Cfg()

KNAME = "adaLN_cond__ssm_conv_h3__moe_arch_mod__prompt_kernel"
EPOCH = 0; FL1 = 0x10000; FL2 = 0x12000; FLM = 0x14000; MTAB = 0x16000; KEYS = 0x18000; SEL = 0x1C000
XC = 0x20000; H2P = 0x28000; X1P = 0x2C000; MODP = 0x40000; PART = 0x80000
H2R = 0x800000; XB1 = 0x200000; X0 = 0x400000; X3 = 0x600000; GXB = 0; STAMPS = 0x2000000
NS3 = 28
NPROD = 56
NG0 = 8
USTR = 4160; UCH = 8 * USTR
L_MOD = 0
L_KEY = 2048
L_GP = 4096
L_CNT = 3328
L_ST = 3584
L_KVR = 8192; KVS = 4608
L_P = L_KVR + 2 * KVS
L_T = L_P; TS = 272
L_KD = L_P + 32768
L_U = L_KD + 8192
L_WGU = L_U + 2 * UCH
L_XS = L_WGU + 24576
L_END = L_WGU + 32768
L_Z = L_U
L_WD = L_U + 8192
L_G2 = L_P
L_GU = L_P + 8192
LDS_BYTES = 158720
assert L_END <= LDS_BYTES

sX, sK, sV, sSK, sF, sD, sWR = 4, 6, 8, 10, 12, 14, 18
sWG, sWU, sWD, sC, sWM, sOUT, sDBG, sWS = 20, 22, 24, 26, 28, 30, 32, 34
sG, sM, sWAVE, sTAG, sMODE, sXCC, sCNT, sTILE = 36, 37, 38, 39, 40, 41, 42, 43
sKSRD = 44
sFSRD = 48
sMASK = 52
sWID = 53
sEP = 54
sDV = 55
sT0, sT1, sT2, sT3, sT4, sT5 = 56, 57, 58, 59, 60, 61
sEX = 62
sC0 = 44
sWSR = 64
sOUTR = 68
sD0, sD1 = 72, 73
sPEND, sPT = 16, 17
sHM = 10
sST = 74
def P(s): return f's[{s}:{s+1}]'

import re
def to_buffer(line):
    for base, srd in ((sWS, sWSR), (sOUT, sOUTR)):
        b = re.escape(P(base)); R = f's[{srd}:{srd+3}]'
        m = re.match(rf'^\s*global_load_lds_(\w+) (v\d+), {b}(.*)$', line)
        if m: return f'buffer_load_{m.group(1)} {m.group(2)}, {R}, 0 offen{m.group(3)} lds'
        m = re.match(rf'^\s*global_load_(\w+) (v\S+), (v\d+), {b}(.*)$', line)
        if m: return f'buffer_load_{m.group(1)} {m.group(2)}, {m.group(3)}, {R}, 0 offen{m.group(4)}'
        m = re.match(rf'^\s*global_store_(\w+) (v\d+), (v\S+), {b}(.*)$', line)
        if m: return f'buffer_store_{m.group(1)} {m.group(3)}, {m.group(2)}, {R}, 0 offen{m.group(4)}'
    return line
def add_nt(line):
    if not cfg.NT: return line
    l = line.strip()
    if l.startswith('global_load') and any(P(b) in l for b in (sX, sK, sV, sWM, sWD, 12)) and 'sc1' not in l: return l + ' ' + cfg.NT
    if l.startswith('buffer_load') and (f's[{sKSRD}:{sKSRD+3}]' in l or f's[{sFSRD}:{sFSRD+3}]' in l): return l + ' ' + cfg.NT
    return line
class BAsm(Asm):
    def __call__(self, text):
        super().__call__('\n'.join(to_buffer(add_nt(l)) for l in text.strip().split('\n')))
def build():
    A = BAsm()
    slow = []
    late = []
    nst = [0]
    site = [0]
    def stamp(name=''):
        if cfg.DSITE == name:
            A('s_memrealtime s[82:83]')
            if name in ('B2', 'B3b'): A('s_waitcnt lgkmcnt(0)')
        if cfg.STAMP and (name in cfg.SITES or name == 'start'):
            assert sST + 2 * nst[0] + 3 <= 101
            A(f's_memtime s[{sST+2*nst[0]}:{sST+2*nst[0]+1}]'); nst[0] += 1
            cfg.ORDER.append(name)
            if name in ('B2', 'B3b'): A('s_waitcnt lgkmcnt(0)')
    uid = [0]
    def lstore(text):
        uid[0] += 1; k = uid[0]
        A(f's_cmp_eq_u32 s{sMODE}, 1')
        A(f's_cbranch_scc0 L_slow{k}')
        A(text)
        A(f'L_back{k}:')
        slow.append((k, '\n'.join(l + ' sc1' for l in text.strip().split('\n'))))
    def poll(name, loads, check, slp=0):
        A(f'{name}:')
        if slp: A(f's_sleep {slp}')
        A(loads)
        A('s_waitcnt vmcnt(0)')
        A(check)
        A(f's_sub_u32 s{sCNT}, s{sCNT}, 1')
        A('s_cselect_b64 vcc, 0, vcc')
        A(f's_cselect_b32 s{sCNT}, 0, s{sCNT}')
        A(f's_cbranch_vccnz {name}')
    def mpoll(name, items):
        A(f'{name}:')
        for k, (ld, tr, mk) in enumerate(items):
            A(f's_mov_b64 exec, {P(mk)}')
            A(f's_cbranch_execz {name}_s{k}')
            A(ld)
            A(f'{name}_s{k}:')
        A('s_mov_b64 exec, -1')
        A('s_waitcnt vmcnt(0)')
        for (ld, tr, mk) in items:
            if isinstance(tr, int): A(f'v_cmp_ne_u32 {P(mk)}, s{sTAG}, v{tr}')
            else: A(tr[0]); A(f'v_cmp_ne_u32 {P(mk)}, 0, v{tr[1]}')
        A(f's_or_b64 vcc, {P(items[0][2])}, {P(items[1][2])}')
        for (ld, tr, mk) in items[2:]: A(f's_or_b64 vcc, vcc, {P(mk)}')
        A(f's_sub_u32 s{sCNT}, s{sCNT}, 1')
        A('s_cselect_b64 vcc, 0, vcc')
        A(f's_cselect_b32 s{sCNT}, 0, s{sCNT}')
        A(f's_cbranch_vccnz {name}')
    def unpack(d, s):
        A(f'v_lshlrev_b32 v{d}, 16, v{s}')
        A(f'v_and_b32 v{d+1}, s{sMASK}, v{s}')
    def rnd(d, s=None):
        A(f'v_cvt_pk_bf16_f32 v{d}, 0, v{d if s is None else s}')
    def pr(r): return f'v[{r}:{r+1}]'
    def q4(r): return f'v[{r}:{r+3}]'
    DPPM = 'row_mask:0xf bank_mask:0xf'
    def allred(regs, tmps, add='v_add_f32'):
        for r in regs: A(f'{add}_dpp v{r}, v{r}, v{r} row_ror:8 {DPPM}')
        for sw in ('v_permlane16_swap_b32', 'v_permlane32_swap_b32'):
            for r, t in zip(regs, tmps): A(f'v_mov_b32 v{t}, v{r}')
            for r, t in zip(regs, tmps): A(f'{sw} v{t}, v{r}')
            for r, t in zip(regs, tmps): A(f'{add} v{r}, v{r}, v{t}')
    def fullred(regs, tmps, add='v_add_f32'):
        for pat in ('quad_perm:[1,0,3,2]', 'quad_perm:[2,3,0,1]', 'row_half_mirror'):
            for r in regs: A(f'{add}_dpp v{r}, v{r}, v{r} {pat} {DPPM}')
        allred(regs, tmps, add)
    def lnstats(S, Q, t0, mean_out, inv_out):
        A(f'v_mul_f32 v{S}, 0x3b000000, v{S}')
        A(f'v_mul_f32 v{Q}, 0x3b000000, v{Q}')
        A(f'v_fma_f32 v{t0}, -v{S}, v{S}, v{Q}')
        A(f'v_max_f32 v{t0}, 0, v{t0}')
        rnd(mean_out, S)
        rnd(t0)
        A(f'v_add_f32 v{t0}, 0x3727c5ac, v{t0}')
        rnd(t0)
        A(f'v_sqrt_f32 v{t0}, v{t0}')
        rnd(t0)
        A(f'v_rcp_f32 v{inv_out}, v{t0}')

    A(f'''
    s_cmp_ge_u32 s2, 256
    s_cbranch_scc1 L_end
    s_load_dwordx16 s[4:19], s[0:1], 0
    s_load_dwordx16 s[20:35], s[0:1], 64
    ''')
    if cfg.STAMP:
        A(f's_memrealtime s[{sST}:{sST+1}]'); nst[0] += 1
    if cfg.DBGT or cfg.DBL:
        A('s_memrealtime s[74:75]'); A('s_memtime s[76:77]')
    stamp('start')
    vLANE, vTID = 1, 0
    vA, vB, vT0, vT1, vT2, vT3 = 2, 3, 4, 5, 6, 7
    vPA = 9
    vJR = 8
    vX = 10
    vKr = 14
    vVr = 21
    vSk = 26
    vFl = 30
    vMT = 38
    vGW = 110
    vGC = 44
    vPT = 40
    A(f'''
    s_getreg_b32 s{sXCC}, hwreg(HW_REG_XCC_ID)
    s_and_b32 s{sG}, s2, 7
    s_lshr_b32 s{sM}, s2, 3
    v_lshrrev_b32 v{vT0}, 6, v0
    v_and_b32 v{vLANE}, 63, v0
    v_readfirstlane_b32 s{sWAVE}, v{vT0}
    s_and_b32 s{sXCC}, s{sXCC}, 15
    s_mov_b32 s{sMASK}, 0xffff0000
    s_mov_b32 s{sCNT}, {cfg.POLL_CAP}
    s_lshl_b32 s{sT0}, s{sM}, 16
    s_lshl_b32 s{sT1}, s{sG}, 7
    s_add_u32 s{sTILE}, s{sT0}, s{sT1}
    s_lshl_b32 s{sWID}, s{sG}, 5
    s_add_u32 s{sWID}, s{sWID}, s{sM}
    v_and_b32 v{vT0}, 31, v0
    v_lshrrev_b32 v{vT1}, 5, v0
    v_lshlrev_b32 v{vA}, 12, v{vT1}
    v_lshl_add_u32 v{vA}, v{vT0}, 2, v{vA}
    v_add_u32 v{vA}, s{sTILE}, v{vA}
    v_subrev_u32 v{vB}, 0xc00, v{vA}
    v_bfrev_b32 v{vT2}, 1
    v_cmp_gt_u32 vcc, 0xc00, v{vA}
    v_cndmask_b32 v{vB}, v{vB}, v{vT2}, vcc
    v_lshl_add_u32 v{vT2}, v{vT0}, 4, s{sT1}
    v_lshl_add_u32 v{vT2}, s{sT1}, 1, v{vT2}
    v_add_u32 v{vT2}, s{sT1}, v{vT2}
    ''')
    A(f'''
    s_add_u32 s{sT3}, s{sXCC}, 1
    v_mov_b32 v{vPT}, s{sWID}
    v_mov_b32 v{vPT+1}, s{sT3}
    s_lshl_b32 s{sT4}, s{sG}, 7
    s_lshl_b32 s{sT5}, s{sM}, 2
    s_add_u32 s{sT4}, s{sT4}, s{sT5}
    v_lshlrev_b32 v{vT0}, 4, v0
    v_subrev_u32 v{vT1}, 16, v{vT0}
    v_and_b32 v{vT3}, 255, v0
    v_cmp_eq_u32 vcc, 0, v{vT3}
    v_bfrev_b32 v{vT3}, 1
    v_cndmask_b32 v{vT1}, v{vT1}, v{vT3}, vcc
    s_lshl_b32 s{sT0}, s{sWID}, 13
    s_waitcnt lgkmcnt(0)
    s_load_dword s{sEP}, {P(sWS)}, {EPOCH + cfg.WS_BASE}
    global_load_dwordx4 {q4(vSk)}, v{vT2}, {P(sSK)}
    ''')
    for i in range(4): A(f'global_load_dword v{vKr+3+i}, v{vA}, {P(sK)} offset:{1024*i}')
    A(f'''
    s_mov_b32 s{sKSRD}, s{sK}
    s_mov_b32 s{sKSRD+1}, s{sK+1}
    s_mov_b32 s{sKSRD+2}, 0x200000
    s_mov_b32 s{sKSRD+3}, 0x20000
    s_mov_b32 exec_hi, 0
    ''')
    for i in range(3): A(f'buffer_load_dword v{vKr+i}, v{vB}, s[{sKSRD}:{sKSRD+3}], 0 offen offset:{1024*i}')
    A('s_mov_b64 exec, -1')
    for i in range(4): A(f'global_load_dword v{vVr+i}, v{vA}, {P(sV)} offset:{1024*i}')
    A(f'''
    s_add_u32 s{sWS}, s{sWS}, {cfg.WS_BASE}
    s_addc_u32 s{sWS+1}, s{sWS+1}, 0
    s_mov_b32 s{sWSR}, s{sWS}
    s_mov_b32 s{sWSR+1}, s{sWS+1}
    s_mov_b32 s{sWSR+2}, 0x4000000
    s_mov_b32 s{sWSR+3}, 0x20000
    s_mov_b32 s{sOUTR}, s{sOUT}
    s_mov_b32 s{sOUTR+1}, s{sOUT+1}
    s_mov_b32 s{sOUTR+2}, 0x200000
    s_mov_b32 s{sOUTR+3}, 0x20000
    s_add_u32 s{sFSRD}, s{sF}, s{sT0}
    s_addc_u32 s{sFSRD+1}, s{sF+1}, 0
    s_mov_b32 s{sFSRD+2}, 8192
    s_mov_b32 s{sFSRD+3}, 0x20000
    s_load_dword s{sDV}, {P(sD)}, s{sT4}
    ''')
    A(f'''
    s_cmp_lg_u32 s{sWAVE}, 7
    s_cbranch_scc1 L_nopt
    s_lshr_b32 s{sT0}, s{sM}, 2
    s_lshl_b32 s{sT0}, s{sT0}, 7
    s_lshl_b32 s{sT1}, s{sG}, 10
    s_add_u32 s{sT0}, s{sT0}, s{sT1}
    s_add_u32 s{sT1}, s{sT0}, {FL1}
    v_mov_b32 v{vPT+2}, s{sT1}
    s_add_u32 s{sT1}, s{sT0}, {FL2}
    v_writelane_b32 v{vPT+2}, s{sT1}, 2
    v_writelane_b32 v{vPT+2}, s{sT1}, 3
    s_lshl_b32 s{sT0}, s{sG}, 7
    s_add_u32 s{sT1}, s{sT0}, {FLM}
    v_writelane_b32 v{vPT+2}, s{sT1}, 4
    v_writelane_b32 v{vPT+2}, s{sT1}, 5
    s_add_u32 s{sT1}, s{sT0}, {SEL}
    v_writelane_b32 v{vPT+2}, s{sT1}, 6
    v_writelane_b32 v{vPT+2}, s{sT1}, 7
    s_lshl_b32 s{sT0}, s{sWID}, 6
    s_and_b32 s{sT0}, s{sT0}, 0xffffff80
    s_add_u32 s{sT1}, s{sT0}, {KEYS}
    v_writelane_b32 v{vPT+2}, s{sT1}, 8
    v_writelane_b32 v{vPT+2}, s{sT1}, 9
    v_and_b32 v{vPT+3}, 1, v0
    v_lshl_add_u32 v{vPT+2}, v{vPT+3}, 6, v{vPT+2}
    s_lshl_b32 s{sT0}, s{sWID}, 9
    s_add_u32 s{sT1}, s{sT0}, {MODP - 32*64}
    v_lshl_add_u32 v{vPT+3}, v{vLANE}, 6, s{sT1}
    v_cmp_lt_u32 vcc, 31, v{vLANE}
    v_cndmask_b32 v{vPT+2}, v{vPT+2}, v{vPT+3}, vcc
    s_lshl_b32 s{sT0}, s{sM}, 9
    s_add_u32 s{sT1}, s{sT0}, {H2P - 40*64}
    v_lshl_add_u32 v{vPT+3}, v{vLANE}, 6, s{sT1}
    v_cmp_lt_u32 vcc, 39, v{vLANE}
    v_cndmask_b32 v{vPT+2}, v{vPT+2}, v{vPT+3}, vcc
    s_mov_b32 exec_lo, 0x3ff
    s_mov_b32 exec_hi, {'0xffff' if cfg.H2PT else '0xff'}
    global_load_dword v{vPT+3}, v{vPT+2}, {P(sWS)} sc1
    s_mov_b64 exec, 0xffff
    s_getpc_b64 {P(sT0)}
    L_pc:
    s_lshl_b32 s{sT2}, s{sM}, 10
    v_lshl_add_u32 v{vPT+2}, v{vLANE}, 6, s{sT2}
    v_min_u32 v{vPT+2}, L_codeend-L_pc-4, v{vPT+2}
    global_load_dword v{vPT+3}, v{vPT+2}, {P(sT0)}
    s_mov_b64 exec, -1
    L_nopt:
    ''')
    if cfg.TLBW:
        tl = [(sWS, X0), (sWS, X3), (sOUT, 0), (sX, 0), (sWM, 0), (sWM, 0x200000), (sWG, 0), (sWU, 0), (sWD, 0), (sWS, XB1)]
        A(f'''
        s_cmp_lg_u32 s{sWAVE}, 6
        s_cbranch_scc1 L_notl
        s_lshl_b32 s{sT2}, s{sWID}, 12
        ''')
        for i, (b, off) in enumerate(tl):
            A(f's_add_u32 s{sT0}, s{b}, s{sT2}')
            A(f's_addc_u32 s{sT1}, s{b+1}, 0')
            if off:
                A(f's_add_u32 s{sT0}, s{sT0}, {off}')
                A(f's_addc_u32 s{sT1}, s{sT1}, 0')
            if i == 0:
                A(f'v_mov_b32 v{vPT+2}, s{sT0}'); A(f'v_mov_b32 v{vPT+3}, s{sT1}')
            else:
                A(f'v_writelane_b32 v{vPT+2}, s{sT0}, {i}'); A(f'v_writelane_b32 v{vPT+3}, s{sT1}, {i}')
        A(f'''
        s_mov_b64 exec, {(1 << len(tl)) - 1}
        global_load_dword v{vMT+1}, {pr(vPT+2)}, off
        s_mov_b64 exec, -1
        L_notl:
        ''')
    A(f'''
    v_mov_b32 v{vPT}, {L_CNT}
    v_mov_b32 v{vPT+1}, 0
    ds_write_b32 v{vPT}, v{vPT+1}
    v_and_b32 v{vT2}, 7, v0
    v_lshl_add_u32 v{vT2}, s{sWAVE}, 3, v{vT2}
    v_lshlrev_b32 v{vT2}, 10, v{vT2}
    v_lshrrev_b32 v{vT3}, 3, v{vLANE}
    v_lshl_add_u32 v{vJR}, v{vT3}, 4, v{vT2}
    v_add_u32 v{vJR}, s{sTILE}, v{vJR}
    s_barrier
    ''')
    def fload():
        A(f'''
        buffer_load_dwordx4 {q4(vFl+4)}, v{vT0}, s[{sFSRD}:{sFSRD+3}], 0 offen
        s_mov_b64 exec, 1
        buffer_load_dwordx4 {q4(vFl)}, v{vT1}, s[{sFSRD}:{sFSRD+3}], 0 offen
        s_mov_b64 exec, -1
        ''')
    if cfg.FPOS == 'bar': fload()
    A(f'''
    s_and_b32 s{sT0}, s{sM}, 3
    s_lshl_b32 s{sT0}, s{sT0}, 8
    s_and_b32 s{sT1}, s{sWAVE}, 3
    s_lshl_b32 s{sT1}, s{sT1}, 6
    s_add_u32 s{sT0}, s{sT0}, s{sT1}
    v_and_b32 v{vT2}, 0x38, v0
    v_add_u32 v{vT2}, s{sT0}, v{vT2}
    global_load_dwordx2 {pr(vGC)}, v{vT2}, {P(sC)}
    s_lshl_b32 s{sT0}, s{sG}, 9
    s_add_u32 s{sT0}, s{sT0}, {MTAB}
    v_and_b32 v{vPT}, 31, v0
    v_lshl_add_u32 v{vPT}, v{vPT}, 4, s{sT0}
    s_lshl_b32 s{sT1}, s{sM}, 4
    s_add_u32 s{sT0}, s{sT0}, s{sT1}
    v_mov_b32 v{vPT+1}, s{sT0}
    s_waitcnt lgkmcnt(0)
    s_mul_i32 s{sTAG}, s{sEP}, 0x9E3779B1
    s_add_u32 s{sTAG}, s{sTAG}, 0x7F4A7C15
    s_add_u32 s{sXCC}, s{sXCC}, s{sTAG}
    s_add_u32 s{sXCC}, s{sXCC}, 1
    v_mov_b32 v{vPT+2}, s{sXCC}
    s_cmp_lg_u32 s{sWAVE}, 0
    s_cbranch_scc1 L_nomode
    s_mov_b64 exec, 1
    global_store_dword v{vPT+1}, v{vPT+2}, {P(sWS)} sc1
    s_mov_b64 exec, -1
    L_nomode:
    ''')
    stamp('issued')
    A(f's_mov_b32 s{sPEND}, 0')
    vX1A, vUA, vTW, vTR = 96, 97, 98, 99
    A(f'''
    v_and_b32 v{vT2}, 31, v0
    v_lshrrev_b32 v{vT3}, 5, v0
    v_mul_u32_u24 v{vTW}, {TS}, v{vT2}
    v_lshlrev_b32 v{vT3}, 3, v{vT3}
    v_sub_u32 v{vTW}, v{vTW}, v{vT3}
    v_add_u32 v{vTW}, {L_T + 120}, v{vTW}
    v_lshrrev_b32 v{vX1A}, 4, v0
    v_mul_u32_u24 v{vTR}, {TS}, v{vX1A}
    v_and_b32 v{vT3}, 15, v0
    v_lshl_add_u32 v{vTR}, v{vT3}, 4, v{vTR}
    v_lshlrev_b32 v{vX1A}, 13, v{vX1A}
    v_bfe_u32 v{vT3}, v0, 3, 1
    v_lshl_add_u32 v{vX1A}, v{vT3}, 12, v{vX1A}
    v_and_b32 v{vT3}, 7, v0
    v_lshl_add_u32 v{vX1A}, v{vT3}, 4, v{vX1A}
    s_lshl_b32 s{sT0}, s{sG}, 18
    s_sub_u32 s{sT1}, 31, s{sM}
    s_lshl_b32 s{sT1}, s{sT1}, 7
    s_add_u32 s{sT0}, s{sT0}, s{sT1}
    s_add_u32 s{sT0}, s{sT0}, {XB1}
    v_add_u32 v{vX1A}, s{sT0}, v{vX1A}
    s_lshl_b32 s{sT0}, s{sG}, 10
    s_lshl_b32 s{sT1}, s{sWAVE}, 7
    s_add_u32 s{sT0}, s{sT0}, s{sT1}
    s_lshl_b32 s{sT1}, s{sM}, 2
    s_add_u32 s{sT0}, s{sT0}, s{sT1}
    v_mov_b32 v{vA}, s{sT0}
    v_mov_b32 v{vB}, s{sTAG}
    v_lshrrev_b32 v{vUA}, 8, v0
    v_mul_u32_u24 v{vUA}, {UCH}, v{vUA}
    v_and_b32 v{vT3}, 255, v0
    v_lshl_add_u32 v{vUA}, v{vT3}, 4, v{vUA}
    v_add_u32 v{vUA}, {L_U}, v{vUA}
    s_lshl_b32 s{sT0}, s{sWID}, 13
    s_add_u32 s{sT0}, s{sT0}, {XB1}
    v_lshl_add_u32 v{vSk-1}, v0, 4, s{sT0}
    s_mov_b32 s{sHM}, 0x11111111
    s_mov_b32 s{sHM+1}, 0x11111111
    ''')
    def wv(n): A(f's_waitcnt vmcnt({n})')
    vTp = 46
    vKp = 54
    vVp = 68
    vAc = 76
    vPp = 84
    vO = 92
    wv(7 if cfg.FPOS == 'bar' else 5)
    if cfg.FPOS == 'k': fload()
    for i in range(3): A(f'v_mov_b32 v{vPp+i}, v{vKr+4+i}')
    for i in range(3): A(f'v_permlane32_swap_b32 v{vKr+i}, v{vPp+i}')
    for j in range(4):
        src0, src1 = vSk + (j >> 1), vSk + 2 + (j >> 1)
        if j & 1:
            A(f'v_and_b32 v{vTp+2*j}, s{sMASK}, v{src0}'); A(f'v_and_b32 v{vTp+2*j+1}, s{sMASK}, v{src1}')
        else:
            A(f'v_lshlrev_b32 v{vTp+2*j}, 16, v{src0}'); A(f'v_lshlrev_b32 v{vTp+2*j+1}, 16, v{src1}')
    for r in range(7): unpack(vKp + 2*r, vKr + r)
    stamp('kland')
    for i in range(4): A(f'v_pk_mul_f32 {pr(vAc+2*i)}, {pr(vKp+2*i)}, {pr(vTp+6)}')
    for i in range(8): rnd(vAc + i)
    for j in (2, 1, 0):
        for i in range(4): A(f'v_pk_mul_f32 {pr(vPp+2*i)}, {pr(vKp+2*(i+3-j))}, {pr(vTp+2*j)}')
        for i in range(8): rnd(vPp + i)
        for i in range(4): A(f'v_pk_add_f32 {pr(vAc+2*i)}, {pr(vAc+2*i)}, {pr(vPp+2*i)}')
        for i in range(8): rnd(vAc + i)
    wv(3)
    A(f'global_load_dword v{vMT}, v{vPT}, {P(sWS)} sc1')
    if cfg.X1PT:
        A(f'''
        s_mov_b64 exec, {P(sHM)}
        global_load_dword v{vPT+3}, v{vSk-1}, {P(sWS)} sc1
        s_mov_b64 exec, -1
        ''')
    for i in range(4): unpack(vVp + 2*i, vVr + i)
    for i in range(4): A(f'v_pk_mul_f32 {pr(vAc+2*i)}, {pr(vAc+2*i)}, {pr(vVp+2*i)}')
    for c in range(2):
        A(f'v_cvt_pk_bf16_f32 v{vO+2*c}, v{vAc+6+c}, v{vAc+4+c}')
        A(f'v_cvt_pk_bf16_f32 v{vO+2*c+1}, v{vAc+2+c}, v{vAc+c}')
    A(f'''
    ds_write2_b64 v{vTW}, {pr(vO)}, {pr(vO+2)} offset0:0 offset1:16
    s_waitcnt lgkmcnt(0)
    s_barrier
    ds_read_b128 {q4(vO)}, v{vTR} offset:{L_T}
    ''')
    stamp('B1')
    A(f'''
    s_waitcnt lgkmcnt(0)
    global_store_dwordx4 v{vX1A}, {q4(vO)}, {P(sWS)}
    ''')
    vW1 = 46
    vOa = 52
    vOb = 58
    wv((4 if cfg.X1PT else 3) - (0 if cfg.FPOS == 'bar' else 1))
    for i in range(4): A(f'v_mov_b32_dpp v{vFl+i}, v{vFl+4+i} wave_shr:1 {DPPM}')
    for i in range(6): A(f'v_mov_b32 v{vW1+i}, v{vFl+1+i}')
    for i in range(6): A(f'v_alignbyte_b32 v{vOa+i}, v{vFl+i+1}, v{vFl+i}, 2')
    for i in range(6): A(f'v_alignbyte_b32 v{vOb+i}, v{vFl+i+2}, v{vFl+i+1}, 2')
    A(f'''
    v_add_u32 v{vT2}, {FL1}, v{vA}
    s_mov_b32 s{sMODE}, {0 if cfg.FORCE_SLOW else 1}
    s_waitcnt vmcnt(0)
    v_cmp_ne_u32 vcc, s{sXCC}, v{vMT}
    s_cbranch_vccnz L_modeslow
    L_modeback:
    s_cmp_eq_u32 s{sMODE}, 1
    s_cbranch_scc0 L_x1slow
    L_x1back:
    s_mov_b64 exec, 1
    ''')
    late.append(('L_x1slow', lambda: (A(f'global_store_dwordx4 v{vX1A}, {q4(vO)}, {P(sWS)} sc1'), A('s_waitcnt vmcnt(0)'), A('s_branch L_x1back'))))
    lstore(f'global_store_dword v{vT2}, v{vB}, {P(sWS)}')
    A('s_mov_b64 exec, -1')
    stamp('flag1')
    srcs = {0: vOa, 1: vW1, 2: vOb, 3: vFl + 2, 4: vOa + 2, 5: vW1 + 2, 6: vOb + 2, 7: vFl + 4}
    def uwrites():
        for c in range(8): A(f'ds_write_b128 v{vUA}, {q4(srcs[c])} offset:{c*USTR + 16}')
    A(f's_cmp_eq_u32 s{sWAVE}, 4')
    A('s_cbranch_scc1 L_nouw')
    uwrites()
    A('L_nouw:')
    vZ = 64
    for i in range(4): A(f'v_mov_b32 v{vZ+i}, 0')
    vXp = 100
    vXA = 108
    vXL = 109
    A(f'''
    v_mul_u32_u24 v{vT0}, {USTR}, v{vLANE}
    v_lshrrev_b32 v{vT1}, 5, v{vLANE}
    v_mul_u32_u24 v{vT1}, {KVS - 512}, v{vT1}
    v_lshl_add_u32 v{vT1}, v{vLANE}, 4, v{vT1}
    v_add_u32 v{vT1}, {L_KVR + 4096}, v{vT1}
    s_cmp_lg_u32 s{sWAVE}, 0
    s_cbranch_scc1 L_nz0
    s_mov_b64 exec, 0xffff
    ds_write_b128 v{vT0}, {q4(vZ)} offset:{L_U}
    s_mov_b64 exec, -1
    ds_write_b128 v{vT1}, {q4(vZ)}
    L_nz0:
    v_lshrrev_b32 v{vT0}, 3, v{vLANE}
    v_and_b32 v{vT1}, 7, v0
    v_lshl_add_u32 v{vT1}, s{sWAVE}, 3, v{vT1}
    v_lshlrev_b32 v{vT1}, 4, v{vT1}
    v_lshl_add_u32 v{vXA}, v{vT0}, 18, v{vT1}
    s_lshl_b32 s{sT0}, s{sM}, 13
    s_lshl_b32 s{sT1}, s{sG}, 10
    s_add_u32 s{sT0}, s{sT0}, s{sT1}
    v_add_u32 v{vXA}, s{sT0}, v{vXA}
    v_lshl_add_u32 v{vXL}, v{vT0}, 10, v{vT1}
    s_lshl_b32 s{sT0}, s{sWID}, 13
    v_add_u32 v{vXL}, s{sT0}, v{vXL}
    s_cmp_ge_u32 s{sWAVE}, 4
    s_cbranch_scc1 L_helper
    ''')
    vAA, vBA, vPW = 110, 111, 112
    vACC = 116
    vFA = [148, 180]
    vFB = [212, 46]
    A(f'''
    v_and_b32 v{vT0}, 15, v0
    v_lshrrev_b32 v{vT1}, 4, v{vLANE}
    v_and_b32 v{vT2}, 7, v0
    v_mul_u32_u24 v{vAA}, {USTR}, v{vT2}
    v_lshrrev_b32 v{vT2}, 3, v{vT0}
    v_add_u32 v{vT2}, v{vT2}, v{vT1}
    v_lshl_add_u32 v{vAA}, v{vT2}, 4, v{vAA}
    s_lshr_b32 s{sT0}, s{sWAVE}, 1
    s_and_b32 s{sT1}, s{sWAVE}, 1
    s_lshl_b32 s{sT1}, s{sT1}, 8
    s_mul_i32 s{sT2}, s{sT0}, {UCH}
    s_add_u32 s{sT2}, s{sT2}, s{sT1}
    s_add_u32 s{sT2}, s{sT2}, {L_U}
    v_add_u32 v{vAA}, s{sT2}, v{vAA}
    v_lshlrev_b32 v{vBA}, 4, v{vT1}
    v_lshlrev_b32 v{vT2}, 5, v{vT0}
    v_sub_u32 v{vBA}, v{vBA}, v{vT2}
    s_mul_i32 s{sT2}, s{sT0}, {KVS}
    s_add_u32 s{sT2}, s{sT2}, s{sT1}
    s_add_u32 s{sT2}, s{sT2}, {L_KVR + 480}
    v_add_u32 v{vBA}, s{sT2}, v{vBA}
    ''')
    def ldA(st, r, p): A(f'ds_read_b128 {q4(vFA[st]+4*p)}, v{vAA} offset:{64*r + 512*p}')
    def ldB(st, r, q): A(f'ds_read_b128 {q4(vFB[st]+4*q)}, v{vBA} offset:{(7-q)*512 + 64*r}')
    A(f'''
    v_lshl_add_u32 v{vT2}, v{vT1}, 2, v{vT0}
    v_and_b32 v{vT2}, 15, v{vT2}
    v_lshl_add_u32 v{vT2}, v{vT1}, 4, v{vT2}
    v_lshlrev_b32 v{vPW}, 4, v{vT2}
    s_lshl_b32 s{sT0}, s{sWAVE}, 13
    s_add_u32 s{sT0}, s{sT0}, {L_P}
    v_add_u32 v{vPW}, s{sT0}, v{vPW}
    s_waitcnt lgkmcnt(0)
    s_barrier
    s_setprio {cfg.PRIO}
    ''')
    for i in range(8): ldA(0, 0, i)
    A('s_waitcnt lgkmcnt(0)')
    A('s_barrier')
    stamp('B2')
    for i in range(8): ldB(0, 0, i)
    order = [(p, j - p) for j in range(8) for p in range(j + 1)]
    for r in range(4):
        st = r & 1
        nxt = [(k, i) for i in range(8) for k in 'AB'] if r < 3 else []
        issued = 0
        written = 0
        for n, (p, q) in enumerate(order):
            j = p + q
            if p == 0 and r == 0:
                A(f's_waitcnt lgkmcnt({min(15, 8 - (j+1) + issued)})')
            c = '0' if (r == 0 and p == 0) else q4(vACC + 4*j)
            A(f'v_mfma_f32_16x16x32_bf16 {q4(vACC+4*j)}, {q4(vFA[st]+4*p)}, {q4(vFB[st]+4*q)}, {c}')
            if nxt and issued < 16 and n >= (4 if r == 0 else 1):
                k, i = nxt[issued]
                (ldA if k == 'A' else ldB)(st ^ 1, r + 1, i); issued += 1
            if r == 3:
                while written < 8 and n >= written*(written+3)//2 + 9 and written <= j - 1:
                    A(f'ds_write_b128 v{vPW}, {q4(vACC+4*written)} offset:{1024*written}'); written += 1
        if r < 3: A('s_waitcnt lgkmcnt(0)')
        else:
            while written < 8:
                A(f'ds_write_b128 v{vPW}, {q4(vACC+4*written)} offset:{1024*written}'); written += 1
    A('s_setprio 0')
    A('s_branch L_s1join')
    A('L_helper:')
    vKD = 116
    vKV = 132
    vXo = 140
    vI0 = 220
    vDUM = 230
    vWRr = 231
    vGW = 164
    vF2, vD2 = 54, 55
    wr_ = [0]
    def wvr(n_s3only, n_both, n_gonly):
        wr_[0] += 1; k = wr_[0]
        A(f'''
        s_cmp_lg_u32 s{sPEND}, 3
        s_cbranch_scc1 L_wr{k}a
        s_waitcnt vmcnt({n_both})
        L_wr{k}b:
        ''')
        late.append((f'L_wr{k}a', lambda: (A(f's_waitcnt vmcnt({min(n_s3only, n_gonly)})') if n_s3only == n_gonly else
                     A(f'''s_cmp_eq_u32 s{sPEND}, 2
                     s_cbranch_scc1 L_wr{k}c
                     s_waitcnt vmcnt({n_gonly})
                     s_branch L_wr{k}b
                     L_wr{k}c:
                     s_waitcnt vmcnt({n_s3only})'''), A(f's_branch L_wr{k}b'))))
    A(f'''
    s_cmp_lt_u32 s{sM}, {NG0}
    s_cselect_b32 s{sT0}, 0, 1
    s_cmp_lt_u32 s{sM}, {NS3}
    s_cselect_b32 s{sT1}, 2, 0
    s_add_u32 s{sPEND}, s{sT0}, s{sT1}
    ''')
    vWA = 144
    sWB = 12
    def wblock(tag):
        A(f'''
        s_cmp_ge_u32 s{sM}, {NS3}
        s_cbranch_scc1 L_h_now{tag}
        s_lshl_b32 s{sT5}, s{sT4}, 12
        s_add_u32 s{sT5}, s{sT5}, {L_WGU}
        ''')
        for i in range(4):
            A(f's_mov_b32 m0, s{sT5}')
            A(f'global_load_lds_dwordx4 v{vWA}, {P(sWB)}')
            if i < 3:
                A(f'v_add_u32 v{vWA}, {16*3584}, v{vWA}')
                A(f's_add_u32 s{sT5}, s{sT5}, 1024')
        if cfg.WDPOS == 's1': A(f'''
        s_lshl_b32 s{sT5}, s{sT4}, 11
        s_add_u32 s{sT5}, s{sT5}, {L_WGU + 16384}
        s_mov_b32 m0, s{sT5}
        s_add_u32 s{sT5}, s{sT5}, 1024
        global_load_lds_dwordx4 v{vWA+1}, {P(sWD)}
        s_mov_b32 m0, s{sT5}
        s_nop 0
        global_load_lds_dwordx4 v{vWA+2}, {P(sWD)}
        ''')
        A(f'L_h_now{tag}:')
    vSt = 188
    for i in range(2): unpack(vSt + 2*i, vGC + i)
    for i in range(4): A(f'v_mul_f32 v{vSt+4+i}, 0xbfb8aa3b, v{vSt+i}')
    for i in range(4): A(f'v_exp_f32 v{vSt+4+i}, v{vSt+4+i}')
    for i in range(4): A(f'v_add_f32 v{vSt+4+i}, 1.0, v{vSt+4+i}')
    for i in range(4): A(f'v_rcp_f32 v{vSt+4+i}, v{vSt+4+i}')
    for i in range(4): A(f'v_mul_f32 v{vSt+i}, v{vSt+i}, v{vSt+4+i}')
    for i in range(2): A(f'v_cvt_pk_bf16_f32 v{vGC+i}, v{vSt+2*i}, v{vSt+2*i+1}')
    A(f'''
    s_sub_u32 s{sT4}, s{sWAVE}, 4
    s_min_u32 s{sT5}, s{sM}, {NS3-1}
    s_lshr_b32 s{sT0}, s{sT5}, 2
    s_mul_i32 s{sT3}, s{sG}, 7
    s_add_u32 s{sT0}, s{sT0}, s{sT3}
    s_lshl_b32 s{sT2}, s{sT0}, 6
    s_and_b32 s{sT1}, s{sM}, 3
    s_lshl_b32 s{sT3}, s{sT1}, 1
    s_and_b32 s{sT5}, s{sWAVE}, 1
    s_add_u32 s{sT3}, s{sT3}, s{sT5}
    s_mul_i32 s{sT3}, s{sT3}, {64*3584}
    s_add_u32 s{sT2}, s{sT2}, s{sT3}
    v_lshrrev_b32 v{vWA}, 2, v{vLANE}
    v_mul_u32_u24 v{vWA}, 3584, v{vWA}
    v_and_b32 v{vT2}, 3, v0
    v_lshl_add_u32 v{vWA}, v{vT2}, 4, v{vWA}
    v_add_u32 v{vWA}, s{sT2}, v{vWA}
    s_cmp_ge_u32 s{sWAVE}, 6
    s_cselect_b32 s{sWB}, s{sWU}, s{sWG}
    s_cselect_b32 s{sWB+1}, s{sWU+1}, s{sWG+1}
    s_lshl_b32 s{sT2}, s{sT0}, 15
    s_lshl_b32 s{sT3}, s{sT1}, 8
    s_add_u32 s{sT2}, s{sT2}, s{sT3}
    s_lshl_b32 s{sT3}, s{sT4}, 13
    s_add_u32 s{sT2}, s{sT2}, s{sT3}
    v_lshrrev_b32 v{vT2}, 4, v{vLANE}
    v_lshlrev_b32 v{vT2}, 10, v{vT2}
    v_and_b32 v{vT3}, 15, v0
    v_lshl_add_u32 v{vT2}, v{vT3}, 4, v{vT2}
    v_add_u32 v{vWA+1}, s{sT2}, v{vT2}
    v_add_u32 v{vWA+2}, 4096, v{vWA+1}
    s_max_u32 s{sT0}, s{sM}, {NG0}
    s_sub_u32 s{sT0}, s{sT0}, {NG0}
    s_lshr_b32 s{sT1}, s{sT0}, 2
    s_and_b32 s{sT3}, s{sT0}, 3
    s_lshl_b32 s{sT3}, s{sT3}, 7
    s_lshl_b32 s{sT5}, s{sT4}, 5
    s_add_u32 s{sT3}, s{sT3}, s{sT5}
    v_lshrrev_b32 v{vKV}, 3, v{vLANE}
    v_lshl_add_u32 v{vKV}, v{vKV}, 2, s{sT3}
    s_movk_i32 s{sT3}, 6144
    v_mul_lo_u32 v{vKV}, v{vKV}, s{sT3}
    v_and_b32 v{vT3}, 7, v0
    v_lshl_add_u32 v{vKV}, v{vT3}, 4, v{vKV}
    s_lshl_b32 s{sT1}, s{sT1}, 10
    s_lshl_b32 s{sT2}, s{sG}, 7
    s_add_u32 s{sT1}, s{sT1}, s{sT2}
    v_add_u32 v{vKV}, s{sT1}, v{vKV}
    v_lshl_add_u32 v{vKV+2}, v{vLANE}, 1, s{sT2}
    v_subrev_u32 v{vKV+3}, 0x8000, v{vJR}
    s_cmp_lg_u32 s{sWAVE}, 4
    s_cbranch_scc1 L_h_b2a
    s_lshr_b32 s{sT2}, s{sM}, 2
    s_lshl_b32 s{sT2}, s{sT2}, 7
    s_lshl_b32 s{sT1}, s{sG}, 10
    s_add_u32 s{sT2}, s{sT2}, s{sT1}
    s_add_u32 s{sT2}, s{sT2}, {FL1}
    v_and_b32 v{vT0}, 31, v0
    v_lshl_add_u32 v{vT0}, v{vT0}, 2, s{sT2}
    s_lshl_b32 s{sT0}, s{sWID}, 13
    s_add_u32 s{sT0}, s{sT0}, {XB1}
    v_lshl_add_u32 v{vT1}, v{vLANE}, 4, s{sT0}
    v_add_u32 v{vT3}, 4096, v{vT1}
    s_mov_b32 m0, {L_KVR}
    ''')
    poll('L_poll1', f'global_load_dword v{vT2}, v{vT0}, {P(sWS)} sc1', f'v_cmp_ne_u32 vcc, s{sTAG}, v{vT2}')
    for i in range(4): A(f'global_load_lds_dwordx4 v{vT1}, {P(sWS)} offset:{1024*i} sc1')
    A(f's_mov_b32 m0, {L_KVR + KVS}')
    for i in range(4): A(f'global_load_lds_dwordx4 v{vT3}, {P(sWS)} offset:{1024*i} sc1')
    stamp('poll1')
    uwrites()
    A(f'''
    L_h_b2a:
    s_waitcnt lgkmcnt(0)
    s_barrier
    global_load_dwordx4 {q4(vX)}, v{vJR}, {P(sX)}
    global_load_dwordx4 {q4(vXo)}, v{vKV+3}, {P(sX)}
    global_load_ushort v{vWRr}, v{vKV+2}, {P(sWR)}
    s_cmp_lt_u32 s{sM}, {NG0}
    s_cbranch_scc1 L_h_nog
    ''')
    for i in range(4):
        A(f'global_load_dwordx4 {q4(vGW+4*i)}, v{vKV}, {P(sWM)}')
        if i < 3: A(f'v_add_u32 v{vKV}, s{sT3}, v{vKV}')
    A('L_h_nog:')
    wvr(3, 7, 7)
    A('s_barrier')
    wblock('a')
    A(f'''
    s_lshl_b32 s{sT0}, s{sWAVE}, 9
    s_sub_u32 s{sT0}, {L_KVR + 4088}, s{sT0}
    v_lshlrev_b32 v{vT0}, 3, v{vLANE}
    v_sub_u32 v{vT0}, s{sT0}, v{vT0}
    ds_read_b64 {pr(vKV)}, v{vT0}
    ds_read_b64 {pr(vKV+2)}, v{vT0} offset:{KVS}
    ds_read_b64 {pr(vKV+4)}, v{vT0} offset:2048
    ds_read_b64 {pr(vKV+6)}, v{vT0} offset:{KVS+2048}
    s_lshl_b32 s{sD0}, s{sDV}, 16
    s_and_b32 s{sD1}, s{sDV}, s{sMASK}
    s_waitcnt lgkmcnt(0)
    ''')
    for t in range(2):
        for c in range(2):
            b = vKD + 8*t + 4*c; s = vKV + 4*t + 2*c
            A(f'v_and_b32 v{b}, s{sMASK}, v{s+1}')
            A(f'v_lshlrev_b32 v{b+1}, 16, v{s+1}')
            A(f'v_and_b32 v{b+2}, s{sMASK}, v{s}')
            A(f'v_lshlrev_b32 v{b+3}, 16, v{s}')
            for i in range(4): A(f'v_mul_f32 v{b+i}, s{sD0+c}, v{b+i}')
            for i in range(4): rnd(b + i)
    A(f'''
    s_lshl_b32 s{sT1}, s{sT4}, 11
    s_add_u32 s{sT1}, s{sT1}, {L_KD}
    v_lshl_add_u32 v{vT0}, v{vLANE}, 4, s{sT1}
    ds_write_b128 v{vT0}, {q4(vKD+8)}
    ds_write_b128 v{vT0}, {q4(vKD+12)} offset:1024
    ''')
    A(f'''
    s_lshl_b32 s{sT1}, s{sT4}, 10
    s_add_u32 s{sT1}, s{sT1}, {L_XS}
    v_lshl_add_u32 v{vT0}, v{vLANE}, 4, s{sT1}
    ''')
    wvr(*((7, 11, 5) if cfg.WDPOS == 's1' else (5, 9, 5)))
    A(f'ds_write_b128 v{vT0}, {q4(vXo)}')
    vXq = 186
    vS0 = 196
    for i in range(4): unpack(vXp + 2*i, vX + i)
    for i in range(4): unpack(vXq + 2*i, vXo + i)
    for (xb, u, t) in ((vXp, vS0, 204), (vXq, vS0 + 4, 208)):
        A(f'v_pk_add_f32 {pr(t)}, {pr(xb)}, {pr(xb+2)}')
        A(f'v_pk_mul_f32 {pr(t+2)}, {pr(xb)}, {pr(xb)}')
        for i in range(1, 4): A(f'v_pk_fma_f32 {pr(t+2)}, {pr(xb+2*i)}, {pr(xb+2*i)}, {pr(t+2)}')
        for i in range(2, 4): A(f'v_pk_add_f32 {pr(t)}, {pr(t)}, {pr(xb+2*i)}')
        A(f'v_add_f32 v{u}, v{t}, v{t+1}')
        A(f'v_add_f32 v{u+2}, v{t+2}, v{t+3}')
    allred([vS0, vS0 + 2, vS0 + 4, vS0 + 6], [204, 205, 206, 207])
    A(f'''
    v_mov_b32 v{vS0+1}, s{sTAG}
    v_mov_b32 v{vS0+3}, s{sTAG}
    v_mov_b32 v{vS0+5}, s{sTAG}
    v_mov_b32 v{vS0+7}, s{sTAG}
    v_add_u32 v{vT0}, {X0 - 512}, v{vXA}
    global_store_dwordx4 v{vT0}, {q4(vS0)}, {P(sWS)} offset:512 sc1
    global_store_dwordx4 v{vT0}, {q4(vS0+4)}, {P(sWS)} sc1
    ''')
    stamp('gemv0')
    def gemv_block(nb, ng):
        A(f'''
        s_cmp_lt_u32 s{sM}, {NG0}
        s_cbranch_scc1 L_g_done
        s_cmp_lt_u32 s{sWAVE}, 4
        s_cbranch_scc1 L_g_done
        ''')
        wvr(63, nb, ng)
        vSC = vGC
        vGA = 204
        vGP = 212
        A(f's_mov_b32 s{sT0}, 0x05040100')
        A(f's_mov_b32 s{sT1}, 0x07060302')
        for rp in range(2):
            w0, w1 = vGW + 8*rp, vGW + 8*rp + 4
            for d in range(4):
                A(f'v_perm_b32 v{vGP+2*d}, v{w1+d}, v{w0+d}, s{sT0}')
                A(f'v_perm_b32 v{vGP+2*d+1}, v{w1+d}, v{w0+d}, s{sT1}')
            for c in range(8): A(f'v_dot2_f32_bf16 v{vGA+c}, v{vGP+c}, v{vSC+rp}, ' + (f'v{vGA+c}' if rp else '0'))
        for c in range(4): A(f'v_permlane32_swap_b32 v{vGA+c}, v{vGA+c+4}')
        for c in range(4): A(f'v_add_f32 v{vGA+c}, v{vGA+c}, v{vGA+c+4}')
        for c in range(2): A(f'v_permlane16_swap_b32 v{vGA+c}, v{vGA+c+2}')
        for c in range(2): A(f'v_add_f32 v{vGA+c}, v{vGA+c}, v{vGA+c+2}')
        for c in range(2): A(f'v_add_f32_dpp v{vGA+c}, v{vGA+c}, v{vGA+c} row_ror:8 {DPPM}')
        A(f'''
        v_and_b32 v{vT0}, 8, v0
        v_cmp_ne_u32 vcc, 0, v{vT0}
        v_cndmask_b32 v{vGA}, v{vGA}, v{vGA+1}, vcc
        v_and_b32 v{vT0}, 7, v0
        v_lshrrev_b32 v{vT1}, 3, v{vLANE}
        v_lshl_add_u32 v{vT0}, v{vT0}, 3, v{vT1}
        s_sub_u32 s{sT0}, s{sWAVE}, 4
        s_lshl_b32 s{sT0}, s{sT0}, 8
        s_add_u32 s{sT0}, s{sT0}, {L_GP}
        v_lshl_add_u32 v{vT0}, v{vT0}, 2, s{sT0}
        ds_write_b32 v{vT0}, v{vGA}
        v_mov_b32 v{vT1}, {L_CNT}
        v_mov_b32 v{vT2}, 1
        s_waitcnt lgkmcnt(0)
        s_mov_b64 exec, 1
        ds_add_rtn_u32 v{vT2}, v{vT1}, v{vT2}
        s_mov_b64 exec, -1
        s_waitcnt lgkmcnt(0)
        v_readfirstlane_b32 s{sT0}, v{vT2}
        s_cmp_lg_u32 s{sT0}, 3
        s_cbranch_scc1 L_g_done
        v_lshlrev_b32 v{vT0}, 2, v{vLANE}
        ds_read2st64_b32 {pr(vGA)}, v{vT0} offset0:{L_GP//256} offset1:{L_GP//256+1}
        ds_read2st64_b32 {pr(vGA+2)}, v{vT0} offset0:{L_GP//256+2} offset1:{L_GP//256+3}
        s_sub_u32 s{sT0}, s{sM}, {NG0}
        s_lshl_b32 s{sT0}, s{sT0}, 9
        s_lshl_b32 s{sT1}, s{sG}, 14
        s_add_u32 s{sT0}, s{sT0}, s{sT1}
        s_add_u32 s{sT0}, s{sT0}, {MODP}
        v_lshl_add_u32 v{vT0}, v{vLANE}, 3, s{sT0}
        s_waitcnt lgkmcnt(0)
        v_pk_add_f32 {pr(vGA)}, {pr(vGA)}, {pr(vGA+2)}
        v_add_f32 v{vGA}, v{vGA}, v{vGA+1}
        v_mov_b32 v{vGA+1}, s{sTAG}
        ''')
        lstore(f'global_store_dwordx2 v{vT0}, {pr(vGA)}, {P(sWS)}')
        A('L_g_done:')
    if cfg.GPOS == 's1': gemv_block(8 if cfg.WDPOS == 's1' else 6, 2)
    A('L_s1join:')
    stamp('s1join')
    vPp0 = 148
    vKDe = 116
    vMn, vInv = 64, 65
    vH = 232
    vPar = 164
    vU = 46
    def rdpar(lst):
        for pi in lst:
            A(f'ds_read_b128 {q4(vPar+8*pi)}, v{vPA} offset:{L_MOD + 256*pi}')
            A(f'ds_read_b128 {q4(vPar+8*pi+4)}, v{vPA} offset:{L_MOD + 256*pi + 16}')
    A(f'''
    v_lshrrev_b32 v{vT0}, 2, v{vLANE}
    v_and_b32 v{vT1}, 3, v0
    v_lshl_add_u32 v{vT0}, v{vT1}, 2, v{vT0}
    v_and_b32 v{vT0}, 15, v{vT0}
    v_lshl_add_u32 v{vT0}, v{vT1}, 4, v{vT0}
    v_lshlrev_b32 v{vT0}, 4, v{vT0}
    s_lshl_b32 s{sT0}, s{sWAVE}, 10
    s_add_u32 s{sT1}, s{sT0}, {L_P}
    v_add_u32 v{vT0}, s{sT1}, v{vT0}
    s_lshl_b32 s{sT1}, s{sWAVE}, 11
    s_add_u32 s{sT1}, s{sT1}, {L_KD}
    v_lshl_add_u32 v{vT1}, v{vLANE}, 4, s{sT1}
    s_lshl_b32 s{sT2}, s{sWID}, 13
    s_add_u32 s{sT2}, s{sT2}, {XB1}
    v_lshl_add_u32 v{vT2}, v0, 4, s{sT2}
    v_lshlrev_b32 v{vT3}, 4, v0
    v_add_u32 v{vT3}, {L_XS}, v{vT3}
    v_lshrrev_b32 v{vPA}, 3, v{vLANE}
    v_lshlrev_b32 v{vPA}, 5, v{vPA}
    s_waitcnt lgkmcnt(0)
    s_barrier
    ''')
    for w in range(4): A(f'ds_read_b128 {q4(vPp0+4*w)}, v{vT0} offset:{8192*w}')
    A(f'''
    s_cmp_ge_u32 s{sWAVE}, 4
    s_cbranch_scc1 L_nokd
    ds_read_b128 {q4(vKDe)}, v{vT1}
    ds_read_b128 {q4(vKDe+4)}, v{vT1} offset:1024
    ds_read_b128 {q4(vX)}, v{vT3}
    L_nokd:
    s_waitcnt lgkmcnt(0)
    ''')
    for c in range(2):
        for h in range(2): A(f'v_pk_add_f32 {pr(vPp0+8*c+2*h)}, {pr(vPp0+8*c+2*h)}, {pr(vPp0+8*c+4+2*h)}')
    for c in range(2):
        for i in range(4): rnd(vPp0 + 8*c + i)
    for c in range(2):
        for h in range(2): A(f'v_pk_add_f32 {pr(vPp0+8*c+2*h)}, {pr(vPp0+8*c+2*h)}, {pr(vKDe+4*c+2*h)}')
    for i in range(4): A(f'v_cvt_pk_bf16_f32 v{vPp0+4+i}, v{vPp0+i}, v{vPp0+8+i}')
    lstore(f'global_store_dwordx4 v{vT2}, {q4(vPp0+4)}, {P(sWS)}')
    stamp('zst')
    vMQ = 140
    vXCA = 139
    vZA = 68
    A(f'''
    v_mov_b32 v{vXCA}, 0
    s_min_u32 s{sT5}, s{sWAVE}, 5
    s_cmp_eq_u32 s{sWAVE}, 6
    s_cselect_b32 s{sT5}, 3, s{sT5}
    s_cmp_eq_u32 s{sWAVE}, 7
    s_cselect_b32 s{sT5}, 4, s{sT5}
    s_lshl_b32 s{sT1}, s{sT5}, 11
    s_lshl_b32 s{sT2}, s{sG}, 14
    s_add_u32 s{sT1}, s{sT1}, s{sT2}
    s_add_u32 s{sT1}, s{sT1}, {MODP}
    v_lshl_add_u32 v{vD2+1}, v{vLANE}, 4, s{sT1}
    v_add_u32 v{vD2+2}, {X0}, v{vXL}
    ''')
    modld = '\n'.join([f'global_load_dwordx4 {q4(vMQ+4*i)}, v{vD2+1}, {P(sWS)} offset:{1024*i} sc1' for i in range(2)])
    chk = [f'v_xor_b32 v{vMQ+2*i+1}, s{sTAG}, v{vMQ+2*i+1}' for i in range(4)]
    chk += [f'v_or3_b32 v{vMQ+1}, v{vMQ+1}, v{vMQ+3}, v{vMQ+5}', f'v_or_b32 v{vMQ+1}, v{vMQ+1}, v{vMQ+7}', f'v_cmp_ne_u32 vcc, 0, v{vMQ+1}']
    x0ld = f'global_load_dwordx4 {q4(vI0)}, v{vD2+2}, {P(sWS)} sc1'
    x0chk = f'''v_xor_b32 v{vI0+1}, s{sTAG}, v{vI0+1}
         v_xor_b32 v{vI0+3}, s{sTAG}, v{vI0+3}
         v_or_b32 v{vI0+1}, v{vI0+1}, v{vI0+3}
         v_cmp_ne_u32 vcc, 0, v{vI0+1}'''
    A(x0ld)
    for i in range(4): unpack(vXp + 2*i, vX + i)
    if cfg.GPOS == 'zst': gemv_block(10, 4)
    A(f'''
    v_add_u32 v{vT1}, {FL2}, v{vA}
    s_lshr_b32 s{sT2}, s{sM}, 2
    s_lshl_b32 s{sT2}, s{sT2}, 7
    s_lshl_b32 s{sT3}, s{sG}, 10
    s_add_u32 s{sT2}, s{sT2}, s{sT3}
    s_lshl_b32 s{sT3}, s{sWAVE}, 4
    s_add_u32 s{sT2}, s{sT2}, s{sT3}
    s_add_u32 s{sT2}, s{sT2}, {FL2}
    v_and_b32 v{vF2}, 3, v0
    v_lshl_add_u32 v{vF2}, v{vF2}, 2, s{sT2}
    s_lshl_b32 s{sT3}, s{sWAVE}, 1
    v_subrev_u32 v{vD2}, s{sT3}, v0
    v_and_b32 v{vD2}, 15, v{vD2}
    v_lshlrev_b32 v{vD2}, 4, v{vD2}
    v_lshrrev_b32 v{vT2}, 4, v0
    v_lshl_add_u32 v{vD2}, v{vT2}, 13, v{vD2}
    s_lshl_b32 s{sT2}, s{sG}, 18
    s_lshl_b32 s{sT3}, s{sM}, 8
    s_add_u32 s{sT2}, s{sT2}, s{sT3}
    s_add_u32 s{sT2}, s{sT2}, {XB1}
    v_add_u32 v{vD2}, s{sT2}, v{vD2}
    s_lshl_b32 s{sT2}, s{sWAVE}, 10
    s_add_u32 s{sT2}, s{sT2}, {L_Z}
    s_mov_b32 m0, s{sT2}
    v_lshrrev_b32 v{vT0}, 3, v{vLANE}
    v_bfe_u32 v{vT2}, v0, 2, 1
    v_lshl_add_u32 v{vT2}, s{sWAVE}, 1, v{vT2}
    v_lshl_add_u32 v{vT2}, v{vT0}, 1, v{vT2}
    v_and_b32 v{vT2}, 15, v{vT2}
    v_lshlrev_b32 v{vT2}, 4, v{vT2}
    v_lshl_add_u32 v{vZA}, v{vT0}, 10, v{vT2}
    v_and_b32 v{vT2}, 3, v0
    v_lshl_add_u32 v{vZA}, v{vT2}, 2, v{vZA}
    s_mov_b32 s{sT0}, s{sT5}
    s_waitcnt vmcnt(1)
    s_mov_b64 exec, 1
    ''')
    lstore(f'global_store_dword v{vT1}, v{vB}, {P(sWS)}')
    A('s_mov_b64 exec, -1')
    stamp('flag2')
    A(modld)
    A('s_waitcnt vmcnt(3)')
    A(x0chk)
    A('s_cbranch_vccnz L_pollx0')
    A('L_pollx0_back:')
    late.append(('L_pollx0', lambda: (poll('L_pollx0b', x0ld, x0chk), A('s_nop 1'), A('s_branch L_pollx0_back'))))
    allred([vI0, vI0 + 2], [vI0 + 1, vI0 + 3])
    lnstats(vI0, vI0 + 2, vI0 + 1, vMn, vInv)
    for i in range(8): A(f'v_sub_f32 v{vH+i}, v{vXp+i}, v{vMn}')
    for i in range(8): rnd(vH + i)
    for i in range(8): A(f'v_mul_f32 v{vH+i}, v{vH+i}, v{vInv}')
    for i in range(8): rnd(vH + i)
    A('s_waitcnt vmcnt(0)')
    A('\n'.join(chk))
    A('s_cbranch_vccnz L_pollm')
    A('L_pollm_back:')
    late.append(('L_pollm', lambda: (poll('L_pollmb', modld, '\n'.join(chk)), A('s_branch L_pollm_back'))))
    stamp('modok')
    A(f'global_load_dword v{vI0}, v{vF2}, {P(sWS)} sc1')
    A(f'v_add_f32 v{vMQ}, v{vMQ}, v{vMQ+4}')
    A(f'v_add_f32 v{vMQ+2}, v{vMQ+2}, v{vMQ+6}')
    A(f'''
    v_permlane32_swap_b32 v{vMQ}, v{vMQ+2}
    v_add_f32 v{vMQ}, v{vMQ}, v{vMQ+2}
    v_cvt_pk_bf16_f32 v{vMQ}, 0, v{vMQ}
    v_add_f32 v{vMQ+1}, 1.0, v{vMQ}
    v_cvt_pk_bf16_f32 v{vMQ+1}, 0, v{vMQ+1}
    s_cmp_eq_u32 s{sT0}, 1
    s_cselect_b64 vcc, -1, 0
    s_cmp_eq_u32 s{sT0}, 4
    s_cselect_b64 vcc, -1, vcc
    v_cndmask_b32 v{vMQ}, v{vMQ}, v{vMQ+1}, vcc
    v_and_b32 v{vT0}, 31, v0
    v_lshrrev_b32 v{vT1}, 5, v{vLANE}
    v_lshl_add_u32 v{vT0}, v{vT0}, 1, v{vT1}
    v_lshlrev_b32 v{vT0}, 2, v{vT0}
    s_cmp_ge_u32 s{sWAVE}, 6
    s_cbranch_scc1 L_m67
    s_lshl_b32 s{sT1}, s{sT0}, 8
    v_add_u32 v{vT0}, s{sT1}, v{vT0}
    ds_write_b32 v{vT0}, v{vMQ} offset:{L_MOD}
    s_branch L_mjoin
    L_m67:
    ds_bpermute_b32 v{vT1}, v{vT0}, v{vWRr}
    s_waitcnt lgkmcnt(0)
    v_lshlrev_b32 v{vT1}, 16, v{vT1}
    v_mul_f32 v{vMQ+4}, v{vMQ}, v{vT1}
    s_cmp_eq_u32 s{sWAVE}, 7
    s_cselect_b32 s{sT1}, 0, 256
    s_cselect_b32 s{sT2}, 0, 8
    v_add_u32 v{vT0}, s{sT1}, v{vT0}
    ds_write_b32 v{vT0}, v{vMQ+4} offset:{L_MOD + 6*256}
    ''')
    fullred([vMQ + 4], [vMQ + 6])
    A(f'''
    v_mov_b32 v{vMQ+5}, s{sTAG}
    s_lshl_b32 s{sT0}, s{sM}, 7
    s_lshl_b32 s{sT1}, s{sG}, 4
    s_add_u32 s{sT0}, s{sT0}, s{sT1}
    s_add_u32 s{sT0}, s{sT0}, s{sT2}
    s_add_u32 s{sT0}, s{sT0}, {XC}
    v_lshl_add_u32 v{vXCA}, v{vLANE}, 12, s{sT0}
    L_mjoin:
    ''')
    A(f'''
    s_waitcnt vmcnt(0)
    v_cmp_ne_u32 vcc, s{sTAG}, v{vI0}
    s_mov_b32 s{sT4}, 0
    s_cbranch_vccnz L_p2n
    global_load_lds_dwordx4 v{vD2}, {P(sWS)} sc1
    s_mov_b32 s{sT4}, 1
    L_p2n:
    s_waitcnt lgkmcnt(0)
    s_barrier
    ''')
    rdpar((1, 0, 2, 6))
    A('s_waitcnt lgkmcnt(4)')
    for i in range(8): A(f'v_mul_f32 v{vH+i}, v{vH+i}, v{vPar+8+i}')
    for i in range(8): rnd(vH + i)
    for i in range(8): A(f'v_add_f32 v{vH+i}, v{vH+i}, v{vPar+i}')
    for i in range(8): rnd(vH + i)
    A(f'''
    s_cmp_eq_u32 s{sT4}, 1
    s_cbranch_scc1 L_p2d
    ''')
    poll('L_poll2', f'global_load_dword v{vT2}, v{vF2}, {P(sWS)} sc1', f'v_cmp_ne_u32 vcc, s{sTAG}, v{vT2}')
    A(f'global_load_lds_dwordx4 v{vD2}, {P(sWS)} sc1')
    A('L_p2d:')
    stamp('poll2')
    stamp('hdone')
    A('s_waitcnt vmcnt(0)')
    A('s_barrier')
    A(f'''
    s_cmp_lt_u32 s{sWAVE}, 6
    s_cbranch_scc1 L_noxc
    s_mov_b64 exec, 0xff
    global_store_dwordx2 v{vXCA}, {pr(vMQ+4)}, {P(sWS)} sc1
    s_mov_b64 exec, -1
    L_noxc:
    ''')
    stamp('B4')
    vZr = 70
    vZ1 = 74
    vSQ = 82
    A(f'ds_read2st64_b32 {pr(vZr)}, v{vZA} offset0:{L_Z//256} offset1:{L_Z//256+1}')
    A(f'ds_read2st64_b32 {pr(vZr+2)}, v{vZA} offset0:{L_Z//256+2} offset1:{L_Z//256+3}')
    A(f'v_add_u32 v{vT0}, {X3}, v{vXA}')
    A('s_waitcnt lgkmcnt(0)')
    for i in range(4): unpack(vZ1 + 2*i, vZr + i)
    for i in range(8): A(f'v_mul_f32 v{vZ1+i}, v{vZ1+i}, v{vH+i}')
    for i in range(8): rnd(vZ1 + i)
    for i in range(8): A(f'v_mul_f32 v{vZ1+i}, v{vZ1+i}, v{vPar+16+i}')
    for i in range(8): rnd(vZ1 + i)
    for i in range(8): A(f'v_add_f32 v{vZ1+i}, v{vZ1+i}, v{vXp+i}')
    for i in range(8): rnd(vZ1 + i)
    S_, Q_, P_ = vSQ, vSQ + 2, vSQ + 4
    A(f'v_pk_add_f32 {pr(S_)}, {pr(vZ1)}, {pr(vZ1+2)}')
    A(f'v_pk_mul_f32 {pr(Q_)}, {pr(vZ1)}, {pr(vZ1)}')
    A(f'v_pk_mul_f32 {pr(P_)}, {pr(vZ1)}, {pr(vPar+48)}')
    for i in range(1, 4):
        A(f'v_pk_fma_f32 {pr(Q_)}, {pr(vZ1+2*i)}, {pr(vZ1+2*i)}, {pr(Q_)}')
        A(f'v_pk_fma_f32 {pr(P_)}, {pr(vZ1+2*i)}, {pr(vPar+48+2*i)}, {pr(P_)}')
        if i >= 2: A(f'v_pk_add_f32 {pr(S_)}, {pr(S_)}, {pr(vZ1+2*i)}')
    vUn = vSQ + 6
    A(f'v_add_f32 v{vUn}, v{S_}, v{S_+1}')
    A(f'v_add_f32 v{vUn+1}, v{Q_}, v{Q_+1}')
    A(f'v_add_f32 v{vUn+2}, v{P_}, v{P_+1}')
    A(f'v_mov_b32 v{vUn+3}, s{sTAG}')
    allred([vUn, vUn + 1, vUn + 2], [S_, Q_, P_])
    A(f'global_store_dwordx4 v{vT0}, {q4(vUn)}, {P(sWS)} sc1')
    stamp('x3st')
    rdpar((3, 4, 5))
    if cfg.WBL2:
        A(f'''
        s_cmp_lg_u32 s{sM}, 31
        s_cbranch_scc1 L_nowb
        s_cmp_lg_u32 s{sWAVE}, 7
        s_cbranch_scc1 L_nowb
        buffer_wbl2 sc1
        L_nowb:
        ''')
    if cfg.WDPOS == 'x3':
        A(f'''
        s_cmp_ge_u32 s{sM}, {NS3}
        s_cbranch_scc1 L_nowd
        s_lshr_b32 s{sT0}, s{sM}, 2
        s_mul_i32 s{sT1}, s{sG}, 7
        s_add_u32 s{sT0}, s{sT0}, s{sT1}
        s_and_b32 s{sT1}, s{sM}, 3
        s_lshl_b32 s{sT4}, s{sWAVE}, 10
        s_add_u32 s{sT4}, s{sT4}, {L_WGU + 16384}
        s_mov_b32 m0, s{sT4}
        s_lshl_b32 s{sT2}, s{sT0}, 15
        s_lshl_b32 s{sT3}, s{sT1}, 8
        s_add_u32 s{sT2}, s{sT2}, s{sT3}
        v_lshrrev_b32 v{vT2}, 4, v0
        v_lshlrev_b32 v{vT2}, 10, v{vT2}
        v_and_b32 v{vT3}, 15, v0
        v_lshl_add_u32 v{vT2}, v{vT3}, 4, v{vT2}
        v_add_u32 v{vT2}, s{sT2}, v{vT2}
        global_load_lds_dwordx4 v{vT2}, {P(sWD)}
        L_nowd:
        ''')
    A(f'''
    s_lshr_b32 s{sT2}, s{sM}, 2
    s_lshl_b32 s{sT2}, s{sT2}, 5
    s_lshl_b32 s{sT3}, s{sG}, 2
    s_add_u32 s{sT2}, s{sT2}, s{sT3}
    s_and_b32 s{sT3}, s{sM}, 3
    s_add_u32 s{sT2}, s{sT2}, s{sT3}
    s_mul_i32 s{sPT}, s{sT2}, {NPROD*64}
    s_add_u32 s{sPT}, s{sPT}, {PART}
    v_lshrrev_b32 v{vT1}, 3, v{vLANE}
    s_lshl_b32 s{sT0}, s{sWID}, 7
    s_add_u32 s{sT0}, s{sT0}, {XC}
    v_lshl_add_u32 v{vT1}, v{vT1}, 4, s{sT0}
    v_add_u32 v{vT0}, {X3}, v{vXL}
    ''')
    vR3 = 92
    if cfg.X3SLP:
        A(f'global_load_dwordx4 {q4(vU+4)}, v{vT1}, {P(sWS)} sc1')
        A(f's_sleep {cfg.X3SLP}')
        A(f'global_load_dwordx4 {q4(vR3)}, v{vT0}, {P(sWS)} sc1')
        xck = f'''v_xor_b32 v{vT2}, s{sTAG}, v{vU+5}
         v_xor_b32 v{vT3}, s{sTAG}, v{vU+7}
         v_or_b32 v{vT2}, v{vT2}, v{vT3}
         v_cmp_ne_u32 vcc, 0, v{vT2}'''
        A('s_waitcnt vmcnt(1)')
        A(xck)
        A('s_cbranch_vccnz L_pollc')
        A('L_pollc_back:')
        late.append(('L_pollc', lambda: (poll('L_pollcb', f'global_load_dwordx4 {q4(vU+4)}, v{vT1}, {P(sWS)} sc1', xck), A('s_nop 1'), A('s_branch L_pollc_back'))))
        stamp('xcok')
    else:
        poll('L_pollc', f'global_load_dwordx4 {q4(vU+4)}, v{vT1}, {P(sWS)} sc1',
             f'''v_xor_b32 v{vT2}, s{sTAG}, v{vU+5}
             v_xor_b32 v{vT3}, s{sTAG}, v{vU+7}
             v_or_b32 v{vT2}, v{vT2}, v{vT3}
             v_cmp_ne_u32 vcc, 0, v{vT2}''')
        stamp('xcok')
        vR3 = 92
        A(f'global_load_dwordx4 {q4(vR3)}, v{vT0}, {P(sWS)} sc1')
    allred([vU + 4, vU + 6], [S_, Q_])
    A(f'''
    v_and_b32 v{vT1}, 7, v0
    v_lshl_add_u32 v{vT1}, s{sWAVE}, 3, v{vT1}
    s_lshl_b32 s{sT0}, s{sM}, 6
    s_sub_u32 s{sT0}, 2047, s{sT0}
    v_sub_u32 v{vU}, s{sT0}, v{vT1}
    v_lshlrev_b32 v{vU+1}, 2, v{vT1}
    v_mov_b32 v{vT2}, 0
    ds_write_b32 v{vU+1}, v{vT2} offset:{L_ST}
    s_waitcnt vmcnt(0)
    v_cmp_ne_u32 vcc, s{sTAG}, v{vR3+3}
    s_cbranch_vccnz L_poll3
    L_poll3_back:
    ''')
    late.append(('L_poll3', lambda: (poll('L_poll3b', f'global_load_dwordx4 {q4(vR3)}, v{vT0}, {P(sWS)} sc1', f'v_cmp_ne_u32 vcc, s{sTAG}, v{vR3+3}'),
                 A('s_nop 1'), A('s_branch L_poll3_back'))))
    stamp('x3ok')
    allred([vR3, vR3 + 1, vR3 + 2], [S_, Q_, P_])
    lnstats(vR3, vR3 + 1, S_, vMn, vInv)
    vKey = 96
    A(f'''
    v_fma_f32 v{vKey}, -v{vMn}, v{vU+4}, v{vR3+2}
    v_fma_f32 v{vKey}, v{vKey}, v{vInv}, v{vU+6}
    v_cvt_pk_bf16_f32 v{vKey}, 0, v{vKey}
    v_ashrrev_i32 v{vT0}, 31, v{vKey}
    v_or_b32 v{vT0}, 0x80000000, v{vT0}
    v_and_b32 v{vT0}, s{sMASK}, v{vT0}
    v_xor_b32 v{vKey}, v{vKey}, v{vT0}
    v_or_b32 v{vKey}, v{vKey}, v{vU}
    ds_write_b32 v{vU+1}, v{vKey} offset:{L_KEY}
    s_waitcnt lgkmcnt(0)
    s_barrier
    ds_read_b128 {q4(vR3)}, v{vPA} offset:{L_KEY}
    ds_read_b128 {q4(vSQ)}, v{vPA} offset:{L_KEY+16}
    ''')
    vH2 = 56
    for i in range(8): A(f'v_sub_f32 v{vH2+i}, v{vZ1+i}, v{vMn}')
    for i in range(8): rnd(vH2 + i)
    A('s_waitcnt lgkmcnt(0)')
    vRk = 97
    A(f'v_mov_b32 v{vRk}, 0')
    ks = [vR3 + i for i in range(4)] + [vSQ + i for i in range(4)]
    for half in range(2):
        for i in range(4): A(f'v_cmp_gt_u32 {P(sC0+2*i)}, v{ks[4*half+i]}, v{vKey}')
        for i in range(4): A(f'v_addc_co_u32 v{vRk}, {P(sC0+2*i)}, 0, v{vRk}, {P(sC0+2*i)}')
    allred([vRk], [vT0], add='v_add_u32')
    A(f'''
    s_lshl_b32 s{sT0}, s{sWID}, 6
    s_add_u32 s{sT0}, s{sT0}, {KEYS}
    v_lshl_add_u32 v{vT0}, v{vRk}, 3, s{sT0}
    v_mov_b32 v{vR3}, v{vKey}
    v_mov_b32 v{vR3+1}, s{sTAG}
    v_cmp_gt_u32 {P(sEX)}, 8, v{vRk}
    s_and_b64 exec, {P(sEX)}, 0xff
    s_cbranch_execz L_nokey
    ''')
    lstore(f'global_store_dwordx2 v{vT0}, {pr(vR3)}, {P(sWS)}')
    A('L_nokey:')
    A('s_mov_b64 exec, -1')
    stamp('keyst')
    vWf = 130
    vKs = 154
    vM2, vM1 = 163, 164
    vRow = vKs + 2
    vPk = 110
    vOut = 126
    def h2calc():
        for i in range(8): A(f'v_mul_f32 v{vH2+i}, v{vH2+i}, v{vInv}')
        for i in range(8): rnd(vH2 + i)
        for i in range(8): A(f'v_mul_f32 v{vH2+i}, v{vH2+i}, v{vPar+32+i}')
        for i in range(8): rnd(vH2 + i)
        for i in range(8): A(f'v_add_f32 v{vH2+i}, v{vH2+i}, v{vPar+24+i}')
        for i in range(4):
            A(f'v_cvt_pk_bf16_f32 v{vPk+2*i}, v{vH2+2*i}, v{vH2+2*i+1}')
            A(f'v_mov_b32 v{vPk+2*i+1}, s{sTAG}')
        for i in range(4):
            A(f'v_cvt_pk_bf16_f32 v{vPk+8+2*i}, v{vZ1+2*i}, v{vZ1+2*i+1}')
            A(f'v_mov_b32 v{vPk+8+2*i+1}, s{sTAG}')
    def outcalc():
        for i in range(4): unpack(vH2 + 2*i, vPk + 2*i)
        for i in range(8): A(f'v_mul_f32 v{vH2+i}, v{vH2+i}, v{vPar+40+i}')
        for i in range(8): rnd(vH2 + i)
        for i in range(8): A(f'v_add_f32 v{vH2+i}, v{vH2+i}, v{vZ1+i}')
        for i in range(4): A(f'v_cvt_pk_bf16_f32 v{vOut+i}, v{vH2+2*i}, v{vH2+2*i+1}')
    def outstore():
        A(f'''
        s_andn2_b64 exec, exec, {P(sEX)}
        s_cbranch_execz L_noout3
        global_store_dwordx4 v{vJR}, {q4(vOut)}, {P(sOUT)} {cfg.OUT_FL}
        L_noout2:
        s_mov_b64 exec, -1
        ''')
    late.append(('L_noout3', lambda: (A('s_waitcnt vmcnt(0)'), A('s_branch L_noout2'))))
    h2calc()
    vGA_, vGS, vGL, vPS, vGW_, vGR_ = 142, 143, 144, 145, 146, 147
    vGA2, vGR2, vSLT = 148, 149, 150
    vG = 166
    A(f'''
    s_and_b32 s{sT1}, s{sM}, 3
    s_lshl_b32 s{sT2}, s{sT1}, 9
    s_add_u32 s{sT2}, s{sT2}, {H2R}
    v_and_b32 v{vGA_}, 31, v0
    v_lshl_add_u32 v{vGA_}, v{vGA_}, 4, s{sT2}
    v_bfe_u32 v{vGA2}, v0, 5, 3
    v_lshlrev_b32 v{vGA2}, 2, v{vGA2}
    ''')
    vOR = 200
    vHA = 98
    A(f'''
    v_and_b32 v{vOR}, 7, v0
    v_lshl_add_u32 v{vOR}, s{sWAVE}, 3, v{vOR}
    s_lshl_b32 s{sT0}, s{sM}, 6
    v_add_u32 v{vOR}, s{sT0}, v{vOR}
    v_lshrrev_b32 v{vT2}, 3, v{vLANE}
    s_lshl_b32 s{sT1}, s{sG}, 8
    s_add_u32 s{sT1}, s{sT1}, {H2P - 2048}
    v_lshl_add_u32 v{vHA}, v{vT2}, 4, s{sT1}
    v_lshl_add_u32 v{vT0}, v{vOR}, 11, v{vHA}
    v_add_u32 v{vT0}, {H2R - H2P + 2048}, v{vT0}
    s_mov_b64 exec, {P(sEX)}
    s_cbranch_execz L_noh2c
    global_store_dwordx4 v{vT0}, {q4(vPk)}, {P(sWS)} sc1
    global_store_dwordx4 v{vT0}, {q4(vPk+4)}, {P(sWS)} offset:128 sc1
    L_noh2c:
    s_mov_b64 exec, -1
    s_cmp_lg_u32 s{sWAVE}, 0
    s_cbranch_scc1 L_kskip
    v_and_b32 v{vT0}, 2, v0
    v_cmp_eq_u32 vcc, 0, v{vT0}
    v_cndmask_b32 v{vM2}, 0, -1, vcc
    v_and_b32 v{vT0}, 1, v0
    v_cmp_eq_u32 vcc, 0, v{vT0}
    v_cndmask_b32 v{vM1}, 0, -1, vcc
    s_lshl_b32 s{sT0}, s{sG}, 11
    s_add_u32 s{sT0}, s{sT0}, {KEYS}
    v_lshl_add_u32 v{vT0}, v{vLANE}, 3, s{sT0}
    ''')
    poll('L_pollk', '\n'.join(f'global_load_dwordx2 {pr(vKs+2*r)}, v{vT0}, {P(sWS)} offset:{512*r} sc1' for r in range(4)),
         f'''v_xor_b32 v{vT1}, s{sTAG}, v{vKs+1}
         v_xor_b32 v{vT2}, s{sTAG}, v{vKs+3}
         v_xor_b32 v{vT3}, s{sTAG}, v{vKs+5}
         v_or3_b32 v{vT1}, v{vT1}, v{vT2}, v{vT3}
         v_xor_b32 v{vT2}, s{sTAG}, v{vKs+7}
         v_or_b32 v{vT1}, v{vT1}, v{vT2}
         v_cmp_ne_u32 vcc, 0, v{vT1}''')
    stamp('keysok')
    def sort8(regs, tmps):
        for x, t in zip(regs, tmps): A(f'v_max_u32_dpp v{t}, v{x}, v{x} row_shl:4 row_mask:0xf bank_mask:0x5')
        for x, t in zip(regs, tmps): A(f'v_min_u32_dpp v{t}, v{x}, v{x} row_shr:4 row_mask:0xf bank_mask:0xa')
        for x, t in zip(regs, tmps): A(f'v_mov_b32_dpp v{x}, v{t} quad_perm:[2,3,0,1] {DPPM}')
        for x, t in zip(regs, tmps): A(f'v_med3_u32 v{t}, v{t}, v{x}, v{vM2}')
        for x, t in zip(regs, tmps): A(f'v_mov_b32_dpp v{x}, v{t} quad_perm:[1,0,3,2] {DPPM}')
        for x, t in zip(regs, tmps): A(f'v_med3_u32 v{x}, v{t}, v{x}, v{vM1}')
    k0, k1, k2, k3 = vKs, vKs + 2, vKs + 4, vKs + 6
    t0, t1 = vKs + 1, vKs + 3
    A(f'v_max_u32_dpp v{k0}, v{k1}, v{k0} row_half_mirror {DPPM}')
    A(f'v_max_u32_dpp v{k2}, v{k3}, v{k2} row_half_mirror {DPPM}')
    sort8([k0, k2], [t0, t1])
    A(f'v_max_u32_dpp v{k0}, v{k2}, v{k0} row_half_mirror {DPPM}')
    sort8([k0], [t0])
    A(f'v_max_u32_dpp v{k0}, v{k0}, v{k0} row_mirror {DPPM}')
    sort8([k0], [t0])
    for sw in ('v_permlane16_swap_b32', 'v_permlane32_swap_b32'):
        A(f'v_mov_b32 v{t1}, v{k0}')
        A(f'{sw} v{t1}, v{k0}')
        A(f'v_max_u32_dpp v{k0}, v{k0}, v{t1} row_half_mirror {DPPM}')
        sort8([k0], [t0])
    A(f'''
    v_and_b32 v{vRow}, 0x7ff, v{k0}
    v_sub_u32 v{vRow}, 2047, v{vRow}
    v_lshlrev_b32 v{vT2}, 2, v{vLANE}
    ds_write_b32 v{vT2}, v{vRow} offset:{L_GP}
    s_lshl_b32 s{sT0}, s{sM}, 6
    v_subrev_u32 v{vT1}, s{sT0}, v{vRow}
    v_add_u32 v{vT3}, 1, v{vLANE}
    v_cmp_gt_u32 vcc, 64, v{vT1}
    v_lshlrev_b32 v{vT1}, 2, v{vT1}
    s_and_b64 exec, vcc, 0xff
    ds_write_b32 v{vT1}, v{vT3} offset:{L_ST}
    s_mov_b64 exec, -1
    s_waitcnt lgkmcnt(0)
    s_branch L_kjoin
    L_kskip:
    ''')
    outcalc()
    A(f'''
    L_kjoin:
    s_barrier
    ds_read_b32 v{vGR2}, v{vGA2} offset:{L_GP}
    ds_read_b32 v{vSLT}, v{vU+1} offset:{L_ST}
    s_cmp_ge_u32 s{sM}, {NS3}
    s_cbranch_scc1 L_nog1
    s_cmp_ge_u32 s{sWAVE}, 4
    s_cbranch_scc1 L_nog1
    s_waitcnt lgkmcnt(1)
    v_lshl_add_u32 v{vGA_}, v{vGR2}, 11, v{vGA_}
    global_load_dwordx4 {q4(vG)}, v{vGA_}, {P(sWS)} sc1
    L_nog1:
    ''')
    stamp('top8')
    def x1out():
        A(f'''
        s_waitcnt lgkmcnt(0)
        v_cmp_ne_u32 {P(sEX)}, 0, v{vSLT}
        v_lshl_add_u32 v{vT0}, v{vSLT}, 11, v{vHA}
        v_add_u32 v{vT0}, {X1P - H2P}, v{vT0}
        s_mov_b64 exec, {P(sEX)}
        s_cbranch_execz L_noh2
        global_store_dwordx4 v{vT0}, {q4(vPk+8)}, {P(sWS)} sc1
        global_store_dwordx4 v{vT0}, {q4(vPk+12)}, {P(sWS)} offset:128 sc1
        L_noh2:
        s_mov_b64 exec, -1
        s_cmp_lg_u32 s{sWAVE}, 0
        s_cbranch_scc1 L_noc
        ''')
        outcalc()
        A('L_noc:')
        outstore()
    if cfg.OUTPOS == 'top8': x1out()
    A(f'''
    s_cmp_ge_u32 s{sM}, {NS3}
    s_cbranch_scc1 L_tail
    ''')
    GS_ = 272
    A(f'''
    s_lshr_b32 s{sT0}, s{sM}, 2
    s_mul_i32 s{sT1}, s{sG}, 7
    s_add_u32 s{sT0}, s{sT0}, s{sT1}
    s_and_b32 s{sT1}, s{sM}, 3
    v_lshrrev_b32 v{vT1}, 4, v{vLANE}
    v_and_b32 v{vT2}, 7, v0
    v_lshrrev_b32 v{vT3}, 5, v{vLANE}
    s_mov_b32 s{sHM}, 0x00ff00ff
    s_mov_b32 s{sHM+1}, 0x00ff00ff
    s_and_b32 s{sT3}, s{sWAVE}, 3
    v_lshl_add_u32 v{vT3}, s{sT3}, 1, v{vT3}
    v_mul_u32_u24 v{vGW_}, {GS_}, v{vT3}
    v_bfe_u32 v{vT3}, v0, 4, 1
    v_lshl_add_u32 v{vGW_}, v{vT3}, 7, v{vGW_}
    v_lshl_add_u32 v{vGW_}, v{vT2}, 4, v{vGW_}
    v_bfe_u32 v{vT3}, v0, 3, 1
    v_lshl_add_u32 v{vGW_}, v{vT3}, 3, v{vGW_}
    v_add_u32 v{vGW_}, {L_G2 - (L_G2 % 1024)}, v{vGW_}
    v_mul_u32_u24 v{vGR_}, {GS_}, v{vT2}
    v_lshl_add_u32 v{vGR_}, v{vT1}, 4, v{vGR_}
    s_lshr_b32 s{sT3}, s{sWAVE}, 2
    s_lshl_b32 s{sT3}, s{sT3}, 7
    v_add_u32 v{vGR_}, s{sT3}, v{vGR_}
    ''')
    A(f'''
    s_mov_b64 exec, -1
    s_and_b32 s{sT2}, s{sWID}, 0xfc
    s_lshl_b32 s{sT2}, s{sT2}, 13
    s_add_u32 s{sT2}, s{sT2}, {XB1}
    s_lshl_b32 s{sT3}, s{sT1}, 3
    s_add_u32 s{sT3}, s{sT3}, s{sWAVE}
    s_lshl_b32 s{sT4}, s{sT1}, 13
    s_lshl_b32 s{sT5}, s{sWAVE}, {10 if cfg.GXE else 9}
    s_add_u32 s{sT4}, s{sT4}, s{sT5}
    s_add_u32 s{sT4}, s{sT4}, s{sT2}
    v_lshl_add_u32 v{vGS}, v{vT1}, 3, v{vT2}
    v_lshl_add_u32 v{vGS}, v{vGS}, 4, s{sT4}
    s_mul_i32 s{sT3}, s{sT3}, {NPROD*64}
    s_lshl_b32 s{sT4}, s{sT0}, 6
    s_add_u32 s{sT3}, s{sT3}, s{sT4}
    s_add_u32 s{sT3}, s{sT3}, {PART}
    v_mul_u32_u24 v{vPS}, {32*NPROD*64}, v{vT2}
    v_lshl_add_u32 v{vPS}, v{vT1}, 4, v{vPS}
    v_add_u32 v{vPS}, s{sT3}, v{vPS}
    s_lshr_b32 s{sT3}, s{sWAVE}, 2
    s_lshl_b32 s{sT3}, s{sT3}, {10 if cfg.GXE else 9}
    s_and_b32 s{sT4}, s{sWAVE}, 3
    s_lshl_b32 s{sT4}, s{sT4}, 7
    s_add_u32 s{sT3}, s{sT3}, s{sT4}
    s_add_u32 s{sT3}, s{sT3}, s{sT2}
    v_lshlrev_b32 v{vGL}, 13, v{vT1}
    v_bfe_u32 v{vT3}, v0, 3, 1
    v_lshl_add_u32 v{vGL}, v{vT3}, {11 if cfg.GXE else 10}, v{vGL}
    v_lshl_add_u32 v{vGL}, v{vT2}, 4, v{vGL}
    v_add_u32 v{vGL}, s{sT3}, v{vGL}
    v_add_u32 v{vGA2}, 4096, v{vGL}
    s_mov_b64 {P(sC0+4)}, -1
    s_mov_b64 {P(sC0+6)}, -1
    v_and_b32 v{vT0}, 3, v0
    v_bfe_u32 v{vT2}, v0, 2, 2
    v_lshl_add_u32 v{vT2}, v{vT1}, 3, v{vT2}
    v_lshlrev_b32 v{vT3}, 6, v{vT2}
    v_lshl_add_u32 v{vT3}, v{vT0}, 3, v{vT3}
    s_lshr_b32 s{sT0}, s{sWAVE}, 2
    s_lshl_b32 s{sT0}, s{sT0}, 12
    s_bfe_u32 s{sT1}, s{sWAVE}, 0x10001
    s_lshl_b32 s{sT1}, s{sT1}, 13
    s_add_u32 s{sT0}, s{sT0}, s{sT1}
    s_and_b32 s{sT1}, s{sWAVE}, 1
    s_lshl_b32 s{sT1}, s{sT1}, 5
    s_add_u32 s{sT0}, s{sT0}, s{sT1}
    s_add_u32 s{sT0}, s{sT0}, {L_WGU}
    v_add_u32 v{vT3}, s{sT0}, v{vT3}
    ''')
    for ks_ in range(2):
        for hh in range(2):
            A(f'ds_read_b64_tr_b16 {pr(vWf + 4*ks_ + 2*hh)}, v{vT3} offset:{2048*ks_ + 256*hh}')
    A(f'''
    v_lshlrev_b32 v{vT3}, 8, v{vT2}
    v_lshl_add_u32 v{vT3}, v{vT0}, 3, v{vT3}
    s_lshl_b32 s{sT0}, s{sWAVE}, 5
    s_add_u32 s{sT0}, s{sT0}, {L_WGU + 16384}
    v_add_u32 v{vT3}, s{sT0}, v{vT3}
    ds_read_b64_tr_b16 {pr(vWf + 8)}, v{vT3}
    ds_read_b64_tr_b16 {pr(vWf + 10)}, v{vT3} offset:1024
    v_and_b32 v{vT0}, 7, v0
    v_lshrrev_b32 v{vT1}, 5, v{vLANE}
    v_bfe_u32 v{vT2}, v0, 4, 1
    v_lshl_add_u32 v{vT1}, v{vT1}, 1, v{vT2}
    v_lshl_add_u32 v{vT1}, s{sWAVE}, 2, v{vT1}
    v_lshlrev_b32 v{vT1}, 1, v{vT1}
    v_lshl_add_u32 v{vT1}, v{vT0}, 6, v{vT1}
    v_lshrrev_b32 v{vT2}, 4, v{vLANE}
    v_lshlrev_b32 v{vT2}, 4, v{vT2}
    v_lshl_add_u32 v{vT2}, v{vT0}, 6, v{vT2}
    s_mov_b32 s{sT2}, 0x03020105
    s_mov_b32 s{sT3}, 0x03020106
    s_mov_b32 s{sT4}, 0x03020107
    s_mov_b32 s{sT0}, 0x0004000c
    s_mov_b32 s{sT1}, 0x0402010c
    s_mov_b64 {P(sC0)}, -1
    s_mov_b64 {P(sC0+2)}, -1
    ''')
    vDg = 182
    A(f'''
    s_cmp_ge_u32 s{sWAVE}, 4
    s_cbranch_scc1 L_gskip
    ''')
    gck = f'''v_xor_b32 v{vG+1}, s{sTAG}, v{vG+1}
         v_xor_b32 v{vG+3}, s{sTAG}, v{vG+3}
         v_or_b32 v{vG+1}, v{vG+1}, v{vG+3}
         v_cmp_ne_u32 vcc, 0, v{vG+1}'''
    A('s_waitcnt vmcnt(0)' if cfg.OUTPOS == 'end' else 's_waitcnt vmcnt(1)')
    A(gck)
    A('s_cbranch_vccnz L_pollg')
    A('L_pollg_back:')
    late.append(('L_pollg', lambda: (poll('L_pollgb', f'global_load_dwordx4 {q4(vG)}, v{vGA_}, {P(sWS)} sc1', gck), A('s_branch L_pollg_back'))))
    A(f'''
    ds_write2_b32 v{vGW_}, v{vG}, v{vG+2} offset0:{(L_G2 % 1024)//4} offset1:{(L_G2 % 1024)//4 + 1}
    L_gskip:
    s_waitcnt lgkmcnt(0)
    ''')
    stamp('gath')
    A(f'''
    s_barrier
    ds_read_b128 {q4(vG)}, v{vGR_} offset:{L_G2}
    ds_read_b128 {q4(vG+8)}, v{vGR_} offset:{L_G2 + 64}
    s_waitcnt lgkmcnt(1)
    v_mfma_f32_16x16x32_bf16 {q4(vDg)}, {q4(vWf)}, {q4(vG)}, 0
    s_waitcnt lgkmcnt(0)
    v_mfma_f32_16x16x32_bf16 {q4(vDg)}, {q4(vWf+4)}, {q4(vG+8)}, {q4(vDg)}
    ''')
    def pack24(y):
        for d in range(3): A(f'v_perm_b32 v{y+d}, v{y+3}, v{y+d}, s{sT2+d}')
        A(f'v_mov_b32 v{y+3}, s{sTAG}')
    vE = 166
    def unp24(us, a, b):
        for u in us: A(f'v_perm_b32 v{u+3}, v{u+1}, v{u}, s{a}')
        for u in us: A(f'v_perm_b32 v{u+3}, v{u+2}, v{u+3}, s{b}')
    y = vE
    if cfg.GXE:
        A(f'''
        v_mov_b32 v{vDg+7}, s{sTAG}
        v_mov_b32 v{vDg+4}, v{vDg+2}
        v_mov_b32 v{vDg+5}, v{vDg+3}
        v_mov_b32 v{vDg+3}, s{sTAG}
        s_mov_b64 exec, {P(sHM)}
        ''')
        lstore(f'''global_store_dwordx4 v{vGS}, {q4(vDg)}, {P(sWS)}
        global_store_dwordx4 v{vGS}, {q4(vDg+4)}, {P(sWS)} offset:512''')
        stamp('preB6')
        mpoll('L_pollx', [(f'global_load_dwordx4 {q4(vE+4*i)}, v{vGL if i < 2 else vGA2}, {P(sWS)} offset:{512*(i&1)} sc1', vE + 4*i + 3, sC0 + 2*i) for i in range(4)])
        stamp('B6')
        A(f'''
        v_pk_add_f32 {pr(y)}, {pr(y)}, {pr(y+8)}
        v_pk_add_f32 {pr(y+2)}, {pr(y+4)}, {pr(y+12)}
        ''')
    else:
        pack24(vDg)
        A(f's_mov_b64 exec, {P(sHM)}')
        lstore(f'global_store_dwordx4 v{vGS}, {q4(vDg)}, {P(sWS)}')
        stamp('preB6')
        mpoll('L_pollx', [(f'global_load_dwordx4 {q4(vE)}, v{vGL}, {P(sWS)} sc1', vE + 3, sC0),
                          (f'global_load_dwordx4 {q4(vE+4)}, v{vGL}, {P(sWS)} offset:2048 sc1', vE + 7, sC0 + 2)])
        stamp('B6')
        unp24([vE, vE + 4], sT0, sT1)
        A(f'''
        v_pk_add_f32 {pr(y)}, {pr(y)}, {pr(y+4)}
        v_pk_add_f32 {pr(y+2)}, {pr(y+2)}, {pr(y+6)}
        ''')
    A(f'''
    v_permlane32_swap_b32 v{y}, v{y+2}
    v_permlane32_swap_b32 v{y+1}, v{y+3}
    v_add_f32 v{y}, v{y}, v{y+2}
    v_add_f32 v{y+1}, v{y+1}, v{y+3}
    v_permlane16_swap_b32 v{y}, v{y+1}
    v_add_f32 v{y}, v{y}, v{y+1}
    v_cvt_pk_bf16_f32 v{y}, 0, v{y}
    v_mul_f32 v{y+2}, 0xbfb8aa3b, v{y}
    v_exp_f32 v{y+2}, v{y+2}
    v_mov_b32_dpp v{y+1}, v{y} row_ror:8 {DPPM}
    v_add_f32 v{y+2}, 1.0, v{y+2}
    v_rcp_f32 v{y+2}, v{y+2}
    v_mul_f32 v{y}, v{y}, v{y+2}
    v_cvt_pk_bf16_f32 v{y}, 0, v{y}
    v_mul_f32 v{y}, v{y}, v{y+1}
    v_cvt_pk_bf16_f32 v{y}, v{y}, v{y}
    s_mov_b64 exec, {P(sHM)}
    ds_write_b16 v{vT1}, v{y} offset:{L_GU}
    s_mov_b64 exec, -1
    s_waitcnt lgkmcnt(0)
    s_barrier
    ds_read_b128 {q4(vE)}, v{vT2} offset:{L_GU}
    s_waitcnt lgkmcnt(0)
    v_mfma_f32_16x16x32_bf16 {q4(vDg)}, {q4(vWf+8)}, {q4(vE)}, 0
    ''')
    stamp('B7')
    pack24(vDg)
    A(f's_mov_b64 exec, {P(sHM)}')
    A(f'global_store_dwordx4 v{vPS}, {q4(vDg)}, {P(sWS)} sc1')
    A('s_mov_b64 exec, -1')
    stamp('partst')
    A(f'''
    s_cmp_lg_u32 s{sWID}, 0
    s_cbranch_scc1 L_noep
    s_cmp_lg_u32 s{sWAVE}, 2
    s_cbranch_scc1 L_noep
    s_add_u32 s{sT0}, s{sEP}, 1
    v_mov_b32 v{vT2}, {EPOCH}
    v_mov_b32 v{vT3}, s{sT0}
    s_mov_b64 exec, 1
    global_store_dword v{vT2}, v{vT3}, {P(sWS)} sc1
    s_mov_b64 exec, -1
    L_noep:
    L_tail:
    ''')
    if cfg.OUTPOS == 'end': x1out()
    A(f'''
    s_cmp_lg_u32 s{sM}, {NS3}
    s_cbranch_scc1 L_red
    ''')
    vWr = 130
    vHr = 134
    vHs = 142
    vPu = 166
    vRr = 182
    A(f'''
    v_lshlrev_b32 v{vT1}, 4, v{vLANE}
    global_load_dwordx4 {q4(vWr)}, v{vT1}, {P(sWR)}
    s_lshl_b32 s{sT3}, s{sWAVE}, 2
    v_mov_b32 v{vT0}, s{sT3}
    ds_read_b32 v{vT0}, v{vT0} offset:{L_GP}
    v_lshrrev_b32 v{vT2}, 3, v{vLANE}
    v_and_b32 v{vT3}, 7, v0
    v_lshlrev_b32 v{vT3}, 4, v{vT3}
    v_lshl_add_u32 v{vT3}, v{vT2}, 8, v{vT3}
    v_add_u32 v{vT3}, {H2R}, v{vT3}
    s_waitcnt lgkmcnt(0)
    v_lshl_add_u32 v{vT3}, v{vT0}, 11, v{vT3}
    s_lshl_b32 s{sT0}, s{sG}, 7
    s_lshl_b32 s{sT1}, s{sWAVE}, 3
    s_add_u32 s{sT0}, s{sT0}, s{sT1}
    s_add_u32 s{sT0}, s{sT0}, {SEL}
    v_mov_b32 v{vT0}, s{sT0}
    ''')
    poll('L_pollr', f'''global_load_dwordx4 {q4(vHr)}, v{vT3}, {P(sWS)} sc1
         global_load_dwordx4 {q4(vHr+4)}, v{vT3}, {P(sWS)} offset:128 sc1''',
         f'''v_xor_b32 v{vHr+1}, s{sTAG}, v{vHr+1}
         v_xor_b32 v{vHr+3}, s{sTAG}, v{vHr+3}
         v_xor_b32 v{vHr+5}, s{sTAG}, v{vHr+5}
         v_xor_b32 v{vHr+7}, s{sTAG}, v{vHr+7}
         v_or3_b32 v{vHr+1}, v{vHr+1}, v{vHr+3}, v{vHr+5}
         v_or_b32 v{vHr+1}, v{vHr+1}, v{vHr+7}
         v_cmp_ne_u32 vcc, 0, v{vHr+1}''')
    A(f'v_mov_b32 v{vRr}, 0')
    for i in range(4): A(f'v_dot2_f32_bf16 v{vRr}, v{vHr+2*i}, v{vWr+i}, v{vRr}')
    fullred([vRr], [vRr + 1])
    rnd(vRr)
    A(f'''
    v_mul_f32 v{vRr}, 0xbfb8aa3b, v{vRr}
    v_exp_f32 v{vRr}, v{vRr}
    v_add_f32 v{vRr}, 1.0, v{vRr}
    v_rcp_f32 v{vRr}, v{vRr}
    v_cvt_pk_bf16_f32 v{vRr}, 0, v{vRr}
    v_mov_b32 v{vRr+1}, s{sTAG}
    s_mov_b64 exec, 1
    ''')
    lstore(f'global_store_dwordx2 v{vT0}, {pr(vRr)}, {P(sWS)}')
    A(f'''
    s_mov_b64 exec, -1
    L_red:
    s_cmp_lg_u32 s{sWAVE}, 1
    s_cbranch_scc1 L_outlate
    v_lshl_add_u32 v{vT0}, v{vLANE}, 4, s{sPT}
    v_mov_b32 v{vPu+12}, 0
    v_mov_b32 v{vPu+13}, 0
    v_mov_b32 v{vPu+14}, 0
    v_mov_b32 v{vPu+15}, s{sTAG}
    s_and_b32 s{sT0}, s{sM}, 3
    s_and_b32 s{sT1}, s{sM}, 28
    v_mov_b32 v{vT3}, s{sT1}
    ds_read_b32 v{vOR+4}, v{vT3} offset:{L_GP}
    s_lshl_b32 s{sT3}, s{sT1}, 9
    s_add_u32 s{sT3}, s{sT3}, {H2P}
    s_lshl_b32 s{sT1}, s{sT1}, 1
    s_lshl_b32 s{sT4}, s{sG}, 7
    s_add_u32 s{sT1}, s{sT1}, s{sT4}
    s_add_u32 s{sT1}, s{sT1}, {SEL}
    v_mov_b32 v{vOR+5}, s{sT1}
    v_and_b32 v{vT1}, 3, v0
    v_lshlrev_b32 v{vT1}, 2, v{vT1}
    v_lshrrev_b32 v{vT2}, 5, v{vLANE}
    v_lshl_add_u32 v{vT1}, v{vT2}, 1, v{vT1}
    v_bfe_u32 v{vT2}, v0, 4, 1
    s_lshl_b32 s{sT4}, s{sT0}, 4
    v_add_u32 v{vT1}, s{sT4}, v{vT1}
    v_add_u32 v{vT3}, v{vT1}, v{vT2}
    v_lshlrev_b32 v{vOR}, 2, v{vT3}
    ds_read_b32 v{vOR+1}, v{vOR} offset:{L_MOD + 5*256}
    v_lshrrev_b32 v{vOR}, 3, v{vT1}
    v_lshlrev_b32 v{vOR}, 4, v{vOR}
    v_bfe_u32 v{vOR+2}, v{vT1}, 2, 1
    v_lshl_add_u32 v{vOR}, v{vOR+2}, 7, v{vOR}
    v_bfe_u32 v{vOR+2}, v{vT1}, 1, 1
    v_lshl_add_u32 v{vOR}, v{vOR+2}, 3, v{vOR}
    s_lshl_b32 s{sT5}, s{sG}, 8
    s_add_u32 s{sT5}, s{sT5}, s{sT3}
    v_add_u32 v{vT1}, s{sT5}, v{vOR}
    v_add_u32 v{vOR+2}, {X1P - H2P}, v{vT1}
    s_lshl_b32 s{sT5}, s{sG}, 8
    s_add_u32 s{sT5}, s{sT5}, {H2R}
    v_add_u32 v{vT1}, s{sT5}, v{vOR}
    s_lshl_b32 s{sT4}, s{sG}, 7
    v_lshl_add_u32 v{vOR+3}, v{vT3}, 1, s{sT4}
    v_lshlrev_b32 v{vT2}, 4, v{vT2}
    v_sub_u32 v{vT2}, 16, v{vT2}
    s_mov_b32 s{sT2}, 0x0004000c
    s_mov_b32 s{sT3}, 0x0402010c
    s_waitcnt lgkmcnt(0)
    v_lshl_add_u32 v{vOR+3}, v{vOR+4}, 10, v{vOR+3}
    v_lshl_add_u32 v{vT1}, v{vOR+4}, 11, v{vT1}
    ''')
    poll('L_polls', f'''global_load_dwordx2 {pr(vHs)}, v{vT1}, {P(sWS)} sc1
         global_load_dwordx2 {pr(vHs+2)}, v{vOR+2}, {P(sWS)} sc1
         global_load_dwordx2 {pr(vRr)}, v{vOR+5}, {P(sWS)} sc1''',
         f'''v_xor_b32 v{vHs+1}, s{sTAG}, v{vHs+1}
         v_xor_b32 v{vHs+3}, s{sTAG}, v{vHs+3}
         v_xor_b32 v{vRr+1}, s{sTAG}, v{vRr+1}
         v_or3_b32 v{vHs+1}, v{vHs+1}, v{vHs+3}, v{vRr+1}
         v_cmp_ne_u32 vcc, 0, v{vHs+1}''')
    A(f'''
    v_lshlrev_b32 v{vHs}, v{vT2}, v{vHs}
    v_and_b32 v{vHs}, s{sMASK}, v{vHs}
    v_lshlrev_b32 v{vHs+2}, v{vT2}, v{vHs+2}
    v_and_b32 v{vHs+2}, s{sMASK}, v{vHs+2}
    ''')
    stamp('redpre')
    if cfg.REDSLP: A(f's_sleep {cfg.REDSLP}')
    for i in range(3): A(f's_mov_b64 {P(sC0+2*i)}, -1')
    A(f's_mov_b32 s{sC0+6}, -1'); A(f's_mov_b32 s{sC0+7}, 0')
    mpoll('L_pollp', [(f'global_load_dwordx4 {q4(vPu+4*i)}, v{vT0}, {P(sWS)} offset:{1024*i} sc1', vPu + 4*i + 3, sC0 + 2*i) for i in range(4)])
    stamp('partok')
    unp24([vPu + 4*i for i in range(4)], sT2, sT3)
    for (a, b) in ((0, 1), (2, 3), (0, 2)):
        for h in range(2): A(f'v_pk_add_f32 {pr(vPu+4*a+2*h)}, {pr(vPu+4*a+2*h)}, {pr(vPu+4*b+2*h)}')
    y = vPu
    A(f'''
    v_permlane32_swap_b32 v{y}, v{y+2}
    v_permlane32_swap_b32 v{y+1}, v{y+3}
    v_add_f32 v{y}, v{y}, v{y+2}
    v_add_f32 v{y+1}, v{y+1}, v{y+3}
    v_permlane16_swap_b32 v{y}, v{y+1}
    v_add_f32 v{y}, v{y}, v{y+1}
    v_add_f32_dpp v{y}, v{y}, v{y} row_ror:8 {DPPM}
    v_add_f32_dpp v{y}, v{y}, v{y} row_ror:4 {DPPM}
    v_cvt_pk_bf16_f32 v{y}, 0, v{y}
    v_mul_f32 v{y}, v{y}, v{vRr}
    v_cvt_pk_bf16_f32 v{y}, 0, v{y}
    v_add_f32 v{y}, v{y}, v{vHs}
    v_cvt_pk_bf16_f32 v{y}, 0, v{y}
    v_mul_f32 v{y}, v{y}, v{vOR+1}
    v_cvt_pk_bf16_f32 v{y}, 0, v{y}
    v_add_f32 v{y}, v{y}, v{vHs+2}
    v_cvt_pk_bf16_f32 v{y}, v{y}, v{y}
    s_mov_b32 s{sT0}, 0x000f000f
    s_mov_b32 s{sT1}, 0x000f000f
    s_mov_b64 exec, {P(sT0)}
    global_store_short v{vOR+3}, v{y}, {P(sOUT)} {cfg.OUT_FL}
    s_mov_b64 exec, -1
    ''')
    A('L_outlate:')
    A('L_fin:')
    if cfg.DBL:
        A(f'''
        s_waitcnt vmcnt(0)
        s_memrealtime s[78:79]
        s_waitcnt lgkmcnt(0)
        s_sub_u32 s{sT0}, s{82 if cfg.DSITE else 78}, s74
        s_add_u32 s{sT0}, s{sT0}, s78
        s_cmp_lg_u32 s{sWAVE}, 1
        s_cbranch_scc1 L_end
        L_dbl:
        s_memrealtime s[80:81]
        s_waitcnt lgkmcnt(0)
        s_sub_u32 s{sT1}, s80, s{sT0}
        s_cmp_lt_i32 s{sT1}, 0
        s_cbranch_scc1 L_dbl
        ''')
    if cfg.DBGT:
        A(f'''
        s_memrealtime s[78:79]
        s_memtime s[80:81]
        s_cmp_lg_u32 s{sWAVE}, 0
        s_cbranch_scc1 L_end
        s_and_b32 s{sT0}, s{sWID}, 0x3f
        s_cmp_lg_u32 s{sT0}, 28
        s_cbranch_scc1 L_end
        s_waitcnt lgkmcnt(0)
        s_sub_u32 s{sT0}, s78, s74
        s_sub_u32 s{sT1}, s80, s76
        v_mov_b32 v4, s{sT0}
        v_mov_b32 v5, s{sT1}
        v_mov_b32 v6, s74
        v_mov_b32 v7, s78
        s_lshr_b32 s{sT0}, s{sWID}, 6
        s_lshl_b32 s{sT0}, s{sT0}, 4
        v_mov_b32 v8, s{sT0}
        s_mov_b64 exec, 1
        global_store_dwordx4 v8, v[4:7], {P(sDBG)}
        ''')
    if cfg.STAMP:
        A(f's_memtime s[{sST+2*nst[0]}:{sST+2*nst[0]+1}]'); nst[0] += 1
        if cfg.RTEND:
            A('s_waitcnt vmcnt(0)' if cfg.RTEND == 2 else 's_nop 0')
            A(f's_memrealtime s[{sST+2*nst[0]}:{sST+2*nst[0]+1}]'); nst[0] += 1
        A(f'''
        s_waitcnt lgkmcnt(0)
        s_lshl_b32 s{sT0}, s{sWID}, 3
        s_add_u32 s{sT0}, s{sT0}, s{sWAVE}
        s_lshl_b32 s{sT0}, s{sT0}, 7
        s_add_u32 s{sT0}, s{sT0}, {STAMPS}
        v_mov_b32 v{vT0}, s{sT0}
        s_mov_b64 exec, 1
        ''')
        for i in range(nst[0]):
            A(f'v_mov_b32 v{vT1}, s{sST+2*i}')
            A(f'global_store_dword v{vT0}, v{vT1}, {P(sWS)} offset:{4*i}')
        A(f'v_mov_b32 v{vT1}, s{sCNT}')
        A(f'global_store_dword v{vT0}, v{vT1}, {P(sWS)} offset:120')
        A(f'v_mov_b32 v{vT1}, s{sMODE}')
        A(f'global_store_dword v{vT0}, v{vT1}, {P(sWS)} offset:124')
    A('L_end:')
    A('s_endpgm')
    for k, t in slow:
        A(f'L_slow{k}:'); A('s_nop 4'); A(t); A('s_nop 1'); A(f's_branch L_back{k}')
    A('L_modeslow:')
    A(f'''
    s_mov_b32 s{sT4}, 64
    L_moderetry:
    global_load_dword v{vMT}, v{vPT}, {P(sWS)} sc1
    s_waitcnt vmcnt(0)
    s_mov_b32 s{sMODE}, {0 if cfg.FORCE_SLOW else 1}
    v_cmp_ne_u32 vcc, s{sXCC}, v{vMT}
    s_cbranch_vccz L_modeback
    s_mov_b32 s{sMODE}, 0
    v_subrev_u32 v{vMT+1}, s{sTAG}, v{vMT}
    v_subrev_u32 v{vMT+1}, 1, v{vMT+1}
    v_cmp_lt_u32 vcc, 15, v{vMT+1}
    s_cbranch_vccz L_modeback
    s_sub_u32 s{sT4}, s{sT4}, 1
    s_cbranch_scc0 L_moderetry
    s_branch L_modeback
    ''')
    for name, fn in late:
        A(name + ':'); fn()
    A('L_codeend:')
    return A

HEAD = open('adaLN_cond__ssm_conv_h3__moe_arch_mod__prompt.s.ref').read().split('; Override launch')[0]
def emit(path):
    A = build()
    s = HEAD + f'; @launch grid=(256,1,1) block=(512,1,1) lds={LDS_BYTES}\n'
    s += f'''.amdgcn_target "amdgcn-amd-amdhsa--gfx950"
.text
.globl {KNAME}
.p2align 8
.type {KNAME},@function
{KNAME}:
'''
    s += A.text()
    s += f'''.section .rodata,"a"
.p2align 6
.amdhsa_kernel {KNAME}
  .amdhsa_next_free_vgpr 248
  .amdhsa_next_free_sgpr 102
  .amdhsa_accum_offset 248
  .amdhsa_group_segment_fixed_size 0
  .amdhsa_kernarg_size 128
  .amdhsa_user_sgpr_count 2
  .amdhsa_user_sgpr_kernarg_segment_ptr 1
  .amdhsa_system_sgpr_workgroup_id_x 1
.end_amdhsa_kernel
'''
    open(path, 'w').write(s)
    return A

if __name__ == '__main__':
    out = sys.argv[1]
    for a in sys.argv[2:]:
        k, v = a.split('=')
        setattr(cfg, k, eval(v))
    A = emit(out)
    if cfg.STAMP: open(out + '.sites', 'w').write(' '.join(cfg.ORDER + ['end']))
    print('emitted', out, 'lines', len(A.out), 'pads', A.npad)
```

```python
import sys
from asmdsl import Asm

class Cfg:
    STAMP = False
    STOP = 99
    WS_BASE = 0
    WBL2 = False
    OUT_FL = ''
    POLL_CAP = 1000000
    FORCE_SLOW = False
    SEC = 'bar'
    WPOS = 'key'
    X3ACK = True
    ALIGN = True
    GXE = True
    RTEND = 0
    TLBW = False
    FPOS = 'k'
    X3SLP = 14
    DSITE = ''
    GPOS = 's1'
    X1PT = True
    GLOOP = 0
    PRIO = 3
    OUTPOS = 'top8'
    H2PT = False
    GSLP = 0
    HSLP = 16
    NOOUT = False
    REDSLP = 0
    WAFTER = True
    WDPOS = 's1'
    DBL = False
    DBGT = False
    NT = ''
    WPF = True
    PARTPT = False
    SITES = ()
    ORDER = []
cfg = Cfg()

KNAME = "adaLN_cond__ssm_conv_h3__moe_arch_mod__prompt_kernel"
EPOCH = 0; FL1 = 0x10000; FL2 = 0x12000; FLM = 0x14000; MTAB = 0x16000; KEYS = 0x18000; SEL = 0x1C000
XC = 0x20000; H2P = 0x28000; X1P = 0x2C000; MODP = 0x40000; PART = 0x80000
H2R = 0x800000; XB1 = 0x200000; X0 = 0x400000; X3 = 0x600000; GXB = 0; STAMPS = 0x2000000
NS3 = 28
NPROD = 56
NG0 = 8
USTR = 4160; UCH = 8 * USTR
L_MOD = 0
L_KEY = 2048
L_GP = 4096
L_CNT = 3328
L_ST = 3584
L_KVR = 8192; KVS = 4608
L_P = L_KVR + 2 * KVS
L_T = L_P; TS = 272
L_KD = L_P + 32768
L_U = L_KD + 8192
L_WGU = L_U + 2 * UCH
L_XS = L_WGU + 24576
L_END = L_WGU + 32768
L_Z = L_U
L_WD = L_U + 8192
L_G2 = L_P
L_GU = L_P + 8192
LDS_BYTES = 158720
assert L_END <= LDS_BYTES

sX, sK, sV, sSK, sF, sD, sWR = 4, 6, 8, 10, 12, 14, 18
sWG, sWU, sWD, sC, sWM, sOUT, sDBG, sWS = 20, 22, 24, 26, 28, 30, 32, 34
sG, sM, sWAVE, sTAG, sMODE, sXCC, sCNT, sTILE = 36, 37, 38, 39, 40, 41, 42, 43
sKSRD = 44
sFSRD = 48
sMASK = 52
sWID = 53
sEP = 54
sDV = 55
sT0, sT1, sT2, sT3, sT4, sT5 = 56, 57, 58, 59, 60, 61
sEX = 62
sC0 = 44
sWSR = 64
sOUTR = 68
sD0, sD1 = 72, 73
sPEND, sPT = 16, 17
sHM = 10
sST = 74
def P(s): return f's[{s}:{s+1}]'

import re
def to_buffer(line):
    for base, srd in ((sWS, sWSR), (sOUT, sOUTR)):
        b = re.escape(P(base)); R = f's[{srd}:{srd+3}]'
        m = re.match(rf'^\s*global_load_lds_(\w+) (v\d+), {b}(.*)$', line)
        if m: return f'buffer_load_{m.group(1)} {m.group(2)}, {R}, 0 offen{m.group(3)} lds'
        m = re.match(rf'^\s*global_load_(\w+) (v\S+), (v\d+), {b}(.*)$', line)
        if m: return f'buffer_load_{m.group(1)} {m.group(2)}, {m.group(3)}, {R}, 0 offen{m.group(4)}'
        m = re.match(rf'^\s*global_store_(\w+) (v\d+), (v\S+), {b}(.*)$', line)
        if m: return f'buffer_store_{m.group(1)} {m.group(3)}, {m.group(2)}, {R}, 0 offen{m.group(4)}'
    return line
def add_nt(line):
    if not cfg.NT: return line
    l = line.strip()
    if l.startswith('global_load') and any(P(b) in l for b in (sX, sK, sV, sWM, sWD, 12)) and 'sc1' not in l: return l + ' ' + cfg.NT
    if l.startswith('buffer_load') and (f's[{sKSRD}:{sKSRD+3}]' in l or f's[{sFSRD}:{sFSRD+3}]' in l): return l + ' ' + cfg.NT
    return line
class BAsm(Asm):
    def __call__(self, text):
        super().__call__('\n'.join(to_buffer(add_nt(l)) for l in text.strip().split('\n')))
def build():
    A = BAsm()
    slow = []
    late = []
    nst = [0]
    site = [0]
    def stamp(name=''):
        if cfg.DSITE == name:
            A('s_memrealtime s[82:83]')
            if name in ('B2', 'B3b'): A('s_waitcnt lgkmcnt(0)')
        if cfg.STAMP and (name in cfg.SITES or name == 'start'):
            assert sST + 2 * nst[0] + 3 <= 101
            A(f's_memtime s[{sST+2*nst[0]}:{sST+2*nst[0]+1}]'); nst[0] += 1
            cfg.ORDER.append(name)
            if name in ('B2', 'B3b'): A('s_waitcnt lgkmcnt(0)')
    uid = [0]
    def lstore(text):
        uid[0] += 1; k = uid[0]
        A(f's_cmp_eq_u32 s{sMODE}, 1')
        A(f's_cbranch_scc0 L_slow{k}')
        A(text)
        A(f'L_back{k}:')
        slow.append((k, '\n'.join(l + ' sc1' for l in text.strip().split('\n'))))
    def poll(name, loads, check, slp=0):
        A(f'{name}:')
        if slp: A(f's_sleep {slp}')
        A(loads)
        A('s_waitcnt vmcnt(0)')
        A(check)
        A(f's_sub_u32 s{sCNT}, s{sCNT}, 1')
        A('s_cselect_b64 vcc, 0, vcc')
        A(f's_cselect_b32 s{sCNT}, 0, s{sCNT}')
        A(f's_cbranch_vccnz {name}')
    def mpoll(name, items):
        A(f'{name}:')
        for k, (ld, tr, mk) in enumerate(items):
            A(f's_mov_b64 exec, {P(mk)}')
            A(f's_cbranch_execz {name}_s{k}')
            A(ld)
            A(f'{name}_s{k}:')
        A('s_mov_b64 exec, -1')
        A('s_waitcnt vmcnt(0)')
        for (ld, tr, mk) in items:
            if isinstance(tr, int): A(f'v_cmp_ne_u32 {P(mk)}, s{sTAG}, v{tr}')
            else: A(tr[0]); A(f'v_cmp_ne_u32 {P(mk)}, 0, v{tr[1]}')
        A(f's_or_b64 vcc, {P(items[0][2])}, {P(items[1][2])}')
        for (ld, tr, mk) in items[2:]: A(f's_or_b64 vcc, vcc, {P(mk)}')
        A(f's_sub_u32 s{sCNT}, s{sCNT}, 1')
        A('s_cselect_b64 vcc, 0, vcc')
        A(f's_cselect_b32 s{sCNT}, 0, s{sCNT}')
        A(f's_cbranch_vccnz {name}')
    def unpack(d, s):
        A(f'v_lshlrev_b32 v{d}, 16, v{s}')
        A(f'v_and_b32 v{d+1}, s{sMASK}, v{s}')
    def rnd(d, s=None):
        A(f'v_cvt_pk_bf16_f32 v{d}, 0, v{d if s is None else s}')
    def pr(r): return f'v[{r}:{r+1}]'
    def q4(r): return f'v[{r}:{r+3}]'
    DPPM = 'row_mask:0xf bank_mask:0xf'
    def allred(regs, tmps, add='v_add_f32'):
        for r in regs: A(f'{add}_dpp v{r}, v{r}, v{r} row_ror:8 {DPPM}')
        for sw in ('v_permlane16_swap_b32', 'v_permlane32_swap_b32'):
            for r, t in zip(regs, tmps): A(f'v_mov_b32 v{t}, v{r}')
            for r, t in zip(regs, tmps): A(f'{sw} v{t}, v{r}')
            for r, t in zip(regs, tmps): A(f'{add} v{r}, v{r}, v{t}')
    def fullred(regs, tmps, add='v_add_f32'):
        for pat in ('quad_perm:[1,0,3,2]', 'quad_perm:[2,3,0,1]', 'row_half_mirror'):
            for r in regs: A(f'{add}_dpp v{r}, v{r}, v{r} {pat} {DPPM}')
        allred(regs, tmps, add)
    def lnstats(S, Q, t0, mean_out, inv_out):
        A(f'v_mul_f32 v{S}, 0x3b000000, v{S}')
        A(f'v_mul_f32 v{Q}, 0x3b000000, v{Q}')
        A(f'v_fma_f32 v{t0}, -v{S}, v{S}, v{Q}')
        A(f'v_max_f32 v{t0}, 0, v{t0}')
        rnd(mean_out, S)
        rnd(t0)
        A(f'v_add_f32 v{t0}, 0x3727c5ac, v{t0}')
        rnd(t0)
        A(f'v_sqrt_f32 v{t0}, v{t0}')
        rnd(t0)
        A(f'v_rcp_f32 v{inv_out}, v{t0}')

    A(f'''
    s_cmp_ge_u32 s2, 256
    s_cbranch_scc1 L_end
    s_load_dwordx16 s[4:19], s[0:1], 0
    s_load_dwordx16 s[20:35], s[0:1], 64
    ''')
    if cfg.STAMP:
        A(f's_memrealtime s[{sST}:{sST+1}]'); nst[0] += 1
    if cfg.DBGT or cfg.DBL:
        A('s_memrealtime s[74:75]'); A('s_memtime s[76:77]')
    stamp('start')
    vLANE, vTID = 1, 0
    vA, vB, vT0, vT1, vT2, vT3 = 2, 3, 4, 5, 6, 7
    vPA = 9
    vJR = 8
    vX = 10
    vKr = 14
    vVr = 21
    vSk = 26
    vFl = 30
    vMT = 38
    vGW = 110
    vGC = 44
    vPT = 40
    A(f'''
    s_getreg_b32 s{sXCC}, hwreg(HW_REG_XCC_ID)
    s_and_b32 s{sG}, s2, 7
    s_lshr_b32 s{sM}, s2, 3
    v_lshrrev_b32 v{vT0}, 6, v0
    v_and_b32 v{vLANE}, 63, v0
    v_readfirstlane_b32 s{sWAVE}, v{vT0}
    s_and_b32 s{sXCC}, s{sXCC}, 15
    s_mov_b32 s{sMASK}, 0xffff0000
    s_mov_b32 s{sCNT}, {cfg.POLL_CAP}
    s_lshl_b32 s{sT0}, s{sM}, 16
    s_lshl_b32 s{sT1}, s{sG}, 7
    s_add_u32 s{sTILE}, s{sT0}, s{sT1}
    s_lshl_b32 s{sWID}, s{sG}, 5
    s_add_u32 s{sWID}, s{sWID}, s{sM}
    v_and_b32 v{vT0}, 31, v0
    v_lshrrev_b32 v{vT1}, 5, v0
    v_lshlrev_b32 v{vA}, 12, v{vT1}
    v_lshl_add_u32 v{vA}, v{vT0}, 2, v{vA}
    v_add_u32 v{vA}, s{sTILE}, v{vA}
    v_subrev_u32 v{vB}, 0xc00, v{vA}
    v_bfrev_b32 v{vT2}, 1
    v_cmp_gt_u32 vcc, 0xc00, v{vA}
    v_cndmask_b32 v{vB}, v{vB}, v{vT2}, vcc
    v_lshl_add_u32 v{vT2}, v{vT0}, 4, s{sT1}
    v_lshl_add_u32 v{vT2}, s{sT1}, 1, v{vT2}
    v_add_u32 v{vT2}, s{sT1}, v{vT2}
    ''')
    A(f'''
    s_add_u32 s{sT3}, s{sXCC}, 1
    v_mov_b32 v{vPT}, s{sWID}
    v_mov_b32 v{vPT+1}, s{sT3}
    s_lshl_b32 s{sT4}, s{sG}, 7
    s_lshl_b32 s{sT5}, s{sM}, 2
    s_add_u32 s{sT4}, s{sT4}, s{sT5}
    v_lshlrev_b32 v{vT0}, 4, v0
    v_subrev_u32 v{vT1}, 16, v{vT0}
    v_and_b32 v{vT3}, 255, v0
    v_cmp_eq_u32 vcc, 0, v{vT3}
    v_bfrev_b32 v{vT3}, 1
    v_cndmask_b32 v{vT1}, v{vT1}, v{vT3}, vcc
    s_lshl_b32 s{sT0}, s{sWID}, 13
    s_waitcnt lgkmcnt(0)
    s_load_dword s{sEP}, {P(sWS)}, {EPOCH + cfg.WS_BASE}
    global_load_dwordx4 {q4(vSk)}, v{vT2}, {P(sSK)}
    ''')
    for i in range(4): A(f'global_load_dword v{vKr+3+i}, v{vA}, {P(sK)} offset:{1024*i}')
    A(f'''
    s_mov_b32 s{sKSRD}, s{sK}
    s_mov_b32 s{sKSRD+1}, s{sK+1}
    s_mov_b32 s{sKSRD+2}, 0x200000
    s_mov_b32 s{sKSRD+3}, 0x20000
    s_mov_b32 exec_hi, 0
    ''')
    for i in range(3): A(f'buffer_load_dword v{vKr+i}, v{vB}, s[{sKSRD}:{sKSRD+3}], 0 offen offset:{1024*i}')
    A('s_mov_b64 exec, -1')
    for i in range(4): A(f'global_load_dword v{vVr+i}, v{vA}, {P(sV)} offset:{1024*i}')
    A(f'''
    s_add_u32 s{sWS}, s{sWS}, {cfg.WS_BASE}
    s_addc_u32 s{sWS+1}, s{sWS+1}, 0
    s_mov_b32 s{sWSR}, s{sWS}
    s_mov_b32 s{sWSR+1}, s{sWS+1}
    s_mov_b32 s{sWSR+2}, 0x4000000
    s_mov_b32 s{sWSR+3}, 0x20000
    s_mov_b32 s{sOUTR}, s{sOUT}
    s_mov_b32 s{sOUTR+1}, s{sOUT+1}
    s_mov_b32 s{sOUTR+2}, 0x200000
    s_mov_b32 s{sOUTR+3}, 0x20000
    s_add_u32 s{sFSRD}, s{sF}, s{sT0}
    s_addc_u32 s{sFSRD+1}, s{sF+1}, 0
    s_mov_b32 s{sFSRD+2}, 8192
    s_mov_b32 s{sFSRD+3}, 0x20000
    s_load_dword s{sDV}, {P(sD)}, s{sT4}
    ''')
    A(f'''
    s_cmp_lg_u32 s{sWAVE}, 7
    s_cbranch_scc1 L_nopt
    s_lshr_b32 s{sT0}, s{sM}, 2
    s_lshl_b32 s{sT0}, s{sT0}, 7
    s_lshl_b32 s{sT1}, s{sG}, 10
    s_add_u32 s{sT0}, s{sT0}, s{sT1}
    s_add_u32 s{sT1}, s{sT0}, {FL1}
    v_mov_b32 v{vPT+2}, s{sT1}
    s_add_u32 s{sT1}, s{sT0}, {FL2}
    v_writelane_b32 v{vPT+2}, s{sT1}, 2
    v_writelane_b32 v{vPT+2}, s{sT1}, 3
    s_lshl_b32 s{sT0}, s{sG}, 7
    s_add_u32 s{sT1}, s{sT0}, {FLM}
    v_writelane_b32 v{vPT+2}, s{sT1}, 4
    v_writelane_b32 v{vPT+2}, s{sT1}, 5
    s_add_u32 s{sT1}, s{sT0}, {SEL}
    v_writelane_b32 v{vPT+2}, s{sT1}, 6
    v_writelane_b32 v{vPT+2}, s{sT1}, 7
    s_lshl_b32 s{sT0}, s{sWID}, 6
    s_and_b32 s{sT0}, s{sT0}, 0xffffff80
    s_add_u32 s{sT1}, s{sT0}, {KEYS}
    v_writelane_b32 v{vPT+2}, s{sT1}, 8
    v_writelane_b32 v{vPT+2}, s{sT1}, 9
    v_and_b32 v{vPT+3}, 1, v0
    v_lshl_add_u32 v{vPT+2}, v{vPT+3}, 6, v{vPT+2}
    s_lshl_b32 s{sT0}, s{sWID}, 9
    s_add_u32 s{sT1}, s{sT0}, {MODP - 32*64}
    v_lshl_add_u32 v{vPT+3}, v{vLANE}, 6, s{sT1}
    v_cmp_lt_u32 vcc, 31, v{vLANE}
    v_cndmask_b32 v{vPT+2}, v{vPT+2}, v{vPT+3}, vcc
    s_lshl_b32 s{sT0}, s{sM}, 9
    s_add_u32 s{sT1}, s{sT0}, {H2P - 40*64}
    v_lshl_add_u32 v{vPT+3}, v{vLANE}, 6, s{sT1}
    v_cmp_lt_u32 vcc, 39, v{vLANE}
    v_cndmask_b32 v{vPT+2}, v{vPT+2}, v{vPT+3}, vcc
    s_mov_b32 exec_lo, 0x3ff
    s_mov_b32 exec_hi, {'0xffff' if cfg.H2PT else '0xff'}
    global_load_dword v{vPT+3}, v{vPT+2}, {P(sWS)} sc1
    s_mov_b64 exec, 0xffff
    s_getpc_b64 {P(sT0)}
    L_pc:
    s_lshl_b32 s{sT2}, s{sM}, 10
    v_lshl_add_u32 v{vPT+2}, v{vLANE}, 6, s{sT2}
    v_min_u32 v{vPT+2}, L_codeend-L_pc-4, v{vPT+2}
    global_load_dword v{vPT+3}, v{vPT+2}, {P(sT0)}
    s_mov_b64 exec, -1
    L_nopt:
    ''')
    if cfg.TLBW:
        tl = [(sWS, X0), (sWS, X3), (sOUT, 0), (sX, 0), (sWM, 0), (sWM, 0x200000), (sWG, 0), (sWU, 0), (sWD, 0), (sWS, XB1)]
        A(f'''
        s_cmp_lg_u32 s{sWAVE}, 6
        s_cbranch_scc1 L_notl
        s_lshl_b32 s{sT2}, s{sWID}, 12
        ''')
        for i, (b, off) in enumerate(tl):
            A(f's_add_u32 s{sT0}, s{b}, s{sT2}')
            A(f's_addc_u32 s{sT1}, s{b+1}, 0')
            if off:
                A(f's_add_u32 s{sT0}, s{sT0}, {off}')
                A(f's_addc_u32 s{sT1}, s{sT1}, 0')
            if i == 0:
                A(f'v_mov_b32 v{vPT+2}, s{sT0}'); A(f'v_mov_b32 v{vPT+3}, s{sT1}')
            else:
                A(f'v_writelane_b32 v{vPT+2}, s{sT0}, {i}'); A(f'v_writelane_b32 v{vPT+3}, s{sT1}, {i}')
        A(f'''
        s_mov_b64 exec, {(1 << len(tl)) - 1}
        global_load_dword v{vMT+1}, {pr(vPT+2)}, off
        s_mov_b64 exec, -1
        L_notl:
        ''')
    A(f'''
    v_mov_b32 v{vPT}, {L_CNT}
    v_mov_b32 v{vPT+1}, 0
    ds_write_b32 v{vPT}, v{vPT+1}
    v_and_b32 v{vT2}, 7, v0
    v_lshl_add_u32 v{vT2}, s{sWAVE}, 3, v{vT2}
    v_lshlrev_b32 v{vT2}, 10, v{vT2}
    v_lshrrev_b32 v{vT3}, 3, v{vLANE}
    v_lshl_add_u32 v{vJR}, v{vT3}, 4, v{vT2}
    v_add_u32 v{vJR}, s{sTILE}, v{vJR}
    s_barrier
    ''')
    def fload():
        A(f'''
        buffer_load_dwordx4 {q4(vFl+4)}, v{vT0}, s[{sFSRD}:{sFSRD+3}], 0 offen
        s_mov_b64 exec, 1
        buffer_load_dwordx4 {q4(vFl)}, v{vT1}, s[{sFSRD}:{sFSRD+3}], 0 offen
        s_mov_b64 exec, -1
        ''')
    if cfg.FPOS == 'bar': fload()
    A(f'''
    s_and_b32 s{sT0}, s{sM}, 3
    s_lshl_b32 s{sT0}, s{sT0}, 8
    s_and_b32 s{sT1}, s{sWAVE}, 3
    s_lshl_b32 s{sT1}, s{sT1}, 6
    s_add_u32 s{sT0}, s{sT0}, s{sT1}
    v_and_b32 v{vT2}, 0x38, v0
    v_add_u32 v{vT2}, s{sT0}, v{vT2}
    global_load_dwordx2 {pr(vGC)}, v{vT2}, {P(sC)}
    s_lshl_b32 s{sT0}, s{sG}, 9
    s_add_u32 s{sT0}, s{sT0}, {MTAB}
    v_and_b32 v{vPT}, 31, v0
    v_lshl_add_u32 v{vPT}, v{vPT}, 4, s{sT0}
    s_lshl_b32 s{sT1}, s{sM}, 4
    s_add_u32 s{sT0}, s{sT0}, s{sT1}
    v_mov_b32 v{vPT+1}, s{sT0}
    s_waitcnt lgkmcnt(0)
    s_mul_i32 s{sTAG}, s{sEP}, 0x9E3779B1
    s_add_u32 s{sTAG}, s{sTAG}, 0x7F4A7C15
    s_add_u32 s{sXCC}, s{sXCC}, s{sTAG}
    s_add_u32 s{sXCC}, s{sXCC}, 1
    v_mov_b32 v{vPT+2}, s{sXCC}
    s_cmp_lg_u32 s{sWAVE}, 0
    s_cbranch_scc1 L_nomode
    s_mov_b64 exec, 1
    global_store_dword v{vPT+1}, v{vPT+2}, {P(sWS)} sc1
    s_mov_b64 exec, -1
    L_nomode:
    ''')
    stamp('issued')
    A(f's_mov_b32 s{sPEND}, 0')
    vX1A, vUA, vTW, vTR = 96, 97, 98, 99
    A(f'''
    v_and_b32 v{vT2}, 31, v0
    v_lshrrev_b32 v{vT3}, 5, v0
    v_mul_u32_u24 v{vTW}, {TS}, v{vT2}
    v_lshlrev_b32 v{vT3}, 3, v{vT3}
    v_sub_u32 v{vTW}, v{vTW}, v{vT3}
    v_add_u32 v{vTW}, {L_T + 120}, v{vTW}
    v_lshrrev_b32 v{vX1A}, 4, v0
    v_mul_u32_u24 v{vTR}, {TS}, v{vX1A}
    v_and_b32 v{vT3}, 15, v0
    v_lshl_add_u32 v{vTR}, v{vT3}, 4, v{vTR}
    v_lshlrev_b32 v{vX1A}, 13, v{vX1A}
    v_bfe_u32 v{vT3}, v0, 3, 1
    v_lshl_add_u32 v{vX1A}, v{vT3}, 12, v{vX1A}
    v_and_b32 v{vT3}, 7, v0
    v_lshl_add_u32 v{vX1A}, v{vT3}, 4, v{vX1A}
    s_lshl_b32 s{sT0}, s{sG}, 18
    s_sub_u32 s{sT1}, 31, s{sM}
    s_lshl_b32 s{sT1}, s{sT1}, 7
    s_add_u32 s{sT0}, s{sT0}, s{sT1}
    s_add_u32 s{sT0}, s{sT0}, {XB1}
    v_add_u32 v{vX1A}, s{sT0}, v{vX1A}
    s_lshl_b32 s{sT0}, s{sG}, 10
    s_lshl_b32 s{sT1}, s{sWAVE}, 7
    s_add_u32 s{sT0}, s{sT0}, s{sT1}
    s_lshl_b32 s{sT1}, s{sM}, 2
    s_add_u32 s{sT0}, s{sT0}, s{sT1}
    v_mov_b32 v{vA}, s{sT0}
    v_mov_b32 v{vB}, s{sTAG}
    v_lshrrev_b32 v{vUA}, 8, v0
    v_mul_u32_u24 v{vUA}, {UCH}, v{vUA}
    v_and_b32 v{vT3}, 255, v0
    v_lshl_add_u32 v{vUA}, v{vT3}, 4, v{vUA}
    v_add_u32 v{vUA}, {L_U}, v{vUA}
    s_lshl_b32 s{sT0}, s{sWID}, 13
    s_add_u32 s{sT0}, s{sT0}, {XB1}
    v_lshl_add_u32 v{vSk-1}, v0, 4, s{sT0}
    s_mov_b32 s{sHM}, 0x11111111
    s_mov_b32 s{sHM+1}, 0x11111111
    ''')
    def wv(n): A(f's_waitcnt vmcnt({n})')
    vTp = 46
    vKp = 54
    vVp = 68
    vAc = 76
    vPp = 84
    vO = 92
    wv(7 if cfg.FPOS == 'bar' else 5)
    if cfg.FPOS == 'k': fload()
    for i in range(3): A(f'v_mov_b32 v{vPp+i}, v{vKr+4+i}')
    for i in range(3): A(f'v_permlane32_swap_b32 v{vKr+i}, v{vPp+i}')
    for j in range(4):
        src0, src1 = vSk + (j >> 1), vSk + 2 + (j >> 1)
        if j & 1:
            A(f'v_and_b32 v{vTp+2*j}, s{sMASK}, v{src0}'); A(f'v_and_b32 v{vTp+2*j+1}, s{sMASK}, v{src1}')
        else:
            A(f'v_lshlrev_b32 v{vTp+2*j}, 16, v{src0}'); A(f'v_lshlrev_b32 v{vTp+2*j+1}, 16, v{src1}')
    for r in range(7): unpack(vKp + 2*r, vKr + r)
    stamp('kland')
    for i in range(4): A(f'v_pk_mul_f32 {pr(vAc+2*i)}, {pr(vKp+2*i)}, {pr(vTp+6)}')
    for i in range(8): rnd(vAc + i)
    for j in (2, 1, 0):
        for i in range(4): A(f'v_pk_mul_f32 {pr(vPp+2*i)}, {pr(vKp+2*(i+3-j))}, {pr(vTp+2*j)}')
        for i in range(8): rnd(vPp + i)
        for i in range(4): A(f'v_pk_add_f32 {pr(vAc+2*i)}, {pr(vAc+2*i)}, {pr(vPp+2*i)}')
        for i in range(8): rnd(vAc + i)
    wv(3)
    A(f'global_load_dword v{vMT}, v{vPT}, {P(sWS)} sc1')
    if cfg.X1PT:
        A(f'''
        s_mov_b64 exec, {P(sHM)}
        global_load_dword v{vPT+3}, v{vSk-1}, {P(sWS)} sc1
        s_mov_b64 exec, -1
        ''')
    for i in range(4): unpack(vVp + 2*i, vVr + i)
    for i in range(4): A(f'v_pk_mul_f32 {pr(vAc+2*i)}, {pr(vAc+2*i)}, {pr(vVp+2*i)}')
    for c in range(2):
        A(f'v_cvt_pk_bf16_f32 v{vO+2*c}, v{vAc+6+c}, v{vAc+4+c}')
        A(f'v_cvt_pk_bf16_f32 v{vO+2*c+1}, v{vAc+2+c}, v{vAc+c}')
    A(f'''
    ds_write2_b64 v{vTW}, {pr(vO)}, {pr(vO+2)} offset0:0 offset1:16
    s_waitcnt lgkmcnt(0)
    s_barrier
    ds_read_b128 {q4(vO)}, v{vTR} offset:{L_T}
    ''')
    stamp('B1')
    A(f'''
    s_waitcnt lgkmcnt(0)
    global_store_dwordx4 v{vX1A}, {q4(vO)}, {P(sWS)}
    ''')
    vW1 = 46
    vOa = 52
    vOb = 58
    wv((4 if cfg.X1PT else 3) - (0 if cfg.FPOS == 'bar' else 1))
    for i in range(4): A(f'v_mov_b32_dpp v{vFl+i}, v{vFl+4+i} wave_shr:1 {DPPM}')
    for i in range(6): A(f'v_mov_b32 v{vW1+i}, v{vFl+1+i}')
    for i in range(6): A(f'v_alignbyte_b32 v{vOa+i}, v{vFl+i+1}, v{vFl+i}, 2')
    for i in range(6): A(f'v_alignbyte_b32 v{vOb+i}, v{vFl+i+2}, v{vFl+i+1}, 2')
    A(f'''
    v_add_u32 v{vT2}, {FL1}, v{vA}
    s_mov_b32 s{sMODE}, {0 if cfg.FORCE_SLOW else 1}
    s_waitcnt vmcnt(0)
    v_cmp_ne_u32 vcc, s{sXCC}, v{vMT}
    s_cbranch_vccnz L_modeslow
    L_modeback:
    s_cmp_eq_u32 s{sMODE}, 1
    s_cbranch_scc0 L_x1slow
    L_x1back:
    s_mov_b64 exec, 1
    ''')
    late.append(('L_x1slow', lambda: (A(f'global_store_dwordx4 v{vX1A}, {q4(vO)}, {P(sWS)} sc1'), A('s_waitcnt vmcnt(0)'), A('s_branch L_x1back'))))
    lstore(f'global_store_dword v{vT2}, v{vB}, {P(sWS)}')
    A('s_mov_b64 exec, -1')
    stamp('flag1')
    srcs = {0: vOa, 1: vW1, 2: vOb, 3: vFl + 2, 4: vOa + 2, 5: vW1 + 2, 6: vOb + 2, 7: vFl + 4}
    def uwrites():
        for c in range(8): A(f'ds_write_b128 v{vUA}, {q4(srcs[c])} offset:{c*USTR + 16}')
    A(f's_cmp_eq_u32 s{sWAVE}, 4')
    A('s_cbranch_scc1 L_nouw')
    uwrites()
    A('L_nouw:')
    vZ = 64
    for i in range(4): A(f'v_mov_b32 v{vZ+i}, 0')
    vXp = 100
    vXA = 108
    vXL = 109
    A(f'''
    v_mul_u32_u24 v{vT0}, {USTR}, v{vLANE}
    v_lshrrev_b32 v{vT1}, 5, v{vLANE}
    v_mul_u32_u24 v{vT1}, {KVS - 512}, v{vT1}
    v_lshl_add_u32 v{vT1}, v{vLANE}, 4, v{vT1}
    v_add_u32 v{vT1}, {L_KVR + 4096}, v{vT1}
    s_cmp_lg_u32 s{sWAVE}, 0
    s_cbranch_scc1 L_nz0
    s_mov_b64 exec, 0xffff
    ds_write_b128 v{vT0}, {q4(vZ)} offset:{L_U}
    s_mov_b64 exec, -1
    ds_write_b128 v{vT1}, {q4(vZ)}
    L_nz0:
    v_lshrrev_b32 v{vT0}, 3, v{vLANE}
    v_and_b32 v{vT1}, 7, v0
    v_lshl_add_u32 v{vT1}, s{sWAVE}, 3, v{vT1}
    v_lshlrev_b32 v{vT1}, 4, v{vT1}
    v_lshl_add_u32 v{vXA}, v{vT0}, 18, v{vT1}
    s_lshl_b32 s{sT0}, s{sM}, 13
    s_lshl_b32 s{sT1}, s{sG}, 10
    s_add_u32 s{sT0}, s{sT0}, s{sT1}
    v_add_u32 v{vXA}, s{sT0}, v{vXA}
    v_lshl_add_u32 v{vXL}, v{vT0}, 10, v{vT1}
    s_lshl_b32 s{sT0}, s{sWID}, 13
    v_add_u32 v{vXL}, s{sT0}, v{vXL}
    s_cmp_ge_u32 s{sWAVE}, 4
    s_cbranch_scc1 L_helper
    ''')
    vAA, vBA, vPW = 110, 111, 112
    vACC = 116
    vFA = [148, 180]
    vFB = [212, 46]
    A(f'''
    v_and_b32 v{vT0}, 15, v0
    v_lshrrev_b32 v{vT1}, 4, v{vLANE}
    v_and_b32 v{vT2}, 7, v0
    v_mul_u32_u24 v{vAA}, {USTR}, v{vT2}
    v_lshrrev_b32 v{vT2}, 3, v{vT0}
    v_add_u32 v{vT2}, v{vT2}, v{vT1}
    v_lshl_add_u32 v{vAA}, v{vT2}, 4, v{vAA}
    s_lshr_b32 s{sT0}, s{sWAVE}, 1
    s_and_b32 s{sT1}, s{sWAVE}, 1
    s_lshl_b32 s{sT1}, s{sT1}, 8
    s_mul_i32 s{sT2}, s{sT0}, {UCH}
    s_add_u32 s{sT2}, s{sT2}, s{sT1}
    s_add_u32 s{sT2}, s{sT2}, {L_U}
    v_add_u32 v{vAA}, s{sT2}, v{vAA}
    v_lshlrev_b32 v{vBA}, 4, v{vT1}
    v_lshlrev_b32 v{vT2}, 5, v{vT0}
    v_sub_u32 v{vBA}, v{vBA}, v{vT2}
    s_mul_i32 s{sT2}, s{sT0}, {KVS}
    s_add_u32 s{sT2}, s{sT2}, s{sT1}
    s_add_u32 s{sT2}, s{sT2}, {L_KVR + 480}
    v_add_u32 v{vBA}, s{sT2}, v{vBA}
    ''')
    def ldA(st, r, p): A(f'ds_read_b128 {q4(vFA[st]+4*p)}, v{vAA} offset:{64*r + 512*p}')
    def ldB(st, r, q): A(f'ds_read_b128 {q4(vFB[st]+4*q)}, v{vBA} offset:{(7-q)*512 + 64*r}')
    A(f'''
    v_lshl_add_u32 v{vT2}, v{vT1}, 2, v{vT0}
    v_and_b32 v{vT2}, 15, v{vT2}
    v_lshl_add_u32 v{vT2}, v{vT1}, 4, v{vT2}
    v_lshlrev_b32 v{vPW}, 4, v{vT2}
    s_lshl_b32 s{sT0}, s{sWAVE}, 13
    s_add_u32 s{sT0}, s{sT0}, {L_P}
    v_add_u32 v{vPW}, s{sT0}, v{vPW}
    s_waitcnt lgkmcnt(0)
    s_barrier
    s_setprio {cfg.PRIO}
    ''')
    for i in range(8): ldA(0, 0, i)
    A('s_waitcnt lgkmcnt(0)')
    A('s_barrier')
    stamp('B2')
    for i in range(8): ldB(0, 0, i)
    order = [(p, j - p) for j in range(8) for p in range(j + 1)]
    for r in range(4):
        st = r & 1
        nxt = [(k, i) for i in range(8) for k in 'AB'] if r < 3 else []
        issued = 0
        written = 0
        for n, (p, q) in enumerate(order):
            j = p + q
            if p == 0 and r == 0:
                A(f's_waitcnt lgkmcnt({min(15, 8 - (j+1) + issued)})')
                if cfg.ALIGN: A('.p2align 3')
            c = '0' if (r == 0 and p == 0) else q4(vACC + 4*j)
            A(f'v_mfma_f32_16x16x32_bf16 {q4(vACC+4*j)}, {q4(vFA[st]+4*p)}, {q4(vFB[st]+4*q)}, {c}')
            if nxt and issued < 16 and n >= (4 if r == 0 else 1):
                k, i = nxt[issued]
                (ldA if k == 'A' else ldB)(st ^ 1, r + 1, i); issued += 1
            if r == 3:
                while written < 8 and n >= written*(written+3)//2 + 9 and written <= j - 1:
                    A(f'ds_write_b128 v{vPW}, {q4(vACC+4*written)} offset:{1024*written}'); written += 1
        if r < 3:
            A('s_waitcnt lgkmcnt(0)')
            if cfg.ALIGN: A('.p2align 3')
        else:
            while written < 8:
                A(f'ds_write_b128 v{vPW}, {q4(vACC+4*written)} offset:{1024*written}'); written += 1
    A('s_setprio 0')
    A('s_branch L_s1join')
    A('L_helper:')
    vKD = 116
    vKV = 132
    vXo = 140
    vI0 = 220
    vDUM = 230
    vWRr = 231
    vGW = 164
    vF2, vD2 = 54, 55
    wr_ = [0]
    def wvr(n_s3only, n_both, n_gonly):
        wr_[0] += 1; k = wr_[0]
        A(f'''
        s_cmp_lg_u32 s{sPEND}, 3
        s_cbranch_scc1 L_wr{k}a
        s_waitcnt vmcnt({n_both})
        L_wr{k}b:
        ''')
        late.append((f'L_wr{k}a', lambda: (A(f's_waitcnt vmcnt({min(n_s3only, n_gonly)})') if n_s3only == n_gonly else
                     A(f'''s_cmp_eq_u32 s{sPEND}, 2
                     s_cbranch_scc1 L_wr{k}c
                     s_waitcnt vmcnt({n_gonly})
                     s_branch L_wr{k}b
                     L_wr{k}c:
                     s_waitcnt vmcnt({n_s3only})'''), A(f's_branch L_wr{k}b'))))
    A(f'''
    s_cmp_lt_u32 s{sM}, {NG0}
    s_cselect_b32 s{sT0}, 0, 1
    s_cmp_lt_u32 s{sM}, {NS3}
    s_cselect_b32 s{sT1}, 2, 0
    s_add_u32 s{sPEND}, s{sT0}, s{sT1}
    ''')
    vWA = 144
    sWB = 12
    def wblock(tag):
        A(f'''
        s_cmp_ge_u32 s{sM}, {NS3}
        s_cbranch_scc1 L_h_now{tag}
        s_lshl_b32 s{sT5}, s{sT4}, 12
        s_add_u32 s{sT5}, s{sT5}, {L_WGU}
        ''')
        for i in range(4):
            A(f's_mov_b32 m0, s{sT5}')
            A(f'global_load_lds_dwordx4 v{vWA}, {P(sWB)}')
            if i < 3:
                A(f'v_add_u32 v{vWA}, {16*3584}, v{vWA}')
                A(f's_add_u32 s{sT5}, s{sT5}, 1024')
        if cfg.WDPOS == 's1': A(f'''
        s_lshl_b32 s{sT5}, s{sT4}, 11
        s_add_u32 s{sT5}, s{sT5}, {L_WGU + 16384}
        s_mov_b32 m0, s{sT5}
        s_add_u32 s{sT5}, s{sT5}, 1024
        global_load_lds_dwordx4 v{vWA+1}, {P(sWD)}
        s_mov_b32 m0, s{sT5}
        s_nop 0
        global_load_lds_dwordx4 v{vWA+2}, {P(sWD)}
        ''')
        A(f'L_h_now{tag}:')
    vSt = 188
    for i in range(2): unpack(vSt + 2*i, vGC + i)
    for i in range(4): A(f'v_mul_f32 v{vSt+4+i}, 0xbfb8aa3b, v{vSt+i}')
    for i in range(4): A(f'v_exp_f32 v{vSt+4+i}, v{vSt+4+i}')
    for i in range(4): A(f'v_add_f32 v{vSt+4+i}, 1.0, v{vSt+4+i}')
    for i in range(4): A(f'v_rcp_f32 v{vSt+4+i}, v{vSt+4+i}')
    for i in range(4): A(f'v_mul_f32 v{vSt+i}, v{vSt+i}, v{vSt+4+i}')
    for i in range(2): A(f'v_cvt_pk_bf16_f32 v{vGC+i}, v{vSt+2*i}, v{vSt+2*i+1}')
    A(f'''
    s_sub_u32 s{sT4}, s{sWAVE}, 4
    s_min_u32 s{sT5}, s{sM}, {NS3-1}
    s_lshr_b32 s{sT0}, s{sT5}, 2
    s_mul_i32 s{sT3}, s{sG}, 7
    s_add_u32 s{sT0}, s{sT0}, s{sT3}
    s_lshl_b32 s{sT2}, s{sT0}, 6
    s_and_b32 s{sT1}, s{sM}, 3
    s_lshl_b32 s{sT3}, s{sT1}, 1
    s_and_b32 s{sT5}, s{sWAVE}, 1
    s_add_u32 s{sT3}, s{sT3}, s{sT5}
    s_mul_i32 s{sT3}, s{sT3}, {64*3584}
    s_add_u32 s{sT2}, s{sT2}, s{sT3}
    v_lshrrev_b32 v{vWA}, 2, v{vLANE}
    v_mul_u32_u24 v{vWA}, 3584, v{vWA}
    v_and_b32 v{vT2}, 3, v0
    v_lshl_add_u32 v{vWA}, v{vT2}, 4, v{vWA}
    v_add_u32 v{vWA}, s{sT2}, v{vWA}
    s_cmp_ge_u32 s{sWAVE}, 6
    s_cselect_b32 s{sWB}, s{sWU}, s{sWG}
    s_cselect_b32 s{sWB+1}, s{sWU+1}, s{sWG+1}
    s_lshl_b32 s{sT2}, s{sT0}, 15
    s_lshl_b32 s{sT3}, s{sT1}, 8
    s_add_u32 s{sT2}, s{sT2}, s{sT3}
    s_lshl_b32 s{sT3}, s{sT4}, 13
    s_add_u32 s{sT2}, s{sT2}, s{sT3}
    v_lshrrev_b32 v{vT2}, 4, v{vLANE}
    v_lshlrev_b32 v{vT2}, 10, v{vT2}
    v_and_b32 v{vT3}, 15, v0
    v_lshl_add_u32 v{vT2}, v{vT3}, 4, v{vT2}
    v_add_u32 v{vWA+1}, s{sT2}, v{vT2}
    v_add_u32 v{vWA+2}, 4096, v{vWA+1}
    s_max_u32 s{sT0}, s{sM}, {NG0}
    s_sub_u32 s{sT0}, s{sT0}, {NG0}
    s_lshr_b32 s{sT1}, s{sT0}, 2
    s_and_b32 s{sT3}, s{sT0}, 3
    s_lshl_b32 s{sT3}, s{sT3}, 7
    s_lshl_b32 s{sT5}, s{sT4}, 5
    s_add_u32 s{sT3}, s{sT3}, s{sT5}
    v_lshrrev_b32 v{vKV}, 3, v{vLANE}
    v_lshl_add_u32 v{vKV}, v{vKV}, 2, s{sT3}
    s_movk_i32 s{sT3}, 6144
    v_mul_lo_u32 v{vKV}, v{vKV}, s{sT3}
    v_and_b32 v{vT3}, 7, v0
    v_lshl_add_u32 v{vKV}, v{vT3}, 4, v{vKV}
    s_lshl_b32 s{sT1}, s{sT1}, 10
    s_lshl_b32 s{sT2}, s{sG}, 7
    s_add_u32 s{sT1}, s{sT1}, s{sT2}
    v_add_u32 v{vKV}, s{sT1}, v{vKV}
    v_lshl_add_u32 v{vKV+2}, v{vLANE}, 1, s{sT2}
    v_subrev_u32 v{vKV+3}, 0x8000, v{vJR}
    s_cmp_lg_u32 s{sWAVE}, 4
    s_cbranch_scc1 L_h_b2a
    s_lshr_b32 s{sT2}, s{sM}, 2
    s_lshl_b32 s{sT2}, s{sT2}, 7
    s_lshl_b32 s{sT1}, s{sG}, 10
    s_add_u32 s{sT2}, s{sT2}, s{sT1}
    s_add_u32 s{sT2}, s{sT2}, {FL1}
    v_and_b32 v{vT0}, 31, v0
    v_lshl_add_u32 v{vT0}, v{vT0}, 2, s{sT2}
    s_lshl_b32 s{sT0}, s{sWID}, 13
    s_add_u32 s{sT0}, s{sT0}, {XB1}
    v_lshl_add_u32 v{vT1}, v{vLANE}, 4, s{sT0}
    v_add_u32 v{vT3}, 4096, v{vT1}
    s_mov_b32 m0, {L_KVR}
    ''')
    poll('L_poll1', f'global_load_dword v{vT2}, v{vT0}, {P(sWS)} sc1', f'v_cmp_ne_u32 vcc, s{sTAG}, v{vT2}')
    for i in range(4): A(f'global_load_lds_dwordx4 v{vT1}, {P(sWS)} offset:{1024*i} sc1')
    A(f's_mov_b32 m0, {L_KVR + KVS}')
    for i in range(4): A(f'global_load_lds_dwordx4 v{vT3}, {P(sWS)} offset:{1024*i} sc1')
    stamp('poll1')
    uwrites()
    A(f'''
    L_h_b2a:
    s_waitcnt lgkmcnt(0)
    s_barrier
    global_load_dwordx4 {q4(vX)}, v{vJR}, {P(sX)}
    global_load_dwordx4 {q4(vXo)}, v{vKV+3}, {P(sX)}
    global_load_ushort v{vWRr}, v{vKV+2}, {P(sWR)}
    s_cmp_lt_u32 s{sM}, {NG0}
    s_cbranch_scc1 L_h_nog
    ''')
    for i in range(4):
        A(f'global_load_dwordx4 {q4(vGW+4*i)}, v{vKV}, {P(sWM)}')
        if i < 3: A(f'v_add_u32 v{vKV}, s{sT3}, v{vKV}')
    A('L_h_nog:')
    wvr(3, 7, 7)
    A('s_barrier')
    wblock('a')
    A(f'''
    s_lshl_b32 s{sT0}, s{sWAVE}, 9
    s_sub_u32 s{sT0}, {L_KVR + 4088}, s{sT0}
    v_lshlrev_b32 v{vT0}, 3, v{vLANE}
    v_sub_u32 v{vT0}, s{sT0}, v{vT0}
    ds_read_b64 {pr(vKV)}, v{vT0}
    ds_read_b64 {pr(vKV+2)}, v{vT0} offset:{KVS}
    ds_read_b64 {pr(vKV+4)}, v{vT0} offset:2048
    ds_read_b64 {pr(vKV+6)}, v{vT0} offset:{KVS+2048}
    s_lshl_b32 s{sD0}, s{sDV}, 16
    s_and_b32 s{sD1}, s{sDV}, s{sMASK}
    s_waitcnt lgkmcnt(0)
    ''')
    for t in range(2):
        for c in range(2):
            b = vKD + 8*t + 4*c; s = vKV + 4*t + 2*c
            A(f'v_and_b32 v{b}, s{sMASK}, v{s+1}')
            A(f'v_lshlrev_b32 v{b+1}, 16, v{s+1}')
            A(f'v_and_b32 v{b+2}, s{sMASK}, v{s}')
            A(f'v_lshlrev_b32 v{b+3}, 16, v{s}')
            for i in range(4): A(f'v_mul_f32 v{b+i}, s{sD0+c}, v{b+i}')
            for i in range(4): rnd(b + i)
    A(f'''
    s_lshl_b32 s{sT1}, s{sT4}, 11
    s_add_u32 s{sT1}, s{sT1}, {L_KD}
    v_lshl_add_u32 v{vT0}, v{vLANE}, 4, s{sT1}
    ds_write_b128 v{vT0}, {q4(vKD+8)}
    ds_write_b128 v{vT0}, {q4(vKD+12)} offset:1024
    ''')
    A(f'''
    s_lshl_b32 s{sT1}, s{sT4}, 10
    s_add_u32 s{sT1}, s{sT1}, {L_XS}
    v_lshl_add_u32 v{vT0}, v{vLANE}, 4, s{sT1}
    ''')
    wvr(*((7, 11, 5) if cfg.WDPOS == 's1' else (5, 9, 5)))
    A(f'ds_write_b128 v{vT0}, {q4(vXo)}')
    vXq = 186
    vS0 = 196
    for i in range(4): unpack(vXp + 2*i, vX + i)
    for i in range(4): unpack(vXq + 2*i, vXo + i)
    for (xb, u, t) in ((vXp, vS0, 204), (vXq, vS0 + 4, 208)):
        A(f'v_pk_add_f32 {pr(t)}, {pr(xb)}, {pr(xb+2)}')
        A(f'v_pk_mul_f32 {pr(t+2)}, {pr(xb)}, {pr(xb)}')
        for i in range(1, 4): A(f'v_pk_fma_f32 {pr(t+2)}, {pr(xb+2*i)}, {pr(xb+2*i)}, {pr(t+2)}')
        for i in range(2, 4): A(f'v_pk_add_f32 {pr(t)}, {pr(t)}, {pr(xb+2*i)}')
        A(f'v_add_f32 v{u}, v{t}, v{t+1}')
        A(f'v_add_f32 v{u+2}, v{t+2}, v{t+3}')
    allred([vS0, vS0 + 2, vS0 + 4, vS0 + 6], [204, 205, 206, 207])
    A(f'''
    v_mov_b32 v{vS0+1}, s{sTAG}
    v_mov_b32 v{vS0+3}, s{sTAG}
    v_mov_b32 v{vS0+5}, s{sTAG}
    v_mov_b32 v{vS0+7}, s{sTAG}
    v_add_u32 v{vT0}, {X0 - 512}, v{vXA}
    global_store_dwordx4 v{vT0}, {q4(vS0)}, {P(sWS)} offset:512 sc1
    global_store_dwordx4 v{vT0}, {q4(vS0+4)}, {P(sWS)} sc1
    ''')
    stamp('gemv0')
    def gemv_block(nb, ng):
        A(f'''
        s_cmp_lt_u32 s{sM}, {NG0}
        s_cbranch_scc1 L_g_done
        s_cmp_lt_u32 s{sWAVE}, 4
        s_cbranch_scc1 L_g_done
        ''')
        wvr(63, nb, ng)
        vSC = vGC
        vGA = 204
        vGP = 212
        A(f's_mov_b32 s{sT0}, 0x05040100')
        A(f's_mov_b32 s{sT1}, 0x07060302')
        for rp in range(2):
            w0, w1 = vGW + 8*rp, vGW + 8*rp + 4
            for d in range(4):
                A(f'v_perm_b32 v{vGP+2*d}, v{w1+d}, v{w0+d}, s{sT0}')
                A(f'v_perm_b32 v{vGP+2*d+1}, v{w1+d}, v{w0+d}, s{sT1}')
            for c in range(8): A(f'v_dot2_f32_bf16 v{vGA+c}, v{vGP+c}, v{vSC+rp}, ' + (f'v{vGA+c}' if rp else '0'))
        for c in range(4): A(f'v_permlane32_swap_b32 v{vGA+c}, v{vGA+c+4}')
        for c in range(4): A(f'v_add_f32 v{vGA+c}, v{vGA+c}, v{vGA+c+4}')
        for c in range(2): A(f'v_permlane16_swap_b32 v{vGA+c}, v{vGA+c+2}')
        for c in range(2): A(f'v_add_f32 v{vGA+c}, v{vGA+c}, v{vGA+c+2}')
        for c in range(2): A(f'v_add_f32_dpp v{vGA+c}, v{vGA+c}, v{vGA+c} row_ror:8 {DPPM}')
        A(f'''
        v_and_b32 v{vT0}, 8, v0
        v_cmp_ne_u32 vcc, 0, v{vT0}
        v_cndmask_b32 v{vGA}, v{vGA}, v{vGA+1}, vcc
        v_and_b32 v{vT0}, 7, v0
        v_lshrrev_b32 v{vT1}, 3, v{vLANE}
        v_lshl_add_u32 v{vT0}, v{vT0}, 3, v{vT1}
        s_sub_u32 s{sT0}, s{sWAVE}, 4
        s_lshl_b32 s{sT0}, s{sT0}, 8
        s_add_u32 s{sT0}, s{sT0}, {L_GP}
        v_lshl_add_u32 v{vT0}, v{vT0}, 2, s{sT0}
        ds_write_b32 v{vT0}, v{vGA}
        v_mov_b32 v{vT1}, {L_CNT}
        v_mov_b32 v{vT2}, 1
        s_waitcnt lgkmcnt(0)
        s_mov_b64 exec, 1
        ds_add_rtn_u32 v{vT2}, v{vT1}, v{vT2}
        s_mov_b64 exec, -1
        s_waitcnt lgkmcnt(0)
        v_readfirstlane_b32 s{sT0}, v{vT2}
        s_cmp_lg_u32 s{sT0}, 3
        s_cbranch_scc1 L_g_done
        v_lshlrev_b32 v{vT0}, 2, v{vLANE}
        ds_read2st64_b32 {pr(vGA)}, v{vT0} offset0:{L_GP//256} offset1:{L_GP//256+1}
        ds_read2st64_b32 {pr(vGA+2)}, v{vT0} offset0:{L_GP//256+2} offset1:{L_GP//256+3}
        s_sub_u32 s{sT0}, s{sM}, {NG0}
        s_lshl_b32 s{sT0}, s{sT0}, 9
        s_lshl_b32 s{sT1}, s{sG}, 14
        s_add_u32 s{sT0}, s{sT0}, s{sT1}
        s_add_u32 s{sT0}, s{sT0}, {MODP}
        v_lshl_add_u32 v{vT0}, v{vLANE}, 3, s{sT0}
        s_waitcnt lgkmcnt(0)
        v_pk_add_f32 {pr(vGA)}, {pr(vGA)}, {pr(vGA+2)}
        v_add_f32 v{vGA}, v{vGA}, v{vGA+1}
        v_mov_b32 v{vGA+1}, s{sTAG}
        ''')
        lstore(f'global_store_dwordx2 v{vT0}, {pr(vGA)}, {P(sWS)}')
        A('L_g_done:')
    if cfg.GPOS == 's1': gemv_block(8 if cfg.WDPOS == 's1' else 6, 2)
    A('L_s1join:')
    stamp('s1join')
    vPp0 = 148
    vKDe = 116
    vMn, vInv = 64, 65
    vH = 232
    vPar = 164
    vU = 46
    def rdpar(lst):
        for pi in lst:
            A(f'ds_read_b128 {q4(vPar+8*pi)}, v{vPA} offset:{L_MOD + 256*pi}')
            A(f'ds_read_b128 {q4(vPar+8*pi+4)}, v{vPA} offset:{L_MOD + 256*pi + 16}')
    A(f'''
    v_lshrrev_b32 v{vT0}, 2, v{vLANE}
    v_and_b32 v{vT1}, 3, v0
    v_lshl_add_u32 v{vT0}, v{vT1}, 2, v{vT0}
    v_and_b32 v{vT0}, 15, v{vT0}
    v_lshl_add_u32 v{vT0}, v{vT1}, 4, v{vT0}
    v_lshlrev_b32 v{vT0}, 4, v{vT0}
    s_lshl_b32 s{sT0}, s{sWAVE}, 10
    s_add_u32 s{sT1}, s{sT0}, {L_P}
    v_add_u32 v{vT0}, s{sT1}, v{vT0}
    s_lshl_b32 s{sT1}, s{sWAVE}, 11
    s_add_u32 s{sT1}, s{sT1}, {L_KD}
    v_lshl_add_u32 v{vT1}, v{vLANE}, 4, s{sT1}
    s_lshl_b32 s{sT2}, s{sWID}, 13
    s_add_u32 s{sT2}, s{sT2}, {XB1}
    v_lshl_add_u32 v{vT2}, v0, 4, s{sT2}
    v_lshlrev_b32 v{vT3}, 4, v0
    v_add_u32 v{vT3}, {L_XS}, v{vT3}
    v_lshrrev_b32 v{vPA}, 3, v{vLANE}
    v_lshlrev_b32 v{vPA}, 5, v{vPA}
    s_waitcnt lgkmcnt(0)
    s_barrier
    ''')
    for w in range(4): A(f'ds_read_b128 {q4(vPp0+4*w)}, v{vT0} offset:{8192*w}')
    A(f'''
    s_cmp_ge_u32 s{sWAVE}, 4
    s_cbranch_scc1 L_nokd
    ds_read_b128 {q4(vKDe)}, v{vT1}
    ds_read_b128 {q4(vKDe+4)}, v{vT1} offset:1024
    ds_read_b128 {q4(vX)}, v{vT3}
    L_nokd:
    s_waitcnt lgkmcnt(0)
    ''')
    for c in range(2):
        for h in range(2): A(f'v_pk_add_f32 {pr(vPp0+8*c+2*h)}, {pr(vPp0+8*c+2*h)}, {pr(vPp0+8*c+4+2*h)}')
    for c in range(2):
        for i in range(4): rnd(vPp0 + 8*c + i)
    for c in range(2):
        for h in range(2): A(f'v_pk_add_f32 {pr(vPp0+8*c+2*h)}, {pr(vPp0+8*c+2*h)}, {pr(vKDe+4*c+2*h)}')
    for i in range(4): A(f'v_cvt_pk_bf16_f32 v{vPp0+4+i}, v{vPp0+i}, v{vPp0+8+i}')
    lstore(f'global_store_dwordx4 v{vT2}, {q4(vPp0+4)}, {P(sWS)}')
    stamp('zst')
    vMQ = 140
    vXCA = 139
    vZA = 68
    A(f'''
    v_mov_b32 v{vXCA}, 0
    s_min_u32 s{sT5}, s{sWAVE}, 5
    s_cmp_eq_u32 s{sWAVE}, 6
    s_cselect_b32 s{sT5}, 3, s{sT5}
    s_cmp_eq_u32 s{sWAVE}, 7
    s_cselect_b32 s{sT5}, 4, s{sT5}
    s_lshl_b32 s{sT1}, s{sT5}, 11
    s_lshl_b32 s{sT2}, s{sG}, 14
    s_add_u32 s{sT1}, s{sT1}, s{sT2}
    s_add_u32 s{sT1}, s{sT1}, {MODP}
    v_lshl_add_u32 v{vD2+1}, v{vLANE}, 4, s{sT1}
    v_add_u32 v{vD2+2}, {X0}, v{vXL}
    ''')
    modld = '\n'.join([f'global_load_dwordx4 {q4(vMQ+4*i)}, v{vD2+1}, {P(sWS)} offset:{1024*i} sc1' for i in range(2)])
    chk = [f'v_xor_b32 v{vMQ+2*i+1}, s{sTAG}, v{vMQ+2*i+1}' for i in range(4)]
    chk += [f'v_or3_b32 v{vMQ+1}, v{vMQ+1}, v{vMQ+3}, v{vMQ+5}', f'v_or_b32 v{vMQ+1}, v{vMQ+1}, v{vMQ+7}', f'v_cmp_ne_u32 vcc, 0, v{vMQ+1}']
    x0ld = f'global_load_dwordx4 {q4(vI0)}, v{vD2+2}, {P(sWS)} sc1'
    x0chk = f'''v_xor_b32 v{vI0+1}, s{sTAG}, v{vI0+1}
         v_xor_b32 v{vI0+3}, s{sTAG}, v{vI0+3}
         v_or_b32 v{vI0+1}, v{vI0+1}, v{vI0+3}
         v_cmp_ne_u32 vcc, 0, v{vI0+1}'''
    A(x0ld)
    for i in range(4): unpack(vXp + 2*i, vX + i)
    if cfg.GPOS == 'zst': gemv_block(10, 4)
    A(f'''
    v_add_u32 v{vT1}, {FL2}, v{vA}
    s_lshr_b32 s{sT2}, s{sM}, 2
    s_lshl_b32 s{sT2}, s{sT2}, 7
    s_lshl_b32 s{sT3}, s{sG}, 10
    s_add_u32 s{sT2}, s{sT2}, s{sT3}
    s_lshl_b32 s{sT3}, s{sWAVE}, 4
    s_add_u32 s{sT2}, s{sT2}, s{sT3}
    s_add_u32 s{sT2}, s{sT2}, {FL2}
    v_and_b32 v{vF2}, 3, v0
    v_lshl_add_u32 v{vF2}, v{vF2}, 2, s{sT2}
    s_lshl_b32 s{sT3}, s{sWAVE}, 1
    v_subrev_u32 v{vD2}, s{sT3}, v0
    v_and_b32 v{vD2}, 15, v{vD2}
    v_lshlrev_b32 v{vD2}, 4, v{vD2}
    v_lshrrev_b32 v{vT2}, 4, v0
    v_lshl_add_u32 v{vD2}, v{vT2}, 13, v{vD2}
    s_lshl_b32 s{sT2}, s{sG}, 18
    s_lshl_b32 s{sT3}, s{sM}, 8
    s_add_u32 s{sT2}, s{sT2}, s{sT3}
    s_add_u32 s{sT2}, s{sT2}, {XB1}
    v_add_u32 v{vD2}, s{sT2}, v{vD2}
    s_lshl_b32 s{sT2}, s{sWAVE}, 10
    s_add_u32 s{sT2}, s{sT2}, {L_Z}
    s_mov_b32 m0, s{sT2}
    v_lshrrev_b32 v{vT0}, 3, v{vLANE}
    v_bfe_u32 v{vT2}, v0, 2, 1
    v_lshl_add_u32 v{vT2}, s{sWAVE}, 1, v{vT2}
    v_lshl_add_u32 v{vT2}, v{vT0}, 1, v{vT2}
    v_and_b32 v{vT2}, 15, v{vT2}
    v_lshlrev_b32 v{vT2}, 4, v{vT2}
    v_lshl_add_u32 v{vZA}, v{vT0}, 10, v{vT2}
    v_and_b32 v{vT2}, 3, v0
    v_lshl_add_u32 v{vZA}, v{vT2}, 2, v{vZA}
    s_mov_b32 s{sT0}, s{sT5}
    s_waitcnt vmcnt(1)
    s_mov_b64 exec, 1
    ''')
    lstore(f'global_store_dword v{vT1}, v{vB}, {P(sWS)}')
    A('s_mov_b64 exec, -1')
    stamp('flag2')
    A(modld)
    A('s_waitcnt vmcnt(3)')
    A(x0chk)
    A('s_cbranch_vccnz L_pollx0')
    A('L_pollx0_back:')
    late.append(('L_pollx0', lambda: (poll('L_pollx0b', x0ld, x0chk), A('s_nop 1'), A('s_branch L_pollx0_back'))))
    allred([vI0, vI0 + 2], [vI0 + 1, vI0 + 3])
    lnstats(vI0, vI0 + 2, vI0 + 1, vMn, vInv)
    for i in range(8): A(f'v_sub_f32 v{vH+i}, v{vXp+i}, v{vMn}')
    for i in range(8): rnd(vH + i)
    for i in range(8): A(f'v_mul_f32 v{vH+i}, v{vH+i}, v{vInv}')
    for i in range(8): rnd(vH + i)
    A('s_waitcnt vmcnt(0)')
    A('\n'.join(chk))
    A('s_cbranch_vccnz L_pollm')
    A('L_pollm_back:')
    late.append(('L_pollm', lambda: (poll('L_pollmb', modld, '\n'.join(chk)), A('s_branch L_pollm_back'))))
    stamp('modok')
    A(f'global_load_dword v{vI0}, v{vF2}, {P(sWS)} sc1')
    A(f'v_add_f32 v{vMQ}, v{vMQ}, v{vMQ+4}')
    A(f'v_add_f32 v{vMQ+2}, v{vMQ+2}, v{vMQ+6}')
    A(f'''
    v_permlane32_swap_b32 v{vMQ}, v{vMQ+2}
    v_add_f32 v{vMQ}, v{vMQ}, v{vMQ+2}
    v_cvt_pk_bf16_f32 v{vMQ}, 0, v{vMQ}
    v_add_f32 v{vMQ+1}, 1.0, v{vMQ}
    v_cvt_pk_bf16_f32 v{vMQ+1}, 0, v{vMQ+1}
    s_cmp_eq_u32 s{sT0}, 1
    s_cselect_b64 vcc, -1, 0
    s_cmp_eq_u32 s{sT0}, 4
    s_cselect_b64 vcc, -1, vcc
    v_cndmask_b32 v{vMQ}, v{vMQ}, v{vMQ+1}, vcc
    v_and_b32 v{vT0}, 31, v0
    v_lshrrev_b32 v{vT1}, 5, v{vLANE}
    v_lshl_add_u32 v{vT0}, v{vT0}, 1, v{vT1}
    v_lshlrev_b32 v{vT0}, 2, v{vT0}
    s_cmp_ge_u32 s{sWAVE}, 6
    s_cbranch_scc1 L_m67
    s_lshl_b32 s{sT1}, s{sT0}, 8
    v_add_u32 v{vT0}, s{sT1}, v{vT0}
    ds_write_b32 v{vT0}, v{vMQ} offset:{L_MOD}
    s_branch L_mjoin
    L_m67:
    ds_bpermute_b32 v{vT1}, v{vT0}, v{vWRr}
    s_waitcnt lgkmcnt(0)
    v_lshlrev_b32 v{vT1}, 16, v{vT1}
    v_mul_f32 v{vMQ+4}, v{vMQ}, v{vT1}
    s_cmp_eq_u32 s{sWAVE}, 7
    s_cselect_b32 s{sT1}, 0, 256
    s_cselect_b32 s{sT2}, 0, 8
    v_add_u32 v{vT0}, s{sT1}, v{vT0}
    ds_write_b32 v{vT0}, v{vMQ+4} offset:{L_MOD + 6*256}
    ''')
    fullred([vMQ + 4], [vMQ + 6])
    A(f'''
    v_mov_b32 v{vMQ+5}, s{sTAG}
    s_lshl_b32 s{sT0}, s{sM}, 7
    s_lshl_b32 s{sT1}, s{sG}, 4
    s_add_u32 s{sT0}, s{sT0}, s{sT1}
    s_add_u32 s{sT0}, s{sT0}, s{sT2}
    s_add_u32 s{sT0}, s{sT0}, {XC}
    v_lshl_add_u32 v{vXCA}, v{vLANE}, 12, s{sT0}
    L_mjoin:
    ''')
    A(f'''
    s_waitcnt vmcnt(0)
    v_cmp_ne_u32 vcc, s{sTAG}, v{vI0}
    s_mov_b32 s{sT4}, 0
    s_cbranch_vccnz L_p2n
    global_load_lds_dwordx4 v{vD2}, {P(sWS)} sc1
    s_mov_b32 s{sT4}, 1
    L_p2n:
    s_waitcnt lgkmcnt(0)
    s_barrier
    ''')
    rdpar((1, 0, 2, 6))
    A('s_waitcnt lgkmcnt(4)')
    for i in range(8): A(f'v_mul_f32 v{vH+i}, v{vH+i}, v{vPar+8+i}')
    for i in range(8): rnd(vH + i)
    for i in range(8): A(f'v_add_f32 v{vH+i}, v{vH+i}, v{vPar+i}')
    for i in range(8): rnd(vH + i)
    A(f'''
    s_cmp_eq_u32 s{sT4}, 1
    s_cbranch_scc1 L_p2d
    ''')
    poll('L_poll2', f'global_load_dword v{vT2}, v{vF2}, {P(sWS)} sc1', f'v_cmp_ne_u32 vcc, s{sTAG}, v{vT2}')
    A(f'global_load_lds_dwordx4 v{vD2}, {P(sWS)} sc1')
    A('L_p2d:')
    stamp('poll2')
    stamp('hdone')
    A('s_waitcnt vmcnt(0)')
    A('s_barrier')
    A(f'''
    s_cmp_lt_u32 s{sWAVE}, 6
    s_cbranch_scc1 L_noxc
    s_mov_b64 exec, 0xff
    global_store_dwordx2 v{vXCA}, {pr(vMQ+4)}, {P(sWS)} sc1
    s_mov_b64 exec, -1
    L_noxc:
    ''')
    stamp('B4')
    vZr = 70
    vZ1 = 74
    vSQ = 82
    A(f'ds_read2st64_b32 {pr(vZr)}, v{vZA} offset0:{L_Z//256} offset1:{L_Z//256+1}')
    A(f'ds_read2st64_b32 {pr(vZr+2)}, v{vZA} offset0:{L_Z//256+2} offset1:{L_Z//256+3}')
    A(f'v_add_u32 v{vT0}, {X3}, v{vXA}')
    A('s_waitcnt lgkmcnt(0)')
    for i in range(4): unpack(vZ1 + 2*i, vZr + i)
    for i in range(8): A(f'v_mul_f32 v{vZ1+i}, v{vZ1+i}, v{vH+i}')
    for i in range(8): rnd(vZ1 + i)
    for i in range(8): A(f'v_mul_f32 v{vZ1+i}, v{vZ1+i}, v{vPar+16+i}')
    for i in range(8): rnd(vZ1 + i)
    for i in range(8): A(f'v_add_f32 v{vZ1+i}, v{vZ1+i}, v{vXp+i}')
    for i in range(8): rnd(vZ1 + i)
    S_, Q_, P_ = vSQ, vSQ + 2, vSQ + 4
    A(f'v_pk_add_f32 {pr(S_)}, {pr(vZ1)}, {pr(vZ1+2)}')
    A(f'v_pk_mul_f32 {pr(Q_)}, {pr(vZ1)}, {pr(vZ1)}')
    A(f'v_pk_mul_f32 {pr(P_)}, {pr(vZ1)}, {pr(vPar+48)}')
    for i in range(1, 4):
        A(f'v_pk_fma_f32 {pr(Q_)}, {pr(vZ1+2*i)}, {pr(vZ1+2*i)}, {pr(Q_)}')
        A(f'v_pk_fma_f32 {pr(P_)}, {pr(vZ1+2*i)}, {pr(vPar+48+2*i)}, {pr(P_)}')
        if i >= 2: A(f'v_pk_add_f32 {pr(S_)}, {pr(S_)}, {pr(vZ1+2*i)}')
    vUn = vSQ + 6
    A(f'v_add_f32 v{vUn}, v{S_}, v{S_+1}')
    A(f'v_add_f32 v{vUn+1}, v{Q_}, v{Q_+1}')
    A(f'v_add_f32 v{vUn+2}, v{P_}, v{P_+1}')
    A(f'v_mov_b32 v{vUn+3}, s{sTAG}')
    allred([vUn, vUn + 1, vUn + 2], [S_, Q_, P_])
    A(f'global_store_dwordx4 v{vT0}, {q4(vUn)}, {P(sWS)} sc1')
    stamp('x3st')
    rdpar((3, 4, 5))
    if cfg.WBL2:
        A(f'''
        s_cmp_lg_u32 s{sM}, 31
        s_cbranch_scc1 L_nowb
        s_cmp_lg_u32 s{sWAVE}, 7
        s_cbranch_scc1 L_nowb
        buffer_wbl2 sc1
        L_nowb:
        ''')
    if cfg.WDPOS == 'x3':
        A(f'''
        s_cmp_ge_u32 s{sM}, {NS3}
        s_cbranch_scc1 L_nowd
        s_lshr_b32 s{sT0}, s{sM}, 2
        s_mul_i32 s{sT1}, s{sG}, 7
        s_add_u32 s{sT0}, s{sT0}, s{sT1}
        s_and_b32 s{sT1}, s{sM}, 3
        s_lshl_b32 s{sT4}, s{sWAVE}, 10
        s_add_u32 s{sT4}, s{sT4}, {L_WGU + 16384}
        s_mov_b32 m0, s{sT4}
        s_lshl_b32 s{sT2}, s{sT0}, 15
        s_lshl_b32 s{sT3}, s{sT1}, 8
        s_add_u32 s{sT2}, s{sT2}, s{sT3}
        v_lshrrev_b32 v{vT2}, 4, v0
        v_lshlrev_b32 v{vT2}, 10, v{vT2}
        v_and_b32 v{vT3}, 15, v0
        v_lshl_add_u32 v{vT2}, v{vT3}, 4, v{vT2}
        v_add_u32 v{vT2}, s{sT2}, v{vT2}
        global_load_lds_dwordx4 v{vT2}, {P(sWD)}
        L_nowd:
        ''')
    A(f'''
    s_lshr_b32 s{sT2}, s{sM}, 2
    s_lshl_b32 s{sT2}, s{sT2}, 5
    s_lshl_b32 s{sT3}, s{sG}, 2
    s_add_u32 s{sT2}, s{sT2}, s{sT3}
    s_and_b32 s{sT3}, s{sM}, 3
    s_add_u32 s{sT2}, s{sT2}, s{sT3}
    s_mul_i32 s{sPT}, s{sT2}, {NPROD*64}
    s_add_u32 s{sPT}, s{sPT}, {PART}
    v_lshrrev_b32 v{vT1}, 3, v{vLANE}
    s_lshl_b32 s{sT0}, s{sWID}, 7
    s_add_u32 s{sT0}, s{sT0}, {XC}
    v_lshl_add_u32 v{vT1}, v{vT1}, 4, s{sT0}
    v_add_u32 v{vT0}, {X3}, v{vXL}
    ''')
    vR3 = 92
    if cfg.X3SLP:
        A(f'global_load_dwordx4 {q4(vU+4)}, v{vT1}, {P(sWS)} sc1')
        A(f's_sleep {cfg.X3SLP}')
        A(f'global_load_dwordx4 {q4(vR3)}, v{vT0}, {P(sWS)} sc1')
        xck = f'''v_xor_b32 v{vT2}, s{sTAG}, v{vU+5}
         v_xor_b32 v{vT3}, s{sTAG}, v{vU+7}
         v_or_b32 v{vT2}, v{vT2}, v{vT3}
         v_cmp_ne_u32 vcc, 0, v{vT2}'''
        A('s_waitcnt vmcnt(1)')
        A(xck)
        A('s_cbranch_vccnz L_pollc')
        A('L_pollc_back:')
        late.append(('L_pollc', lambda: (poll('L_pollcb', f'global_load_dwordx4 {q4(vU+4)}, v{vT1}, {P(sWS)} sc1', xck), A('s_nop 1'), A('s_branch L_pollc_back'))))
        stamp('xcok')
    else:
        poll('L_pollc', f'global_load_dwordx4 {q4(vU+4)}, v{vT1}, {P(sWS)} sc1',
             f'''v_xor_b32 v{vT2}, s{sTAG}, v{vU+5}
             v_xor_b32 v{vT3}, s{sTAG}, v{vU+7}
             v_or_b32 v{vT2}, v{vT2}, v{vT3}
             v_cmp_ne_u32 vcc, 0, v{vT2}''')
        stamp('xcok')
        vR3 = 92
        A(f'global_load_dwordx4 {q4(vR3)}, v{vT0}, {P(sWS)} sc1')
    allred([vU + 4, vU + 6], [S_, Q_])
    A(f'''
    v_and_b32 v{vT1}, 7, v0
    v_lshl_add_u32 v{vT1}, s{sWAVE}, 3, v{vT1}
    s_lshl_b32 s{sT0}, s{sM}, 6
    s_sub_u32 s{sT0}, 2047, s{sT0}
    v_sub_u32 v{vU}, s{sT0}, v{vT1}
    v_lshlrev_b32 v{vU+1}, 2, v{vT1}
    v_mov_b32 v{vT2}, 0
    ds_write_b32 v{vU+1}, v{vT2} offset:{L_ST}
    s_waitcnt vmcnt(0)
    v_cmp_ne_u32 vcc, s{sTAG}, v{vR3+3}
    s_cbranch_vccnz L_poll3
    L_poll3_back:
    ''')
    late.append(('L_poll3', lambda: (poll('L_poll3b', f'global_load_dwordx4 {q4(vR3)}, v{vT0}, {P(sWS)} sc1', f'v_cmp_ne_u32 vcc, s{sTAG}, v{vR3+3}'),
                 A('s_nop 1'), A('s_branch L_poll3_back'))))
    stamp('x3ok')
    allred([vR3, vR3 + 1, vR3 + 2], [S_, Q_, P_])
    lnstats(vR3, vR3 + 1, S_, vMn, vInv)
    vKey = 96
    A(f'''
    v_fma_f32 v{vKey}, -v{vMn}, v{vU+4}, v{vR3+2}
    v_fma_f32 v{vKey}, v{vKey}, v{vInv}, v{vU+6}
    v_cvt_pk_bf16_f32 v{vKey}, 0, v{vKey}
    v_ashrrev_i32 v{vT0}, 31, v{vKey}
    v_or_b32 v{vT0}, 0x80000000, v{vT0}
    v_and_b32 v{vT0}, s{sMASK}, v{vT0}
    v_xor_b32 v{vKey}, v{vKey}, v{vT0}
    v_or_b32 v{vKey}, v{vKey}, v{vU}
    ds_write_b32 v{vU+1}, v{vKey} offset:{L_KEY}
    s_waitcnt lgkmcnt(0)
    s_barrier
    ds_read_b128 {q4(vR3)}, v{vPA} offset:{L_KEY}
    ds_read_b128 {q4(vSQ)}, v{vPA} offset:{L_KEY+16}
    ''')
    vH2 = 56
    for i in range(8): A(f'v_sub_f32 v{vH2+i}, v{vZ1+i}, v{vMn}')
    for i in range(8): rnd(vH2 + i)
    A('s_waitcnt lgkmcnt(0)')
    vRk = 97
    A(f'v_mov_b32 v{vRk}, 0')
    ks = [vR3 + i for i in range(4)] + [vSQ + i for i in range(4)]
    for half in range(2):
        for i in range(4): A(f'v_cmp_gt_u32 {P(sC0+2*i)}, v{ks[4*half+i]}, v{vKey}')
        for i in range(4): A(f'v_addc_co_u32 v{vRk}, {P(sC0+2*i)}, 0, v{vRk}, {P(sC0+2*i)}')
    allred([vRk], [vT0], add='v_add_u32')
    A(f'''
    s_lshl_b32 s{sT0}, s{sWID}, 6
    s_add_u32 s{sT0}, s{sT0}, {KEYS}
    v_lshl_add_u32 v{vT0}, v{vRk}, 3, s{sT0}
    v_mov_b32 v{vR3}, v{vKey}
    v_mov_b32 v{vR3+1}, s{sTAG}
    v_cmp_gt_u32 {P(sEX)}, 8, v{vRk}
    s_and_b64 exec, {P(sEX)}, 0xff
    s_cbranch_execz L_nokey
    ''')
    lstore(f'global_store_dwordx2 v{vT0}, {pr(vR3)}, {P(sWS)}')
    A('L_nokey:')
    A('s_mov_b64 exec, -1')
    stamp('keyst')
    vWf = 130
    vKs = 154
    vM2, vM1 = 163, 164
    vRow = vKs + 2
    vPk = 110
    vOut = 126
    def h2calc():
        for i in range(8): A(f'v_mul_f32 v{vH2+i}, v{vH2+i}, v{vInv}')
        for i in range(8): rnd(vH2 + i)
        for i in range(8): A(f'v_mul_f32 v{vH2+i}, v{vH2+i}, v{vPar+32+i}')
        for i in range(8): rnd(vH2 + i)
        for i in range(8): A(f'v_add_f32 v{vH2+i}, v{vH2+i}, v{vPar+24+i}')
        for i in range(4):
            A(f'v_cvt_pk_bf16_f32 v{vPk+2*i}, v{vH2+2*i}, v{vH2+2*i+1}')
            A(f'v_mov_b32 v{vPk+2*i+1}, s{sTAG}')
        for i in range(4):
            A(f'v_cvt_pk_bf16_f32 v{vPk+8+2*i}, v{vZ1+2*i}, v{vZ1+2*i+1}')
            A(f'v_mov_b32 v{vPk+8+2*i+1}, s{sTAG}')
    def outcalc():
        for i in range(4): unpack(vH2 + 2*i, vPk + 2*i)
        for i in range(8): A(f'v_mul_f32 v{vH2+i}, v{vH2+i}, v{vPar+40+i}')
        for i in range(8): rnd(vH2 + i)
        for i in range(8): A(f'v_add_f32 v{vH2+i}, v{vH2+i}, v{vZ1+i}')
        for i in range(4): A(f'v_cvt_pk_bf16_f32 v{vOut+i}, v{vH2+2*i}, v{vH2+2*i+1}')
    def outstore():
        A(f'''
        s_andn2_b64 exec, exec, {P(sEX)}
        s_cbranch_execz L_noout3
        global_store_dwordx4 v{vJR}, {q4(vOut)}, {P(sOUT)} {cfg.OUT_FL}
        L_noout2:
        s_mov_b64 exec, -1
        ''')
    late.append(('L_noout3', lambda: (A('s_waitcnt vmcnt(0)'), A('s_branch L_noout2'))))
    h2calc()
    vGA_, vGS, vGL, vPS, vGW_, vGR_ = 142, 143, 144, 145, 146, 147
    vGA2, vGR2, vSLT = 148, 149, 150
    vG = 166
    A(f'''
    s_and_b32 s{sT1}, s{sM}, 3
    s_lshl_b32 s{sT2}, s{sT1}, 9
    s_add_u32 s{sT2}, s{sT2}, {H2R}
    v_and_b32 v{vGA_}, 31, v0
    v_lshl_add_u32 v{vGA_}, v{vGA_}, 4, s{sT2}
    v_bfe_u32 v{vGA2}, v0, 5, 3
    v_lshlrev_b32 v{vGA2}, 2, v{vGA2}
    ''')
    vOR = 200
    vHA = 98
    A(f'''
    v_and_b32 v{vOR}, 7, v0
    v_lshl_add_u32 v{vOR}, s{sWAVE}, 3, v{vOR}
    s_lshl_b32 s{sT0}, s{sM}, 6
    v_add_u32 v{vOR}, s{sT0}, v{vOR}
    v_lshrrev_b32 v{vT2}, 3, v{vLANE}
    s_lshl_b32 s{sT1}, s{sG}, 8
    s_add_u32 s{sT1}, s{sT1}, {H2P - 2048}
    v_lshl_add_u32 v{vHA}, v{vT2}, 4, s{sT1}
    v_lshl_add_u32 v{vT0}, v{vOR}, 11, v{vHA}
    v_add_u32 v{vT0}, {H2R - H2P + 2048}, v{vT0}
    s_mov_b64 exec, {P(sEX)}
    s_cbranch_execz L_noh2c
    global_store_dwordx4 v{vT0}, {q4(vPk)}, {P(sWS)} sc1
    global_store_dwordx4 v{vT0}, {q4(vPk+4)}, {P(sWS)} offset:128 sc1
    L_noh2c:
    s_mov_b64 exec, -1
    s_cmp_lg_u32 s{sWAVE}, 0
    s_cbranch_scc1 L_kskip
    v_and_b32 v{vT0}, 2, v0
    v_cmp_eq_u32 vcc, 0, v{vT0}
    v_cndmask_b32 v{vM2}, 0, -1, vcc
    v_and_b32 v{vT0}, 1, v0
    v_cmp_eq_u32 vcc, 0, v{vT0}
    v_cndmask_b32 v{vM1}, 0, -1, vcc
    s_lshl_b32 s{sT0}, s{sG}, 11
    s_add_u32 s{sT0}, s{sT0}, {KEYS}
    v_lshl_add_u32 v{vT0}, v{vLANE}, 3, s{sT0}
    ''')
    poll('L_pollk', '\n'.join(f'global_load_dwordx2 {pr(vKs+2*r)}, v{vT0}, {P(sWS)} offset:{512*r} sc1' for r in range(4)),
         f'''v_xor_b32 v{vT1}, s{sTAG}, v{vKs+1}
         v_xor_b32 v{vT2}, s{sTAG}, v{vKs+3}
         v_xor_b32 v{vT3}, s{sTAG}, v{vKs+5}
         v_or3_b32 v{vT1}, v{vT1}, v{vT2}, v{vT3}
         v_xor_b32 v{vT2}, s{sTAG}, v{vKs+7}
         v_or_b32 v{vT1}, v{vT1}, v{vT2}
         v_cmp_ne_u32 vcc, 0, v{vT1}''')
    stamp('keysok')
    def sort8(regs, tmps):
        for x, t in zip(regs, tmps): A(f'v_max_u32_dpp v{t}, v{x}, v{x} row_shl:4 row_mask:0xf bank_mask:0x5')
        for x, t in zip(regs, tmps): A(f'v_min_u32_dpp v{t}, v{x}, v{x} row_shr:4 row_mask:0xf bank_mask:0xa')
        for x, t in zip(regs, tmps): A(f'v_mov_b32_dpp v{x}, v{t} quad_perm:[2,3,0,1] {DPPM}')
        for x, t in zip(regs, tmps): A(f'v_med3_u32 v{t}, v{t}, v{x}, v{vM2}')
        for x, t in zip(regs, tmps): A(f'v_mov_b32_dpp v{x}, v{t} quad_perm:[1,0,3,2] {DPPM}')
        for x, t in zip(regs, tmps): A(f'v_med3_u32 v{x}, v{t}, v{x}, v{vM1}')
    k0, k1, k2, k3 = vKs, vKs + 2, vKs + 4, vKs + 6
    t0, t1 = vKs + 1, vKs + 3
    A(f'v_max_u32_dpp v{k0}, v{k1}, v{k0} row_half_mirror {DPPM}')
    A(f'v_max_u32_dpp v{k2}, v{k3}, v{k2} row_half_mirror {DPPM}')
    sort8([k0, k2], [t0, t1])
    A(f'v_max_u32_dpp v{k0}, v{k2}, v{k0} row_half_mirror {DPPM}')
    sort8([k0], [t0])
    A(f'v_max_u32_dpp v{k0}, v{k0}, v{k0} row_mirror {DPPM}')
    sort8([k0], [t0])
    for sw in ('v_permlane16_swap_b32', 'v_permlane32_swap_b32'):
        A(f'v_mov_b32 v{t1}, v{k0}')
        A(f'{sw} v{t1}, v{k0}')
        A(f'v_max_u32_dpp v{k0}, v{k0}, v{t1} row_half_mirror {DPPM}')
        sort8([k0], [t0])
    A(f'''
    v_and_b32 v{vRow}, 0x7ff, v{k0}
    v_sub_u32 v{vRow}, 2047, v{vRow}
    v_lshlrev_b32 v{vT2}, 2, v{vLANE}
    ds_write_b32 v{vT2}, v{vRow} offset:{L_GP}
    s_lshl_b32 s{sT0}, s{sM}, 6
    v_subrev_u32 v{vT1}, s{sT0}, v{vRow}
    v_add_u32 v{vT3}, 1, v{vLANE}
    v_cmp_gt_u32 vcc, 64, v{vT1}
    v_lshlrev_b32 v{vT1}, 2, v{vT1}
    s_and_b64 exec, vcc, 0xff
    ds_write_b32 v{vT1}, v{vT3} offset:{L_ST}
    s_mov_b64 exec, -1
    s_waitcnt lgkmcnt(0)
    s_branch L_kjoin
    L_kskip:
    ''')
    outcalc()
    A(f'''
    L_kjoin:
    s_barrier
    ds_read_b32 v{vGR2}, v{vGA2} offset:{L_GP}
    ds_read_b32 v{vSLT}, v{vU+1} offset:{L_ST}
    s_cmp_ge_u32 s{sM}, {NS3}
    s_cbranch_scc1 L_nog1
    s_cmp_ge_u32 s{sWAVE}, 4
    s_cbranch_scc1 L_nog1
    s_waitcnt lgkmcnt(1)
    v_lshl_add_u32 v{vGA_}, v{vGR2}, 11, v{vGA_}
    global_load_dwordx4 {q4(vG)}, v{vGA_}, {P(sWS)} sc1
    L_nog1:
    ''')
    stamp('top8')
    def x1out():
        A(f'''
        s_waitcnt lgkmcnt(0)
        v_cmp_ne_u32 {P(sEX)}, 0, v{vSLT}
        v_lshl_add_u32 v{vT0}, v{vSLT}, 11, v{vHA}
        v_add_u32 v{vT0}, {X1P - H2P}, v{vT0}
        s_mov_b64 exec, {P(sEX)}
        s_cbranch_execz L_noh2
        global_store_dwordx4 v{vT0}, {q4(vPk+8)}, {P(sWS)} sc1
        global_store_dwordx4 v{vT0}, {q4(vPk+12)}, {P(sWS)} offset:128 sc1
        L_noh2:
        s_mov_b64 exec, -1
        s_cmp_lg_u32 s{sWAVE}, 0
        s_cbranch_scc1 L_noc
        ''')
        outcalc()
        A('L_noc:')
        outstore()
    if cfg.OUTPOS == 'top8': x1out()
    A(f'''
    s_cmp_ge_u32 s{sM}, {NS3}
    s_cbranch_scc1 L_tail
    ''')
    GS_ = 272
    A(f'''
    s_lshr_b32 s{sT0}, s{sM}, 2
    s_mul_i32 s{sT1}, s{sG}, 7
    s_add_u32 s{sT0}, s{sT0}, s{sT1}
    s_and_b32 s{sT1}, s{sM}, 3
    v_lshrrev_b32 v{vT1}, 4, v{vLANE}
    v_and_b32 v{vT2}, 7, v0
    v_lshrrev_b32 v{vT3}, 5, v{vLANE}
    s_mov_b32 s{sHM}, 0x00ff00ff
    s_mov_b32 s{sHM+1}, 0x00ff00ff
    s_and_b32 s{sT3}, s{sWAVE}, 3
    v_lshl_add_u32 v{vT3}, s{sT3}, 1, v{vT3}
    v_mul_u32_u24 v{vGW_}, {GS_}, v{vT3}
    v_bfe_u32 v{vT3}, v0, 4, 1
    v_lshl_add_u32 v{vGW_}, v{vT3}, 7, v{vGW_}
    v_lshl_add_u32 v{vGW_}, v{vT2}, 4, v{vGW_}
    v_bfe_u32 v{vT3}, v0, 3, 1
    v_lshl_add_u32 v{vGW_}, v{vT3}, 3, v{vGW_}
    v_add_u32 v{vGW_}, {L_G2 - (L_G2 % 1024)}, v{vGW_}
    v_mul_u32_u24 v{vGR_}, {GS_}, v{vT2}
    v_lshl_add_u32 v{vGR_}, v{vT1}, 4, v{vGR_}
    s_lshr_b32 s{sT3}, s{sWAVE}, 2
    s_lshl_b32 s{sT3}, s{sT3}, 7
    v_add_u32 v{vGR_}, s{sT3}, v{vGR_}
    ''')
    A(f'''
    s_mov_b64 exec, -1
    s_and_b32 s{sT2}, s{sWID}, 0xfc
    s_lshl_b32 s{sT2}, s{sT2}, 13
    s_add_u32 s{sT2}, s{sT2}, {XB1}
    s_lshl_b32 s{sT3}, s{sT1}, 3
    s_add_u32 s{sT3}, s{sT3}, s{sWAVE}
    s_lshl_b32 s{sT4}, s{sT1}, 13
    s_lshl_b32 s{sT5}, s{sWAVE}, {10 if cfg.GXE else 9}
    s_add_u32 s{sT4}, s{sT4}, s{sT5}
    s_add_u32 s{sT4}, s{sT4}, s{sT2}
    v_lshl_add_u32 v{vGS}, v{vT1}, 3, v{vT2}
    v_lshl_add_u32 v{vGS}, v{vGS}, 4, s{sT4}
    s_mul_i32 s{sT3}, s{sT3}, {NPROD*64}
    s_lshl_b32 s{sT4}, s{sT0}, 6
    s_add_u32 s{sT3}, s{sT3}, s{sT4}
    s_add_u32 s{sT3}, s{sT3}, {PART}
    v_mul_u32_u24 v{vPS}, {32*NPROD*64}, v{vT2}
    v_lshl_add_u32 v{vPS}, v{vT1}, 4, v{vPS}
    v_add_u32 v{vPS}, s{sT3}, v{vPS}
    s_lshr_b32 s{sT3}, s{sWAVE}, 2
    s_lshl_b32 s{sT3}, s{sT3}, {10 if cfg.GXE else 9}
    s_and_b32 s{sT4}, s{sWAVE}, 3
    s_lshl_b32 s{sT4}, s{sT4}, 7
    s_add_u32 s{sT3}, s{sT3}, s{sT4}
    s_add_u32 s{sT3}, s{sT3}, s{sT2}
    v_lshlrev_b32 v{vGL}, 13, v{vT1}
    v_bfe_u32 v{vT3}, v0, 3, 1
    v_lshl_add_u32 v{vGL}, v{vT3}, {11 if cfg.GXE else 10}, v{vGL}
    v_lshl_add_u32 v{vGL}, v{vT2}, 4, v{vGL}
    v_add_u32 v{vGL}, s{sT3}, v{vGL}
    v_add_u32 v{vGA2}, 4096, v{vGL}
    s_mov_b64 {P(sC0+4)}, -1
    s_mov_b64 {P(sC0+6)}, -1
    v_and_b32 v{vT0}, 3, v0
    v_bfe_u32 v{vT2}, v0, 2, 2
    v_lshl_add_u32 v{vT2}, v{vT1}, 3, v{vT2}
    v_lshlrev_b32 v{vT3}, 6, v{vT2}
    v_lshl_add_u32 v{vT3}, v{vT0}, 3, v{vT3}
    s_lshr_b32 s{sT0}, s{sWAVE}, 2
    s_lshl_b32 s{sT0}, s{sT0}, 12
    s_bfe_u32 s{sT1}, s{sWAVE}, 0x10001
    s_lshl_b32 s{sT1}, s{sT1}, 13
    s_add_u32 s{sT0}, s{sT0}, s{sT1}
    s_and_b32 s{sT1}, s{sWAVE}, 1
    s_lshl_b32 s{sT1}, s{sT1}, 5
    s_add_u32 s{sT0}, s{sT0}, s{sT1}
    s_add_u32 s{sT0}, s{sT0}, {L_WGU}
    v_add_u32 v{vT3}, s{sT0}, v{vT3}
    ''')
    for ks_ in range(2):
        for hh in range(2):
            A(f'ds_read_b64_tr_b16 {pr(vWf + 4*ks_ + 2*hh)}, v{vT3} offset:{2048*ks_ + 256*hh}')
    A(f'''
    v_lshlrev_b32 v{vT3}, 8, v{vT2}
    v_lshl_add_u32 v{vT3}, v{vT0}, 3, v{vT3}
    s_lshl_b32 s{sT0}, s{sWAVE}, 5
    s_add_u32 s{sT0}, s{sT0}, {L_WGU + 16384}
    v_add_u32 v{vT3}, s{sT0}, v{vT3}
    ds_read_b64_tr_b16 {pr(vWf + 8)}, v{vT3}
    ds_read_b64_tr_b16 {pr(vWf + 10)}, v{vT3} offset:1024
    v_and_b32 v{vT0}, 7, v0
    v_lshrrev_b32 v{vT1}, 5, v{vLANE}
    v_bfe_u32 v{vT2}, v0, 4, 1
    v_lshl_add_u32 v{vT1}, v{vT1}, 1, v{vT2}
    v_lshl_add_u32 v{vT1}, s{sWAVE}, 2, v{vT1}
    v_lshlrev_b32 v{vT1}, 1, v{vT1}
    v_lshl_add_u32 v{vT1}, v{vT0}, 6, v{vT1}
    v_lshrrev_b32 v{vT2}, 4, v{vLANE}
    v_lshlrev_b32 v{vT2}, 4, v{vT2}
    v_lshl_add_u32 v{vT2}, v{vT0}, 6, v{vT2}
    s_mov_b32 s{sT2}, 0x03020105
    s_mov_b32 s{sT3}, 0x03020106
    s_mov_b32 s{sT4}, 0x03020107
    s_mov_b32 s{sT0}, 0x0004000c
    s_mov_b32 s{sT1}, 0x0402010c
    s_mov_b64 {P(sC0)}, -1
    s_mov_b64 {P(sC0+2)}, -1
    ''')
    vDg = 182
    A(f'''
    s_cmp_ge_u32 s{sWAVE}, 4
    s_cbranch_scc1 L_gskip
    ''')
    gck = f'''v_xor_b32 v{vG+1}, s{sTAG}, v{vG+1}
         v_xor_b32 v{vG+3}, s{sTAG}, v{vG+3}
         v_or_b32 v{vG+1}, v{vG+1}, v{vG+3}
         v_cmp_ne_u32 vcc, 0, v{vG+1}'''
    A('s_waitcnt vmcnt(0)' if cfg.OUTPOS == 'end' else 's_waitcnt vmcnt(1)')
    A(gck)
    A('s_cbranch_vccnz L_pollg')
    A('L_pollg_back:')
    late.append(('L_pollg', lambda: (poll('L_pollgb', f'global_load_dwordx4 {q4(vG)}, v{vGA_}, {P(sWS)} sc1', gck), A('s_branch L_pollg_back'))))
    A(f'''
    ds_write2_b32 v{vGW_}, v{vG}, v{vG+2} offset0:{(L_G2 % 1024)//4} offset1:{(L_G2 % 1024)//4 + 1}
    L_gskip:
    s_waitcnt lgkmcnt(0)
    ''')
    stamp('gath')
    A(f'''
    s_barrier
    ds_read_b128 {q4(vG)}, v{vGR_} offset:{L_G2}
    ds_read_b128 {q4(vG+8)}, v{vGR_} offset:{L_G2 + 64}
    s_waitcnt lgkmcnt(1)
    v_mfma_f32_16x16x32_bf16 {q4(vDg)}, {q4(vWf)}, {q4(vG)}, 0
    s_waitcnt lgkmcnt(0)
    v_mfma_f32_16x16x32_bf16 {q4(vDg)}, {q4(vWf+4)}, {q4(vG+8)}, {q4(vDg)}
    ''')
    def pack24(y):
        for d in range(3): A(f'v_perm_b32 v{y+d}, v{y+3}, v{y+d}, s{sT2+d}')
        A(f'v_mov_b32 v{y+3}, s{sTAG}')
    vE = 166
    def unp24(us, a, b):
        for u in us: A(f'v_perm_b32 v{u+3}, v{u+1}, v{u}, s{a}')
        for u in us: A(f'v_perm_b32 v{u+3}, v{u+2}, v{u+3}, s{b}')
    y = vE
    if cfg.GXE:
        A(f'''
        v_mov_b32 v{vDg+7}, s{sTAG}
        v_mov_b32 v{vDg+4}, v{vDg+2}
        v_mov_b32 v{vDg+5}, v{vDg+3}
        v_mov_b32 v{vDg+3}, s{sTAG}
        s_mov_b64 exec, {P(sHM)}
        ''')
        lstore(f'''global_store_dwordx4 v{vGS}, {q4(vDg)}, {P(sWS)}
        global_store_dwordx4 v{vGS}, {q4(vDg+4)}, {P(sWS)} offset:512''')
        stamp('preB6')
        mpoll('L_pollx', [(f'global_load_dwordx4 {q4(vE+4*i)}, v{vGL if i < 2 else vGA2}, {P(sWS)} offset:{512*(i&1)} sc1', vE + 4*i + 3, sC0 + 2*i) for i in range(4)])
        stamp('B6')
        A(f'''
        v_pk_add_f32 {pr(y)}, {pr(y)}, {pr(y+8)}
        v_pk_add_f32 {pr(y+2)}, {pr(y+4)}, {pr(y+12)}
        ''')
    else:
        pack24(vDg)
        A(f's_mov_b64 exec, {P(sHM)}')
        lstore(f'global_store_dwordx4 v{vGS}, {q4(vDg)}, {P(sWS)}')
        stamp('preB6')
        mpoll('L_pollx', [(f'global_load_dwordx4 {q4(vE)}, v{vGL}, {P(sWS)} sc1', vE + 3, sC0),
                          (f'global_load_dwordx4 {q4(vE+4)}, v{vGL}, {P(sWS)} offset:2048 sc1', vE + 7, sC0 + 2)])
        stamp('B6')
        unp24([vE, vE + 4], sT0, sT1)
        A(f'''
        v_pk_add_f32 {pr(y)}, {pr(y)}, {pr(y+4)}
        v_pk_add_f32 {pr(y+2)}, {pr(y+2)}, {pr(y+6)}
        ''')
    A(f'''
    v_permlane32_swap_b32 v{y}, v{y+2}
    v_permlane32_swap_b32 v{y+1}, v{y+3}
    v_add_f32 v{y}, v{y}, v{y+2}
    v_add_f32 v{y+1}, v{y+1}, v{y+3}
    v_permlane16_swap_b32 v{y}, v{y+1}
    v_add_f32 v{y}, v{y}, v{y+1}
    v_cvt_pk_bf16_f32 v{y}, 0, v{y}
    v_mul_f32 v{y+2}, 0xbfb8aa3b, v{y}
    v_exp_f32 v{y+2}, v{y+2}
    v_mov_b32_dpp v{y+1}, v{y} row_ror:8 {DPPM}
    v_add_f32 v{y+2}, 1.0, v{y+2}
    v_rcp_f32 v{y+2}, v{y+2}
    v_mul_f32 v{y}, v{y}, v{y+2}
    v_cvt_pk_bf16_f32 v{y}, 0, v{y}
    v_mul_f32 v{y}, v{y}, v{y+1}
    v_cvt_pk_bf16_f32 v{y}, v{y}, v{y}
    s_mov_b64 exec, {P(sHM)}
    ds_write_b16 v{vT1}, v{y} offset:{L_GU}
    s_mov_b64 exec, -1
    s_waitcnt lgkmcnt(0)
    s_barrier
    ds_read_b128 {q4(vE)}, v{vT2} offset:{L_GU}
    s_waitcnt lgkmcnt(0)
    v_mfma_f32_16x16x32_bf16 {q4(vDg)}, {q4(vWf+8)}, {q4(vE)}, 0
    ''')
    stamp('B7')
    pack24(vDg)
    A(f's_mov_b64 exec, {P(sHM)}')
    A(f'global_store_dwordx4 v{vPS}, {q4(vDg)}, {P(sWS)} sc1')
    A('s_mov_b64 exec, -1')
    stamp('partst')
    A(f'''
    s_cmp_lg_u32 s{sWID}, 0
    s_cbranch_scc1 L_noep
    s_cmp_lg_u32 s{sWAVE}, 2
    s_cbranch_scc1 L_noep
    s_add_u32 s{sT0}, s{sEP}, 1
    v_mov_b32 v{vT2}, {EPOCH}
    v_mov_b32 v{vT3}, s{sT0}
    s_mov_b64 exec, 1
    global_store_dword v{vT2}, v{vT3}, {P(sWS)} sc1
    s_mov_b64 exec, -1
    L_noep:
    L_tail:
    ''')
    if cfg.OUTPOS == 'end': x1out()
    A(f'''
    s_cmp_lg_u32 s{sM}, {NS3}
    s_cbranch_scc1 L_red
    ''')
    vWr = 130
    vHr = 134
    vHs = 142
    vPu = 166
    vRr = 182
    A(f'''
    v_lshlrev_b32 v{vT1}, 4, v{vLANE}
    global_load_dwordx4 {q4(vWr)}, v{vT1}, {P(sWR)}
    s_lshl_b32 s{sT3}, s{sWAVE}, 2
    v_mov_b32 v{vT0}, s{sT3}
    ds_read_b32 v{vT0}, v{vT0} offset:{L_GP}
    v_lshrrev_b32 v{vT2}, 3, v{vLANE}
    v_and_b32 v{vT3}, 7, v0
    v_lshlrev_b32 v{vT3}, 4, v{vT3}
    v_lshl_add_u32 v{vT3}, v{vT2}, 8, v{vT3}
    v_add_u32 v{vT3}, {H2R}, v{vT3}
    s_waitcnt lgkmcnt(0)
    v_lshl_add_u32 v{vT3}, v{vT0}, 11, v{vT3}
    s_lshl_b32 s{sT0}, s{sG}, 7
    s_lshl_b32 s{sT1}, s{sWAVE}, 3
    s_add_u32 s{sT0}, s{sT0}, s{sT1}
    s_add_u32 s{sT0}, s{sT0}, {SEL}
    v_mov_b32 v{vT0}, s{sT0}
    ''')
    poll('L_pollr', f'''global_load_dwordx4 {q4(vHr)}, v{vT3}, {P(sWS)} sc1
         global_load_dwordx4 {q4(vHr+4)}, v{vT3}, {P(sWS)} offset:128 sc1''',
         f'''v_xor_b32 v{vHr+1}, s{sTAG}, v{vHr+1}
         v_xor_b32 v{vHr+3}, s{sTAG}, v{vHr+3}
         v_xor_b32 v{vHr+5}, s{sTAG}, v{vHr+5}
         v_xor_b32 v{vHr+7}, s{sTAG}, v{vHr+7}
         v_or3_b32 v{vHr+1}, v{vHr+1}, v{vHr+3}, v{vHr+5}
         v_or_b32 v{vHr+1}, v{vHr+1}, v{vHr+7}
         v_cmp_ne_u32 vcc, 0, v{vHr+1}''')
    A(f'v_mov_b32 v{vRr}, 0')
    for i in range(4): A(f'v_dot2_f32_bf16 v{vRr}, v{vHr+2*i}, v{vWr+i}, v{vRr}')
    fullred([vRr], [vRr + 1])
    rnd(vRr)
    A(f'''
    v_mul_f32 v{vRr}, 0xbfb8aa3b, v{vRr}
    v_exp_f32 v{vRr}, v{vRr}
    v_add_f32 v{vRr}, 1.0, v{vRr}
    v_rcp_f32 v{vRr}, v{vRr}
    v_cvt_pk_bf16_f32 v{vRr}, 0, v{vRr}
    v_mov_b32 v{vRr+1}, s{sTAG}
    s_mov_b64 exec, 1
    ''')
    lstore(f'global_store_dwordx2 v{vT0}, {pr(vRr)}, {P(sWS)}')
    A(f'''
    s_mov_b64 exec, -1
    L_red:
    s_cmp_lg_u32 s{sWAVE}, 1
    s_cbranch_scc1 L_outlate
    v_lshl_add_u32 v{vT0}, v{vLANE}, 4, s{sPT}
    v_mov_b32 v{vPu+12}, 0
    v_mov_b32 v{vPu+13}, 0
    v_mov_b32 v{vPu+14}, 0
    v_mov_b32 v{vPu+15}, s{sTAG}
    s_and_b32 s{sT0}, s{sM}, 3
    s_and_b32 s{sT1}, s{sM}, 28
    v_mov_b32 v{vT3}, s{sT1}
    ds_read_b32 v{vOR+4}, v{vT3} offset:{L_GP}
    s_lshl_b32 s{sT3}, s{sT1}, 9
    s_add_u32 s{sT3}, s{sT3}, {H2P}
    s_lshl_b32 s{sT1}, s{sT1}, 1
    s_lshl_b32 s{sT4}, s{sG}, 7
    s_add_u32 s{sT1}, s{sT1}, s{sT4}
    s_add_u32 s{sT1}, s{sT1}, {SEL}
    v_mov_b32 v{vOR+5}, s{sT1}
    v_and_b32 v{vT1}, 3, v0
    v_lshlrev_b32 v{vT1}, 2, v{vT1}
    v_lshrrev_b32 v{vT2}, 5, v{vLANE}
    v_lshl_add_u32 v{vT1}, v{vT2}, 1, v{vT1}
    v_bfe_u32 v{vT2}, v0, 4, 1
    s_lshl_b32 s{sT4}, s{sT0}, 4
    v_add_u32 v{vT1}, s{sT4}, v{vT1}
    v_add_u32 v{vT3}, v{vT1}, v{vT2}
    v_lshlrev_b32 v{vOR}, 2, v{vT3}
    ds_read_b32 v{vOR+1}, v{vOR} offset:{L_MOD + 5*256}
    v_lshrrev_b32 v{vOR}, 3, v{vT1}
    v_lshlrev_b32 v{vOR}, 4, v{vOR}
    v_bfe_u32 v{vOR+2}, v{vT1}, 2, 1
    v_lshl_add_u32 v{vOR}, v{vOR+2}, 7, v{vOR}
    v_bfe_u32 v{vOR+2}, v{vT1}, 1, 1
    v_lshl_add_u32 v{vOR}, v{vOR+2}, 3, v{vOR}
    s_lshl_b32 s{sT5}, s{sG}, 8
    s_add_u32 s{sT5}, s{sT5}, s{sT3}
    v_add_u32 v{vT1}, s{sT5}, v{vOR}
    v_add_u32 v{vOR+2}, {X1P - H2P}, v{vT1}
    s_lshl_b32 s{sT5}, s{sG}, 8
    s_add_u32 s{sT5}, s{sT5}, {H2R}
    v_add_u32 v{vT1}, s{sT5}, v{vOR}
    s_lshl_b32 s{sT4}, s{sG}, 7
    v_lshl_add_u32 v{vOR+3}, v{vT3}, 1, s{sT4}
    v_lshlrev_b32 v{vT2}, 4, v{vT2}
    v_sub_u32 v{vT2}, 16, v{vT2}
    s_mov_b32 s{sT2}, 0x0004000c
    s_mov_b32 s{sT3}, 0x0402010c
    s_waitcnt lgkmcnt(0)
    v_lshl_add_u32 v{vOR+3}, v{vOR+4}, 10, v{vOR+3}
    v_lshl_add_u32 v{vT1}, v{vOR+4}, 11, v{vT1}
    ''')
    poll('L_polls', f'''global_load_dwordx2 {pr(vHs)}, v{vT1}, {P(sWS)} sc1
         global_load_dwordx2 {pr(vHs+2)}, v{vOR+2}, {P(sWS)} sc1
         global_load_dwordx2 {pr(vRr)}, v{vOR+5}, {P(sWS)} sc1''',
         f'''v_xor_b32 v{vHs+1}, s{sTAG}, v{vHs+1}
         v_xor_b32 v{vHs+3}, s{sTAG}, v{vHs+3}
         v_xor_b32 v{vRr+1}, s{sTAG}, v{vRr+1}
         v_or3_b32 v{vHs+1}, v{vHs+1}, v{vHs+3}, v{vRr+1}
         v_cmp_ne_u32 vcc, 0, v{vHs+1}''')
    A(f'''
    v_lshlrev_b32 v{vHs}, v{vT2}, v{vHs}
    v_and_b32 v{vHs}, s{sMASK}, v{vHs}
    v_lshlrev_b32 v{vHs+2}, v{vT2}, v{vHs+2}
    v_and_b32 v{vHs+2}, s{sMASK}, v{vHs+2}
    ''')
    stamp('redpre')
    if cfg.REDSLP: A(f's_sleep {cfg.REDSLP}')
    for i in range(3): A(f's_mov_b64 {P(sC0+2*i)}, -1')
    A(f's_mov_b32 s{sC0+6}, -1'); A(f's_mov_b32 s{sC0+7}, 0')
    mpoll('L_pollp', [(f'global_load_dwordx4 {q4(vPu+4*i)}, v{vT0}, {P(sWS)} offset:{1024*i} sc1', vPu + 4*i + 3, sC0 + 2*i) for i in range(4)])
    stamp('partok')
    unp24([vPu + 4*i for i in range(4)], sT2, sT3)
    for (a, b) in ((0, 1), (2, 3), (0, 2)):
        for h in range(2): A(f'v_pk_add_f32 {pr(vPu+4*a+2*h)}, {pr(vPu+4*a+2*h)}, {pr(vPu+4*b+2*h)}')
    y = vPu
    A(f'''
    v_permlane32_swap_b32 v{y}, v{y+2}
    v_permlane32_swap_b32 v{y+1}, v{y+3}
    v_add_f32 v{y}, v{y}, v{y+2}
    v_add_f32 v{y+1}, v{y+1}, v{y+3}
    v_permlane16_swap_b32 v{y}, v{y+1}
    v_add_f32 v{y}, v{y}, v{y+1}
    v_add_f32_dpp v{y}, v{y}, v{y} row_ror:8 {DPPM}
    v_add_f32_dpp v{y}, v{y}, v{y} row_ror:4 {DPPM}
    v_cvt_pk_bf16_f32 v{y}, 0, v{y}
    v_mul_f32 v{y}, v{y}, v{vRr}
    v_cvt_pk_bf16_f32 v{y}, 0, v{y}
    v_add_f32 v{y}, v{y}, v{vHs}
    v_cvt_pk_bf16_f32 v{y}, 0, v{y}
    v_mul_f32 v{y}, v{y}, v{vOR+1}
    v_cvt_pk_bf16_f32 v{y}, 0, v{y}
    v_add_f32 v{y}, v{y}, v{vHs+2}
    v_cvt_pk_bf16_f32 v{y}, v{y}, v{y}
    s_mov_b32 s{sT0}, 0x000f000f
    s_mov_b32 s{sT1}, 0x000f000f
    s_mov_b64 exec, {P(sT0)}
    global_store_short v{vOR+3}, v{y}, {P(sOUT)} {cfg.OUT_FL}
    s_mov_b64 exec, -1
    ''')
    A('L_outlate:')
    A('L_fin:')
    if cfg.DBL:
        A(f'''
        s_waitcnt vmcnt(0)
        s_memrealtime s[78:79]
        s_waitcnt lgkmcnt(0)
        s_sub_u32 s{sT0}, s{82 if cfg.DSITE else 78}, s74
        s_add_u32 s{sT0}, s{sT0}, s78
        s_cmp_lg_u32 s{sWAVE}, 1
        s_cbranch_scc1 L_end
        L_dbl:
        s_memrealtime s[80:81]
        s_waitcnt lgkmcnt(0)
        s_sub_u32 s{sT1}, s80, s{sT0}
        s_cmp_lt_i32 s{sT1}, 0
        s_cbranch_scc1 L_dbl
        ''')
    if cfg.DBGT:
        A(f'''
        s_memrealtime s[78:79]
        s_memtime s[80:81]
        s_cmp_lg_u32 s{sWAVE}, 0
        s_cbranch_scc1 L_end
        s_and_b32 s{sT0}, s{sWID}, 0x3f
        s_cmp_lg_u32 s{sT0}, 28
        s_cbranch_scc1 L_end
        s_waitcnt lgkmcnt(0)
        s_sub_u32 s{sT0}, s78, s74
        s_sub_u32 s{sT1}, s80, s76
        v_mov_b32 v4, s{sT0}
        v_mov_b32 v5, s{sT1}
        v_mov_b32 v6, s74
        v_mov_b32 v7, s78
        s_lshr_b32 s{sT0}, s{sWID}, 6
        s_lshl_b32 s{sT0}, s{sT0}, 4
        v_mov_b32 v8, s{sT0}
        s_mov_b64 exec, 1
        global_store_dwordx4 v8, v[4:7], {P(sDBG)}
        ''')
    if cfg.STAMP:
        A(f's_memtime s[{sST+2*nst[0]}:{sST+2*nst[0]+1}]'); nst[0] += 1
        if cfg.RTEND:
            A('s_waitcnt vmcnt(0)' if cfg.RTEND == 2 else 's_nop 0')
            A(f's_memrealtime s[{sST+2*nst[0]}:{sST+2*nst[0]+1}]'); nst[0] += 1
        A(f'''
        s_waitcnt lgkmcnt(0)
        s_lshl_b32 s{sT0}, s{sWID}, 3
        s_add_u32 s{sT0}, s{sT0}, s{sWAVE}
        s_lshl_b32 s{sT0}, s{sT0}, 7
        s_add_u32 s{sT0}, s{sT0}, {STAMPS}
        v_mov_b32 v{vT0}, s{sT0}
        s_mov_b64 exec, 1
        ''')
        for i in range(nst[0]):
            A(f'v_mov_b32 v{vT1}, s{sST+2*i}')
            A(f'global_store_dword v{vT0}, v{vT1}, {P(sWS)} offset:{4*i}')
        A(f'v_mov_b32 v{vT1}, s{sCNT}')
        A(f'global_store_dword v{vT0}, v{vT1}, {P(sWS)} offset:120')
        A(f'v_mov_b32 v{vT1}, s{sMODE}')
        A(f'global_store_dword v{vT0}, v{vT1}, {P(sWS)} offset:124')
    A('L_end:')
    A('s_endpgm')
    for k, t in slow:
        A(f'L_slow{k}:'); A('s_nop 4'); A(t); A('s_nop 1'); A(f's_branch L_back{k}')
    A('L_modeslow:')
    A(f'''
    s_mov_b32 s{sT4}, 64
    L_moderetry:
    global_load_dword v{vMT}, v{vPT}, {P(sWS)} sc1
    s_waitcnt vmcnt(0)
    s_mov_b32 s{sMODE}, {0 if cfg.FORCE_SLOW else 1}
    v_cmp_ne_u32 vcc, s{sXCC}, v{vMT}
    s_cbranch_vccz L_modeback
    s_mov_b32 s{sMODE}, 0
    v_subrev_u32 v{vMT+1}, s{sTAG}, v{vMT}
    v_subrev_u32 v{vMT+1}, 1, v{vMT+1}
    v_cmp_lt_u32 vcc, 15, v{vMT+1}
    s_cbranch_vccz L_modeback
    s_sub_u32 s{sT4}, s{sT4}, 1
    s_cbranch_scc0 L_moderetry
    s_branch L_modeback
    ''')
    for name, fn in late:
        A(name + ':'); fn()
    A('L_codeend:')
    return A

HEAD = open('adaLN_cond__ssm_conv_h3__moe_arch_mod__prompt.s.ref').read().split('; Override launch')[0]
def emit(path):
    A = build()
    s = HEAD + f'; @launch grid=(256,1,1) block=(512,1,1) lds={LDS_BYTES}\n'
    s += f'''.amdgcn_target "amdgcn-amd-amdhsa--gfx950"
.text
.globl {KNAME}
.p2align 8
.type {KNAME},@function
{KNAME}:
'''
    s += A.text()
    s += f'''.section .rodata,"a"
.p2align 6
.amdhsa_kernel {KNAME}
  .amdhsa_next_free_vgpr 248
  .amdhsa_next_free_sgpr 102
  .amdhsa_accum_offset 248
  .amdhsa_group_segment_fixed_size 0
  .amdhsa_kernarg_size 128
  .amdhsa_user_sgpr_count 2
  .amdhsa_user_sgpr_kernarg_segment_ptr 1
  .amdhsa_system_sgpr_workgroup_id_x 1
.end_amdhsa_kernel
'''
    open(path, 'w').write(s)
    return A

if __name__ == '__main__':
    out = sys.argv[1]
    for a in sys.argv[2:]:
        k, v = a.split('=')
        setattr(cfg, k, eval(v))
    A = emit(out)
    if cfg.STAMP: open(out + '.sites', 'w').write(' '.join(cfg.ORDER + ['end']))
    print('emitted', out, 'lines', len(A.out), 'pads', A.npad)
```

```python
import sys
from asmdsl import Asm

class Cfg:
    STAMP = False
    STOP = 99
    WS_BASE = 0
    WBL2 = False
    OUT_FL = ''
    POLL_CAP = 1000000
    FORCE_SLOW = False
    SEC = 'bar'
    WPOS = 'key'
    X3ACK = True
    GLOW = True
    ALIGN = False
    GXE = True
    RTEND = 0
    TLBW = False
    FPOS = 'k'
    X3SLP = 14
    DSITE = ''
    GPOS = 's1'
    X1PT = True
    GLOOP = 0
    PRIO = 3
    OUTPOS = 'top8'
    H2PT = False
    GSLP = 0
    HSLP = 16
    NOOUT = False
    REDSLP = 0
    WAFTER = True
    WDPOS = 's1'
    DBL = False
    DBGT = False
    NT = ''
    WPF = True
    PARTPT = False
    SITES = ()
    ORDER = []
cfg = Cfg()

KNAME = "adaLN_cond__ssm_conv_h3__moe_arch_mod__prompt_kernel"
EPOCH = 0; FL1 = 0x10000; FL2 = 0x12000; FLM = 0x14000; MTAB = 0x16000; KEYS = 0x18000; SEL = 0x1C000
XC = 0x20000; H2P = 0x28000; X1P = 0x2C000; MODP = 0x40000; PART = 0x80000
H2R = 0x800000; XB1 = 0x200000; X0 = 0x400000; X3 = 0x600000; GXB = 0; STAMPS = 0x2000000
NS3 = 28
NPROD = 56
NG0 = 8
USTR = 4160; UCH = 8 * USTR
L_MOD = 0
L_KEY = 2048
L_GP = 4096
L_CNT = 3328
L_ST = 3584
L_KVR = 8192; KVS = 4608
L_P = L_KVR + 2 * KVS
L_T = L_P; TS = 272
L_KD = L_P + 32768
L_U = L_KD + 8192
L_WGU = L_U + 2 * UCH
L_XS = L_WGU + 24576
L_END = L_WGU + 32768
L_Z = L_U
L_WD = L_U + 8192
L_G2 = L_P
L_GU = L_P + 8192
LDS_BYTES = 158720
assert L_END <= LDS_BYTES

sX, sK, sV, sSK, sF, sD, sWR = 4, 6, 8, 10, 12, 14, 18
sWG, sWU, sWD, sC, sWM, sOUT, sDBG, sWS = 20, 22, 24, 26, 28, 30, 32, 34
sG, sM, sWAVE, sTAG, sMODE, sXCC, sCNT, sTILE = 36, 37, 38, 39, 40, 41, 42, 43
sKSRD = 44
sFSRD = 48
sMASK = 52
sWID = 53
sEP = 54
sDV = 55
sT0, sT1, sT2, sT3, sT4, sT5 = 56, 57, 58, 59, 60, 61
sEX = 62
sC0 = 44
sWSR = 64
sOUTR = 68
sD0, sD1 = 72, 73
sPEND, sPT = 16, 17
sHM = 10
sST = 74
def P(s): return f's[{s}:{s+1}]'

import re
def to_buffer(line):
    for base, srd in ((sWS, sWSR), (sOUT, sOUTR)):
        b = re.escape(P(base)); R = f's[{srd}:{srd+3}]'
        m = re.match(rf'^\s*global_load_lds_(\w+) (v\d+), {b}(.*)$', line)
        if m: return f'buffer_load_{m.group(1)} {m.group(2)}, {R}, 0 offen{m.group(3)} lds'
        m = re.match(rf'^\s*global_load_(\w+) (v\S+), (v\d+), {b}(.*)$', line)
        if m: return f'buffer_load_{m.group(1)} {m.group(2)}, {m.group(3)}, {R}, 0 offen{m.group(4)}'
        m = re.match(rf'^\s*global_store_(\w+) (v\d+), (v\S+), {b}(.*)$', line)
        if m: return f'buffer_store_{m.group(1)} {m.group(3)}, {m.group(2)}, {R}, 0 offen{m.group(4)}'
    return line
def add_nt(line):
    if not cfg.NT: return line
    l = line.strip()
    if l.startswith('global_load') and any(P(b) in l for b in (sX, sK, sV, sWM, sWD, 12)) and 'sc1' not in l: return l + ' ' + cfg.NT
    if l.startswith('buffer_load') and (f's[{sKSRD}:{sKSRD+3}]' in l or f's[{sFSRD}:{sFSRD+3}]' in l): return l + ' ' + cfg.NT
    return line
class BAsm(Asm):
    def __call__(self, text):
        super().__call__('\n'.join(to_buffer(add_nt(l)) for l in text.strip().split('\n')))
def build():
    A = BAsm()
    if cfg.GLOW:
        GSKIP = f's_cmp_ge_u32 s{sM}, 24'; GTAU_CL = f's_min_u32 s{sT0}, s{sM}, 23'; GTAU = f's_mov_b32 s{sT0}, s{sM}'
    else:
        GSKIP = f's_cmp_lt_u32 s{sM}, {NG0}'; GTAU_CL = f's_max_u32 s{sT0}, s{sM}, {NG0}\n    s_sub_u32 s{sT0}, s{sT0}, {NG0}'; GTAU = f's_sub_u32 s{sT0}, s{sM}, {NG0}'
    slow = []
    late = []
    nst = [0]
    site = [0]
    def stamp(name=''):
        if cfg.DSITE == name:
            A('s_memrealtime s[82:83]')
            if name in ('B2', 'B3b'): A('s_waitcnt lgkmcnt(0)')
        if cfg.STAMP and (name in cfg.SITES or name == 'start'):
            assert sST + 2 * nst[0] + 3 <= 101
            A(f's_memtime s[{sST+2*nst[0]}:{sST+2*nst[0]+1}]'); nst[0] += 1
            cfg.ORDER.append(name)
            if name in ('B2', 'B3b'): A('s_waitcnt lgkmcnt(0)')
    uid = [0]
    def lstore(text):
        uid[0] += 1; k = uid[0]
        A(f's_cmp_eq_u32 s{sMODE}, 1')
        A(f's_cbranch_scc0 L_slow{k}')
        A(text)
        A(f'L_back{k}:')
        slow.append((k, '\n'.join(l + ' sc1' for l in text.strip().split('\n'))))
    def poll(name, loads, check, slp=0):
        A(f'{name}:')
        if slp: A(f's_sleep {slp}')
        A(loads)
        A('s_waitcnt vmcnt(0)')
        A(check)
        A(f's_sub_u32 s{sCNT}, s{sCNT}, 1')
        A('s_cselect_b64 vcc, 0, vcc')
        A(f's_cselect_b32 s{sCNT}, 0, s{sCNT}')
        A(f's_cbranch_vccnz {name}')
    def mpoll(name, items):
        A(f'{name}:')
        for k, (ld, tr, mk) in enumerate(items):
            A(f's_mov_b64 exec, {P(mk)}')
            A(f's_cbranch_execz {name}_s{k}')
            A(ld)
            A(f'{name}_s{k}:')
        A('s_mov_b64 exec, -1')
        A('s_waitcnt vmcnt(0)')
        for (ld, tr, mk) in items:
            if isinstance(tr, int): A(f'v_cmp_ne_u32 {P(mk)}, s{sTAG}, v{tr}')
            else: A(tr[0]); A(f'v_cmp_ne_u32 {P(mk)}, 0, v{tr[1]}')
        A(f's_or_b64 vcc, {P(items[0][2])}, {P(items[1][2])}')
        for (ld, tr, mk) in items[2:]: A(f's_or_b64 vcc, vcc, {P(mk)}')
        A(f's_sub_u32 s{sCNT}, s{sCNT}, 1')
        A('s_cselect_b64 vcc, 0, vcc')
        A(f's_cselect_b32 s{sCNT}, 0, s{sCNT}')
        A(f's_cbranch_vccnz {name}')
    def unpack(d, s):
        A(f'v_lshlrev_b32 v{d}, 16, v{s}')
        A(f'v_and_b32 v{d+1}, s{sMASK}, v{s}')
    def rnd(d, s=None):
        A(f'v_cvt_pk_bf16_f32 v{d}, 0, v{d if s is None else s}')
    def pr(r): return f'v[{r}:{r+1}]'
    def q4(r): return f'v[{r}:{r+3}]'
    DPPM = 'row_mask:0xf bank_mask:0xf'
    def allred(regs, tmps, add='v_add_f32'):
        for r in regs: A(f'{add}_dpp v{r}, v{r}, v{r} row_ror:8 {DPPM}')
        for sw in ('v_permlane16_swap_b32', 'v_permlane32_swap_b32'):
            for r, t in zip(regs, tmps): A(f'v_mov_b32 v{t}, v{r}')
            for r, t in zip(regs, tmps): A(f'{sw} v{t}, v{r}')
            for r, t in zip(regs, tmps): A(f'{add} v{r}, v{r}, v{t}')
    def fullred(regs, tmps, add='v_add_f32'):
        for pat in ('quad_perm:[1,0,3,2]', 'quad_perm:[2,3,0,1]', 'row_half_mirror'):
            for r in regs: A(f'{add}_dpp v{r}, v{r}, v{r} {pat} {DPPM}')
        allred(regs, tmps, add)
    def lnstats(S, Q, t0, mean_out, inv_out):
        A(f'v_mul_f32 v{S}, 0x3b000000, v{S}')
        A(f'v_mul_f32 v{Q}, 0x3b000000, v{Q}')
        A(f'v_fma_f32 v{t0}, -v{S}, v{S}, v{Q}')
        A(f'v_max_f32 v{t0}, 0, v{t0}')
        rnd(mean_out, S)
        rnd(t0)
        A(f'v_add_f32 v{t0}, 0x3727c5ac, v{t0}')
        rnd(t0)
        A(f'v_sqrt_f32 v{t0}, v{t0}')
        rnd(t0)
        A(f'v_rcp_f32 v{inv_out}, v{t0}')

    A(f'''
    s_cmp_ge_u32 s2, 256
    s_cbranch_scc1 L_end
    s_load_dwordx16 s[4:19], s[0:1], 0
    s_load_dwordx16 s[20:35], s[0:1], 64
    ''')
    if cfg.STAMP:
        A(f's_memrealtime s[{sST}:{sST+1}]'); nst[0] += 1
    if cfg.DBGT or cfg.DBL:
        A('s_memrealtime s[74:75]'); A('s_memtime s[76:77]')
    stamp('start')
    vLANE, vTID = 1, 0
    vA, vB, vT0, vT1, vT2, vT3 = 2, 3, 4, 5, 6, 7
    vPA = 9
    vJR = 8
    vX = 10
    vKr = 14
    vVr = 21
    vSk = 26
    vFl = 30
    vMT = 38
    vGW = 110
    vGC = 44
    vPT = 40
    A(f'''
    s_getreg_b32 s{sXCC}, hwreg(HW_REG_XCC_ID)
    s_and_b32 s{sG}, s2, 7
    s_lshr_b32 s{sM}, s2, 3
    v_lshrrev_b32 v{vT0}, 6, v0
    v_and_b32 v{vLANE}, 63, v0
    v_readfirstlane_b32 s{sWAVE}, v{vT0}
    s_and_b32 s{sXCC}, s{sXCC}, 15
    s_mov_b32 s{sMASK}, 0xffff0000
    s_mov_b32 s{sCNT}, {cfg.POLL_CAP}
    s_lshl_b32 s{sT0}, s{sM}, 16
    s_lshl_b32 s{sT1}, s{sG}, 7
    s_add_u32 s{sTILE}, s{sT0}, s{sT1}
    s_lshl_b32 s{sWID}, s{sG}, 5
    s_add_u32 s{sWID}, s{sWID}, s{sM}
    v_and_b32 v{vT0}, 31, v0
    v_lshrrev_b32 v{vT1}, 5, v0
    v_lshlrev_b32 v{vA}, 12, v{vT1}
    v_lshl_add_u32 v{vA}, v{vT0}, 2, v{vA}
    v_add_u32 v{vA}, s{sTILE}, v{vA}
    v_subrev_u32 v{vB}, 0xc00, v{vA}
    v_bfrev_b32 v{vT2}, 1
    v_cmp_gt_u32 vcc, 0xc00, v{vA}
    v_cndmask_b32 v{vB}, v{vB}, v{vT2}, vcc
    v_lshl_add_u32 v{vT2}, v{vT0}, 4, s{sT1}
    v_lshl_add_u32 v{vT2}, s{sT1}, 1, v{vT2}
    v_add_u32 v{vT2}, s{sT1}, v{vT2}
    ''')
    A(f'''
    s_add_u32 s{sT3}, s{sXCC}, 1
    v_mov_b32 v{vPT}, s{sWID}
    v_mov_b32 v{vPT+1}, s{sT3}
    s_lshl_b32 s{sT4}, s{sG}, 7
    s_lshl_b32 s{sT5}, s{sM}, 2
    s_add_u32 s{sT4}, s{sT4}, s{sT5}
    v_lshlrev_b32 v{vT0}, 4, v0
    v_subrev_u32 v{vT1}, 16, v{vT0}
    v_and_b32 v{vT3}, 255, v0
    v_cmp_eq_u32 vcc, 0, v{vT3}
    v_bfrev_b32 v{vT3}, 1
    v_cndmask_b32 v{vT1}, v{vT1}, v{vT3}, vcc
    s_lshl_b32 s{sT0}, s{sWID}, 13
    s_waitcnt lgkmcnt(0)
    s_load_dword s{sEP}, {P(sWS)}, {EPOCH + cfg.WS_BASE}
    global_load_dwordx4 {q4(vSk)}, v{vT2}, {P(sSK)}
    ''')
    for i in range(4): A(f'global_load_dword v{vKr+3+i}, v{vA}, {P(sK)} offset:{1024*i}')
    A(f'''
    s_mov_b32 s{sKSRD}, s{sK}
    s_mov_b32 s{sKSRD+1}, s{sK+1}
    s_mov_b32 s{sKSRD+2}, 0x200000
    s_mov_b32 s{sKSRD+3}, 0x20000
    s_mov_b32 exec_hi, 0
    ''')
    for i in range(3): A(f'buffer_load_dword v{vKr+i}, v{vB}, s[{sKSRD}:{sKSRD+3}], 0 offen offset:{1024*i}')
    A('s_mov_b64 exec, -1')
    for i in range(4): A(f'global_load_dword v{vVr+i}, v{vA}, {P(sV)} offset:{1024*i}')
    A(f'''
    s_add_u32 s{sWS}, s{sWS}, {cfg.WS_BASE}
    s_addc_u32 s{sWS+1}, s{sWS+1}, 0
    s_mov_b32 s{sWSR}, s{sWS}
    s_mov_b32 s{sWSR+1}, s{sWS+1}
    s_mov_b32 s{sWSR+2}, 0x4000000
    s_mov_b32 s{sWSR+3}, 0x20000
    s_mov_b32 s{sOUTR}, s{sOUT}
    s_mov_b32 s{sOUTR+1}, s{sOUT+1}
    s_mov_b32 s{sOUTR+2}, 0x200000
    s_mov_b32 s{sOUTR+3}, 0x20000
    s_add_u32 s{sFSRD}, s{sF}, s{sT0}
    s_addc_u32 s{sFSRD+1}, s{sF+1}, 0
    s_mov_b32 s{sFSRD+2}, 8192
    s_mov_b32 s{sFSRD+3}, 0x20000
    s_load_dword s{sDV}, {P(sD)}, s{sT4}
    ''')
    A(f'''
    s_cmp_lg_u32 s{sWAVE}, 7
    s_cbranch_scc1 L_nopt
    s_lshr_b32 s{sT0}, s{sM}, 2
    s_lshl_b32 s{sT0}, s{sT0}, 7
    s_lshl_b32 s{sT1}, s{sG}, 10
    s_add_u32 s{sT0}, s{sT0}, s{sT1}
    s_add_u32 s{sT1}, s{sT0}, {FL1}
    v_mov_b32 v{vPT+2}, s{sT1}
    s_add_u32 s{sT1}, s{sT0}, {FL2}
    v_writelane_b32 v{vPT+2}, s{sT1}, 2
    v_writelane_b32 v{vPT+2}, s{sT1}, 3
    s_lshl_b32 s{sT0}, s{sG}, 7
    s_add_u32 s{sT1}, s{sT0}, {FLM}
    v_writelane_b32 v{vPT+2}, s{sT1}, 4
    v_writelane_b32 v{vPT+2}, s{sT1}, 5
    s_add_u32 s{sT1}, s{sT0}, {SEL}
    v_writelane_b32 v{vPT+2}, s{sT1}, 6
    v_writelane_b32 v{vPT+2}, s{sT1}, 7
    s_lshl_b32 s{sT0}, s{sWID}, 6
    s_and_b32 s{sT0}, s{sT0}, 0xffffff80
    s_add_u32 s{sT1}, s{sT0}, {KEYS}
    v_writelane_b32 v{vPT+2}, s{sT1}, 8
    v_writelane_b32 v{vPT+2}, s{sT1}, 9
    v_and_b32 v{vPT+3}, 1, v0
    v_lshl_add_u32 v{vPT+2}, v{vPT+3}, 6, v{vPT+2}
    s_lshl_b32 s{sT0}, s{sWID}, 9
    s_add_u32 s{sT1}, s{sT0}, {MODP - 32*64}
    v_lshl_add_u32 v{vPT+3}, v{vLANE}, 6, s{sT1}
    v_cmp_lt_u32 vcc, 31, v{vLANE}
    v_cndmask_b32 v{vPT+2}, v{vPT+2}, v{vPT+3}, vcc
    s_lshl_b32 s{sT0}, s{sM}, 9
    s_add_u32 s{sT1}, s{sT0}, {H2P - 40*64}
    v_lshl_add_u32 v{vPT+3}, v{vLANE}, 6, s{sT1}
    v_cmp_lt_u32 vcc, 39, v{vLANE}
    v_cndmask_b32 v{vPT+2}, v{vPT+2}, v{vPT+3}, vcc
    s_mov_b32 exec_lo, 0x3ff
    s_mov_b32 exec_hi, {'0xffff' if cfg.H2PT else '0xff'}
    global_load_dword v{vPT+3}, v{vPT+2}, {P(sWS)} sc1
    s_mov_b64 exec, 0xffff
    s_getpc_b64 {P(sT0)}
    L_pc:
    s_lshl_b32 s{sT2}, s{sM}, 10
    v_lshl_add_u32 v{vPT+2}, v{vLANE}, 6, s{sT2}
    v_min_u32 v{vPT+2}, L_codeend-L_pc-4, v{vPT+2}
    global_load_dword v{vPT+3}, v{vPT+2}, {P(sT0)}
    s_mov_b64 exec, -1
    L_nopt:
    ''')
    if cfg.TLBW:
        tl = [(sWS, X0), (sWS, X3), (sOUT, 0), (sX, 0), (sWM, 0), (sWM, 0x200000), (sWG, 0), (sWU, 0), (sWD, 0), (sWS, XB1)]
        A(f'''
        s_cmp_lg_u32 s{sWAVE}, 6
        s_cbranch_scc1 L_notl
        s_lshl_b32 s{sT2}, s{sWID}, 12
        ''')
        for i, (b, off) in enumerate(tl):
            A(f's_add_u32 s{sT0}, s{b}, s{sT2}')
            A(f's_addc_u32 s{sT1}, s{b+1}, 0')
            if off:
                A(f's_add_u32 s{sT0}, s{sT0}, {off}')
                A(f's_addc_u32 s{sT1}, s{sT1}, 0')
            if i == 0:
                A(f'v_mov_b32 v{vPT+2}, s{sT0}'); A(f'v_mov_b32 v{vPT+3}, s{sT1}')
            else:
                A(f'v_writelane_b32 v{vPT+2}, s{sT0}, {i}'); A(f'v_writelane_b32 v{vPT+3}, s{sT1}, {i}')
        A(f'''
        s_mov_b64 exec, {(1 << len(tl)) - 1}
        global_load_dword v{vMT+1}, {pr(vPT+2)}, off
        s_mov_b64 exec, -1
        L_notl:
        ''')
    A(f'''
    v_mov_b32 v{vPT}, {L_CNT}
    v_mov_b32 v{vPT+1}, 0
    ds_write_b32 v{vPT}, v{vPT+1}
    v_and_b32 v{vT2}, 7, v0
    v_lshl_add_u32 v{vT2}, s{sWAVE}, 3, v{vT2}
    v_lshlrev_b32 v{vT2}, 10, v{vT2}
    v_lshrrev_b32 v{vT3}, 3, v{vLANE}
    v_lshl_add_u32 v{vJR}, v{vT3}, 4, v{vT2}
    v_add_u32 v{vJR}, s{sTILE}, v{vJR}
    s_barrier
    ''')
    def fload():
        A(f'''
        buffer_load_dwordx4 {q4(vFl+4)}, v{vT0}, s[{sFSRD}:{sFSRD+3}], 0 offen
        s_mov_b64 exec, 1
        buffer_load_dwordx4 {q4(vFl)}, v{vT1}, s[{sFSRD}:{sFSRD+3}], 0 offen
        s_mov_b64 exec, -1
        ''')
    if cfg.FPOS == 'bar': fload()
    A(f'''
    s_and_b32 s{sT0}, s{sM}, 3
    s_lshl_b32 s{sT0}, s{sT0}, 8
    s_and_b32 s{sT1}, s{sWAVE}, 3
    s_lshl_b32 s{sT1}, s{sT1}, 6
    s_add_u32 s{sT0}, s{sT0}, s{sT1}
    v_and_b32 v{vT2}, 0x38, v0
    v_add_u32 v{vT2}, s{sT0}, v{vT2}
    global_load_dwordx2 {pr(vGC)}, v{vT2}, {P(sC)}
    s_lshl_b32 s{sT0}, s{sG}, 9
    s_add_u32 s{sT0}, s{sT0}, {MTAB}
    v_and_b32 v{vPT}, 31, v0
    v_lshl_add_u32 v{vPT}, v{vPT}, 4, s{sT0}
    s_lshl_b32 s{sT1}, s{sM}, 4
    s_add_u32 s{sT0}, s{sT0}, s{sT1}
    v_mov_b32 v{vPT+1}, s{sT0}
    s_waitcnt lgkmcnt(0)
    s_mul_i32 s{sTAG}, s{sEP}, 0x9E3779B1
    s_add_u32 s{sTAG}, s{sTAG}, 0x7F4A7C15
    s_add_u32 s{sXCC}, s{sXCC}, s{sTAG}
    s_add_u32 s{sXCC}, s{sXCC}, 1
    v_mov_b32 v{vPT+2}, s{sXCC}
    s_cmp_lg_u32 s{sWAVE}, 0
    s_cbranch_scc1 L_nomode
    s_mov_b64 exec, 1
    global_store_dword v{vPT+1}, v{vPT+2}, {P(sWS)} sc1
    s_mov_b64 exec, -1
    L_nomode:
    ''')
    stamp('issued')
    A(f's_mov_b32 s{sPEND}, 0')
    vX1A, vUA, vTW, vTR = 96, 97, 98, 99
    vP1 = 100
    A(f'''
    v_and_b32 v{vT2}, 31, v0
    v_lshrrev_b32 v{vT3}, 5, v0
    v_mul_u32_u24 v{vTW}, {TS}, v{vT2}
    v_lshlrev_b32 v{vT3}, 3, v{vT3}
    v_sub_u32 v{vTW}, v{vTW}, v{vT3}
    v_add_u32 v{vTW}, {L_T + 120}, v{vTW}
    v_lshrrev_b32 v{vX1A}, 4, v0
    v_mul_u32_u24 v{vTR}, {TS}, v{vX1A}
    v_and_b32 v{vT3}, 15, v0
    v_lshl_add_u32 v{vTR}, v{vT3}, 4, v{vTR}
    v_lshlrev_b32 v{vX1A}, 13, v{vX1A}
    v_bfe_u32 v{vT3}, v0, 3, 1
    v_lshl_add_u32 v{vX1A}, v{vT3}, 12, v{vX1A}
    v_and_b32 v{vT3}, 7, v0
    v_lshl_add_u32 v{vX1A}, v{vT3}, 4, v{vX1A}
    s_lshl_b32 s{sT0}, s{sG}, 18
    s_sub_u32 s{sT1}, 31, s{sM}
    s_lshl_b32 s{sT1}, s{sT1}, 7
    s_add_u32 s{sT0}, s{sT0}, s{sT1}
    s_add_u32 s{sT0}, s{sT0}, {XB1}
    v_add_u32 v{vX1A}, s{sT0}, v{vX1A}
    s_lshl_b32 s{sT0}, s{sG}, 10
    s_lshl_b32 s{sT1}, s{sWAVE}, 7
    s_add_u32 s{sT0}, s{sT0}, s{sT1}
    s_lshl_b32 s{sT1}, s{sM}, 2
    s_add_u32 s{sT0}, s{sT0}, s{sT1}
    v_mov_b32 v{vA}, s{sT0}
    v_mov_b32 v{vB}, s{sTAG}
    v_lshrrev_b32 v{vUA}, 8, v0
    v_mul_u32_u24 v{vUA}, {UCH}, v{vUA}
    v_and_b32 v{vT3}, 255, v0
    v_lshl_add_u32 v{vUA}, v{vT3}, 4, v{vUA}
    v_add_u32 v{vUA}, {L_U}, v{vUA}
    s_lshl_b32 s{sT0}, s{sWID}, 13
    s_add_u32 s{sT0}, s{sT0}, {XB1}
    v_lshl_add_u32 v{vSk-1}, v0, 4, s{sT0}
    s_mov_b32 s{sHM}, 0x11111111
    s_mov_b32 s{sHM+1}, 0x11111111
    s_lshr_b32 s{sT2}, s{sM}, 2
    s_lshl_b32 s{sT2}, s{sT2}, 7
    s_lshl_b32 s{sT1}, s{sG}, 10
    s_add_u32 s{sT2}, s{sT2}, s{sT1}
    s_add_u32 s{sT2}, s{sT2}, {FL1}
    v_and_b32 v{vP1}, 31, v0
    v_lshl_add_u32 v{vP1}, v{vP1}, 2, s{sT2}
    s_lshl_b32 s{sT0}, s{sWID}, 13
    s_add_u32 s{sT0}, s{sT0}, {XB1}
    v_lshl_add_u32 v{vP1+1}, v{vLANE}, 4, s{sT0}
    v_add_u32 v{vP1+2}, 4096, v{vP1+1}
    ''')
    def wv(n): A(f's_waitcnt vmcnt({n})')
    vTp = 46
    vKp = 54
    vVp = 68
    vAc = 76
    vPp = 84
    vO = 92
    wv(7 if cfg.FPOS == 'bar' else 5)
    if cfg.FPOS == 'k': fload()
    for i in range(3): A(f'v_mov_b32 v{vPp+i}, v{vKr+4+i}')
    for i in range(3): A(f'v_permlane32_swap_b32 v{vKr+i}, v{vPp+i}')
    for j in range(4):
        src0, src1 = vSk + (j >> 1), vSk + 2 + (j >> 1)
        if j & 1:
            A(f'v_and_b32 v{vTp+2*j}, s{sMASK}, v{src0}'); A(f'v_and_b32 v{vTp+2*j+1}, s{sMASK}, v{src1}')
        else:
            A(f'v_lshlrev_b32 v{vTp+2*j}, 16, v{src0}'); A(f'v_lshlrev_b32 v{vTp+2*j+1}, 16, v{src1}')
    for r in range(7): unpack(vKp + 2*r, vKr + r)
    stamp('kland')
    for i in range(4): A(f'v_pk_mul_f32 {pr(vAc+2*i)}, {pr(vKp+2*i)}, {pr(vTp+6)}')
    for i in range(8): rnd(vAc + i)
    for j in (2, 1, 0):
        for i in range(4): A(f'v_pk_mul_f32 {pr(vPp+2*i)}, {pr(vKp+2*(i+3-j))}, {pr(vTp+2*j)}')
        for i in range(8): rnd(vPp + i)
        for i in range(4): A(f'v_pk_add_f32 {pr(vAc+2*i)}, {pr(vAc+2*i)}, {pr(vPp+2*i)}')
        for i in range(8): rnd(vAc + i)
    wv(3)
    A(f'global_load_dword v{vMT}, v{vPT}, {P(sWS)} sc1')
    if cfg.X1PT:
        A(f'''
        s_mov_b64 exec, {P(sHM)}
        global_load_dword v{vPT+3}, v{vSk-1}, {P(sWS)} sc1
        s_mov_b64 exec, -1
        ''')
    for i in range(4): unpack(vVp + 2*i, vVr + i)
    for i in range(4): A(f'v_pk_mul_f32 {pr(vAc+2*i)}, {pr(vAc+2*i)}, {pr(vVp+2*i)}')
    for c in range(2):
        A(f'v_cvt_pk_bf16_f32 v{vO+2*c}, v{vAc+6+c}, v{vAc+4+c}')
        A(f'v_cvt_pk_bf16_f32 v{vO+2*c+1}, v{vAc+2+c}, v{vAc+c}')
    A(f'''
    ds_write2_b64 v{vTW}, {pr(vO)}, {pr(vO+2)} offset0:0 offset1:16
    s_waitcnt lgkmcnt(0)
    s_barrier
    ds_read_b128 {q4(vO)}, v{vTR} offset:{L_T}
    ''')
    stamp('B1')
    A(f'''
    s_waitcnt lgkmcnt(0)
    global_store_dwordx4 v{vX1A}, {q4(vO)}, {P(sWS)}
    ''')
    vW1 = 46
    vOa = 52
    vOb = 58
    wv((4 if cfg.X1PT else 3) - (0 if cfg.FPOS == 'bar' else 1))
    for i in range(4): A(f'v_mov_b32_dpp v{vFl+i}, v{vFl+4+i} wave_shr:1 {DPPM}')
    for i in range(6): A(f'v_mov_b32 v{vW1+i}, v{vFl+1+i}')
    for i in range(6): A(f'v_alignbyte_b32 v{vOa+i}, v{vFl+i+1}, v{vFl+i}, 2')
    for i in range(6): A(f'v_alignbyte_b32 v{vOb+i}, v{vFl+i+2}, v{vFl+i+1}, 2')
    vKV = 132
    vWA = 144
    sWB = 12
    A(f'''
    {GSKIP}
    s_cselect_b32 s{sT0}, 0, 1
    s_cmp_lt_u32 s{sM}, {NS3}
    s_cselect_b32 s{sT1}, 2, 0
    s_add_u32 s{sPEND}, s{sT0}, s{sT1}
    ''')
    vSt = 188
    for i in range(2): unpack(vSt + 2*i, vGC + i)
    for i in range(4): A(f'v_mul_f32 v{vSt+4+i}, 0xbfb8aa3b, v{vSt+i}')
    for i in range(4): A(f'v_exp_f32 v{vSt+4+i}, v{vSt+4+i}')
    for i in range(4): A(f'v_add_f32 v{vSt+4+i}, 1.0, v{vSt+4+i}')
    for i in range(4): A(f'v_rcp_f32 v{vSt+4+i}, v{vSt+4+i}')
    for i in range(4): A(f'v_mul_f32 v{vSt+i}, v{vSt+i}, v{vSt+4+i}')
    for i in range(2): A(f'v_cvt_pk_bf16_f32 v{vGC+i}, v{vSt+2*i}, v{vSt+2*i+1}')
    A(f'''
    s_sub_u32 s{sT4}, s{sWAVE}, 4
    s_min_u32 s{sT5}, s{sM}, {NS3-1}
    s_lshr_b32 s{sT0}, s{sT5}, 2
    s_mul_i32 s{sT3}, s{sG}, 7
    s_add_u32 s{sT0}, s{sT0}, s{sT3}
    s_lshl_b32 s{sT2}, s{sT0}, 6
    s_and_b32 s{sT1}, s{sM}, 3
    s_lshl_b32 s{sT3}, s{sT1}, 1
    s_and_b32 s{sT5}, s{sWAVE}, 1
    s_add_u32 s{sT3}, s{sT3}, s{sT5}
    s_mul_i32 s{sT3}, s{sT3}, {64*3584}
    s_add_u32 s{sT2}, s{sT2}, s{sT3}
    v_lshrrev_b32 v{vWA}, 2, v{vLANE}
    v_mul_u32_u24 v{vWA}, 3584, v{vWA}
    v_and_b32 v{vT2}, 3, v0
    v_lshl_add_u32 v{vWA}, v{vT2}, 4, v{vWA}
    v_add_u32 v{vWA}, s{sT2}, v{vWA}
    s_cmp_ge_u32 s{sWAVE}, 6
    s_cselect_b32 s{sWB}, s{sWU}, s{sWG}
    s_cselect_b32 s{sWB+1}, s{sWU+1}, s{sWG+1}
    s_lshl_b32 s{sT2}, s{sT0}, 15
    s_lshl_b32 s{sT3}, s{sT1}, 8
    s_add_u32 s{sT2}, s{sT2}, s{sT3}
    s_lshl_b32 s{sT3}, s{sT4}, 13
    s_add_u32 s{sT2}, s{sT2}, s{sT3}
    v_lshrrev_b32 v{vT2}, 4, v{vLANE}
    v_lshlrev_b32 v{vT2}, 10, v{vT2}
    v_and_b32 v{vT3}, 15, v0
    v_lshl_add_u32 v{vT2}, v{vT3}, 4, v{vT2}
    v_add_u32 v{vWA+1}, s{sT2}, v{vT2}
    v_add_u32 v{vWA+2}, 4096, v{vWA+1}
    {GTAU_CL}
    s_lshr_b32 s{sT1}, s{sT0}, 2
    s_and_b32 s{sT3}, s{sT0}, 3
    s_lshl_b32 s{sT3}, s{sT3}, 7
    s_lshl_b32 s{sT5}, s{sT4}, 5
    s_add_u32 s{sT3}, s{sT3}, s{sT5}
    v_lshrrev_b32 v{vKV}, 3, v{vLANE}
    v_lshl_add_u32 v{vKV}, v{vKV}, 2, s{sT3}
    s_movk_i32 s{sT3}, 6144
    v_mul_lo_u32 v{vKV}, v{vKV}, s{sT3}
    v_and_b32 v{vT3}, 7, v0
    v_lshl_add_u32 v{vKV}, v{vT3}, 4, v{vKV}
    s_lshl_b32 s{sT1}, s{sT1}, 10
    s_lshl_b32 s{sT2}, s{sG}, 7
    s_add_u32 s{sT1}, s{sT1}, s{sT2}
    v_add_u32 v{vKV}, s{sT1}, v{vKV}
    v_lshl_add_u32 v{vKV+2}, v{vLANE}, 1, s{sT2}
    v_subrev_u32 v{vKV+3}, 0x8000, v{vJR}
    ''')
    A(f'''
    v_add_u32 v{vT2}, {FL1}, v{vA}
    s_mov_b32 s{sMODE}, {0 if cfg.FORCE_SLOW else 1}
    s_waitcnt vmcnt(0)
    v_cmp_ne_u32 vcc, s{sXCC}, v{vMT}
    s_cbranch_vccnz L_modeslow
    L_modeback:
    s_cmp_eq_u32 s{sMODE}, 1
    s_cbranch_scc0 L_x1slow
    L_x1back:
    s_mov_b64 exec, 1
    ''')
    late.append(('L_x1slow', lambda: (A(f'global_store_dwordx4 v{vX1A}, {q4(vO)}, {P(sWS)} sc1'), A('s_waitcnt vmcnt(0)'), A('s_branch L_x1back'))))
    lstore(f'global_store_dword v{vT2}, v{vB}, {P(sWS)}')
    A('s_mov_b64 exec, -1')
    stamp('flag1')
    srcs = {0: vOa, 1: vW1, 2: vOb, 3: vFl + 2, 4: vOa + 2, 5: vW1 + 2, 6: vOb + 2, 7: vFl + 4}
    def uwrites():
        for c in range(8): A(f'ds_write_b128 v{vUA}, {q4(srcs[c])} offset:{c*USTR + 16}')
    A(f's_cmp_lg_u32 s{sWAVE}, 4')
    A('s_cbranch_scc1 L_nouw')
    A(f's_mov_b32 m0, {L_KVR}')
    poll('L_poll1', f'global_load_dword v{vT2}, v{vP1}, {P(sWS)} sc1', f'v_cmp_ne_u32 vcc, s{sTAG}, v{vT2}')
    for i in range(4): A(f'global_load_lds_dwordx4 v{vP1+1}, {P(sWS)} offset:{1024*i} sc1')
    A(f's_mov_b32 m0, {L_KVR + KVS}')
    for i in range(4): A(f'global_load_lds_dwordx4 v{vP1+2}, {P(sWS)} offset:{1024*i} sc1')
    stamp('poll1')
    A('L_nouw:')
    uwrites()
    vZ = 64
    for i in range(4): A(f'v_mov_b32 v{vZ+i}, 0')
    vXp = 100
    vXA = 108
    vXL = 109
    A(f'''
    v_mul_u32_u24 v{vT0}, {USTR}, v{vLANE}
    v_lshrrev_b32 v{vT1}, 5, v{vLANE}
    v_mul_u32_u24 v{vT1}, {KVS - 512}, v{vT1}
    v_lshl_add_u32 v{vT1}, v{vLANE}, 4, v{vT1}
    v_add_u32 v{vT1}, {L_KVR + 4096}, v{vT1}
    s_cmp_lg_u32 s{sWAVE}, 0
    s_cbranch_scc1 L_nz0
    s_mov_b64 exec, 0xffff
    ds_write_b128 v{vT0}, {q4(vZ)} offset:{L_U}
    s_mov_b64 exec, -1
    ds_write_b128 v{vT1}, {q4(vZ)}
    L_nz0:
    v_lshrrev_b32 v{vT0}, 3, v{vLANE}
    v_and_b32 v{vT1}, 7, v0
    v_lshl_add_u32 v{vT1}, s{sWAVE}, 3, v{vT1}
    v_lshlrev_b32 v{vT1}, 4, v{vT1}
    v_lshl_add_u32 v{vXA}, v{vT0}, 18, v{vT1}
    s_lshl_b32 s{sT0}, s{sM}, 13
    s_lshl_b32 s{sT1}, s{sG}, 10
    s_add_u32 s{sT0}, s{sT0}, s{sT1}
    v_add_u32 v{vXA}, s{sT0}, v{vXA}
    v_lshl_add_u32 v{vXL}, v{vT0}, 10, v{vT1}
    s_lshl_b32 s{sT0}, s{sWID}, 13
    v_add_u32 v{vXL}, s{sT0}, v{vXL}
    s_cmp_ge_u32 s{sWAVE}, 4
    s_cbranch_scc1 L_helper
    ''')
    vAA, vBA, vPW = 110, 111, 112
    vACC = 116
    vFA = [148, 180]
    vFB = [212, 46]
    A(f'''
    v_and_b32 v{vT0}, 15, v0
    v_lshrrev_b32 v{vT1}, 4, v{vLANE}
    v_and_b32 v{vT2}, 7, v0
    v_mul_u32_u24 v{vAA}, {USTR}, v{vT2}
    v_lshrrev_b32 v{vT2}, 3, v{vT0}
    v_add_u32 v{vT2}, v{vT2}, v{vT1}
    v_lshl_add_u32 v{vAA}, v{vT2}, 4, v{vAA}
    s_lshr_b32 s{sT0}, s{sWAVE}, 1
    s_and_b32 s{sT1}, s{sWAVE}, 1
    s_lshl_b32 s{sT1}, s{sT1}, 8
    s_mul_i32 s{sT2}, s{sT0}, {UCH}
    s_add_u32 s{sT2}, s{sT2}, s{sT1}
    s_add_u32 s{sT2}, s{sT2}, {L_U}
    v_add_u32 v{vAA}, s{sT2}, v{vAA}
    v_lshlrev_b32 v{vBA}, 4, v{vT1}
    v_lshlrev_b32 v{vT2}, 5, v{vT0}
    v_sub_u32 v{vBA}, v{vBA}, v{vT2}
    s_mul_i32 s{sT2}, s{sT0}, {KVS}
    s_add_u32 s{sT2}, s{sT2}, s{sT1}
    s_add_u32 s{sT2}, s{sT2}, {L_KVR + 480}
    v_add_u32 v{vBA}, s{sT2}, v{vBA}
    ''')
    def ldA(st, r, p): A(f'ds_read_b128 {q4(vFA[st]+4*p)}, v{vAA} offset:{64*r + 512*p}')
    def ldB(st, r, q): A(f'ds_read_b128 {q4(vFB[st]+4*q)}, v{vBA} offset:{(7-q)*512 + 64*r}')
    A(f'''
    v_lshl_add_u32 v{vT2}, v{vT1}, 2, v{vT0}
    v_and_b32 v{vT2}, 15, v{vT2}
    v_lshl_add_u32 v{vT2}, v{vT1}, 4, v{vT2}
    v_lshlrev_b32 v{vPW}, 4, v{vT2}
    s_lshl_b32 s{sT0}, s{sWAVE}, 13
    s_add_u32 s{sT0}, s{sT0}, {L_P}
    v_add_u32 v{vPW}, s{sT0}, v{vPW}
    s_waitcnt lgkmcnt(0)
    s_barrier
    s_setprio {cfg.PRIO}
    ''')
    for i in range(8): ldA(0, 0, i)
    A('s_waitcnt lgkmcnt(0)')
    A('s_barrier')
    stamp('B2')
    for i in range(8): ldB(0, 0, i)
    order = [(p, j - p) for j in range(8) for p in range(j + 1)]
    for r in range(4):
        st = r & 1
        nxt = [(k, i) for i in range(8) for k in 'AB'] if r < 3 else []
        issued = 0
        written = 0
        for n, (p, q) in enumerate(order):
            j = p + q
            if p == 0 and r == 0:
                A(f's_waitcnt lgkmcnt({min(15, 8 - (j+1) + issued)})')
                if cfg.ALIGN: A('.p2align 3')
            c = '0' if (r == 0 and p == 0) else q4(vACC + 4*j)
            A(f'v_mfma_f32_16x16x32_bf16 {q4(vACC+4*j)}, {q4(vFA[st]+4*p)}, {q4(vFB[st]+4*q)}, {c}')
            if nxt and issued < 16 and n >= (4 if r == 0 else 1):
                k, i = nxt[issued]
                (ldA if k == 'A' else ldB)(st ^ 1, r + 1, i); issued += 1
            if r == 3:
                while written < 8 and n >= written*(written+3)//2 + 9 and written <= j - 1:
                    A(f'ds_write_b128 v{vPW}, {q4(vACC+4*written)} offset:{1024*written}'); written += 1
        if r < 3:
            A('s_waitcnt lgkmcnt(0)')
            if cfg.ALIGN: A('.p2align 3')
        else:
            while written < 8:
                A(f'ds_write_b128 v{vPW}, {q4(vACC+4*written)} offset:{1024*written}'); written += 1
    A('s_setprio 0')
    A('s_branch L_s1join')
    A('L_helper:')
    vKD = 116
    vKV = 132
    vXo = 140
    vI0 = 220
    vDUM = 230
    vWRr = 231
    vGW = 164
    vF2, vD2 = 54, 55
    wr_ = [0]
    def wvr(n_s3only, n_both, n_gonly):
        wr_[0] += 1; k = wr_[0]
        A(f'''
        s_cmp_lg_u32 s{sPEND}, 3
        s_cbranch_scc1 L_wr{k}a
        s_waitcnt vmcnt({n_both})
        L_wr{k}b:
        ''')
        late.append((f'L_wr{k}a', lambda: (A(f's_waitcnt vmcnt({min(n_s3only, n_gonly)})') if n_s3only == n_gonly else
                     A(f'''s_cmp_eq_u32 s{sPEND}, 2
                     s_cbranch_scc1 L_wr{k}c
                     s_waitcnt vmcnt({n_gonly})
                     s_branch L_wr{k}b
                     L_wr{k}c:
                     s_waitcnt vmcnt({n_s3only})'''), A(f's_branch L_wr{k}b'))))
    vWA = 144
    sWB = 12
    def wblock(tag):
        A(f'''
        s_cmp_ge_u32 s{sM}, {NS3}
        s_cbranch_scc1 L_h_now{tag}
        s_lshl_b32 s{sT5}, s{sT4}, 12
        s_add_u32 s{sT5}, s{sT5}, {L_WGU}
        ''')
        for i in range(4):
            A(f's_mov_b32 m0, s{sT5}')
            A(f'global_load_lds_dwordx4 v{vWA}, {P(sWB)}')
            if i < 3:
                A(f'v_add_u32 v{vWA}, {16*3584}, v{vWA}')
                A(f's_add_u32 s{sT5}, s{sT5}, 1024')
        if cfg.WDPOS == 's1': A(f'''
        s_lshl_b32 s{sT5}, s{sT4}, 11
        s_add_u32 s{sT5}, s{sT5}, {L_WGU + 16384}
        s_mov_b32 m0, s{sT5}
        s_add_u32 s{sT5}, s{sT5}, 1024
        global_load_lds_dwordx4 v{vWA+1}, {P(sWD)}
        s_mov_b32 m0, s{sT5}
        s_nop 0
        global_load_lds_dwordx4 v{vWA+2}, {P(sWD)}
        ''')
        A(f'L_h_now{tag}:')
    A(f'''
    L_h_b2a:
    s_waitcnt lgkmcnt(0)
    s_barrier
    global_load_dwordx4 {q4(vX)}, v{vJR}, {P(sX)}
    global_load_dwordx4 {q4(vXo)}, v{vKV+3}, {P(sX)}
    global_load_ushort v{vWRr}, v{vKV+2}, {P(sWR)}
    {GSKIP}
    s_cbranch_scc1 L_h_nog
    ''')
    for i in range(4):
        A(f'global_load_dwordx4 {q4(vGW+4*i)}, v{vKV}, {P(sWM)}')
        if i < 3: A(f'v_add_u32 v{vKV}, s{sT3}, v{vKV}')
    A('L_h_nog:')
    wvr(3, 7, 3 if cfg.GLOW else 7)
    A('s_barrier')
    wblock('a')
    A(f'''
    s_lshl_b32 s{sT0}, s{sWAVE}, 9
    s_sub_u32 s{sT0}, {L_KVR + 4088}, s{sT0}
    v_lshlrev_b32 v{vT0}, 3, v{vLANE}
    v_sub_u32 v{vT0}, s{sT0}, v{vT0}
    ds_read_b64 {pr(vKV)}, v{vT0}
    ds_read_b64 {pr(vKV+2)}, v{vT0} offset:{KVS}
    ds_read_b64 {pr(vKV+4)}, v{vT0} offset:2048
    ds_read_b64 {pr(vKV+6)}, v{vT0} offset:{KVS+2048}
    s_lshl_b32 s{sD0}, s{sDV}, 16
    s_and_b32 s{sD1}, s{sDV}, s{sMASK}
    s_waitcnt lgkmcnt(0)
    ''')
    for t in range(2):
        for c in range(2):
            b = vKD + 8*t + 4*c; s = vKV + 4*t + 2*c
            A(f'v_and_b32 v{b}, s{sMASK}, v{s+1}')
            A(f'v_lshlrev_b32 v{b+1}, 16, v{s+1}')
            A(f'v_and_b32 v{b+2}, s{sMASK}, v{s}')
            A(f'v_lshlrev_b32 v{b+3}, 16, v{s}')
            for i in range(4): A(f'v_mul_f32 v{b+i}, s{sD0+c}, v{b+i}')
            for i in range(4): rnd(b + i)
    A(f'''
    s_lshl_b32 s{sT1}, s{sT4}, 11
    s_add_u32 s{sT1}, s{sT1}, {L_KD}
    v_lshl_add_u32 v{vT0}, v{vLANE}, 4, s{sT1}
    ds_write_b128 v{vT0}, {q4(vKD+8)}
    ds_write_b128 v{vT0}, {q4(vKD+12)} offset:1024
    ''')
    A(f'''
    s_lshl_b32 s{sT1}, s{sT4}, 10
    s_add_u32 s{sT1}, s{sT1}, {L_XS}
    v_lshl_add_u32 v{vT0}, v{vLANE}, 4, s{sT1}
    ''')
    wvr(7, 11, 1 if cfg.GLOW else 5)
    A(f'ds_write_b128 v{vT0}, {q4(vXo)}')
    vXq = 186
    vS0 = 196
    for i in range(4): unpack(vXp + 2*i, vX + i)
    for i in range(4): unpack(vXq + 2*i, vXo + i)
    for (xb, u, t) in ((vXp, vS0, 204), (vXq, vS0 + 4, 208)):
        A(f'v_pk_add_f32 {pr(t)}, {pr(xb)}, {pr(xb+2)}')
        A(f'v_pk_mul_f32 {pr(t+2)}, {pr(xb)}, {pr(xb)}')
        for i in range(1, 4): A(f'v_pk_fma_f32 {pr(t+2)}, {pr(xb+2*i)}, {pr(xb+2*i)}, {pr(t+2)}')
        for i in range(2, 4): A(f'v_pk_add_f32 {pr(t)}, {pr(t)}, {pr(xb+2*i)}')
        A(f'v_add_f32 v{u}, v{t}, v{t+1}')
        A(f'v_add_f32 v{u+2}, v{t+2}, v{t+3}')
    allred([vS0, vS0 + 2, vS0 + 4, vS0 + 6], [204, 205, 206, 207])
    A(f'''
    v_mov_b32 v{vS0+1}, s{sTAG}
    v_mov_b32 v{vS0+3}, s{sTAG}
    v_mov_b32 v{vS0+5}, s{sTAG}
    v_mov_b32 v{vS0+7}, s{sTAG}
    v_add_u32 v{vT0}, {X0 - 512}, v{vXA}
    global_store_dwordx4 v{vT0}, {q4(vS0)}, {P(sWS)} offset:512 sc1
    global_store_dwordx4 v{vT0}, {q4(vS0+4)}, {P(sWS)} sc1
    ''')
    stamp('gemv0')
    def gemv_block(nb, ng):
        A(f'''
        {GSKIP}
        s_cbranch_scc1 L_g_done
        s_cmp_lt_u32 s{sWAVE}, 4
        s_cbranch_scc1 L_g_done
        ''')
        wvr(63, nb, ng)
        vSC = vGC
        vGA = 204
        vGP = 212
        A(f's_mov_b32 s{sT0}, 0x05040100')
        A(f's_mov_b32 s{sT1}, 0x07060302')
        for rp in range(2):
            w0, w1 = vGW + 8*rp, vGW + 8*rp + 4
            for d in range(4):
                A(f'v_perm_b32 v{vGP+2*d}, v{w1+d}, v{w0+d}, s{sT0}')
                A(f'v_perm_b32 v{vGP+2*d+1}, v{w1+d}, v{w0+d}, s{sT1}')
            for c in range(8): A(f'v_dot2_f32_bf16 v{vGA+c}, v{vGP+c}, v{vSC+rp}, ' + (f'v{vGA+c}' if rp else '0'))
        for c in range(4): A(f'v_permlane32_swap_b32 v{vGA+c}, v{vGA+c+4}')
        for c in range(4): A(f'v_add_f32 v{vGA+c}, v{vGA+c}, v{vGA+c+4}')
        for c in range(2): A(f'v_permlane16_swap_b32 v{vGA+c}, v{vGA+c+2}')
        for c in range(2): A(f'v_add_f32 v{vGA+c}, v{vGA+c}, v{vGA+c+2}')
        for c in range(2): A(f'v_add_f32_dpp v{vGA+c}, v{vGA+c}, v{vGA+c} row_ror:8 {DPPM}')
        A(f'''
        v_and_b32 v{vT0}, 8, v0
        v_cmp_ne_u32 vcc, 0, v{vT0}
        v_cndmask_b32 v{vGA}, v{vGA}, v{vGA+1}, vcc
        v_and_b32 v{vT0}, 7, v0
        v_lshrrev_b32 v{vT1}, 3, v{vLANE}
        v_lshl_add_u32 v{vT0}, v{vT0}, 3, v{vT1}
        s_sub_u32 s{sT0}, s{sWAVE}, 4
        s_lshl_b32 s{sT0}, s{sT0}, 8
        s_add_u32 s{sT0}, s{sT0}, {L_GP}
        v_lshl_add_u32 v{vT0}, v{vT0}, 2, s{sT0}
        ds_write_b32 v{vT0}, v{vGA}
        v_mov_b32 v{vT1}, {L_CNT}
        v_mov_b32 v{vT2}, 1
        s_waitcnt lgkmcnt(0)
        s_mov_b64 exec, 1
        ds_add_rtn_u32 v{vT2}, v{vT1}, v{vT2}
        s_mov_b64 exec, -1
        s_waitcnt lgkmcnt(0)
        v_readfirstlane_b32 s{sT0}, v{vT2}
        s_cmp_lg_u32 s{sT0}, 3
        s_cbranch_scc1 L_g_done
        v_lshlrev_b32 v{vT0}, 2, v{vLANE}
        ds_read2st64_b32 {pr(vGA)}, v{vT0} offset0:{L_GP//256} offset1:{L_GP//256+1}
        ds_read2st64_b32 {pr(vGA+2)}, v{vT0} offset0:{L_GP//256+2} offset1:{L_GP//256+3}
        {GTAU}
        s_lshl_b32 s{sT0}, s{sT0}, 9
        s_lshl_b32 s{sT1}, s{sG}, 14
        s_add_u32 s{sT0}, s{sT0}, s{sT1}
        s_add_u32 s{sT0}, s{sT0}, {MODP}
        v_lshl_add_u32 v{vT0}, v{vLANE}, 3, s{sT0}
        s_waitcnt lgkmcnt(0)
        v_pk_add_f32 {pr(vGA)}, {pr(vGA)}, {pr(vGA+2)}
        v_add_f32 v{vGA}, v{vGA}, v{vGA+1}
        v_mov_b32 v{vGA+1}, s{sTAG}
        ''')
        lstore(f'global_store_dwordx2 v{vT0}, {pr(vGA)}, {P(sWS)}')
        A('L_g_done:')
    if cfg.GPOS == 's1': gemv_block(8 if cfg.WDPOS == 's1' else 6, 2)
    A('L_s1join:')
    stamp('s1join')
    vPp0 = 148
    vKDe = 116
    vMn, vInv = 64, 65
    vH = 232
    vPar = 164
    vU = 46
    def rdpar(lst):
        for pi in lst:
            A(f'ds_read_b128 {q4(vPar+8*pi)}, v{vPA} offset:{L_MOD + 256*pi}')
            A(f'ds_read_b128 {q4(vPar+8*pi+4)}, v{vPA} offset:{L_MOD + 256*pi + 16}')
    A(f'''
    v_lshrrev_b32 v{vT0}, 2, v{vLANE}
    v_and_b32 v{vT1}, 3, v0
    v_lshl_add_u32 v{vT0}, v{vT1}, 2, v{vT0}
    v_and_b32 v{vT0}, 15, v{vT0}
    v_lshl_add_u32 v{vT0}, v{vT1}, 4, v{vT0}
    v_lshlrev_b32 v{vT0}, 4, v{vT0}
    s_lshl_b32 s{sT0}, s{sWAVE}, 10
    s_add_u32 s{sT1}, s{sT0}, {L_P}
    v_add_u32 v{vT0}, s{sT1}, v{vT0}
    s_lshl_b32 s{sT1}, s{sWAVE}, 11
    s_add_u32 s{sT1}, s{sT1}, {L_KD}
    v_lshl_add_u32 v{vT1}, v{vLANE}, 4, s{sT1}
    s_lshl_b32 s{sT2}, s{sWID}, 13
    s_add_u32 s{sT2}, s{sT2}, {XB1}
    v_lshl_add_u32 v{vT2}, v0, 4, s{sT2}
    v_lshlrev_b32 v{vT3}, 4, v0
    v_add_u32 v{vT3}, {L_XS}, v{vT3}
    v_lshrrev_b32 v{vPA}, 3, v{vLANE}
    v_lshlrev_b32 v{vPA}, 5, v{vPA}
    s_waitcnt lgkmcnt(0)
    s_barrier
    ''')
    for w in range(4): A(f'ds_read_b128 {q4(vPp0+4*w)}, v{vT0} offset:{8192*w}')
    A(f'''
    s_cmp_ge_u32 s{sWAVE}, 4
    s_cbranch_scc1 L_nokd
    ds_read_b128 {q4(vKDe)}, v{vT1}
    ds_read_b128 {q4(vKDe+4)}, v{vT1} offset:1024
    ds_read_b128 {q4(vX)}, v{vT3}
    L_nokd:
    s_waitcnt lgkmcnt(0)
    ''')
    for c in range(2):
        for h in range(2): A(f'v_pk_add_f32 {pr(vPp0+8*c+2*h)}, {pr(vPp0+8*c+2*h)}, {pr(vPp0+8*c+4+2*h)}')
    for c in range(2):
        for i in range(4): rnd(vPp0 + 8*c + i)
    for c in range(2):
        for h in range(2): A(f'v_pk_add_f32 {pr(vPp0+8*c+2*h)}, {pr(vPp0+8*c+2*h)}, {pr(vKDe+4*c+2*h)}')
    for i in range(4): A(f'v_cvt_pk_bf16_f32 v{vPp0+4+i}, v{vPp0+i}, v{vPp0+8+i}')
    lstore(f'global_store_dwordx4 v{vT2}, {q4(vPp0+4)}, {P(sWS)}')
    stamp('zst')
    vMQ = 140
    vXCA = 139
    vZA = 68
    A(f'''
    v_mov_b32 v{vXCA}, 0
    s_min_u32 s{sT5}, s{sWAVE}, 5
    s_cmp_eq_u32 s{sWAVE}, 6
    s_cselect_b32 s{sT5}, 3, s{sT5}
    s_cmp_eq_u32 s{sWAVE}, 7
    s_cselect_b32 s{sT5}, 4, s{sT5}
    s_lshl_b32 s{sT1}, s{sT5}, 11
    s_lshl_b32 s{sT2}, s{sG}, 14
    s_add_u32 s{sT1}, s{sT1}, s{sT2}
    s_add_u32 s{sT1}, s{sT1}, {MODP}
    v_lshl_add_u32 v{vD2+1}, v{vLANE}, 4, s{sT1}
    v_add_u32 v{vD2+2}, {X0}, v{vXL}
    ''')
    modld = '\n'.join([f'global_load_dwordx4 {q4(vMQ+4*i)}, v{vD2+1}, {P(sWS)} offset:{1024*i} sc1' for i in range(2)])
    chk = [f'v_xor_b32 v{vMQ+2*i+1}, s{sTAG}, v{vMQ+2*i+1}' for i in range(4)]
    chk += [f'v_or3_b32 v{vMQ+1}, v{vMQ+1}, v{vMQ+3}, v{vMQ+5}', f'v_or_b32 v{vMQ+1}, v{vMQ+1}, v{vMQ+7}', f'v_cmp_ne_u32 vcc, 0, v{vMQ+1}']
    x0ld = f'global_load_dwordx4 {q4(vI0)}, v{vD2+2}, {P(sWS)} sc1'
    x0chk = f'''v_xor_b32 v{vI0+1}, s{sTAG}, v{vI0+1}
         v_xor_b32 v{vI0+3}, s{sTAG}, v{vI0+3}
         v_or_b32 v{vI0+1}, v{vI0+1}, v{vI0+3}
         v_cmp_ne_u32 vcc, 0, v{vI0+1}'''
    A(x0ld)
    for i in range(4): unpack(vXp + 2*i, vX + i)
    if cfg.GPOS == 'zst': gemv_block(10, 4)
    A(f'''
    v_add_u32 v{vT1}, {FL2}, v{vA}
    s_lshr_b32 s{sT2}, s{sM}, 2
    s_lshl_b32 s{sT2}, s{sT2}, 7
    s_lshl_b32 s{sT3}, s{sG}, 10
    s_add_u32 s{sT2}, s{sT2}, s{sT3}
    s_lshl_b32 s{sT3}, s{sWAVE}, 4
    s_add_u32 s{sT2}, s{sT2}, s{sT3}
    s_add_u32 s{sT2}, s{sT2}, {FL2}
    v_and_b32 v{vF2}, 3, v0
    v_lshl_add_u32 v{vF2}, v{vF2}, 2, s{sT2}
    s_lshl_b32 s{sT3}, s{sWAVE}, 1
    v_subrev_u32 v{vD2}, s{sT3}, v0
    v_and_b32 v{vD2}, 15, v{vD2}
    v_lshlrev_b32 v{vD2}, 4, v{vD2}
    v_lshrrev_b32 v{vT2}, 4, v0
    v_lshl_add_u32 v{vD2}, v{vT2}, 13, v{vD2}
    s_lshl_b32 s{sT2}, s{sG}, 18
    s_lshl_b32 s{sT3}, s{sM}, 8
    s_add_u32 s{sT2}, s{sT2}, s{sT3}
    s_add_u32 s{sT2}, s{sT2}, {XB1}
    v_add_u32 v{vD2}, s{sT2}, v{vD2}
    s_lshl_b32 s{sT2}, s{sWAVE}, 10
    s_add_u32 s{sT2}, s{sT2}, {L_Z}
    s_mov_b32 m0, s{sT2}
    v_lshrrev_b32 v{vT0}, 3, v{vLANE}
    v_bfe_u32 v{vT2}, v0, 2, 1
    v_lshl_add_u32 v{vT2}, s{sWAVE}, 1, v{vT2}
    v_lshl_add_u32 v{vT2}, v{vT0}, 1, v{vT2}
    v_and_b32 v{vT2}, 15, v{vT2}
    v_lshlrev_b32 v{vT2}, 4, v{vT2}
    v_lshl_add_u32 v{vZA}, v{vT0}, 10, v{vT2}
    v_and_b32 v{vT2}, 3, v0
    v_lshl_add_u32 v{vZA}, v{vT2}, 2, v{vZA}
    s_mov_b32 s{sT0}, s{sT5}
    s_waitcnt vmcnt(1)
    s_mov_b64 exec, 1
    ''')
    lstore(f'global_store_dword v{vT1}, v{vB}, {P(sWS)}')
    A('s_mov_b64 exec, -1')
    stamp('flag2')
    A(modld)
    A('s_waitcnt vmcnt(3)')
    A(x0chk)
    A('s_cbranch_vccnz L_pollx0')
    A('L_pollx0_back:')
    late.append(('L_pollx0', lambda: (poll('L_pollx0b', x0ld, x0chk), A('s_nop 1'), A('s_branch L_pollx0_back'))))
    allred([vI0, vI0 + 2], [vI0 + 1, vI0 + 3])
    lnstats(vI0, vI0 + 2, vI0 + 1, vMn, vInv)
    for i in range(8): A(f'v_sub_f32 v{vH+i}, v{vXp+i}, v{vMn}')
    for i in range(8): rnd(vH + i)
    for i in range(8): A(f'v_mul_f32 v{vH+i}, v{vH+i}, v{vInv}')
    for i in range(8): rnd(vH + i)
    A('s_waitcnt vmcnt(0)')
    A('\n'.join(chk))
    A('s_cbranch_vccnz L_pollm')
    A('L_pollm_back:')
    late.append(('L_pollm', lambda: (poll('L_pollmb', modld, '\n'.join(chk)), A('s_branch L_pollm_back'))))
    stamp('modok')
    A(f'global_load_dword v{vI0}, v{vF2}, {P(sWS)} sc1')
    A(f'v_add_f32 v{vMQ}, v{vMQ}, v{vMQ+4}')
    A(f'v_add_f32 v{vMQ+2}, v{vMQ+2}, v{vMQ+6}')
    A(f'''
    v_permlane32_swap_b32 v{vMQ}, v{vMQ+2}
    v_add_f32 v{vMQ}, v{vMQ}, v{vMQ+2}
    v_cvt_pk_bf16_f32 v{vMQ}, 0, v{vMQ}
    v_add_f32 v{vMQ+1}, 1.0, v{vMQ}
    v_cvt_pk_bf16_f32 v{vMQ+1}, 0, v{vMQ+1}
    s_cmp_eq_u32 s{sT0}, 1
    s_cselect_b64 vcc, -1, 0
    s_cmp_eq_u32 s{sT0}, 4
    s_cselect_b64 vcc, -1, vcc
    v_cndmask_b32 v{vMQ}, v{vMQ}, v{vMQ+1}, vcc
    v_and_b32 v{vT0}, 31, v0
    v_lshrrev_b32 v{vT1}, 5, v{vLANE}
    v_lshl_add_u32 v{vT0}, v{vT0}, 1, v{vT1}
    v_lshlrev_b32 v{vT0}, 2, v{vT0}
    s_cmp_ge_u32 s{sWAVE}, 6
    s_cbranch_scc1 L_m67
    s_lshl_b32 s{sT1}, s{sT0}, 8
    v_add_u32 v{vT0}, s{sT1}, v{vT0}
    ds_write_b32 v{vT0}, v{vMQ} offset:{L_MOD}
    s_branch L_mjoin
    L_m67:
    ds_bpermute_b32 v{vT1}, v{vT0}, v{vWRr}
    s_waitcnt lgkmcnt(0)
    v_lshlrev_b32 v{vT1}, 16, v{vT1}
    v_mul_f32 v{vMQ+4}, v{vMQ}, v{vT1}
    s_cmp_eq_u32 s{sWAVE}, 7
    s_cselect_b32 s{sT1}, 0, 256
    s_cselect_b32 s{sT2}, 0, 8
    v_add_u32 v{vT0}, s{sT1}, v{vT0}
    ds_write_b32 v{vT0}, v{vMQ+4} offset:{L_MOD + 6*256}
    ''')
    fullred([vMQ + 4], [vMQ + 6])
    A(f'''
    v_mov_b32 v{vMQ+5}, s{sTAG}
    s_lshl_b32 s{sT0}, s{sM}, 7
    s_lshl_b32 s{sT1}, s{sG}, 4
    s_add_u32 s{sT0}, s{sT0}, s{sT1}
    s_add_u32 s{sT0}, s{sT0}, s{sT2}
    s_add_u32 s{sT0}, s{sT0}, {XC}
    v_lshl_add_u32 v{vXCA}, v{vLANE}, 12, s{sT0}
    L_mjoin:
    ''')
    A(f'''
    s_waitcnt vmcnt(0)
    v_cmp_ne_u32 vcc, s{sTAG}, v{vI0}
    s_mov_b32 s{sT4}, 0
    s_cbranch_vccnz L_p2n
    global_load_lds_dwordx4 v{vD2}, {P(sWS)} sc1
    s_mov_b32 s{sT4}, 1
    L_p2n:
    s_waitcnt lgkmcnt(0)
    s_barrier
    ''')
    rdpar((1, 0, 2, 6))
    A('s_waitcnt lgkmcnt(4)')
    for i in range(8): A(f'v_mul_f32 v{vH+i}, v{vH+i}, v{vPar+8+i}')
    for i in range(8): rnd(vH + i)
    for i in range(8): A(f'v_add_f32 v{vH+i}, v{vH+i}, v{vPar+i}')
    for i in range(8): rnd(vH + i)
    A(f'''
    s_cmp_eq_u32 s{sT4}, 1
    s_cbranch_scc1 L_p2d
    ''')
    poll('L_poll2', f'global_load_dword v{vT2}, v{vF2}, {P(sWS)} sc1', f'v_cmp_ne_u32 vcc, s{sTAG}, v{vT2}')
    A(f'global_load_lds_dwordx4 v{vD2}, {P(sWS)} sc1')
    A('L_p2d:')
    stamp('poll2')
    stamp('hdone')
    A('s_waitcnt vmcnt(0)')
    A('s_barrier')
    A(f'''
    s_cmp_lt_u32 s{sWAVE}, 6
    s_cbranch_scc1 L_noxc
    s_mov_b64 exec, 0xff
    global_store_dwordx2 v{vXCA}, {pr(vMQ+4)}, {P(sWS)} sc1
    s_mov_b64 exec, -1
    L_noxc:
    ''')
    stamp('B4')
    vZr = 70
    vZ1 = 74
    vSQ = 82
    A(f'ds_read2st64_b32 {pr(vZr)}, v{vZA} offset0:{L_Z//256} offset1:{L_Z//256+1}')
    A(f'ds_read2st64_b32 {pr(vZr+2)}, v{vZA} offset0:{L_Z//256+2} offset1:{L_Z//256+3}')
    A(f'v_add_u32 v{vT0}, {X3}, v{vXA}')
    A('s_waitcnt lgkmcnt(0)')
    for i in range(4): unpack(vZ1 + 2*i, vZr + i)
    for i in range(8): A(f'v_mul_f32 v{vZ1+i}, v{vZ1+i}, v{vH+i}')
    for i in range(8): rnd(vZ1 + i)
    for i in range(8): A(f'v_mul_f32 v{vZ1+i}, v{vZ1+i}, v{vPar+16+i}')
    for i in range(8): rnd(vZ1 + i)
    for i in range(8): A(f'v_add_f32 v{vZ1+i}, v{vZ1+i}, v{vXp+i}')
    for i in range(8): rnd(vZ1 + i)
    S_, Q_, P_ = vSQ, vSQ + 2, vSQ + 4
    A(f'v_pk_add_f32 {pr(S_)}, {pr(vZ1)}, {pr(vZ1+2)}')
    A(f'v_pk_mul_f32 {pr(Q_)}, {pr(vZ1)}, {pr(vZ1)}')
    A(f'v_pk_mul_f32 {pr(P_)}, {pr(vZ1)}, {pr(vPar+48)}')
    for i in range(1, 4):
        A(f'v_pk_fma_f32 {pr(Q_)}, {pr(vZ1+2*i)}, {pr(vZ1+2*i)}, {pr(Q_)}')
        A(f'v_pk_fma_f32 {pr(P_)}, {pr(vZ1+2*i)}, {pr(vPar+48+2*i)}, {pr(P_)}')
        if i >= 2: A(f'v_pk_add_f32 {pr(S_)}, {pr(S_)}, {pr(vZ1+2*i)}')
    vUn = vSQ + 6
    A(f'v_add_f32 v{vUn}, v{S_}, v{S_+1}')
    A(f'v_add_f32 v{vUn+1}, v{Q_}, v{Q_+1}')
    A(f'v_add_f32 v{vUn+2}, v{P_}, v{P_+1}')
    A(f'v_mov_b32 v{vUn+3}, s{sTAG}')
    allred([vUn, vUn + 1, vUn + 2], [S_, Q_, P_])
    A(f'global_store_dwordx4 v{vT0}, {q4(vUn)}, {P(sWS)} sc1')
    stamp('x3st')
    rdpar((3, 4, 5))
    if cfg.WBL2:
        A(f'''
        s_cmp_lg_u32 s{sM}, 31
        s_cbranch_scc1 L_nowb
        s_cmp_lg_u32 s{sWAVE}, 7
        s_cbranch_scc1 L_nowb
        buffer_wbl2 sc1
        L_nowb:
        ''')
    if cfg.WDPOS == 'x3':
        A(f'''
        s_cmp_ge_u32 s{sM}, {NS3}
        s_cbranch_scc1 L_nowd
        s_lshr_b32 s{sT0}, s{sM}, 2
        s_mul_i32 s{sT1}, s{sG}, 7
        s_add_u32 s{sT0}, s{sT0}, s{sT1}
        s_and_b32 s{sT1}, s{sM}, 3
        s_lshl_b32 s{sT4}, s{sWAVE}, 10
        s_add_u32 s{sT4}, s{sT4}, {L_WGU + 16384}
        s_mov_b32 m0, s{sT4}
        s_lshl_b32 s{sT2}, s{sT0}, 15
        s_lshl_b32 s{sT3}, s{sT1}, 8
        s_add_u32 s{sT2}, s{sT2}, s{sT3}
        v_lshrrev_b32 v{vT2}, 4, v0
        v_lshlrev_b32 v{vT2}, 10, v{vT2}
        v_and_b32 v{vT3}, 15, v0
        v_lshl_add_u32 v{vT2}, v{vT3}, 4, v{vT2}
        v_add_u32 v{vT2}, s{sT2}, v{vT2}
        global_load_lds_dwordx4 v{vT2}, {P(sWD)}
        L_nowd:
        ''')
    A(f'''
    s_lshr_b32 s{sT2}, s{sM}, 2
    s_lshl_b32 s{sT2}, s{sT2}, 5
    s_lshl_b32 s{sT3}, s{sG}, 2
    s_add_u32 s{sT2}, s{sT2}, s{sT3}
    s_and_b32 s{sT3}, s{sM}, 3
    s_add_u32 s{sT2}, s{sT2}, s{sT3}
    s_mul_i32 s{sPT}, s{sT2}, {NPROD*64}
    s_add_u32 s{sPT}, s{sPT}, {PART}
    v_lshrrev_b32 v{vT1}, 3, v{vLANE}
    s_lshl_b32 s{sT0}, s{sWID}, 7
    s_add_u32 s{sT0}, s{sT0}, {XC}
    v_lshl_add_u32 v{vT1}, v{vT1}, 4, s{sT0}
    v_add_u32 v{vT0}, {X3}, v{vXL}
    ''')
    vR3 = 92
    vX3A = 99
    vWf = 130
    vM2, vM1 = 163, 162
    vGL2, vUW, vUR, vHC, vKA = 151, 152, 153, 246, 247
    A(f'v_mov_b32 v{vX3A}, v{vT0}')
    A(f'v_mov_b32 v{vU+2}, v{vT1}')
    A(f'global_load_dwordx4 {q4(vU+4)}, v{vT1}, {P(sWS)} sc1')
    vGA_, vGS, vGL, vPS, vGW_, vGR_ = 142, 143, 144, 145, 146, 147
    vGA2, vGR2, vSLT = 148, 149, 150
    vG = 166
    A(f'''
    s_and_b32 s{sT1}, s{sM}, 3
    s_lshl_b32 s{sT2}, s{sT1}, 9
    s_add_u32 s{sT2}, s{sT2}, {H2R}
    v_and_b32 v{vGA_}, 31, v0
    v_lshl_add_u32 v{vGA_}, v{vGA_}, 4, s{sT2}
    v_bfe_u32 v{vGA2}, v0, 5, 3
    v_lshlrev_b32 v{vGA2}, 2, v{vGA2}
    ''')
    vOR = 240
    vHA = 98
    A(f'''
    v_and_b32 v{vOR}, 7, v0
    v_lshl_add_u32 v{vOR}, s{sWAVE}, 3, v{vOR}
    s_lshl_b32 s{sT0}, s{sM}, 6
    v_add_u32 v{vOR}, s{sT0}, v{vOR}
    v_lshrrev_b32 v{vT2}, 3, v{vLANE}
    s_lshl_b32 s{sT1}, s{sG}, 8
    s_add_u32 s{sT1}, s{sT1}, {H2P - 2048}
    v_lshl_add_u32 v{vHA}, v{vT2}, 4, s{sT1}
    v_lshl_add_u32 v{vHC}, v{vOR}, 11, v{vHA}
    v_add_u32 v{vHC}, {H2R - H2P + 2048}, v{vHC}
    v_and_b32 v{vT0}, 2, v0
    v_cmp_eq_u32 vcc, 0, v{vT0}
    v_cndmask_b32 v{vM2}, 0, -1, vcc
    v_and_b32 v{vT0}, 1, v0
    v_cmp_eq_u32 vcc, 0, v{vT0}
    v_cndmask_b32 v{vM1}, 0, -1, vcc
    s_lshl_b32 s{sT0}, s{sG}, 11
    s_add_u32 s{sT0}, s{sT0}, {KEYS}
    v_lshl_add_u32 v{vKA}, v{vLANE}, 3, s{sT0}
    ''')
    GS_ = 272
    A(f'''
    s_lshr_b32 s{sT0}, s{sM}, 2
    s_mul_i32 s{sT1}, s{sG}, 7
    s_add_u32 s{sT0}, s{sT0}, s{sT1}
    s_and_b32 s{sT1}, s{sM}, 3
    v_lshrrev_b32 v{vT1}, 4, v{vLANE}
    v_and_b32 v{vT2}, 7, v0
    v_lshrrev_b32 v{vT3}, 5, v{vLANE}
    s_mov_b32 s{sHM}, 0x00ff00ff
    s_mov_b32 s{sHM+1}, 0x00ff00ff
    s_and_b32 s{sT3}, s{sWAVE}, 3
    v_lshl_add_u32 v{vT3}, s{sT3}, 1, v{vT3}
    v_mul_u32_u24 v{vGW_}, {GS_}, v{vT3}
    v_bfe_u32 v{vT3}, v0, 4, 1
    v_lshl_add_u32 v{vGW_}, v{vT3}, 7, v{vGW_}
    v_lshl_add_u32 v{vGW_}, v{vT2}, 4, v{vGW_}
    v_bfe_u32 v{vT3}, v0, 3, 1
    v_lshl_add_u32 v{vGW_}, v{vT3}, 3, v{vGW_}
    v_add_u32 v{vGW_}, {L_G2 - (L_G2 % 1024)}, v{vGW_}
    v_mul_u32_u24 v{vGR_}, {GS_}, v{vT2}
    v_lshl_add_u32 v{vGR_}, v{vT1}, 4, v{vGR_}
    s_lshr_b32 s{sT3}, s{sWAVE}, 2
    s_lshl_b32 s{sT3}, s{sT3}, 7
    v_add_u32 v{vGR_}, s{sT3}, v{vGR_}
    ''')
    A(f'''
    s_mov_b64 exec, -1
    s_and_b32 s{sT2}, s{sWID}, 0xfc
    s_lshl_b32 s{sT2}, s{sT2}, 13
    s_add_u32 s{sT2}, s{sT2}, {XB1}
    s_lshl_b32 s{sT3}, s{sT1}, 3
    s_add_u32 s{sT3}, s{sT3}, s{sWAVE}
    s_lshl_b32 s{sT4}, s{sT1}, 13
    s_lshl_b32 s{sT5}, s{sWAVE}, {10 if cfg.GXE else 9}
    s_add_u32 s{sT4}, s{sT4}, s{sT5}
    s_add_u32 s{sT4}, s{sT4}, s{sT2}
    v_lshl_add_u32 v{vGS}, v{vT1}, 3, v{vT2}
    v_lshl_add_u32 v{vGS}, v{vGS}, 4, s{sT4}
    s_mul_i32 s{sT3}, s{sT3}, {NPROD*64}
    s_lshl_b32 s{sT4}, s{sT0}, 6
    s_add_u32 s{sT3}, s{sT3}, s{sT4}
    s_add_u32 s{sT3}, s{sT3}, {PART}
    v_mul_u32_u24 v{vPS}, {32*NPROD*64}, v{vT2}
    v_lshl_add_u32 v{vPS}, v{vT1}, 4, v{vPS}
    v_add_u32 v{vPS}, s{sT3}, v{vPS}
    s_lshr_b32 s{sT3}, s{sWAVE}, 2
    s_lshl_b32 s{sT3}, s{sT3}, {10 if cfg.GXE else 9}
    s_and_b32 s{sT4}, s{sWAVE}, 3
    s_lshl_b32 s{sT4}, s{sT4}, 7
    s_add_u32 s{sT3}, s{sT3}, s{sT4}
    s_add_u32 s{sT3}, s{sT3}, s{sT2}
    v_lshlrev_b32 v{vGL}, 13, v{vT1}
    v_bfe_u32 v{vT3}, v0, 3, 1
    v_lshl_add_u32 v{vGL}, v{vT3}, {11 if cfg.GXE else 10}, v{vGL}
    v_lshl_add_u32 v{vGL}, v{vT2}, 4, v{vGL}
    v_add_u32 v{vGL}, s{sT3}, v{vGL}
    v_add_u32 v{vGL2}, 4096, v{vGL}
    v_and_b32 v{vT0}, 3, v0
    v_bfe_u32 v{vT2}, v0, 2, 2
    v_lshl_add_u32 v{vT2}, v{vT1}, 3, v{vT2}
    v_lshlrev_b32 v{vT3}, 6, v{vT2}
    v_lshl_add_u32 v{vT3}, v{vT0}, 3, v{vT3}
    s_lshr_b32 s{sT0}, s{sWAVE}, 2
    s_lshl_b32 s{sT0}, s{sT0}, 12
    s_bfe_u32 s{sT1}, s{sWAVE}, 0x10001
    s_lshl_b32 s{sT1}, s{sT1}, 13
    s_add_u32 s{sT0}, s{sT0}, s{sT1}
    s_and_b32 s{sT1}, s{sWAVE}, 1
    s_lshl_b32 s{sT1}, s{sT1}, 5
    s_add_u32 s{sT0}, s{sT0}, s{sT1}
    s_add_u32 s{sT0}, s{sT0}, {L_WGU}
    v_add_u32 v{vT3}, s{sT0}, v{vT3}
    ''')
    for ks_ in range(2):
        for hh in range(2):
            A(f'ds_read_b64_tr_b16 {pr(vWf + 4*ks_ + 2*hh)}, v{vT3} offset:{2048*ks_ + 256*hh}')
    A(f'''
    v_lshlrev_b32 v{vT3}, 8, v{vT2}
    v_lshl_add_u32 v{vT3}, v{vT0}, 3, v{vT3}
    s_lshl_b32 s{sT0}, s{sWAVE}, 5
    s_add_u32 s{sT0}, s{sT0}, {L_WGU + 16384}
    v_add_u32 v{vT3}, s{sT0}, v{vT3}
    ds_read_b64_tr_b16 {pr(vWf + 8)}, v{vT3}
    ds_read_b64_tr_b16 {pr(vWf + 10)}, v{vT3} offset:1024
    v_and_b32 v{vT0}, 7, v0
    v_lshrrev_b32 v{vT1}, 5, v{vLANE}
    v_bfe_u32 v{vT2}, v0, 4, 1
    v_lshl_add_u32 v{vT1}, v{vT1}, 1, v{vT2}
    v_lshl_add_u32 v{vT1}, s{sWAVE}, 2, v{vT1}
    v_lshlrev_b32 v{vT1}, 1, v{vT1}
    v_lshl_add_u32 v{vUW}, v{vT0}, 6, v{vT1}
    v_lshrrev_b32 v{vT2}, 4, v{vLANE}
    v_lshlrev_b32 v{vT2}, 4, v{vT2}
    v_lshl_add_u32 v{vUR}, v{vT0}, 6, v{vT2}
    ''')
    A(f'global_load_dwordx4 {q4(vR3)}, v{vX3A}, {P(sWS)} sc1')
    xck = f'''v_xor_b32 v{vT2}, s{sTAG}, v{vU+5}
     v_xor_b32 v{vT3}, s{sTAG}, v{vU+7}
     v_or_b32 v{vT2}, v{vT2}, v{vT3}
     v_cmp_ne_u32 vcc, 0, v{vT2}'''
    A('s_waitcnt vmcnt(1)')
    A(xck)
    A('s_cbranch_vccnz L_pollc')
    A('L_pollc_back:')
    late.append(('L_pollc', lambda: (poll('L_pollcb', f'global_load_dwordx4 {q4(vU+4)}, v{vU+2}, {P(sWS)} sc1', xck), A('s_branch L_pollc_back'))))
    stamp('xcok')
    allred([vU + 4, vU + 6], [S_, Q_])
    A(f'''
    v_and_b32 v{vT1}, 7, v0
    v_lshl_add_u32 v{vT1}, s{sWAVE}, 3, v{vT1}
    s_lshl_b32 s{sT0}, s{sM}, 6
    s_sub_u32 s{sT0}, 2047, s{sT0}
    v_sub_u32 v{vU}, s{sT0}, v{vT1}
    v_lshlrev_b32 v{vU+1}, 2, v{vT1}
    v_mov_b32 v{vT2}, 0
    ds_write_b32 v{vU+1}, v{vT2} offset:{L_ST}
    s_waitcnt vmcnt(0)
    v_cmp_ne_u32 vcc, s{sTAG}, v{vR3+3}
    s_cbranch_vccnz L_poll3
    L_poll3_back:
    ''')
    late.append(('L_poll3', lambda: (poll('L_poll3b', f'global_load_dwordx4 {q4(vR3)}, v{vX3A}, {P(sWS)} sc1', f'v_cmp_ne_u32 vcc, s{sTAG}, v{vR3+3}'),
                 A('s_nop 1'), A('s_branch L_poll3_back'))))
    stamp('x3ok')
    allred([vR3, vR3 + 1, vR3 + 2], [S_, Q_, P_])
    lnstats(vR3, vR3 + 1, S_, vMn, vInv)
    vKey = 96
    A(f'''
    v_fma_f32 v{vKey}, -v{vMn}, v{vU+4}, v{vR3+2}
    v_fma_f32 v{vKey}, v{vKey}, v{vInv}, v{vU+6}
    v_cvt_pk_bf16_f32 v{vKey}, 0, v{vKey}
    v_ashrrev_i32 v{vT0}, 31, v{vKey}
    v_or_b32 v{vT0}, 0x80000000, v{vT0}
    v_and_b32 v{vT0}, s{sMASK}, v{vT0}
    v_xor_b32 v{vKey}, v{vKey}, v{vT0}
    v_or_b32 v{vKey}, v{vKey}, v{vU}
    ds_write_b32 v{vU+1}, v{vKey} offset:{L_KEY}
    s_waitcnt lgkmcnt(0)
    s_barrier
    ds_read_b128 {q4(vR3)}, v{vPA} offset:{L_KEY}
    ds_read_b128 {q4(vSQ)}, v{vPA} offset:{L_KEY+16}
    ''')
    vH2 = 56
    for i in range(8): A(f'v_sub_f32 v{vH2+i}, v{vZ1+i}, v{vMn}')
    for i in range(8): rnd(vH2 + i)
    A('s_waitcnt lgkmcnt(0)')
    vRk = 97
    A(f'v_mov_b32 v{vRk}, 0')
    ks = [vR3 + i for i in range(4)] + [vSQ + i for i in range(4)]
    for half in range(2):
        for i in range(4): A(f'v_cmp_gt_u32 {P(sC0+2*i)}, v{ks[4*half+i]}, v{vKey}')
        for i in range(4): A(f'v_addc_co_u32 v{vRk}, {P(sC0+2*i)}, 0, v{vRk}, {P(sC0+2*i)}')
    allred([vRk], [vT0], add='v_add_u32')
    A(f'''
    s_lshl_b32 s{sT0}, s{sWID}, 6
    s_add_u32 s{sT0}, s{sT0}, {KEYS}
    v_lshl_add_u32 v{vT0}, v{vRk}, 3, s{sT0}
    v_mov_b32 v{vR3}, v{vKey}
    v_mov_b32 v{vR3+1}, s{sTAG}
    v_cmp_gt_u32 {P(sEX)}, 8, v{vRk}
    s_and_b64 exec, {P(sEX)}, 0xff
    s_cbranch_execz L_nokey
    ''')
    lstore(f'global_store_dwordx2 v{vT0}, {pr(vR3)}, {P(sWS)}')
    A('L_nokey:')
    A('s_mov_b64 exec, -1')
    stamp('keyst')
    vKs = 154
    vRow = vKs + 2
    vPk = 110
    vOut = 126
    def h2calc():
        for i in range(8): A(f'v_mul_f32 v{vH2+i}, v{vH2+i}, v{vInv}')
        for i in range(8): rnd(vH2 + i)
        for i in range(8): A(f'v_mul_f32 v{vH2+i}, v{vH2+i}, v{vPar+32+i}')
        for i in range(8): rnd(vH2 + i)
        for i in range(8): A(f'v_add_f32 v{vH2+i}, v{vH2+i}, v{vPar+24+i}')
        for i in range(4):
            A(f'v_cvt_pk_bf16_f32 v{vPk+2*i}, v{vH2+2*i}, v{vH2+2*i+1}')
            A(f'v_mov_b32 v{vPk+2*i+1}, s{sTAG}')
        for i in range(4):
            A(f'v_cvt_pk_bf16_f32 v{vPk+8+2*i}, v{vZ1+2*i}, v{vZ1+2*i+1}')
            A(f'v_mov_b32 v{vPk+8+2*i+1}, s{sTAG}')
    def outcalc():
        for i in range(4): unpack(vH2 + 2*i, vPk + 2*i)
        for i in range(8): A(f'v_mul_f32 v{vH2+i}, v{vH2+i}, v{vPar+40+i}')
        for i in range(8): rnd(vH2 + i)
        for i in range(8): A(f'v_add_f32 v{vH2+i}, v{vH2+i}, v{vZ1+i}')
        for i in range(4): A(f'v_cvt_pk_bf16_f32 v{vOut+i}, v{vH2+2*i}, v{vH2+2*i+1}')
    def outstore():
        A(f'''
        s_andn2_b64 exec, exec, {P(sEX)}
        s_cbranch_execz L_noout3
        global_store_dwordx4 v{vJR}, {q4(vOut)}, {P(sOUT)} {cfg.OUT_FL}
        L_noout2:
        s_mov_b64 exec, -1
        ''')
    late.append(('L_noout3', lambda: (A('s_waitcnt vmcnt(0)'), A('s_branch L_noout2'))))
    h2calc()
    A(f'''
    s_mov_b64 exec, {P(sEX)}
    s_cbranch_execz L_noh2c
    global_store_dwordx4 v{vHC}, {q4(vPk)}, {P(sWS)} sc1
    global_store_dwordx4 v{vHC}, {q4(vPk+4)}, {P(sWS)} offset:128 sc1
    L_noh2c:
    s_mov_b64 exec, -1
    s_cmp_lg_u32 s{sWAVE}, 0
    s_cbranch_scc1 L_kskip
    ''')
    poll('L_pollk', '\n'.join(f'global_load_dwordx2 {pr(vKs+2*r)}, v{vKA}, {P(sWS)} offset:{512*r} sc1' for r in range(4)),
         f'''v_xor_b32 v{vT1}, s{sTAG}, v{vKs+1}
         v_xor_b32 v{vT2}, s{sTAG}, v{vKs+3}
         v_xor_b32 v{vT3}, s{sTAG}, v{vKs+5}
         v_or3_b32 v{vT1}, v{vT1}, v{vT2}, v{vT3}
         v_xor_b32 v{vT2}, s{sTAG}, v{vKs+7}
         v_or_b32 v{vT1}, v{vT1}, v{vT2}
         v_cmp_ne_u32 vcc, 0, v{vT1}''')
    stamp('keysok')
    def sort8(regs, tmps):
        for x, t in zip(regs, tmps): A(f'v_max_u32_dpp v{t}, v{x}, v{x} row_shl:4 row_mask:0xf bank_mask:0x5')
        for x, t in zip(regs, tmps): A(f'v_min_u32_dpp v{t}, v{x}, v{x} row_shr:4 row_mask:0xf bank_mask:0xa')
        for x, t in zip(regs, tmps): A(f'v_mov_b32_dpp v{x}, v{t} quad_perm:[2,3,0,1] {DPPM}')
        for x, t in zip(regs, tmps): A(f'v_med3_u32 v{t}, v{t}, v{x}, v{vM2}')
        for x, t in zip(regs, tmps): A(f'v_mov_b32_dpp v{x}, v{t} quad_perm:[1,0,3,2] {DPPM}')
        for x, t in zip(regs, tmps): A(f'v_med3_u32 v{x}, v{t}, v{x}, v{vM1}')
    k0, k1, k2, k3 = vKs, vKs + 2, vKs + 4, vKs + 6
    t0, t1 = vKs + 1, vKs + 3
    A(f'v_max_u32_dpp v{k0}, v{k1}, v{k0} row_half_mirror {DPPM}')
    A(f'v_max_u32_dpp v{k2}, v{k3}, v{k2} row_half_mirror {DPPM}')
    sort8([k0, k2], [t0, t1])
    A(f'v_max_u32_dpp v{k0}, v{k2}, v{k0} row_half_mirror {DPPM}')
    sort8([k0], [t0])
    A(f'v_max_u32_dpp v{k0}, v{k0}, v{k0} row_mirror {DPPM}')
    sort8([k0], [t0])
    for sw in ('v_permlane16_swap_b32', 'v_permlane32_swap_b32'):
        A(f'v_mov_b32 v{t1}, v{k0}')
        A(f'{sw} v{t1}, v{k0}')
        A(f'v_max_u32_dpp v{k0}, v{k0}, v{t1} row_half_mirror {DPPM}')
        sort8([k0], [t0])
    A(f'''
    v_and_b32 v{vRow}, 0x7ff, v{k0}
    v_sub_u32 v{vRow}, 2047, v{vRow}
    v_lshlrev_b32 v{vT2}, 2, v{vLANE}
    ds_write_b32 v{vT2}, v{vRow} offset:{L_GP}
    s_lshl_b32 s{sT0}, s{sM}, 6
    v_subrev_u32 v{vT1}, s{sT0}, v{vRow}
    v_add_u32 v{vT3}, 1, v{vLANE}
    v_cmp_gt_u32 vcc, 64, v{vT1}
    v_lshlrev_b32 v{vT1}, 2, v{vT1}
    s_and_b64 exec, vcc, 0xff
    ds_write_b32 v{vT1}, v{vT3} offset:{L_ST}
    s_mov_b64 exec, -1
    s_waitcnt lgkmcnt(0)
    s_branch L_kjoin
    L_kskip:
    ''')
    outcalc()
    A(f'''
    L_kjoin:
    s_barrier
    ds_read_b32 v{vGR2}, v{vGA2} offset:{L_GP}
    ds_read_b32 v{vSLT}, v{vU+1} offset:{L_ST}
    s_cmp_ge_u32 s{sM}, {NS3}
    s_cbranch_scc1 L_nog1
    s_cmp_ge_u32 s{sWAVE}, 4
    s_cbranch_scc1 L_nog1
    s_waitcnt lgkmcnt(1)
    v_lshl_add_u32 v{vGA_}, v{vGR2}, 11, v{vGA_}
    global_load_dwordx4 {q4(vG)}, v{vGA_}, {P(sWS)} sc1
    L_nog1:
    ''')
    stamp('top8')
    def x1out():
        A(f'''
        s_waitcnt lgkmcnt(0)
        v_cmp_ne_u32 {P(sEX)}, 0, v{vSLT}
        v_lshl_add_u32 v{vT0}, v{vSLT}, 11, v{vHA}
        v_add_u32 v{vT0}, {X1P - H2P}, v{vT0}
        s_mov_b64 exec, {P(sEX)}
        s_cbranch_execz L_noh2
        global_store_dwordx4 v{vT0}, {q4(vPk+8)}, {P(sWS)} sc1
        global_store_dwordx4 v{vT0}, {q4(vPk+12)}, {P(sWS)} offset:128 sc1
        L_noh2:
        s_mov_b64 exec, -1
        s_cmp_lg_u32 s{sWAVE}, 0
        s_cbranch_scc1 L_noc
        ''')
        outcalc()
        A('L_noc:')
        outstore()
    if cfg.OUTPOS == 'top8': x1out()
    A(f'''
    s_cmp_ge_u32 s{sM}, {NS3}
    s_cbranch_scc1 L_tail
    ''')
    A(f'''
    s_mov_b64 {P(sC0+4)}, -1
    s_mov_b64 {P(sC0+6)}, -1
    s_mov_b32 s{sT2}, 0x03020105
    s_mov_b32 s{sT3}, 0x03020106
    s_mov_b32 s{sT4}, 0x03020107
    s_mov_b32 s{sT0}, 0x0004000c
    s_mov_b32 s{sT1}, 0x0402010c
    s_mov_b64 {P(sC0)}, -1
    s_mov_b64 {P(sC0+2)}, -1
    ''')
    vDg = 182
    A(f'''
    s_cmp_ge_u32 s{sWAVE}, 4
    s_cbranch_scc1 L_gskip
    ''')
    gck = f'''v_xor_b32 v{vG+1}, s{sTAG}, v{vG+1}
         v_xor_b32 v{vG+3}, s{sTAG}, v{vG+3}
         v_or_b32 v{vG+1}, v{vG+1}, v{vG+3}
         v_cmp_ne_u32 vcc, 0, v{vG+1}'''
    A('s_waitcnt vmcnt(0)' if cfg.OUTPOS == 'end' else 's_waitcnt vmcnt(1)')
    A(gck)
    A('s_cbranch_vccnz L_pollg')
    A('L_pollg_back:')
    late.append(('L_pollg', lambda: (poll('L_pollgb', f'global_load_dwordx4 {q4(vG)}, v{vGA_}, {P(sWS)} sc1', gck), A('s_branch L_pollg_back'))))
    A(f'''
    ds_write2_b32 v{vGW_}, v{vG}, v{vG+2} offset0:{(L_G2 % 1024)//4} offset1:{(L_G2 % 1024)//4 + 1}
    L_gskip:
    s_waitcnt lgkmcnt(0)
    ''')
    stamp('gath')
    A(f'''
    s_barrier
    ds_read_b128 {q4(vG)}, v{vGR_} offset:{L_G2}
    ds_read_b128 {q4(vG+8)}, v{vGR_} offset:{L_G2 + 64}
    s_waitcnt lgkmcnt(1)
    v_mfma_f32_16x16x32_bf16 {q4(vDg)}, {q4(vWf)}, {q4(vG)}, 0
    s_waitcnt lgkmcnt(0)
    v_mfma_f32_16x16x32_bf16 {q4(vDg)}, {q4(vWf+4)}, {q4(vG+8)}, {q4(vDg)}
    ''')
    def pack24(y):
        for d in range(3): A(f'v_perm_b32 v{y+d}, v{y+3}, v{y+d}, s{sT2+d}')
        A(f'v_mov_b32 v{y+3}, s{sTAG}')
    vE = 166
    def unp24(us, a, b):
        for u in us: A(f'v_perm_b32 v{u+3}, v{u+1}, v{u}, s{a}')
        for u in us: A(f'v_perm_b32 v{u+3}, v{u+2}, v{u+3}, s{b}')
    y = vE
    if cfg.GXE:
        A(f'''
        v_mov_b32 v{vDg+7}, s{sTAG}
        v_mov_b32 v{vDg+4}, v{vDg+2}
        v_mov_b32 v{vDg+5}, v{vDg+3}
        v_mov_b32 v{vDg+3}, s{sTAG}
        s_mov_b64 exec, {P(sHM)}
        ''')
        lstore(f'''global_store_dwordx4 v{vGS}, {q4(vDg)}, {P(sWS)}
        global_store_dwordx4 v{vGS}, {q4(vDg+4)}, {P(sWS)} offset:512''')
        stamp('preB6')
        mpoll('L_pollx', [(f'global_load_dwordx4 {q4(vE+4*i)}, v{vGL if i < 2 else vGL2}, {P(sWS)} offset:{512*(i&1)} sc1', vE + 4*i + 3, sC0 + 2*i) for i in range(4)])
        stamp('B6')
        A(f'''
        v_pk_add_f32 {pr(y)}, {pr(y)}, {pr(y+8)}
        v_pk_add_f32 {pr(y+2)}, {pr(y+4)}, {pr(y+12)}
        ''')
    else:
        pack24(vDg)
        A(f's_mov_b64 exec, {P(sHM)}')
        lstore(f'global_store_dwordx4 v{vGS}, {q4(vDg)}, {P(sWS)}')
        stamp('preB6')
        mpoll('L_pollx', [(f'global_load_dwordx4 {q4(vE)}, v{vGL}, {P(sWS)} sc1', vE + 3, sC0),
                          (f'global_load_dwordx4 {q4(vE+4)}, v{vGL}, {P(sWS)} offset:2048 sc1', vE + 7, sC0 + 2)])
        stamp('B6')
        unp24([vE, vE + 4], sT0, sT1)
        A(f'''
        v_pk_add_f32 {pr(y)}, {pr(y)}, {pr(y+4)}
        v_pk_add_f32 {pr(y+2)}, {pr(y+2)}, {pr(y+6)}
        ''')
    A(f'''
    v_permlane32_swap_b32 v{y}, v{y+2}
    v_permlane32_swap_b32 v{y+1}, v{y+3}
    v_add_f32 v{y}, v{y}, v{y+2}
    v_add_f32 v{y+1}, v{y+1}, v{y+3}
    v_permlane16_swap_b32 v{y}, v{y+1}
    v_add_f32 v{y}, v{y}, v{y+1}
    v_cvt_pk_bf16_f32 v{y}, 0, v{y}
    v_mul_f32 v{y+2}, 0xbfb8aa3b, v{y}
    v_exp_f32 v{y+2}, v{y+2}
    v_mov_b32_dpp v{y+1}, v{y} row_ror:8 {DPPM}
    v_add_f32 v{y+2}, 1.0, v{y+2}
    v_rcp_f32 v{y+2}, v{y+2}
    v_mul_f32 v{y}, v{y}, v{y+2}
    v_cvt_pk_bf16_f32 v{y}, 0, v{y}
    v_mul_f32 v{y}, v{y}, v{y+1}
    v_cvt_pk_bf16_f32 v{y}, v{y}, v{y}
    s_mov_b64 exec, {P(sHM)}
    ds_write_b16 v{vUW}, v{y} offset:{L_GU}
    s_mov_b64 exec, -1
    s_waitcnt lgkmcnt(0)
    s_barrier
    ds_read_b128 {q4(vE)}, v{vUR} offset:{L_GU}
    s_waitcnt lgkmcnt(0)
    v_mfma_f32_16x16x32_bf16 {q4(vDg)}, {q4(vWf+8)}, {q4(vE)}, 0
    ''')
    stamp('B7')
    pack24(vDg)
    A(f's_mov_b64 exec, {P(sHM)}')
    A(f'global_store_dwordx4 v{vPS}, {q4(vDg)}, {P(sWS)} sc1')
    A('s_mov_b64 exec, -1')
    stamp('partst')
    A(f'''
    s_cmp_lg_u32 s{sWID}, 0
    s_cbranch_scc1 L_noep
    s_cmp_lg_u32 s{sWAVE}, 2
    s_cbranch_scc1 L_noep
    s_add_u32 s{sT0}, s{sEP}, 1
    v_mov_b32 v{vT2}, {EPOCH}
    v_mov_b32 v{vT3}, s{sT0}
    s_mov_b64 exec, 1
    global_store_dword v{vT2}, v{vT3}, {P(sWS)} sc1
    s_mov_b64 exec, -1
    L_noep:
    L_tail:
    ''')
    if cfg.OUTPOS == 'end': x1out()
    A(f'''
    s_cmp_lg_u32 s{sM}, {NS3}
    s_cbranch_scc1 L_red
    ''')
    vWr = 130
    vHr = 134
    vHs = 142
    vPu = 166
    vRr = 182
    A(f'''
    v_lshlrev_b32 v{vT1}, 4, v{vLANE}
    global_load_dwordx4 {q4(vWr)}, v{vT1}, {P(sWR)}
    s_lshl_b32 s{sT3}, s{sWAVE}, 2
    v_mov_b32 v{vT0}, s{sT3}
    ds_read_b32 v{vT0}, v{vT0} offset:{L_GP}
    v_lshrrev_b32 v{vT2}, 3, v{vLANE}
    v_and_b32 v{vT3}, 7, v0
    v_lshlrev_b32 v{vT3}, 4, v{vT3}
    v_lshl_add_u32 v{vT3}, v{vT2}, 8, v{vT3}
    v_add_u32 v{vT3}, {H2R}, v{vT3}
    s_waitcnt lgkmcnt(0)
    v_lshl_add_u32 v{vT3}, v{vT0}, 11, v{vT3}
    s_lshl_b32 s{sT0}, s{sG}, 7
    s_lshl_b32 s{sT1}, s{sWAVE}, 3
    s_add_u32 s{sT0}, s{sT0}, s{sT1}
    s_add_u32 s{sT0}, s{sT0}, {SEL}
    v_mov_b32 v{vT0}, s{sT0}
    ''')
    poll('L_pollr', f'''global_load_dwordx4 {q4(vHr)}, v{vT3}, {P(sWS)} sc1
         global_load_dwordx4 {q4(vHr+4)}, v{vT3}, {P(sWS)} offset:128 sc1''',
         f'''v_xor_b32 v{vHr+1}, s{sTAG}, v{vHr+1}
         v_xor_b32 v{vHr+3}, s{sTAG}, v{vHr+3}
         v_xor_b32 v{vHr+5}, s{sTAG}, v{vHr+5}
         v_xor_b32 v{vHr+7}, s{sTAG}, v{vHr+7}
         v_or3_b32 v{vHr+1}, v{vHr+1}, v{vHr+3}, v{vHr+5}
         v_or_b32 v{vHr+1}, v{vHr+1}, v{vHr+7}
         v_cmp_ne_u32 vcc, 0, v{vHr+1}''')
    A(f'v_mov_b32 v{vRr}, 0')
    for i in range(4): A(f'v_dot2_f32_bf16 v{vRr}, v{vHr+2*i}, v{vWr+i}, v{vRr}')
    fullred([vRr], [vRr + 1])
    rnd(vRr)
    A(f'''
    v_mul_f32 v{vRr}, 0xbfb8aa3b, v{vRr}
    v_exp_f32 v{vRr}, v{vRr}
    v_add_f32 v{vRr}, 1.0, v{vRr}
    v_rcp_f32 v{vRr}, v{vRr}
    v_cvt_pk_bf16_f32 v{vRr}, 0, v{vRr}
    v_mov_b32 v{vRr+1}, s{sTAG}
    s_mov_b64 exec, 1
    ''')
    lstore(f'global_store_dwordx2 v{vT0}, {pr(vRr)}, {P(sWS)}')
    A(f'''
    s_mov_b64 exec, -1
    L_red:
    s_cmp_lg_u32 s{sWAVE}, 1
    s_cbranch_scc1 L_outlate
    v_lshl_add_u32 v{vT0}, v{vLANE}, 4, s{sPT}
    v_mov_b32 v{vPu+12}, 0
    v_mov_b32 v{vPu+13}, 0
    v_mov_b32 v{vPu+14}, 0
    v_mov_b32 v{vPu+15}, s{sTAG}
    s_and_b32 s{sT0}, s{sM}, 3
    s_and_b32 s{sT1}, s{sM}, 28
    v_mov_b32 v{vT3}, s{sT1}
    ds_read_b32 v{vOR+4}, v{vT3} offset:{L_GP}
    s_lshl_b32 s{sT3}, s{sT1}, 9
    s_add_u32 s{sT3}, s{sT3}, {H2P}
    s_lshl_b32 s{sT1}, s{sT1}, 1
    s_lshl_b32 s{sT4}, s{sG}, 7
    s_add_u32 s{sT1}, s{sT1}, s{sT4}
    s_add_u32 s{sT1}, s{sT1}, {SEL}
    v_mov_b32 v{vOR+5}, s{sT1}
    v_and_b32 v{vT1}, 3, v0
    v_lshlrev_b32 v{vT1}, 2, v{vT1}
    v_lshrrev_b32 v{vT2}, 5, v{vLANE}
    v_lshl_add_u32 v{vT1}, v{vT2}, 1, v{vT1}
    v_bfe_u32 v{vT2}, v0, 4, 1
    s_lshl_b32 s{sT4}, s{sT0}, 4
    v_add_u32 v{vT1}, s{sT4}, v{vT1}
    v_add_u32 v{vT3}, v{vT1}, v{vT2}
    v_lshlrev_b32 v{vOR}, 2, v{vT3}
    ds_read_b32 v{vOR+1}, v{vOR} offset:{L_MOD + 5*256}
    v_lshrrev_b32 v{vOR}, 3, v{vT1}
    v_lshlrev_b32 v{vOR}, 4, v{vOR}
    v_bfe_u32 v{vOR+2}, v{vT1}, 2, 1
    v_lshl_add_u32 v{vOR}, v{vOR+2}, 7, v{vOR}
    v_bfe_u32 v{vOR+2}, v{vT1}, 1, 1
    v_lshl_add_u32 v{vOR}, v{vOR+2}, 3, v{vOR}
    s_lshl_b32 s{sT5}, s{sG}, 8
    s_add_u32 s{sT5}, s{sT5}, s{sT3}
    v_add_u32 v{vT1}, s{sT5}, v{vOR}
    v_add_u32 v{vOR+2}, {X1P - H2P}, v{vT1}
    s_lshl_b32 s{sT5}, s{sG}, 8
    s_add_u32 s{sT5}, s{sT5}, {H2R}
    v_add_u32 v{vT1}, s{sT5}, v{vOR}
    s_lshl_b32 s{sT4}, s{sG}, 7
    v_lshl_add_u32 v{vOR+3}, v{vT3}, 1, s{sT4}
    v_lshlrev_b32 v{vT2}, 4, v{vT2}
    v_sub_u32 v{vT2}, 16, v{vT2}
    s_mov_b32 s{sT2}, 0x0004000c
    s_mov_b32 s{sT3}, 0x0402010c
    s_waitcnt lgkmcnt(0)
    v_lshl_add_u32 v{vOR+3}, v{vOR+4}, 10, v{vOR+3}
    v_lshl_add_u32 v{vT1}, v{vOR+4}, 11, v{vT1}
    ''')
    poll('L_polls', f'''global_load_dwordx2 {pr(vHs)}, v{vT1}, {P(sWS)} sc1
         global_load_dwordx2 {pr(vHs+2)}, v{vOR+2}, {P(sWS)} sc1
         global_load_dwordx2 {pr(vRr)}, v{vOR+5}, {P(sWS)} sc1''',
         f'''v_xor_b32 v{vHs+1}, s{sTAG}, v{vHs+1}
         v_xor_b32 v{vHs+3}, s{sTAG}, v{vHs+3}
         v_xor_b32 v{vRr+1}, s{sTAG}, v{vRr+1}
         v_or3_b32 v{vHs+1}, v{vHs+1}, v{vHs+3}, v{vRr+1}
         v_cmp_ne_u32 vcc, 0, v{vHs+1}''')
    A(f'''
    v_lshlrev_b32 v{vHs}, v{vT2}, v{vHs}
    v_and_b32 v{vHs}, s{sMASK}, v{vHs}
    v_lshlrev_b32 v{vHs+2}, v{vT2}, v{vHs+2}
    v_and_b32 v{vHs+2}, s{sMASK}, v{vHs+2}
    ''')
    stamp('redpre')
    if cfg.REDSLP: A(f's_sleep {cfg.REDSLP}')
    for i in range(3): A(f's_mov_b64 {P(sC0+2*i)}, -1')
    A(f's_mov_b32 s{sC0+6}, -1'); A(f's_mov_b32 s{sC0+7}, 0')
    mpoll('L_pollp', [(f'global_load_dwordx4 {q4(vPu+4*i)}, v{vT0}, {P(sWS)} offset:{1024*i} sc1', vPu + 4*i + 3, sC0 + 2*i) for i in range(4)])
    stamp('partok')
    unp24([vPu + 4*i for i in range(4)], sT2, sT3)
    for (a, b) in ((0, 1), (2, 3), (0, 2)):
        for h in range(2): A(f'v_pk_add_f32 {pr(vPu+4*a+2*h)}, {pr(vPu+4*a+2*h)}, {pr(vPu+4*b+2*h)}')
    y = vPu
    A(f'''
    v_permlane32_swap_b32 v{y}, v{y+2}
    v_permlane32_swap_b32 v{y+1}, v{y+3}
    v_add_f32 v{y}, v{y}, v{y+2}
    v_add_f32 v{y+1}, v{y+1}, v{y+3}
    v_permlane16_swap_b32 v{y}, v{y+1}
    v_add_f32 v{y}, v{y}, v{y+1}
    v_add_f32_dpp v{y}, v{y}, v{y} row_ror:8 {DPPM}
    v_add_f32_dpp v{y}, v{y}, v{y} row_ror:4 {DPPM}
    v_cvt_pk_bf16_f32 v{y}, 0, v{y}
    v_mul_f32 v{y}, v{y}, v{vRr}
    v_cvt_pk_bf16_f32 v{y}, 0, v{y}
    v_add_f32 v{y}, v{y}, v{vHs}
    v_cvt_pk_bf16_f32 v{y}, 0, v{y}
    v_mul_f32 v{y}, v{y}, v{vOR+1}
    v_cvt_pk_bf16_f32 v{y}, 0, v{y}
    v_add_f32 v{y}, v{y}, v{vHs+2}
    v_cvt_pk_bf16_f32 v{y}, v{y}, v{y}
    s_mov_b32 s{sT0}, 0x000f000f
    s_mov_b32 s{sT1}, 0x000f000f
    s_mov_b64 exec, {P(sT0)}
    global_store_short v{vOR+3}, v{y}, {P(sOUT)} {cfg.OUT_FL}
    s_mov_b64 exec, -1
    ''')
    A('L_outlate:')
    A('L_fin:')
    if cfg.DBL:
        A(f'''
        s_waitcnt vmcnt(0)
        s_memrealtime s[78:79]
        s_waitcnt lgkmcnt(0)
        s_sub_u32 s{sT0}, s{82 if cfg.DSITE else 78}, s74
        s_add_u32 s{sT0}, s{sT0}, s78
        s_cmp_lg_u32 s{sWAVE}, 1
        s_cbranch_scc1 L_end
        L_dbl:
        s_memrealtime s[80:81]
        s_waitcnt lgkmcnt(0)
        s_sub_u32 s{sT1}, s80, s{sT0}
        s_cmp_lt_i32 s{sT1}, 0
        s_cbranch_scc1 L_dbl
        ''')
    if cfg.DBGT:
        A(f'''
        s_memrealtime s[78:79]
        s_memtime s[80:81]
        s_cmp_lg_u32 s{sWAVE}, 0
        s_cbranch_scc1 L_end
        s_and_b32 s{sT0}, s{sWID}, 0x3f
        s_cmp_lg_u32 s{sT0}, 28
        s_cbranch_scc1 L_end
        s_waitcnt lgkmcnt(0)
        s_sub_u32 s{sT0}, s78, s74
        s_sub_u32 s{sT1}, s80, s76
        v_mov_b32 v4, s{sT0}
        v_mov_b32 v5, s{sT1}
        v_mov_b32 v6, s74
        v_mov_b32 v7, s78
        s_lshr_b32 s{sT0}, s{sWID}, 6
        s_lshl_b32 s{sT0}, s{sT0}, 4
        v_mov_b32 v8, s{sT0}
        s_mov_b64 exec, 1
        global_store_dwordx4 v8, v[4:7], {P(sDBG)}
        ''')
    if cfg.STAMP:
        A(f's_memtime s[{sST+2*nst[0]}:{sST+2*nst[0]+1}]'); nst[0] += 1
        if cfg.RTEND:
            A('s_waitcnt vmcnt(0)' if cfg.RTEND == 2 else 's_nop 0')
            A(f's_memrealtime s[{sST+2*nst[0]}:{sST+2*nst[0]+1}]'); nst[0] += 1
        A(f'''
        s_waitcnt lgkmcnt(0)
        s_lshl_b32 s{sT0}, s{sWID}, 3
        s_add_u32 s{sT0}, s{sT0}, s{sWAVE}
        s_lshl_b32 s{sT0}, s{sT0}, 7
        s_add_u32 s{sT0}, s{sT0}, {STAMPS}
        v_mov_b32 v{vT0}, s{sT0}
        s_mov_b64 exec, 1
        ''')
        for i in range(nst[0]):
            A(f'v_mov_b32 v{vT1}, s{sST+2*i}')
            A(f'global_store_dword v{vT0}, v{vT1}, {P(sWS)} offset:{4*i}')
        A(f'v_mov_b32 v{vT1}, s{sCNT}')
        A(f'global_store_dword v{vT0}, v{vT1}, {P(sWS)} offset:120')
        A(f'v_mov_b32 v{vT1}, s{sMODE}')
        A(f'global_store_dword v{vT0}, v{vT1}, {P(sWS)} offset:124')
    A('L_end:')
    A('s_endpgm')
    for k, t in slow:
        A(f'L_slow{k}:'); A('s_nop 4'); A(t); A('s_nop 1'); A(f's_branch L_back{k}')
    A('L_modeslow:')
    A(f'''
    s_mov_b32 s3, 64
    L_moderetry:
    global_load_dword v{vMT}, v{vPT}, {P(sWS)} sc1
    s_waitcnt vmcnt(0)
    s_mov_b32 s{sMODE}, {0 if cfg.FORCE_SLOW else 1}
    v_cmp_ne_u32 vcc, s{sXCC}, v{vMT}
    s_cbranch_vccz L_modeback
    s_mov_b32 s{sMODE}, 0
    v_subrev_u32 v{vMT+1}, s{sTAG}, v{vMT}
    v_subrev_u32 v{vMT+1}, 1, v{vMT+1}
    v_cmp_lt_u32 vcc, 15, v{vMT+1}
    s_cbranch_vccz L_modeback
    s_sub_u32 s3, s3, 1
    s_cbranch_scc0 L_moderetry
    s_branch L_modeback
    ''')
    for name, fn in late:
        A(name + ':'); fn()
    A('L_codeend:')
    return A

HEAD = open('adaLN_cond__ssm_conv_h3__moe_arch_mod__prompt.s.ref').read().split('; Override launch')[0]
def emit(path):
    A = build()
    s = HEAD + f'; @launch grid=(256,1,1) block=(512,1,1) lds={LDS_BYTES}\n'
    s += f'''.amdgcn_target "amdgcn-amd-amdhsa--gfx950"
.text
.globl {KNAME}
.p2align 8
.type {KNAME},@function
{KNAME}:
'''
    s += A.text()
    s += f'''.section .rodata,"a"
.p2align 6
.amdhsa_kernel {KNAME}
  .amdhsa_next_free_vgpr 248
  .amdhsa_next_free_sgpr 102
  .amdhsa_accum_offset 248
  .amdhsa_group_segment_fixed_size 0
  .amdhsa_kernarg_size 128
  .amdhsa_user_sgpr_count 2
  .amdhsa_user_sgpr_kernarg_segment_ptr 1
  .amdhsa_system_sgpr_workgroup_id_x 1
.end_amdhsa_kernel
'''
    open(path, 'w').write(s)
    return A

if __name__ == '__main__':
    out = sys.argv[1]
    for a in sys.argv[2:]:
        k, v = a.split('=')
        setattr(cfg, k, eval(v))
    A = emit(out)
    if cfg.STAMP: open(out + '.sites', 'w').write(' '.join(cfg.ORDER + ['end']))
    print('emitted', out, 'lines', len(A.out), 'pads', A.npad)
```

```python
import sys
from asmdsl import Asm

class Cfg:
    STAMP = False
    STOP = 99
    WS_BASE = 0
    WBL2 = False
    OUT_FL = ''
    POLL_CAP = 1000000
    FORCE_SLOW = False
    SEC = 'bar'
    WPOS = 'key'
    X3ACK = True
    NTSET = 'w'
    GLOW = True
    ALIGN = False
    GXE = True
    RTEND = 0
    TLBW = False
    FPOS = 'k'
    X3SLP = 14
    DSITE = ''
    GPOS = 's1'
    X1PT = True
    GLOOP = 0
    PRIO = 3
    OUTPOS = 'top8'
    H2PT = False
    GSLP = 0
    HSLP = 16
    NOOUT = False
    REDSLP = 0
    WAFTER = True
    WDPOS = 's1'
    DBL = False
    DBGT = False
    NT = ''
    WPF = True
    PARTPT = False
    SITES = ()
    ORDER = []
cfg = Cfg()

KNAME = "adaLN_cond__ssm_conv_h3__moe_arch_mod__prompt_kernel"
EPOCH = 0; FL1 = 0x10000; FL2 = 0x12000; FLM = 0x14000; MTAB = 0x16000; KEYS = 0x18000; SEL = 0x1C000
XC = 0x20000; H2P = 0x28000; X1P = 0x2C000; MODP = 0x40000; PART = 0x80000
H2R = 0x800000; XB1 = 0x200000; X0 = 0x400000; X3 = 0x600000; GXB = 0; STAMPS = 0x2000000
NS3 = 28
NPROD = 56
NG0 = 8
USTR = 4160; UCH = 8 * USTR
L_MOD = 0
L_KEY = 2048
L_GP = 4096
L_CNT = 3328
L_ST = 3584
L_KVR = 8192; KVS = 4608
L_P = L_KVR + 2 * KVS
L_T = L_P; TS = 272
L_KD = L_P + 32768
L_U = L_KD + 8192
L_WGU = L_U + 2 * UCH
L_XS = L_WGU + 24576
L_END = L_WGU + 32768
L_Z = L_U
L_WD = L_U + 8192
L_G2 = L_P
L_GU = L_P + 8192
LDS_BYTES = 158720
assert L_END <= LDS_BYTES

sX, sK, sV, sSK, sF, sD, sWR = 4, 6, 8, 10, 12, 14, 18
sWG, sWU, sWD, sC, sWM, sOUT, sDBG, sWS = 20, 22, 24, 26, 28, 30, 32, 34
sG, sM, sWAVE, sTAG, sMODE, sXCC, sCNT, sTILE = 36, 37, 38, 39, 40, 41, 42, 43
sKSRD = 44
sFSRD = 48
sMASK = 52
sWID = 53
sEP = 54
sDV = 55
sT0, sT1, sT2, sT3, sT4, sT5 = 56, 57, 58, 59, 60, 61
sEX = 62
sC0 = 44
sWSR = 64
sOUTR = 68
sD0, sD1 = 72, 73
sPEND, sPT = 16, 17
sHM = 10
sST = 74
def P(s): return f's[{s}:{s+1}]'

import re
def to_buffer(line):
    for base, srd in ((sWS, sWSR), (sOUT, sOUTR)):
        b = re.escape(P(base)); R = f's[{srd}:{srd+3}]'
        m = re.match(rf'^\s*global_load_lds_(\w+) (v\d+), {b}(.*)$', line)
        if m: return f'buffer_load_{m.group(1)} {m.group(2)}, {R}, 0 offen{m.group(3)} lds'
        m = re.match(rf'^\s*global_load_(\w+) (v\S+), (v\d+), {b}(.*)$', line)
        if m: return f'buffer_load_{m.group(1)} {m.group(2)}, {m.group(3)}, {R}, 0 offen{m.group(4)}'
        m = re.match(rf'^\s*global_store_(\w+) (v\d+), (v\S+), {b}(.*)$', line)
        if m: return f'buffer_store_{m.group(1)} {m.group(3)}, {m.group(2)}, {R}, 0 offen{m.group(4)}'
    return line
def add_nt(line):
    if not cfg.NT: return line
    l = line.strip()
    mp = {'x': [sX], 'k': [sK], 'v': [sV], 'm': [sWM], 'w': [sWD, 12], }
    bases = [b for c in cfg.NTSET if c in mp for b in mp[c]]
    if l.startswith('global_load') and any(P(b) in l for b in bases) and 'sc1' not in l: return l + ' ' + cfg.NT
    if l.startswith('buffer_load') and 'k' in cfg.NTSET and f's[{sKSRD}:{sKSRD+3}]' in l: return l + ' ' + cfg.NT
    if l.startswith('buffer_load') and 'f' in cfg.NTSET and f's[{sFSRD}:{sFSRD+3}]' in l: return l + ' ' + cfg.NT
    return line
class BAsm(Asm):
    def __call__(self, text):
        super().__call__('\n'.join(to_buffer(add_nt(l)) for l in text.strip().split('\n')))
def build():
    A = BAsm()
    if cfg.GLOW:
        GSKIP = f's_cmp_ge_u32 s{sM}, 24'; GTAU_CL = f's_min_u32 s{sT0}, s{sM}, 23'; GTAU = f's_mov_b32 s{sT0}, s{sM}'
    else:
        GSKIP = f's_cmp_lt_u32 s{sM}, {NG0}'; GTAU_CL = f's_max_u32 s{sT0}, s{sM}, {NG0}\n    s_sub_u32 s{sT0}, s{sT0}, {NG0}'; GTAU = f's_sub_u32 s{sT0}, s{sM}, {NG0}'
    slow = []
    late = []
    nst = [0]
    site = [0]
    def stamp(name=''):
        if cfg.DSITE == name:
            A('s_memrealtime s[82:83]')
            if name in ('B2', 'B3b'): A('s_waitcnt lgkmcnt(0)')
        if cfg.STAMP and (name in cfg.SITES or name == 'start'):
            assert sST + 2 * nst[0] + 3 <= 101
            A(f's_memtime s[{sST+2*nst[0]}:{sST+2*nst[0]+1}]'); nst[0] += 1
            cfg.ORDER.append(name)
            if name in ('B2', 'B3b'): A('s_waitcnt lgkmcnt(0)')
    uid = [0]
    def lstore(text):
        uid[0] += 1; k = uid[0]
        A(f's_cmp_eq_u32 s{sMODE}, 1')
        A(f's_cbranch_scc0 L_slow{k}')
        A(text)
        A(f'L_back{k}:')
        slow.append((k, '\n'.join(l + ' sc1' for l in text.strip().split('\n'))))
    def poll(name, loads, check, slp=0):
        A(f'{name}:')
        if slp: A(f's_sleep {slp}')
        A(loads)
        A('s_waitcnt vmcnt(0)')
        A(check)
        A(f's_sub_u32 s{sCNT}, s{sCNT}, 1')
        A('s_cselect_b64 vcc, 0, vcc')
        A(f's_cselect_b32 s{sCNT}, 0, s{sCNT}')
        A(f's_cbranch_vccnz {name}')
    def mpoll(name, items):
        A(f'{name}:')
        for k, (ld, tr, mk) in enumerate(items):
            A(f's_mov_b64 exec, {P(mk)}')
            A(f's_cbranch_execz {name}_s{k}')
            A(ld)
            A(f'{name}_s{k}:')
        A('s_mov_b64 exec, -1')
        A('s_waitcnt vmcnt(0)')
        for (ld, tr, mk) in items:
            if isinstance(tr, int): A(f'v_cmp_ne_u32 {P(mk)}, s{sTAG}, v{tr}')
            else: A(tr[0]); A(f'v_cmp_ne_u32 {P(mk)}, 0, v{tr[1]}')
        A(f's_or_b64 vcc, {P(items[0][2])}, {P(items[1][2])}')
        for (ld, tr, mk) in items[2:]: A(f's_or_b64 vcc, vcc, {P(mk)}')
        A(f's_sub_u32 s{sCNT}, s{sCNT}, 1')
        A('s_cselect_b64 vcc, 0, vcc')
        A(f's_cselect_b32 s{sCNT}, 0, s{sCNT}')
        A(f's_cbranch_vccnz {name}')
    def unpack(d, s):
        A(f'v_lshlrev_b32 v{d}, 16, v{s}')
        A(f'v_and_b32 v{d+1}, s{sMASK}, v{s}')
    def rnd(d, s=None):
        A(f'v_cvt_pk_bf16_f32 v{d}, 0, v{d if s is None else s}')
    def pr(r): return f'v[{r}:{r+1}]'
    def q4(r): return f'v[{r}:{r+3}]'
    DPPM = 'row_mask:0xf bank_mask:0xf'
    def allred(regs, tmps, add='v_add_f32'):
        for r in regs: A(f'{add}_dpp v{r}, v{r}, v{r} row_ror:8 {DPPM}')
        for sw in ('v_permlane16_swap_b32', 'v_permlane32_swap_b32'):
            for r, t in zip(regs, tmps): A(f'v_mov_b32 v{t}, v{r}')
            for r, t in zip(regs, tmps): A(f'{sw} v{t}, v{r}')
            for r, t in zip(regs, tmps): A(f'{add} v{r}, v{r}, v{t}')
    def fullred(regs, tmps, add='v_add_f32'):
        for pat in ('quad_perm:[1,0,3,2]', 'quad_perm:[2,3,0,1]', 'row_half_mirror'):
            for r in regs: A(f'{add}_dpp v{r}, v{r}, v{r} {pat} {DPPM}')
        allred(regs, tmps, add)
    def lnstats(S, Q, t0, mean_out, inv_out):
        A(f'v_mul_f32 v{S}, 0x3b000000, v{S}')
        A(f'v_mul_f32 v{Q}, 0x3b000000, v{Q}')
        A(f'v_fma_f32 v{t0}, -v{S}, v{S}, v{Q}')
        A(f'v_max_f32 v{t0}, 0, v{t0}')
        rnd(mean_out, S)
        rnd(t0)
        A(f'v_add_f32 v{t0}, 0x3727c5ac, v{t0}')
        rnd(t0)
        A(f'v_sqrt_f32 v{t0}, v{t0}')
        rnd(t0)
        A(f'v_rcp_f32 v{inv_out}, v{t0}')

    A(f'''
    s_cmp_ge_u32 s2, 256
    s_cbranch_scc1 L_end
    s_load_dwordx16 s[4:19], s[0:1], 0
    s_load_dwordx16 s[20:35], s[0:1], 64
    ''')
    if cfg.STAMP:
        A(f's_memrealtime s[{sST}:{sST+1}]'); nst[0] += 1
    if cfg.DBGT or cfg.DBL:
        A('s_memrealtime s[74:75]'); A('s_memtime s[76:77]')
    stamp('start')
    vLANE, vTID = 1, 0
    vA, vB, vT0, vT1, vT2, vT3 = 2, 3, 4, 5, 6, 7
    vPA = 9
    vJR = 8
    vX = 10
    vKr = 14
    vVr = 21
    vSk = 26
    vFl = 30
    vMT = 38
    vGW = 110
    vGC = 44
    vPT = 40
    A(f'''
    s_getreg_b32 s{sXCC}, hwreg(HW_REG_XCC_ID)
    s_and_b32 s{sG}, s2, 7
    s_lshr_b32 s{sM}, s2, 3
    v_lshrrev_b32 v{vT0}, 6, v0
    v_and_b32 v{vLANE}, 63, v0
    v_readfirstlane_b32 s{sWAVE}, v{vT0}
    s_and_b32 s{sXCC}, s{sXCC}, 15
    s_mov_b32 s{sMASK}, 0xffff0000
    s_mov_b32 s{sCNT}, {cfg.POLL_CAP}
    s_lshl_b32 s{sT0}, s{sM}, 16
    s_lshl_b32 s{sT1}, s{sG}, 7
    s_add_u32 s{sTILE}, s{sT0}, s{sT1}
    s_lshl_b32 s{sWID}, s{sG}, 5
    s_add_u32 s{sWID}, s{sWID}, s{sM}
    v_and_b32 v{vT0}, 31, v0
    v_lshrrev_b32 v{vT1}, 5, v0
    v_lshlrev_b32 v{vA}, 12, v{vT1}
    v_lshl_add_u32 v{vA}, v{vT0}, 2, v{vA}
    v_add_u32 v{vA}, s{sTILE}, v{vA}
    v_subrev_u32 v{vB}, 0xc00, v{vA}
    v_bfrev_b32 v{vT2}, 1
    v_cmp_gt_u32 vcc, 0xc00, v{vA}
    v_cndmask_b32 v{vB}, v{vB}, v{vT2}, vcc
    v_lshl_add_u32 v{vT2}, v{vT0}, 4, s{sT1}
    v_lshl_add_u32 v{vT2}, s{sT1}, 1, v{vT2}
    v_add_u32 v{vT2}, s{sT1}, v{vT2}
    ''')
    A(f'''
    s_add_u32 s{sT3}, s{sXCC}, 1
    v_mov_b32 v{vPT}, s{sWID}
    v_mov_b32 v{vPT+1}, s{sT3}
    s_lshl_b32 s{sT4}, s{sG}, 7
    s_lshl_b32 s{sT5}, s{sM}, 2
    s_add_u32 s{sT4}, s{sT4}, s{sT5}
    v_lshlrev_b32 v{vT0}, 4, v0
    v_subrev_u32 v{vT1}, 16, v{vT0}
    v_and_b32 v{vT3}, 255, v0
    v_cmp_eq_u32 vcc, 0, v{vT3}
    v_bfrev_b32 v{vT3}, 1
    v_cndmask_b32 v{vT1}, v{vT1}, v{vT3}, vcc
    s_lshl_b32 s{sT0}, s{sWID}, 13
    s_waitcnt lgkmcnt(0)
    s_load_dword s{sEP}, {P(sWS)}, {EPOCH + cfg.WS_BASE}
    global_load_dwordx4 {q4(vSk)}, v{vT2}, {P(sSK)}
    ''')
    for i in range(4): A(f'global_load_dword v{vKr+3+i}, v{vA}, {P(sK)} offset:{1024*i}')
    A(f'''
    s_mov_b32 s{sKSRD}, s{sK}
    s_mov_b32 s{sKSRD+1}, s{sK+1}
    s_mov_b32 s{sKSRD+2}, 0x200000
    s_mov_b32 s{sKSRD+3}, 0x20000
    s_mov_b32 exec_hi, 0
    ''')
    for i in range(3): A(f'buffer_load_dword v{vKr+i}, v{vB}, s[{sKSRD}:{sKSRD+3}], 0 offen offset:{1024*i}')
    A('s_mov_b64 exec, -1')
    for i in range(4): A(f'global_load_dword v{vVr+i}, v{vA}, {P(sV)} offset:{1024*i}')
    A(f'''
    s_add_u32 s{sWS}, s{sWS}, {cfg.WS_BASE}
    s_addc_u32 s{sWS+1}, s{sWS+1}, 0
    s_mov_b32 s{sWSR}, s{sWS}
    s_mov_b32 s{sWSR+1}, s{sWS+1}
    s_mov_b32 s{sWSR+2}, 0x4000000
    s_mov_b32 s{sWSR+3}, 0x20000
    s_mov_b32 s{sOUTR}, s{sOUT}
    s_mov_b32 s{sOUTR+1}, s{sOUT+1}
    s_mov_b32 s{sOUTR+2}, 0x200000
    s_mov_b32 s{sOUTR+3}, 0x20000
    s_add_u32 s{sFSRD}, s{sF}, s{sT0}
    s_addc_u32 s{sFSRD+1}, s{sF+1}, 0
    s_mov_b32 s{sFSRD+2}, 8192
    s_mov_b32 s{sFSRD+3}, 0x20000
    s_load_dword s{sDV}, {P(sD)}, s{sT4}
    ''')
    A(f'''
    s_cmp_lg_u32 s{sWAVE}, 7
    s_cbranch_scc1 L_nopt
    s_lshr_b32 s{sT0}, s{sM}, 2
    s_lshl_b32 s{sT0}, s{sT0}, 7
    s_lshl_b32 s{sT1}, s{sG}, 10
    s_add_u32 s{sT0}, s{sT0}, s{sT1}
    s_add_u32 s{sT1}, s{sT0}, {FL1}
    v_mov_b32 v{vPT+2}, s{sT1}
    s_add_u32 s{sT1}, s{sT0}, {FL2}
    v_writelane_b32 v{vPT+2}, s{sT1}, 2
    v_writelane_b32 v{vPT+2}, s{sT1}, 3
    s_lshl_b32 s{sT0}, s{sG}, 7
    s_add_u32 s{sT1}, s{sT0}, {FLM}
    v_writelane_b32 v{vPT+2}, s{sT1}, 4
    v_writelane_b32 v{vPT+2}, s{sT1}, 5
    s_add_u32 s{sT1}, s{sT0}, {SEL}
    v_writelane_b32 v{vPT+2}, s{sT1}, 6
    v_writelane_b32 v{vPT+2}, s{sT1}, 7
    s_lshl_b32 s{sT0}, s{sWID}, 6
    s_and_b32 s{sT0}, s{sT0}, 0xffffff80
    s_add_u32 s{sT1}, s{sT0}, {KEYS}
    v_writelane_b32 v{vPT+2}, s{sT1}, 8
    v_writelane_b32 v{vPT+2}, s{sT1}, 9
    v_and_b32 v{vPT+3}, 1, v0
    v_lshl_add_u32 v{vPT+2}, v{vPT+3}, 6, v{vPT+2}
    s_lshl_b32 s{sT0}, s{sWID}, 9
    s_add_u32 s{sT1}, s{sT0}, {MODP - 32*64}
    v_lshl_add_u32 v{vPT+3}, v{vLANE}, 6, s{sT1}
    v_cmp_lt_u32 vcc, 31, v{vLANE}
    v_cndmask_b32 v{vPT+2}, v{vPT+2}, v{vPT+3}, vcc
    s_lshl_b32 s{sT0}, s{sM}, 9
    s_add_u32 s{sT1}, s{sT0}, {H2P - 40*64}
    v_lshl_add_u32 v{vPT+3}, v{vLANE}, 6, s{sT1}
    v_cmp_lt_u32 vcc, 39, v{vLANE}
    v_cndmask_b32 v{vPT+2}, v{vPT+2}, v{vPT+3}, vcc
    s_mov_b32 exec_lo, 0x3ff
    s_mov_b32 exec_hi, {'0xffff' if cfg.H2PT else '0xff'}
    global_load_dword v{vPT+3}, v{vPT+2}, {P(sWS)} sc1
    s_mov_b64 exec, 0xffff
    s_getpc_b64 {P(sT0)}
    L_pc:
    s_lshl_b32 s{sT2}, s{sM}, 10
    v_lshl_add_u32 v{vPT+2}, v{vLANE}, 6, s{sT2}
    v_min_u32 v{vPT+2}, L_codeend-L_pc-4, v{vPT+2}
    global_load_dword v{vPT+3}, v{vPT+2}, {P(sT0)}
    s_mov_b64 exec, -1
    L_nopt:
    ''')
    if cfg.TLBW:
        tl = [(sWS, X0), (sWS, X3), (sOUT, 0), (sX, 0), (sWM, 0), (sWM, 0x200000), (sWG, 0), (sWU, 0), (sWD, 0), (sWS, XB1)]
        A(f'''
        s_cmp_lg_u32 s{sWAVE}, 6
        s_cbranch_scc1 L_notl
        s_lshl_b32 s{sT2}, s{sWID}, 12
        ''')
        for i, (b, off) in enumerate(tl):
            A(f's_add_u32 s{sT0}, s{b}, s{sT2}')
            A(f's_addc_u32 s{sT1}, s{b+1}, 0')
            if off:
                A(f's_add_u32 s{sT0}, s{sT0}, {off}')
                A(f's_addc_u32 s{sT1}, s{sT1}, 0')
            if i == 0:
                A(f'v_mov_b32 v{vPT+2}, s{sT0}'); A(f'v_mov_b32 v{vPT+3}, s{sT1}')
            else:
                A(f'v_writelane_b32 v{vPT+2}, s{sT0}, {i}'); A(f'v_writelane_b32 v{vPT+3}, s{sT1}, {i}')
        A(f'''
        s_mov_b64 exec, {(1 << len(tl)) - 1}
        global_load_dword v{vMT+1}, {pr(vPT+2)}, off
        s_mov_b64 exec, -1
        L_notl:
        ''')
    A(f'''
    v_mov_b32 v{vPT}, {L_CNT}
    v_mov_b32 v{vPT+1}, 0
    ds_write_b32 v{vPT}, v{vPT+1}
    v_and_b32 v{vT2}, 7, v0
    v_lshl_add_u32 v{vT2}, s{sWAVE}, 3, v{vT2}
    v_lshlrev_b32 v{vT2}, 10, v{vT2}
    v_lshrrev_b32 v{vT3}, 3, v{vLANE}
    v_lshl_add_u32 v{vJR}, v{vT3}, 4, v{vT2}
    v_add_u32 v{vJR}, s{sTILE}, v{vJR}
    s_barrier
    ''')
    def fload():
        A(f'''
        buffer_load_dwordx4 {q4(vFl+4)}, v{vT0}, s[{sFSRD}:{sFSRD+3}], 0 offen
        s_mov_b64 exec, 1
        buffer_load_dwordx4 {q4(vFl)}, v{vT1}, s[{sFSRD}:{sFSRD+3}], 0 offen
        s_mov_b64 exec, -1
        ''')
    if cfg.FPOS == 'bar': fload()
    A(f'''
    s_and_b32 s{sT0}, s{sM}, 3
    s_lshl_b32 s{sT0}, s{sT0}, 8
    s_and_b32 s{sT1}, s{sWAVE}, 3
    s_lshl_b32 s{sT1}, s{sT1}, 6
    s_add_u32 s{sT0}, s{sT0}, s{sT1}
    v_and_b32 v{vT2}, 0x38, v0
    v_add_u32 v{vT2}, s{sT0}, v{vT2}
    global_load_dwordx2 {pr(vGC)}, v{vT2}, {P(sC)}
    s_lshl_b32 s{sT0}, s{sG}, 9
    s_add_u32 s{sT0}, s{sT0}, {MTAB}
    v_and_b32 v{vPT}, 31, v0
    v_lshl_add_u32 v{vPT}, v{vPT}, 4, s{sT0}
    s_lshl_b32 s{sT1}, s{sM}, 4
    s_add_u32 s{sT0}, s{sT0}, s{sT1}
    v_mov_b32 v{vPT+1}, s{sT0}
    s_waitcnt lgkmcnt(0)
    s_mul_i32 s{sTAG}, s{sEP}, 0x9E3779B1
    s_add_u32 s{sTAG}, s{sTAG}, 0x7F4A7C15
    s_add_u32 s{sXCC}, s{sXCC}, s{sTAG}
    s_add_u32 s{sXCC}, s{sXCC}, 1
    v_mov_b32 v{vPT+2}, s{sXCC}
    s_cmp_lg_u32 s{sWAVE}, 0
    s_cbranch_scc1 L_nomode
    s_mov_b64 exec, 1
    global_store_dword v{vPT+1}, v{vPT+2}, {P(sWS)} sc1
    s_mov_b64 exec, -1
    L_nomode:
    ''')
    stamp('issued')
    A(f's_mov_b32 s{sPEND}, 0')
    vX1A, vUA, vTW, vTR = 96, 97, 98, 99
    vP1 = 100
    A(f'''
    v_and_b32 v{vT2}, 31, v0
    v_lshrrev_b32 v{vT3}, 5, v0
    v_mul_u32_u24 v{vTW}, {TS}, v{vT2}
    v_lshlrev_b32 v{vT3}, 3, v{vT3}
    v_sub_u32 v{vTW}, v{vTW}, v{vT3}
    v_add_u32 v{vTW}, {L_T + 120}, v{vTW}
    v_lshrrev_b32 v{vX1A}, 4, v0
    v_mul_u32_u24 v{vTR}, {TS}, v{vX1A}
    v_and_b32 v{vT3}, 15, v0
    v_lshl_add_u32 v{vTR}, v{vT3}, 4, v{vTR}
    v_lshlrev_b32 v{vX1A}, 13, v{vX1A}
    v_bfe_u32 v{vT3}, v0, 3, 1
    v_lshl_add_u32 v{vX1A}, v{vT3}, 12, v{vX1A}
    v_and_b32 v{vT3}, 7, v0
    v_lshl_add_u32 v{vX1A}, v{vT3}, 4, v{vX1A}
    s_lshl_b32 s{sT0}, s{sG}, 18
    s_sub_u32 s{sT1}, 31, s{sM}
    s_lshl_b32 s{sT1}, s{sT1}, 7
    s_add_u32 s{sT0}, s{sT0}, s{sT1}
    s_add_u32 s{sT0}, s{sT0}, {XB1}
    v_add_u32 v{vX1A}, s{sT0}, v{vX1A}
    s_lshl_b32 s{sT0}, s{sG}, 10
    s_lshl_b32 s{sT1}, s{sWAVE}, 7
    s_add_u32 s{sT0}, s{sT0}, s{sT1}
    s_lshl_b32 s{sT1}, s{sM}, 2
    s_add_u32 s{sT0}, s{sT0}, s{sT1}
    v_mov_b32 v{vA}, s{sT0}
    v_mov_b32 v{vB}, s{sTAG}
    v_lshrrev_b32 v{vUA}, 8, v0
    v_mul_u32_u24 v{vUA}, {UCH}, v{vUA}
    v_and_b32 v{vT3}, 255, v0
    v_lshl_add_u32 v{vUA}, v{vT3}, 4, v{vUA}
    v_add_u32 v{vUA}, {L_U}, v{vUA}
    s_lshl_b32 s{sT0}, s{sWID}, 13
    s_add_u32 s{sT0}, s{sT0}, {XB1}
    v_lshl_add_u32 v{vSk-1}, v0, 4, s{sT0}
    s_mov_b32 s{sHM}, 0x11111111
    s_mov_b32 s{sHM+1}, 0x11111111
    s_lshr_b32 s{sT2}, s{sM}, 2
    s_lshl_b32 s{sT2}, s{sT2}, 7
    s_lshl_b32 s{sT1}, s{sG}, 10
    s_add_u32 s{sT2}, s{sT2}, s{sT1}
    s_add_u32 s{sT2}, s{sT2}, {FL1}
    v_and_b32 v{vP1}, 31, v0
    v_lshl_add_u32 v{vP1}, v{vP1}, 2, s{sT2}
    s_lshl_b32 s{sT0}, s{sWID}, 13
    s_add_u32 s{sT0}, s{sT0}, {XB1}
    v_lshl_add_u32 v{vP1+1}, v{vLANE}, 4, s{sT0}
    v_add_u32 v{vP1+2}, 4096, v{vP1+1}
    ''')
    def wv(n): A(f's_waitcnt vmcnt({n})')
    vTp = 46
    vKp = 54
    vVp = 68
    vAc = 76
    vPp = 84
    vO = 92
    wv(7 if cfg.FPOS == 'bar' else 5)
    if cfg.FPOS == 'k': fload()
    for i in range(3): A(f'v_mov_b32 v{vPp+i}, v{vKr+4+i}')
    for i in range(3): A(f'v_permlane32_swap_b32 v{vKr+i}, v{vPp+i}')
    for j in range(4):
        src0, src1 = vSk + (j >> 1), vSk + 2 + (j >> 1)
        if j & 1:
            A(f'v_and_b32 v{vTp+2*j}, s{sMASK}, v{src0}'); A(f'v_and_b32 v{vTp+2*j+1}, s{sMASK}, v{src1}')
        else:
            A(f'v_lshlrev_b32 v{vTp+2*j}, 16, v{src0}'); A(f'v_lshlrev_b32 v{vTp+2*j+1}, 16, v{src1}')
    for r in range(7): unpack(vKp + 2*r, vKr + r)
    stamp('kland')
    for i in range(4): A(f'v_pk_mul_f32 {pr(vAc+2*i)}, {pr(vKp+2*i)}, {pr(vTp+6)}')
    for i in range(8): rnd(vAc + i)
    for j in (2, 1, 0):
        for i in range(4): A(f'v_pk_mul_f32 {pr(vPp+2*i)}, {pr(vKp+2*(i+3-j))}, {pr(vTp+2*j)}')
        for i in range(8): rnd(vPp + i)
        for i in range(4): A(f'v_pk_add_f32 {pr(vAc+2*i)}, {pr(vAc+2*i)}, {pr(vPp+2*i)}')
        for i in range(8): rnd(vAc + i)
    wv(3)
    A(f'global_load_dword v{vMT}, v{vPT}, {P(sWS)} sc1')
    if cfg.X1PT:
        A(f'''
        s_mov_b64 exec, {P(sHM)}
        global_load_dword v{vPT+3}, v{vSk-1}, {P(sWS)} sc1
        s_mov_b64 exec, -1
        ''')
    for i in range(4): unpack(vVp + 2*i, vVr + i)
    for i in range(4): A(f'v_pk_mul_f32 {pr(vAc+2*i)}, {pr(vAc+2*i)}, {pr(vVp+2*i)}')
    for c in range(2):
        A(f'v_cvt_pk_bf16_f32 v{vO+2*c}, v{vAc+6+c}, v{vAc+4+c}')
        A(f'v_cvt_pk_bf16_f32 v{vO+2*c+1}, v{vAc+2+c}, v{vAc+c}')
    A(f'''
    ds_write2_b64 v{vTW}, {pr(vO)}, {pr(vO+2)} offset0:0 offset1:16
    s_waitcnt lgkmcnt(0)
    s_barrier
    ds_read_b128 {q4(vO)}, v{vTR} offset:{L_T}
    ''')
    stamp('B1')
    A(f'''
    s_waitcnt lgkmcnt(0)
    global_store_dwordx4 v{vX1A}, {q4(vO)}, {P(sWS)}
    ''')
    vW1 = 46
    vOa = 52
    vOb = 58
    wv((4 if cfg.X1PT else 3) - (0 if cfg.FPOS == 'bar' else 1))
    for i in range(4): A(f'v_mov_b32_dpp v{vFl+i}, v{vFl+4+i} wave_shr:1 {DPPM}')
    for i in range(6): A(f'v_mov_b32 v{vW1+i}, v{vFl+1+i}')
    for i in range(6): A(f'v_alignbyte_b32 v{vOa+i}, v{vFl+i+1}, v{vFl+i}, 2')
    for i in range(6): A(f'v_alignbyte_b32 v{vOb+i}, v{vFl+i+2}, v{vFl+i+1}, 2')
    vKV = 132
    vWA = 144
    sWB = 12
    A(f'''
    {GSKIP}
    s_cselect_b32 s{sT0}, 0, 1
    s_cmp_lt_u32 s{sM}, {NS3}
    s_cselect_b32 s{sT1}, 2, 0
    s_add_u32 s{sPEND}, s{sT0}, s{sT1}
    ''')
    vSt = 188
    for i in range(2): unpack(vSt + 2*i, vGC + i)
    for i in range(4): A(f'v_mul_f32 v{vSt+4+i}, 0xbfb8aa3b, v{vSt+i}')
    for i in range(4): A(f'v_exp_f32 v{vSt+4+i}, v{vSt+4+i}')
    for i in range(4): A(f'v_add_f32 v{vSt+4+i}, 1.0, v{vSt+4+i}')
    for i in range(4): A(f'v_rcp_f32 v{vSt+4+i}, v{vSt+4+i}')
    for i in range(4): A(f'v_mul_f32 v{vSt+i}, v{vSt+i}, v{vSt+4+i}')
    for i in range(2): A(f'v_cvt_pk_bf16_f32 v{vGC+i}, v{vSt+2*i}, v{vSt+2*i+1}')
    A(f'''
    s_sub_u32 s{sT4}, s{sWAVE}, 4
    s_min_u32 s{sT5}, s{sM}, {NS3-1}
    s_lshr_b32 s{sT0}, s{sT5}, 2
    s_mul_i32 s{sT3}, s{sG}, 7
    s_add_u32 s{sT0}, s{sT0}, s{sT3}
    s_lshl_b32 s{sT2}, s{sT0}, 6
    s_and_b32 s{sT1}, s{sM}, 3
    s_lshl_b32 s{sT3}, s{sT1}, 1
    s_and_b32 s{sT5}, s{sWAVE}, 1
    s_add_u32 s{sT3}, s{sT3}, s{sT5}
    s_mul_i32 s{sT3}, s{sT3}, {64*3584}
    s_add_u32 s{sT2}, s{sT2}, s{sT3}
    v_lshrrev_b32 v{vWA}, 2, v{vLANE}
    v_mul_u32_u24 v{vWA}, 3584, v{vWA}
    v_and_b32 v{vT2}, 3, v0
    v_lshl_add_u32 v{vWA}, v{vT2}, 4, v{vWA}
    v_add_u32 v{vWA}, s{sT2}, v{vWA}
    s_cmp_ge_u32 s{sWAVE}, 6
    s_cselect_b32 s{sWB}, s{sWU}, s{sWG}
    s_cselect_b32 s{sWB+1}, s{sWU+1}, s{sWG+1}
    s_lshl_b32 s{sT2}, s{sT0}, 15
    s_lshl_b32 s{sT3}, s{sT1}, 8
    s_add_u32 s{sT2}, s{sT2}, s{sT3}
    s_lshl_b32 s{sT3}, s{sT4}, 13
    s_add_u32 s{sT2}, s{sT2}, s{sT3}
    v_lshrrev_b32 v{vT2}, 4, v{vLANE}
    v_lshlrev_b32 v{vT2}, 10, v{vT2}
    v_and_b32 v{vT3}, 15, v0
    v_lshl_add_u32 v{vT2}, v{vT3}, 4, v{vT2}
    v_add_u32 v{vWA+1}, s{sT2}, v{vT2}
    v_add_u32 v{vWA+2}, 4096, v{vWA+1}
    {GTAU_CL}
    s_lshr_b32 s{sT1}, s{sT0}, 2
    s_and_b32 s{sT3}, s{sT0}, 3
    s_lshl_b32 s{sT3}, s{sT3}, 7
    s_lshl_b32 s{sT5}, s{sT4}, 5
    s_add_u32 s{sT3}, s{sT3}, s{sT5}
    v_lshrrev_b32 v{vKV}, 3, v{vLANE}
    v_lshl_add_u32 v{vKV}, v{vKV}, 2, s{sT3}
    s_movk_i32 s{sT3}, 6144
    v_mul_lo_u32 v{vKV}, v{vKV}, s{sT3}
    v_and_b32 v{vT3}, 7, v0
    v_lshl_add_u32 v{vKV}, v{vT3}, 4, v{vKV}
    s_lshl_b32 s{sT1}, s{sT1}, 10
    s_lshl_b32 s{sT2}, s{sG}, 7
    s_add_u32 s{sT1}, s{sT1}, s{sT2}
    v_add_u32 v{vKV}, s{sT1}, v{vKV}
    v_lshl_add_u32 v{vKV+2}, v{vLANE}, 1, s{sT2}
    v_subrev_u32 v{vKV+3}, 0x8000, v{vJR}
    ''')
    A(f'''
    v_add_u32 v{vT2}, {FL1}, v{vA}
    s_mov_b32 s{sMODE}, {0 if cfg.FORCE_SLOW else 1}
    s_waitcnt vmcnt(0)
    v_cmp_ne_u32 vcc, s{sXCC}, v{vMT}
    s_cbranch_vccnz L_modeslow
    L_modeback:
    s_cmp_eq_u32 s{sMODE}, 1
    s_cbranch_scc0 L_x1slow
    L_x1back:
    s_mov_b64 exec, 1
    ''')
    late.append(('L_x1slow', lambda: (A(f'global_store_dwordx4 v{vX1A}, {q4(vO)}, {P(sWS)} sc1'), A('s_waitcnt vmcnt(0)'), A('s_branch L_x1back'))))
    lstore(f'global_store_dword v{vT2}, v{vB}, {P(sWS)}')
    A('s_mov_b64 exec, -1')
    stamp('flag1')
    srcs = {0: vOa, 1: vW1, 2: vOb, 3: vFl + 2, 4: vOa + 2, 5: vW1 + 2, 6: vOb + 2, 7: vFl + 4}
    def uwrites():
        for c in range(8): A(f'ds_write_b128 v{vUA}, {q4(srcs[c])} offset:{c*USTR + 16}')
    A(f's_cmp_lg_u32 s{sWAVE}, 4')
    A('s_cbranch_scc1 L_nouw')
    A(f's_mov_b32 m0, {L_KVR}')
    poll('L_poll1', f'global_load_dword v{vT2}, v{vP1}, {P(sWS)} sc1', f'v_cmp_ne_u32 vcc, s{sTAG}, v{vT2}')
    for i in range(4): A(f'global_load_lds_dwordx4 v{vP1+1}, {P(sWS)} offset:{1024*i} sc1')
    A(f's_mov_b32 m0, {L_KVR + KVS}')
    for i in range(4): A(f'global_load_lds_dwordx4 v{vP1+2}, {P(sWS)} offset:{1024*i} sc1')
    stamp('poll1')
    A('L_nouw:')
    uwrites()
    vZ = 64
    for i in range(4): A(f'v_mov_b32 v{vZ+i}, 0')
    vXp = 100
    vXA = 108
    vXL = 109
    A(f'''
    v_mul_u32_u24 v{vT0}, {USTR}, v{vLANE}
    v_lshrrev_b32 v{vT1}, 5, v{vLANE}
    v_mul_u32_u24 v{vT1}, {KVS - 512}, v{vT1}
    v_lshl_add_u32 v{vT1}, v{vLANE}, 4, v{vT1}
    v_add_u32 v{vT1}, {L_KVR + 4096}, v{vT1}
    s_cmp_lg_u32 s{sWAVE}, 0
    s_cbranch_scc1 L_nz0
    s_mov_b64 exec, 0xffff
    ds_write_b128 v{vT0}, {q4(vZ)} offset:{L_U}
    s_mov_b64 exec, -1
    ds_write_b128 v{vT1}, {q4(vZ)}
    L_nz0:
    v_lshrrev_b32 v{vT0}, 3, v{vLANE}
    v_and_b32 v{vT1}, 7, v0
    v_lshl_add_u32 v{vT1}, s{sWAVE}, 3, v{vT1}
    v_lshlrev_b32 v{vT1}, 4, v{vT1}
    v_lshl_add_u32 v{vXA}, v{vT0}, 18, v{vT1}
    s_lshl_b32 s{sT0}, s{sM}, 13
    s_lshl_b32 s{sT1}, s{sG}, 10
    s_add_u32 s{sT0}, s{sT0}, s{sT1}
    v_add_u32 v{vXA}, s{sT0}, v{vXA}
    v_lshl_add_u32 v{vXL}, v{vT0}, 10, v{vT1}
    s_lshl_b32 s{sT0}, s{sWID}, 13
    v_add_u32 v{vXL}, s{sT0}, v{vXL}
    s_cmp_ge_u32 s{sWAVE}, 4
    s_cbranch_scc1 L_helper
    ''')
    vAA, vBA, vPW = 110, 111, 112
    vACC = 116
    vFA = [148, 180]
    vFB = [212, 46]
    A(f'''
    v_and_b32 v{vT0}, 15, v0
    v_lshrrev_b32 v{vT1}, 4, v{vLANE}
    v_and_b32 v{vT2}, 7, v0
    v_mul_u32_u24 v{vAA}, {USTR}, v{vT2}
    v_lshrrev_b32 v{vT2}, 3, v{vT0}
    v_add_u32 v{vT2}, v{vT2}, v{vT1}
    v_lshl_add_u32 v{vAA}, v{vT2}, 4, v{vAA}
    s_lshr_b32 s{sT0}, s{sWAVE}, 1
    s_and_b32 s{sT1}, s{sWAVE}, 1
    s_lshl_b32 s{sT1}, s{sT1}, 8
    s_mul_i32 s{sT2}, s{sT0}, {UCH}
    s_add_u32 s{sT2}, s{sT2}, s{sT1}
    s_add_u32 s{sT2}, s{sT2}, {L_U}
    v_add_u32 v{vAA}, s{sT2}, v{vAA}
    v_lshlrev_b32 v{vBA}, 4, v{vT1}
    v_lshlrev_b32 v{vT2}, 5, v{vT0}
    v_sub_u32 v{vBA}, v{vBA}, v{vT2}
    s_mul_i32 s{sT2}, s{sT0}, {KVS}
    s_add_u32 s{sT2}, s{sT2}, s{sT1}
    s_add_u32 s{sT2}, s{sT2}, {L_KVR + 480}
    v_add_u32 v{vBA}, s{sT2}, v{vBA}
    ''')
    def ldA(st, r, p): A(f'ds_read_b128 {q4(vFA[st]+4*p)}, v{vAA} offset:{64*r + 512*p}')
    def ldB(st, r, q): A(f'ds_read_b128 {q4(vFB[st]+4*q)}, v{vBA} offset:{(7-q)*512 + 64*r}')
    A(f'''
    v_lshl_add_u32 v{vT2}, v{vT1}, 2, v{vT0}
    v_and_b32 v{vT2}, 15, v{vT2}
    v_lshl_add_u32 v{vT2}, v{vT1}, 4, v{vT2}
    v_lshlrev_b32 v{vPW}, 4, v{vT2}
    s_lshl_b32 s{sT0}, s{sWAVE}, 13
    s_add_u32 s{sT0}, s{sT0}, {L_P}
    v_add_u32 v{vPW}, s{sT0}, v{vPW}
    s_waitcnt lgkmcnt(0)
    s_barrier
    s_setprio {cfg.PRIO}
    ''')
    for i in range(8): ldA(0, 0, i)
    A('s_waitcnt lgkmcnt(0)')
    A('s_barrier')
    stamp('B2')
    for i in range(8): ldB(0, 0, i)
    order = [(p, j - p) for j in range(8) for p in range(j + 1)]
    for r in range(4):
        st = r & 1
        nxt = [(k, i) for i in range(8) for k in 'AB'] if r < 3 else []
        issued = 0
        written = 0
        for n, (p, q) in enumerate(order):
            j = p + q
            if p == 0 and r == 0:
                A(f's_waitcnt lgkmcnt({min(15, 8 - (j+1) + issued)})')
                if cfg.ALIGN: A('.p2align 3')
            c = '0' if (r == 0 and p == 0) else q4(vACC + 4*j)
            A(f'v_mfma_f32_16x16x32_bf16 {q4(vACC+4*j)}, {q4(vFA[st]+4*p)}, {q4(vFB[st]+4*q)}, {c}')
            if nxt and issued < 16 and n >= (4 if r == 0 else 1):
                k, i = nxt[issued]
                (ldA if k == 'A' else ldB)(st ^ 1, r + 1, i); issued += 1
            if r == 3:
                while written < 8 and n >= written*(written+3)//2 + 9 and written <= j - 1:
                    A(f'ds_write_b128 v{vPW}, {q4(vACC+4*written)} offset:{1024*written}'); written += 1
        if r < 3:
            A('s_waitcnt lgkmcnt(0)')
            if cfg.ALIGN: A('.p2align 3')
        else:
            while written < 8:
                A(f'ds_write_b128 v{vPW}, {q4(vACC+4*written)} offset:{1024*written}'); written += 1
    A('s_setprio 0')
    A('s_branch L_s1join')
    A('L_helper:')
    vKD = 116
    vKV = 132
    vXo = 140
    vI0 = 220
    vDUM = 230
    vWRr = 231
    vGW = 164
    vF2, vD2 = 54, 55
    wr_ = [0]
    def wvr(n_s3only, n_both, n_gonly):
        wr_[0] += 1; k = wr_[0]
        A(f'''
        s_cmp_lg_u32 s{sPEND}, 3
        s_cbranch_scc1 L_wr{k}a
        s_waitcnt vmcnt({n_both})
        L_wr{k}b:
        ''')
        late.append((f'L_wr{k}a', lambda: (A(f's_waitcnt vmcnt({min(n_s3only, n_gonly)})') if n_s3only == n_gonly else
                     A(f'''s_cmp_eq_u32 s{sPEND}, 2
                     s_cbranch_scc1 L_wr{k}c
                     s_waitcnt vmcnt({n_gonly})
                     s_branch L_wr{k}b
                     L_wr{k}c:
                     s_waitcnt vmcnt({n_s3only})'''), A(f's_branch L_wr{k}b'))))
    vWA = 144
    sWB = 12
    def wblock(tag):
        A(f'''
        s_cmp_ge_u32 s{sM}, {NS3}
        s_cbranch_scc1 L_h_now{tag}
        s_lshl_b32 s{sT5}, s{sT4}, 12
        s_add_u32 s{sT5}, s{sT5}, {L_WGU}
        ''')
        for i in range(4):
            A(f's_mov_b32 m0, s{sT5}')
            A(f'global_load_lds_dwordx4 v{vWA}, {P(sWB)}')
            if i < 3:
                A(f'v_add_u32 v{vWA}, {16*3584}, v{vWA}')
                A(f's_add_u32 s{sT5}, s{sT5}, 1024')
        if cfg.WDPOS == 's1': A(f'''
        s_lshl_b32 s{sT5}, s{sT4}, 11
        s_add_u32 s{sT5}, s{sT5}, {L_WGU + 16384}
        s_mov_b32 m0, s{sT5}
        s_add_u32 s{sT5}, s{sT5}, 1024
        global_load_lds_dwordx4 v{vWA+1}, {P(sWD)}
        s_mov_b32 m0, s{sT5}
        s_nop 0
        global_load_lds_dwordx4 v{vWA+2}, {P(sWD)}
        ''')
        A(f'L_h_now{tag}:')
    A(f'''
    L_h_b2a:
    s_waitcnt lgkmcnt(0)
    s_barrier
    global_load_dwordx4 {q4(vX)}, v{vJR}, {P(sX)}
    global_load_dwordx4 {q4(vXo)}, v{vKV+3}, {P(sX)}
    global_load_ushort v{vWRr}, v{vKV+2}, {P(sWR)}
    {GSKIP}
    s_cbranch_scc1 L_h_nog
    ''')
    for i in range(4):
        A(f'global_load_dwordx4 {q4(vGW+4*i)}, v{vKV}, {P(sWM)}')
        if i < 3: A(f'v_add_u32 v{vKV}, s{sT3}, v{vKV}')
    A('L_h_nog:')
    wvr(3, 7, 3 if cfg.GLOW else 7)
    A('s_barrier')
    wblock('a')
    A(f'''
    s_lshl_b32 s{sT0}, s{sWAVE}, 9
    s_sub_u32 s{sT0}, {L_KVR + 4088}, s{sT0}
    v_lshlrev_b32 v{vT0}, 3, v{vLANE}
    v_sub_u32 v{vT0}, s{sT0}, v{vT0}
    ds_read_b64 {pr(vKV)}, v{vT0}
    ds_read_b64 {pr(vKV+2)}, v{vT0} offset:{KVS}
    ds_read_b64 {pr(vKV+4)}, v{vT0} offset:2048
    ds_read_b64 {pr(vKV+6)}, v{vT0} offset:{KVS+2048}
    s_lshl_b32 s{sD0}, s{sDV}, 16
    s_and_b32 s{sD1}, s{sDV}, s{sMASK}
    s_waitcnt lgkmcnt(0)
    ''')
    for t in range(2):
        for c in range(2):
            b = vKD + 8*t + 4*c; s = vKV + 4*t + 2*c
            A(f'v_and_b32 v{b}, s{sMASK}, v{s+1}')
            A(f'v_lshlrev_b32 v{b+1}, 16, v{s+1}')
            A(f'v_and_b32 v{b+2}, s{sMASK}, v{s}')
            A(f'v_lshlrev_b32 v{b+3}, 16, v{s}')
            for i in range(4): A(f'v_mul_f32 v{b+i}, s{sD0+c}, v{b+i}')
            for i in range(4): rnd(b + i)
    A(f'''
    s_lshl_b32 s{sT1}, s{sT4}, 11
    s_add_u32 s{sT1}, s{sT1}, {L_KD}
    v_lshl_add_u32 v{vT0}, v{vLANE}, 4, s{sT1}
    ds_write_b128 v{vT0}, {q4(vKD+8)}
    ds_write_b128 v{vT0}, {q4(vKD+12)} offset:1024
    ''')
    A(f'''
    s_lshl_b32 s{sT1}, s{sT4}, 10
    s_add_u32 s{sT1}, s{sT1}, {L_XS}
    v_lshl_add_u32 v{vT0}, v{vLANE}, 4, s{sT1}
    ''')
    wvr(7, 11, 1 if cfg.GLOW else 5)
    A(f'ds_write_b128 v{vT0}, {q4(vXo)}')
    vXq = 186
    vS0 = 196
    for i in range(4): unpack(vXp + 2*i, vX + i)
    for i in range(4): unpack(vXq + 2*i, vXo + i)
    for (xb, u, t) in ((vXp, vS0, 204), (vXq, vS0 + 4, 208)):
        A(f'v_pk_add_f32 {pr(t)}, {pr(xb)}, {pr(xb+2)}')
        A(f'v_pk_mul_f32 {pr(t+2)}, {pr(xb)}, {pr(xb)}')
        for i in range(1, 4): A(f'v_pk_fma_f32 {pr(t+2)}, {pr(xb+2*i)}, {pr(xb+2*i)}, {pr(t+2)}')
        for i in range(2, 4): A(f'v_pk_add_f32 {pr(t)}, {pr(t)}, {pr(xb+2*i)}')
        A(f'v_add_f32 v{u}, v{t}, v{t+1}')
        A(f'v_add_f32 v{u+2}, v{t+2}, v{t+3}')
    allred([vS0, vS0 + 2, vS0 + 4, vS0 + 6], [204, 205, 206, 207])
    A(f'''
    v_mov_b32 v{vS0+1}, s{sTAG}
    v_mov_b32 v{vS0+3}, s{sTAG}
    v_mov_b32 v{vS0+5}, s{sTAG}
    v_mov_b32 v{vS0+7}, s{sTAG}
    v_add_u32 v{vT0}, {X0 - 512}, v{vXA}
    global_store_dwordx4 v{vT0}, {q4(vS0)}, {P(sWS)} offset:512 sc1
    global_store_dwordx4 v{vT0}, {q4(vS0+4)}, {P(sWS)} sc1
    ''')
    stamp('gemv0')
    def gemv_block(nb, ng):
        A(f'''
        {GSKIP}
        s_cbranch_scc1 L_g_done
        s_cmp_lt_u32 s{sWAVE}, 4
        s_cbranch_scc1 L_g_done
        ''')
        wvr(63, nb, ng)
        vSC = vGC
        vGA = 204
        vGP = 212
        A(f's_mov_b32 s{sT0}, 0x05040100')
        A(f's_mov_b32 s{sT1}, 0x07060302')
        for rp in range(2):
            w0, w1 = vGW + 8*rp, vGW + 8*rp + 4
            for d in range(4):
                A(f'v_perm_b32 v{vGP+2*d}, v{w1+d}, v{w0+d}, s{sT0}')
                A(f'v_perm_b32 v{vGP+2*d+1}, v{w1+d}, v{w0+d}, s{sT1}')
            for c in range(8): A(f'v_dot2_f32_bf16 v{vGA+c}, v{vGP+c}, v{vSC+rp}, ' + (f'v{vGA+c}' if rp else '0'))
        for c in range(4): A(f'v_permlane32_swap_b32 v{vGA+c}, v{vGA+c+4}')
        for c in range(4): A(f'v_add_f32 v{vGA+c}, v{vGA+c}, v{vGA+c+4}')
        for c in range(2): A(f'v_permlane16_swap_b32 v{vGA+c}, v{vGA+c+2}')
        for c in range(2): A(f'v_add_f32 v{vGA+c}, v{vGA+c}, v{vGA+c+2}')
        for c in range(2): A(f'v_add_f32_dpp v{vGA+c}, v{vGA+c}, v{vGA+c} row_ror:8 {DPPM}')
        A(f'''
        v_and_b32 v{vT0}, 8, v0
        v_cmp_ne_u32 vcc, 0, v{vT0}
        v_cndmask_b32 v{vGA}, v{vGA}, v{vGA+1}, vcc
        v_and_b32 v{vT0}, 7, v0
        v_lshrrev_b32 v{vT1}, 3, v{vLANE}
        v_lshl_add_u32 v{vT0}, v{vT0}, 3, v{vT1}
        s_sub_u32 s{sT0}, s{sWAVE}, 4
        s_lshl_b32 s{sT0}, s{sT0}, 8
        s_add_u32 s{sT0}, s{sT0}, {L_GP}
        v_lshl_add_u32 v{vT0}, v{vT0}, 2, s{sT0}
        ds_write_b32 v{vT0}, v{vGA}
        v_mov_b32 v{vT1}, {L_CNT}
        v_mov_b32 v{vT2}, 1
        s_waitcnt lgkmcnt(0)
        s_mov_b64 exec, 1
        ds_add_rtn_u32 v{vT2}, v{vT1}, v{vT2}
        s_mov_b64 exec, -1
        s_waitcnt lgkmcnt(0)
        v_readfirstlane_b32 s{sT0}, v{vT2}
        s_cmp_lg_u32 s{sT0}, 3
        s_cbranch_scc1 L_g_done
        v_lshlrev_b32 v{vT0}, 2, v{vLANE}
        ds_read2st64_b32 {pr(vGA)}, v{vT0} offset0:{L_GP//256} offset1:{L_GP//256+1}
        ds_read2st64_b32 {pr(vGA+2)}, v{vT0} offset0:{L_GP//256+2} offset1:{L_GP//256+3}
        {GTAU}
        s_lshl_b32 s{sT0}, s{sT0}, 9
        s_lshl_b32 s{sT1}, s{sG}, 14
        s_add_u32 s{sT0}, s{sT0}, s{sT1}
        s_add_u32 s{sT0}, s{sT0}, {MODP}
        v_lshl_add_u32 v{vT0}, v{vLANE}, 3, s{sT0}
        s_waitcnt lgkmcnt(0)
        v_pk_add_f32 {pr(vGA)}, {pr(vGA)}, {pr(vGA+2)}
        v_add_f32 v{vGA}, v{vGA}, v{vGA+1}
        v_mov_b32 v{vGA+1}, s{sTAG}
        ''')
        lstore(f'global_store_dwordx2 v{vT0}, {pr(vGA)}, {P(sWS)}')
        A('L_g_done:')
    if cfg.GPOS == 's1': gemv_block(8 if cfg.WDPOS == 's1' else 6, 2)
    A('L_s1join:')
    stamp('s1join')
    vPp0 = 148
    vKDe = 116
    vMn, vInv = 64, 65
    vH = 232
    vPar = 164
    vU = 46
    def rdpar(lst):
        for pi in lst:
            A(f'ds_read_b128 {q4(vPar+8*pi)}, v{vPA} offset:{L_MOD + 256*pi}')
            A(f'ds_read_b128 {q4(vPar+8*pi+4)}, v{vPA} offset:{L_MOD + 256*pi + 16}')
    A(f'''
    v_lshrrev_b32 v{vT0}, 2, v{vLANE}
    v_and_b32 v{vT1}, 3, v0
    v_lshl_add_u32 v{vT0}, v{vT1}, 2, v{vT0}
    v_and_b32 v{vT0}, 15, v{vT0}
    v_lshl_add_u32 v{vT0}, v{vT1}, 4, v{vT0}
    v_lshlrev_b32 v{vT0}, 4, v{vT0}
    s_lshl_b32 s{sT0}, s{sWAVE}, 10
    s_add_u32 s{sT1}, s{sT0}, {L_P}
    v_add_u32 v{vT0}, s{sT1}, v{vT0}
    s_lshl_b32 s{sT1}, s{sWAVE}, 11
    s_add_u32 s{sT1}, s{sT1}, {L_KD}
    v_lshl_add_u32 v{vT1}, v{vLANE}, 4, s{sT1}
    s_lshl_b32 s{sT2}, s{sWID}, 13
    s_add_u32 s{sT2}, s{sT2}, {XB1}
    v_lshl_add_u32 v{vT2}, v0, 4, s{sT2}
    v_lshlrev_b32 v{vT3}, 4, v0
    v_add_u32 v{vT3}, {L_XS}, v{vT3}
    v_lshrrev_b32 v{vPA}, 3, v{vLANE}
    v_lshlrev_b32 v{vPA}, 5, v{vPA}
    s_waitcnt lgkmcnt(0)
    s_barrier
    ''')
    for w in range(4): A(f'ds_read_b128 {q4(vPp0+4*w)}, v{vT0} offset:{8192*w}')
    A(f'''
    s_cmp_ge_u32 s{sWAVE}, 4
    s_cbranch_scc1 L_nokd
    ds_read_b128 {q4(vKDe)}, v{vT1}
    ds_read_b128 {q4(vKDe+4)}, v{vT1} offset:1024
    ds_read_b128 {q4(vX)}, v{vT3}
    L_nokd:
    s_waitcnt lgkmcnt(0)
    ''')
    for c in range(2):
        for h in range(2): A(f'v_pk_add_f32 {pr(vPp0+8*c+2*h)}, {pr(vPp0+8*c+2*h)}, {pr(vPp0+8*c+4+2*h)}')
    for c in range(2):
        for i in range(4): rnd(vPp0 + 8*c + i)
    for c in range(2):
        for h in range(2): A(f'v_pk_add_f32 {pr(vPp0+8*c+2*h)}, {pr(vPp0+8*c+2*h)}, {pr(vKDe+4*c+2*h)}')
    for i in range(4): A(f'v_cvt_pk_bf16_f32 v{vPp0+4+i}, v{vPp0+i}, v{vPp0+8+i}')
    lstore(f'global_store_dwordx4 v{vT2}, {q4(vPp0+4)}, {P(sWS)}')
    stamp('zst')
    vMQ = 140
    vXCA = 139
    vZA = 68
    A(f'''
    v_mov_b32 v{vXCA}, 0
    s_min_u32 s{sT5}, s{sWAVE}, 5
    s_cmp_eq_u32 s{sWAVE}, 6
    s_cselect_b32 s{sT5}, 3, s{sT5}
    s_cmp_eq_u32 s{sWAVE}, 7
    s_cselect_b32 s{sT5}, 4, s{sT5}
    s_lshl_b32 s{sT1}, s{sT5}, 11
    s_lshl_b32 s{sT2}, s{sG}, 14
    s_add_u32 s{sT1}, s{sT1}, s{sT2}
    s_add_u32 s{sT1}, s{sT1}, {MODP}
    v_lshl_add_u32 v{vD2+1}, v{vLANE}, 4, s{sT1}
    v_add_u32 v{vD2+2}, {X0}, v{vXL}
    ''')
    modld = '\n'.join([f'global_load_dwordx4 {q4(vMQ+4*i)}, v{vD2+1}, {P(sWS)} offset:{1024*i} sc1' for i in range(2)])
    chk = [f'v_xor_b32 v{vMQ+2*i+1}, s{sTAG}, v{vMQ+2*i+1}' for i in range(4)]
    chk += [f'v_or3_b32 v{vMQ+1}, v{vMQ+1}, v{vMQ+3}, v{vMQ+5}', f'v_or_b32 v{vMQ+1}, v{vMQ+1}, v{vMQ+7}', f'v_cmp_ne_u32 vcc, 0, v{vMQ+1}']
    x0ld = f'global_load_dwordx4 {q4(vI0)}, v{vD2+2}, {P(sWS)} sc1'
    x0chk = f'''v_xor_b32 v{vI0+1}, s{sTAG}, v{vI0+1}
         v_xor_b32 v{vI0+3}, s{sTAG}, v{vI0+3}
         v_or_b32 v{vI0+1}, v{vI0+1}, v{vI0+3}
         v_cmp_ne_u32 vcc, 0, v{vI0+1}'''
    A(x0ld)
    for i in range(4): unpack(vXp + 2*i, vX + i)
    if cfg.GPOS == 'zst': gemv_block(10, 4)
    A(f'''
    v_add_u32 v{vT1}, {FL2}, v{vA}
    s_lshr_b32 s{sT2}, s{sM}, 2
    s_lshl_b32 s{sT2}, s{sT2}, 7
    s_lshl_b32 s{sT3}, s{sG}, 10
    s_add_u32 s{sT2}, s{sT2}, s{sT3}
    s_lshl_b32 s{sT3}, s{sWAVE}, 4
    s_add_u32 s{sT2}, s{sT2}, s{sT3}
    s_add_u32 s{sT2}, s{sT2}, {FL2}
    v_and_b32 v{vF2}, 3, v0
    v_lshl_add_u32 v{vF2}, v{vF2}, 2, s{sT2}
    s_lshl_b32 s{sT3}, s{sWAVE}, 1
    v_subrev_u32 v{vD2}, s{sT3}, v0
    v_and_b32 v{vD2}, 15, v{vD2}
    v_lshlrev_b32 v{vD2}, 4, v{vD2}
    v_lshrrev_b32 v{vT2}, 4, v0
    v_lshl_add_u32 v{vD2}, v{vT2}, 13, v{vD2}
    s_lshl_b32 s{sT2}, s{sG}, 18
    s_lshl_b32 s{sT3}, s{sM}, 8
    s_add_u32 s{sT2}, s{sT2}, s{sT3}
    s_add_u32 s{sT2}, s{sT2}, {XB1}
    v_add_u32 v{vD2}, s{sT2}, v{vD2}
    s_lshl_b32 s{sT2}, s{sWAVE}, 10
    s_add_u32 s{sT2}, s{sT2}, {L_Z}
    s_mov_b32 m0, s{sT2}
    v_lshrrev_b32 v{vT0}, 3, v{vLANE}
    v_bfe_u32 v{vT2}, v0, 2, 1
    v_lshl_add_u32 v{vT2}, s{sWAVE}, 1, v{vT2}
    v_lshl_add_u32 v{vT2}, v{vT0}, 1, v{vT2}
    v_and_b32 v{vT2}, 15, v{vT2}
    v_lshlrev_b32 v{vT2}, 4, v{vT2}
    v_lshl_add_u32 v{vZA}, v{vT0}, 10, v{vT2}
    v_and_b32 v{vT2}, 3, v0
    v_lshl_add_u32 v{vZA}, v{vT2}, 2, v{vZA}
    s_mov_b32 s{sT0}, s{sT5}
    s_waitcnt vmcnt(1)
    s_mov_b64 exec, 1
    ''')
    lstore(f'global_store_dword v{vT1}, v{vB}, {P(sWS)}')
    A('s_mov_b64 exec, -1')
    stamp('flag2')
    A(modld)
    A('s_waitcnt vmcnt(3)')
    A(x0chk)
    A('s_cbranch_vccnz L_pollx0')
    A('L_pollx0_back:')
    late.append(('L_pollx0', lambda: (poll('L_pollx0b', x0ld, x0chk), A('s_nop 1'), A('s_branch L_pollx0_back'))))
    allred([vI0, vI0 + 2], [vI0 + 1, vI0 + 3])
    lnstats(vI0, vI0 + 2, vI0 + 1, vMn, vInv)
    for i in range(8): A(f'v_sub_f32 v{vH+i}, v{vXp+i}, v{vMn}')
    for i in range(8): rnd(vH + i)
    for i in range(8): A(f'v_mul_f32 v{vH+i}, v{vH+i}, v{vInv}')
    for i in range(8): rnd(vH + i)
    A('s_waitcnt vmcnt(0)')
    A('\n'.join(chk))
    A('s_cbranch_vccnz L_pollm')
    A('L_pollm_back:')
    late.append(('L_pollm', lambda: (poll('L_pollmb', modld, '\n'.join(chk)), A('s_branch L_pollm_back'))))
    stamp('modok')
    A(f'global_load_dword v{vI0}, v{vF2}, {P(sWS)} sc1')
    A(f'v_add_f32 v{vMQ}, v{vMQ}, v{vMQ+4}')
    A(f'v_add_f32 v{vMQ+2}, v{vMQ+2}, v{vMQ+6}')
    A(f'''
    v_permlane32_swap_b32 v{vMQ}, v{vMQ+2}
    v_add_f32 v{vMQ}, v{vMQ}, v{vMQ+2}
    v_cvt_pk_bf16_f32 v{vMQ}, 0, v{vMQ}
    v_add_f32 v{vMQ+1}, 1.0, v{vMQ}
    v_cvt_pk_bf16_f32 v{vMQ+1}, 0, v{vMQ+1}
    s_cmp_eq_u32 s{sT0}, 1
    s_cselect_b64 vcc, -1, 0
    s_cmp_eq_u32 s{sT0}, 4
    s_cselect_b64 vcc, -1, vcc
    v_cndmask_b32 v{vMQ}, v{vMQ}, v{vMQ+1}, vcc
    v_and_b32 v{vT0}, 31, v0
    v_lshrrev_b32 v{vT1}, 5, v{vLANE}
    v_lshl_add_u32 v{vT0}, v{vT0}, 1, v{vT1}
    v_lshlrev_b32 v{vT0}, 2, v{vT0}
    s_cmp_ge_u32 s{sWAVE}, 6
    s_cbranch_scc1 L_m67
    s_lshl_b32 s{sT1}, s{sT0}, 8
    v_add_u32 v{vT0}, s{sT1}, v{vT0}
    ds_write_b32 v{vT0}, v{vMQ} offset:{L_MOD}
    s_branch L_mjoin
    L_m67:
    ds_bpermute_b32 v{vT1}, v{vT0}, v{vWRr}
    s_waitcnt lgkmcnt(0)
    v_lshlrev_b32 v{vT1}, 16, v{vT1}
    v_mul_f32 v{vMQ+4}, v{vMQ}, v{vT1}
    s_cmp_eq_u32 s{sWAVE}, 7
    s_cselect_b32 s{sT1}, 0, 256
    s_cselect_b32 s{sT2}, 0, 8
    v_add_u32 v{vT0}, s{sT1}, v{vT0}
    ds_write_b32 v{vT0}, v{vMQ+4} offset:{L_MOD + 6*256}
    ''')
    fullred([vMQ + 4], [vMQ + 6])
    A(f'''
    v_mov_b32 v{vMQ+5}, s{sTAG}
    s_lshl_b32 s{sT0}, s{sM}, 7
    s_lshl_b32 s{sT1}, s{sG}, 4
    s_add_u32 s{sT0}, s{sT0}, s{sT1}
    s_add_u32 s{sT0}, s{sT0}, s{sT2}
    s_add_u32 s{sT0}, s{sT0}, {XC}
    v_lshl_add_u32 v{vXCA}, v{vLANE}, 12, s{sT0}
    L_mjoin:
    ''')
    A(f'''
    s_waitcnt vmcnt(0)
    v_cmp_ne_u32 vcc, s{sTAG}, v{vI0}
    s_mov_b32 s{sT4}, 0
    s_cbranch_vccnz L_p2n
    global_load_lds_dwordx4 v{vD2}, {P(sWS)} sc1
    s_mov_b32 s{sT4}, 1
    L_p2n:
    s_waitcnt lgkmcnt(0)
    s_barrier
    ''')
    rdpar((1, 0, 2, 6))
    A('s_waitcnt lgkmcnt(4)')
    for i in range(8): A(f'v_mul_f32 v{vH+i}, v{vH+i}, v{vPar+8+i}')
    for i in range(8): rnd(vH + i)
    for i in range(8): A(f'v_add_f32 v{vH+i}, v{vH+i}, v{vPar+i}')
    for i in range(8): rnd(vH + i)
    A(f'''
    s_cmp_eq_u32 s{sT4}, 1
    s_cbranch_scc1 L_p2d
    ''')
    poll('L_poll2', f'global_load_dword v{vT2}, v{vF2}, {P(sWS)} sc1', f'v_cmp_ne_u32 vcc, s{sTAG}, v{vT2}')
    A(f'global_load_lds_dwordx4 v{vD2}, {P(sWS)} sc1')
    A('L_p2d:')
    stamp('poll2')
    stamp('hdone')
    A('s_waitcnt vmcnt(0)')
    A('s_barrier')
    A(f'''
    s_cmp_lt_u32 s{sWAVE}, 6
    s_cbranch_scc1 L_noxc
    s_mov_b64 exec, 0xff
    global_store_dwordx2 v{vXCA}, {pr(vMQ+4)}, {P(sWS)} sc1
    s_mov_b64 exec, -1
    L_noxc:
    ''')
    stamp('B4')
    vZr = 70
    vZ1 = 74
    vSQ = 82
    A(f'ds_read2st64_b32 {pr(vZr)}, v{vZA} offset0:{L_Z//256} offset1:{L_Z//256+1}')
    A(f'ds_read2st64_b32 {pr(vZr+2)}, v{vZA} offset0:{L_Z//256+2} offset1:{L_Z//256+3}')
    A(f'v_add_u32 v{vT0}, {X3}, v{vXA}')
    A('s_waitcnt lgkmcnt(0)')
    for i in range(4): unpack(vZ1 + 2*i, vZr + i)
    for i in range(8): A(f'v_mul_f32 v{vZ1+i}, v{vZ1+i}, v{vH+i}')
    for i in range(8): rnd(vZ1 + i)
    for i in range(8): A(f'v_mul_f32 v{vZ1+i}, v{vZ1+i}, v{vPar+16+i}')
    for i in range(8): rnd(vZ1 + i)
    for i in range(8): A(f'v_add_f32 v{vZ1+i}, v{vZ1+i}, v{vXp+i}')
    for i in range(8): rnd(vZ1 + i)
    S_, Q_, P_ = vSQ, vSQ + 2, vSQ + 4
    A(f'v_pk_add_f32 {pr(S_)}, {pr(vZ1)}, {pr(vZ1+2)}')
    A(f'v_pk_mul_f32 {pr(Q_)}, {pr(vZ1)}, {pr(vZ1)}')
    A(f'v_pk_mul_f32 {pr(P_)}, {pr(vZ1)}, {pr(vPar+48)}')
    for i in range(1, 4):
        A(f'v_pk_fma_f32 {pr(Q_)}, {pr(vZ1+2*i)}, {pr(vZ1+2*i)}, {pr(Q_)}')
        A(f'v_pk_fma_f32 {pr(P_)}, {pr(vZ1+2*i)}, {pr(vPar+48+2*i)}, {pr(P_)}')
        if i >= 2: A(f'v_pk_add_f32 {pr(S_)}, {pr(S_)}, {pr(vZ1+2*i)}')
    vUn = vSQ + 6
    A(f'v_add_f32 v{vUn}, v{S_}, v{S_+1}')
    A(f'v_add_f32 v{vUn+1}, v{Q_}, v{Q_+1}')
    A(f'v_add_f32 v{vUn+2}, v{P_}, v{P_+1}')
    A(f'v_mov_b32 v{vUn+3}, s{sTAG}')
    allred([vUn, vUn + 1, vUn + 2], [S_, Q_, P_])
    A(f'global_store_dwordx4 v{vT0}, {q4(vUn)}, {P(sWS)} sc1')
    stamp('x3st')
    rdpar((3, 4, 5))
    if cfg.WBL2:
        A(f'''
        s_cmp_lg_u32 s{sM}, 31
        s_cbranch_scc1 L_nowb
        s_cmp_lg_u32 s{sWAVE}, 7
        s_cbranch_scc1 L_nowb
        buffer_wbl2 sc1
        L_nowb:
        ''')
    if cfg.WDPOS == 'x3':
        A(f'''
        s_cmp_ge_u32 s{sM}, {NS3}
        s_cbranch_scc1 L_nowd
        s_lshr_b32 s{sT0}, s{sM}, 2
        s_mul_i32 s{sT1}, s{sG}, 7
        s_add_u32 s{sT0}, s{sT0}, s{sT1}
        s_and_b32 s{sT1}, s{sM}, 3
        s_lshl_b32 s{sT4}, s{sWAVE}, 10
        s_add_u32 s{sT4}, s{sT4}, {L_WGU + 16384}
        s_mov_b32 m0, s{sT4}
        s_lshl_b32 s{sT2}, s{sT0}, 15
        s_lshl_b32 s{sT3}, s{sT1}, 8
        s_add_u32 s{sT2}, s{sT2}, s{sT3}
        v_lshrrev_b32 v{vT2}, 4, v0
        v_lshlrev_b32 v{vT2}, 10, v{vT2}
        v_and_b32 v{vT3}, 15, v0
        v_lshl_add_u32 v{vT2}, v{vT3}, 4, v{vT2}
        v_add_u32 v{vT2}, s{sT2}, v{vT2}
        global_load_lds_dwordx4 v{vT2}, {P(sWD)}
        L_nowd:
        ''')
    A(f'''
    s_lshr_b32 s{sT2}, s{sM}, 2
    s_lshl_b32 s{sT2}, s{sT2}, 5
    s_lshl_b32 s{sT3}, s{sG}, 2
    s_add_u32 s{sT2}, s{sT2}, s{sT3}
    s_and_b32 s{sT3}, s{sM}, 3
    s_add_u32 s{sT2}, s{sT2}, s{sT3}
    s_mul_i32 s{sPT}, s{sT2}, {NPROD*64}
    s_add_u32 s{sPT}, s{sPT}, {PART}
    v_lshrrev_b32 v{vT1}, 3, v{vLANE}
    s_lshl_b32 s{sT0}, s{sWID}, 7
    s_add_u32 s{sT0}, s{sT0}, {XC}
    v_lshl_add_u32 v{vT1}, v{vT1}, 4, s{sT0}
    v_add_u32 v{vT0}, {X3}, v{vXL}
    ''')
    vR3 = 92
    vX3A = 99
    vWf = 130
    vM2, vM1 = 163, 162
    vGL2, vUW, vUR, vHC, vKA = 151, 152, 153, 246, 247
    A(f'v_mov_b32 v{vX3A}, v{vT0}')
    A(f'v_mov_b32 v{vU+2}, v{vT1}')
    A(f'global_load_dwordx4 {q4(vU+4)}, v{vT1}, {P(sWS)} sc1')
    vGA_, vGS, vGL, vPS, vGW_, vGR_ = 142, 143, 144, 145, 146, 147
    vGA2, vGR2, vSLT = 148, 149, 150
    vG = 166
    A(f'''
    s_and_b32 s{sT1}, s{sM}, 3
    s_lshl_b32 s{sT2}, s{sT1}, 9
    s_add_u32 s{sT2}, s{sT2}, {H2R}
    v_and_b32 v{vGA_}, 31, v0
    v_lshl_add_u32 v{vGA_}, v{vGA_}, 4, s{sT2}
    v_bfe_u32 v{vGA2}, v0, 5, 3
    v_lshlrev_b32 v{vGA2}, 2, v{vGA2}
    ''')
    vOR = 240
    vHA = 98
    A(f'''
    v_and_b32 v{vOR}, 7, v0
    v_lshl_add_u32 v{vOR}, s{sWAVE}, 3, v{vOR}
    s_lshl_b32 s{sT0}, s{sM}, 6
    v_add_u32 v{vOR}, s{sT0}, v{vOR}
    v_lshrrev_b32 v{vT2}, 3, v{vLANE}
    s_lshl_b32 s{sT1}, s{sG}, 8
    s_add_u32 s{sT1}, s{sT1}, {H2P - 2048}
    v_lshl_add_u32 v{vHA}, v{vT2}, 4, s{sT1}
    v_lshl_add_u32 v{vHC}, v{vOR}, 11, v{vHA}
    v_add_u32 v{vHC}, {H2R - H2P + 2048}, v{vHC}
    v_and_b32 v{vT0}, 2, v0
    v_cmp_eq_u32 vcc, 0, v{vT0}
    v_cndmask_b32 v{vM2}, 0, -1, vcc
    v_and_b32 v{vT0}, 1, v0
    v_cmp_eq_u32 vcc, 0, v{vT0}
    v_cndmask_b32 v{vM1}, 0, -1, vcc
    s_lshl_b32 s{sT0}, s{sG}, 11
    s_add_u32 s{sT0}, s{sT0}, {KEYS}
    v_lshl_add_u32 v{vKA}, v{vLANE}, 3, s{sT0}
    ''')
    GS_ = 272
    A(f'''
    s_lshr_b32 s{sT0}, s{sM}, 2
    s_mul_i32 s{sT1}, s{sG}, 7
    s_add_u32 s{sT0}, s{sT0}, s{sT1}
    s_and_b32 s{sT1}, s{sM}, 3
    v_lshrrev_b32 v{vT1}, 4, v{vLANE}
    v_and_b32 v{vT2}, 7, v0
    v_lshrrev_b32 v{vT3}, 5, v{vLANE}
    s_mov_b32 s{sHM}, 0x00ff00ff
    s_mov_b32 s{sHM+1}, 0x00ff00ff
    s_and_b32 s{sT3}, s{sWAVE}, 3
    v_lshl_add_u32 v{vT3}, s{sT3}, 1, v{vT3}
    v_mul_u32_u24 v{vGW_}, {GS_}, v{vT3}
    v_bfe_u32 v{vT3}, v0, 4, 1
    v_lshl_add_u32 v{vGW_}, v{vT3}, 7, v{vGW_}
    v_lshl_add_u32 v{vGW_}, v{vT2}, 4, v{vGW_}
    v_bfe_u32 v{vT3}, v0, 3, 1
    v_lshl_add_u32 v{vGW_}, v{vT3}, 3, v{vGW_}
    v_add_u32 v{vGW_}, {L_G2 - (L_G2 % 1024)}, v{vGW_}
    v_mul_u32_u24 v{vGR_}, {GS_}, v{vT2}
    v_lshl_add_u32 v{vGR_}, v{vT1}, 4, v{vGR_}
    s_lshr_b32 s{sT3}, s{sWAVE}, 2
    s_lshl_b32 s{sT3}, s{sT3}, 7
    v_add_u32 v{vGR_}, s{sT3}, v{vGR_}
    ''')
    A(f'''
    s_mov_b64 exec, -1
    s_and_b32 s{sT2}, s{sWID}, 0xfc
    s_lshl_b32 s{sT2}, s{sT2}, 13
    s_add_u32 s{sT2}, s{sT2}, {XB1}
    s_lshl_b32 s{sT3}, s{sT1}, 3
    s_add_u32 s{sT3}, s{sT3}, s{sWAVE}
    s_lshl_b32 s{sT4}, s{sT1}, 13
    s_lshl_b32 s{sT5}, s{sWAVE}, {10 if cfg.GXE else 9}
    s_add_u32 s{sT4}, s{sT4}, s{sT5}
    s_add_u32 s{sT4}, s{sT4}, s{sT2}
    v_lshl_add_u32 v{vGS}, v{vT1}, 3, v{vT2}
    v_lshl_add_u32 v{vGS}, v{vGS}, 4, s{sT4}
    s_mul_i32 s{sT3}, s{sT3}, {NPROD*64}
    s_lshl_b32 s{sT4}, s{sT0}, 6
    s_add_u32 s{sT3}, s{sT3}, s{sT4}
    s_add_u32 s{sT3}, s{sT3}, {PART}
    v_mul_u32_u24 v{vPS}, {32*NPROD*64}, v{vT2}
    v_lshl_add_u32 v{vPS}, v{vT1}, 4, v{vPS}
    v_add_u32 v{vPS}, s{sT3}, v{vPS}
    s_lshr_b32 s{sT3}, s{sWAVE}, 2
    s_lshl_b32 s{sT3}, s{sT3}, {10 if cfg.GXE else 9}
    s_and_b32 s{sT4}, s{sWAVE}, 3
    s_lshl_b32 s{sT4}, s{sT4}, 7
    s_add_u32 s{sT3}, s{sT3}, s{sT4}
    s_add_u32 s{sT3}, s{sT3}, s{sT2}
    v_lshlrev_b32 v{vGL}, 13, v{vT1}
    v_bfe_u32 v{vT3}, v0, 3, 1
    v_lshl_add_u32 v{vGL}, v{vT3}, {11 if cfg.GXE else 10}, v{vGL}
    v_lshl_add_u32 v{vGL}, v{vT2}, 4, v{vGL}
    v_add_u32 v{vGL}, s{sT3}, v{vGL}
    v_add_u32 v{vGL2}, 4096, v{vGL}
    v_and_b32 v{vT0}, 3, v0
    v_bfe_u32 v{vT2}, v0, 2, 2
    v_lshl_add_u32 v{vT2}, v{vT1}, 3, v{vT2}
    v_lshlrev_b32 v{vT3}, 6, v{vT2}
    v_lshl_add_u32 v{vT3}, v{vT0}, 3, v{vT3}
    s_lshr_b32 s{sT0}, s{sWAVE}, 2
    s_lshl_b32 s{sT0}, s{sT0}, 12
    s_bfe_u32 s{sT1}, s{sWAVE}, 0x10001
    s_lshl_b32 s{sT1}, s{sT1}, 13
    s_add_u32 s{sT0}, s{sT0}, s{sT1}
    s_and_b32 s{sT1}, s{sWAVE}, 1
    s_lshl_b32 s{sT1}, s{sT1}, 5
    s_add_u32 s{sT0}, s{sT0}, s{sT1}
    s_add_u32 s{sT0}, s{sT0}, {L_WGU}
    v_add_u32 v{vT3}, s{sT0}, v{vT3}
    ''')
    for ks_ in range(2):
        for hh in range(2):
            A(f'ds_read_b64_tr_b16 {pr(vWf + 4*ks_ + 2*hh)}, v{vT3} offset:{2048*ks_ + 256*hh}')
    A(f'''
    v_lshlrev_b32 v{vT3}, 8, v{vT2}
    v_lshl_add_u32 v{vT3}, v{vT0}, 3, v{vT3}
    s_lshl_b32 s{sT0}, s{sWAVE}, 5
    s_add_u32 s{sT0}, s{sT0}, {L_WGU + 16384}
    v_add_u32 v{vT3}, s{sT0}, v{vT3}
    ds_read_b64_tr_b16 {pr(vWf + 8)}, v{vT3}
    ds_read_b64_tr_b16 {pr(vWf + 10)}, v{vT3} offset:1024
    v_and_b32 v{vT0}, 7, v0
    v_lshrrev_b32 v{vT1}, 5, v{vLANE}
    v_bfe_u32 v{vT2}, v0, 4, 1
    v_lshl_add_u32 v{vT1}, v{vT1}, 1, v{vT2}
    v_lshl_add_u32 v{vT1}, s{sWAVE}, 2, v{vT1}
    v_lshlrev_b32 v{vT1}, 1, v{vT1}
    v_lshl_add_u32 v{vUW}, v{vT0}, 6, v{vT1}
    v_lshrrev_b32 v{vT2}, 4, v{vLANE}
    v_lshlrev_b32 v{vT2}, 4, v{vT2}
    v_lshl_add_u32 v{vUR}, v{vT0}, 6, v{vT2}
    ''')
    A(f'global_load_dwordx4 {q4(vR3)}, v{vX3A}, {P(sWS)} sc1')
    xck = f'''v_xor_b32 v{vT2}, s{sTAG}, v{vU+5}
     v_xor_b32 v{vT3}, s{sTAG}, v{vU+7}
     v_or_b32 v{vT2}, v{vT2}, v{vT3}
     v_cmp_ne_u32 vcc, 0, v{vT2}'''
    A('s_waitcnt vmcnt(1)')
    A(xck)
    A('s_cbranch_vccnz L_pollc')
    A('L_pollc_back:')
    late.append(('L_pollc', lambda: (poll('L_pollcb', f'global_load_dwordx4 {q4(vU+4)}, v{vU+2}, {P(sWS)} sc1', xck), A('s_branch L_pollc_back'))))
    stamp('xcok')
    allred([vU + 4, vU + 6], [S_, Q_])
    A(f'''
    v_and_b32 v{vT1}, 7, v0
    v_lshl_add_u32 v{vT1}, s{sWAVE}, 3, v{vT1}
    s_lshl_b32 s{sT0}, s{sM}, 6
    s_sub_u32 s{sT0}, 2047, s{sT0}
    v_sub_u32 v{vU}, s{sT0}, v{vT1}
    v_lshlrev_b32 v{vU+1}, 2, v{vT1}
    v_mov_b32 v{vT2}, 0
    ds_write_b32 v{vU+1}, v{vT2} offset:{L_ST}
    s_waitcnt vmcnt(0)
    v_cmp_ne_u32 vcc, s{sTAG}, v{vR3+3}
    s_cbranch_vccnz L_poll3
    L_poll3_back:
    ''')
    late.append(('L_poll3', lambda: (poll('L_poll3b', f'global_load_dwordx4 {q4(vR3)}, v{vX3A}, {P(sWS)} sc1', f'v_cmp_ne_u32 vcc, s{sTAG}, v{vR3+3}'),
                 A('s_nop 1'), A('s_branch L_poll3_back'))))
    stamp('x3ok')
    allred([vR3, vR3 + 1, vR3 + 2], [S_, Q_, P_])
    lnstats(vR3, vR3 + 1, S_, vMn, vInv)
    vKey = 96
    A(f'''
    v_fma_f32 v{vKey}, -v{vMn}, v{vU+4}, v{vR3+2}
    v_fma_f32 v{vKey}, v{vKey}, v{vInv}, v{vU+6}
    v_cvt_pk_bf16_f32 v{vKey}, 0, v{vKey}
    v_ashrrev_i32 v{vT0}, 31, v{vKey}
    v_or_b32 v{vT0}, 0x80000000, v{vT0}
    v_and_b32 v{vT0}, s{sMASK}, v{vT0}
    v_xor_b32 v{vKey}, v{vKey}, v{vT0}
    v_or_b32 v{vKey}, v{vKey}, v{vU}
    ds_write_b32 v{vU+1}, v{vKey} offset:{L_KEY}
    s_waitcnt lgkmcnt(0)
    s_barrier
    ds_read_b128 {q4(vR3)}, v{vPA} offset:{L_KEY}
    ds_read_b128 {q4(vSQ)}, v{vPA} offset:{L_KEY+16}
    ''')
    vH2 = 56
    for i in range(8): A(f'v_sub_f32 v{vH2+i}, v{vZ1+i}, v{vMn}')
    for i in range(8): rnd(vH2 + i)
    A('s_waitcnt lgkmcnt(0)')
    vRk = 97
    A(f'v_mov_b32 v{vRk}, 0')
    ks = [vR3 + i for i in range(4)] + [vSQ + i for i in range(4)]
    for half in range(2):
        for i in range(4): A(f'v_cmp_gt_u32 {P(sC0+2*i)}, v{ks[4*half+i]}, v{vKey}')
        for i in range(4): A(f'v_addc_co_u32 v{vRk}, {P(sC0+2*i)}, 0, v{vRk}, {P(sC0+2*i)}')
    allred([vRk], [vT0], add='v_add_u32')
    A(f'''
    s_lshl_b32 s{sT0}, s{sWID}, 6
    s_add_u32 s{sT0}, s{sT0}, {KEYS}
    v_lshl_add_u32 v{vT0}, v{vRk}, 3, s{sT0}
    v_mov_b32 v{vR3}, v{vKey}
    v_mov_b32 v{vR3+1}, s{sTAG}
    v_cmp_gt_u32 {P(sEX)}, 8, v{vRk}
    s_and_b64 exec, {P(sEX)}, 0xff
    s_cbranch_execz L_nokey
    ''')
    lstore(f'global_store_dwordx2 v{vT0}, {pr(vR3)}, {P(sWS)}')
    A('L_nokey:')
    A('s_mov_b64 exec, -1')
    stamp('keyst')
    vKs = 154
    vRow = vKs + 2
    vPk = 110
    vOut = 126
    def h2calc():
        for i in range(8): A(f'v_mul_f32 v{vH2+i}, v{vH2+i}, v{vInv}')
        for i in range(8): rnd(vH2 + i)
        for i in range(8): A(f'v_mul_f32 v{vH2+i}, v{vH2+i}, v{vPar+32+i}')
        for i in range(8): rnd(vH2 + i)
        for i in range(8): A(f'v_add_f32 v{vH2+i}, v{vH2+i}, v{vPar+24+i}')
        for i in range(4):
            A(f'v_cvt_pk_bf16_f32 v{vPk+2*i}, v{vH2+2*i}, v{vH2+2*i+1}')
            A(f'v_mov_b32 v{vPk+2*i+1}, s{sTAG}')
        for i in range(4):
            A(f'v_cvt_pk_bf16_f32 v{vPk+8+2*i}, v{vZ1+2*i}, v{vZ1+2*i+1}')
            A(f'v_mov_b32 v{vPk+8+2*i+1}, s{sTAG}')
    def outcalc():
        for i in range(4): unpack(vH2 + 2*i, vPk + 2*i)
        for i in range(8): A(f'v_mul_f32 v{vH2+i}, v{vH2+i}, v{vPar+40+i}')
        for i in range(8): rnd(vH2 + i)
        for i in range(8): A(f'v_add_f32 v{vH2+i}, v{vH2+i}, v{vZ1+i}')
        for i in range(4): A(f'v_cvt_pk_bf16_f32 v{vOut+i}, v{vH2+2*i}, v{vH2+2*i+1}')
    def outstore():
        A(f'''
        s_andn2_b64 exec, exec, {P(sEX)}
        s_cbranch_execz L_noout3
        global_store_dwordx4 v{vJR}, {q4(vOut)}, {P(sOUT)} {cfg.OUT_FL}
        L_noout2:
        s_mov_b64 exec, -1
        ''')
    late.append(('L_noout3', lambda: (A('s_waitcnt vmcnt(0)'), A('s_branch L_noout2'))))
    h2calc()
    A(f'''
    s_mov_b64 exec, {P(sEX)}
    s_cbranch_execz L_noh2c
    global_store_dwordx4 v{vHC}, {q4(vPk)}, {P(sWS)} sc1
    global_store_dwordx4 v{vHC}, {q4(vPk+4)}, {P(sWS)} offset:128 sc1
    L_noh2c:
    s_mov_b64 exec, -1
    s_cmp_lg_u32 s{sWAVE}, 0
    s_cbranch_scc1 L_kskip
    ''')
    poll('L_pollk', '\n'.join(f'global_load_dwordx2 {pr(vKs+2*r)}, v{vKA}, {P(sWS)} offset:{512*r} sc1' for r in range(4)),
         f'''v_xor_b32 v{vT1}, s{sTAG}, v{vKs+1}
         v_xor_b32 v{vT2}, s{sTAG}, v{vKs+3}
         v_xor_b32 v{vT3}, s{sTAG}, v{vKs+5}
         v_or3_b32 v{vT1}, v{vT1}, v{vT2}, v{vT3}
         v_xor_b32 v{vT2}, s{sTAG}, v{vKs+7}
         v_or_b32 v{vT1}, v{vT1}, v{vT2}
         v_cmp_ne_u32 vcc, 0, v{vT1}''')
    stamp('keysok')
    def sort8(regs, tmps):
        for x, t in zip(regs, tmps): A(f'v_max_u32_dpp v{t}, v{x}, v{x} row_shl:4 row_mask:0xf bank_mask:0x5')
        for x, t in zip(regs, tmps): A(f'v_min_u32_dpp v{t}, v{x}, v{x} row_shr:4 row_mask:0xf bank_mask:0xa')
        for x, t in zip(regs, tmps): A(f'v_mov_b32_dpp v{x}, v{t} quad_perm:[2,3,0,1] {DPPM}')
        for x, t in zip(regs, tmps): A(f'v_med3_u32 v{t}, v{t}, v{x}, v{vM2}')
        for x, t in zip(regs, tmps): A(f'v_mov_b32_dpp v{x}, v{t} quad_perm:[1,0,3,2] {DPPM}')
        for x, t in zip(regs, tmps): A(f'v_med3_u32 v{x}, v{t}, v{x}, v{vM1}')
    k0, k1, k2, k3 = vKs, vKs + 2, vKs + 4, vKs + 6
    t0, t1 = vKs + 1, vKs + 3
    A(f'v_max_u32_dpp v{k0}, v{k1}, v{k0} row_half_mirror {DPPM}')
    A(f'v_max_u32_dpp v{k2}, v{k3}, v{k2} row_half_mirror {DPPM}')
    sort8([k0, k2], [t0, t1])
    A(f'v_max_u32_dpp v{k0}, v{k2}, v{k0} row_half_mirror {DPPM}')
    sort8([k0], [t0])
    A(f'v_max_u32_dpp v{k0}, v{k0}, v{k0} row_mirror {DPPM}')
    sort8([k0], [t0])
    for sw in ('v_permlane16_swap_b32', 'v_permlane32_swap_b32'):
        A(f'v_mov_b32 v{t1}, v{k0}')
        A(f'{sw} v{t1}, v{k0}')
        A(f'v_max_u32_dpp v{k0}, v{k0}, v{t1} row_half_mirror {DPPM}')
        sort8([k0], [t0])
    A(f'''
    v_and_b32 v{vRow}, 0x7ff, v{k0}
    v_sub_u32 v{vRow}, 2047, v{vRow}
    v_lshlrev_b32 v{vT2}, 2, v{vLANE}
    ds_write_b32 v{vT2}, v{vRow} offset:{L_GP}
    s_lshl_b32 s{sT0}, s{sM}, 6
    v_subrev_u32 v{vT1}, s{sT0}, v{vRow}
    v_add_u32 v{vT3}, 1, v{vLANE}
    v_cmp_gt_u32 vcc, 64, v{vT1}
    v_lshlrev_b32 v{vT1}, 2, v{vT1}
    s_and_b64 exec, vcc, 0xff
    ds_write_b32 v{vT1}, v{vT3} offset:{L_ST}
    s_mov_b64 exec, -1
    s_waitcnt lgkmcnt(0)
    s_branch L_kjoin
    L_kskip:
    ''')
    outcalc()
    A(f'''
    L_kjoin:
    s_barrier
    ds_read_b32 v{vGR2}, v{vGA2} offset:{L_GP}
    ds_read_b32 v{vSLT}, v{vU+1} offset:{L_ST}
    s_cmp_ge_u32 s{sM}, {NS3}
    s_cbranch_scc1 L_nog1
    s_cmp_ge_u32 s{sWAVE}, 4
    s_cbranch_scc1 L_nog1
    s_waitcnt lgkmcnt(1)
    v_lshl_add_u32 v{vGA_}, v{vGR2}, 11, v{vGA_}
    global_load_dwordx4 {q4(vG)}, v{vGA_}, {P(sWS)} sc1
    L_nog1:
    ''')
    stamp('top8')
    def x1out():
        A(f'''
        s_waitcnt lgkmcnt(0)
        v_cmp_ne_u32 {P(sEX)}, 0, v{vSLT}
        v_lshl_add_u32 v{vT0}, v{vSLT}, 11, v{vHA}
        v_add_u32 v{vT0}, {X1P - H2P}, v{vT0}
        s_mov_b64 exec, {P(sEX)}
        s_cbranch_execz L_noh2
        global_store_dwordx4 v{vT0}, {q4(vPk+8)}, {P(sWS)} sc1
        global_store_dwordx4 v{vT0}, {q4(vPk+12)}, {P(sWS)} offset:128 sc1
        L_noh2:
        s_mov_b64 exec, -1
        s_cmp_lg_u32 s{sWAVE}, 0
        s_cbranch_scc1 L_noc
        ''')
        outcalc()
        A('L_noc:')
        outstore()
    if cfg.OUTPOS == 'top8': x1out()
    A(f'''
    s_cmp_ge_u32 s{sM}, {NS3}
    s_cbranch_scc1 L_tail
    ''')
    A(f'''
    s_mov_b64 {P(sC0+4)}, -1
    s_mov_b64 {P(sC0+6)}, -1
    s_mov_b32 s{sT2}, 0x03020105
    s_mov_b32 s{sT3}, 0x03020106
    s_mov_b32 s{sT4}, 0x03020107
    s_mov_b32 s{sT0}, 0x0004000c
    s_mov_b32 s{sT1}, 0x0402010c
    s_mov_b64 {P(sC0)}, -1
    s_mov_b64 {P(sC0+2)}, -1
    ''')
    vDg = 182
    A(f'''
    s_cmp_ge_u32 s{sWAVE}, 4
    s_cbranch_scc1 L_gskip
    ''')
    gck = f'''v_xor_b32 v{vG+1}, s{sTAG}, v{vG+1}
         v_xor_b32 v{vG+3}, s{sTAG}, v{vG+3}
         v_or_b32 v{vG+1}, v{vG+1}, v{vG+3}
         v_cmp_ne_u32 vcc, 0, v{vG+1}'''
    A('s_waitcnt vmcnt(0)' if cfg.OUTPOS == 'end' else 's_waitcnt vmcnt(1)')
    A(gck)
    A('s_cbranch_vccnz L_pollg')
    A('L_pollg_back:')
    late.append(('L_pollg', lambda: (poll('L_pollgb', f'global_load_dwordx4 {q4(vG)}, v{vGA_}, {P(sWS)} sc1', gck), A('s_branch L_pollg_back'))))
    A(f'''
    ds_write2_b32 v{vGW_}, v{vG}, v{vG+2} offset0:{(L_G2 % 1024)//4} offset1:{(L_G2 % 1024)//4 + 1}
    L_gskip:
    s_waitcnt lgkmcnt(0)
    ''')
    stamp('gath')
    A(f'''
    s_barrier
    ds_read_b128 {q4(vG)}, v{vGR_} offset:{L_G2}
    ds_read_b128 {q4(vG+8)}, v{vGR_} offset:{L_G2 + 64}
    s_waitcnt lgkmcnt(1)
    v_mfma_f32_16x16x32_bf16 {q4(vDg)}, {q4(vWf)}, {q4(vG)}, 0
    s_waitcnt lgkmcnt(0)
    v_mfma_f32_16x16x32_bf16 {q4(vDg)}, {q4(vWf+4)}, {q4(vG+8)}, {q4(vDg)}
    ''')
    def pack24(y):
        for d in range(3): A(f'v_perm_b32 v{y+d}, v{y+3}, v{y+d}, s{sT2+d}')
        A(f'v_mov_b32 v{y+3}, s{sTAG}')
    vE = 166
    def unp24(us, a, b):
        for u in us: A(f'v_perm_b32 v{u+3}, v{u+1}, v{u}, s{a}')
        for u in us: A(f'v_perm_b32 v{u+3}, v{u+2}, v{u+3}, s{b}')
    y = vE
    if cfg.GXE:
        A(f'''
        v_mov_b32 v{vDg+7}, s{sTAG}
        v_mov_b32 v{vDg+4}, v{vDg+2}
        v_mov_b32 v{vDg+5}, v{vDg+3}
        v_mov_b32 v{vDg+3}, s{sTAG}
        s_mov_b64 exec, {P(sHM)}
        ''')
        lstore(f'''global_store_dwordx4 v{vGS}, {q4(vDg)}, {P(sWS)}
        global_store_dwordx4 v{vGS}, {q4(vDg+4)}, {P(sWS)} offset:512''')
        stamp('preB6')
        mpoll('L_pollx', [(f'global_load_dwordx4 {q4(vE+4*i)}, v{vGL if i < 2 else vGL2}, {P(sWS)} offset:{512*(i&1)} sc1', vE + 4*i + 3, sC0 + 2*i) for i in range(4)])
        stamp('B6')
        A(f'''
        v_pk_add_f32 {pr(y)}, {pr(y)}, {pr(y+8)}
        v_pk_add_f32 {pr(y+2)}, {pr(y+4)}, {pr(y+12)}
        ''')
    else:
        pack24(vDg)
        A(f's_mov_b64 exec, {P(sHM)}')
        lstore(f'global_store_dwordx4 v{vGS}, {q4(vDg)}, {P(sWS)}')
        stamp('preB6')
        mpoll('L_pollx', [(f'global_load_dwordx4 {q4(vE)}, v{vGL}, {P(sWS)} sc1', vE + 3, sC0),
                          (f'global_load_dwordx4 {q4(vE+4)}, v{vGL}, {P(sWS)} offset:2048 sc1', vE + 7, sC0 + 2)])
        stamp('B6')
        unp24([vE, vE + 4], sT0, sT1)
        A(f'''
        v_pk_add_f32 {pr(y)}, {pr(y)}, {pr(y+4)}
        v_pk_add_f32 {pr(y+2)}, {pr(y+2)}, {pr(y+6)}
        ''')
    A(f'''
    v_permlane32_swap_b32 v{y}, v{y+2}
    v_permlane32_swap_b32 v{y+1}, v{y+3}
    v_add_f32 v{y}, v{y}, v{y+2}
    v_add_f32 v{y+1}, v{y+1}, v{y+3}
    v_permlane16_swap_b32 v{y}, v{y+1}
    v_add_f32 v{y}, v{y}, v{y+1}
    v_cvt_pk_bf16_f32 v{y}, 0, v{y}
    v_mul_f32 v{y+2}, 0xbfb8aa3b, v{y}
    v_exp_f32 v{y+2}, v{y+2}
    v_mov_b32_dpp v{y+1}, v{y} row_ror:8 {DPPM}
    v_add_f32 v{y+2}, 1.0, v{y+2}
    v_rcp_f32 v{y+2}, v{y+2}
    v_mul_f32 v{y}, v{y}, v{y+2}
    v_cvt_pk_bf16_f32 v{y}, 0, v{y}
    v_mul_f32 v{y}, v{y}, v{y+1}
    v_cvt_pk_bf16_f32 v{y}, v{y}, v{y}
    s_mov_b64 exec, {P(sHM)}
    ds_write_b16 v{vUW}, v{y} offset:{L_GU}
    s_mov_b64 exec, -1
    s_waitcnt lgkmcnt(0)
    s_barrier
    ds_read_b128 {q4(vE)}, v{vUR} offset:{L_GU}
    s_waitcnt lgkmcnt(0)
    v_mfma_f32_16x16x32_bf16 {q4(vDg)}, {q4(vWf+8)}, {q4(vE)}, 0
    ''')
    stamp('B7')
    pack24(vDg)
    A(f's_mov_b64 exec, {P(sHM)}')
    A(f'global_store_dwordx4 v{vPS}, {q4(vDg)}, {P(sWS)} sc1')
    A('s_mov_b64 exec, -1')
    stamp('partst')
    A(f'''
    s_cmp_lg_u32 s{sWID}, 0
    s_cbranch_scc1 L_noep
    s_cmp_lg_u32 s{sWAVE}, 2
    s_cbranch_scc1 L_noep
    s_add_u32 s{sT0}, s{sEP}, 1
    v_mov_b32 v{vT2}, {EPOCH}
    v_mov_b32 v{vT3}, s{sT0}
    s_mov_b64 exec, 1
    global_store_dword v{vT2}, v{vT3}, {P(sWS)} sc1
    s_mov_b64 exec, -1
    L_noep:
    L_tail:
    ''')
    if cfg.OUTPOS == 'end': x1out()
    A(f'''
    s_cmp_lg_u32 s{sM}, {NS3}
    s_cbranch_scc1 L_red
    ''')
    vWr = 130
    vHr = 134
    vHs = 142
    vPu = 166
    vRr = 182
    A(f'''
    v_lshlrev_b32 v{vT1}, 4, v{vLANE}
    global_load_dwordx4 {q4(vWr)}, v{vT1}, {P(sWR)}
    s_lshl_b32 s{sT3}, s{sWAVE}, 2
    v_mov_b32 v{vT0}, s{sT3}
    ds_read_b32 v{vT0}, v{vT0} offset:{L_GP}
    v_lshrrev_b32 v{vT2}, 3, v{vLANE}
    v_and_b32 v{vT3}, 7, v0
    v_lshlrev_b32 v{vT3}, 4, v{vT3}
    v_lshl_add_u32 v{vT3}, v{vT2}, 8, v{vT3}
    v_add_u32 v{vT3}, {H2R}, v{vT3}
    s_waitcnt lgkmcnt(0)
    v_lshl_add_u32 v{vT3}, v{vT0}, 11, v{vT3}
    s_lshl_b32 s{sT0}, s{sG}, 7
    s_lshl_b32 s{sT1}, s{sWAVE}, 3
    s_add_u32 s{sT0}, s{sT0}, s{sT1}
    s_add_u32 s{sT0}, s{sT0}, {SEL}
    v_mov_b32 v{vT0}, s{sT0}
    ''')
    poll('L_pollr', f'''global_load_dwordx4 {q4(vHr)}, v{vT3}, {P(sWS)} sc1
         global_load_dwordx4 {q4(vHr+4)}, v{vT3}, {P(sWS)} offset:128 sc1''',
         f'''v_xor_b32 v{vHr+1}, s{sTAG}, v{vHr+1}
         v_xor_b32 v{vHr+3}, s{sTAG}, v{vHr+3}
         v_xor_b32 v{vHr+5}, s{sTAG}, v{vHr+5}
         v_xor_b32 v{vHr+7}, s{sTAG}, v{vHr+7}
         v_or3_b32 v{vHr+1}, v{vHr+1}, v{vHr+3}, v{vHr+5}
         v_or_b32 v{vHr+1}, v{vHr+1}, v{vHr+7}
         v_cmp_ne_u32 vcc, 0, v{vHr+1}''')
    A(f'v_mov_b32 v{vRr}, 0')
    for i in range(4): A(f'v_dot2_f32_bf16 v{vRr}, v{vHr+2*i}, v{vWr+i}, v{vRr}')
    fullred([vRr], [vRr + 1])
    rnd(vRr)
    A(f'''
    v_mul_f32 v{vRr}, 0xbfb8aa3b, v{vRr}
    v_exp_f32 v{vRr}, v{vRr}
    v_add_f32 v{vRr}, 1.0, v{vRr}
    v_rcp_f32 v{vRr}, v{vRr}
    v_cvt_pk_bf16_f32 v{vRr}, 0, v{vRr}
    v_mov_b32 v{vRr+1}, s{sTAG}
    s_mov_b64 exec, 1
    ''')
    lstore(f'global_store_dwordx2 v{vT0}, {pr(vRr)}, {P(sWS)}')
    A(f'''
    s_mov_b64 exec, -1
    L_red:
    s_cmp_lg_u32 s{sWAVE}, 1
    s_cbranch_scc1 L_outlate
    v_lshl_add_u32 v{vT0}, v{vLANE}, 4, s{sPT}
    v_mov_b32 v{vPu+12}, 0
    v_mov_b32 v{vPu+13}, 0
    v_mov_b32 v{vPu+14}, 0
    v_mov_b32 v{vPu+15}, s{sTAG}
    s_and_b32 s{sT0}, s{sM}, 3
    s_and_b32 s{sT1}, s{sM}, 28
    v_mov_b32 v{vT3}, s{sT1}
    ds_read_b32 v{vOR+4}, v{vT3} offset:{L_GP}
    s_lshl_b32 s{sT3}, s{sT1}, 9
    s_add_u32 s{sT3}, s{sT3}, {H2P}
    s_lshl_b32 s{sT1}, s{sT1}, 1
    s_lshl_b32 s{sT4}, s{sG}, 7
    s_add_u32 s{sT1}, s{sT1}, s{sT4}
    s_add_u32 s{sT1}, s{sT1}, {SEL}
    v_mov_b32 v{vOR+5}, s{sT1}
    v_and_b32 v{vT1}, 3, v0
    v_lshlrev_b32 v{vT1}, 2, v{vT1}
    v_lshrrev_b32 v{vT2}, 5, v{vLANE}
    v_lshl_add_u32 v{vT1}, v{vT2}, 1, v{vT1}
    v_bfe_u32 v{vT2}, v0, 4, 1
    s_lshl_b32 s{sT4}, s{sT0}, 4
    v_add_u32 v{vT1}, s{sT4}, v{vT1}
    v_add_u32 v{vT3}, v{vT1}, v{vT2}
    v_lshlrev_b32 v{vOR}, 2, v{vT3}
    ds_read_b32 v{vOR+1}, v{vOR} offset:{L_MOD + 5*256}
    v_lshrrev_b32 v{vOR}, 3, v{vT1}
    v_lshlrev_b32 v{vOR}, 4, v{vOR}
    v_bfe_u32 v{vOR+2}, v{vT1}, 2, 1
    v_lshl_add_u32 v{vOR}, v{vOR+2}, 7, v{vOR}
    v_bfe_u32 v{vOR+2}, v{vT1}, 1, 1
    v_lshl_add_u32 v{vOR}, v{vOR+2}, 3, v{vOR}
    s_lshl_b32 s{sT5}, s{sG}, 8
    s_add_u32 s{sT5}, s{sT5}, s{sT3}
    v_add_u32 v{vT1}, s{sT5}, v{vOR}
    v_add_u32 v{vOR+2}, {X1P - H2P}, v{vT1}
    s_lshl_b32 s{sT5}, s{sG}, 8
    s_add_u32 s{sT5}, s{sT5}, {H2R}
    v_add_u32 v{vT1}, s{sT5}, v{vOR}
    s_lshl_b32 s{sT4}, s{sG}, 7
    v_lshl_add_u32 v{vOR+3}, v{vT3}, 1, s{sT4}
    v_lshlrev_b32 v{vT2}, 4, v{vT2}
    v_sub_u32 v{vT2}, 16, v{vT2}
    s_mov_b32 s{sT2}, 0x0004000c
    s_mov_b32 s{sT3}, 0x0402010c
    s_waitcnt lgkmcnt(0)
    v_lshl_add_u32 v{vOR+3}, v{vOR+4}, 10, v{vOR+3}
    v_lshl_add_u32 v{vT1}, v{vOR+4}, 11, v{vT1}
    ''')
    poll('L_polls', f'''global_load_dwordx2 {pr(vHs)}, v{vT1}, {P(sWS)} sc1
         global_load_dwordx2 {pr(vHs+2)}, v{vOR+2}, {P(sWS)} sc1
         global_load_dwordx2 {pr(vRr)}, v{vOR+5}, {P(sWS)} sc1''',
         f'''v_xor_b32 v{vHs+1}, s{sTAG}, v{vHs+1}
         v_xor_b32 v{vHs+3}, s{sTAG}, v{vHs+3}
         v_xor_b32 v{vRr+1}, s{sTAG}, v{vRr+1}
         v_or3_b32 v{vHs+1}, v{vHs+1}, v{vHs+3}, v{vRr+1}
         v_cmp_ne_u32 vcc, 0, v{vHs+1}''')
    A(f'''
    v_lshlrev_b32 v{vHs}, v{vT2}, v{vHs}
    v_and_b32 v{vHs}, s{sMASK}, v{vHs}
    v_lshlrev_b32 v{vHs+2}, v{vT2}, v{vHs+2}
    v_and_b32 v{vHs+2}, s{sMASK}, v{vHs+2}
    ''')
    stamp('redpre')
    if cfg.REDSLP: A(f's_sleep {cfg.REDSLP}')
    for i in range(3): A(f's_mov_b64 {P(sC0+2*i)}, -1')
    A(f's_mov_b32 s{sC0+6}, -1'); A(f's_mov_b32 s{sC0+7}, 0')
    mpoll('L_pollp', [(f'global_load_dwordx4 {q4(vPu+4*i)}, v{vT0}, {P(sWS)} offset:{1024*i} sc1', vPu + 4*i + 3, sC0 + 2*i) for i in range(4)])
    stamp('partok')
    unp24([vPu + 4*i for i in range(4)], sT2, sT3)
    for (a, b) in ((0, 1), (2, 3), (0, 2)):
        for h in range(2): A(f'v_pk_add_f32 {pr(vPu+4*a+2*h)}, {pr(vPu+4*a+2*h)}, {pr(vPu+4*b+2*h)}')
    y = vPu
    A(f'''
    v_permlane32_swap_b32 v{y}, v{y+2}
    v_permlane32_swap_b32 v{y+1}, v{y+3}
    v_add_f32 v{y}, v{y}, v{y+2}
    v_add_f32 v{y+1}, v{y+1}, v{y+3}
    v_permlane16_swap_b32 v{y}, v{y+1}
    v_add_f32 v{y}, v{y}, v{y+1}
    v_add_f32_dpp v{y}, v{y}, v{y} row_ror:8 {DPPM}
    v_add_f32_dpp v{y}, v{y}, v{y} row_ror:4 {DPPM}
    v_cvt_pk_bf16_f32 v{y}, 0, v{y}
    v_mul_f32 v{y}, v{y}, v{vRr}
    v_cvt_pk_bf16_f32 v{y}, 0, v{y}
    v_add_f32 v{y}, v{y}, v{vHs}
    v_cvt_pk_bf16_f32 v{y}, 0, v{y}
    v_mul_f32 v{y}, v{y}, v{vOR+1}
    v_cvt_pk_bf16_f32 v{y}, 0, v{y}
    v_add_f32 v{y}, v{y}, v{vHs+2}
    v_cvt_pk_bf16_f32 v{y}, v{y}, v{y}
    s_mov_b32 s{sT0}, 0x000f000f
    s_mov_b32 s{sT1}, 0x000f000f
    s_mov_b64 exec, {P(sT0)}
    global_store_short v{vOR+3}, v{y}, {P(sOUT)} {cfg.OUT_FL}
    s_mov_b64 exec, -1
    ''')
    A('L_outlate:')
    A('L_fin:')
    if cfg.DBL:
        A(f'''
        s_waitcnt vmcnt(0)
        s_memrealtime s[78:79]
        s_waitcnt lgkmcnt(0)
        s_sub_u32 s{sT0}, s{82 if cfg.DSITE else 78}, s74
        s_add_u32 s{sT0}, s{sT0}, s78
        s_cmp_lg_u32 s{sWAVE}, 1
        s_cbranch_scc1 L_end
        L_dbl:
        s_memrealtime s[80:81]
        s_waitcnt lgkmcnt(0)
        s_sub_u32 s{sT1}, s80, s{sT0}
        s_cmp_lt_i32 s{sT1}, 0
        s_cbranch_scc1 L_dbl
        ''')
    if cfg.DBGT:
        A(f'''
        s_memrealtime s[78:79]
        s_memtime s[80:81]
        s_cmp_lg_u32 s{sWAVE}, 0
        s_cbranch_scc1 L_end
        s_and_b32 s{sT0}, s{sWID}, 0x3f
        s_cmp_lg_u32 s{sT0}, 28
        s_cbranch_scc1 L_end
        s_waitcnt lgkmcnt(0)
        s_sub_u32 s{sT0}, s78, s74
        s_sub_u32 s{sT1}, s80, s76
        v_mov_b32 v4, s{sT0}
        v_mov_b32 v5, s{sT1}
        v_mov_b32 v6, s74
        v_mov_b32 v7, s78
        s_lshr_b32 s{sT0}, s{sWID}, 6
        s_lshl_b32 s{sT0}, s{sT0}, 4
        v_mov_b32 v8, s{sT0}
        s_mov_b64 exec, 1
        global_store_dwordx4 v8, v[4:7], {P(sDBG)}
        ''')
    if cfg.STAMP:
        A(f's_memtime s[{sST+2*nst[0]}:{sST+2*nst[0]+1}]'); nst[0] += 1
        if cfg.RTEND:
            A('s_waitcnt vmcnt(0)' if cfg.RTEND == 2 else 's_nop 0')
            A(f's_memrealtime s[{sST+2*nst[0]}:{sST+2*nst[0]+1}]'); nst[0] += 1
        A(f'''
        s_waitcnt lgkmcnt(0)
        s_lshl_b32 s{sT0}, s{sWID}, 3
        s_add_u32 s{sT0}, s{sT0}, s{sWAVE}
        s_lshl_b32 s{sT0}, s{sT0}, 7
        s_add_u32 s{sT0}, s{sT0}, {STAMPS}
        v_mov_b32 v{vT0}, s{sT0}
        s_mov_b64 exec, 1
        ''')
        for i in range(nst[0]):
            A(f'v_mov_b32 v{vT1}, s{sST+2*i}')
            A(f'global_store_dword v{vT0}, v{vT1}, {P(sWS)} offset:{4*i}')
        A(f'v_mov_b32 v{vT1}, s{sCNT}')
        A(f'global_store_dword v{vT0}, v{vT1}, {P(sWS)} offset:120')
        A(f'v_mov_b32 v{vT1}, s{sMODE}')
        A(f'global_store_dword v{vT0}, v{vT1}, {P(sWS)} offset:124')
    A('L_end:')
    A('s_endpgm')
    for k, t in slow:
        A(f'L_slow{k}:'); A('s_nop 4'); A(t); A('s_nop 1'); A(f's_branch L_back{k}')
    A('L_modeslow:')
    A(f'''
    s_mov_b32 s3, 64
    L_moderetry:
    global_load_dword v{vMT}, v{vPT}, {P(sWS)} sc1
    s_waitcnt vmcnt(0)
    s_mov_b32 s{sMODE}, {0 if cfg.FORCE_SLOW else 1}
    v_cmp_ne_u32 vcc, s{sXCC}, v{vMT}
    s_cbranch_vccz L_modeback
    s_mov_b32 s{sMODE}, 0
    v_subrev_u32 v{vMT+1}, s{sTAG}, v{vMT}
    v_subrev_u32 v{vMT+1}, 1, v{vMT+1}
    v_cmp_lt_u32 vcc, 15, v{vMT+1}
    s_cbranch_vccz L_modeback
    s_sub_u32 s3, s3, 1
    s_cbranch_scc0 L_moderetry
    s_branch L_modeback
    ''')
    for name, fn in late:
        A(name + ':'); fn()
    A('L_codeend:')
    return A

HEAD = open('adaLN_cond__ssm_conv_h3__moe_arch_mod__prompt.s.ref').read().split('; Override launch')[0]
def emit(path):
    A = build()
    s = HEAD + f'; @launch grid=(256,1,1) block=(512,1,1) lds={LDS_BYTES}\n'
    s += f'''.amdgcn_target "amdgcn-amd-amdhsa--gfx950"
.text
.globl {KNAME}
.p2align 8
.type {KNAME},@function
{KNAME}:
'''
    s += A.text()
    s += f'''.section .rodata,"a"
.p2align 6
.amdhsa_kernel {KNAME}
  .amdhsa_next_free_vgpr 248
  .amdhsa_next_free_sgpr 102
  .amdhsa_accum_offset 248
  .amdhsa_group_segment_fixed_size 0
  .amdhsa_kernarg_size 128
  .amdhsa_user_sgpr_count 2
  .amdhsa_user_sgpr_kernarg_segment_ptr 1
  .amdhsa_system_sgpr_workgroup_id_x 1
.end_amdhsa_kernel
'''
    open(path, 'w').write(s)
    return A

if __name__ == '__main__':
    out = sys.argv[1]
    for a in sys.argv[2:]:
        k, v = a.split('=')
        setattr(cfg, k, eval(v))
    A = emit(out)
    if cfg.STAMP: open(out + '.sites', 'w').write(' '.join(cfg.ORDER + ['end']))
    print('emitted', out, 'lines', len(A.out), 'pads', A.npad)
```

```python
import sys
from asmdsl import Asm

class Cfg:
    STAMP = False
    STOP = 99
    WS_BASE = 0
    WBL2 = False
    OUT_FL = ''
    POLL_CAP = 1000000
    FORCE_SLOW = False
    SEC = 'bar'
    WPOS = 'key'
    X3ACK = True
    ALIGN = True
    HPRIO = 0
    SPLITW = True
    W1 = 'g'
    W2 = 'ud'
    X0R = 2
    GXE = True
    RTEND = 0
    TLBW = False
    FPOS = 'k'
    X3SLP = 14
    DSITE = ''
    GPOS = 's1'
    X1PT = True
    GLOOP = 0
    PRIO = 3
    OUTPOS = 'top8'
    H2PT = False
    GSLP = 0
    HSLP = 12
    NOOUT = False
    REDSLP = 0
    WAFTER = True
    WDPOS = 's1'
    DBL = False
    DBGT = False
    NT = ''
    WPF = True
    PARTPT = False
    SITES = ()
    ORDER = []
cfg = Cfg()

KNAME = "adaLN_cond__ssm_conv_h3__moe_arch_mod__prompt_kernel"
EPOCH = 0; FL1 = 0x10000; FL2 = 0x12000; FLM = 0x14000; MTAB = 0x16000; KEYS = 0x18000; SEL = 0x1C000
XC = 0x20000; H2P = 0x28000; X1P = 0x2C000; MODP = 0x40000; PART = 0x80000
H2R = 0x800000; XB1 = 0x200000; X0 = 0x400000; X3 = 0x600000; GXB = 0; STAMPS = 0x2000000
NS3 = 28
NPROD = 56
NG0 = 8
USTR = 4160; UCH = 8 * USTR
L_MOD = 0
L_KEY = 2048
L_GP = 4096
L_CNT = 3328
L_ST = 3584
L_KVR = 8192; KVS = 4608
L_P = L_KVR + 2 * KVS
L_T = L_P; TS = 272
L_KD = L_P + 32768
KDS = 144
L_U = L_KD + 9216
L_WGU = L_U + 2 * UCH
L_XS = L_WGU + 24576
L_END = L_WGU + 32768
L_Z = L_U
L_WD = L_U + 8192
L_G2 = L_P
L_GU = L_P + 8192
LDS_BYTES = 159744
assert L_END <= LDS_BYTES

sX, sK, sV, sSK, sF, sD, sWR = 4, 6, 8, 10, 12, 14, 18
sWG, sWU, sWD, sC, sWM, sOUT, sDBG, sWS = 20, 22, 24, 26, 28, 30, 32, 34
sG, sM, sWAVE, sTAG, sMODE, sXCC, sCNT, sTILE = 36, 37, 38, 39, 40, 41, 42, 43
sKSRD = 44
sFSRD = 48
sMASK = 52
sWID = 53
sEP = 54
sDV = 55
sT0, sT1, sT2, sT3, sT4, sT5 = 56, 57, 58, 59, 60, 61
sEX = 62
sC0 = 44
sWSR = 64
sOUTR = 68
sD0, sD1 = 72, 73
sPEND, sPT = 16, 17
sHM = 10
sST = 74
def P(s): return f's[{s}:{s+1}]'

import re
def to_buffer(line):
    for base, srd in ((sWS, sWSR), (sOUT, sOUTR)):
        b = re.escape(P(base)); R = f's[{srd}:{srd+3}]'
        m = re.match(rf'^\s*global_load_lds_(\w+) (v\d+), {b}(.*)$', line)
        if m: return f'buffer_load_{m.group(1)} {m.group(2)}, {R}, 0 offen{m.group(3)} lds'
        m = re.match(rf'^\s*global_load_(\w+) (v\S+), (v\d+), {b}(.*)$', line)
        if m: return f'buffer_load_{m.group(1)} {m.group(2)}, {m.group(3)}, {R}, 0 offen{m.group(4)}'
        m = re.match(rf'^\s*global_store_(\w+) (v\d+), (v\S+), {b}(.*)$', line)
        if m: return f'buffer_store_{m.group(1)} {m.group(3)}, {m.group(2)}, {R}, 0 offen{m.group(4)}'
    return line
def add_nt(line):
    if not cfg.NT: return line
    l = line.strip()
    if l.startswith('global_load') and any(P(b) in l for b in (sX, sK, sV, sWM, sWD, sWG, sWU)) and 'sc1' not in l: return l + ' ' + cfg.NT
    if l.startswith('buffer_load') and (f's[{sKSRD}:{sKSRD+3}]' in l or f's[{sFSRD}:{sFSRD+3}]' in l): return l + ' ' + cfg.NT
    return line
class BAsm(Asm):
    def __call__(self, text):
        super().__call__('\n'.join(to_buffer(add_nt(l)) for l in text.strip().split('\n')))
def build():
    A = BAsm()
    slow = []
    late = []
    nst = [0]
    site = [0]
    def stamp(name=''):
        if cfg.DSITE == name:
            A('s_memrealtime s[82:83]')
            if name in ('B2', 'B3b'): A('s_waitcnt lgkmcnt(0)')
        if cfg.STAMP and (name in cfg.SITES or name == 'start'):
            assert sST + 2 * nst[0] + 3 <= 101
            A(f's_memtime s[{sST+2*nst[0]}:{sST+2*nst[0]+1}]'); nst[0] += 1
            cfg.ORDER.append(name)
            if name in ('B2', 'B3b'): A('s_waitcnt lgkmcnt(0)')
    uid = [0]
    def lstore(text):
        uid[0] += 1; k = uid[0]
        A(f's_cmp_eq_u32 s{sMODE}, 1')
        A(f's_cbranch_scc0 L_slow{k}')
        A(text)
        A(f'L_back{k}:')
        slow.append((k, '\n'.join(l + ' sc1' for l in text.strip().split('\n'))))
    def poll(name, loads, check, slp=0):
        A(f'{name}:')
        if slp: A(f's_sleep {slp}')
        A(loads)
        A('s_waitcnt vmcnt(0)')
        A(check)
        A(f's_sub_u32 s{sCNT}, s{sCNT}, 1')
        A('s_cselect_b64 vcc, 0, vcc')
        A(f's_cselect_b32 s{sCNT}, 0, s{sCNT}')
        A(f's_cbranch_vccnz {name}')
    def mpoll(name, items):
        A(f'{name}:')
        for k, (ld, tr, mk) in enumerate(items):
            A(f's_mov_b64 exec, {P(mk)}')
            A(f's_cbranch_execz {name}_s{k}')
            A(ld)
            A(f'{name}_s{k}:')
        A('s_mov_b64 exec, -1')
        A('s_waitcnt vmcnt(0)')
        for (ld, tr, mk) in items:
            if isinstance(tr, int): A(f'v_cmp_ne_u32 {P(mk)}, s{sTAG}, v{tr}')
            else: A(tr[0]); A(f'v_cmp_ne_u32 {P(mk)}, 0, v{tr[1]}')
        A(f's_or_b64 vcc, {P(items[0][2])}, {P(items[1][2])}')
        for (ld, tr, mk) in items[2:]: A(f's_or_b64 vcc, vcc, {P(mk)}')
        A(f's_sub_u32 s{sCNT}, s{sCNT}, 1')
        A('s_cselect_b64 vcc, 0, vcc')
        A(f's_cselect_b32 s{sCNT}, 0, s{sCNT}')
        A(f's_cbranch_vccnz {name}')
    def unpack(d, s):
        A(f'v_lshlrev_b32 v{d}, 16, v{s}')
        A(f'v_and_b32 v{d+1}, s{sMASK}, v{s}')
    def rnd(d, s=None):
        A(f'v_cvt_pk_bf16_f32 v{d}, 0, v{d if s is None else s}')
    def pr(r): return f'v[{r}:{r+1}]'
    def q4(r): return f'v[{r}:{r+3}]'
    DPPM = 'row_mask:0xf bank_mask:0xf'
    def allred(regs, tmps, add='v_add_f32'):
        for r in regs: A(f'{add}_dpp v{r}, v{r}, v{r} row_ror:8 {DPPM}')
        for sw in ('v_permlane16_swap_b32', 'v_permlane32_swap_b32'):
            for r, t in zip(regs, tmps): A(f'v_mov_b32 v{t}, v{r}')
            for r, t in zip(regs, tmps): A(f'{sw} v{t}, v{r}')
            for r, t in zip(regs, tmps): A(f'{add} v{r}, v{r}, v{t}')
    def fullred(regs, tmps, add='v_add_f32'):
        for pat in ('quad_perm:[1,0,3,2]', 'quad_perm:[2,3,0,1]', 'row_half_mirror'):
            for r in regs: A(f'{add}_dpp v{r}, v{r}, v{r} {pat} {DPPM}')
        allred(regs, tmps, add)
    def lnstats(S, Q, t0, mean_out, inv_out):
        A(f'v_mul_f32 v{S}, 0x3b000000, v{S}')
        A(f'v_mul_f32 v{Q}, 0x3b000000, v{Q}')
        A(f'v_fma_f32 v{t0}, -v{S}, v{S}, v{Q}')
        A(f'v_max_f32 v{t0}, 0, v{t0}')
        rnd(mean_out, S)
        rnd(t0)
        A(f'v_add_f32 v{t0}, 0x3727c5ac, v{t0}')
        rnd(t0)
        A(f'v_sqrt_f32 v{t0}, v{t0}')
        rnd(t0)
        A(f'v_rcp_f32 v{inv_out}, v{t0}')

    A(f'''
    s_cmp_ge_u32 s2, 256
    s_cbranch_scc1 L_end
    s_load_dwordx16 s[4:19], s[0:1], 0
    s_load_dwordx16 s[20:35], s[0:1], 64
    ''')
    if cfg.STAMP:
        A(f's_memrealtime s[{sST}:{sST+1}]'); nst[0] += 1
    if cfg.DBGT or cfg.DBL:
        A('s_memrealtime s[74:75]'); A('s_memtime s[76:77]')
    stamp('start')
    vLANE, vTID = 1, 0
    vA, vB, vT0, vT1, vT2, vT3 = 2, 3, 4, 5, 6, 7
    vPA = 9
    vJR = 8
    vX = 10
    vKr = 14
    vVr = 21
    vSk = 26
    vFl = 30
    vMT = 38
    vGW = 110
    vDl = 9
    vGC = 44
    vPT = 40
    A(f'''
    s_getreg_b32 s{sXCC}, hwreg(HW_REG_XCC_ID)
    s_and_b32 s{sG}, s2, 7
    s_lshr_b32 s{sM}, s2, 3
    v_lshrrev_b32 v{vT0}, 6, v0
    v_and_b32 v{vLANE}, 63, v0
    v_readfirstlane_b32 s{sWAVE}, v{vT0}
    s_and_b32 s{sXCC}, s{sXCC}, 15
    s_mov_b32 s{sMASK}, 0xffff0000
    s_mov_b32 s{sCNT}, {cfg.POLL_CAP}
    s_lshl_b32 s{sT0}, s{sM}, 16
    s_lshl_b32 s{sT1}, s{sG}, 7
    s_add_u32 s{sTILE}, s{sT0}, s{sT1}
    s_lshl_b32 s{sWID}, s{sG}, 5
    s_add_u32 s{sWID}, s{sWID}, s{sM}
    v_and_b32 v{vT0}, 31, v0
    v_lshrrev_b32 v{vT1}, 5, v0
    v_lshlrev_b32 v{vA}, 12, v{vT1}
    v_lshl_add_u32 v{vA}, v{vT0}, 2, v{vA}
    v_add_u32 v{vA}, s{sTILE}, v{vA}
    v_subrev_u32 v{vB}, 0xc00, v{vA}
    v_bfrev_b32 v{vT2}, 1
    v_cmp_gt_u32 vcc, 0xc00, v{vA}
    v_cndmask_b32 v{vB}, v{vB}, v{vT2}, vcc
    v_lshl_add_u32 v{vT2}, v{vT0}, 4, s{sT1}
    v_lshl_add_u32 v{vT2}, s{sT1}, 1, v{vT2}
    v_add_u32 v{vT2}, s{sT1}, v{vT2}
    ''')
    A(f'''
    s_add_u32 s{sT3}, s{sXCC}, 1
    v_mov_b32 v{vPT}, s{sWID}
    v_mov_b32 v{vPT+1}, s{sT3}
    s_lshl_b32 s{sT4}, s{sG}, 7
    s_lshl_b32 s{sT5}, s{sM}, 2
    s_add_u32 s{sT4}, s{sT4}, s{sT5}
    v_lshlrev_b32 v{vT0}, 4, v0
    v_subrev_u32 v{vT1}, 16, v{vT0}
    v_and_b32 v{vT3}, 255, v0
    v_cmp_eq_u32 vcc, 0, v{vT3}
    v_bfrev_b32 v{vT3}, 1
    v_cndmask_b32 v{vT1}, v{vT1}, v{vT3}, vcc
    s_lshl_b32 s{sT0}, s{sWID}, 13
    s_waitcnt lgkmcnt(0)
    s_load_dword s{sEP}, {P(sWS)}, {EPOCH + cfg.WS_BASE}
    global_load_dwordx4 {q4(vSk)}, v{vT2}, {P(sSK)}
    ''')
    for i in range(4): A(f'global_load_dword v{vKr+3+i}, v{vA}, {P(sK)} offset:{1024*i}')
    A(f'''
    s_mov_b32 s{sKSRD}, s{sK}
    s_mov_b32 s{sKSRD+1}, s{sK+1}
    s_mov_b32 s{sKSRD+2}, 0x200000
    s_mov_b32 s{sKSRD+3}, 0x20000
    s_mov_b32 exec_hi, 0
    ''')
    for i in range(3): A(f'buffer_load_dword v{vKr+i}, v{vB}, s[{sKSRD}:{sKSRD+3}], 0 offen offset:{1024*i}')
    A('s_mov_b64 exec, -1')
    for i in range(4): A(f'global_load_dword v{vVr+i}, v{vA}, {P(sV)} offset:{1024*i}')
    A(f'''
    s_add_u32 s{sWS}, s{sWS}, {cfg.WS_BASE}
    s_addc_u32 s{sWS+1}, s{sWS+1}, 0
    s_mov_b32 s{sWSR}, s{sWS}
    s_mov_b32 s{sWSR+1}, s{sWS+1}
    s_mov_b32 s{sWSR+2}, 0x4000000
    s_mov_b32 s{sWSR+3}, 0x20000
    s_mov_b32 s{sOUTR}, s{sOUT}
    s_mov_b32 s{sOUTR+1}, s{sOUT+1}
    s_mov_b32 s{sOUTR+2}, 0x200000
    s_mov_b32 s{sOUTR+3}, 0x20000
    s_add_u32 s{sFSRD}, s{sF}, s{sT0}
    s_addc_u32 s{sFSRD+1}, s{sF+1}, 0
    s_mov_b32 s{sFSRD+2}, 8192
    s_mov_b32 s{sFSRD+3}, 0x20000
    ''')
    A(f'''
    s_cmp_lg_u32 s{sWAVE}, 7
    s_cbranch_scc1 L_nopt
    s_lshr_b32 s{sT0}, s{sM}, 2
    s_lshl_b32 s{sT0}, s{sT0}, 7
    s_lshl_b32 s{sT1}, s{sG}, 10
    s_add_u32 s{sT0}, s{sT0}, s{sT1}
    s_add_u32 s{sT1}, s{sT0}, {FL1}
    v_mov_b32 v{vPT+2}, s{sT1}
    s_add_u32 s{sT1}, s{sT0}, {FL2}
    v_writelane_b32 v{vPT+2}, s{sT1}, 2
    v_writelane_b32 v{vPT+2}, s{sT1}, 3
    s_lshl_b32 s{sT0}, s{sG}, 7
    s_add_u32 s{sT1}, s{sT0}, {FLM}
    v_writelane_b32 v{vPT+2}, s{sT1}, 4
    v_writelane_b32 v{vPT+2}, s{sT1}, 5
    s_add_u32 s{sT1}, s{sT0}, {SEL}
    v_writelane_b32 v{vPT+2}, s{sT1}, 6
    v_writelane_b32 v{vPT+2}, s{sT1}, 7
    s_lshl_b32 s{sT0}, s{sWID}, 6
    s_and_b32 s{sT0}, s{sT0}, 0xffffff80
    s_add_u32 s{sT1}, s{sT0}, {KEYS}
    v_writelane_b32 v{vPT+2}, s{sT1}, 8
    v_writelane_b32 v{vPT+2}, s{sT1}, 9
    v_and_b32 v{vPT+3}, 1, v0
    v_lshl_add_u32 v{vPT+2}, v{vPT+3}, 6, v{vPT+2}
    s_lshl_b32 s{sT0}, s{sWID}, 9
    s_add_u32 s{sT1}, s{sT0}, {MODP - 32*64}
    v_lshl_add_u32 v{vPT+3}, v{vLANE}, 6, s{sT1}
    v_cmp_lt_u32 vcc, 31, v{vLANE}
    v_cndmask_b32 v{vPT+2}, v{vPT+2}, v{vPT+3}, vcc
    s_lshl_b32 s{sT0}, s{sM}, 9
    s_add_u32 s{sT1}, s{sT0}, {H2P - 40*64}
    v_lshl_add_u32 v{vPT+3}, v{vLANE}, 6, s{sT1}
    v_cmp_lt_u32 vcc, 39, v{vLANE}
    v_cndmask_b32 v{vPT+2}, v{vPT+2}, v{vPT+3}, vcc
    s_mov_b32 exec_lo, 0x3ff
    s_mov_b32 exec_hi, {'0xffff' if cfg.H2PT else '0xff'}
    global_load_dword v{vPT+3}, v{vPT+2}, {P(sWS)} sc1
    s_mov_b64 exec, 0xffff
    s_getpc_b64 {P(sT0)}
    L_pc:
    s_lshl_b32 s{sT2}, s{sM}, 10
    v_lshl_add_u32 v{vPT+2}, v{vLANE}, 6, s{sT2}
    v_min_u32 v{vPT+2}, L_codeend-L_pc-4, v{vPT+2}
    global_load_dword v{vPT+3}, v{vPT+2}, {P(sT0)}
    s_mov_b64 exec, -1
    L_nopt:
    ''')
    if cfg.TLBW:
        tl = [(sWS, X0), (sWS, X3), (sOUT, 0), (sX, 0), (sWM, 0), (sWM, 0x200000), (sWG, 0), (sWU, 0), (sWD, 0), (sWS, XB1)]
        A(f'''
        s_cmp_lg_u32 s{sWAVE}, 6
        s_cbranch_scc1 L_notl
        s_lshl_b32 s{sT2}, s{sWID}, 12
        ''')
        for i, (b, off) in enumerate(tl):
            A(f's_add_u32 s{sT0}, s{b}, s{sT2}')
            A(f's_addc_u32 s{sT1}, s{b+1}, 0')
            if off:
                A(f's_add_u32 s{sT0}, s{sT0}, {off}')
                A(f's_addc_u32 s{sT1}, s{sT1}, 0')
            if i == 0:
                A(f'v_mov_b32 v{vPT+2}, s{sT0}'); A(f'v_mov_b32 v{vPT+3}, s{sT1}')
            else:
                A(f'v_writelane_b32 v{vPT+2}, s{sT0}, {i}'); A(f'v_writelane_b32 v{vPT+3}, s{sT1}, {i}')
        A(f'''
        s_mov_b64 exec, {(1 << len(tl)) - 1}
        global_load_dword v{vMT+1}, {pr(vPT+2)}, off
        s_mov_b64 exec, -1
        L_notl:
        ''')
    A(f'''
    v_mov_b32 v{vPT}, {L_CNT}
    v_mov_b32 v{vPT+1}, 0
    ds_write_b32 v{vPT}, v{vPT+1}
    v_and_b32 v{vT2}, 7, v0
    v_lshl_add_u32 v{vT2}, s{sWAVE}, 3, v{vT2}
    v_lshlrev_b32 v{vT2}, 10, v{vT2}
    v_lshrrev_b32 v{vT3}, 3, v{vLANE}
    v_lshl_add_u32 v{vJR}, v{vT3}, 4, v{vT2}
    v_add_u32 v{vJR}, s{sTILE}, v{vJR}
    s_barrier
    ''')
    def fload():
        A(f'''
        buffer_load_dwordx4 {q4(vFl+4)}, v{vT0}, s[{sFSRD}:{sFSRD+3}], 0 offen
        s_mov_b64 exec, 1
        buffer_load_dwordx4 {q4(vFl)}, v{vT1}, s[{sFSRD}:{sFSRD+3}], 0 offen
        s_mov_b64 exec, -1
        ''')
    if cfg.FPOS == 'bar': fload()
    A(f'''
    s_and_b32 s{sT0}, s{sM}, 3
    s_lshl_b32 s{sT0}, s{sT0}, 8
    s_and_b32 s{sT1}, s{sWAVE}, 3
    s_lshl_b32 s{sT1}, s{sT1}, 6
    s_add_u32 s{sT0}, s{sT0}, s{sT1}
    v_and_b32 v{vT2}, 0x38, v0
    v_add_u32 v{vT2}, s{sT0}, v{vT2}
    global_load_dwordx2 {pr(vGC)}, v{vT2}, {P(sC)}
    s_lshl_b32 s{sT0}, s{sG}, 7
    v_and_b32 v{vT2}, 31, v0
    v_lshl_add_u32 v{vT2}, v{vT2}, 2, s{sT0}
    global_load_dword v{vDl}, v{vT2}, {P(sD)}
    s_lshl_b32 s{sT0}, s{sG}, 9
    s_add_u32 s{sT0}, s{sT0}, {MTAB}
    v_and_b32 v{vPT}, 31, v0
    v_lshl_add_u32 v{vPT}, v{vPT}, 4, s{sT0}
    s_lshl_b32 s{sT1}, s{sM}, 4
    s_add_u32 s{sT0}, s{sT0}, s{sT1}
    v_mov_b32 v{vPT+1}, s{sT0}
    s_waitcnt lgkmcnt(0)
    s_mul_i32 s{sTAG}, s{sEP}, 0x9E3779B1
    s_add_u32 s{sTAG}, s{sTAG}, 0x7F4A7C15
    s_add_u32 s{sXCC}, s{sXCC}, s{sTAG}
    s_add_u32 s{sXCC}, s{sXCC}, 1
    v_mov_b32 v{vPT+2}, s{sXCC}
    s_cmp_lg_u32 s{sWAVE}, 0
    s_cbranch_scc1 L_nomode
    s_mov_b64 exec, 1
    global_store_dword v{vPT+1}, v{vPT+2}, {P(sWS)} sc1
    s_mov_b64 exec, -1
    L_nomode:
    ''')
    stamp('issued')
    A(f's_mov_b32 s{sPEND}, 0')
    vX1A, vUA, vTW, vTR = 96, 97, 98, 99
    A(f'''
    v_and_b32 v{vT2}, 31, v0
    v_lshrrev_b32 v{vT3}, 5, v0
    v_mul_u32_u24 v{vTW}, {TS}, v{vT2}
    v_lshlrev_b32 v{vT3}, 3, v{vT3}
    v_sub_u32 v{vTW}, v{vTW}, v{vT3}
    v_add_u32 v{vTW}, {L_T + 120}, v{vTW}
    v_lshrrev_b32 v{vX1A}, 4, v0
    v_mul_u32_u24 v{vTR}, {TS}, v{vX1A}
    v_and_b32 v{vT3}, 15, v0
    v_lshl_add_u32 v{vTR}, v{vT3}, 4, v{vTR}
    v_lshlrev_b32 v{vX1A}, 13, v{vX1A}
    v_bfe_u32 v{vT3}, v0, 3, 1
    v_lshl_add_u32 v{vX1A}, v{vT3}, 12, v{vX1A}
    v_and_b32 v{vT3}, 7, v0
    v_lshl_add_u32 v{vX1A}, v{vT3}, 4, v{vX1A}
    s_lshl_b32 s{sT0}, s{sG}, 18
    s_sub_u32 s{sT1}, 31, s{sM}
    s_lshl_b32 s{sT1}, s{sT1}, 7
    s_add_u32 s{sT0}, s{sT0}, s{sT1}
    s_add_u32 s{sT0}, s{sT0}, {XB1}
    v_add_u32 v{vX1A}, s{sT0}, v{vX1A}
    s_lshl_b32 s{sT0}, s{sG}, 10
    s_lshl_b32 s{sT1}, s{sWAVE}, 7
    s_add_u32 s{sT0}, s{sT0}, s{sT1}
    s_lshl_b32 s{sT1}, s{sM}, 2
    s_add_u32 s{sT0}, s{sT0}, s{sT1}
    v_mov_b32 v{vA}, s{sT0}
    v_mov_b32 v{vB}, s{sTAG}
    v_lshrrev_b32 v{vUA}, 8, v0
    v_mul_u32_u24 v{vUA}, {UCH}, v{vUA}
    v_and_b32 v{vT3}, 255, v0
    v_lshl_add_u32 v{vUA}, v{vT3}, 4, v{vUA}
    v_add_u32 v{vUA}, {L_U}, v{vUA}
    s_lshl_b32 s{sT0}, s{sWID}, 13
    s_add_u32 s{sT0}, s{sT0}, {XB1}
    v_lshl_add_u32 v{vSk-1}, v0, 4, s{sT0}
    s_mov_b32 s{sHM}, 0x11111111
    s_mov_b32 s{sHM+1}, 0x11111111
    ''')
    def wv(n): A(f's_waitcnt vmcnt({n})')
    vTp = 46
    vKp = 54
    vVp = 68
    vAc = 76
    vPp = 84
    vO = 92
    wv(8 if cfg.FPOS == 'bar' else 6)
    if cfg.FPOS == 'k': fload()
    for i in range(3): A(f'v_mov_b32 v{vPp+i}, v{vKr+4+i}')
    for i in range(3): A(f'v_permlane32_swap_b32 v{vKr+i}, v{vPp+i}')
    for j in range(4):
        src0, src1 = vSk + (j >> 1), vSk + 2 + (j >> 1)
        if j & 1:
            A(f'v_and_b32 v{vTp+2*j}, s{sMASK}, v{src0}'); A(f'v_and_b32 v{vTp+2*j+1}, s{sMASK}, v{src1}')
        else:
            A(f'v_lshlrev_b32 v{vTp+2*j}, 16, v{src0}'); A(f'v_lshlrev_b32 v{vTp+2*j+1}, 16, v{src1}')
    for r in range(7): unpack(vKp + 2*r, vKr + r)
    stamp('kland')
    for i in range(4): A(f'v_pk_mul_f32 {pr(vAc+2*i)}, {pr(vKp+2*i)}, {pr(vTp+6)}')
    for i in range(8): rnd(vAc + i)
    for j in (2, 1, 0):
        for i in range(4): A(f'v_pk_mul_f32 {pr(vPp+2*i)}, {pr(vKp+2*(i+3-j))}, {pr(vTp+2*j)}')
        for i in range(8): rnd(vPp + i)
        for i in range(4): A(f'v_pk_add_f32 {pr(vAc+2*i)}, {pr(vAc+2*i)}, {pr(vPp+2*i)}')
        for i in range(8): rnd(vAc + i)
    wv(4)
    A(f'global_load_dword v{vMT}, v{vPT}, {P(sWS)} sc1')
    if cfg.X1PT:
        A(f'''
        s_mov_b64 exec, {P(sHM)}
        global_load_dword v{vPT+3}, v{vSk-1}, {P(sWS)} sc1
        s_mov_b64 exec, -1
        ''')
    for i in range(4): unpack(vVp + 2*i, vVr + i)
    for i in range(4): A(f'v_pk_mul_f32 {pr(vAc+2*i)}, {pr(vAc+2*i)}, {pr(vVp+2*i)}')
    for c in range(2):
        A(f'v_cvt_pk_bf16_f32 v{vO+2*c}, v{vAc+6+c}, v{vAc+4+c}')
        A(f'v_cvt_pk_bf16_f32 v{vO+2*c+1}, v{vAc+2+c}, v{vAc+c}')
    A(f'''
    ds_write2_b64 v{vTW}, {pr(vO)}, {pr(vO+2)} offset0:0 offset1:16
    s_waitcnt lgkmcnt(0)
    s_barrier
    ds_read_b128 {q4(vO)}, v{vTR} offset:{L_T}
    ''')
    stamp('B1')
    A(f'''
    s_waitcnt lgkmcnt(0)
    global_store_dwordx4 v{vX1A}, {q4(vO)}, {P(sWS)}
    ''')
    vW1 = 46
    vOa = 52
    vOb = 58
    wv((5 if cfg.X1PT else 4) - (0 if cfg.FPOS == 'bar' else 2))
    for i in range(4): A(f'v_mov_b32_dpp v{vFl+i}, v{vFl+4+i} wave_shr:1 {DPPM}')
    for i in range(6): A(f'v_mov_b32 v{vW1+i}, v{vFl+1+i}')
    for i in range(6): A(f'v_alignbyte_b32 v{vOa+i}, v{vFl+i+1}, v{vFl+i}, 2')
    for i in range(6): A(f'v_alignbyte_b32 v{vOb+i}, v{vFl+i+2}, v{vFl+i+1}, 2')
    A(f'''
    v_add_u32 v{vT2}, {FL1}, v{vA}
    s_mov_b32 s{sMODE}, {0 if cfg.FORCE_SLOW else 1}
    s_waitcnt vmcnt(0)
    v_cmp_ne_u32 vcc, s{sXCC}, v{vMT}
    s_cbranch_vccnz L_modeslow
    L_modeback:
    s_cmp_eq_u32 s{sMODE}, 1
    s_cbranch_scc0 L_x1slow
    L_x1back:
    s_mov_b64 exec, 1
    ''')
    late.append(('L_x1slow', lambda: (A(f'global_store_dwordx4 v{vX1A}, {q4(vO)}, {P(sWS)} sc1'), A('s_waitcnt vmcnt(0)'), A('s_branch L_x1back'))))
    lstore(f'global_store_dword v{vT2}, v{vB}, {P(sWS)}')
    A('s_mov_b64 exec, -1')
    A(f'global_load_dwordx4 {q4(vX)}, v{vJR}, {P(sX)}')
    stamp('flag1')
    srcs = {0: vOa, 1: vW1, 2: vOb, 3: vFl + 2, 4: vOa + 2, 5: vW1 + 2, 6: vOb + 2, 7: vFl + 4}
    def uwrites():
        for c in range(8): A(f'ds_write_b128 v{vUA}, {q4(srcs[c])} offset:{c*USTR + 16}')
    A(f's_cmp_eq_u32 s{sWAVE}, 4')
    A('s_cbranch_scc1 L_nouw')
    uwrites()
    A('L_nouw:')
    def kvdtile():
        unpack(vPp, vDl)
        for i in range(8): rnd(vAc + i)
        for i in range(4): A(f'v_pk_mul_f32 {pr(vAc+2*i)}, {pr(vAc+2*i)}, {pr(vPp)}')
        for i in range(4): A(f'v_cvt_pk_bf16_f32 v{vPp+2+i}, v{vAc+2*i}, v{vAc+2*i+1}')
        A(f'''
        v_lshrrev_b32 v{vT0}, 5, v0
        v_mul_u32_u24 v{vT0}, {4*KDS}, v{vT0}
        v_and_b32 v{vT1}, 31, v0
        v_lshl_add_u32 v{vT0}, v{vT1}, 2, v{vT0}
        ''')
        for i in range(4): A(f'ds_write_b32 v{vT0}, v{vPp+2+i} offset:{L_KD + KDS*i}')
    A(f's_cmp_eq_u32 s{sWAVE}, 4')
    A('s_cbranch_scc1 L_nokv')
    kvdtile()
    A('L_nokv:')
    vZ = 64
    for i in range(4): A(f'v_mov_b32 v{vZ+i}, 0')
    vXp = 100
    vXA = 108
    vXL = 109
    vI0 = 92
    x0ld = f'global_load_dwordx4 {q4(vI0)}, v99, {P(sWS)} sc1'
    A(f'''
    v_mul_u32_u24 v{vT0}, {USTR}, v{vLANE}
    v_lshrrev_b32 v{vT1}, 5, v{vLANE}
    v_mul_u32_u24 v{vT1}, {KVS - 512}, v{vT1}
    v_lshl_add_u32 v{vT1}, v{vLANE}, 4, v{vT1}
    v_add_u32 v{vT1}, {L_KVR + 4096}, v{vT1}
    s_cmp_lg_u32 s{sWAVE}, 0
    s_cbranch_scc1 L_nz0
    s_mov_b64 exec, 0xffff
    ds_write_b128 v{vT0}, {q4(vZ)} offset:{L_U}
    s_mov_b64 exec, -1
    ds_write_b128 v{vT1}, {q4(vZ)}
    L_nz0:
    v_lshrrev_b32 v{vT0}, 3, v{vLANE}
    v_and_b32 v{vT1}, 7, v0
    v_lshl_add_u32 v{vT1}, s{sWAVE}, 3, v{vT1}
    v_lshlrev_b32 v{vT1}, 4, v{vT1}
    v_lshl_add_u32 v{vXA}, v{vT0}, 18, v{vT1}
    s_lshl_b32 s{sT0}, s{sM}, 13
    s_lshl_b32 s{sT1}, s{sG}, 10
    s_add_u32 s{sT0}, s{sT0}, s{sT1}
    v_add_u32 v{vXA}, s{sT0}, v{vXA}
    v_lshl_add_u32 v{vXL}, v{vT0}, 10, v{vT1}
    s_lshl_b32 s{sT0}, s{sWID}, 13
    v_add_u32 v{vXL}, s{sT0}, v{vXL}
    v_add_u32 v99, {X0}, v{vXL}
    s_cmp_ge_u32 s{sWAVE}, 4
    s_cbranch_scc1 L_helper
    ''')
    vS, vQ, vR = 84, 86, 88
    def x0part():
        for i in range(4): unpack(vXp + 2*i, vX + i)
        A(f'v_pk_add_f32 {pr(vS)}, {pr(vXp)}, {pr(vXp+2)}')
        A(f'v_pk_mul_f32 {pr(vQ)}, {pr(vXp)}, {pr(vXp)}')
        for i in range(1, 4): A(f'v_pk_fma_f32 {pr(vQ)}, {pr(vXp+2*i)}, {pr(vXp+2*i)}, {pr(vQ)}')
        for i in range(2, 4): A(f'v_pk_add_f32 {pr(vS)}, {pr(vS)}, {pr(vXp+2*i)}')
        A(f'v_add_f32 v{vS}, v{vS}, v{vS+1}')
        A(f'v_add_f32 v{vQ}, v{vQ}, v{vQ+1}')
        allred([vS, vQ], [vR, vR + 1])
        A(f'v_mov_b32 v{vS+1}, s{sTAG}')
        A(f'v_mov_b32 v{vS+3}, s{sTAG}')
        A(f'v_add_u32 v{vR+2}, {X0}, v{vXA}')
    x0st = f'global_store_dwordx4 v{vR+2}, {q4(vS)}, {P(sWS)} sc1'
    vAA, vBA, vPW = 110, 111, 112
    vACC = 116
    vFA = [148, 180]
    vFB = [212, 46]
    A(f'''
    v_and_b32 v{vT0}, 15, v0
    v_lshrrev_b32 v{vT1}, 4, v{vLANE}
    v_and_b32 v{vT2}, 7, v0
    v_mul_u32_u24 v{vAA}, {USTR}, v{vT2}
    v_lshrrev_b32 v{vT2}, 3, v{vT0}
    v_add_u32 v{vT2}, v{vT2}, v{vT1}
    v_lshl_add_u32 v{vAA}, v{vT2}, 4, v{vAA}
    s_lshr_b32 s{sT0}, s{sWAVE}, 1
    s_and_b32 s{sT1}, s{sWAVE}, 1
    s_lshl_b32 s{sT1}, s{sT1}, 8
    s_mul_i32 s{sT2}, s{sT0}, {UCH}
    s_add_u32 s{sT2}, s{sT2}, s{sT1}
    s_add_u32 s{sT2}, s{sT2}, {L_U}
    v_add_u32 v{vAA}, s{sT2}, v{vAA}
    v_lshlrev_b32 v{vBA}, 4, v{vT1}
    v_lshlrev_b32 v{vT2}, 5, v{vT0}
    v_sub_u32 v{vBA}, v{vBA}, v{vT2}
    s_mul_i32 s{sT2}, s{sT0}, {KVS}
    s_add_u32 s{sT2}, s{sT2}, s{sT1}
    s_add_u32 s{sT2}, s{sT2}, {L_KVR + 480}
    v_add_u32 v{vBA}, s{sT2}, v{vBA}
    ''')
    def ldA(st, r, p): A(f'ds_read_b128 {q4(vFA[st]+4*p)}, v{vAA} offset:{64*r + 512*p}')
    def ldB(st, r, q): A(f'ds_read_b128 {q4(vFB[st]+4*q)}, v{vBA} offset:{(7-q)*512 + 64*r}')
    A(f'''
    v_lshl_add_u32 v{vT2}, v{vT1}, 2, v{vT0}
    v_and_b32 v{vT2}, 15, v{vT2}
    v_lshl_add_u32 v{vT2}, v{vT1}, 4, v{vT2}
    v_lshlrev_b32 v{vPW}, 4, v{vT2}
    s_lshl_b32 s{sT0}, s{sWAVE}, 13
    s_add_u32 s{sT0}, s{sT0}, {L_P}
    v_add_u32 v{vPW}, s{sT0}, v{vPW}
    s_waitcnt vmcnt(0)
    ''')
    x0part()
    A(f'''
    s_waitcnt lgkmcnt(0)
    s_barrier
    s_setprio {cfg.PRIO}
    {x0st}
    ''')
    for i in range(8): ldA(0, 0, i)
    A('s_waitcnt lgkmcnt(0)')
    A('s_barrier')
    stamp('B2')
    for i in range(8): ldB(0, 0, i)
    order = [(p, j - p) for j in range(8) for p in range(j + 1)]
    for r in range(4):
        st = r & 1
        nxt = [(k, i) for i in range(8) for k in 'AB'] if r < 3 else []
        issued = 0
        written = 0
        for n, (p, q) in enumerate(order):
            j = p + q
            if p == 0 and r == 0:
                A(f's_waitcnt lgkmcnt({min(15, 8 - (j+1) + issued)})')
                if cfg.ALIGN: A('.p2align 3')
            c = '0' if (r == 0 and p == 0) else q4(vACC + 4*j)
            A(f'v_mfma_f32_16x16x32_bf16 {q4(vACC+4*j)}, {q4(vFA[st]+4*p)}, {q4(vFB[st]+4*q)}, {c}')
            if nxt and issued < 16 and n >= (4 if r == 0 else 1):
                k, i = nxt[issued]
                (ldA if k == 'A' else ldB)(st ^ 1, r + 1, i); issued += 1
            if cfg.SPLITW and r == cfg.X0R and n == 0: A(x0ld)
            if r == 3:
                while written < 8 and n >= written*(written+3)//2 + 9 and written <= j - 1:
                    A(f'ds_write_b128 v{vPW}, {q4(vACC+4*written)} offset:{1024*written}'); written += 1
        if r < 3:
            A('s_waitcnt lgkmcnt(0)')
            if cfg.ALIGN: A('.p2align 3')
        else:
            while written < 8:
                A(f'ds_write_b128 v{vPW}, {q4(vACC+4*written)} offset:{1024*written}'); written += 1
    A('s_branch L_s1join')
    A('L_helper:')
    vKD = 116
    vKV = 132
    vXo = 140
    vDUM = 230
    vWRr = 231
    vGW = 164
    vF2, vD2 = 54, 55
    wr_ = [0]
    def wvr(n_s3only, n_both, n_gonly):
        wr_[0] += 1; k = wr_[0]
        A(f'''
        s_cmp_lg_u32 s{sPEND}, 3
        s_cbranch_scc1 L_wr{k}a
        s_waitcnt vmcnt({n_both})
        L_wr{k}b:
        ''')
        late.append((f'L_wr{k}a', lambda: (A(f's_waitcnt vmcnt({min(n_s3only, n_gonly)})') if n_s3only == n_gonly else
                     A(f'''s_cmp_eq_u32 s{sPEND}, 2
                     s_cbranch_scc1 L_wr{k}c
                     s_waitcnt vmcnt({n_gonly})
                     s_branch L_wr{k}b
                     L_wr{k}c:
                     s_waitcnt vmcnt({n_s3only})'''), A(f's_branch L_wr{k}b'))))
    A(f'''
    s_cmp_lt_u32 s{sM}, {NG0}
    s_cselect_b32 s{sT0}, 0, 1
    s_cmp_lt_u32 s{sM}, {NS3}
    s_cselect_b32 s{sT1}, 2, 0
    s_add_u32 s{sPEND}, s{sT0}, s{sT1}
    ''')
    vWA = 144
    sWB = 12
    def wblock(tag, parts):
        A(f'''
        s_cmp_ge_u32 s{sM}, {NS3}
        s_cbranch_scc1 L_h_now{tag}
        ''')
        for pt in parts:
            base, a0, a1, ptr = {'g': (0, vWA, vWA + 3, sWG), 'u': (8192, vWA, vWA + 3, sWU), 'd': (16384, vWA + 1, vWA + 2, sWD)}[pt]
            A(f'''
            s_lshl_b32 s{sT5}, s{sT4}, 11
            s_add_u32 s{sT5}, s{sT5}, {L_WGU + base}
            s_mov_b32 m0, s{sT5}
            s_add_u32 s{sT5}, s{sT5}, 1024
            global_load_lds_dwordx4 v{a0}, {P(ptr)}
            s_mov_b32 m0, s{sT5}
            s_nop 0
            global_load_lds_dwordx4 v{a1}, {P(ptr)}
            ''')
        A(f'L_h_now{tag}:')
    vSt = 188
    for i in range(2): unpack(vSt + 2*i, vGC + i)
    for i in range(4): A(f'v_mul_f32 v{vSt+4+i}, 0xbfb8aa3b, v{vSt+i}')
    for i in range(4): A(f'v_exp_f32 v{vSt+4+i}, v{vSt+4+i}')
    for i in range(4): A(f'v_add_f32 v{vSt+4+i}, 1.0, v{vSt+4+i}')
    for i in range(4): A(f'v_rcp_f32 v{vSt+4+i}, v{vSt+4+i}')
    for i in range(4): A(f'v_mul_f32 v{vSt+i}, v{vSt+i}, v{vSt+4+i}')
    for i in range(2): A(f'v_cvt_pk_bf16_f32 v{vGC+i}, v{vSt+2*i}, v{vSt+2*i+1}')
    A(f'''
    s_sub_u32 s{sT4}, s{sWAVE}, 4
    s_min_u32 s{sT5}, s{sM}, {NS3-1}
    s_lshr_b32 s{sT0}, s{sT5}, 2
    s_mul_i32 s{sT3}, s{sG}, 7
    s_add_u32 s{sT0}, s{sT0}, s{sT3}
    s_lshl_b32 s{sT2}, s{sT0}, 6
    s_and_b32 s{sT1}, s{sM}, 3
    s_lshl_b32 s{sT3}, s{sT1}, 2
    s_add_u32 s{sT3}, s{sT3}, s{sT4}
    s_mul_i32 s{sT3}, s{sT3}, {32*3584}
    s_add_u32 s{sT2}, s{sT2}, s{sT3}
    v_lshrrev_b32 v{vWA}, 2, v{vLANE}
    v_mul_u32_u24 v{vWA}, 3584, v{vWA}
    v_and_b32 v{vT2}, 3, v0
    v_lshl_add_u32 v{vWA}, v{vT2}, 4, v{vWA}
    v_add_u32 v{vWA}, s{sT2}, v{vWA}
    v_add_u32 v{vWA+3}, {16*3584}, v{vWA}
    s_lshl_b32 s{sT2}, s{sT0}, 15
    s_lshl_b32 s{sT3}, s{sT1}, 8
    s_add_u32 s{sT2}, s{sT2}, s{sT3}
    s_lshl_b32 s{sT3}, s{sT4}, 13
    s_add_u32 s{sT2}, s{sT2}, s{sT3}
    v_lshrrev_b32 v{vT2}, 4, v{vLANE}
    v_lshlrev_b32 v{vT2}, 10, v{vT2}
    v_and_b32 v{vT3}, 15, v0
    v_lshl_add_u32 v{vT2}, v{vT3}, 4, v{vT2}
    v_add_u32 v{vWA+1}, s{sT2}, v{vT2}
    v_add_u32 v{vWA+2}, 4096, v{vWA+1}
    s_max_u32 s{sT0}, s{sM}, {NG0}
    s_sub_u32 s{sT0}, s{sT0}, {NG0}
    s_lshr_b32 s{sT1}, s{sT0}, 2
    s_and_b32 s{sT3}, s{sT0}, 3
    s_lshl_b32 s{sT3}, s{sT3}, 7
    s_lshl_b32 s{sT5}, s{sT4}, 5
    s_add_u32 s{sT3}, s{sT3}, s{sT5}
    v_lshrrev_b32 v{vKV}, 3, v{vLANE}
    v_lshl_add_u32 v{vKV}, v{vKV}, 2, s{sT3}
    s_movk_i32 s{sT3}, 6144
    v_mul_lo_u32 v{vKV}, v{vKV}, s{sT3}
    v_and_b32 v{vT3}, 7, v0
    v_lshl_add_u32 v{vKV}, v{vT3}, 4, v{vKV}
    s_lshl_b32 s{sT1}, s{sT1}, 10
    s_lshl_b32 s{sT2}, s{sG}, 7
    s_add_u32 s{sT1}, s{sT1}, s{sT2}
    v_add_u32 v{vKV}, s{sT1}, v{vKV}
    v_lshl_add_u32 v{vKV+2}, v{vLANE}, 1, s{sT2}
    v_subrev_u32 v{vKV+3}, 0x8000, v{vJR}
    s_cmp_lg_u32 s{sWAVE}, 4
    s_cbranch_scc1 L_h_x0p
    s_lshr_b32 s{sT2}, s{sM}, 2
    s_lshl_b32 s{sT2}, s{sT2}, 7
    s_lshl_b32 s{sT1}, s{sG}, 10
    s_add_u32 s{sT2}, s{sT2}, s{sT1}
    s_add_u32 s{sT2}, s{sT2}, {FL1}
    v_and_b32 v{vT0}, 31, v0
    v_lshl_add_u32 v{vT0}, v{vT0}, 2, s{sT2}
    s_lshl_b32 s{sT0}, s{sWID}, 13
    s_add_u32 s{sT0}, s{sT0}, {XB1}
    v_lshl_add_u32 v{vT1}, v{vLANE}, 4, s{sT0}
    v_add_u32 v{vT3}, 4096, v{vT1}
    s_mov_b32 m0, {L_KVR}
    ''')
    poll('L_poll1', f'global_load_dword v{vT2}, v{vT0}, {P(sWS)} sc1', f'v_cmp_ne_u32 vcc, s{sTAG}, v{vT2}')
    for i in range(4): A(f'global_load_lds_dwordx4 v{vT1}, {P(sWS)} offset:{1024*i} sc1')
    A(f's_mov_b32 m0, {L_KVR + KVS}')
    for i in range(4): A(f'global_load_lds_dwordx4 v{vT3}, {P(sWS)} offset:{1024*i} sc1')
    stamp('poll1')
    uwrites()
    kvdtile()
    A('L_h_x0q:')
    late.append(('L_h_x0p', lambda: (A('s_waitcnt vmcnt(0)'), A('s_branch L_h_x0q'))))
    x0part()
    A(f'''
    s_waitcnt lgkmcnt(0)
    s_barrier
    {x0st}
    global_load_ushort v{vWRr}, v{vKV+2}, {P(sWR)}
    s_waitcnt vmcnt(2)
    s_setprio {cfg.HPRIO}
    s_barrier
    s_cmp_lt_u32 s{sM}, {NG0}
    s_cbranch_scc1 L_h_nog
    ''')
    for i in range(4):
        A(f'global_load_dwordx4 {q4(vGW+4*i)}, v{vKV}, {P(sWM)}')
        if i < 3: A(f'v_add_u32 v{vKV}, s{sT3}, v{vKV}')
    A('L_h_nog:')
    stamp('gemv0')
    def gemv_block(nb, ng):
        A(f'''
        s_cmp_lt_u32 s{sM}, {NG0}
        s_cbranch_scc1 L_g_done
        s_cmp_lt_u32 s{sWAVE}, 4
        s_cbranch_scc1 L_g_done
        ''')
        wvr(63, nb, ng)
        vSC = vGC
        vGA = 204
        vGP = 212
        A(f's_mov_b32 s{sT0}, 0x05040100')
        A(f's_mov_b32 s{sT1}, 0x07060302')
        for rp in range(2):
            w0, w1 = vGW + 8*rp, vGW + 8*rp + 4
            for d in range(4):
                A(f'v_perm_b32 v{vGP+2*d}, v{w1+d}, v{w0+d}, s{sT0}')
                A(f'v_perm_b32 v{vGP+2*d+1}, v{w1+d}, v{w0+d}, s{sT1}')
            for c in range(8): A(f'v_dot2_f32_bf16 v{vGA+c}, v{vGP+c}, v{vSC+rp}, ' + (f'v{vGA+c}' if rp else '0'))
        for c in range(4): A(f'v_permlane32_swap_b32 v{vGA+c}, v{vGA+c+4}')
        for c in range(4): A(f'v_add_f32 v{vGA+c}, v{vGA+c}, v{vGA+c+4}')
        for c in range(2): A(f'v_permlane16_swap_b32 v{vGA+c}, v{vGA+c+2}')
        for c in range(2): A(f'v_add_f32 v{vGA+c}, v{vGA+c}, v{vGA+c+2}')
        for c in range(2): A(f'v_add_f32_dpp v{vGA+c}, v{vGA+c}, v{vGA+c} row_ror:8 {DPPM}')
        A(f'''
        v_and_b32 v{vT0}, 8, v0
        v_cmp_ne_u32 vcc, 0, v{vT0}
        v_cndmask_b32 v{vGA}, v{vGA}, v{vGA+1}, vcc
        v_and_b32 v{vT0}, 7, v0
        v_lshrrev_b32 v{vT1}, 3, v{vLANE}
        v_lshl_add_u32 v{vT0}, v{vT0}, 3, v{vT1}
        s_sub_u32 s{sT0}, s{sWAVE}, 4
        s_lshl_b32 s{sT0}, s{sT0}, 8
        s_add_u32 s{sT0}, s{sT0}, {L_GP}
        v_lshl_add_u32 v{vT0}, v{vT0}, 2, s{sT0}
        ds_write_b32 v{vT0}, v{vGA}
        v_mov_b32 v{vT1}, {L_CNT}
        v_mov_b32 v{vT2}, 1
        s_waitcnt lgkmcnt(0)
        s_mov_b64 exec, 1
        ds_add_rtn_u32 v{vT2}, v{vT1}, v{vT2}
        s_mov_b64 exec, -1
        s_waitcnt lgkmcnt(0)
        v_readfirstlane_b32 s{sT0}, v{vT2}
        s_cmp_lg_u32 s{sT0}, 3
        s_cbranch_scc1 L_g_done
        v_lshlrev_b32 v{vT0}, 2, v{vLANE}
        ds_read2st64_b32 {pr(vGA)}, v{vT0} offset0:{L_GP//256} offset1:{L_GP//256+1}
        ds_read2st64_b32 {pr(vGA+2)}, v{vT0} offset0:{L_GP//256+2} offset1:{L_GP//256+3}
        s_sub_u32 s{sT0}, s{sM}, {NG0}
        s_lshl_b32 s{sT0}, s{sT0}, 9
        s_lshl_b32 s{sT1}, s{sG}, 14
        s_add_u32 s{sT0}, s{sT0}, s{sT1}
        s_add_u32 s{sT0}, s{sT0}, {MODP}
        v_lshl_add_u32 v{vT0}, v{vLANE}, 3, s{sT0}
        s_waitcnt lgkmcnt(0)
        v_pk_add_f32 {pr(vGA)}, {pr(vGA)}, {pr(vGA+2)}
        v_add_f32 v{vGA}, v{vGA}, v{vGA+1}
        v_mov_b32 v{vGA+1}, s{sTAG}
        ''')
        lstore(f'global_store_dwordx2 v{vT0}, {pr(vGA)}, {P(sWS)}')
        A('L_g_done:')
    wblock('a', cfg.W1)
    A(f's_sleep {cfg.HSLP}')
    A(x0ld)
    wblock('b', cfg.W2)
    gemv_block(7, 1)
    A('L_s1join:')
    A('s_setprio 0')
    stamp('s1join')
    vPp0 = 148
    vKDe = 116
    vMn, vInv = 64, 65
    vH = 232
    vPar = 164
    vU = 46
    def rdpar(lst):
        for pi in lst:
            A(f'ds_read_b128 {q4(vPar+8*pi)}, v{vPA} offset:{L_MOD + 256*pi}')
            A(f'ds_read_b128 {q4(vPar+8*pi+4)}, v{vPA} offset:{L_MOD + 256*pi + 16}')
    A(f'''
    v_lshrrev_b32 v{vT0}, 2, v{vLANE}
    v_and_b32 v{vT1}, 3, v0
    v_lshl_add_u32 v{vT0}, v{vT1}, 2, v{vT0}
    v_and_b32 v{vT0}, 15, v{vT0}
    v_lshl_add_u32 v{vT0}, v{vT1}, 4, v{vT0}
    v_lshlrev_b32 v{vT0}, 4, v{vT0}
    s_lshl_b32 s{sT0}, s{sWAVE}, 10
    s_add_u32 s{sT1}, s{sT0}, {L_P}
    v_add_u32 v{vT0}, s{sT1}, v{vT0}
    s_lshl_b32 s{sT2}, s{sWID}, 13
    s_add_u32 s{sT2}, s{sT2}, {XB1}
    v_lshl_add_u32 v{vT2}, v0, 4, s{sT2}
    v_lshlrev_b32 v{vT3}, 4, v0
    v_add_u32 v{vT3}, {L_XS}, v{vT3}
    v_lshrrev_b32 v{vPA}, 3, v{vLANE}
    v_lshlrev_b32 v{vPA}, 5, v{vPA}
    s_waitcnt lgkmcnt(0)
    s_barrier
    ''')
    for w in range(4): A(f'ds_read_b128 {q4(vPp0+4*w)}, v{vT0} offset:{8192*w}')
    A(f'''
    s_waitcnt lgkmcnt(0)
    ''')
    for c in range(2):
        for h in range(2): A(f'v_pk_add_f32 {pr(vPp0+8*c+2*h)}, {pr(vPp0+8*c+2*h)}, {pr(vPp0+8*c+4+2*h)}')
    for i in range(4): A(f'v_cvt_pk_bf16_f32 v{vPp0+4+i}, v{vPp0+i}, v{vPp0+8+i}')
    lstore(f'global_store_dwordx4 v{vT2}, {q4(vPp0+4)}, {P(sWS)}')
    stamp('zst')
    vMQ = 140
    vXCA = 139
    vZA = 68
    A(f'''
    v_mov_b32 v{vXCA}, 0
    s_min_u32 s{sT5}, s{sWAVE}, 5
    s_cmp_eq_u32 s{sWAVE}, 6
    s_cselect_b32 s{sT5}, 3, s{sT5}
    s_cmp_eq_u32 s{sWAVE}, 7
    s_cselect_b32 s{sT5}, 4, s{sT5}
    s_lshl_b32 s{sT1}, s{sT5}, 11
    s_lshl_b32 s{sT2}, s{sG}, 14
    s_add_u32 s{sT1}, s{sT1}, s{sT2}
    s_add_u32 s{sT1}, s{sT1}, {MODP}
    v_lshl_add_u32 v{vD2+1}, v{vLANE}, 4, s{sT1}
    v_add_u32 v{vD2+2}, {X0}, v{vXL}
    ''')
    modld = '\n'.join([f'global_load_dwordx4 {q4(vMQ+4*i)}, v{vD2+1}, {P(sWS)} offset:{1024*i} sc1' for i in range(2)])
    chk = [f'v_xor_b32 v{vMQ+2*i+1}, s{sTAG}, v{vMQ+2*i+1}' for i in range(4)]
    chk += [f'v_or3_b32 v{vMQ+1}, v{vMQ+1}, v{vMQ+3}, v{vMQ+5}', f'v_or_b32 v{vMQ+1}, v{vMQ+1}, v{vMQ+7}', f'v_cmp_ne_u32 vcc, 0, v{vMQ+1}']
    x0chk = f'''v_xor_b32 v{vI0+1}, s{sTAG}, v{vI0+1}
         v_xor_b32 v{vI0+3}, s{sTAG}, v{vI0+3}
         v_or_b32 v{vI0+1}, v{vI0+1}, v{vI0+3}
         v_cmp_ne_u32 vcc, 0, v{vI0+1}'''
    if not cfg.SPLITW: A(x0ld)
    else: A(modld)
    vKd = 116
    A(f'''
    v_and_b32 v{vT0}, 7, v0
    v_lshl_add_u32 v{vT0}, s{sWAVE}, 3, v{vT0}
    v_mul_u32_u24 v{vT0}, {KDS}, v{vT0}
    v_lshrrev_b32 v{vT1}, 3, v{vLANE}
    v_lshl_add_u32 v{vT0}, v{vT1}, 4, v{vT0}
    ds_read_b128 {q4(vKd)}, v{vT0} offset:{L_KD}
    ''')
    A('s_waitcnt lgkmcnt(0)')
    for i in range(4): unpack(vKd + 4 + 2*i, vKd + i)
    def x0fin():
        A(x0chk)
        A('s_cbranch_vccnz L_pollx0')
        A('L_pollx0_back:')
        late.append(('L_pollx0', lambda: (poll('L_pollx0b', x0ld, x0chk), A('s_nop 1'), A('s_branch L_pollx0_back'))))
        allred([vI0, vI0 + 2], [vI0 + 1, vI0 + 3])
        lnstats(vI0, vI0 + 2, vI0 + 1, vMn, vInv)
        for i in range(8): A(f'v_sub_f32 v{vH+i}, v{vXp+i}, v{vMn}')
        for i in range(8): rnd(vH + i)
        for i in range(8): A(f'v_mul_f32 v{vH+i}, v{vH+i}, v{vInv}')
        for i in range(8): rnd(vH + i)
    if cfg.SPLITW:
        A(f'''
        s_cmp_lt_u32 s{sWAVE}, 4
        s_cbranch_scc1 L_xw3
        s_cmp_ge_u32 s{sM}, {NS3}
        s_cbranch_scc1 L_xw3
        s_waitcnt vmcnt({3 + 2*len(cfg.W2)})
        L_xw5:
        ''')
        late.append(('L_xw3', lambda: (A('s_waitcnt vmcnt(3)'), A('s_branch L_xw5'))))
        x0fin()
    A(f'''
    v_add_u32 v{vT1}, {FL2}, v{vA}
    s_lshr_b32 s{sT2}, s{sM}, 2
    s_lshl_b32 s{sT2}, s{sT2}, 7
    s_lshl_b32 s{sT3}, s{sG}, 10
    s_add_u32 s{sT2}, s{sT2}, s{sT3}
    s_lshl_b32 s{sT3}, s{sWAVE}, 4
    s_add_u32 s{sT2}, s{sT2}, s{sT3}
    s_add_u32 s{sT2}, s{sT2}, {FL2}
    v_and_b32 v{vF2}, 3, v0
    v_lshl_add_u32 v{vF2}, v{vF2}, 2, s{sT2}
    s_lshl_b32 s{sT3}, s{sWAVE}, 1
    v_subrev_u32 v{vD2}, s{sT3}, v0
    v_and_b32 v{vD2}, 15, v{vD2}
    v_lshlrev_b32 v{vD2}, 4, v{vD2}
    v_lshrrev_b32 v{vT2}, 4, v0
    v_lshl_add_u32 v{vD2}, v{vT2}, 13, v{vD2}
    s_lshl_b32 s{sT2}, s{sG}, 18
    s_lshl_b32 s{sT3}, s{sM}, 8
    s_add_u32 s{sT2}, s{sT2}, s{sT3}
    s_add_u32 s{sT2}, s{sT2}, {XB1}
    v_add_u32 v{vD2}, s{sT2}, v{vD2}
    s_lshl_b32 s{sT2}, s{sWAVE}, 10
    s_add_u32 s{sT2}, s{sT2}, {L_Z}
    s_mov_b32 m0, s{sT2}
    v_lshrrev_b32 v{vT0}, 3, v{vLANE}
    v_bfe_u32 v{vT2}, v0, 2, 1
    v_lshl_add_u32 v{vT2}, s{sWAVE}, 1, v{vT2}
    v_lshl_add_u32 v{vT2}, v{vT0}, 1, v{vT2}
    v_and_b32 v{vT2}, 15, v{vT2}
    v_lshlrev_b32 v{vT2}, 4, v{vT2}
    v_lshl_add_u32 v{vZA}, v{vT0}, 10, v{vT2}
    v_and_b32 v{vT2}, 3, v0
    v_lshl_add_u32 v{vZA}, v{vT2}, 2, v{vZA}
    s_mov_b32 s{sT0}, s{sT5}
    s_waitcnt vmcnt({2 if cfg.SPLITW else 1})
    s_mov_b64 exec, 1
    ''')
    lstore(f'global_store_dword v{vT1}, v{vB}, {P(sWS)}')
    A('s_mov_b64 exec, -1')
    stamp('flag2')
    if not cfg.SPLITW:
        A(modld)
        A('s_waitcnt vmcnt(3)')
        x0fin()
    A('s_waitcnt vmcnt(1)' if cfg.SPLITW else 's_waitcnt vmcnt(0)')
    A('\n'.join(chk))
    A('s_cbranch_vccnz L_pollm')
    A('L_pollm_back:')
    late.append(('L_pollm', lambda: (poll('L_pollmb', modld, '\n'.join(chk)), A('s_branch L_pollm_back'))))
    stamp('modok')
    A(f'global_load_dword v{vI0}, v{vF2}, {P(sWS)} sc1')
    A(f'v_add_f32 v{vMQ}, v{vMQ}, v{vMQ+4}')
    A(f'v_add_f32 v{vMQ+2}, v{vMQ+2}, v{vMQ+6}')
    A(f'''
    v_permlane32_swap_b32 v{vMQ}, v{vMQ+2}
    v_add_f32 v{vMQ}, v{vMQ}, v{vMQ+2}
    v_cvt_pk_bf16_f32 v{vMQ}, 0, v{vMQ}
    v_add_f32 v{vMQ+1}, 1.0, v{vMQ}
    v_cvt_pk_bf16_f32 v{vMQ+1}, 0, v{vMQ+1}
    s_cmp_eq_u32 s{sT0}, 1
    s_cselect_b64 vcc, -1, 0
    s_cmp_eq_u32 s{sT0}, 4
    s_cselect_b64 vcc, -1, vcc
    v_cndmask_b32 v{vMQ}, v{vMQ}, v{vMQ+1}, vcc
    v_and_b32 v{vT0}, 31, v0
    v_lshrrev_b32 v{vT1}, 5, v{vLANE}
    v_lshl_add_u32 v{vT0}, v{vT0}, 1, v{vT1}
    v_lshlrev_b32 v{vT0}, 2, v{vT0}
    s_cmp_ge_u32 s{sWAVE}, 6
    s_cbranch_scc1 L_m67
    s_lshl_b32 s{sT1}, s{sT0}, 8
    v_add_u32 v{vT0}, s{sT1}, v{vT0}
    ds_write_b32 v{vT0}, v{vMQ} offset:{L_MOD}
    s_branch L_mjoin
    L_m67:
    ds_bpermute_b32 v{vT1}, v{vT0}, v{vWRr}
    s_waitcnt lgkmcnt(0)
    v_lshlrev_b32 v{vT1}, 16, v{vT1}
    v_mul_f32 v{vMQ+4}, v{vMQ}, v{vT1}
    s_cmp_eq_u32 s{sWAVE}, 7
    s_cselect_b32 s{sT1}, 0, 256
    s_cselect_b32 s{sT2}, 0, 8
    v_add_u32 v{vT0}, s{sT1}, v{vT0}
    ds_write_b32 v{vT0}, v{vMQ+4} offset:{L_MOD + 6*256}
    ''')
    fullred([vMQ + 4], [vMQ + 6])
    A(f'''
    v_mov_b32 v{vMQ+5}, s{sTAG}
    s_lshl_b32 s{sT0}, s{sM}, 7
    s_lshl_b32 s{sT1}, s{sG}, 4
    s_add_u32 s{sT0}, s{sT0}, s{sT1}
    s_add_u32 s{sT0}, s{sT0}, s{sT2}
    s_add_u32 s{sT0}, s{sT0}, {XC}
    v_lshl_add_u32 v{vXCA}, v{vLANE}, 12, s{sT0}
    L_mjoin:
    ''')
    A(f'''
    s_waitcnt vmcnt(0)
    v_cmp_ne_u32 vcc, s{sTAG}, v{vI0}
    s_mov_b32 s{sT4}, 0
    s_cbranch_vccnz L_p2n
    global_load_lds_dwordx4 v{vD2}, {P(sWS)} sc1
    s_mov_b32 s{sT4}, 1
    L_p2n:
    s_waitcnt lgkmcnt(0)
    s_barrier
    ''')
    rdpar((1, 0, 2, 6))
    A('s_waitcnt lgkmcnt(4)')
    for i in range(8): A(f'v_mul_f32 v{vH+i}, v{vH+i}, v{vPar+8+i}')
    for i in range(8): rnd(vH + i)
    for i in range(8): A(f'v_add_f32 v{vH+i}, v{vH+i}, v{vPar+i}')
    for i in range(8): rnd(vH + i)
    A(f'''
    s_cmp_eq_u32 s{sT4}, 1
    s_cbranch_scc1 L_p2d
    ''')
    poll('L_poll2', f'global_load_dword v{vT2}, v{vF2}, {P(sWS)} sc1', f'v_cmp_ne_u32 vcc, s{sTAG}, v{vT2}')
    A(f'global_load_lds_dwordx4 v{vD2}, {P(sWS)} sc1')
    A('L_p2d:')
    stamp('poll2')
    stamp('hdone')
    A('s_waitcnt vmcnt(0)')
    A('s_barrier')
    A(f'''
    s_cmp_lt_u32 s{sWAVE}, 6
    s_cbranch_scc1 L_noxc
    s_mov_b64 exec, 0xff
    global_store_dwordx2 v{vXCA}, {pr(vMQ+4)}, {P(sWS)} sc1
    s_mov_b64 exec, -1
    L_noxc:
    ''')
    stamp('B4')
    vZr = 70
    vZ1 = 74
    vSQ = 82
    A(f'ds_read2st64_b32 {pr(vZr)}, v{vZA} offset0:{L_Z//256} offset1:{L_Z//256+1}')
    A(f'ds_read2st64_b32 {pr(vZr+2)}, v{vZA} offset0:{L_Z//256+2} offset1:{L_Z//256+3}')
    A(f'v_add_u32 v{vT0}, {X3}, v{vXA}')
    A('s_waitcnt lgkmcnt(0)')
    for i in range(4): unpack(vZ1 + 2*i, vZr + i)
    for i in range(8): A(f'v_add_f32 v{vZ1+i}, v{vZ1+i}, v{vKd+4+i}')
    for i in range(8): rnd(vZ1 + i)
    for i in range(8): A(f'v_mul_f32 v{vZ1+i}, v{vZ1+i}, v{vH+i}')
    for i in range(8): rnd(vZ1 + i)
    for i in range(8): A(f'v_mul_f32 v{vZ1+i}, v{vZ1+i}, v{vPar+16+i}')
    for i in range(8): rnd(vZ1 + i)
    for i in range(8): A(f'v_add_f32 v{vZ1+i}, v{vZ1+i}, v{vXp+i}')
    for i in range(8): rnd(vZ1 + i)
    S_, Q_, P_ = vSQ, vSQ + 2, vSQ + 4
    A(f'v_pk_add_f32 {pr(S_)}, {pr(vZ1)}, {pr(vZ1+2)}')
    A(f'v_pk_mul_f32 {pr(Q_)}, {pr(vZ1)}, {pr(vZ1)}')
    A(f'v_pk_mul_f32 {pr(P_)}, {pr(vZ1)}, {pr(vPar+48)}')
    for i in range(1, 4):
        A(f'v_pk_fma_f32 {pr(Q_)}, {pr(vZ1+2*i)}, {pr(vZ1+2*i)}, {pr(Q_)}')
        A(f'v_pk_fma_f32 {pr(P_)}, {pr(vZ1+2*i)}, {pr(vPar+48+2*i)}, {pr(P_)}')
        if i >= 2: A(f'v_pk_add_f32 {pr(S_)}, {pr(S_)}, {pr(vZ1+2*i)}')
    vUn = vSQ + 6
    A(f'v_add_f32 v{vUn}, v{S_}, v{S_+1}')
    A(f'v_add_f32 v{vUn+1}, v{Q_}, v{Q_+1}')
    A(f'v_add_f32 v{vUn+2}, v{P_}, v{P_+1}')
    A(f'v_mov_b32 v{vUn+3}, s{sTAG}')
    allred([vUn, vUn + 1, vUn + 2], [S_, Q_, P_])
    A(f'global_store_dwordx4 v{vT0}, {q4(vUn)}, {P(sWS)} sc1')
    stamp('x3st')
    rdpar((3, 4, 5))
    if cfg.WBL2:
        A(f'''
        s_cmp_lg_u32 s{sM}, 31
        s_cbranch_scc1 L_nowb
        s_cmp_lg_u32 s{sWAVE}, 7
        s_cbranch_scc1 L_nowb
        buffer_wbl2 sc1
        L_nowb:
        ''')
    if cfg.WDPOS == 'x3':
        A(f'''
        s_cmp_ge_u32 s{sM}, {NS3}
        s_cbranch_scc1 L_nowd
        s_lshr_b32 s{sT0}, s{sM}, 2
        s_mul_i32 s{sT1}, s{sG}, 7
        s_add_u32 s{sT0}, s{sT0}, s{sT1}
        s_and_b32 s{sT1}, s{sM}, 3
        s_lshl_b32 s{sT4}, s{sWAVE}, 10
        s_add_u32 s{sT4}, s{sT4}, {L_WGU + 16384}
        s_mov_b32 m0, s{sT4}
        s_lshl_b32 s{sT2}, s{sT0}, 15
        s_lshl_b32 s{sT3}, s{sT1}, 8
        s_add_u32 s{sT2}, s{sT2}, s{sT3}
        v_lshrrev_b32 v{vT2}, 4, v0
        v_lshlrev_b32 v{vT2}, 10, v{vT2}
        v_and_b32 v{vT3}, 15, v0
        v_lshl_add_u32 v{vT2}, v{vT3}, 4, v{vT2}
        v_add_u32 v{vT2}, s{sT2}, v{vT2}
        global_load_lds_dwordx4 v{vT2}, {P(sWD)}
        L_nowd:
        ''')
    A(f'''
    s_lshr_b32 s{sT2}, s{sM}, 2
    s_lshl_b32 s{sT2}, s{sT2}, 5
    s_lshl_b32 s{sT3}, s{sG}, 2
    s_add_u32 s{sT2}, s{sT2}, s{sT3}
    s_and_b32 s{sT3}, s{sM}, 3
    s_add_u32 s{sT2}, s{sT2}, s{sT3}
    s_mul_i32 s{sPT}, s{sT2}, {NPROD*64}
    s_add_u32 s{sPT}, s{sPT}, {PART}
    v_lshrrev_b32 v{vT1}, 3, v{vLANE}
    s_lshl_b32 s{sT0}, s{sWID}, 7
    s_add_u32 s{sT0}, s{sT0}, {XC}
    v_lshl_add_u32 v{vT1}, v{vT1}, 4, s{sT0}
    v_add_u32 v{vT0}, {X3}, v{vXL}
    ''')
    vR3 = 92
    if cfg.X3SLP:
        A(f'global_load_dwordx4 {q4(vU+4)}, v{vT1}, {P(sWS)} sc1')
        A(f's_sleep {cfg.X3SLP}')
        A(f'global_load_dwordx4 {q4(vR3)}, v{vT0}, {P(sWS)} sc1')
        xck = f'''v_xor_b32 v{vT2}, s{sTAG}, v{vU+5}
         v_xor_b32 v{vT3}, s{sTAG}, v{vU+7}
         v_or_b32 v{vT2}, v{vT2}, v{vT3}
         v_cmp_ne_u32 vcc, 0, v{vT2}'''
        A('s_waitcnt vmcnt(1)')
        A(xck)
        A('s_cbranch_vccnz L_pollc')
        A('L_pollc_back:')
        late.append(('L_pollc', lambda: (poll('L_pollcb', f'global_load_dwordx4 {q4(vU+4)}, v{vT1}, {P(sWS)} sc1', xck), A('s_nop 1'), A('s_branch L_pollc_back'))))
        stamp('xcok')
    else:
        poll('L_pollc', f'global_load_dwordx4 {q4(vU+4)}, v{vT1}, {P(sWS)} sc1',
             f'''v_xor_b32 v{vT2}, s{sTAG}, v{vU+5}
             v_xor_b32 v{vT3}, s{sTAG}, v{vU+7}
             v_or_b32 v{vT2}, v{vT2}, v{vT3}
             v_cmp_ne_u32 vcc, 0, v{vT2}''')
        stamp('xcok')
        vR3 = 92
        A(f'global_load_dwordx4 {q4(vR3)}, v{vT0}, {P(sWS)} sc1')
    allred([vU + 4, vU + 6], [S_, Q_])
    A(f'''
    v_and_b32 v{vT1}, 7, v0
    v_lshl_add_u32 v{vT1}, s{sWAVE}, 3, v{vT1}
    s_lshl_b32 s{sT0}, s{sM}, 6
    s_sub_u32 s{sT0}, 2047, s{sT0}
    v_sub_u32 v{vU}, s{sT0}, v{vT1}
    v_lshlrev_b32 v{vU+1}, 2, v{vT1}
    v_mov_b32 v{vT2}, 0
    ds_write_b32 v{vU+1}, v{vT2} offset:{L_ST}
    s_waitcnt vmcnt(0)
    v_cmp_ne_u32 vcc, s{sTAG}, v{vR3+3}
    s_cbranch_vccnz L_poll3
    L_poll3_back:
    ''')
    late.append(('L_poll3', lambda: (poll('L_poll3b', f'global_load_dwordx4 {q4(vR3)}, v{vT0}, {P(sWS)} sc1', f'v_cmp_ne_u32 vcc, s{sTAG}, v{vR3+3}'),
                 A('s_nop 1'), A('s_branch L_poll3_back'))))
    stamp('x3ok')
    allred([vR3, vR3 + 1, vR3 + 2], [S_, Q_, P_])
    lnstats(vR3, vR3 + 1, S_, vMn, vInv)
    vKey = 96
    A(f'''
    v_fma_f32 v{vKey}, -v{vMn}, v{vU+4}, v{vR3+2}
    v_fma_f32 v{vKey}, v{vKey}, v{vInv}, v{vU+6}
    v_cvt_pk_bf16_f32 v{vKey}, 0, v{vKey}
    v_ashrrev_i32 v{vT0}, 31, v{vKey}
    v_or_b32 v{vT0}, 0x80000000, v{vT0}
    v_and_b32 v{vT0}, s{sMASK}, v{vT0}
    v_xor_b32 v{vKey}, v{vKey}, v{vT0}
    v_or_b32 v{vKey}, v{vKey}, v{vU}
    ds_write_b32 v{vU+1}, v{vKey} offset:{L_KEY}
    s_waitcnt lgkmcnt(0)
    s_barrier
    ds_read_b128 {q4(vR3)}, v{vPA} offset:{L_KEY}
    ds_read_b128 {q4(vSQ)}, v{vPA} offset:{L_KEY+16}
    ''')
    vH2 = 56
    for i in range(8): A(f'v_sub_f32 v{vH2+i}, v{vZ1+i}, v{vMn}')
    for i in range(8): rnd(vH2 + i)
    A('s_waitcnt lgkmcnt(0)')
    vRk = 97
    A(f'v_mov_b32 v{vRk}, 0')
    ks = [vR3 + i for i in range(4)] + [vSQ + i for i in range(4)]
    for half in range(2):
        for i in range(4): A(f'v_cmp_gt_u32 {P(sC0+2*i)}, v{ks[4*half+i]}, v{vKey}')
        for i in range(4): A(f'v_addc_co_u32 v{vRk}, {P(sC0+2*i)}, 0, v{vRk}, {P(sC0+2*i)}')
    allred([vRk], [vT0], add='v_add_u32')
    A(f'''
    s_lshl_b32 s{sT0}, s{sWID}, 6
    s_add_u32 s{sT0}, s{sT0}, {KEYS}
    v_lshl_add_u32 v{vT0}, v{vRk}, 3, s{sT0}
    v_mov_b32 v{vR3}, v{vKey}
    v_mov_b32 v{vR3+1}, s{sTAG}
    v_cmp_gt_u32 {P(sEX)}, 8, v{vRk}
    s_and_b64 exec, {P(sEX)}, 0xff
    s_cbranch_execz L_nokey
    ''')
    lstore(f'global_store_dwordx2 v{vT0}, {pr(vR3)}, {P(sWS)}')
    A('L_nokey:')
    A('s_mov_b64 exec, -1')
    stamp('keyst')
    vWf = 130
    vKs = 154
    vM2, vM1 = 163, 164
    vRow = vKs + 2
    vPk = 110
    vOut = 126
    def h2calc():
        for i in range(8): A(f'v_mul_f32 v{vH2+i}, v{vH2+i}, v{vInv}')
        for i in range(8): rnd(vH2 + i)
        for i in range(8): A(f'v_mul_f32 v{vH2+i}, v{vH2+i}, v{vPar+32+i}')
        for i in range(8): rnd(vH2 + i)
        for i in range(8): A(f'v_add_f32 v{vH2+i}, v{vH2+i}, v{vPar+24+i}')
        for i in range(4):
            A(f'v_cvt_pk_bf16_f32 v{vPk+2*i}, v{vH2+2*i}, v{vH2+2*i+1}')
            A(f'v_mov_b32 v{vPk+2*i+1}, s{sTAG}')
        for i in range(4):
            A(f'v_cvt_pk_bf16_f32 v{vPk+8+2*i}, v{vZ1+2*i}, v{vZ1+2*i+1}')
            A(f'v_mov_b32 v{vPk+8+2*i+1}, s{sTAG}')
    def outcalc():
        for i in range(4): unpack(vH2 + 2*i, vPk + 2*i)
        for i in range(8): A(f'v_mul_f32 v{vH2+i}, v{vH2+i}, v{vPar+40+i}')
        for i in range(8): rnd(vH2 + i)
        for i in range(8): A(f'v_add_f32 v{vH2+i}, v{vH2+i}, v{vZ1+i}')
        for i in range(4): A(f'v_cvt_pk_bf16_f32 v{vOut+i}, v{vH2+2*i}, v{vH2+2*i+1}')
    def outstore():
        A(f'''
        s_andn2_b64 exec, exec, {P(sEX)}
        s_cbranch_execz L_noout3
        global_store_dwordx4 v{vJR}, {q4(vOut)}, {P(sOUT)} {cfg.OUT_FL}
        L_noout2:
        s_mov_b64 exec, -1
        ''')
    late.append(('L_noout3', lambda: (A('s_waitcnt vmcnt(0)'), A('s_branch L_noout2'))))
    h2calc()
    vGA_, vGS, vGL, vPS, vGW_, vGR_ = 142, 143, 144, 145, 146, 147
    vGA2, vGR2, vSLT = 148, 149, 150
    vG = 166
    A(f'''
    s_and_b32 s{sT1}, s{sM}, 3
    s_lshl_b32 s{sT2}, s{sT1}, 9
    s_add_u32 s{sT2}, s{sT2}, {H2R}
    v_and_b32 v{vGA_}, 31, v0
    v_lshl_add_u32 v{vGA_}, v{vGA_}, 4, s{sT2}
    v_bfe_u32 v{vGA2}, v0, 5, 3
    v_lshlrev_b32 v{vGA2}, 2, v{vGA2}
    ''')
    vOR = 200
    vHA = 98
    A(f'''
    v_and_b32 v{vOR}, 7, v0
    v_lshl_add_u32 v{vOR}, s{sWAVE}, 3, v{vOR}
    s_lshl_b32 s{sT0}, s{sM}, 6
    v_add_u32 v{vOR}, s{sT0}, v{vOR}
    v_lshrrev_b32 v{vT2}, 3, v{vLANE}
    s_lshl_b32 s{sT1}, s{sG}, 8
    s_add_u32 s{sT1}, s{sT1}, {H2P - 2048}
    v_lshl_add_u32 v{vHA}, v{vT2}, 4, s{sT1}
    v_lshl_add_u32 v{vT0}, v{vOR}, 11, v{vHA}
    v_add_u32 v{vT0}, {H2R - H2P + 2048}, v{vT0}
    s_mov_b64 exec, {P(sEX)}
    s_cbranch_execz L_noh2c
    global_store_dwordx4 v{vT0}, {q4(vPk)}, {P(sWS)} sc1
    global_store_dwordx4 v{vT0}, {q4(vPk+4)}, {P(sWS)} offset:128 sc1
    L_noh2c:
    s_mov_b64 exec, -1
    s_cmp_lg_u32 s{sWAVE}, 0
    s_cbranch_scc1 L_kskip
    v_and_b32 v{vT0}, 2, v0
    v_cmp_eq_u32 vcc, 0, v{vT0}
    v_cndmask_b32 v{vM2}, 0, -1, vcc
    v_and_b32 v{vT0}, 1, v0
    v_cmp_eq_u32 vcc, 0, v{vT0}
    v_cndmask_b32 v{vM1}, 0, -1, vcc
    s_lshl_b32 s{sT0}, s{sG}, 11
    s_add_u32 s{sT0}, s{sT0}, {KEYS}
    v_lshl_add_u32 v{vT0}, v{vLANE}, 3, s{sT0}
    ''')
    poll('L_pollk', '\n'.join(f'global_load_dwordx2 {pr(vKs+2*r)}, v{vT0}, {P(sWS)} offset:{512*r} sc1' for r in range(4)),
         f'''v_xor_b32 v{vT1}, s{sTAG}, v{vKs+1}
         v_xor_b32 v{vT2}, s{sTAG}, v{vKs+3}
         v_xor_b32 v{vT3}, s{sTAG}, v{vKs+5}
         v_or3_b32 v{vT1}, v{vT1}, v{vT2}, v{vT3}
         v_xor_b32 v{vT2}, s{sTAG}, v{vKs+7}
         v_or_b32 v{vT1}, v{vT1}, v{vT2}
         v_cmp_ne_u32 vcc, 0, v{vT1}''')
    stamp('keysok')
    def sort8(regs, tmps):
        for x, t in zip(regs, tmps): A(f'v_max_u32_dpp v{t}, v{x}, v{x} row_shl:4 row_mask:0xf bank_mask:0x5')
        for x, t in zip(regs, tmps): A(f'v_min_u32_dpp v{t}, v{x}, v{x} row_shr:4 row_mask:0xf bank_mask:0xa')
        for x, t in zip(regs, tmps): A(f'v_mov_b32_dpp v{x}, v{t} quad_perm:[2,3,0,1] {DPPM}')
        for x, t in zip(regs, tmps): A(f'v_med3_u32 v{t}, v{t}, v{x}, v{vM2}')
        for x, t in zip(regs, tmps): A(f'v_mov_b32_dpp v{x}, v{t} quad_perm:[1,0,3,2] {DPPM}')
        for x, t in zip(regs, tmps): A(f'v_med3_u32 v{x}, v{t}, v{x}, v{vM1}')
    k0, k1, k2, k3 = vKs, vKs + 2, vKs + 4, vKs + 6
    t0, t1 = vKs + 1, vKs + 3
    A(f'v_max_u32_dpp v{k0}, v{k1}, v{k0} row_half_mirror {DPPM}')
    A(f'v_max_u32_dpp v{k2}, v{k3}, v{k2} row_half_mirror {DPPM}')
    sort8([k0, k2], [t0, t1])
    A(f'v_max_u32_dpp v{k0}, v{k2}, v{k0} row_half_mirror {DPPM}')
    sort8([k0], [t0])
    A(f'v_max_u32_dpp v{k0}, v{k0}, v{k0} row_mirror {DPPM}')
    sort8([k0], [t0])
    for sw in ('v_permlane16_swap_b32', 'v_permlane32_swap_b32'):
        A(f'v_mov_b32 v{t1}, v{k0}')
        A(f'{sw} v{t1}, v{k0}')
        A(f'v_max_u32_dpp v{k0}, v{k0}, v{t1} row_half_mirror {DPPM}')
        sort8([k0], [t0])
    A(f'''
    v_and_b32 v{vRow}, 0x7ff, v{k0}
    v_sub_u32 v{vRow}, 2047, v{vRow}
    v_lshlrev_b32 v{vT2}, 2, v{vLANE}
    ds_write_b32 v{vT2}, v{vRow} offset:{L_GP}
    s_lshl_b32 s{sT0}, s{sM}, 6
    v_subrev_u32 v{vT1}, s{sT0}, v{vRow}
    v_add_u32 v{vT3}, 1, v{vLANE}
    v_cmp_gt_u32 vcc, 64, v{vT1}
    v_lshlrev_b32 v{vT1}, 2, v{vT1}
    s_and_b64 exec, vcc, 0xff
    ds_write_b32 v{vT1}, v{vT3} offset:{L_ST}
    s_mov_b64 exec, -1
    s_waitcnt lgkmcnt(0)
    s_branch L_kjoin
    L_kskip:
    ''')
    outcalc()
    A(f'''
    L_kjoin:
    s_barrier
    ds_read_b32 v{vGR2}, v{vGA2} offset:{L_GP}
    ds_read_b32 v{vSLT}, v{vU+1} offset:{L_ST}
    s_cmp_ge_u32 s{sM}, {NS3}
    s_cbranch_scc1 L_nog1
    s_cmp_ge_u32 s{sWAVE}, 4
    s_cbranch_scc1 L_nog1
    s_waitcnt lgkmcnt(1)
    v_lshl_add_u32 v{vGA_}, v{vGR2}, 11, v{vGA_}
    global_load_dwordx4 {q4(vG)}, v{vGA_}, {P(sWS)} sc1
    L_nog1:
    ''')
    stamp('top8')
    def x1out():
        A(f'''
        s_waitcnt lgkmcnt(0)
        v_cmp_ne_u32 {P(sEX)}, 0, v{vSLT}
        v_lshl_add_u32 v{vT0}, v{vSLT}, 11, v{vHA}
        v_add_u32 v{vT0}, {X1P - H2P}, v{vT0}
        s_mov_b64 exec, {P(sEX)}
        s_cbranch_execz L_noh2
        global_store_dwordx4 v{vT0}, {q4(vPk+8)}, {P(sWS)} sc1
        global_store_dwordx4 v{vT0}, {q4(vPk+12)}, {P(sWS)} offset:128 sc1
        L_noh2:
        s_mov_b64 exec, -1
        s_cmp_lg_u32 s{sWAVE}, 0
        s_cbranch_scc1 L_noc
        ''')
        outcalc()
        A('L_noc:')
        outstore()
    if cfg.OUTPOS == 'top8': x1out()
    A(f'''
    s_cmp_ge_u32 s{sM}, {NS3}
    s_cbranch_scc1 L_tail
    ''')
    GS_ = 272
    A(f'''
    s_lshr_b32 s{sT0}, s{sM}, 2
    s_mul_i32 s{sT1}, s{sG}, 7
    s_add_u32 s{sT0}, s{sT0}, s{sT1}
    s_and_b32 s{sT1}, s{sM}, 3
    v_lshrrev_b32 v{vT1}, 4, v{vLANE}
    v_and_b32 v{vT2}, 7, v0
    v_lshrrev_b32 v{vT3}, 5, v{vLANE}
    s_mov_b32 s{sHM}, 0x00ff00ff
    s_mov_b32 s{sHM+1}, 0x00ff00ff
    s_and_b32 s{sT3}, s{sWAVE}, 3
    v_lshl_add_u32 v{vT3}, s{sT3}, 1, v{vT3}
    v_mul_u32_u24 v{vGW_}, {GS_}, v{vT3}
    v_bfe_u32 v{vT3}, v0, 4, 1
    v_lshl_add_u32 v{vGW_}, v{vT3}, 7, v{vGW_}
    v_lshl_add_u32 v{vGW_}, v{vT2}, 4, v{vGW_}
    v_bfe_u32 v{vT3}, v0, 3, 1
    v_lshl_add_u32 v{vGW_}, v{vT3}, 3, v{vGW_}
    v_add_u32 v{vGW_}, {L_G2 - (L_G2 % 1024)}, v{vGW_}
    v_mul_u32_u24 v{vGR_}, {GS_}, v{vT2}
    v_lshl_add_u32 v{vGR_}, v{vT1}, 4, v{vGR_}
    s_lshr_b32 s{sT3}, s{sWAVE}, 2
    s_lshl_b32 s{sT3}, s{sT3}, 7
    v_add_u32 v{vGR_}, s{sT3}, v{vGR_}
    ''')
    A(f'''
    s_mov_b64 exec, -1
    s_and_b32 s{sT2}, s{sWID}, 0xfc
    s_lshl_b32 s{sT2}, s{sT2}, 13
    s_add_u32 s{sT2}, s{sT2}, {XB1}
    s_lshl_b32 s{sT3}, s{sT1}, 3
    s_add_u32 s{sT3}, s{sT3}, s{sWAVE}
    s_lshl_b32 s{sT4}, s{sT1}, 13
    s_lshl_b32 s{sT5}, s{sWAVE}, {10 if cfg.GXE else 9}
    s_add_u32 s{sT4}, s{sT4}, s{sT5}
    s_add_u32 s{sT4}, s{sT4}, s{sT2}
    v_lshl_add_u32 v{vGS}, v{vT1}, 3, v{vT2}
    v_lshl_add_u32 v{vGS}, v{vGS}, 4, s{sT4}
    s_mul_i32 s{sT3}, s{sT3}, {NPROD*64}
    s_lshl_b32 s{sT4}, s{sT0}, 6
    s_add_u32 s{sT3}, s{sT3}, s{sT4}
    s_add_u32 s{sT3}, s{sT3}, {PART}
    v_mul_u32_u24 v{vPS}, {32*NPROD*64}, v{vT2}
    v_lshl_add_u32 v{vPS}, v{vT1}, 4, v{vPS}
    v_add_u32 v{vPS}, s{sT3}, v{vPS}
    s_lshr_b32 s{sT3}, s{sWAVE}, 2
    s_lshl_b32 s{sT3}, s{sT3}, {10 if cfg.GXE else 9}
    s_and_b32 s{sT4}, s{sWAVE}, 3
    s_lshl_b32 s{sT4}, s{sT4}, 7
    s_add_u32 s{sT3}, s{sT3}, s{sT4}
    s_add_u32 s{sT3}, s{sT3}, s{sT2}
    v_lshlrev_b32 v{vGL}, 13, v{vT1}
    v_bfe_u32 v{vT3}, v0, 3, 1
    v_lshl_add_u32 v{vGL}, v{vT3}, {11 if cfg.GXE else 10}, v{vGL}
    v_lshl_add_u32 v{vGL}, v{vT2}, 4, v{vGL}
    v_add_u32 v{vGL}, s{sT3}, v{vGL}
    v_add_u32 v{vGA2}, 4096, v{vGL}
    s_mov_b64 {P(sC0+4)}, -1
    s_mov_b64 {P(sC0+6)}, -1
    v_and_b32 v{vT0}, 3, v0
    v_bfe_u32 v{vT2}, v0, 2, 2
    v_lshl_add_u32 v{vT2}, v{vT1}, 3, v{vT2}
    v_lshlrev_b32 v{vT3}, 6, v{vT2}
    v_lshl_add_u32 v{vT3}, v{vT0}, 3, v{vT3}
    s_lshr_b32 s{sT0}, s{sWAVE}, 2
    s_lshl_b32 s{sT0}, s{sT0}, 12
    s_bfe_u32 s{sT1}, s{sWAVE}, 0x10001
    s_lshl_b32 s{sT1}, s{sT1}, 13
    s_add_u32 s{sT0}, s{sT0}, s{sT1}
    s_and_b32 s{sT1}, s{sWAVE}, 1
    s_lshl_b32 s{sT1}, s{sT1}, 5
    s_add_u32 s{sT0}, s{sT0}, s{sT1}
    s_add_u32 s{sT0}, s{sT0}, {L_WGU}
    v_add_u32 v{vT3}, s{sT0}, v{vT3}
    ''')
    for ks_ in range(2):
        for hh in range(2):
            A(f'ds_read_b64_tr_b16 {pr(vWf + 4*ks_ + 2*hh)}, v{vT3} offset:{2048*ks_ + 256*hh}')
    A(f'''
    v_lshlrev_b32 v{vT3}, 8, v{vT2}
    v_lshl_add_u32 v{vT3}, v{vT0}, 3, v{vT3}
    s_lshl_b32 s{sT0}, s{sWAVE}, 5
    s_add_u32 s{sT0}, s{sT0}, {L_WGU + 16384}
    v_add_u32 v{vT3}, s{sT0}, v{vT3}
    ds_read_b64_tr_b16 {pr(vWf + 8)}, v{vT3}
    ds_read_b64_tr_b16 {pr(vWf + 10)}, v{vT3} offset:1024
    v_and_b32 v{vT0}, 7, v0
    v_lshrrev_b32 v{vT1}, 5, v{vLANE}
    v_bfe_u32 v{vT2}, v0, 4, 1
    v_lshl_add_u32 v{vT1}, v{vT1}, 1, v{vT2}
    v_lshl_add_u32 v{vT1}, s{sWAVE}, 2, v{vT1}
    v_lshlrev_b32 v{vT1}, 1, v{vT1}
    v_lshl_add_u32 v{vT1}, v{vT0}, 6, v{vT1}
    v_lshrrev_b32 v{vT2}, 4, v{vLANE}
    v_lshlrev_b32 v{vT2}, 4, v{vT2}
    v_lshl_add_u32 v{vT2}, v{vT0}, 6, v{vT2}
    s_mov_b32 s{sT2}, 0x03020105
    s_mov_b32 s{sT3}, 0x03020106
    s_mov_b32 s{sT4}, 0x03020107
    s_mov_b32 s{sT0}, 0x0004000c
    s_mov_b32 s{sT1}, 0x0402010c
    s_mov_b64 {P(sC0)}, -1
    s_mov_b64 {P(sC0+2)}, -1
    ''')
    vDg = 182
    A(f'''
    s_cmp_ge_u32 s{sWAVE}, 4
    s_cbranch_scc1 L_gskip
    ''')
    gck = f'''v_xor_b32 v{vG+1}, s{sTAG}, v{vG+1}
         v_xor_b32 v{vG+3}, s{sTAG}, v{vG+3}
         v_or_b32 v{vG+1}, v{vG+1}, v{vG+3}
         v_cmp_ne_u32 vcc, 0, v{vG+1}'''
    A('s_waitcnt vmcnt(0)' if cfg.OUTPOS == 'end' else 's_waitcnt vmcnt(1)')
    A(gck)
    A('s_cbranch_vccnz L_pollg')
    A('L_pollg_back:')
    late.append(('L_pollg', lambda: (poll('L_pollgb', f'global_load_dwordx4 {q4(vG)}, v{vGA_}, {P(sWS)} sc1', gck), A('s_branch L_pollg_back'))))
    A(f'''
    ds_write2_b32 v{vGW_}, v{vG}, v{vG+2} offset0:{(L_G2 % 1024)//4} offset1:{(L_G2 % 1024)//4 + 1}
    L_gskip:
    s_waitcnt lgkmcnt(0)
    ''')
    stamp('gath')
    A(f'''
    s_barrier
    ds_read_b128 {q4(vG)}, v{vGR_} offset:{L_G2}
    ds_read_b128 {q4(vG+8)}, v{vGR_} offset:{L_G2 + 64}
    s_waitcnt lgkmcnt(1)
    v_mfma_f32_16x16x32_bf16 {q4(vDg)}, {q4(vWf)}, {q4(vG)}, 0
    s_waitcnt lgkmcnt(0)
    v_mfma_f32_16x16x32_bf16 {q4(vDg)}, {q4(vWf+4)}, {q4(vG+8)}, {q4(vDg)}
    ''')
    def pack24(y):
        for d in range(3): A(f'v_perm_b32 v{y+d}, v{y+3}, v{y+d}, s{sT2+d}')
        A(f'v_mov_b32 v{y+3}, s{sTAG}')
    vE = 166
    def unp24(us, a, b):
        for u in us: A(f'v_perm_b32 v{u+3}, v{u+1}, v{u}, s{a}')
        for u in us: A(f'v_perm_b32 v{u+3}, v{u+2}, v{u+3}, s{b}')
    y = vE
    if cfg.GXE:
        A(f'''
        v_mov_b32 v{vDg+7}, s{sTAG}
        v_mov_b32 v{vDg+4}, v{vDg+2}
        v_mov_b32 v{vDg+5}, v{vDg+3}
        v_mov_b32 v{vDg+3}, s{sTAG}
        s_mov_b64 exec, {P(sHM)}
        ''')
        lstore(f'''global_store_dwordx4 v{vGS}, {q4(vDg)}, {P(sWS)}
        global_store_dwordx4 v{vGS}, {q4(vDg+4)}, {P(sWS)} offset:512''')
        stamp('preB6')
        mpoll('L_pollx', [(f'global_load_dwordx4 {q4(vE+4*i)}, v{vGL if i < 2 else vGA2}, {P(sWS)} offset:{512*(i&1)} sc1', vE + 4*i + 3, sC0 + 2*i) for i in range(4)])
        stamp('B6')
        A(f'''
        v_pk_add_f32 {pr(y)}, {pr(y)}, {pr(y+8)}
        v_pk_add_f32 {pr(y+2)}, {pr(y+4)}, {pr(y+12)}
        ''')
    else:
        pack24(vDg)
        A(f's_mov_b64 exec, {P(sHM)}')
        lstore(f'global_store_dwordx4 v{vGS}, {q4(vDg)}, {P(sWS)}')
        stamp('preB6')
        mpoll('L_pollx', [(f'global_load_dwordx4 {q4(vE)}, v{vGL}, {P(sWS)} sc1', vE + 3, sC0),
                          (f'global_load_dwordx4 {q4(vE+4)}, v{vGL}, {P(sWS)} offset:2048 sc1', vE + 7, sC0 + 2)])
        stamp('B6')
        unp24([vE, vE + 4], sT0, sT1)
        A(f'''
        v_pk_add_f32 {pr(y)}, {pr(y)}, {pr(y+4)}
        v_pk_add_f32 {pr(y+2)}, {pr(y+2)}, {pr(y+6)}
        ''')
    A(f'''
    v_permlane32_swap_b32 v{y}, v{y+2}
    v_permlane32_swap_b32 v{y+1}, v{y+3}
    v_add_f32 v{y}, v{y}, v{y+2}
    v_add_f32 v{y+1}, v{y+1}, v{y+3}
    v_permlane16_swap_b32 v{y}, v{y+1}
    v_add_f32 v{y}, v{y}, v{y+1}
    v_cvt_pk_bf16_f32 v{y}, 0, v{y}
    v_mul_f32 v{y+2}, 0xbfb8aa3b, v{y}
    v_exp_f32 v{y+2}, v{y+2}
    v_mov_b32_dpp v{y+1}, v{y} row_ror:8 {DPPM}
    v_add_f32 v{y+2}, 1.0, v{y+2}
    v_rcp_f32 v{y+2}, v{y+2}
    v_mul_f32 v{y}, v{y}, v{y+2}
    v_cvt_pk_bf16_f32 v{y}, 0, v{y}
    v_mul_f32 v{y}, v{y}, v{y+1}
    v_cvt_pk_bf16_f32 v{y}, v{y}, v{y}
    s_mov_b64 exec, {P(sHM)}
    ds_write_b16 v{vT1}, v{y} offset:{L_GU}
    s_mov_b64 exec, -1
    s_waitcnt lgkmcnt(0)
    s_barrier
    ds_read_b128 {q4(vE)}, v{vT2} offset:{L_GU}
    s_waitcnt lgkmcnt(0)
    v_mfma_f32_16x16x32_bf16 {q4(vDg)}, {q4(vWf+8)}, {q4(vE)}, 0
    ''')
    stamp('B7')
    pack24(vDg)
    A(f's_mov_b64 exec, {P(sHM)}')
    A(f'global_store_dwordx4 v{vPS}, {q4(vDg)}, {P(sWS)} sc1')
    A('s_mov_b64 exec, -1')
    stamp('partst')
    A(f'''
    s_cmp_lg_u32 s{sWID}, 0
    s_cbranch_scc1 L_noep
    s_cmp_lg_u32 s{sWAVE}, 2
    s_cbranch_scc1 L_noep
    s_add_u32 s{sT0}, s{sEP}, 1
    v_mov_b32 v{vT2}, {EPOCH}
    v_mov_b32 v{vT3}, s{sT0}
    s_mov_b64 exec, 1
    global_store_dword v{vT2}, v{vT3}, {P(sWS)} sc1
    s_mov_b64 exec, -1
    L_noep:
    L_tail:
    ''')
    if cfg.OUTPOS == 'end': x1out()
    A(f'''
    s_cmp_lg_u32 s{sM}, {NS3}
    s_cbranch_scc1 L_red
    ''')
    vWr = 130
    vHr = 134
    vHs = 142
    vPu = 166
    vRr = 182
    A(f'''
    v_lshlrev_b32 v{vT1}, 4, v{vLANE}
    global_load_dwordx4 {q4(vWr)}, v{vT1}, {P(sWR)}
    s_lshl_b32 s{sT3}, s{sWAVE}, 2
    v_mov_b32 v{vT0}, s{sT3}
    ds_read_b32 v{vT0}, v{vT0} offset:{L_GP}
    v_lshrrev_b32 v{vT2}, 3, v{vLANE}
    v_and_b32 v{vT3}, 7, v0
    v_lshlrev_b32 v{vT3}, 4, v{vT3}
    v_lshl_add_u32 v{vT3}, v{vT2}, 8, v{vT3}
    v_add_u32 v{vT3}, {H2R}, v{vT3}
    s_waitcnt lgkmcnt(0)
    v_lshl_add_u32 v{vT3}, v{vT0}, 11, v{vT3}
    s_lshl_b32 s{sT0}, s{sG}, 7
    s_lshl_b32 s{sT1}, s{sWAVE}, 3
    s_add_u32 s{sT0}, s{sT0}, s{sT1}
    s_add_u32 s{sT0}, s{sT0}, {SEL}
    v_mov_b32 v{vT0}, s{sT0}
    ''')
    poll('L_pollr', f'''global_load_dwordx4 {q4(vHr)}, v{vT3}, {P(sWS)} sc1
         global_load_dwordx4 {q4(vHr+4)}, v{vT3}, {P(sWS)} offset:128 sc1''',
         f'''v_xor_b32 v{vHr+1}, s{sTAG}, v{vHr+1}
         v_xor_b32 v{vHr+3}, s{sTAG}, v{vHr+3}
         v_xor_b32 v{vHr+5}, s{sTAG}, v{vHr+5}
         v_xor_b32 v{vHr+7}, s{sTAG}, v{vHr+7}
         v_or3_b32 v{vHr+1}, v{vHr+1}, v{vHr+3}, v{vHr+5}
         v_or_b32 v{vHr+1}, v{vHr+1}, v{vHr+7}
         v_cmp_ne_u32 vcc, 0, v{vHr+1}''')
    A(f'v_mov_b32 v{vRr}, 0')
    for i in range(4): A(f'v_dot2_f32_bf16 v{vRr}, v{vHr+2*i}, v{vWr+i}, v{vRr}')
    fullred([vRr], [vRr + 1])
    rnd(vRr)
    A(f'''
    v_mul_f32 v{vRr}, 0xbfb8aa3b, v{vRr}
    v_exp_f32 v{vRr}, v{vRr}
    v_add_f32 v{vRr}, 1.0, v{vRr}
    v_rcp_f32 v{vRr}, v{vRr}
    v_cvt_pk_bf16_f32 v{vRr}, 0, v{vRr}
    v_mov_b32 v{vRr+1}, s{sTAG}
    s_mov_b64 exec, 1
    ''')
    lstore(f'global_store_dwordx2 v{vT0}, {pr(vRr)}, {P(sWS)}')
    A(f'''
    s_mov_b64 exec, -1
    L_red:
    s_cmp_lg_u32 s{sWAVE}, 1
    s_cbranch_scc1 L_outlate
    v_lshl_add_u32 v{vT0}, v{vLANE}, 4, s{sPT}
    v_mov_b32 v{vPu+12}, 0
    v_mov_b32 v{vPu+13}, 0
    v_mov_b32 v{vPu+14}, 0
    v_mov_b32 v{vPu+15}, s{sTAG}
    s_and_b32 s{sT0}, s{sM}, 3
    s_and_b32 s{sT1}, s{sM}, 28
    v_mov_b32 v{vT3}, s{sT1}
    ds_read_b32 v{vOR+4}, v{vT3} offset:{L_GP}
    s_lshl_b32 s{sT3}, s{sT1}, 9
    s_add_u32 s{sT3}, s{sT3}, {H2P}
    s_lshl_b32 s{sT1}, s{sT1}, 1
    s_lshl_b32 s{sT4}, s{sG}, 7
    s_add_u32 s{sT1}, s{sT1}, s{sT4}
    s_add_u32 s{sT1}, s{sT1}, {SEL}
    v_mov_b32 v{vOR+5}, s{sT1}
    v_and_b32 v{vT1}, 3, v0
    v_lshlrev_b32 v{vT1}, 2, v{vT1}
    v_lshrrev_b32 v{vT2}, 5, v{vLANE}
    v_lshl_add_u32 v{vT1}, v{vT2}, 1, v{vT1}
    v_bfe_u32 v{vT2}, v0, 4, 1
    s_lshl_b32 s{sT4}, s{sT0}, 4
    v_add_u32 v{vT1}, s{sT4}, v{vT1}
    v_add_u32 v{vT3}, v{vT1}, v{vT2}
    v_lshlrev_b32 v{vOR}, 2, v{vT3}
    ds_read_b32 v{vOR+1}, v{vOR} offset:{L_MOD + 5*256}
    v_lshrrev_b32 v{vOR}, 3, v{vT1}
    v_lshlrev_b32 v{vOR}, 4, v{vOR}
    v_bfe_u32 v{vOR+2}, v{vT1}, 2, 1
    v_lshl_add_u32 v{vOR}, v{vOR+2}, 7, v{vOR}
    v_bfe_u32 v{vOR+2}, v{vT1}, 1, 1
    v_lshl_add_u32 v{vOR}, v{vOR+2}, 3, v{vOR}
    s_lshl_b32 s{sT5}, s{sG}, 8
    s_add_u32 s{sT5}, s{sT5}, s{sT3}
    v_add_u32 v{vT1}, s{sT5}, v{vOR}
    v_add_u32 v{vOR+2}, {X1P - H2P}, v{vT1}
    s_lshl_b32 s{sT5}, s{sG}, 8
    s_add_u32 s{sT5}, s{sT5}, {H2R}
    v_add_u32 v{vT1}, s{sT5}, v{vOR}
    s_lshl_b32 s{sT4}, s{sG}, 7
    v_lshl_add_u32 v{vOR+3}, v{vT3}, 1, s{sT4}
    v_lshlrev_b32 v{vT2}, 4, v{vT2}
    v_sub_u32 v{vT2}, 16, v{vT2}
    s_mov_b32 s{sT2}, 0x0004000c
    s_mov_b32 s{sT3}, 0x0402010c
    s_waitcnt lgkmcnt(0)
    v_lshl_add_u32 v{vOR+3}, v{vOR+4}, 10, v{vOR+3}
    v_lshl_add_u32 v{vT1}, v{vOR+4}, 11, v{vT1}
    ''')
    poll('L_polls', f'''global_load_dwordx2 {pr(vHs)}, v{vT1}, {P(sWS)} sc1
         global_load_dwordx2 {pr(vHs+2)}, v{vOR+2}, {P(sWS)} sc1
         global_load_dwordx2 {pr(vRr)}, v{vOR+5}, {P(sWS)} sc1''',
         f'''v_xor_b32 v{vHs+1}, s{sTAG}, v{vHs+1}
         v_xor_b32 v{vHs+3}, s{sTAG}, v{vHs+3}
         v_xor_b32 v{vRr+1}, s{sTAG}, v{vRr+1}
         v_or3_b32 v{vHs+1}, v{vHs+1}, v{vHs+3}, v{vRr+1}
         v_cmp_ne_u32 vcc, 0, v{vHs+1}''')
    A(f'''
    v_lshlrev_b32 v{vHs}, v{vT2}, v{vHs}
    v_and_b32 v{vHs}, s{sMASK}, v{vHs}
    v_lshlrev_b32 v{vHs+2}, v{vT2}, v{vHs+2}
    v_and_b32 v{vHs+2}, s{sMASK}, v{vHs+2}
    ''')
    stamp('redpre')
    if cfg.REDSLP: A(f's_sleep {cfg.REDSLP}')
    for i in range(3): A(f's_mov_b64 {P(sC0+2*i)}, -1')
    A(f's_mov_b32 s{sC0+6}, -1'); A(f's_mov_b32 s{sC0+7}, 0')
    mpoll('L_pollp', [(f'global_load_dwordx4 {q4(vPu+4*i)}, v{vT0}, {P(sWS)} offset:{1024*i} sc1', vPu + 4*i + 3, sC0 + 2*i) for i in range(4)])
    stamp('partok')
    unp24([vPu + 4*i for i in range(4)], sT2, sT3)
    for (a, b) in ((0, 1), (2, 3), (0, 2)):
        for h in range(2): A(f'v_pk_add_f32 {pr(vPu+4*a+2*h)}, {pr(vPu+4*a+2*h)}, {pr(vPu+4*b+2*h)}')
    y = vPu
    A(f'''
    v_permlane32_swap_b32 v{y}, v{y+2}
    v_permlane32_swap_b32 v{y+1}, v{y+3}
    v_add_f32 v{y}, v{y}, v{y+2}
    v_add_f32 v{y+1}, v{y+1}, v{y+3}
    v_permlane16_swap_b32 v{y}, v{y+1}
    v_add_f32 v{y}, v{y}, v{y+1}
    v_add_f32_dpp v{y}, v{y}, v{y} row_ror:8 {DPPM}
    v_add_f32_dpp v{y}, v{y}, v{y} row_ror:4 {DPPM}
    v_cvt_pk_bf16_f32 v{y}, 0, v{y}
    v_mul_f32 v{y}, v{y}, v{vRr}
    v_cvt_pk_bf16_f32 v{y}, 0, v{y}
    v_add_f32 v{y}, v{y}, v{vHs}
    v_cvt_pk_bf16_f32 v{y}, 0, v{y}
    v_mul_f32 v{y}, v{y}, v{vOR+1}
    v_cvt_pk_bf16_f32 v{y}, 0, v{y}
    v_add_f32 v{y}, v{y}, v{vHs+2}
    v_cvt_pk_bf16_f32 v{y}, v{y}, v{y}
    s_mov_b32 s{sT0}, 0x000f000f
    s_mov_b32 s{sT1}, 0x000f000f
    s_mov_b64 exec, {P(sT0)}
    global_store_short v{vOR+3}, v{y}, {P(sOUT)} {cfg.OUT_FL}
    s_mov_b64 exec, -1
    ''')
    A('L_outlate:')
    A('L_fin:')
    if cfg.DBL:
        A(f'''
        s_waitcnt vmcnt(0)
        s_memrealtime s[78:79]
        s_waitcnt lgkmcnt(0)
        s_sub_u32 s{sT0}, s{82 if cfg.DSITE else 78}, s74
        s_add_u32 s{sT0}, s{sT0}, s78
        s_cmp_lg_u32 s{sWAVE}, 1
        s_cbranch_scc1 L_end
        L_dbl:
        s_memrealtime s[80:81]
        s_waitcnt lgkmcnt(0)
        s_sub_u32 s{sT1}, s80, s{sT0}
        s_cmp_lt_i32 s{sT1}, 0
        s_cbranch_scc1 L_dbl
        ''')
    if cfg.DBGT:
        A(f'''
        s_memrealtime s[78:79]
        s_memtime s[80:81]
        s_cmp_lg_u32 s{sWAVE}, 0
        s_cbranch_scc1 L_end
        s_and_b32 s{sT0}, s{sWID}, 0x3f
        s_cmp_lg_u32 s{sT0}, 28
        s_cbranch_scc1 L_end
        s_waitcnt lgkmcnt(0)
        s_sub_u32 s{sT0}, s78, s74
        s_sub_u32 s{sT1}, s80, s76
        v_mov_b32 v4, s{sT0}
        v_mov_b32 v5, s{sT1}
        v_mov_b32 v6, s74
        v_mov_b32 v7, s78
        s_lshr_b32 s{sT0}, s{sWID}, 6
        s_lshl_b32 s{sT0}, s{sT0}, 4
        v_mov_b32 v8, s{sT0}
        s_mov_b64 exec, 1
        global_store_dwordx4 v8, v[4:7], {P(sDBG)}
        ''')
    if cfg.STAMP:
        A(f's_memtime s[{sST+2*nst[0]}:{sST+2*nst[0]+1}]'); nst[0] += 1
        if cfg.RTEND:
            A('s_waitcnt vmcnt(0)' if cfg.RTEND == 2 else 's_nop 0')
            A(f's_memrealtime s[{sST+2*nst[0]}:{sST+2*nst[0]+1}]'); nst[0] += 1
        A(f'''
        s_waitcnt lgkmcnt(0)
        s_lshl_b32 s{sT0}, s{sWID}, 3
        s_add_u32 s{sT0}, s{sT0}, s{sWAVE}
        s_lshl_b32 s{sT0}, s{sT0}, 7
        s_add_u32 s{sT0}, s{sT0}, {STAMPS}
        v_mov_b32 v{vT0}, s{sT0}
        s_mov_b64 exec, 1
        ''')
        for i in range(nst[0]):
            A(f'v_mov_b32 v{vT1}, s{sST+2*i}')
            A(f'global_store_dword v{vT0}, v{vT1}, {P(sWS)} offset:{4*i}')
        A(f'v_mov_b32 v{vT1}, s{sCNT}')
        A(f'global_store_dword v{vT0}, v{vT1}, {P(sWS)} offset:120')
        A(f'v_mov_b32 v{vT1}, s{sMODE}')
        A(f'global_store_dword v{vT0}, v{vT1}, {P(sWS)} offset:124')
    A('L_end:')
    A('s_endpgm')
    for k, t in slow:
        A(f'L_slow{k}:'); A('s_nop 4'); A(t); A('s_nop 1'); A(f's_branch L_back{k}')
    A('L_modeslow:')
    A(f'''
    s_mov_b32 s{sT4}, 64
    L_moderetry:
    global_load_dword v{vMT}, v{vPT}, {P(sWS)} sc1
    s_waitcnt vmcnt(0)
    s_mov_b32 s{sMODE}, {0 if cfg.FORCE_SLOW else 1}
    v_cmp_ne_u32 vcc, s{sXCC}, v{vMT}
    s_cbranch_vccz L_modeback
    s_mov_b32 s{sMODE}, 0
    v_subrev_u32 v{vMT+1}, s{sTAG}, v{vMT}
    v_subrev_u32 v{vMT+1}, 1, v{vMT+1}
    v_cmp_lt_u32 vcc, 15, v{vMT+1}
    s_cbranch_vccz L_modeback
    s_sub_u32 s{sT4}, s{sT4}, 1
    s_cbranch_scc0 L_moderetry
    s_branch L_modeback
    ''')
    for name, fn in late:
        A(name + ':'); fn()
    A('L_codeend:')
    return A

HEAD = open('adaLN_cond__ssm_conv_h3__moe_arch_mod__prompt.s.ref').read().split('; Override launch')[0]
def emit(path):
    A = build()
    s = HEAD + f'; @launch grid=(256,1,1) block=(512,1,1) lds={LDS_BYTES}\n'
    s += f'''.amdgcn_target "amdgcn-amd-amdhsa--gfx950"
.text
.globl {KNAME}
.p2align 8
.type {KNAME},@function
{KNAME}:
'''
    s += A.text()
    s += f'''.section .rodata,"a"
.p2align 6
.amdhsa_kernel {KNAME}
  .amdhsa_next_free_vgpr 248
  .amdhsa_next_free_sgpr 102
  .amdhsa_accum_offset 248
  .amdhsa_group_segment_fixed_size 0
  .amdhsa_kernarg_size 128
  .amdhsa_user_sgpr_count 2
  .amdhsa_user_sgpr_kernarg_segment_ptr 1
  .amdhsa_system_sgpr_workgroup_id_x 1
.end_amdhsa_kernel
'''
    open(path, 'w').write(s)
    return A

if __name__ == '__main__':
    out = sys.argv[1]
    for a in sys.argv[2:]:
        k, v = a.split('=')
        setattr(cfg, k, eval(v))
    A = emit(out)
    if cfg.STAMP: open(out + '.sites', 'w').write(' '.join(cfg.ORDER + ['end']))
    print('emitted', out, 'lines', len(A.out), 'pads', A.npad)
```

```python
import sys
from asmdsl import Asm

class Cfg:
    STAMP = False
    STOP = 99
    WS_BASE = 0
    WBL2 = False
    OUT_FL = ''
    POLL_CAP = 1000000
    FORCE_SLOW = False
    SEC = 'bar'
    WPOS = 'key'
    X3ACK = True
    GLOW = True
    ALIGN = False
    GXE = True
    RTEND = 0
    TLBW = False
    FPOS = 'k'
    X3SLP = 14
    DSITE = ''
    GPOS = 's1'
    X1PT = False
    GLOOP = 0
    PRIO = 3
    OUTPOS = 'top8'
    H2PT = False
    GSLP = 0
    HSLP = 16
    NOOUT = False
    REDSLP = 0
    WAFTER = True
    WDPOS = 's1'
    DBL = False
    DBGT = False
    NT = ''
    WPF = True
    PARTPT = False
    SITES = ()
    ORDER = []
cfg = Cfg()

KNAME = "adaLN_cond__ssm_conv_h3__moe_arch_mod__prompt_kernel"
EPOCH = 0; FL1 = 0x10000; FL2 = 0x12000; FLM = 0x14000; MTAB = 0x16000; KEYS = 0x18000; SEL = 0x1C000
XC = 0x20000; H2P = 0x28000; X1P = 0x2C000; MODP = 0x40000; PART = 0x80000
H2R = 0x800000; XB1 = 0x200000; X0 = 0x600000; X3 = 0xC00000; XS_ = 14; GXB = 0; STAMPS = 0x2000000
NS3 = 28
NPROD = 56
NG0 = 8
USTR = 4160; UCH = 8 * USTR
L_MOD = 0
L_KEY = 2048
L_GP = 4096
L_CNT = 3328
L_ST = 3584
L_KVR = 8192; KVS = 4608
L_P = L_KVR + 2 * KVS
L_T = L_P; TS = 272
L_KD = L_P + 32768
L_U = L_KD + 8192
L_WGU = L_U + 2 * UCH
L_XS = L_WGU + 24576
L_END = L_WGU + 32768
L_Z = L_U
L_WD = L_U + 8192
L_G2 = L_P
L_GU = L_P + 8192
LDS_BYTES = 158720
assert L_END <= LDS_BYTES

sX, sK, sV, sSK, sF, sD, sWR = 4, 6, 8, 10, 12, 14, 18
sWG, sWU, sWD, sC, sWM, sOUT, sDBG, sWS = 20, 22, 24, 26, 28, 30, 32, 34
sG, sM, sWAVE, sTAG, sMODE, sXCC, sCNT, sTILE = 36, 37, 38, 39, 40, 41, 42, 43
sKSRD = 44
sFSRD = 48
sMASK = 52
sWID = 53
sEP = 54
sDV = 55
sT0, sT1, sT2, sT3, sT4, sT5 = 56, 57, 58, 59, 60, 61
sEX = 62
sC0 = 44
sWSR = 64
sOUTR = 68
sD0, sD1 = 72, 73
sPEND, sPT = 16, 17
sHM = 10
sST = 74
def P(s): return f's[{s}:{s+1}]'

import re
def to_buffer(line):
    for base, srd in ((sWS, sWSR), (sOUT, sOUTR)):
        b = re.escape(P(base)); R = f's[{srd}:{srd+3}]'
        m = re.match(rf'^\s*global_load_lds_(\w+) (v\d+), {b}(.*)$', line)
        if m: return f'buffer_load_{m.group(1)} {m.group(2)}, {R}, 0 offen{m.group(3)} lds'
        m = re.match(rf'^\s*global_load_(\w+) (v\S+), (v\d+), {b}(.*)$', line)
        if m: return f'buffer_load_{m.group(1)} {m.group(2)}, {m.group(3)}, {R}, 0 offen{m.group(4)}'
        m = re.match(rf'^\s*global_store_(\w+) (v\d+), (v\S+), {b}(.*)$', line)
        if m: return f'buffer_store_{m.group(1)} {m.group(3)}, {m.group(2)}, {R}, 0 offen{m.group(4)}'
    return line
def add_nt(line):
    if not cfg.NT: return line
    l = line.strip()
    if l.startswith('global_load') and any(P(b) in l for b in (sX, sK, sV, sWM, sWD, 12)) and 'sc1' not in l: return l + ' ' + cfg.NT
    if l.startswith('buffer_load') and (f's[{sKSRD}:{sKSRD+3}]' in l or f's[{sFSRD}:{sFSRD+3}]' in l): return l + ' ' + cfg.NT
    return line
class BAsm(Asm):
    def __call__(self, text):
        super().__call__('\n'.join(to_buffer(add_nt(l)) for l in text.strip().split('\n')))
def build():
    A = BAsm()
    if cfg.GLOW:
        GSKIP = f's_cmp_ge_u32 s{sM}, 24'; GTAU_CL = f's_min_u32 s{sT0}, s{sM}, 23'; GTAU = f's_mov_b32 s{sT0}, s{sM}'
    else:
        GSKIP = f's_cmp_lt_u32 s{sM}, {NG0}'; GTAU_CL = f's_max_u32 s{sT0}, s{sM}, {NG0}\n    s_sub_u32 s{sT0}, s{sT0}, {NG0}'; GTAU = f's_sub_u32 s{sT0}, s{sM}, {NG0}'
    slow = []
    late = []
    nst = [0]
    site = [0]
    def stamp(name=''):
        if cfg.DSITE == name:
            A('s_memrealtime s[82:83]')
            if name in ('B2', 'B3b'): A('s_waitcnt lgkmcnt(0)')
        if cfg.STAMP and (name in cfg.SITES or name == 'start'):
            assert sST + 2 * nst[0] + 3 <= 101
            A(f's_memtime s[{sST+2*nst[0]}:{sST+2*nst[0]+1}]'); nst[0] += 1
            cfg.ORDER.append(name)
            if name in ('B2', 'B3b'): A('s_waitcnt lgkmcnt(0)')
    uid = [0]
    def lstore(text):
        uid[0] += 1; k = uid[0]
        A(f's_cmp_eq_u32 s{sMODE}, 1')
        A(f's_cbranch_scc0 L_slow{k}')
        A(text)
        A(f'L_back{k}:')
        slow.append((k, '\n'.join(l + ' sc1' for l in text.strip().split('\n'))))
    def poll(name, loads, check, slp=0):
        A(f'{name}:')
        if slp: A(f's_sleep {slp}')
        A(loads)
        A('s_waitcnt vmcnt(0)')
        A(check)
        A(f's_sub_u32 s{sCNT}, s{sCNT}, 1')
        A('s_cselect_b64 vcc, 0, vcc')
        A(f's_cselect_b32 s{sCNT}, 0, s{sCNT}')
        A(f's_cbranch_vccnz {name}')
    def mpoll(name, items):
        A(f'{name}:')
        for k, (ld, tr, mk) in enumerate(items):
            A(f's_mov_b64 exec, {P(mk)}')
            A(f's_cbranch_execz {name}_s{k}')
            A(ld)
            A(f'{name}_s{k}:')
        A('s_mov_b64 exec, -1')
        A('s_waitcnt vmcnt(0)')
        for (ld, tr, mk) in items:
            if isinstance(tr, int): A(f'v_cmp_ne_u32 {P(mk)}, s{sTAG}, v{tr}')
            else: A(tr[0]); A(f'v_cmp_ne_u32 {P(mk)}, 0, v{tr[1]}')
        A(f's_or_b64 vcc, {P(items[0][2])}, {P(items[1][2])}')
        for (ld, tr, mk) in items[2:]: A(f's_or_b64 vcc, vcc, {P(mk)}')
        A(f's_sub_u32 s{sCNT}, s{sCNT}, 1')
        A('s_cselect_b64 vcc, 0, vcc')
        A(f's_cselect_b32 s{sCNT}, 0, s{sCNT}')
        A(f's_cbranch_vccnz {name}')
    def unpack(d, s):
        A(f'v_lshlrev_b32 v{d}, 16, v{s}')
        A(f'v_and_b32 v{d+1}, s{sMASK}, v{s}')
    def rnd(d, s=None):
        A(f'v_cvt_pk_bf16_f32 v{d}, 0, v{d if s is None else s}')
    def pr(r): return f'v[{r}:{r+1}]'
    def q4(r): return f'v[{r}:{r+3}]'
    DPPM = 'row_mask:0xf bank_mask:0xf'
    def allred(regs, tmps, add='v_add_f32'):
        for r in regs: A(f'{add}_dpp v{r}, v{r}, v{r} row_ror:8 {DPPM}')
        for sw in ('v_permlane16_swap_b32', 'v_permlane32_swap_b32'):
            for r, t in zip(regs, tmps): A(f'v_mov_b32 v{t}, v{r}')
            for r, t in zip(regs, tmps): A(f'{sw} v{t}, v{r}')
            for r, t in zip(regs, tmps): A(f'{add} v{r}, v{r}, v{t}')
    def fullred(regs, tmps, add='v_add_f32'):
        for pat in ('quad_perm:[1,0,3,2]', 'quad_perm:[2,3,0,1]', 'row_half_mirror'):
            for r in regs: A(f'{add}_dpp v{r}, v{r}, v{r} {pat} {DPPM}')
        allred(regs, tmps, add)
    def lnstats(S, Q, t0, mean_out, inv_out):
        A(f'v_mul_f32 v{S}, 0x3b000000, v{S}')
        A(f'v_mul_f32 v{Q}, 0x3b000000, v{Q}')
        A(f'v_fma_f32 v{t0}, -v{S}, v{S}, v{Q}')
        A(f'v_max_f32 v{t0}, 0, v{t0}')
        rnd(mean_out, S)
        rnd(t0)
        A(f'v_add_f32 v{t0}, 0x3727c5ac, v{t0}')
        rnd(t0)
        A(f'v_sqrt_f32 v{t0}, v{t0}')
        rnd(t0)
        A(f'v_rcp_f32 v{inv_out}, v{t0}')

    A(f'''
    s_cmp_ge_u32 s2, 256
    s_cbranch_scc1 L_end
    s_load_dwordx16 s[4:19], s[0:1], 0
    s_load_dwordx16 s[20:35], s[0:1], 64
    ''')
    if cfg.STAMP:
        A(f's_memrealtime s[{sST}:{sST+1}]'); nst[0] += 1
    if cfg.DBGT or cfg.DBL:
        A('s_memrealtime s[74:75]'); A('s_memtime s[76:77]')
    stamp('start')
    vLANE, vTID = 1, 0
    vA, vB, vT0, vT1, vT2, vT3 = 2, 3, 4, 5, 6, 7
    vPA = 9
    vJR = 8
    vX = 10
    vKr = 14
    vVr = 21
    vSk = 26
    vFl = 30
    vMT = 38
    vGW = 110
    vGC = 44
    vPT = 40
    A(f'''
    s_getreg_b32 s{sXCC}, hwreg(HW_REG_XCC_ID)
    s_and_b32 s{sG}, s2, 7
    s_lshr_b32 s{sM}, s2, 3
    v_lshrrev_b32 v{vT0}, 6, v0
    v_and_b32 v{vLANE}, 63, v0
    v_readfirstlane_b32 s{sWAVE}, v{vT0}
    s_and_b32 s{sXCC}, s{sXCC}, 15
    s_mov_b32 s{sMASK}, 0xffff0000
    s_mov_b32 s{sCNT}, {cfg.POLL_CAP}
    s_lshl_b32 s{sT0}, s{sM}, 16
    s_lshl_b32 s{sT1}, s{sG}, 7
    s_add_u32 s{sTILE}, s{sT0}, s{sT1}
    s_lshl_b32 s{sWID}, s{sG}, 5
    s_add_u32 s{sWID}, s{sWID}, s{sM}
    v_and_b32 v{vT0}, 31, v0
    v_lshrrev_b32 v{vT1}, 5, v0
    v_lshlrev_b32 v{vA}, 12, v{vT1}
    v_lshl_add_u32 v{vA}, v{vT0}, 2, v{vA}
    v_add_u32 v{vA}, s{sTILE}, v{vA}
    v_subrev_u32 v{vB}, 0xc00, v{vA}
    v_bfrev_b32 v{vT2}, 1
    v_cmp_gt_u32 vcc, 0xc00, v{vA}
    v_cndmask_b32 v{vB}, v{vB}, v{vT2}, vcc
    v_lshl_add_u32 v{vT2}, v{vT0}, 4, s{sT1}
    v_lshl_add_u32 v{vT2}, s{sT1}, 1, v{vT2}
    v_add_u32 v{vT2}, s{sT1}, v{vT2}
    ''')
    A(f'''
    s_add_u32 s{sT3}, s{sXCC}, 1
    v_mov_b32 v{vPT}, s{sWID}
    v_mov_b32 v{vPT+1}, s{sT3}
    s_lshl_b32 s{sT4}, s{sG}, 7
    s_lshl_b32 s{sT5}, s{sM}, 2
    s_add_u32 s{sT4}, s{sT4}, s{sT5}
    v_lshlrev_b32 v{vT0}, 4, v0
    v_subrev_u32 v{vT1}, 16, v{vT0}
    v_and_b32 v{vT3}, 255, v0
    v_cmp_eq_u32 vcc, 0, v{vT3}
    v_bfrev_b32 v{vT3}, 1
    v_cndmask_b32 v{vT1}, v{vT1}, v{vT3}, vcc
    s_lshl_b32 s{sT0}, s{sWID}, 13
    s_waitcnt lgkmcnt(0)
    s_load_dword s{sEP}, {P(sWS)}, {EPOCH + cfg.WS_BASE}
    global_load_dwordx4 {q4(vSk)}, v{vT2}, {P(sSK)}
    ''')
    for i in range(4): A(f'global_load_dword v{vKr+3+i}, v{vA}, {P(sK)} offset:{1024*i}')
    A(f'''
    s_mov_b32 s{sKSRD}, s{sK}
    s_mov_b32 s{sKSRD+1}, s{sK+1}
    s_mov_b32 s{sKSRD+2}, 0x200000
    s_mov_b32 s{sKSRD+3}, 0x20000
    s_mov_b32 exec_hi, 0
    ''')
    for i in range(3): A(f'buffer_load_dword v{vKr+i}, v{vB}, s[{sKSRD}:{sKSRD+3}], 0 offen offset:{1024*i}')
    A('s_mov_b64 exec, -1')
    for i in range(4): A(f'global_load_dword v{vVr+i}, v{vA}, {P(sV)} offset:{1024*i}')
    A(f'''
    s_add_u32 s{sWS}, s{sWS}, {cfg.WS_BASE}
    s_addc_u32 s{sWS+1}, s{sWS+1}, 0
    s_mov_b32 s{sWSR}, s{sWS}
    s_mov_b32 s{sWSR+1}, s{sWS+1}
    s_mov_b32 s{sWSR+2}, 0x4000000
    s_mov_b32 s{sWSR+3}, 0x20000
    s_mov_b32 s{sOUTR}, s{sOUT}
    s_mov_b32 s{sOUTR+1}, s{sOUT+1}
    s_mov_b32 s{sOUTR+2}, 0x200000
    s_mov_b32 s{sOUTR+3}, 0x20000
    s_add_u32 s{sFSRD}, s{sF}, s{sT0}
    s_addc_u32 s{sFSRD+1}, s{sF+1}, 0
    s_mov_b32 s{sFSRD+2}, 8192
    s_mov_b32 s{sFSRD+3}, 0x20000
    s_load_dword s{sDV}, {P(sD)}, s{sT4}
    ''')
    A(f'''
    s_cmp_lg_u32 s{sWAVE}, 7
    s_cbranch_scc1 L_nopt
    s_lshr_b32 s{sT0}, s{sM}, 2
    s_lshl_b32 s{sT0}, s{sT0}, 7
    s_lshl_b32 s{sT1}, s{sG}, 10
    s_add_u32 s{sT0}, s{sT0}, s{sT1}
    s_add_u32 s{sT1}, s{sT0}, {FL1}
    v_mov_b32 v{vPT+2}, s{sT1}
    s_add_u32 s{sT1}, s{sT0}, {FL2}
    v_writelane_b32 v{vPT+2}, s{sT1}, 2
    v_writelane_b32 v{vPT+2}, s{sT1}, 3
    s_lshl_b32 s{sT0}, s{sG}, 7
    s_add_u32 s{sT1}, s{sT0}, {FLM}
    v_writelane_b32 v{vPT+2}, s{sT1}, 4
    v_writelane_b32 v{vPT+2}, s{sT1}, 5
    s_add_u32 s{sT1}, s{sT0}, {SEL}
    v_writelane_b32 v{vPT+2}, s{sT1}, 6
    v_writelane_b32 v{vPT+2}, s{sT1}, 7
    s_lshl_b32 s{sT0}, s{sWID}, 6
    s_and_b32 s{sT0}, s{sT0}, 0xffffff80
    s_add_u32 s{sT1}, s{sT0}, {KEYS}
    v_writelane_b32 v{vPT+2}, s{sT1}, 8
    v_writelane_b32 v{vPT+2}, s{sT1}, 9
    v_and_b32 v{vPT+3}, 1, v0
    v_lshl_add_u32 v{vPT+2}, v{vPT+3}, 6, v{vPT+2}
    s_lshl_b32 s{sT0}, s{sWID}, 9
    s_add_u32 s{sT1}, s{sT0}, {MODP - 32*64}
    v_lshl_add_u32 v{vPT+3}, v{vLANE}, 6, s{sT1}
    v_cmp_lt_u32 vcc, 31, v{vLANE}
    v_cndmask_b32 v{vPT+2}, v{vPT+2}, v{vPT+3}, vcc
    s_lshl_b32 s{sT0}, s{sM}, 9
    s_add_u32 s{sT1}, s{sT0}, {H2P - 40*64}
    v_lshl_add_u32 v{vPT+3}, v{vLANE}, 6, s{sT1}
    v_cmp_lt_u32 vcc, 39, v{vLANE}
    v_cndmask_b32 v{vPT+2}, v{vPT+2}, v{vPT+3}, vcc
    s_mov_b32 exec_lo, 0x3ff
    s_mov_b32 exec_hi, {'0xffff' if cfg.H2PT else '0xff'}
    global_load_dword v{vPT+3}, v{vPT+2}, {P(sWS)} sc1
    s_mov_b64 exec, 0xffff
    s_getpc_b64 {P(sT0)}
    L_pc:
    s_lshl_b32 s{sT2}, s{sM}, 10
    v_lshl_add_u32 v{vPT+2}, v{vLANE}, 6, s{sT2}
    v_min_u32 v{vPT+2}, L_codeend-L_pc-4, v{vPT+2}
    global_load_dword v{vPT+3}, v{vPT+2}, {P(sT0)}
    s_mov_b64 exec, -1
    L_nopt:
    ''')
    if cfg.TLBW:
        tl = [(sWS, X0), (sWS, X3), (sOUT, 0), (sX, 0), (sWM, 0), (sWM, 0x200000), (sWG, 0), (sWU, 0), (sWD, 0), (sWS, XB1)]
        A(f'''
        s_cmp_lg_u32 s{sWAVE}, 6
        s_cbranch_scc1 L_notl
        s_lshl_b32 s{sT2}, s{sWID}, 12
        ''')
        for i, (b, off) in enumerate(tl):
            A(f's_add_u32 s{sT0}, s{b}, s{sT2}')
            A(f's_addc_u32 s{sT1}, s{b+1}, 0')
            if off:
                A(f's_add_u32 s{sT0}, s{sT0}, {off}')
                A(f's_addc_u32 s{sT1}, s{sT1}, 0')
            if i == 0:
                A(f'v_mov_b32 v{vPT+2}, s{sT0}'); A(f'v_mov_b32 v{vPT+3}, s{sT1}')
            else:
                A(f'v_writelane_b32 v{vPT+2}, s{sT0}, {i}'); A(f'v_writelane_b32 v{vPT+3}, s{sT1}, {i}')
        A(f'''
        s_mov_b64 exec, {(1 << len(tl)) - 1}
        global_load_dword v{vMT+1}, {pr(vPT+2)}, off
        s_mov_b64 exec, -1
        L_notl:
        ''')
    A(f'''
    v_mov_b32 v{vPT}, {L_CNT}
    v_mov_b32 v{vPT+1}, 0
    ds_write_b32 v{vPT}, v{vPT+1}
    v_and_b32 v{vT2}, 7, v0
    v_lshl_add_u32 v{vT2}, s{sWAVE}, 3, v{vT2}
    v_lshlrev_b32 v{vT2}, 10, v{vT2}
    v_lshrrev_b32 v{vT3}, 3, v{vLANE}
    v_lshl_add_u32 v{vJR}, v{vT3}, 4, v{vT2}
    v_add_u32 v{vJR}, s{sTILE}, v{vJR}
    s_barrier
    ''')
    def fload():
        A(f'''
        buffer_load_dwordx4 {q4(vFl+4)}, v{vT0}, s[{sFSRD}:{sFSRD+3}], 0 offen
        s_mov_b64 exec, 1
        buffer_load_dwordx4 {q4(vFl)}, v{vT1}, s[{sFSRD}:{sFSRD+3}], 0 offen
        s_mov_b64 exec, -1
        ''')
    if cfg.FPOS == 'bar': fload()
    A(f'''
    s_and_b32 s{sT0}, s{sM}, 3
    s_lshl_b32 s{sT0}, s{sT0}, 8
    s_and_b32 s{sT1}, s{sWAVE}, 3
    s_lshl_b32 s{sT1}, s{sT1}, 6
    s_add_u32 s{sT0}, s{sT0}, s{sT1}
    v_and_b32 v{vT2}, 0x38, v0
    v_add_u32 v{vT2}, s{sT0}, v{vT2}
    global_load_dwordx2 {pr(vGC)}, v{vT2}, {P(sC)}
    s_lshl_b32 s{sT0}, s{sG}, 9
    s_add_u32 s{sT0}, s{sT0}, {MTAB}
    v_and_b32 v{vPT}, 31, v0
    v_lshl_add_u32 v{vPT}, v{vPT}, 4, s{sT0}
    s_lshl_b32 s{sT1}, s{sM}, 4
    s_add_u32 s{sT0}, s{sT0}, s{sT1}
    v_mov_b32 v{vPT+1}, s{sT0}
    s_waitcnt lgkmcnt(0)
    s_mul_i32 s{sTAG}, s{sEP}, 0x9E3779B1
    s_add_u32 s{sTAG}, s{sTAG}, 0x7F4A7C15
    s_add_u32 s{sXCC}, s{sXCC}, s{sTAG}
    s_add_u32 s{sXCC}, s{sXCC}, 1
    v_mov_b32 v{vPT+2}, s{sXCC}
    s_cmp_lg_u32 s{sWAVE}, 0
    s_cbranch_scc1 L_nomode
    s_mov_b64 exec, 1
    global_store_dword v{vPT+1}, v{vPT+2}, {P(sWS)} sc1
    s_mov_b64 exec, -1
    L_nomode:
    ''')
    stamp('issued')
    A(f's_mov_b32 s{sPEND}, 0')
    vX1A, vUA, vTW, vTR = 96, 97, 98, 99
    vP1 = 100
    A(f'''
    v_and_b32 v{vT2}, 31, v0
    v_lshrrev_b32 v{vT3}, 5, v0
    v_mul_u32_u24 v{vTW}, {TS}, v{vT2}
    v_lshlrev_b32 v{vT3}, 3, v{vT3}
    v_sub_u32 v{vTW}, v{vTW}, v{vT3}
    v_add_u32 v{vTW}, {L_T + 120}, v{vTW}
    v_lshrrev_b32 v{vX1A}, 4, v0
    v_mul_u32_u24 v{vTR}, {TS}, v{vX1A}
    v_and_b32 v{vT3}, 15, v0
    v_lshl_add_u32 v{vTR}, v{vT3}, 3, v{vTR}
    v_lshlrev_b32 v{vX1A}, 14, v{vX1A}
    v_lshl_add_u32 v{vX1A}, v{vT3}, 4, v{vX1A}
    s_lshl_b32 s{sT0}, s{sG}, 19
    s_sub_u32 s{sT1}, 31, s{sM}
    s_lshl_b32 s{sT1}, s{sT1}, 8
    s_add_u32 s{sT0}, s{sT0}, s{sT1}
    s_add_u32 s{sT0}, s{sT0}, {XB1}
    v_add_u32 v{vX1A}, s{sT0}, v{vX1A}
    v_add_u32 v{vSk-1}, 8192, v{vX1A}
    s_lshl_b32 s{sT0}, s{sG}, 10
    s_lshl_b32 s{sT1}, s{sWAVE}, 7
    s_add_u32 s{sT0}, s{sT0}, s{sT1}
    s_lshl_b32 s{sT1}, s{sM}, 2
    s_add_u32 s{sT0}, s{sT0}, s{sT1}
    v_mov_b32 v{vA}, s{sT0}
    v_mov_b32 v{vB}, s{sTAG}
    v_lshrrev_b32 v{vUA}, 8, v0
    v_mul_u32_u24 v{vUA}, {UCH}, v{vUA}
    v_and_b32 v{vT3}, 255, v0
    v_lshl_add_u32 v{vUA}, v{vT3}, 4, v{vUA}
    v_add_u32 v{vUA}, {L_U}, v{vUA}
    s_lshr_b32 s{sT2}, s{sM}, 2
    s_lshl_b32 s{sT2}, s{sT2}, 7
    s_lshl_b32 s{sT1}, s{sG}, 10
    s_add_u32 s{sT2}, s{sT2}, s{sT1}
    s_add_u32 s{sT2}, s{sT2}, {FL1 + 112}
    s_lshl_b32 s{sT1}, s{sWAVE}, 4
    s_sub_u32 s{sT2}, s{sT2}, s{sT1}
    v_and_b32 v{vP1}, 3, v0
    v_lshl_add_u32 v{vP1}, v{vP1}, 2, s{sT2}
    s_lshl_b32 s{sT0}, s{sWID}, 14
    s_add_u32 s{sT0}, s{sT0}, {XB1}
    v_lshl_add_u32 v{vP1+1}, v0, 4, s{sT0}
    v_add_u32 v{vP1+2}, 8192, v{vP1+1}
    v_lshlrev_b32 v{vP1+3}, 3, v0
    v_add_u32 v{vP1+4}, {FL1}, v{vA}
    ''')
    def wv(n): A(f's_waitcnt vmcnt({n})')
    vTp = 46
    vKp = 54
    vVp = 68
    vAc = 76
    vPp = 84
    vO = 92
    wv(7 if cfg.FPOS == 'bar' else 5)
    if cfg.FPOS == 'k': fload()
    for i in range(3): A(f'v_mov_b32 v{vPp+i}, v{vKr+4+i}')
    for i in range(3): A(f'v_permlane32_swap_b32 v{vKr+i}, v{vPp+i}')
    for j in range(4):
        src0, src1 = vSk + (j >> 1), vSk + 2 + (j >> 1)
        if j & 1:
            A(f'v_and_b32 v{vTp+2*j}, s{sMASK}, v{src0}'); A(f'v_and_b32 v{vTp+2*j+1}, s{sMASK}, v{src1}')
        else:
            A(f'v_lshlrev_b32 v{vTp+2*j}, 16, v{src0}'); A(f'v_lshlrev_b32 v{vTp+2*j+1}, 16, v{src1}')
    for r in range(7): unpack(vKp + 2*r, vKr + r)
    stamp('kland')
    for i in range(4): A(f'v_pk_mul_f32 {pr(vAc+2*i)}, {pr(vKp+2*i)}, {pr(vTp+6)}')
    for i in range(8): rnd(vAc + i)
    for j in (2, 1, 0):
        for i in range(4): A(f'v_pk_mul_f32 {pr(vPp+2*i)}, {pr(vKp+2*(i+3-j))}, {pr(vTp+2*j)}')
        for i in range(8): rnd(vPp + i)
        for i in range(4): A(f'v_pk_add_f32 {pr(vAc+2*i)}, {pr(vAc+2*i)}, {pr(vPp+2*i)}')
        for i in range(8): rnd(vAc + i)
    wv(3)
    A(f'global_load_dword v{vMT}, v{vPT}, {P(sWS)} sc1')
    if cfg.X1PT:
        A(f'''
        s_mov_b64 exec, {P(sHM)}
        global_load_dword v{vPT+3}, v{vSk-1}, {P(sWS)} sc1
        s_mov_b64 exec, -1
        ''')
    for i in range(4): unpack(vVp + 2*i, vVr + i)
    for i in range(4): A(f'v_pk_mul_f32 {pr(vAc+2*i)}, {pr(vAc+2*i)}, {pr(vVp+2*i)}')
    for c in range(2):
        A(f'v_cvt_pk_bf16_f32 v{vO+2*c}, v{vAc+6+c}, v{vAc+4+c}')
        A(f'v_cvt_pk_bf16_f32 v{vO+2*c+1}, v{vAc+2+c}, v{vAc+c}')
    A(f'''
    ds_write2_b64 v{vTW}, {pr(vO)}, {pr(vO+2)} offset0:0 offset1:16
    s_waitcnt lgkmcnt(0)
    s_barrier
    ds_read_b64 {pr(vO)}, v{vTR} offset:{L_T}
    ds_read_b64 {pr(vO-4)}, v{vTR} offset:{L_T + 128}
    v_mov_b32 v{vO+2}, s{sTAG}
    v_mov_b32 v{vO+3}, s{sTAG}
    v_mov_b32 v{vO-2}, s{sTAG}
    v_mov_b32 v{vO-1}, s{sTAG}
    s_mov_b32 s{sMODE}, {0 if cfg.FORCE_SLOW else 1}
    ''')
    stamp('B1')
    vIn = 68
    A(f'''
    s_waitcnt lgkmcnt(1)
    global_store_dwordx4 v{vX1A}, {q4(vO)}, {P(sWS)}
    s_waitcnt lgkmcnt(0)
    global_store_dwordx4 v{vSk-1}, {q4(vO-4)}, {P(sWS)}
    s_waitcnt vmcnt(2)
    v_cmp_ne_u32 vcc, s{sXCC}, v{vMT}
    s_cbranch_vccnz L_modeslow
    L_modeback:
    s_cmp_eq_u32 s{sMODE}, 1
    s_cbranch_scc0 L_x1slow
    L_x1back:
    s_mov_b64 exec, 1
    ''')
    late.append(('L_x1slow', lambda: (A(f'global_store_dwordx4 v{vX1A}, {q4(vO)}, {P(sWS)} sc1'), A(f'global_store_dwordx4 v{vSk-1}, {q4(vO-4)}, {P(sWS)} sc1'), A('s_waitcnt vmcnt(0)'), A('s_branch L_x1back'))))
    lstore(f'global_store_dword v{vP1+4}, v{vB}, {P(sWS)}')
    A('s_mov_b64 exec, -1')
    stamp('flag1')
    poll('L_poll1', f'global_load_dword v{vT2}, v{vP1}, {P(sWS)} sc1', f'v_cmp_ne_u32 vcc, s{sTAG}, v{vT2}')
    x1ld = f'''global_load_dwordx4 {q4(vIn)}, v{vP1+1}, {P(sWS)} sc1
        global_load_dwordx4 {q4(vIn+4)}, v{vP1+2}, {P(sWS)} sc1'''
    x1chk = f'''v_xor_b32 v{vT2}, s{sTAG}, v{vIn+2}
        v_xor_b32 v{vT3}, s{sTAG}, v{vIn+3}
        v_xor_b32 v{vT0}, s{sTAG}, v{vIn+6}
        v_or3_b32 v{vT2}, v{vT2}, v{vT3}, v{vT0}
        v_xor_b32 v{vT3}, s{sTAG}, v{vIn+7}
        v_or_b32 v{vT2}, v{vT2}, v{vT3}
        v_cmp_ne_u32 vcc, 0, v{vT2}'''
    A(x1ld)
    stamp('poll1')
    vW1 = 46
    vOa = 52
    vOb = 58
    for i in range(4): A(f'v_mov_b32_dpp v{vFl+i}, v{vFl+4+i} wave_shr:1 {DPPM}')
    for i in range(6): A(f'v_mov_b32 v{vW1+i}, v{vFl+1+i}')
    for i in range(6): A(f'v_alignbyte_b32 v{vOa+i}, v{vFl+i+1}, v{vFl+i}, 2')
    for i in range(6): A(f'v_alignbyte_b32 v{vOb+i}, v{vFl+i+2}, v{vFl+i+1}, 2')
    vKV = 132
    vWA = 144
    sWB = 12
    A(f'''
    {GSKIP}
    s_cselect_b32 s{sT0}, 0, 1
    s_cmp_lt_u32 s{sM}, {NS3}
    s_cselect_b32 s{sT1}, 2, 0
    s_add_u32 s{sPEND}, s{sT0}, s{sT1}
    ''')
    vSt = 188
    for i in range(2): unpack(vSt + 2*i, vGC + i)
    for i in range(4): A(f'v_mul_f32 v{vSt+4+i}, 0xbfb8aa3b, v{vSt+i}')
    for i in range(4): A(f'v_exp_f32 v{vSt+4+i}, v{vSt+4+i}')
    for i in range(4): A(f'v_add_f32 v{vSt+4+i}, 1.0, v{vSt+4+i}')
    for i in range(4): A(f'v_rcp_f32 v{vSt+4+i}, v{vSt+4+i}')
    for i in range(4): A(f'v_mul_f32 v{vSt+i}, v{vSt+i}, v{vSt+4+i}')
    for i in range(2): A(f'v_cvt_pk_bf16_f32 v{vGC+i}, v{vSt+2*i}, v{vSt+2*i+1}')
    A(f'''
    s_sub_u32 s{sT4}, s{sWAVE}, 4
    s_min_u32 s{sT5}, s{sM}, {NS3-1}
    s_lshr_b32 s{sT0}, s{sT5}, 2
    s_mul_i32 s{sT3}, s{sG}, 7
    s_add_u32 s{sT0}, s{sT0}, s{sT3}
    s_lshl_b32 s{sT2}, s{sT0}, 6
    s_and_b32 s{sT1}, s{sM}, 3
    s_lshl_b32 s{sT3}, s{sT1}, 1
    s_and_b32 s{sT5}, s{sWAVE}, 1
    s_add_u32 s{sT3}, s{sT3}, s{sT5}
    s_mul_i32 s{sT3}, s{sT3}, {64*3584}
    s_add_u32 s{sT2}, s{sT2}, s{sT3}
    v_lshrrev_b32 v{vWA}, 2, v{vLANE}
    v_mul_u32_u24 v{vWA}, 3584, v{vWA}
    v_and_b32 v{vT2}, 3, v0
    v_lshl_add_u32 v{vWA}, v{vT2}, 4, v{vWA}
    v_add_u32 v{vWA}, s{sT2}, v{vWA}
    s_cmp_ge_u32 s{sWAVE}, 6
    s_cselect_b32 s{sWB}, s{sWU}, s{sWG}
    s_cselect_b32 s{sWB+1}, s{sWU+1}, s{sWG+1}
    s_lshl_b32 s{sT2}, s{sT0}, 15
    s_lshl_b32 s{sT3}, s{sT1}, 8
    s_add_u32 s{sT2}, s{sT2}, s{sT3}
    s_lshl_b32 s{sT3}, s{sT4}, 13
    s_add_u32 s{sT2}, s{sT2}, s{sT3}
    v_lshrrev_b32 v{vT2}, 4, v{vLANE}
    v_lshlrev_b32 v{vT2}, 10, v{vT2}
    v_and_b32 v{vT3}, 15, v0
    v_lshl_add_u32 v{vT2}, v{vT3}, 4, v{vT2}
    v_add_u32 v{vWA+1}, s{sT2}, v{vT2}
    v_add_u32 v{vWA+2}, 4096, v{vWA+1}
    {GTAU_CL}
    s_lshr_b32 s{sT1}, s{sT0}, 2
    s_and_b32 s{sT3}, s{sT0}, 3
    s_lshl_b32 s{sT3}, s{sT3}, 7
    s_lshl_b32 s{sT5}, s{sT4}, 5
    s_add_u32 s{sT3}, s{sT3}, s{sT5}
    v_lshrrev_b32 v{vKV}, 3, v{vLANE}
    v_lshl_add_u32 v{vKV}, v{vKV}, 2, s{sT3}
    s_movk_i32 s{sT3}, 6144
    v_mul_lo_u32 v{vKV}, v{vKV}, s{sT3}
    v_and_b32 v{vT3}, 7, v0
    v_lshl_add_u32 v{vKV}, v{vT3}, 4, v{vKV}
    s_lshl_b32 s{sT1}, s{sT1}, 10
    s_lshl_b32 s{sT2}, s{sG}, 7
    s_add_u32 s{sT1}, s{sT1}, s{sT2}
    v_add_u32 v{vKV}, s{sT1}, v{vKV}
    v_lshl_add_u32 v{vKV+2}, v{vLANE}, 1, s{sT2}
    v_subrev_u32 v{vKV+3}, 0x8000, v{vJR}
    ''')
    srcs = {0: vOa, 1: vW1, 2: vOb, 3: vFl + 2, 4: vOa + 2, 5: vW1 + 2, 6: vOb + 2, 7: vFl + 4}
    def uwrites():
        for c in range(8): A(f'ds_write_b128 v{vUA}, {q4(srcs[c])} offset:{c*USTR + 16}')
    A(f'''
    s_barrier
    s_cmp_lt_u32 s{sWAVE}, 4
    s_cbranch_scc1 L_nobulk
    global_load_dwordx4 {q4(vX)}, v{vJR}, {P(sX)}
    global_load_dwordx4 {q4(140)}, v{vKV+3}, {P(sX)}
    global_load_ushort v231, v{vKV+2}, {P(sWR)}
    L_nobulk:
    ''')
    uwrites()
    vZ = 64
    for i in range(4): A(f'v_mov_b32 v{vZ+i}, 0')
    vXp = 100
    vXA = 108
    vXL = 109
    A(f'''
    v_mul_u32_u24 v{vT0}, {USTR}, v{vLANE}
    v_lshrrev_b32 v{vT1}, 5, v{vLANE}
    v_mul_u32_u24 v{vT1}, {KVS - 512}, v{vT1}
    v_lshl_add_u32 v{vT1}, v{vLANE}, 4, v{vT1}
    v_add_u32 v{vT1}, {L_KVR + 4096}, v{vT1}
    s_cmp_lg_u32 s{sWAVE}, 0
    s_cbranch_scc1 L_nz0
    s_mov_b64 exec, 0xffff
    ds_write_b128 v{vT0}, {q4(vZ)} offset:{L_U}
    s_mov_b64 exec, -1
    ds_write_b128 v{vT1}, {q4(vZ)}
    L_nz0:
    v_lshrrev_b32 v{vT0}, 3, v{vLANE}
    v_and_b32 v{vT1}, 7, v0
    v_lshl_add_u32 v{vT1}, s{sWAVE}, 3, v{vT1}
    v_lshlrev_b32 v{vT1}, 4, v{vT1}
    v_lshl_add_u32 v{vXA}, v{vT0}, 18, v{vT1}
    s_lshl_b32 s{sT0}, s{sM}, 13
    s_lshl_b32 s{sT1}, s{sG}, 10
    s_add_u32 s{sT0}, s{sT0}, s{sT1}
    v_add_u32 v{vXA}, s{sT0}, v{vXA}
    v_lshl_add_u32 v{vXL}, v{vT0}, 10, v{vT1}
    s_lshl_b32 s{sT0}, s{sWID}, 13
    v_add_u32 v{vXL}, s{sT0}, v{vXL}
    s_cmp_lt_u32 s{sWAVE}, 4
    s_cbranch_scc1 L_inw0
    s_waitcnt vmcnt(3)
    L_inw1:
    ''')
    late.append(('L_inw0', lambda: (A('s_waitcnt vmcnt(0)'), A('s_branch L_inw1'))))
    A(x1chk)
    A('s_cbranch_vccnz L_pollin')
    A('L_pollin_back:')
    late.append(('L_pollin', lambda: (poll('L_pollinb', x1ld, x1chk), A('s_branch L_pollin_back'))))
    A(f'''
    ds_write_b64 v{vP1+3}, {pr(vIn)} offset:{L_KVR}
    ds_write_b64 v{vP1+3}, {pr(vIn+4)} offset:{L_KVR + KVS}
    s_cmp_ge_u32 s{sWAVE}, 4
    s_cbranch_scc1 L_helper
    ''')
    vAA, vBA, vPW = 110, 111, 112
    vACC = 116
    vFA = [148, 180]
    vFB = [212, 46]
    A(f'''
    v_and_b32 v{vT0}, 15, v0
    v_lshrrev_b32 v{vT1}, 4, v{vLANE}
    v_and_b32 v{vT2}, 7, v0
    v_mul_u32_u24 v{vAA}, {USTR}, v{vT2}
    v_lshrrev_b32 v{vT2}, 3, v{vT0}
    v_add_u32 v{vT2}, v{vT2}, v{vT1}
    v_lshl_add_u32 v{vAA}, v{vT2}, 4, v{vAA}
    s_lshr_b32 s{sT0}, s{sWAVE}, 1
    s_and_b32 s{sT1}, s{sWAVE}, 1
    s_lshl_b32 s{sT1}, s{sT1}, 8
    s_mul_i32 s{sT2}, s{sT0}, {UCH}
    s_add_u32 s{sT2}, s{sT2}, s{sT1}
    s_add_u32 s{sT2}, s{sT2}, {L_U}
    v_add_u32 v{vAA}, s{sT2}, v{vAA}
    v_lshlrev_b32 v{vBA}, 4, v{vT1}
    v_lshlrev_b32 v{vT2}, 5, v{vT0}
    v_sub_u32 v{vBA}, v{vBA}, v{vT2}
    s_mul_i32 s{sT2}, s{sT0}, {KVS}
    s_add_u32 s{sT2}, s{sT2}, s{sT1}
    s_add_u32 s{sT2}, s{sT2}, {L_KVR + 480}
    v_add_u32 v{vBA}, s{sT2}, v{vBA}
    ''')
    def ldA(st, r, p): A(f'ds_read_b128 {q4(vFA[st]+4*p)}, v{vAA} offset:{64*r + 512*p}')
    def ldB(st, r, q): A(f'ds_read_b128 {q4(vFB[st]+4*q)}, v{vBA} offset:{(7-q)*512 + 64*r}')
    A(f'''
    v_lshl_add_u32 v{vT2}, v{vT1}, 2, v{vT0}
    v_and_b32 v{vT2}, 15, v{vT2}
    v_lshl_add_u32 v{vT2}, v{vT1}, 4, v{vT2}
    v_lshlrev_b32 v{vPW}, 4, v{vT2}
    s_lshl_b32 s{sT0}, s{sWAVE}, 13
    s_add_u32 s{sT0}, s{sT0}, {L_P}
    v_add_u32 v{vPW}, s{sT0}, v{vPW}
    s_waitcnt lgkmcnt(0)
    s_setprio {cfg.PRIO}
    s_barrier
    ''')
    stamp('B2')
    for i in range(8): ldA(0, 0, i); ldB(0, 0, i)
    order = [(p, j - p) for j in range(8) for p in range(j + 1)]
    for r in range(4):
        st = r & 1
        nxt = [(k, i) for i in range(8) for k in 'AB'] if r < 3 else []
        issued = 0
        written = 0
        for n, (p, q) in enumerate(order):
            j = p + q
            if p == 0 and r == 0:
                A(f's_waitcnt lgkmcnt({min(15, 16 - 2*(j+1) + issued)})')
                if cfg.ALIGN: A('.p2align 3')
            c = '0' if (r == 0 and p == 0) else q4(vACC + 4*j)
            A(f'v_mfma_f32_16x16x32_bf16 {q4(vACC+4*j)}, {q4(vFA[st]+4*p)}, {q4(vFB[st]+4*q)}, {c}')
            if nxt and issued < 16 and n >= (10 if r == 0 else 1):
                k, i = nxt[issued]
                (ldA if k == 'A' else ldB)(st ^ 1, r + 1, i); issued += 1
            if r == 3:
                while written < 8 and n >= written*(written+3)//2 + 9 and written <= j - 1:
                    A(f'ds_write_b128 v{vPW}, {q4(vACC+4*written)} offset:{1024*written}'); written += 1
        if r < 3:
            A('s_waitcnt lgkmcnt(0)')
            if cfg.ALIGN: A('.p2align 3')
        else:
            while written < 8:
                A(f'ds_write_b128 v{vPW}, {q4(vACC+4*written)} offset:{1024*written}'); written += 1
    A('s_setprio 0')
    A('s_branch L_s1join')
    A('L_helper:')
    vKD = 116
    vKV = 132
    vXo = 140
    vI0 = 220
    vDUM = 230
    vWRr = 231
    vGW = 164
    vF2, vD2 = 54, 55
    wr_ = [0]
    def wvr(n_s3only, n_both, n_gonly):
        wr_[0] += 1; k = wr_[0]
        A(f'''
        s_cmp_lg_u32 s{sPEND}, 3
        s_cbranch_scc1 L_wr{k}a
        s_waitcnt vmcnt({n_both})
        L_wr{k}b:
        ''')
        late.append((f'L_wr{k}a', lambda: (A(f's_waitcnt vmcnt({min(n_s3only, n_gonly)})') if n_s3only == n_gonly else
                     A(f'''s_cmp_eq_u32 s{sPEND}, 2
                     s_cbranch_scc1 L_wr{k}c
                     s_waitcnt vmcnt({n_gonly})
                     s_branch L_wr{k}b
                     L_wr{k}c:
                     s_waitcnt vmcnt({n_s3only})'''), A(f's_branch L_wr{k}b'))))
    vWA = 144
    sWB = 12
    def wblock(tag):
        A(f'''
        s_cmp_ge_u32 s{sM}, {NS3}
        s_cbranch_scc1 L_h_now{tag}
        s_lshl_b32 s{sT5}, s{sT4}, 12
        s_add_u32 s{sT5}, s{sT5}, {L_WGU}
        ''')
        for i in range(4):
            A(f's_mov_b32 m0, s{sT5}')
            A(f'global_load_lds_dwordx4 v{vWA}, {P(sWB)}')
            if i < 3:
                A(f'v_add_u32 v{vWA}, {16*3584}, v{vWA}')
                A(f's_add_u32 s{sT5}, s{sT5}, 1024')
        if cfg.WDPOS == 's1': A(f'''
        s_lshl_b32 s{sT5}, s{sT4}, 11
        s_add_u32 s{sT5}, s{sT5}, {L_WGU + 16384}
        s_mov_b32 m0, s{sT5}
        s_add_u32 s{sT5}, s{sT5}, 1024
        global_load_lds_dwordx4 v{vWA+1}, {P(sWD)}
        s_mov_b32 m0, s{sT5}
        s_nop 0
        global_load_lds_dwordx4 v{vWA+2}, {P(sWD)}
        ''')
        A(f'L_h_now{tag}:')
    A(f'''
    {GSKIP}
    s_cbranch_scc1 L_h_nog
    ''')
    for i in range(4):
        A(f'global_load_dwordx4 {q4(vGW+4*i)}, v{vKV}, {P(sWM)}')
        if i < 3: A(f'v_add_u32 v{vKV}, s{sT3}, v{vKV}')
    A('L_h_nog:')
    A('s_waitcnt lgkmcnt(0)')
    A('s_barrier')
    wblock('a')
    A(f'''
    s_lshl_b32 s{sT0}, s{sWAVE}, 9
    s_sub_u32 s{sT0}, {L_KVR + 4088}, s{sT0}
    v_lshlrev_b32 v{vT0}, 3, v{vLANE}
    v_sub_u32 v{vT0}, s{sT0}, v{vT0}
    ds_read_b64 {pr(vKV)}, v{vT0}
    ds_read_b64 {pr(vKV+2)}, v{vT0} offset:{KVS}
    ds_read_b64 {pr(vKV+4)}, v{vT0} offset:2048
    ds_read_b64 {pr(vKV+6)}, v{vT0} offset:{KVS+2048}
    s_lshl_b32 s{sD0}, s{sDV}, 16
    s_and_b32 s{sD1}, s{sDV}, s{sMASK}
    s_waitcnt lgkmcnt(0)
    ''')
    for t in range(2):
        for c in range(2):
            b = vKD + 8*t + 4*c; s = vKV + 4*t + 2*c
            A(f'v_and_b32 v{b}, s{sMASK}, v{s+1}')
            A(f'v_lshlrev_b32 v{b+1}, 16, v{s+1}')
            A(f'v_and_b32 v{b+2}, s{sMASK}, v{s}')
            A(f'v_lshlrev_b32 v{b+3}, 16, v{s}')
            for i in range(4): A(f'v_mul_f32 v{b+i}, s{sD0+c}, v{b+i}')
            for i in range(4): rnd(b + i)
    A(f'''
    s_lshl_b32 s{sT1}, s{sT4}, 11
    s_add_u32 s{sT1}, s{sT1}, {L_KD}
    v_lshl_add_u32 v{vT0}, v{vLANE}, 4, s{sT1}
    ds_write_b128 v{vT0}, {q4(vKD+8)}
    ds_write_b128 v{vT0}, {q4(vKD+12)} offset:1024
    ''')
    A(f'''
    s_lshl_b32 s{sT1}, s{sT4}, 10
    s_add_u32 s{sT1}, s{sT1}, {L_XS}
    v_lshl_add_u32 v{vT0}, v{vLANE}, 4, s{sT1}
    ''')
    wvr(7, 11, 1 if cfg.GLOW else 5)
    A(f'ds_write_b128 v{vT0}, {q4(vXo)}')
    vXq = 186
    vS0 = 196
    for i in range(4): unpack(vXp + 2*i, vX + i)
    for i in range(4): unpack(vXq + 2*i, vXo + i)
    for (xb, u, t) in ((vXp, vS0, 204), (vXq, vS0 + 4, 208)):
        A(f'v_pk_add_f32 {pr(t)}, {pr(xb)}, {pr(xb+2)}')
        A(f'v_pk_mul_f32 {pr(t+2)}, {pr(xb)}, {pr(xb)}')
        for i in range(1, 4): A(f'v_pk_fma_f32 {pr(t+2)}, {pr(xb+2*i)}, {pr(xb+2*i)}, {pr(t+2)}')
        for i in range(2, 4): A(f'v_pk_add_f32 {pr(t)}, {pr(t)}, {pr(xb+2*i)}')
        A(f'v_add_f32 v{u}, v{t}, v{t+1}')
        A(f'v_add_f32 v{u+2}, v{t+2}, v{t+3}')
    allred([vS0, vS0 + 2, vS0 + 4, vS0 + 6], [204, 205, 206, 207])
    A(f'''
    v_mov_b32 v{vS0+1}, s{sTAG}
    v_mov_b32 v{vS0+3}, s{sTAG}
    v_mov_b32 v{vS0+5}, s{sTAG}
    v_mov_b32 v{vS0+7}, s{sTAG}
    v_add_u32 v{vT0}, {X0 - 512}, v{vXA}
    global_store_dwordx4 v{vT0}, {q4(vS0)}, {P(sWS)} offset:512 sc1
    global_store_dwordx4 v{vT0}, {q4(vS0+4)}, {P(sWS)} sc1
    ''')
    stamp('gemv0')
    def gemv_block(nb, ng):
        A(f'''
        {GSKIP}
        s_cbranch_scc1 L_g_done
        s_cmp_lt_u32 s{sWAVE}, 4
        s_cbranch_scc1 L_g_done
        ''')
        wvr(63, nb, ng)
        vSC = vGC
        vGA = 204
        vGP = 212
        A(f's_mov_b32 s{sT0}, 0x05040100')
        A(f's_mov_b32 s{sT1}, 0x07060302')
        for rp in range(2):
            w0, w1 = vGW + 8*rp, vGW + 8*rp + 4
            for d in range(4):
                A(f'v_perm_b32 v{vGP+2*d}, v{w1+d}, v{w0+d}, s{sT0}')
                A(f'v_perm_b32 v{vGP+2*d+1}, v{w1+d}, v{w0+d}, s{sT1}')
            for c in range(8): A(f'v_dot2_f32_bf16 v{vGA+c}, v{vGP+c}, v{vSC+rp}, ' + (f'v{vGA+c}' if rp else '0'))
        for c in range(4): A(f'v_permlane32_swap_b32 v{vGA+c}, v{vGA+c+4}')
        for c in range(4): A(f'v_add_f32 v{vGA+c}, v{vGA+c}, v{vGA+c+4}')
        for c in range(2): A(f'v_permlane16_swap_b32 v{vGA+c}, v{vGA+c+2}')
        for c in range(2): A(f'v_add_f32 v{vGA+c}, v{vGA+c}, v{vGA+c+2}')
        for c in range(2): A(f'v_add_f32_dpp v{vGA+c}, v{vGA+c}, v{vGA+c} row_ror:8 {DPPM}')
        A(f'''
        v_and_b32 v{vT0}, 8, v0
        v_cmp_ne_u32 vcc, 0, v{vT0}
        v_cndmask_b32 v{vGA}, v{vGA}, v{vGA+1}, vcc
        v_and_b32 v{vT0}, 7, v0
        v_lshrrev_b32 v{vT1}, 3, v{vLANE}
        v_lshl_add_u32 v{vT0}, v{vT0}, 3, v{vT1}
        s_sub_u32 s{sT0}, s{sWAVE}, 4
        s_lshl_b32 s{sT0}, s{sT0}, 8
        s_add_u32 s{sT0}, s{sT0}, {L_GP}
        v_lshl_add_u32 v{vT0}, v{vT0}, 2, s{sT0}
        ds_write_b32 v{vT0}, v{vGA}
        v_mov_b32 v{vT1}, {L_CNT}
        v_mov_b32 v{vT2}, 1
        s_waitcnt lgkmcnt(0)
        s_mov_b64 exec, 1
        ds_add_rtn_u32 v{vT2}, v{vT1}, v{vT2}
        s_mov_b64 exec, -1
        s_waitcnt lgkmcnt(0)
        v_readfirstlane_b32 s{sT0}, v{vT2}
        s_cmp_lg_u32 s{sT0}, 3
        s_cbranch_scc1 L_g_done
        v_lshlrev_b32 v{vT0}, 2, v{vLANE}
        ds_read2st64_b32 {pr(vGA)}, v{vT0} offset0:{L_GP//256} offset1:{L_GP//256+1}
        ds_read2st64_b32 {pr(vGA+2)}, v{vT0} offset0:{L_GP//256+2} offset1:{L_GP//256+3}
        {GTAU}
        s_lshl_b32 s{sT0}, s{sT0}, 9
        s_lshl_b32 s{sT1}, s{sG}, 14
        s_add_u32 s{sT0}, s{sT0}, s{sT1}
        s_add_u32 s{sT0}, s{sT0}, {MODP}
        v_lshl_add_u32 v{vT0}, v{vLANE}, 3, s{sT0}
        s_waitcnt lgkmcnt(0)
        v_pk_add_f32 {pr(vGA)}, {pr(vGA)}, {pr(vGA+2)}
        v_add_f32 v{vGA}, v{vGA}, v{vGA+1}
        v_mov_b32 v{vGA+1}, s{sTAG}
        ''')
        lstore(f'global_store_dwordx2 v{vT0}, {pr(vGA)}, {P(sWS)}')
        A('L_g_done:')
    if cfg.GPOS == 's1': gemv_block(8 if cfg.WDPOS == 's1' else 6, 2)
    A('L_s1join:')
    stamp('s1join')
    vPp0 = 148
    vKDe = 116
    vMn, vInv = 64, 65
    vH = 232
    vPar = 164
    vU = 46
    def rdpar(lst):
        for pi in lst:
            A(f'ds_read_b128 {q4(vPar+8*pi)}, v{vPA} offset:{L_MOD + 256*pi}')
            A(f'ds_read_b128 {q4(vPar+8*pi+4)}, v{vPA} offset:{L_MOD + 256*pi + 16}')
    A(f'''
    v_lshrrev_b32 v{vT0}, 2, v{vLANE}
    v_and_b32 v{vT1}, 3, v0
    v_lshl_add_u32 v{vT0}, v{vT1}, 2, v{vT0}
    v_and_b32 v{vT0}, 15, v{vT0}
    v_lshl_add_u32 v{vT0}, v{vT1}, 4, v{vT0}
    v_lshlrev_b32 v{vT0}, 4, v{vT0}
    s_lshl_b32 s{sT0}, s{sWAVE}, 10
    s_add_u32 s{sT1}, s{sT0}, {L_P}
    v_add_u32 v{vT0}, s{sT1}, v{vT0}
    s_lshl_b32 s{sT1}, s{sWAVE}, 11
    s_add_u32 s{sT1}, s{sT1}, {L_KD}
    v_lshl_add_u32 v{vT1}, v{vLANE}, 4, s{sT1}
    s_lshl_b32 s{sT2}, s{sWID}, {XS_}
    s_add_u32 s{sT2}, s{sT2}, {XB1}
    v_lshl_add_u32 v{vT2}, v0, 4, s{sT2}
    v_lshlrev_b32 v{vT3}, 4, v0
    v_add_u32 v{vT3}, {L_XS}, v{vT3}
    v_lshrrev_b32 v{vPA}, 3, v{vLANE}
    v_lshlrev_b32 v{vPA}, 5, v{vPA}
    s_waitcnt lgkmcnt(0)
    s_barrier
    ''')
    for w in range(4): A(f'ds_read_b128 {q4(vPp0+4*w)}, v{vT0} offset:{8192*w}')
    A(f'''
    s_cmp_ge_u32 s{sWAVE}, 4
    s_cbranch_scc1 L_nokd
    ds_read_b128 {q4(vKDe)}, v{vT1}
    ds_read_b128 {q4(vKDe+4)}, v{vT1} offset:1024
    ds_read_b128 {q4(vX)}, v{vT3}
    L_nokd:
    s_waitcnt lgkmcnt(0)
    ''')
    for c in range(2):
        for h in range(2): A(f'v_pk_add_f32 {pr(vPp0+8*c+2*h)}, {pr(vPp0+8*c+2*h)}, {pr(vPp0+8*c+4+2*h)}')
    for c in range(2):
        for i in range(4): rnd(vPp0 + 8*c + i)
    for c in range(2):
        for h in range(2): A(f'v_pk_add_f32 {pr(vPp0+8*c+2*h)}, {pr(vPp0+8*c+2*h)}, {pr(vKDe+4*c+2*h)}')
    for i in range(4): A(f'v_cvt_pk_bf16_f32 v{vPp0+4+i}, v{vPp0+i}, v{vPp0+8+i}')
    lstore(f'global_store_dwordx4 v{vT2}, {q4(vPp0+4)}, {P(sWS)}')
    stamp('zst')
    vMQ = 140
    vXCA = 139
    vZA = 68
    A(f'''
    v_mov_b32 v{vXCA}, 0
    s_min_u32 s{sT5}, s{sWAVE}, 5
    s_cmp_eq_u32 s{sWAVE}, 6
    s_cselect_b32 s{sT5}, 3, s{sT5}
    s_cmp_eq_u32 s{sWAVE}, 7
    s_cselect_b32 s{sT5}, 4, s{sT5}
    s_lshl_b32 s{sT1}, s{sT5}, 11
    s_lshl_b32 s{sT2}, s{sG}, 14
    s_add_u32 s{sT1}, s{sT1}, s{sT2}
    s_add_u32 s{sT1}, s{sT1}, {MODP}
    v_lshl_add_u32 v{vD2+1}, v{vLANE}, 4, s{sT1}
    v_add_u32 v{vD2+2}, {X0}, v{vXL}
    ''')
    modld = '\n'.join([f'global_load_dwordx4 {q4(vMQ+4*i)}, v{vD2+1}, {P(sWS)} offset:{1024*i} sc1' for i in range(2)])
    chk = [f'v_xor_b32 v{vMQ+2*i+1}, s{sTAG}, v{vMQ+2*i+1}' for i in range(4)]
    chk += [f'v_or3_b32 v{vMQ+1}, v{vMQ+1}, v{vMQ+3}, v{vMQ+5}', f'v_or_b32 v{vMQ+1}, v{vMQ+1}, v{vMQ+7}', f'v_cmp_ne_u32 vcc, 0, v{vMQ+1}']
    x0ld = f'global_load_dwordx4 {q4(vI0)}, v{vD2+2}, {P(sWS)} sc1'
    x0chk = f'''v_xor_b32 v{vI0+1}, s{sTAG}, v{vI0+1}
         v_xor_b32 v{vI0+3}, s{sTAG}, v{vI0+3}
         v_or_b32 v{vI0+1}, v{vI0+1}, v{vI0+3}
         v_cmp_ne_u32 vcc, 0, v{vI0+1}'''
    A(x0ld)
    for i in range(4): unpack(vXp + 2*i, vX + i)
    if cfg.GPOS == 'zst': gemv_block(10, 4)
    A(f'''
    v_add_u32 v{vT1}, {FL2}, v{vA}
    s_lshr_b32 s{sT2}, s{sM}, 2
    s_lshl_b32 s{sT2}, s{sT2}, 7
    s_lshl_b32 s{sT3}, s{sG}, 10
    s_add_u32 s{sT2}, s{sT2}, s{sT3}
    s_lshl_b32 s{sT3}, s{sWAVE}, 4
    s_add_u32 s{sT2}, s{sT2}, s{sT3}
    s_add_u32 s{sT2}, s{sT2}, {FL2}
    v_and_b32 v{vF2}, 3, v0
    v_lshl_add_u32 v{vF2}, v{vF2}, 2, s{sT2}
    s_lshl_b32 s{sT3}, s{sWAVE}, 1
    v_subrev_u32 v{vD2}, s{sT3}, v0
    v_and_b32 v{vD2}, 15, v{vD2}
    v_lshlrev_b32 v{vD2}, 4, v{vD2}
    v_lshrrev_b32 v{vT2}, 4, v0
    v_lshl_add_u32 v{vD2}, v{vT2}, {XS_}, v{vD2}
    s_lshl_b32 s{sT2}, s{sG}, {XS_+5}
    s_lshl_b32 s{sT3}, s{sM}, 8
    s_add_u32 s{sT2}, s{sT2}, s{sT3}
    s_add_u32 s{sT2}, s{sT2}, {XB1}
    v_add_u32 v{vD2}, s{sT2}, v{vD2}
    s_lshl_b32 s{sT2}, s{sWAVE}, 10
    s_add_u32 s{sT2}, s{sT2}, {L_Z}
    s_mov_b32 m0, s{sT2}
    v_lshrrev_b32 v{vT0}, 3, v{vLANE}
    v_bfe_u32 v{vT2}, v0, 2, 1
    v_lshl_add_u32 v{vT2}, s{sWAVE}, 1, v{vT2}
    v_lshl_add_u32 v{vT2}, v{vT0}, 1, v{vT2}
    v_and_b32 v{vT2}, 15, v{vT2}
    v_lshlrev_b32 v{vT2}, 4, v{vT2}
    v_lshl_add_u32 v{vZA}, v{vT0}, 10, v{vT2}
    v_and_b32 v{vT2}, 3, v0
    v_lshl_add_u32 v{vZA}, v{vT2}, 2, v{vZA}
    s_mov_b32 s{sT0}, s{sT5}
    s_waitcnt vmcnt(1)
    s_mov_b64 exec, 1
    ''')
    lstore(f'global_store_dword v{vT1}, v{vB}, {P(sWS)}')
    A('s_mov_b64 exec, -1')
    stamp('flag2')
    A(modld)
    A('s_waitcnt vmcnt(3)')
    A(x0chk)
    A('s_cbranch_vccnz L_pollx0')
    A('L_pollx0_back:')
    late.append(('L_pollx0', lambda: (poll('L_pollx0b', x0ld, x0chk), A('s_nop 1'), A('s_branch L_pollx0_back'))))
    allred([vI0, vI0 + 2], [vI0 + 1, vI0 + 3])
    lnstats(vI0, vI0 + 2, vI0 + 1, vMn, vInv)
    for i in range(8): A(f'v_sub_f32 v{vH+i}, v{vXp+i}, v{vMn}')
    for i in range(8): rnd(vH + i)
    for i in range(8): A(f'v_mul_f32 v{vH+i}, v{vH+i}, v{vInv}')
    for i in range(8): rnd(vH + i)
    A('s_waitcnt vmcnt(0)')
    A('\n'.join(chk))
    A('s_cbranch_vccnz L_pollm')
    A('L_pollm_back:')
    late.append(('L_pollm', lambda: (poll('L_pollmb', modld, '\n'.join(chk)), A('s_branch L_pollm_back'))))
    stamp('modok')
    A(f'global_load_dword v{vI0}, v{vF2}, {P(sWS)} sc1')
    A(f'v_add_f32 v{vMQ}, v{vMQ}, v{vMQ+4}')
    A(f'v_add_f32 v{vMQ+2}, v{vMQ+2}, v{vMQ+6}')
    A(f'''
    v_permlane32_swap_b32 v{vMQ}, v{vMQ+2}
    v_add_f32 v{vMQ}, v{vMQ}, v{vMQ+2}
    v_cvt_pk_bf16_f32 v{vMQ}, 0, v{vMQ}
    v_add_f32 v{vMQ+1}, 1.0, v{vMQ}
    v_cvt_pk_bf16_f32 v{vMQ+1}, 0, v{vMQ+1}
    s_cmp_eq_u32 s{sT0}, 1
    s_cselect_b64 vcc, -1, 0
    s_cmp_eq_u32 s{sT0}, 4
    s_cselect_b64 vcc, -1, vcc
    v_cndmask_b32 v{vMQ}, v{vMQ}, v{vMQ+1}, vcc
    v_and_b32 v{vT0}, 31, v0
    v_lshrrev_b32 v{vT1}, 5, v{vLANE}
    v_lshl_add_u32 v{vT0}, v{vT0}, 1, v{vT1}
    v_lshlrev_b32 v{vT0}, 2, v{vT0}
    s_cmp_ge_u32 s{sWAVE}, 6
    s_cbranch_scc1 L_m67
    s_lshl_b32 s{sT1}, s{sT0}, 8
    v_add_u32 v{vT0}, s{sT1}, v{vT0}
    ds_write_b32 v{vT0}, v{vMQ} offset:{L_MOD}
    s_branch L_mjoin
    L_m67:
    ds_bpermute_b32 v{vT1}, v{vT0}, v{vWRr}
    s_waitcnt lgkmcnt(0)
    v_lshlrev_b32 v{vT1}, 16, v{vT1}
    v_mul_f32 v{vMQ+4}, v{vMQ}, v{vT1}
    s_cmp_eq_u32 s{sWAVE}, 7
    s_cselect_b32 s{sT1}, 0, 256
    s_cselect_b32 s{sT2}, 0, 8
    v_add_u32 v{vT0}, s{sT1}, v{vT0}
    ds_write_b32 v{vT0}, v{vMQ+4} offset:{L_MOD + 6*256}
    ''')
    fullred([vMQ + 4], [vMQ + 6])
    A(f'''
    v_mov_b32 v{vMQ+5}, s{sTAG}
    s_lshl_b32 s{sT0}, s{sM}, 7
    s_lshl_b32 s{sT1}, s{sG}, 4
    s_add_u32 s{sT0}, s{sT0}, s{sT1}
    s_add_u32 s{sT0}, s{sT0}, s{sT2}
    s_add_u32 s{sT0}, s{sT0}, {XC}
    v_lshl_add_u32 v{vXCA}, v{vLANE}, 12, s{sT0}
    L_mjoin:
    ''')
    A(f'''
    s_waitcnt vmcnt(0)
    v_cmp_ne_u32 vcc, s{sTAG}, v{vI0}
    s_mov_b32 s{sT4}, 0
    s_cbranch_vccnz L_p2n
    global_load_lds_dwordx4 v{vD2}, {P(sWS)} sc1
    s_mov_b32 s{sT4}, 1
    L_p2n:
    s_waitcnt lgkmcnt(0)
    s_barrier
    ''')
    rdpar((1, 0, 2, 6))
    A('s_waitcnt lgkmcnt(4)')
    for i in range(8): A(f'v_mul_f32 v{vH+i}, v{vH+i}, v{vPar+8+i}')
    for i in range(8): rnd(vH + i)
    for i in range(8): A(f'v_add_f32 v{vH+i}, v{vH+i}, v{vPar+i}')
    for i in range(8): rnd(vH + i)
    A(f'''
    s_cmp_eq_u32 s{sT4}, 1
    s_cbranch_scc1 L_p2d
    ''')
    poll('L_poll2', f'global_load_dword v{vT2}, v{vF2}, {P(sWS)} sc1', f'v_cmp_ne_u32 vcc, s{sTAG}, v{vT2}')
    A(f'global_load_lds_dwordx4 v{vD2}, {P(sWS)} sc1')
    A('L_p2d:')
    stamp('poll2')
    stamp('hdone')
    A('s_waitcnt vmcnt(0)')
    A('s_barrier')
    A(f'''
    s_cmp_lt_u32 s{sWAVE}, 6
    s_cbranch_scc1 L_noxc
    s_mov_b64 exec, 0xff
    global_store_dwordx2 v{vXCA}, {pr(vMQ+4)}, {P(sWS)} sc1
    s_mov_b64 exec, -1
    L_noxc:
    ''')
    stamp('B4')
    vZr = 70
    vZ1 = 74
    vSQ = 82
    A(f'ds_read2st64_b32 {pr(vZr)}, v{vZA} offset0:{L_Z//256} offset1:{L_Z//256+1}')
    A(f'ds_read2st64_b32 {pr(vZr+2)}, v{vZA} offset0:{L_Z//256+2} offset1:{L_Z//256+3}')
    A(f'v_add_u32 v{vT0}, {X3}, v{vXA}')
    A('s_waitcnt lgkmcnt(0)')
    for i in range(4): unpack(vZ1 + 2*i, vZr + i)
    for i in range(8): A(f'v_mul_f32 v{vZ1+i}, v{vZ1+i}, v{vH+i}')
    for i in range(8): rnd(vZ1 + i)
    for i in range(8): A(f'v_mul_f32 v{vZ1+i}, v{vZ1+i}, v{vPar+16+i}')
    for i in range(8): rnd(vZ1 + i)
    for i in range(8): A(f'v_add_f32 v{vZ1+i}, v{vZ1+i}, v{vXp+i}')
    for i in range(8): rnd(vZ1 + i)
    S_, Q_, P_ = vSQ, vSQ + 2, vSQ + 4
    A(f'v_pk_add_f32 {pr(S_)}, {pr(vZ1)}, {pr(vZ1+2)}')
    A(f'v_pk_mul_f32 {pr(Q_)}, {pr(vZ1)}, {pr(vZ1)}')
    A(f'v_pk_mul_f32 {pr(P_)}, {pr(vZ1)}, {pr(vPar+48)}')
    for i in range(1, 4):
        A(f'v_pk_fma_f32 {pr(Q_)}, {pr(vZ1+2*i)}, {pr(vZ1+2*i)}, {pr(Q_)}')
        A(f'v_pk_fma_f32 {pr(P_)}, {pr(vZ1+2*i)}, {pr(vPar+48+2*i)}, {pr(P_)}')
        if i >= 2: A(f'v_pk_add_f32 {pr(S_)}, {pr(S_)}, {pr(vZ1+2*i)}')
    vUn = vSQ + 6
    A(f'v_add_f32 v{vUn}, v{S_}, v{S_+1}')
    A(f'v_add_f32 v{vUn+1}, v{Q_}, v{Q_+1}')
    A(f'v_add_f32 v{vUn+2}, v{P_}, v{P_+1}')
    A(f'v_mov_b32 v{vUn+3}, s{sTAG}')
    allred([vUn, vUn + 1, vUn + 2], [S_, Q_, P_])
    A(f'global_store_dwordx4 v{vT0}, {q4(vUn)}, {P(sWS)} sc1')
    stamp('x3st')
    rdpar((3, 4, 5))
    if cfg.WBL2:
        A(f'''
        s_cmp_lg_u32 s{sM}, 31
        s_cbranch_scc1 L_nowb
        s_cmp_lg_u32 s{sWAVE}, 7
        s_cbranch_scc1 L_nowb
        buffer_wbl2 sc1
        L_nowb:
        ''')
    if cfg.WDPOS == 'x3':
        A(f'''
        s_cmp_ge_u32 s{sM}, {NS3}
        s_cbranch_scc1 L_nowd
        s_lshr_b32 s{sT0}, s{sM}, 2
        s_mul_i32 s{sT1}, s{sG}, 7
        s_add_u32 s{sT0}, s{sT0}, s{sT1}
        s_and_b32 s{sT1}, s{sM}, 3
        s_lshl_b32 s{sT4}, s{sWAVE}, 10
        s_add_u32 s{sT4}, s{sT4}, {L_WGU + 16384}
        s_mov_b32 m0, s{sT4}
        s_lshl_b32 s{sT2}, s{sT0}, 15
        s_lshl_b32 s{sT3}, s{sT1}, 8
        s_add_u32 s{sT2}, s{sT2}, s{sT3}
        v_lshrrev_b32 v{vT2}, 4, v0
        v_lshlrev_b32 v{vT2}, 10, v{vT2}
        v_and_b32 v{vT3}, 15, v0
        v_lshl_add_u32 v{vT2}, v{vT3}, 4, v{vT2}
        v_add_u32 v{vT2}, s{sT2}, v{vT2}
        global_load_lds_dwordx4 v{vT2}, {P(sWD)}
        L_nowd:
        ''')
    A(f'''
    s_lshr_b32 s{sT2}, s{sM}, 2
    s_lshl_b32 s{sT2}, s{sT2}, 5
    s_lshl_b32 s{sT3}, s{sG}, 2
    s_add_u32 s{sT2}, s{sT2}, s{sT3}
    s_and_b32 s{sT3}, s{sM}, 3
    s_add_u32 s{sT2}, s{sT2}, s{sT3}
    s_mul_i32 s{sPT}, s{sT2}, {NPROD*64}
    s_add_u32 s{sPT}, s{sPT}, {PART}
    v_lshrrev_b32 v{vT1}, 3, v{vLANE}
    s_lshl_b32 s{sT0}, s{sWID}, 7
    s_add_u32 s{sT0}, s{sT0}, {XC}
    v_lshl_add_u32 v{vT1}, v{vT1}, 4, s{sT0}
    v_add_u32 v{vT0}, {X3}, v{vXL}
    ''')
    vR3 = 92
    vX3A = 99
    vWf = 130
    vM2, vM1 = 163, 162
    vGL2, vUW, vUR, vHC, vKA = 151, 152, 153, 246, 247
    A(f'v_mov_b32 v{vX3A}, v{vT0}')
    A(f'v_mov_b32 v{vU+2}, v{vT1}')
    A(f'global_load_dwordx4 {q4(vU+4)}, v{vT1}, {P(sWS)} sc1')
    vGA_, vGS, vGL, vPS, vGW_, vGR_ = 142, 143, 144, 145, 146, 147
    vGA2, vGR2, vSLT = 148, 149, 150
    vG = 166
    A(f'''
    s_and_b32 s{sT1}, s{sM}, 3
    s_lshl_b32 s{sT2}, s{sT1}, 9
    s_add_u32 s{sT2}, s{sT2}, {H2R}
    v_and_b32 v{vGA_}, 31, v0
    v_lshl_add_u32 v{vGA_}, v{vGA_}, 4, s{sT2}
    v_bfe_u32 v{vGA2}, v0, 5, 3
    v_lshlrev_b32 v{vGA2}, 2, v{vGA2}
    ''')
    vOR = 240
    vHA = 98
    A(f'''
    v_and_b32 v{vOR}, 7, v0
    v_lshl_add_u32 v{vOR}, s{sWAVE}, 3, v{vOR}
    s_lshl_b32 s{sT0}, s{sM}, 6
    v_add_u32 v{vOR}, s{sT0}, v{vOR}
    v_lshrrev_b32 v{vT2}, 3, v{vLANE}
    s_lshl_b32 s{sT1}, s{sG}, 8
    s_add_u32 s{sT1}, s{sT1}, {H2P - 2048}
    v_lshl_add_u32 v{vHA}, v{vT2}, 4, s{sT1}
    v_lshl_add_u32 v{vHC}, v{vOR}, 11, v{vHA}
    v_add_u32 v{vHC}, {H2R - H2P + 2048}, v{vHC}
    v_and_b32 v{vT0}, 2, v0
    v_cmp_eq_u32 vcc, 0, v{vT0}
    v_cndmask_b32 v{vM2}, 0, -1, vcc
    v_and_b32 v{vT0}, 1, v0
    v_cmp_eq_u32 vcc, 0, v{vT0}
    v_cndmask_b32 v{vM1}, 0, -1, vcc
    s_lshl_b32 s{sT0}, s{sG}, 11
    s_add_u32 s{sT0}, s{sT0}, {KEYS}
    v_lshl_add_u32 v{vKA}, v{vLANE}, 3, s{sT0}
    ''')
    GS_ = 272
    A(f'''
    s_lshr_b32 s{sT0}, s{sM}, 2
    s_mul_i32 s{sT1}, s{sG}, 7
    s_add_u32 s{sT0}, s{sT0}, s{sT1}
    s_and_b32 s{sT1}, s{sM}, 3
    v_lshrrev_b32 v{vT1}, 4, v{vLANE}
    v_and_b32 v{vT2}, 7, v0
    v_lshrrev_b32 v{vT3}, 5, v{vLANE}
    s_mov_b32 s{sHM}, 0x00ff00ff
    s_mov_b32 s{sHM+1}, 0x00ff00ff
    s_and_b32 s{sT3}, s{sWAVE}, 3
    v_lshl_add_u32 v{vT3}, s{sT3}, 1, v{vT3}
    v_mul_u32_u24 v{vGW_}, {GS_}, v{vT3}
    v_bfe_u32 v{vT3}, v0, 4, 1
    v_lshl_add_u32 v{vGW_}, v{vT3}, 7, v{vGW_}
    v_lshl_add_u32 v{vGW_}, v{vT2}, 4, v{vGW_}
    v_bfe_u32 v{vT3}, v0, 3, 1
    v_lshl_add_u32 v{vGW_}, v{vT3}, 3, v{vGW_}
    v_add_u32 v{vGW_}, {L_G2 - (L_G2 % 1024)}, v{vGW_}
    v_mul_u32_u24 v{vGR_}, {GS_}, v{vT2}
    v_lshl_add_u32 v{vGR_}, v{vT1}, 4, v{vGR_}
    s_lshr_b32 s{sT3}, s{sWAVE}, 2
    s_lshl_b32 s{sT3}, s{sT3}, 7
    v_add_u32 v{vGR_}, s{sT3}, v{vGR_}
    ''')
    A(f'''
    s_mov_b64 exec, -1
    s_and_b32 s{sT2}, s{sWID}, 0xfc
    s_lshl_b32 s{sT2}, s{sT2}, {XS_}
    s_add_u32 s{sT2}, s{sT2}, {XB1}
    s_lshl_b32 s{sT3}, s{sT1}, 3
    s_add_u32 s{sT3}, s{sT3}, s{sWAVE}
    s_lshl_b32 s{sT4}, s{sT1}, {XS_}
    s_lshl_b32 s{sT5}, s{sWAVE}, {10 if cfg.GXE else 9}
    s_add_u32 s{sT4}, s{sT4}, s{sT5}
    s_add_u32 s{sT4}, s{sT4}, s{sT2}
    v_lshl_add_u32 v{vGS}, v{vT1}, 3, v{vT2}
    v_lshl_add_u32 v{vGS}, v{vGS}, 4, s{sT4}
    s_mul_i32 s{sT3}, s{sT3}, {NPROD*64}
    s_lshl_b32 s{sT4}, s{sT0}, 6
    s_add_u32 s{sT3}, s{sT3}, s{sT4}
    s_add_u32 s{sT3}, s{sT3}, {PART}
    v_mul_u32_u24 v{vPS}, {32*NPROD*64}, v{vT2}
    v_lshl_add_u32 v{vPS}, v{vT1}, 4, v{vPS}
    v_add_u32 v{vPS}, s{sT3}, v{vPS}
    s_lshr_b32 s{sT3}, s{sWAVE}, 2
    s_lshl_b32 s{sT3}, s{sT3}, {10 if cfg.GXE else 9}
    s_and_b32 s{sT4}, s{sWAVE}, 3
    s_lshl_b32 s{sT4}, s{sT4}, 7
    s_add_u32 s{sT3}, s{sT3}, s{sT4}
    s_add_u32 s{sT3}, s{sT3}, s{sT2}
    v_lshlrev_b32 v{vGL}, {XS_}, v{vT1}
    v_bfe_u32 v{vT3}, v0, 3, 1
    v_lshl_add_u32 v{vGL}, v{vT3}, {11 if cfg.GXE else 10}, v{vGL}
    v_lshl_add_u32 v{vGL}, v{vT2}, 4, v{vGL}
    v_add_u32 v{vGL}, s{sT3}, v{vGL}
    v_add_u32 v{vGL2}, 4096, v{vGL}
    v_and_b32 v{vT0}, 3, v0
    v_bfe_u32 v{vT2}, v0, 2, 2
    v_lshl_add_u32 v{vT2}, v{vT1}, 3, v{vT2}
    v_lshlrev_b32 v{vT3}, 6, v{vT2}
    v_lshl_add_u32 v{vT3}, v{vT0}, 3, v{vT3}
    s_lshr_b32 s{sT0}, s{sWAVE}, 2
    s_lshl_b32 s{sT0}, s{sT0}, 12
    s_bfe_u32 s{sT1}, s{sWAVE}, 0x10001
    s_lshl_b32 s{sT1}, s{sT1}, 13
    s_add_u32 s{sT0}, s{sT0}, s{sT1}
    s_and_b32 s{sT1}, s{sWAVE}, 1
    s_lshl_b32 s{sT1}, s{sT1}, 5
    s_add_u32 s{sT0}, s{sT0}, s{sT1}
    s_add_u32 s{sT0}, s{sT0}, {L_WGU}
    v_add_u32 v{vT3}, s{sT0}, v{vT3}
    ''')
    for ks_ in range(2):
        for hh in range(2):
            A(f'ds_read_b64_tr_b16 {pr(vWf + 4*ks_ + 2*hh)}, v{vT3} offset:{2048*ks_ + 256*hh}')
    A(f'''
    v_lshlrev_b32 v{vT3}, 8, v{vT2}
    v_lshl_add_u32 v{vT3}, v{vT0}, 3, v{vT3}
    s_lshl_b32 s{sT0}, s{sWAVE}, 5
    s_add_u32 s{sT0}, s{sT0}, {L_WGU + 16384}
    v_add_u32 v{vT3}, s{sT0}, v{vT3}
    ds_read_b64_tr_b16 {pr(vWf + 8)}, v{vT3}
    ds_read_b64_tr_b16 {pr(vWf + 10)}, v{vT3} offset:1024
    v_and_b32 v{vT0}, 7, v0
    v_lshrrev_b32 v{vT1}, 5, v{vLANE}
    v_bfe_u32 v{vT2}, v0, 4, 1
    v_lshl_add_u32 v{vT1}, v{vT1}, 1, v{vT2}
    v_lshl_add_u32 v{vT1}, s{sWAVE}, 2, v{vT1}
    v_lshlrev_b32 v{vT1}, 1, v{vT1}
    v_lshl_add_u32 v{vUW}, v{vT0}, 6, v{vT1}
    v_lshrrev_b32 v{vT2}, 4, v{vLANE}
    v_lshlrev_b32 v{vT2}, 4, v{vT2}
    v_lshl_add_u32 v{vUR}, v{vT0}, 6, v{vT2}
    ''')
    A(f'global_load_dwordx4 {q4(vR3)}, v{vX3A}, {P(sWS)} sc1')
    xck = f'''v_xor_b32 v{vT2}, s{sTAG}, v{vU+5}
     v_xor_b32 v{vT3}, s{sTAG}, v{vU+7}
     v_or_b32 v{vT2}, v{vT2}, v{vT3}
     v_cmp_ne_u32 vcc, 0, v{vT2}'''
    A('s_waitcnt vmcnt(1)')
    A(xck)
    A('s_cbranch_vccnz L_pollc')
    A('L_pollc_back:')
    late.append(('L_pollc', lambda: (poll('L_pollcb', f'global_load_dwordx4 {q4(vU+4)}, v{vU+2}, {P(sWS)} sc1', xck), A('s_branch L_pollc_back'))))
    stamp('xcok')
    allred([vU + 4, vU + 6], [S_, Q_])
    A(f'''
    v_and_b32 v{vT1}, 7, v0
    v_lshl_add_u32 v{vT1}, s{sWAVE}, 3, v{vT1}
    s_lshl_b32 s{sT0}, s{sM}, 6
    s_sub_u32 s{sT0}, 2047, s{sT0}
    v_sub_u32 v{vU}, s{sT0}, v{vT1}
    v_lshlrev_b32 v{vU+1}, 2, v{vT1}
    v_mov_b32 v{vT2}, 0
    ds_write_b32 v{vU+1}, v{vT2} offset:{L_ST}
    s_waitcnt vmcnt(0)
    v_cmp_ne_u32 vcc, s{sTAG}, v{vR3+3}
    s_cbranch_vccnz L_poll3
    L_poll3_back:
    ''')
    late.append(('L_poll3', lambda: (poll('L_poll3b', f'global_load_dwordx4 {q4(vR3)}, v{vX3A}, {P(sWS)} sc1', f'v_cmp_ne_u32 vcc, s{sTAG}, v{vR3+3}'),
                 A('s_nop 1'), A('s_branch L_poll3_back'))))
    stamp('x3ok')
    allred([vR3, vR3 + 1, vR3 + 2], [S_, Q_, P_])
    lnstats(vR3, vR3 + 1, S_, vMn, vInv)
    vKey = 96
    A(f'''
    v_fma_f32 v{vKey}, -v{vMn}, v{vU+4}, v{vR3+2}
    v_fma_f32 v{vKey}, v{vKey}, v{vInv}, v{vU+6}
    v_cvt_pk_bf16_f32 v{vKey}, 0, v{vKey}
    v_ashrrev_i32 v{vT0}, 31, v{vKey}
    v_or_b32 v{vT0}, 0x80000000, v{vT0}
    v_and_b32 v{vT0}, s{sMASK}, v{vT0}
    v_xor_b32 v{vKey}, v{vKey}, v{vT0}
    v_or_b32 v{vKey}, v{vKey}, v{vU}
    ds_write_b32 v{vU+1}, v{vKey} offset:{L_KEY}
    s_waitcnt lgkmcnt(0)
    s_barrier
    ds_read_b128 {q4(vR3)}, v{vPA} offset:{L_KEY}
    ds_read_b128 {q4(vSQ)}, v{vPA} offset:{L_KEY+16}
    ''')
    vH2 = 56
    for i in range(8): A(f'v_sub_f32 v{vH2+i}, v{vZ1+i}, v{vMn}')
    for i in range(8): rnd(vH2 + i)
    A('s_waitcnt lgkmcnt(0)')
    vRk = 97
    A(f'v_mov_b32 v{vRk}, 0')
    ks = [vR3 + i for i in range(4)] + [vSQ + i for i in range(4)]
    for half in range(2):
        for i in range(4): A(f'v_cmp_gt_u32 {P(sC0+2*i)}, v{ks[4*half+i]}, v{vKey}')
        for i in range(4): A(f'v_addc_co_u32 v{vRk}, {P(sC0+2*i)}, 0, v{vRk}, {P(sC0+2*i)}')
    allred([vRk], [vT0], add='v_add_u32')
    A(f'''
    s_lshl_b32 s{sT0}, s{sWID}, 6
    s_add_u32 s{sT0}, s{sT0}, {KEYS}
    v_lshl_add_u32 v{vT0}, v{vRk}, 3, s{sT0}
    v_mov_b32 v{vR3}, v{vKey}
    v_mov_b32 v{vR3+1}, s{sTAG}
    v_cmp_gt_u32 {P(sEX)}, 8, v{vRk}
    s_and_b64 exec, {P(sEX)}, 0xff
    s_cbranch_execz L_nokey
    ''')
    lstore(f'global_store_dwordx2 v{vT0}, {pr(vR3)}, {P(sWS)}')
    A('L_nokey:')
    A('s_mov_b64 exec, -1')
    stamp('keyst')
    vKs = 154
    vRow = vKs + 2
    vPk = 110
    vOut = 126
    def h2calc():
        for i in range(8): A(f'v_mul_f32 v{vH2+i}, v{vH2+i}, v{vInv}')
        for i in range(8): rnd(vH2 + i)
        for i in range(8): A(f'v_mul_f32 v{vH2+i}, v{vH2+i}, v{vPar+32+i}')
        for i in range(8): rnd(vH2 + i)
        for i in range(8): A(f'v_add_f32 v{vH2+i}, v{vH2+i}, v{vPar+24+i}')
        for i in range(4):
            A(f'v_cvt_pk_bf16_f32 v{vPk+2*i}, v{vH2+2*i}, v{vH2+2*i+1}')
            A(f'v_mov_b32 v{vPk+2*i+1}, s{sTAG}')
        for i in range(4):
            A(f'v_cvt_pk_bf16_f32 v{vPk+8+2*i}, v{vZ1+2*i}, v{vZ1+2*i+1}')
            A(f'v_mov_b32 v{vPk+8+2*i+1}, s{sTAG}')
    def outcalc():
        for i in range(4): unpack(vH2 + 2*i, vPk + 2*i)
        for i in range(8): A(f'v_mul_f32 v{vH2+i}, v{vH2+i}, v{vPar+40+i}')
        for i in range(8): rnd(vH2 + i)
        for i in range(8): A(f'v_add_f32 v{vH2+i}, v{vH2+i}, v{vZ1+i}')
        for i in range(4): A(f'v_cvt_pk_bf16_f32 v{vOut+i}, v{vH2+2*i}, v{vH2+2*i+1}')
    def outstore():
        A(f'''
        s_andn2_b64 exec, exec, {P(sEX)}
        s_cbranch_execz L_noout3
        global_store_dwordx4 v{vJR}, {q4(vOut)}, {P(sOUT)} {cfg.OUT_FL}
        L_noout2:
        s_mov_b64 exec, -1
        ''')
    late.append(('L_noout3', lambda: (A('s_waitcnt vmcnt(0)'), A('s_branch L_noout2'))))
    h2calc()
    A(f'''
    s_mov_b64 exec, {P(sEX)}
    s_cbranch_execz L_noh2c
    global_store_dwordx4 v{vHC}, {q4(vPk)}, {P(sWS)} sc1
    global_store_dwordx4 v{vHC}, {q4(vPk+4)}, {P(sWS)} offset:128 sc1
    L_noh2c:
    s_mov_b64 exec, -1
    s_cmp_lg_u32 s{sWAVE}, 0
    s_cbranch_scc1 L_kskip
    ''')
    poll('L_pollk', '\n'.join(f'global_load_dwordx2 {pr(vKs+2*r)}, v{vKA}, {P(sWS)} offset:{512*r} sc1' for r in range(4)),
         f'''v_xor_b32 v{vT1}, s{sTAG}, v{vKs+1}
         v_xor_b32 v{vT2}, s{sTAG}, v{vKs+3}
         v_xor_b32 v{vT3}, s{sTAG}, v{vKs+5}
         v_or3_b32 v{vT1}, v{vT1}, v{vT2}, v{vT3}
         v_xor_b32 v{vT2}, s{sTAG}, v{vKs+7}
         v_or_b32 v{vT1}, v{vT1}, v{vT2}
         v_cmp_ne_u32 vcc, 0, v{vT1}''')
    stamp('keysok')
    def sort8(regs, tmps):
        for x, t in zip(regs, tmps): A(f'v_max_u32_dpp v{t}, v{x}, v{x} row_shl:4 row_mask:0xf bank_mask:0x5')
        for x, t in zip(regs, tmps): A(f'v_min_u32_dpp v{t}, v{x}, v{x} row_shr:4 row_mask:0xf bank_mask:0xa')
        for x, t in zip(regs, tmps): A(f'v_mov_b32_dpp v{x}, v{t} quad_perm:[2,3,0,1] {DPPM}')
        for x, t in zip(regs, tmps): A(f'v_med3_u32 v{t}, v{t}, v{x}, v{vM2}')
        for x, t in zip(regs, tmps): A(f'v_mov_b32_dpp v{x}, v{t} quad_perm:[1,0,3,2] {DPPM}')
        for x, t in zip(regs, tmps): A(f'v_med3_u32 v{x}, v{t}, v{x}, v{vM1}')
    k0, k1, k2, k3 = vKs, vKs + 2, vKs + 4, vKs + 6
    t0, t1 = vKs + 1, vKs + 3
    A(f'v_max_u32_dpp v{k0}, v{k1}, v{k0} row_half_mirror {DPPM}')
    A(f'v_max_u32_dpp v{k2}, v{k3}, v{k2} row_half_mirror {DPPM}')
    sort8([k0, k2], [t0, t1])
    A(f'v_max_u32_dpp v{k0}, v{k2}, v{k0} row_half_mirror {DPPM}')
    sort8([k0], [t0])
    A(f'v_max_u32_dpp v{k0}, v{k0}, v{k0} row_mirror {DPPM}')
    sort8([k0], [t0])
    for sw in ('v_permlane16_swap_b32', 'v_permlane32_swap_b32'):
        A(f'v_mov_b32 v{t1}, v{k0}')
        A(f'{sw} v{t1}, v{k0}')
        A(f'v_max_u32_dpp v{k0}, v{k0}, v{t1} row_half_mirror {DPPM}')
        sort8([k0], [t0])
    A(f'''
    v_and_b32 v{vRow}, 0x7ff, v{k0}
    v_sub_u32 v{vRow}, 2047, v{vRow}
    v_lshlrev_b32 v{vT2}, 2, v{vLANE}
    ds_write_b32 v{vT2}, v{vRow} offset:{L_GP}
    s_lshl_b32 s{sT0}, s{sM}, 6
    v_subrev_u32 v{vT1}, s{sT0}, v{vRow}
    v_add_u32 v{vT3}, 1, v{vLANE}
    v_cmp_gt_u32 vcc, 64, v{vT1}
    v_lshlrev_b32 v{vT1}, 2, v{vT1}
    s_and_b64 exec, vcc, 0xff
    ds_write_b32 v{vT1}, v{vT3} offset:{L_ST}
    s_mov_b64 exec, -1
    s_waitcnt lgkmcnt(0)
    s_branch L_kjoin
    L_kskip:
    ''')
    outcalc()
    A(f'''
    L_kjoin:
    s_barrier
    ds_read_b32 v{vGR2}, v{vGA2} offset:{L_GP}
    ds_read_b32 v{vSLT}, v{vU+1} offset:{L_ST}
    s_cmp_ge_u32 s{sM}, {NS3}
    s_cbranch_scc1 L_nog1
    s_cmp_ge_u32 s{sWAVE}, 4
    s_cbranch_scc1 L_nog1
    s_waitcnt lgkmcnt(1)
    v_lshl_add_u32 v{vGA_}, v{vGR2}, 11, v{vGA_}
    global_load_dwordx4 {q4(vG)}, v{vGA_}, {P(sWS)} sc1
    L_nog1:
    ''')
    stamp('top8')
    def x1out():
        A(f'''
        s_waitcnt lgkmcnt(0)
        v_cmp_ne_u32 {P(sEX)}, 0, v{vSLT}
        v_lshl_add_u32 v{vT0}, v{vSLT}, 11, v{vHA}
        v_add_u32 v{vT0}, {X1P - H2P}, v{vT0}
        s_mov_b64 exec, {P(sEX)}
        s_cbranch_execz L_noh2
        global_store_dwordx4 v{vT0}, {q4(vPk+8)}, {P(sWS)} sc1
        global_store_dwordx4 v{vT0}, {q4(vPk+12)}, {P(sWS)} offset:128 sc1
        L_noh2:
        s_mov_b64 exec, -1
        s_cmp_lg_u32 s{sWAVE}, 0
        s_cbranch_scc1 L_noc
        ''')
        outcalc()
        A('L_noc:')
        outstore()
    if cfg.OUTPOS == 'top8': x1out()
    A(f'''
    s_cmp_ge_u32 s{sM}, {NS3}
    s_cbranch_scc1 L_tail
    ''')
    A(f'''
    s_mov_b64 {P(sC0+4)}, -1
    s_mov_b64 {P(sC0+6)}, -1
    s_mov_b32 s{sT2}, 0x03020105
    s_mov_b32 s{sT3}, 0x03020106
    s_mov_b32 s{sT4}, 0x03020107
    s_mov_b32 s{sT0}, 0x0004000c
    s_mov_b32 s{sT1}, 0x0402010c
    s_mov_b64 {P(sC0)}, -1
    s_mov_b64 {P(sC0+2)}, -1
    ''')
    vDg = 182
    A(f'''
    s_cmp_ge_u32 s{sWAVE}, 4
    s_cbranch_scc1 L_gskip
    ''')
    gck = f'''v_xor_b32 v{vG+1}, s{sTAG}, v{vG+1}
         v_xor_b32 v{vG+3}, s{sTAG}, v{vG+3}
         v_or_b32 v{vG+1}, v{vG+1}, v{vG+3}
         v_cmp_ne_u32 vcc, 0, v{vG+1}'''
    A('s_waitcnt vmcnt(0)' if cfg.OUTPOS == 'end' else 's_waitcnt vmcnt(1)')
    A(gck)
    A('s_cbranch_vccnz L_pollg')
    A('L_pollg_back:')
    late.append(('L_pollg', lambda: (poll('L_pollgb', f'global_load_dwordx4 {q4(vG)}, v{vGA_}, {P(sWS)} sc1', gck), A('s_branch L_pollg_back'))))
    A(f'''
    ds_write2_b32 v{vGW_}, v{vG}, v{vG+2} offset0:{(L_G2 % 1024)//4} offset1:{(L_G2 % 1024)//4 + 1}
    L_gskip:
    s_waitcnt lgkmcnt(0)
    ''')
    stamp('gath')
    A(f'''
    s_barrier
    ds_read_b128 {q4(vG)}, v{vGR_} offset:{L_G2}
    ds_read_b128 {q4(vG+8)}, v{vGR_} offset:{L_G2 + 64}
    s_waitcnt lgkmcnt(1)
    v_mfma_f32_16x16x32_bf16 {q4(vDg)}, {q4(vWf)}, {q4(vG)}, 0
    s_waitcnt lgkmcnt(0)
    v_mfma_f32_16x16x32_bf16 {q4(vDg)}, {q4(vWf+4)}, {q4(vG+8)}, {q4(vDg)}
    ''')
    def pack24(y):
        for d in range(3): A(f'v_perm_b32 v{y+d}, v{y+3}, v{y+d}, s{sT2+d}')
        A(f'v_mov_b32 v{y+3}, s{sTAG}')
    vE = 166
    def unp24(us, a, b):
        for u in us: A(f'v_perm_b32 v{u+3}, v{u+1}, v{u}, s{a}')
        for u in us: A(f'v_perm_b32 v{u+3}, v{u+2}, v{u+3}, s{b}')
    y = vE
    if cfg.GXE:
        A(f'''
        v_mov_b32 v{vDg+7}, s{sTAG}
        v_mov_b32 v{vDg+4}, v{vDg+2}
        v_mov_b32 v{vDg+5}, v{vDg+3}
        v_mov_b32 v{vDg+3}, s{sTAG}
        s_mov_b64 exec, {P(sHM)}
        ''')
        lstore(f'''global_store_dwordx4 v{vGS}, {q4(vDg)}, {P(sWS)}
        global_store_dwordx4 v{vGS}, {q4(vDg+4)}, {P(sWS)} offset:512''')
        stamp('preB6')
        mpoll('L_pollx', [(f'global_load_dwordx4 {q4(vE+4*i)}, v{vGL if i < 2 else vGL2}, {P(sWS)} offset:{512*(i&1)} sc1', vE + 4*i + 3, sC0 + 2*i) for i in range(4)])
        stamp('B6')
        A(f'''
        v_pk_add_f32 {pr(y)}, {pr(y)}, {pr(y+8)}
        v_pk_add_f32 {pr(y+2)}, {pr(y+4)}, {pr(y+12)}
        ''')
    else:
        pack24(vDg)
        A(f's_mov_b64 exec, {P(sHM)}')
        lstore(f'global_store_dwordx4 v{vGS}, {q4(vDg)}, {P(sWS)}')
        stamp('preB6')
        mpoll('L_pollx', [(f'global_load_dwordx4 {q4(vE)}, v{vGL}, {P(sWS)} sc1', vE + 3, sC0),
                          (f'global_load_dwordx4 {q4(vE+4)}, v{vGL}, {P(sWS)} offset:2048 sc1', vE + 7, sC0 + 2)])
        stamp('B6')
        unp24([vE, vE + 4], sT0, sT1)
        A(f'''
        v_pk_add_f32 {pr(y)}, {pr(y)}, {pr(y+4)}
        v_pk_add_f32 {pr(y+2)}, {pr(y+2)}, {pr(y+6)}
        ''')
    A(f'''
    v_permlane32_swap_b32 v{y}, v{y+2}
    v_permlane32_swap_b32 v{y+1}, v{y+3}
    v_add_f32 v{y}, v{y}, v{y+2}
    v_add_f32 v{y+1}, v{y+1}, v{y+3}
    v_permlane16_swap_b32 v{y}, v{y+1}
    v_add_f32 v{y}, v{y}, v{y+1}
    v_cvt_pk_bf16_f32 v{y}, 0, v{y}
    v_mul_f32 v{y+2}, 0xbfb8aa3b, v{y}
    v_exp_f32 v{y+2}, v{y+2}
    v_mov_b32_dpp v{y+1}, v{y} row_ror:8 {DPPM}
    v_add_f32 v{y+2}, 1.0, v{y+2}
    v_rcp_f32 v{y+2}, v{y+2}
    v_mul_f32 v{y}, v{y}, v{y+2}
    v_cvt_pk_bf16_f32 v{y}, 0, v{y}
    v_mul_f32 v{y}, v{y}, v{y+1}
    v_cvt_pk_bf16_f32 v{y}, v{y}, v{y}
    s_mov_b64 exec, {P(sHM)}
    ds_write_b16 v{vUW}, v{y} offset:{L_GU}
    s_mov_b64 exec, -1
    s_waitcnt lgkmcnt(0)
    s_barrier
    ds_read_b128 {q4(vE)}, v{vUR} offset:{L_GU}
    s_waitcnt lgkmcnt(0)
    v_mfma_f32_16x16x32_bf16 {q4(vDg)}, {q4(vWf+8)}, {q4(vE)}, 0
    ''')
    stamp('B7')
    pack24(vDg)
    A(f's_mov_b64 exec, {P(sHM)}')
    A(f'global_store_dwordx4 v{vPS}, {q4(vDg)}, {P(sWS)} sc1')
    A('s_mov_b64 exec, -1')
    stamp('partst')
    A(f'''
    s_cmp_lg_u32 s{sWID}, 0
    s_cbranch_scc1 L_noep
    s_cmp_lg_u32 s{sWAVE}, 2
    s_cbranch_scc1 L_noep
    s_add_u32 s{sT0}, s{sEP}, 1
    v_mov_b32 v{vT2}, {EPOCH}
    v_mov_b32 v{vT3}, s{sT0}
    s_mov_b64 exec, 1
    global_store_dword v{vT2}, v{vT3}, {P(sWS)} sc1
    s_mov_b64 exec, -1
    L_noep:
    L_tail:
    ''')
    if cfg.OUTPOS == 'end': x1out()
    A(f'''
    s_cmp_lg_u32 s{sM}, {NS3}
    s_cbranch_scc1 L_red
    ''')
    vWr = 130
    vHr = 134
    vHs = 142
    vPu = 166
    vRr = 182
    A(f'''
    v_lshlrev_b32 v{vT1}, 4, v{vLANE}
    global_load_dwordx4 {q4(vWr)}, v{vT1}, {P(sWR)}
    s_lshl_b32 s{sT3}, s{sWAVE}, 2
    v_mov_b32 v{vT0}, s{sT3}
    ds_read_b32 v{vT0}, v{vT0} offset:{L_GP}
    v_lshrrev_b32 v{vT2}, 3, v{vLANE}
    v_and_b32 v{vT3}, 7, v0
    v_lshlrev_b32 v{vT3}, 4, v{vT3}
    v_lshl_add_u32 v{vT3}, v{vT2}, 8, v{vT3}
    v_add_u32 v{vT3}, {H2R}, v{vT3}
    s_waitcnt lgkmcnt(0)
    v_lshl_add_u32 v{vT3}, v{vT0}, 11, v{vT3}
    s_lshl_b32 s{sT0}, s{sG}, 7
    s_lshl_b32 s{sT1}, s{sWAVE}, 3
    s_add_u32 s{sT0}, s{sT0}, s{sT1}
    s_add_u32 s{sT0}, s{sT0}, {SEL}
    v_mov_b32 v{vT0}, s{sT0}
    ''')
    poll('L_pollr', f'''global_load_dwordx4 {q4(vHr)}, v{vT3}, {P(sWS)} sc1
         global_load_dwordx4 {q4(vHr+4)}, v{vT3}, {P(sWS)} offset:128 sc1''',
         f'''v_xor_b32 v{vHr+1}, s{sTAG}, v{vHr+1}
         v_xor_b32 v{vHr+3}, s{sTAG}, v{vHr+3}
         v_xor_b32 v{vHr+5}, s{sTAG}, v{vHr+5}
         v_xor_b32 v{vHr+7}, s{sTAG}, v{vHr+7}
         v_or3_b32 v{vHr+1}, v{vHr+1}, v{vHr+3}, v{vHr+5}
         v_or_b32 v{vHr+1}, v{vHr+1}, v{vHr+7}
         v_cmp_ne_u32 vcc, 0, v{vHr+1}''')
    A(f'v_mov_b32 v{vRr}, 0')
    for i in range(4): A(f'v_dot2_f32_bf16 v{vRr}, v{vHr+2*i}, v{vWr+i}, v{vRr}')
    fullred([vRr], [vRr + 1])
    rnd(vRr)
    A(f'''
    v_mul_f32 v{vRr}, 0xbfb8aa3b, v{vRr}
    v_exp_f32 v{vRr}, v{vRr}
    v_add_f32 v{vRr}, 1.0, v{vRr}
    v_rcp_f32 v{vRr}, v{vRr}
    v_cvt_pk_bf16_f32 v{vRr}, 0, v{vRr}
    v_mov_b32 v{vRr+1}, s{sTAG}
    s_mov_b64 exec, 1
    ''')
    lstore(f'global_store_dwordx2 v{vT0}, {pr(vRr)}, {P(sWS)}')
    A(f'''
    s_mov_b64 exec, -1
    L_red:
    s_cmp_lg_u32 s{sWAVE}, 1
    s_cbranch_scc1 L_outlate
    v_lshl_add_u32 v{vT0}, v{vLANE}, 4, s{sPT}
    v_mov_b32 v{vPu+12}, 0
    v_mov_b32 v{vPu+13}, 0
    v_mov_b32 v{vPu+14}, 0
    v_mov_b32 v{vPu+15}, s{sTAG}
    s_and_b32 s{sT0}, s{sM}, 3
    s_and_b32 s{sT1}, s{sM}, 28
    v_mov_b32 v{vT3}, s{sT1}
    ds_read_b32 v{vOR+4}, v{vT3} offset:{L_GP}
    s_lshl_b32 s{sT3}, s{sT1}, 9
    s_add_u32 s{sT3}, s{sT3}, {H2P}
    s_lshl_b32 s{sT1}, s{sT1}, 1
    s_lshl_b32 s{sT4}, s{sG}, 7
    s_add_u32 s{sT1}, s{sT1}, s{sT4}
    s_add_u32 s{sT1}, s{sT1}, {SEL}
    v_mov_b32 v{vOR+5}, s{sT1}
    v_and_b32 v{vT1}, 3, v0
    v_lshlrev_b32 v{vT1}, 2, v{vT1}
    v_lshrrev_b32 v{vT2}, 5, v{vLANE}
    v_lshl_add_u32 v{vT1}, v{vT2}, 1, v{vT1}
    v_bfe_u32 v{vT2}, v0, 4, 1
    s_lshl_b32 s{sT4}, s{sT0}, 4
    v_add_u32 v{vT1}, s{sT4}, v{vT1}
    v_add_u32 v{vT3}, v{vT1}, v{vT2}
    v_lshlrev_b32 v{vOR}, 2, v{vT3}
    ds_read_b32 v{vOR+1}, v{vOR} offset:{L_MOD + 5*256}
    v_lshrrev_b32 v{vOR}, 3, v{vT1}
    v_lshlrev_b32 v{vOR}, 4, v{vOR}
    v_bfe_u32 v{vOR+2}, v{vT1}, 2, 1
    v_lshl_add_u32 v{vOR}, v{vOR+2}, 7, v{vOR}
    v_bfe_u32 v{vOR+2}, v{vT1}, 1, 1
    v_lshl_add_u32 v{vOR}, v{vOR+2}, 3, v{vOR}
    s_lshl_b32 s{sT5}, s{sG}, 8
    s_add_u32 s{sT5}, s{sT5}, s{sT3}
    v_add_u32 v{vT1}, s{sT5}, v{vOR}
    v_add_u32 v{vOR+2}, {X1P - H2P}, v{vT1}
    s_lshl_b32 s{sT5}, s{sG}, 8
    s_add_u32 s{sT5}, s{sT5}, {H2R}
    v_add_u32 v{vT1}, s{sT5}, v{vOR}
    s_lshl_b32 s{sT4}, s{sG}, 7
    v_lshl_add_u32 v{vOR+3}, v{vT3}, 1, s{sT4}
    v_lshlrev_b32 v{vT2}, 4, v{vT2}
    v_sub_u32 v{vT2}, 16, v{vT2}
    s_mov_b32 s{sT2}, 0x0004000c
    s_mov_b32 s{sT3}, 0x0402010c
    s_waitcnt lgkmcnt(0)
    v_lshl_add_u32 v{vOR+3}, v{vOR+4}, 10, v{vOR+3}
    v_lshl_add_u32 v{vT1}, v{vOR+4}, 11, v{vT1}
    ''')
    poll('L_polls', f'''global_load_dwordx2 {pr(vHs)}, v{vT1}, {P(sWS)} sc1
         global_load_dwordx2 {pr(vHs+2)}, v{vOR+2}, {P(sWS)} sc1
         global_load_dwordx2 {pr(vRr)}, v{vOR+5}, {P(sWS)} sc1''',
         f'''v_xor_b32 v{vHs+1}, s{sTAG}, v{vHs+1}
         v_xor_b32 v{vHs+3}, s{sTAG}, v{vHs+3}
         v_xor_b32 v{vRr+1}, s{sTAG}, v{vRr+1}
         v_or3_b32 v{vHs+1}, v{vHs+1}, v{vHs+3}, v{vRr+1}
         v_cmp_ne_u32 vcc, 0, v{vHs+1}''')
    A(f'''
    v_lshlrev_b32 v{vHs}, v{vT2}, v{vHs}
    v_and_b32 v{vHs}, s{sMASK}, v{vHs}
    v_lshlrev_b32 v{vHs+2}, v{vT2}, v{vHs+2}
    v_and_b32 v{vHs+2}, s{sMASK}, v{vHs+2}
    ''')
    stamp('redpre')
    if cfg.REDSLP: A(f's_sleep {cfg.REDSLP}')
    for i in range(3): A(f's_mov_b64 {P(sC0+2*i)}, -1')
    A(f's_mov_b32 s{sC0+6}, -1'); A(f's_mov_b32 s{sC0+7}, 0')
    mpoll('L_pollp', [(f'global_load_dwordx4 {q4(vPu+4*i)}, v{vT0}, {P(sWS)} offset:{1024*i} sc1', vPu + 4*i + 3, sC0 + 2*i) for i in range(4)])
    stamp('partok')
    unp24([vPu + 4*i for i in range(4)], sT2, sT3)
    for (a, b) in ((0, 1), (2, 3), (0, 2)):
        for h in range(2): A(f'v_pk_add_f32 {pr(vPu+4*a+2*h)}, {pr(vPu+4*a+2*h)}, {pr(vPu+4*b+2*h)}')
    y = vPu
    A(f'''
    v_permlane32_swap_b32 v{y}, v{y+2}
    v_permlane32_swap_b32 v{y+1}, v{y+3}
    v_add_f32 v{y}, v{y}, v{y+2}
    v_add_f32 v{y+1}, v{y+1}, v{y+3}
    v_permlane16_swap_b32 v{y}, v{y+1}
    v_add_f32 v{y}, v{y}, v{y+1}
    v_add_f32_dpp v{y}, v{y}, v{y} row_ror:8 {DPPM}
    v_add_f32_dpp v{y}, v{y}, v{y} row_ror:4 {DPPM}
    v_cvt_pk_bf16_f32 v{y}, 0, v{y}
    v_mul_f32 v{y}, v{y}, v{vRr}
    v_cvt_pk_bf16_f32 v{y}, 0, v{y}
    v_add_f32 v{y}, v{y}, v{vHs}
    v_cvt_pk_bf16_f32 v{y}, 0, v{y}
    v_mul_f32 v{y}, v{y}, v{vOR+1}
    v_cvt_pk_bf16_f32 v{y}, 0, v{y}
    v_add_f32 v{y}, v{y}, v{vHs+2}
    v_cvt_pk_bf16_f32 v{y}, v{y}, v{y}
    s_mov_b32 s{sT0}, 0x000f000f
    s_mov_b32 s{sT1}, 0x000f000f
    s_mov_b64 exec, {P(sT0)}
    global_store_short v{vOR+3}, v{y}, {P(sOUT)} {cfg.OUT_FL}
    s_mov_b64 exec, -1
    ''')
    A('L_outlate:')
    A('L_fin:')
    if cfg.DBL:
        A(f'''
        s_waitcnt vmcnt(0)
        s_memrealtime s[78:79]
        s_waitcnt lgkmcnt(0)
        s_sub_u32 s{sT0}, s{82 if cfg.DSITE else 78}, s74
        s_add_u32 s{sT0}, s{sT0}, s78
        s_cmp_lg_u32 s{sWAVE}, 1
        s_cbranch_scc1 L_end
        L_dbl:
        s_memrealtime s[80:81]
        s_waitcnt lgkmcnt(0)
        s_sub_u32 s{sT1}, s80, s{sT0}
        s_cmp_lt_i32 s{sT1}, 0
        s_cbranch_scc1 L_dbl
        ''')
    if cfg.DBGT:
        A(f'''
        s_memrealtime s[78:79]
        s_memtime s[80:81]
        s_cmp_lg_u32 s{sWAVE}, 0
        s_cbranch_scc1 L_end
        s_and_b32 s{sT0}, s{sWID}, 0x3f
        s_cmp_lg_u32 s{sT0}, 28
        s_cbranch_scc1 L_end
        s_waitcnt lgkmcnt(0)
        s_sub_u32 s{sT0}, s78, s74
        s_sub_u32 s{sT1}, s80, s76
        v_mov_b32 v4, s{sT0}
        v_mov_b32 v5, s{sT1}
        v_mov_b32 v6, s74
        v_mov_b32 v7, s78
        s_lshr_b32 s{sT0}, s{sWID}, 6
        s_lshl_b32 s{sT0}, s{sT0}, 4
        v_mov_b32 v8, s{sT0}
        s_mov_b64 exec, 1
        global_store_dwordx4 v8, v[4:7], {P(sDBG)}
        ''')
    if cfg.STAMP:
        A(f's_memtime s[{sST+2*nst[0]}:{sST+2*nst[0]+1}]'); nst[0] += 1
        if cfg.RTEND:
            A('s_waitcnt vmcnt(0)' if cfg.RTEND == 2 else 's_nop 0')
            A(f's_memrealtime s[{sST+2*nst[0]}:{sST+2*nst[0]+1}]'); nst[0] += 1
        A(f'''
        s_waitcnt lgkmcnt(0)
        s_lshl_b32 s{sT0}, s{sWID}, 3
        s_add_u32 s{sT0}, s{sT0}, s{sWAVE}
        s_lshl_b32 s{sT0}, s{sT0}, 7
        s_add_u32 s{sT0}, s{sT0}, {STAMPS}
        v_mov_b32 v{vT0}, s{sT0}
        s_mov_b64 exec, 1
        ''')
        for i in range(nst[0]):
            A(f'v_mov_b32 v{vT1}, s{sST+2*i}')
            A(f'global_store_dword v{vT0}, v{vT1}, {P(sWS)} offset:{4*i}')
        A(f'v_mov_b32 v{vT1}, s{sCNT}')
        A(f'global_store_dword v{vT0}, v{vT1}, {P(sWS)} offset:120')
        A(f'v_mov_b32 v{vT1}, s{sMODE}')
        A(f'global_store_dword v{vT0}, v{vT1}, {P(sWS)} offset:124')
    A('L_end:')
    A('s_endpgm')
    for k, t in slow:
        A(f'L_slow{k}:'); A('s_nop 4'); A(t); A('s_nop 1'); A(f's_branch L_back{k}')
    A('L_modeslow:')
    A(f'''
    s_mov_b32 s3, 64
    L_moderetry:
    global_load_dword v{vMT}, v{vPT}, {P(sWS)} sc1
    s_waitcnt vmcnt(0)
    s_mov_b32 s{sMODE}, {0 if cfg.FORCE_SLOW else 1}
    v_cmp_ne_u32 vcc, s{sXCC}, v{vMT}
    s_cbranch_vccz L_modeback
    s_mov_b32 s{sMODE}, 0
    v_subrev_u32 v{vMT+1}, s{sTAG}, v{vMT}
    v_subrev_u32 v{vMT+1}, 1, v{vMT+1}
    v_cmp_lt_u32 vcc, 15, v{vMT+1}
    s_cbranch_vccz L_modeback
    s_sub_u32 s3, s3, 1
    s_cbranch_scc0 L_moderetry
    s_branch L_modeback
    ''')
    for name, fn in late:
        A(name + ':'); fn()
    A('L_codeend:')
    return A

HEAD = open('adaLN_cond__ssm_conv_h3__moe_arch_mod__prompt.s.ref').read().split('; Override launch')[0]
def emit(path):
    A = build()
    s = HEAD + f'; @launch grid=(256,1,1) block=(512,1,1) lds={LDS_BYTES}\n'
    s += f'''.amdgcn_target "amdgcn-amd-amdhsa--gfx950"
.text
.globl {KNAME}
.p2align 8
.type {KNAME},@function
{KNAME}:
'''
    s += A.text()
    s += f'''.section .rodata,"a"
.p2align 6
.amdhsa_kernel {KNAME}
  .amdhsa_next_free_vgpr 248
  .amdhsa_next_free_sgpr 102
  .amdhsa_accum_offset 248
  .amdhsa_group_segment_fixed_size 0
  .amdhsa_kernarg_size 128
  .amdhsa_user_sgpr_count 2
  .amdhsa_user_sgpr_kernarg_segment_ptr 1
  .amdhsa_system_sgpr_workgroup_id_x 1
.end_amdhsa_kernel
'''
    open(path, 'w').write(s)
    return A

if __name__ == '__main__':
    out = sys.argv[1]
    for a in sys.argv[2:]:
        k, v = a.split('=')
        setattr(cfg, k, eval(v))
    A = emit(out)
    if cfg.STAMP: open(out + '.sites', 'w').write(' '.join(cfg.ORDER + ['end']))
    print('emitted', out, 'lines', len(A.out), 'pads', A.npad)
```
